```python
import torch

def _softmax(x, axis=-1):
    return torch.softmax(x, dim=axis)
def _gelu(x):
    return torch.nn.functional.gelu(x, approximate="tanh")
def _silu(x):
    return torch.nn.functional.silu(x)
def _sigmoid(x):
    return torch.sigmoid(x)
def _layernorm(x, axis=-1, eps=1e-5):
    m = x.mean(dim=axis, keepdim=True)
    v = x.var(dim=axis, keepdim=True, unbiased=False)
    return (x - m) / torch.sqrt(v + eps)
def _scatter_add(tgt, idx, src, axis=0):
    return tgt.clone().index_add_(axis, idx, src)
def _segment_sum(src, seg, n):
    out = torch.zeros((n,) + src.shape[1:], dtype=src.dtype)
    return out.index_add_(0, seg, src)
def _pad(x, pw):
    flat = tuple(v for pair in reversed(pw) for v in pair)
    return torch.nn.functional.pad(x, flat)

kernel_name = 'recurrent_scan__spectral_fnet__mixer_channel_mlp__prompt'

def setup_inputs():

    _w = (lambda a: (lambda t: t.to(torch.bfloat16) if t.is_floating_point() else t)(torch.as_tensor(a)))
    def _A_setup():
        B, S, D = 1, 2048, 512
        ns = torch.arange(S)[:, None] * torch.arange(S)[None, :]
        nd = torch.arange(D)[:, None] * torch.arange(D)[None, :]
        Ws_re = torch.cos(-2.0 * torch.pi * ns / S).to(float)
        Ws_im = torch.sin(-2.0 * torch.pi * ns / S).to(float)
        Wd_re = torch.cos(-2.0 * torch.pi * nd / D).to(float)
        Wd_im = torch.sin(-2.0 * torch.pi * nd / D).to(float)
        return {
            "x": _w((lambda *s: torch.randn(*s, dtype=torch.bfloat16) * 0.05)(B, S, D)),
            "dft_seq_re": _w(Ws_re),
            "dft_seq_im": _w(Ws_im),
            "dft_hid_re": _w(Wd_re),
            "dft_hid_im": _w(Wd_im),
        }
    _A_in = _A_setup()

    def _B_setup():
        B, S, D, F = 1, 2048, 512, 1792
        return {
            "x": _w((lambda *s: torch.randn(*s, dtype=torch.bfloat16) * 0.05)(B, S, D)),
            "w1": _w((lambda *s: torch.randn(*s, dtype=torch.bfloat16) * 0.8)(D, F) * (D ** -0.5)),
            "b1": _w((lambda *s: torch.randn(*s, dtype=torch.bfloat16) * 0.4)(F)),
            "w2": _w((lambda *s: torch.randn(*s, dtype=torch.bfloat16) * 0.05)(F, D) * (F ** -0.5)),
            "b2": _w((lambda *s: torch.randn(*s, dtype=torch.bfloat16) * 0.05)(D)),
        }
    _B_in = _B_setup()

    return {
        "A_x": _A_in["x"],
        "A_dft_seq_re": _A_in["dft_seq_re"],
        "A_dft_seq_im": _A_in["dft_seq_im"],
        "A_dft_hid_re": _A_in["dft_hid_re"],
        "A_dft_hid_im": _A_in["dft_hid_im"],
        "B_x": _B_in["x"],
        "B_w1": _B_in["w1"],
        "B_b1": _B_in["b1"],
        "B_w2": _B_in["w2"],
        "B_b2": _B_in["b2"],
    }

def reference(A_x, A_dft_seq_re, A_dft_seq_im, A_dft_hid_re, A_dft_hid_im, B_x, B_w1, B_b1, B_w2, B_b2):
    def _A_ref(x, dft_seq_re, dft_seq_im, dft_hid_re, dft_hid_im):
        a = torch.einsum("bsd,ed->bse", x, dft_hid_re)
        b = torch.einsum("bsd,ed->bse", x, dft_hid_im)
        y = torch.einsum("ts,bse->bte", dft_seq_re, a) - torch.einsum("ts,bse->bte", dft_seq_im, b)
        return y

    def _B_ref(x, w1, b1, w2, b2):
        y = _layernorm(x, axis=-1)
        h = _gelu(torch.einsum("bsd,df->bsf", y, w1) + b1)
        return torch.einsum("bsf,fd->bsd", h, w2) + b2

    x = A_x
    xn = _layernorm(x, axis=-1)
    s = _A_ref(xn, A_dft_seq_re, A_dft_seq_im, A_dft_hid_re, A_dft_hid_im)
    g = _silu(_B_ref(xn, B_w1, B_b1, B_w2, B_b2))
    return x + s * g
```

```python
KN='recurrent_scan__spectral_fnet__mixer_channel_mlp__prompt_kernel'
class A:
    def __init__(self): self.l=[]
    def __call__(self,s):
        for x in s.split('\n'):
            x=x.strip()
            if x: self.l.append(('' if x.endswith(':') else '    ')+x)
    def text(self): return '\n'.join(self.l)+'\n'
def kd(name,vgpr,sgpr=102,accum=None):
    if accum is None: accum=min(256,(vgpr+3)//4*4)
    return f'''.amdhsa_kernel {name}
  .amdhsa_next_free_vgpr {vgpr}
  .amdhsa_next_free_sgpr {sgpr}
  .amdhsa_accum_offset {accum}
  .amdhsa_group_segment_fixed_size 0
  .amdhsa_kernarg_size 104
  .amdhsa_user_sgpr_count 2
  .amdhsa_user_sgpr_kernarg_segment_ptr 1
  .amdhsa_system_sgpr_workgroup_id_x 1
  .amdhsa_float_denorm_mode_32 3
.end_amdhsa_kernel
'''
def wrap(kernels, header_comment=''):
    o=header_comment
    if len(kernels)==1 and kernels[0]['name']==KN:
        k=kernels[0]; o+=f"; @launch grid=({k['grid']},1,1) block=({k['block']},1,1) lds={k['lds']}\n"
    else:
        for k in kernels: o+=f"; @launch kernel={k['name']} grid=({k['grid']},1,1) block=({k['block']},1,1) lds={k['lds']}\n"
    o+='.amdgcn_target "amdgcn-amd-amdhsa--gfx950"\n.text\n'
    seen=set()
    for k in kernels:
        if k['name'] in seen: continue
        seen.add(k['name'])
        o+=f".globl {k['name']}\n.p2align 8\n.type {k['name']},@function\n{k['name']}:\n"+k['body']
    o+='.section .rodata,"a"\n'
    seen=set()
    for k in kernels:
        if k['name'] in seen: continue
        seen.add(k['name'])
        o+='.p2align 6\n'+kd(k['name'],k['vgpr'],k.get('sgpr',102),k.get('accum'))
    return o
```

```python
import re
REG=re.compile(r'^(-?)(abs\()?([vas])(\d+)\)?$')
RNG=re.compile(r'^(-?)([vas])\[(\d+):(\d+)\]$')
def regs(op):
    op=op.strip()
    m=RNG.match(op)
    if m: return [(m.group(2),i) for i in range(int(m.group(3)),int(m.group(4))+1)]
    m=REG.match(op)
    if m: return [(m.group(3),int(m.group(4)))]
    if op in('vcc',): return [('s','vcc')]
    if op in('exec',): return [('s','exec')]
    if op=='m0': return [('s','m0')]
    return []
TRANS=('v_exp_f32','v_log_f32','v_rcp_f32','v_rsq_f32','v_sqrt_f32','v_sin_f32','v_cos_f32')
class I:
    def __init__(s,text):
        s.text=text
        t=text.split(';')[0].strip()
        s.label=t.endswith(':') or t.startswith('.') or t==''
        s.op=''; s.w=[]; s.r=[]; s.n=1
        if s.label: s.n=0; return
        p=t.split(None,1); s.op=p[0]
        rest=p[1] if len(p)>1 else ''
        ops=[x.strip() for x in rest.split(',')] if rest else []
        if ops:
            lastparts=ops[-1].split()
            mods=' '.join(lastparts[1:]); ops[-1]=lastparts[0] if lastparts else ''
        else: mods=''
        clean=[]
        for o in ops:
            if o.startswith('op_sel') or o.startswith('neg_') : break
            clean.append(o.split()[0] if o else o)
        ops=clean
        s.mods=t
        op=s.op
        s.mfma=op.startswith('v_mfma')
        s.valu=op.startswith('v_') and not s.mfma
        s.dot=op.startswith('v_dot')
        s.trans=any(op.startswith(x) for x in TRANS)
        s.vmem=op.startswith('buffer_') or op.startswith('global_')
        s.ds=op.startswith('ds_')
        s.salu=op.startswith('s_')
        s.dpp=('dpp' in op) or ('quad_perm' in t) or ('row_' in t)
        s.perml=op.startswith('v_permlane')
        s.lds_dma=s.vmem and re.search(r'\blds\b',t) is not None
        s.store=(s.vmem and ('store' in op or 'atomic' in op)) or (s.ds and 'write' in op)
        s.wide_store=s.vmem and 'store' in op and ('x4' in op or 'x3' in op)
        if op=='s_nop': s.n=int(ops[0])+1
        allr=[regs(o) for o in ops]
        if s.mfma:
            s.w=allr[0]; s.A=allr[1]; s.B=allr[2]; s.C=allr[3]; s.r=s.A+s.B+s.C
            s.passes=8 if '32x32' in op else 4
        elif s.store or s.lds_dma:
            s.r=[x for a in allr for x in a]
            if s.vmem and 'atomic' in op and 'sc0' in t: s.w=allr[0]
            s.data=allr[0] if s.vmem and op.startswith('buffer_') else (allr[1] if len(allr)>1 else [])
            if s.lds_dma: s.r.append(('s','m0'))
        elif op.startswith('s_cmp') or op.startswith('s_cbranch') or op in('s_waitcnt','s_barrier','s_nop','s_branch','s_endpgm','s_setprio','s_sleep'):
            s.r=[x for a in allr for x in a]
        elif s.perml:
            s.w=allr[0]+allr[1]; s.r=allr[0]+allr[1]
        elif op.startswith('v_cmp'):
            s.w=allr[0]; s.r=[x for a in allr[1:] for x in a]
        else:
            s.w=allr[0] if allr else []
            s.r=[x for a in allr[1:] for x in a]
            if op.startswith('v_dot2c') or op.startswith('v_fmac') or s.dpp: s.r+=s.w
            if op.startswith('v_add_co') or op.startswith('v_addc_co'):
                s.w=allr[0]+allr[1]; s.r=[x for a in allr[2:] for x in a]
            if 'saveexec' in op: s.w+= [('s','exec')]
            if op.startswith('v_cndmask') and len(ops)==3: s.r.append(('s','vcc'))
def need(p,c):
    n=0
    pw=set(p.w); cr=set(c.r); cw=set(c.w)
    vg=lambda S:{x for x in S if x[0] in 'va'}
    sg=lambda S:{x for x in S if x[0]=='s'}
    if p.mfma:
        D=pw
        big={8:12,4:8}[p.passes]
        if c.mfma:
            if D&(set(c.A)|set(c.B)): n=max(n,big)
            if D&set(c.C):
                if not (set(c.C)==D and c.passes==p.passes): n=max(n,{8:10,4:6}[p.passes])
            elif D&cw and False: pass
        else:
            if (c.valu or c.vmem or c.ds) and D&(cr|cw): n=max(n,big)
        if c.valu and set(p.C)&cw: n=max(n,{8:7,4:3}[p.passes])
    if p.valu:
        if c.mfma and vg(pw)&cr: n=max(n,2)
        if p.dot:
            same=(c.op==p.op)
            if vg(pw)&(cr|cw):
                if same:
                    srcs=set(c.r)-set(c.w) if c.op.startswith('v_dot2c') else cr
                    if vg(pw)&srcs: n=max(n,3)
                else: n=max(n,3)
        if p.trans and c.valu and not c.trans and vg(pw)&cr: n=max(n,1)
        if p.trans and (c.trans) and vg(pw)&cr: n=max(n,1)
        if c.valu and c.dpp and vg(pw)&cr: n=max(n,2)
        if c.perml and vg(pw)&cr: n=max(n,2)
        if (c.op.startswith('v_readfirstlane') or c.op.startswith('v_readlane')) and vg(pw)&cr: n=max(n,1)
        if sg(pw):
            if c.vmem and sg(pw)&cr: n=max(n,5)
            if c.valu and sg(pw)&cr: n=max(n,2)
            if c.salu and sg(pw)&cr: n=max(n,1)
    if p.salu and ('s','m0') in pw and c.lds_dma: n=max(n,1)
    if p.salu and ('s','exec') in pw and False: pass
    if getattr(p,'wide_store',False) and vg(set(p.data))&vg(cw): n=max(n,2)
    return n
def fix(lines, verbose=False):
    out=[]; hist=[]
    pos=0; added=0
    for ln in lines:
        c=I(ln)
        if c.label:
            out.append(ln); continue
        req=0
        for p,pp in hist[-24:]:
            d=pos-pp
            k=need(p,c)
            if k>d: req=max(req,k-d)
        if req>0:
            out.append(f'    s_nop {req-1}'); added+=1
            if verbose: print('nop',req,'before',ln.strip())
            pos+=req
        out.append(ln)
        pos+=c.n
        hist.append((c,pos))
    return out
```

```python
import sys, math, struct
sys.path.insert(0,'tools')
from asmlib import A, wrap, KN
import hazard

def f2u(x): return struct.unpack('<I',struct.pack('<f',x))[0]
U_OFF = 8<<20
TS_OFF = 200<<20
HDR = open('recurrent_scan__spectral_fnet__mixer_channel_mlp__prompt.s.ref').read().split('; Override launch')[0]

class G:
    def __init__(s, stamps=False):
        s.a=A(); s.stamps=stamps; s.nst=0
    def __call__(s,t): s.a(t)
    def stamp(s):
        if s.stamps:
            assert s.nst<8
            s(f's_memrealtime s[{80+2*s.nst}:{81+2*s.nst}]'); s.nst+=1
    def dump_stamps(s, base):
        if not s.stamps: return
        s('s_waitcnt lgkmcnt(0)')
        for i in range(8): s(f'v_mov_b32 v{4+i}, s{80+2*i}' if i<s.nst else f'v_mov_b32 v{4+i}, 0')
        s(f'''s_mov_b32 s72, s28
        s_mov_b32 s73, s29
        s_mov_b32 s74, 0x10000000
        s_mov_b32 s75, 0x20000
        s_lshl_b32 s76, s2, 2
        s_add_u32 s76, s76, s3
        s_lshl_b32 s76, s76, 5
        s_add_u32 s76, s76, {base}
        v_mov_b32 v12, 0
        v_cmp_eq_u32 vcc, 0, v0
        s_and_saveexec_b64 s[78:79], vcc
        buffer_store_dwordx4 v[4:7], v12, s[72:75], s76 offen
        buffer_store_dwordx4 v[8:11], v12, s[72:75], s76 offen offset:16
        s_mov_b64 exec, s[78:79]''')

def srd(g, d, ptr, nbytes, add=0):
    if add:
        g(f's_add_u32 s{d}, s{ptr}, {add}\ns_addc_u32 s{d+1}, s{ptr+1}, 0')
    else:
        g(f's_mov_b32 s{d}, s{ptr}\ns_mov_b32 s{d+1}, s{ptr+1}')
    g(f's_mov_b32 s{d+2}, {nbytes}\ns_mov_b32 s{d+3}, 0x20000')

def entry(g, endlabel):
    g(f'''s_cmp_ge_u32 s2, 256
    s_cbranch_scc1 {endlabel}''')
    g.stamp()
    g('''s_load_dwordx16 s[4:19], s[0:1], 0
    s_load_dwordx8 s[20:27], s[0:1], 64
    s_load_dwordx2 s[28:29], s[0:1], 96
    v_lshrrev_b32 v1, 6, v0
    v_and_b32 v0, 63, v0
    v_readfirstlane_b32 s3, v1
    s_and_b32 s30, s2, 7
    s_lshr_b32 s31, s2, 3
    s_lshl_b32 s48, s30, 1
    s_lshr_b32 s49, s31, 4
    s_add_u32 s48, s48, s49''')

def t1_of(g, dst, rb, sh, tmp):
    g(f'''s_sub_u32 {tmp}, 32, {rb}
    s_cmp_eq_u32 {rb}, 0
    s_cselect_b32 {tmp}, 16, {tmp}
    s_cmp_eq_u32 {sh}, 0
    s_cselect_b32 {dst}, {rb}, {tmp}''')

def bf16r(g, v):
    g(f'v_cvt_pk_bf16_f32 {v}, {v}, {v}\nv_lshlrev_b32 {v}, 16, {v}')

def stats_to_sd(g, vsum, vsq, vmean, vvar, vsd):
    g(f'''v_mul_f32 {vmean}, {f2u(1/512):#x}, {vsum}
    v_mul_f32 {vvar}, {f2u(1/512):#x}, {vsq}
    v_fma_f32 {vvar}, -{vmean}, {vmean}, {vvar}
    v_max_f32 {vvar}, 0, {vvar}
    v_mov_b32 {vsd}, {vvar}''')
    bf16r(g,vsd)
    g(f'v_add_f32 {vsd}, {f2u(1e-5):#x}, {vsd}')
    bf16r(g,vsd)
    g(f'v_sqrt_f32 {vsd}, {vsd}')
    bf16r(g,vsd)

def p1_mlp(g):
    ACC=64
    vX=[2,3,4,5]; vW=[6,7,8,9]; vB0=[10,11,12,13]; vB1=[14,15,16,17]; vA=[18,19]
    vSUM,vSQ,vCS,vB1B=20,21,22,23
    g('''s_and_b32 s50, s3, 1
    s_lshr_b32 s51, s3, 1''')
    t1_of(g,'s52','s48','s51','s53')
    g(f'''v_lshrrev_b32 v24, 3, v0
    v_lshrrev_b32 v25, 4, v0
    v_and_b32 v26, 7, v0
    v_xor_b32 v26, v26, v25
    v_lshlrev_b32 v26, 4, v26
    v_lshl_add_u32 v26, v24, 15, v26
    s_lshl_b32 s53, s52, 10
    s_lshl_b32 s54, s50, 20
    s_add_u32 s53, s53, s54
    v_add_u32 v{vX[0]}, s53, v26
    v_xor_b32 v27, 64, v{vX[0]}
    v_add_u32 v{vX[1]}, {262144-1024}, v27
    v_add_u32 v{vX[2]}, {2*(262144-1024)}, v{vX[0]}
    v_add_u32 v{vX[3]}, {3*(262144-1024)}, v27
    v_and_b32 v26, 15, v0
    v_lshlrev_b32 v27, 2, v25
    v_xor_b32 v26, v26, v27
    v_lshlrev_b32 v26, 4, v26
    v_mul_u32_u24 v27, 3584, v25
    v_add_u32 v26, v26, v27
    s_mul_i32 s53, s3, 57344
    s_lshl_b32 s54, s49, 8
    s_add_u32 s53, s53, s54
    v_add_u32 v{vW[0]}, s53, v26
    v_add_u32 v{vW[1]}, 13312, v{vW[0]}
    v_add_u32 v{vW[2]}, {2*13312}, v{vW[0]}
    v_add_u32 v{vW[3]}, {3*13312}, v{vW[0]}
    s_lshl_b32 s55, s3, 12
    s_waitcnt lgkmcnt(0)''')
    srd(g,32,4,2097152); srd(g,36,16,512*1792*2); srd(g,40,18,1792*2)
    g('''s_and_b32 s56, s48, 1
    s_lshl_b32 s56, s56, 2
    s_add_u32 s56, s56, s49
    s_and_b32 s56, s56, 7''')
    def issue(st):
        slot=st&3
        g(f'''s_lshl_b32 s57, s56, 7
        s_mul_i32 s58, s56, 229376
        s_add_u32 m0, s55, {slot*32768}''')
        for i in range(4): g(f'buffer_load_dwordx4 v{vX[i]}, s[32:35], s57 offen offset:{1024*i} lds')
        g(f's_add_u32 m0, s55, {slot*32768+16384}')
        for i in range(4): g(f'buffer_load_dwordx4 v{vW[i]}, s[36:39], s58 offen offset:{1024*i} lds')
        g('s_add_u32 s56, s56, 1\ns_and_b32 s56, s56, 7')
    for st in range(3): issue(st)
    g(f'''v_and_b32 v24, 31, v0
    s_lshl_b32 s53, s49, 7
    s_lshl_b32 s54, s50, 6
    s_add_u32 s53, s53, s54
    s_lshl_b32 s54, s51, 5
    s_add_u32 s53, s53, s54
    v_add_lshl_u32 v25, v24, s53, 1
    buffer_load_ushort v{vB1B}, v25, s[40:43], 0 offen''')
    g(f'''v_lshrrev_b32 v25, 5, v0
    v_bfe_u32 v26, v0, 1, 3
    v_xor_b32 v26, v26, v25
    s_lshl_b32 s53, s51, 13
    s_lshl_b32 s54, s50, 12
    s_add_u32 s53, s53, s54
    v_lshlrev_b32 v27, 7, v24
    v_add_u32 v27, s53, v27''')
    for kk in range(4):
        g(f'''v_xor_b32 v28, {2*kk}, v26
        v_lshl_add_u32 v{vB0[kk]}, v28, 4, v27
        v_xor_b32 v{vB1[kk]}, 0x1000, v{vB0[kk]}''')
    g(f'''v_bfe_u32 v26, v0, 2, 2
    v_lshl_add_u32 v27, v25, 3, v26
    v_lshlrev_b32 v27, 8, v27
    s_lshl_b32 s53, s50, 1
    s_add_u32 s53, s53, s51
    v_xor_b32 v26, s53, v26
    v_lshl_add_u32 v27, v26, 6, v27
    v_bfe_u32 v26, v0, 4, 1
    v_lshl_add_u32 v27, v26, 5, v27
    v_and_b32 v26, 3, v0
    v_lshl_add_u32 v27, v26, 3, v27
    v_add_u32 v{vA[0]}, 16384, v27
    v_xor_b32 v{vA[1]}, 64, v{vA[0]}
    s_mov_b32 s59, 0x3f803f80
    v_mov_b32 v{vSUM}, 0
    v_mov_b32 v{vSQ}, 0
    v_mov_b32 v{vCS}, 0''')
    def fr(s_):
        b=32+16*s_
        return dict(A=[b,b+4],B=[b+8,b+12])
    def reads(st,kk):
        f=fr(kk&1); o=(st&1)*32768
        for t in range(2):
            for q in range(2):
                g(f'ds_read_b64_tr_b16 v[{f["A"][t]+2*q}:{f["A"][t]+2*q+1}], v{vA[t]} offset:{o+4096*kk+1024*q}')
        g(f'ds_read_b128 v[{f["B"][0]}:{f["B"][0]+3}], v{vB0[kk]} offset:{o}')
        g(f'ds_read_b128 v[{f["B"][1]}:{f["B"][1]+3}], v{vB1[kk]} offset:{o}')
    def compute(st,kk):
        f=fr(kk&1)
        for t in range(2):
            for u in range(2):
                d=ACC+16*(2*t+u)
                c=f'v[{d}:{d+15}]' if not (st==0 and kk==0) else '0'
                g(f'v_mfma_f32_32x32x16_bf16 v[{d}:{d+15}], v[{f["A"][t]}:{f["A"][t]+3}], v[{f["B"][u]}:{f["B"][u]+3}], {c}')
        for i in range(4):
            g(f'''v_dot2c_f32_bf16 v{vSUM}, s59, v{f["B"][0]+i}
            v_dot2c_f32_bf16 v{vSQ}, v{f["B"][0]+i}, v{f["B"][0]+i}
            v_dot2c_f32_bf16 v{vCS}, s59, v{f["A"][0]+i}''')
    for st in range(8):
        if st==0: n=17
        elif st<=5: n=16 if st>1 else 17
        elif st==6: n=8
        else: n=0
        if st==1: n=17
        g(f's_waitcnt vmcnt({n})\ns_barrier')
        if st==0: g.stamp()
        if st in (2,4,6):
            for r in vB0+vB1+vA: g(f'v_xor_b32 v{r}, 0x10000, v{r}')
        reads(st,0)
        if st+3<8: issue(st+3)
        for kk in range(4):
            if kk<3:
                reads(st,kk+1); g('s_waitcnt lgkmcnt(6)')
            else: g('s_waitcnt lgkmcnt(0)')
            compute(st,kk)
    g.stamp()
    EX=131072
    for v in (vSUM,vSQ,vCS):
        g(f'v_mov_b32 v24, v{v}\nv_permlane32_swap_b32 v{v}, v24\nv_add_f32 v{v}, v{v}, v24')
    stats_to_sd(g,f'v{vSUM}',f'v{vSQ}','v24','v25','v26')
    g('''v_rcp_f32 v27, v26
    v_mul_f32 v25, v25, v27
    v_mul_f32 v25, v25, v27''')
    bf16r(g,'v25')
    g(f'v_add_f32 v25, {f2u(1e-5):#x}, v25')
    bf16r(g,'v25')
    g('v_sqrt_f32 v25, v25')
    bf16r(g,'v25')
    g('v_mul_f32 v35, v25, v26')
    g('''v_sub_f32 v24, 0, v24
    v_cvt_pk_bf16_f32 v32, v24, v24
    v_lshlrev_b32 v25, 16, v32
    v_sub_f32 v24, v24, v25
    v_cvt_pk_bf16_f32 v33, v24, v35
    v_and_b32 v25, 0xffff0000, v33
    v_sub_f32 v25, v35, v25
    v_cvt_pk_bf16_f32 v34, v25, 0''')
    g(f'''v_cvt_pk_bf16_f32 v24, v{vCS}, v{vCS}
    v_lshlrev_b32 v25, 16, v24
    v_sub_f32 v25, v{vCS}, v25
    v_cvt_pk_bf16_f32 v36, v{vCS}, v25
    v_and_b32 v24, 0xffff, v24
    v_lshl_or_b32 v37, v{vB1B}, 16, v24
    v_mov_b32 v38, v{vB1B}
    v_mov_b32 v39, 0
    v_cmp_gt_u32 vcc, 32, v0
    v_cndmask_b32 v36, 0, v36, vcc
    v_cndmask_b32 v37, 0, v37, vcc
    v_cndmask_b32 v38, 0, v38, vcc
    s_lshl_b32 s53, s51, 1
    s_add_u32 s53, s53, s50
    s_lshl_b32 s53, s53, 10
    s_add_u32 s53, s53, {EX}
    s_lshl_b32 s54, s50, 1
    s_add_u32 s54, s54, s51
    s_lshl_b32 s54, s54, 10
    s_add_u32 s54, s54, {EX+4096}
    v_lshl_add_u32 v24, v0, 4, s53
    v_lshl_add_u32 v25, v0, 4, s54
    ds_write_b128 v24, v[32:35]
    ds_write_b128 v25, v[36:39]
    v_xor_b32 v24, 0x400, v24
    v_xor_b32 v25, 0x400, v25
    s_waitcnt lgkmcnt(0)
    s_barrier
    ds_read_b128 v[40:43], v24
    ds_read_b128 v[44:47], v25''')
    c0=-2*math.sqrt(2/math.pi)*math.log2(math.e); c1=c0*0.044715
    def consts(ri, K, RI):
        g(f'''v_rcp_f32 v24, v{ri}
        v_mov_b32 v{RI}, v{ri}
        v_mul_f32 v{K+1}, {f2u(c0):#x}, v24
        v_mul_f32 v25, v24, v24
        v_mul_f32 v25, v25, v24
        v_mul_f32 v{K}, {f2u(c1):#x}, v25
        v_mov_b32 v{ri}, 0''')
    consts(35,48,50)
    g('s_waitcnt lgkmcnt(0)')
    consts(43,52,54)
    Aex=[36,44]; Bex=[32,40]
    for t in range(2):
        for u in range(2):
            d=ACC+16*(2*t+u)
            g(f'v_mfma_f32_32x32x16_bf16 v[{d}:{d+15}], v[{Aex[t]}:{Aex[t]+3}], v[{Bex[u]}:{Bex[u]+3}], v[{d}:{d+15}]')
    srd(g,44,28,7340032)
    g('''s_mul_i32 s53, s52, 112
    s_lshl_b32 s54, s49, 3
    s_add_u32 s53, s53, s54
    s_lshl_b32 s54, s50, 2
    s_add_u32 s53, s53, s54
    s_lshl_b32 s53, s53, 11
    s_lshl_b32 s54, s51, 12
    s_add_u32 s53, s53, s54
    s_lshl_b32 s54, s50, 10
    s_add_u32 s60, s53, s54
    s_xor_b32 s61, s60, 0x400
    s_xor_b32 s62, s60, 0x1000
    s_xor_b32 s63, s60, 0x1400
    v_lshlrev_b32 v56, 4, v0''')
    T=2
    for t in range(2):
        for u in range(2):
            d=ACC+16*(2*t+u); K=[48,52][u]; RI=[50,54][u]
            for j in range(2):
                P=[d+8*j+2*i for i in range(4)]
                tm=[2+2*i for i in range(4)]
                o=[24,28][j]
                for i in range(4): g(f'v_pk_mul_f32 v[{tm[i]}:{tm[i]+1}], v[{P[i]}:{P[i]+1}], v[{P[i]}:{P[i]+1}]')
                for i in range(4): g(f'v_pk_fma_f32 v[{tm[i]}:{tm[i]+1}], v[{tm[i]}:{tm[i]+1}], v[{K}:{K+1}], v[{K}:{K+1}] op_sel:[0,0,1] op_sel_hi:[1,0,1]')
                for i in range(4): g(f'v_pk_mul_f32 v[{tm[i]}:{tm[i]+1}], v[{tm[i]}:{tm[i]+1}], v[{P[i]}:{P[i]+1}]')
                for i in range(8): g(f'v_exp_f32 v{2+i}, v{2+i}')
                for i in range(4): g(f'v_pk_fma_f32 v[{tm[i]}:{tm[i]+1}], v[{tm[i]}:{tm[i]+1}], v[{RI}:{RI+1}], v[{RI}:{RI+1}] op_sel:[0,0,0] op_sel_hi:[1,0,0]')
                for i in range(8): g(f'v_rcp_f32 v{2+i}, v{2+i}')
                for i in range(4): g(f'v_pk_mul_f32 v[{tm[i]}:{tm[i]+1}], v[{tm[i]}:{tm[i]+1}], v[{P[i]}:{P[i]+1}]')
                for i in range(4): g(f'v_cvt_pk_bf16_f32 v{o+i}, v{tm[i]}, v{tm[i]+1}')
                g(f'buffer_store_dwordx4 v[{o}:{o+3}], v56, s[44:47], s{60+2*t+u} offen offset:{2048*j}')
    g.stamp()

def p1_dft(g):
    RAW=64
    vXL=2; vBr0=3; vBd=[4,5,6,7]; vWe,vWo=8,9; vFA=[10,11,12,13]; vFB=[14,15,16,17]
    CC=[192,196]; SS=[200,204]; NS=[208,212]
    g(f'''v_lshrrev_b32 v24, 3, v0
    v_lshrrev_b32 v25, 4, v0
    v_and_b32 v26, 7, v0
    s_lshl_b32 s53, s48, 2
    s_add_u32 s53, s53, s3
    s_lshl_b32 s53, s53, 10
    v_lshlrev_b32 v27, 4, v26
    v_lshl_add_u32 v27, v24, 16, v27
    v_add_u32 v{vXL}, s53, v27
    v_xor_b32 v26, v26, v25
    v_lshlrev_b32 v26, 4, v26
    v_lshl_add_u32 v27, v24, 11, v26
    s_lshl_b32 s53, s3, 16
    s_lshl_b32 s54, s49, 10
    s_add_u32 s53, s53, s54
    v_add_u32 v{vBd[0]}, s53, v27
    v_xor_b32 v28, 64, v{vBd[0]}
    v_add_u32 v{vBd[1]}, {16384-1024}, v28
    v_add_u32 v{vBd[2]}, {2*(16384-1024)}, v{vBd[0]}
    v_add_u32 v{vBd[3]}, {3*(16384-1024)}, v28
    v_add_u32 v28, 0x40000, v{vBd[0]}
    v_cmp_gt_u32 vcc, 1024, v{vBd[0]}
    v_cndmask_b32 v{vBr0}, v{vBd[0]}, v28, vcc
    v_lshl_add_u32 v27, v24, 7, v26
    s_lshl_b32 s53, s3, 12
    v_add_u32 v{vWe}, s53, v27
    v_xor_b32 v{vWo}, 64, v{vWe}
    s_mul_i32 s55, s3, 24576
    s_add_u32 s55, s55, 65536
    s_waitcnt lgkmcnt(0)''')
    srd(g,32,4,2097152); srd(g,36,10,524288); srd(g,40,12,524288)
    for gi in range(4):
        g(f's_mov_b32 s53, {gi*524288}')
        for j in range(8):
            r=RAW+32*gi+4*j
            g(f'buffer_load_dwordx4 v[{r}:{r+3}], v{vXL}, s[32:35], s53 offen offset:{128*j}')
    def issueB(st):
        slot=st%3
        g(f's_mov_b32 s57, {128*st}\ns_add_u32 m0, s55, {slot*8192}')
        for i in range(4): g(f'buffer_load_dwordx4 v{vBr0 if i==0 else vBd[i]}, s[36:39], s57 offen offset:{1024*i} lds')
        g(f's_add_u32 m0, s55, {slot*8192+4096}')
        for i in range(4): g(f'buffer_load_dwordx4 v{vBd[i]}, s[40:43], s57 offen offset:{1024*i} lds')
    for st in range(3): issueB(st)
    g(f'''v_and_b32 v24, 31, v0
    v_lshrrev_b32 v25, 5, v0
    v_bfe_u32 v26, v0, 1, 3
    v_xor_b32 v26, v26, v25
    v_lshlrev_b32 v27, 7, v24''')
    for kk in range(4):
        g(f'''v_xor_b32 v28, {2*kk}, v26
        v_lshl_add_u32 v{vFA[kk]}, v28, 4, v27
        v_add_u32 v{vFB[kk]}, s55, v{vFA[kk]}''')
    g(f'''v_cvt_f32_u32 v26, v24
    v_mul_f32 v26, {f2u(1/32):#x}, v26
    v_cvt_f32_u32 v27, v25
    v_mul_f32 v27, 4.0, v27
    v_mul_f32 v27, v27, v26
    v_mul_f32 v28, {f2u(5.0):#x}, v26''')
    n=0
    for j in range(2):
        for i2 in range(4):
            for e in range(2):
                i=2*i2+e
                if not (j==0 and i==0):
                    g(f'v_add_f32 v27, v27, v{28 if i%4==0 else 26}')
                g(f'v_fract_f32 v29, v27\nv_cos_f32 v{20+e}, v29\nv_sin_f32 v{22+e}, v29')
            g(f'v_cvt_pk_bf16_f32 v{CC[j]+i2}, v20, v21\nv_cvt_pk_bf16_f32 v{SS[j]+i2}, v22, v23\nv_xor_b32 v{NS[j]+i2}, 0x80008000, v{SS[j]+i2}')
    g(f'''s_mov_b32 s59, 0x3f803f80
    s_cmp_eq_u32 s49, 0
    s_cselect_b32 s60, 0x3f800000, 0xbf800000
    s_mov_b32 s61, s60
    s_cselect_b32 s62, 0xc0000000, 0''')
    for gi in range(4):
        R=RAW+32*gi
        g(f's_waitcnt vmcnt({56-8*(gi+1)})')
        if gi==0: g.stamp()
        g('v_mov_b32 v20, 0\nv_mov_b32 v21, 0\nv_mov_b32 v22, 0\nv_mov_b32 v23, 0')
        for i in range(32):
            g(f'v_dot2c_f32_bf16 v{20+(i&1)}, s59, v{R+i}\nv_dot2c_f32_bf16 v{22+(i&1)}, v{R+i}, v{R+i}')
        g('v_add_f32 v20, v20, v21\nv_add_f32 v22, v22, v23')
        for dpp in ('quad_perm:[1,0,3,2]','quad_perm:[2,3,0,1]','row_half_mirror'):
            g(f'v_add_f32_dpp v20, v20, v20 {dpp} row_mask:0xf bank_mask:0xf\nv_add_f32_dpp v22, v22, v22 {dpp} row_mask:0xf bank_mask:0xf')
        stats_to_sd(g,'v20','v22','v24','v25','v26')
        g('''v_rcp_f32 v18, v26
        v_mul_f32 v24, s62, v24
        v_mul_f32 v19, v24, v18''')
        for j in range(4):
            o=[32,36][j&1]
            for i in range(4):
                a_=R+4*j+i; b_=R+4*(j+4)+i; t=40+4*i
                g(f'''v_lshlrev_b32 v{t}, 16, v{a_}
                v_and_b32 v{t+1}, 0xffff0000, v{a_}
                v_lshlrev_b32 v{t+2}, 16, v{b_}
                v_and_b32 v{t+3}, 0xffff0000, v{b_}''')
            for i in range(4):
                t=40+4*i
                g(f'v_pk_fma_f32 v[{t}:{t+1}], v[{t+2}:{t+3}], s[60:61], v[{t}:{t+1}]')
            for i in range(4):
                t=40+4*i
                g(f'v_pk_fma_f32 v[{t}:{t+1}], v[{t}:{t+1}], v[18:19], v[18:19] op_sel:[0,0,1] op_sel_hi:[1,0,1]')
            for i in range(4):
                t=40+4*i
                g(f'v_cvt_pk_bf16_f32 v{o+i}, v{t}, v{t+1}')
            g(f'ds_write_b128 v{vWo if gi&1 else vWe}, v[{o}:{o+3}] offset:{16384*j+1024*gi}')
    g('s_waitcnt lgkmcnt(0)\ns_barrier')
    g.stamp()
    ACC=64
    def fr(s_):
        b=[32,216][s_]
        return dict(A=[b,b+4,b+8,b+12],B=[b+16,b+20])
    def reads(n):
        st,kk=n>>2,n&3; f=fr(n&1)
        if kk==0: g(f's_waitcnt vmcnt({[16,16,8,0][st]})')
        for ab in range(2): g(f'ds_read_b128 v[{f["B"][ab]}:{f["B"][ab]+3}], v{vFB[kk]} offset:{(st%3)*8192+4096*ab}')
        for ti in range(4): g(f'ds_read_b128 v[{f["A"][ti]}:{f["A"][ti]+3}], v{vFA[kk]} offset:{st*16384+4096*ti}')
    reads(0)
    for n in range(16):
        if n==3:
            g('s_waitcnt lgkmcnt(0)'); issueB(3); reads(4)
        elif n<15:
            reads(n+1); g('s_waitcnt lgkmcnt(6)')
        else: g('s_waitcnt lgkmcnt(0)')
        f=fr(n&1)
        for ti in range(4):
            for ab in range(2):
                d=ACC+32*ti+16*ab
                c=f'v[{d}:{d+15}]' if n else '0'
                g(f'v_mfma_f32_32x32x16_bf16 v[{d}:{d+15}], v[{f["A"][ti]}:{f["A"][ti]+3}], v[{f["B"][ab]}:{f["B"][ab]+3}], {c}')
    g.stamp()
    for ti in range(4):
        Z=[32,216][ti&1]
        for ab in range(2):
            d=ACC+32*ti+16*ab
            for i in range(8): g(f'v_cvt_pk_bf16_f32 v{Z+8*ab+i}, v{d+2*i}, v{d+2*i+1}')
        za=[Z,Z+4]; zb=[Z+8,Z+12]; ur=ACC+32*ti; ui=ur+16
        seq=[(ur,CC[0],za[0],1),(ui,CC[0],zb[0],1),(ur,CC[1],za[1],0),(ui,CC[1],zb[1],0),(ur,SS[0],zb[0],0),(ui,NS[0],za[0],0),(ur,SS[1],zb[1],0),(ui,NS[1],za[1],0)]
        for d,am,bm,first in seq:
            g(f'v_mfma_f32_32x32x16_bf16 v[{d}:{d+15}], v[{am}:{am+3}], v[{bm}:{bm+3}], '+('0' if first else f'v[{d}:{d+15}]'))
    srd(g,44,28,2097152,add=U_OFF)
    g(f'''v_and_b32 v24, 31, v0
    v_lshrrev_b32 v25, 5, v0
    v_lshlrev_b32 v24, 4, v24
    v_lshl_add_u32 v24, v25, 18, v24
    s_lshl_b32 s53, s3, 9
    v_add_u32 v24, s53, v24
    s_lshl_b32 s53, s48, 1
    s_add_u32 s53, s53, s49
    s_lshl_b32 s53, s53, 11''')
    for r in range(16):
        o=32+4*(r&3)
        for ti in range(4): g(f'v_cvt_pk_bf16_f32 v{o+ti}, v{ACC+32*ti+r}, v{ACC+32*ti+16+r}')
        g(f's_add_u32 s54, s53, {(8*(r>>2)+(r&3))*65536}')
        g(f'buffer_store_dwordx4 v[{o}:{o+3}], v24, s[44:47], s54 offen')
    g.stamp()

def p2(g):
    ACC=64; ACS=128; TW=144; RED=114688
    vD0,vD1,vT0,vT1,vH0,vH1,vU,vXO=2,3,4,5,6,7,8,9
    HR=[16+8*i for i in range(6)]+[208+8*i for i in range(6)]
    XR=176
    g('''s_bfe_u32 s51, s31, 0x10003
    s_and_b32 s49, s31, 7''')
    t1_of(g,'s52','s48','s51','s53')
    g(f'''s_and_b32 s50, s3, 1
    s_lshr_b32 s51, s3, 1
    v_lshrrev_b32 v10, 3, v0
    v_bfe_u32 v11, v0, 4, 1
    v_lshlrev_b32 v12, 2, v11
    v_and_b32 v13, 7, v0
    v_xor_b32 v12, v12, v13
    v_lshlrev_b32 v12, 4, v12
    v_lshl_add_u32 v12, v10, 10, v12
    s_mul_i32 s53, s3, {448*1024}
    s_lshl_b32 s54, s49, 7
    s_add_u32 s53, s53, s54
    v_add_u32 v{vD0}, s53, v12
    v_add_u32 v{vD1}, {8192-1024}, v{vD0}
    s_mul_i32 s55, s3, 28672
    s_waitcnt lgkmcnt(0)''')
    srd(g,32,20,1792*512*2); srd(g,36,28,7340032); srd(g,40,28,2097152,add=U_OFF)
    def dma(ks):
        g(f's_mov_b32 s57, {ks*16384}\ns_add_u32 m0, s55, {(ks%14)*2048}')
        g(f'buffer_load_dwordx4 v{vD0}, s[32:35], s57 offen lds\nbuffer_load_dwordx4 v{vD1}, s[32:35], s57 offen offset:1024 lds')
    for ks in range(14): dma(ks)
    g(f'''v_lshrrev_b32 v10, 5, v0
    v_bfe_u32 v12, v0, 2, 2
    v_lshl_add_u32 v13, v10, 2, v12
    v_lshlrev_b32 v13, 7, v13
    v_lshrrev_b32 v12, 1, v12
    v_xor_b32 v12, s50, v12
    v_lshl_add_u32 v13, v12, 6, v13
    v_lshl_add_u32 v13, v11, 5, v13
    v_and_b32 v12, 3, v0
    v_lshl_add_u32 v13, v12, 3, v13
    v_add_u32 v{vT0}, s55, v13
    v_xor_b32 v{vT1}, 64, v{vT0}
    s_lshl_b32 s53, s51, 10
    v_lshl_add_u32 v{vH0}, v0, 4, s53
    v_xor_b32 v{vH1}, 0x400, v{vH0}
    s_mul_i32 s58, s52, 112
    s_mul_i32 s53, s3, 28
    s_add_u32 s58, s58, s53
    s_lshl_b32 s58, s58, 11''')
    g(f'''v_and_b32 v11, 31, v0
    s_lshl_b32 s53, s49, 6
    s_lshl_b32 s54, s50, 5
    s_add_u32 s53, s53, s54
    v_add_u32 v12, s53, v11
    v_lshlrev_b32 v14, 1, v12
    s_cmp_lt_u32 s49, 4
    s_cselect_b32 s60, 0, -1
    s_cselect_b32 s61, 0, 513
    v_xor_b32 v13, s60, v12
    v_add_u32 v13, s61, v13
    v_and_b32 v15, 1, v13
    v_lshlrev_b32 v15, 11, v15
    v_bfe_u32 v13, v13, 1, 7
    v_lshl_add_u32 v13, v13, 4, v15
    v_lshl_add_u32 v13, v10, 12, v13
    v_mov_b32 v15, 0x40000000
    v_cmp_eq_u32 vcc, 0, v12
    v_cndmask_b32 v{vU}, v13, v15, vcc
    s_sub_u32 s62, 32, s52
    s_and_b32 s62, s62, 31
    s_cmp_lt_u32 s49, 4
    s_cselect_b32 s62, s52, s62
    s_lshl_b32 s62, s62, 16
    s_and_b32 s63, s60, 0x80000000
    s_or_b32 s63, s63, {f2u(1/2048):#x}''')
    srd(g,44,22,1024); srd(g,64,4,2097152); srd(g,68,24,2097152)
    g(f'''buffer_load_ushort v184, v14, s[44:47], 0 offen
    s_lshl_b32 s53, s51, 5
    v_add_u32 v12, s53, v11
    v_lshlrev_b32 v12, 5, v12
    v_add_u32 v12, s52, v12
    v_lshlrev_b32 v13, 10, v12
    v_lshl_add_u32 v13, v10, 3, v13
    s_lshl_b32 s53, s49, 7
    s_lshl_b32 s54, s50, 6
    s_add_u32 s53, s53, s54
    v_add_u32 v{vXO}, s53, v13''')
    for q in range(4): g(f'buffer_load_dwordx2 v[{XR+2*q}:{XR+2*q+1}], v{vXO}, s[64:67], 0 offen offset:{16*q}')
    g(f'''v_cvt_f32_u32 v12, v12
    v_mul_f32 v12, s63, v12
    v_cvt_f32_u32 v13, v10
    v_mul_f32 v13, 4.0, v13
    v_mul_f32 v13, v13, v12
    v_mul_f32 v14, {f2u(5.0):#x}, v12
    v_mov_b32 v185, 0
    v_mov_b32 v186, 0
    v_mov_b32 v187, 0
    v_mov_b32 v188, 0x3f80
    v_cmp_gt_u32 vcc, 32, v0
    v_cndmask_b32 v188, 0, v188, vcc
    v_mov_b32 v189, 0
    v_mov_b32 v190, 0
    v_mov_b32 v191, 0''')
    for j in range(8):
        for i in range(4):
            if j or i: g(f'v_add_f32 v13, v13, v{14 if i==0 else 12}')
            g(f'v_fract_f32 v15, v13\nv_cos_f32 v{192+2*(i&1)}, v15\nv_sin_f32 v{193+2*(i&1)}, v15\nv_cvt_pk_bf16_f32 v{TW+4*j+i}, v{192+2*(i&1)}, v{193+2*(i&1)}')
    def trr(ks):
        for a_ in range(2):
            for q in range(2):
                r=8*ks+4*a_+2*q
                g(f'ds_read_b64_tr_b16 a[{r}:{r+1}], v{[vT0,vT1][a_]} offset:{(ks%14)*2048+1024*q}')
    vm=['d']*28+['x']*5
    def wait_done(nfirst):
        g(f's_waitcnt vmcnt({len(vm)-nfirst})'); del vm[:nfirst]
    for ks in range(0,14,2):
        wait_done(4)
        if ks==0: g.stamp()
        trr(ks); trr(ks+1)
        g('s_waitcnt lgkmcnt(0)')
        dma(14+ks); dma(15+ks); vm.extend(['d']*4)
    hidx=[0]
    def hload():
        ks=hidx[0]; r=HR[ks%12]
        g(f'buffer_load_dwordx4 v[{r}:{r+3}], v{vH0}, s[36:39], s58 offen\nbuffer_load_dwordx4 v[{r+4}:{r+7}], v{vH1}, s[36:39], s58 offen\ns_add_u32 s58, s58, 2048')
        vm.extend([f'h{ks}']*2); hidx[0]+=1
    wait_done(5)
    g(f'v_mfma_f32_32x32x16_bf16 v[{ACC}:{ACC+15}], v[184:187], v[188:191], 0')
    for ks in range(14,28,2):
        wait_done(4)
        trr(ks); trr(ks+1)
        hload()
        if ks>=18: hload()
    for j in range(8):
        g(f's_add_u32 s53, s62, {8192*j}\nbuffer_load_dwordx4 a[{224+4*j}:{227+4*j}], v{vU}, s[40:43], s53 offen'); vm.append('u')
    g('s_waitcnt lgkmcnt(0)')
    g.stamp()
    for ks in range(28):
        n=max(i for i,x in enumerate(vm) if x==f'h{ks}')+1
        wait_done(n)
        r=HR[ks%12]
        for b in range(2):
            for a_ in range(2):
                d=ACC+16*(a_+2*b)
                c='0' if (ks==0 and (a_ or b)) else f'v[{d}:{d+15}]'
                g(f'v_mfma_f32_32x32x16_bf16 v[{d}:{d+15}], a[{8*ks+4*a_}:{8*ks+4*a_+3}], v[{r+4*b}:{r+4*b+3}], {c}')
        if hidx[0]<28: hload()
    g.stamp()
    g('s_waitcnt vmcnt(0)')
    for j in range(8):
        g(f'v_mfma_f32_32x32x16_bf16 v[{ACS}:{ACS+15}], a[{224+4*j}:{227+4*j}], v[{TW+4*j}:{TW+4*j+3}], '+('0' if j==0 else f'v[{ACS}:{ACS+15}]'))
    for d in (1,2,3):
        g(f'''s_xor_b32 s53, s3, {d}
        s_mul_i32 s53, s53, 12288
        s_add_u32 s53, s53, {RED+(d-1)*4096}
        v_lshl_add_u32 v{9+d}, v0, 4, s53''')
    for d in (1,2,3):
        for q in range(4):
            r=ACC+16*d+4*q
            g(f'ds_write_b128 v{9+d}, v[{r}:{r+3}] offset:{1024*q}')
    g(f'''s_mul_i32 s53, s3, 12288
    s_add_u32 s53, s53, {RED}
    v_lshl_add_u32 v13, v0, 4, s53
    s_waitcnt lgkmcnt(0)
    s_barrier''')
    for d in range(3):
        for q in range(4):
            r=16+16*d+4*q
            g(f'ds_read_b128 v[{r}:{r+3}], v13 offset:{4096*d+1024*q}')
    XF=208
    for i in range(8):
        g(f'v_lshlrev_b32 v{XF+2*i}, 16, v{XR+i}\nv_and_b32 v{XF+2*i+1}, 0xffff0000, v{XR+i}')
    g(f's_mov_b32 s60, {f2u(-math.log2(math.e)):#x}\ns_mov_b32 s61, s60\ns_mov_b32 s62, 1.0\ns_mov_b32 s63, 1.0')
    for d in range(3):
        g(f's_waitcnt lgkmcnt({8-4*d})')
        for i in range(8):
            g(f'v_pk_add_f32 v[{ACC+2*i}:{ACC+2*i+1}], v[{ACC+2*i}:{ACC+2*i+1}], v[{16+16*d+2*i}:{16+16*d+2*i+1}]')
    T=80
    for i in range(8): g(f'v_pk_mul_f32 v[{T+2*i}:{T+2*i+1}], v[{ACC+2*i}:{ACC+2*i+1}], s[60:61]')
    for i in range(16): g(f'v_exp_f32 v{T+i}, v{T+i}')
    for i in range(8): g(f'v_pk_add_f32 v[{T+2*i}:{T+2*i+1}], v[{T+2*i}:{T+2*i+1}], s[62:63]')
    for i in range(16): g(f'v_rcp_f32 v{T+i}, v{T+i}')
    for i in range(8): g(f'v_pk_mul_f32 v[{T+2*i}:{T+2*i+1}], v[{T+2*i}:{T+2*i+1}], v[{ACC+2*i}:{ACC+2*i+1}]')
    for i in range(8): g(f'v_pk_fma_f32 v[{T+2*i}:{T+2*i+1}], v[{T+2*i}:{T+2*i+1}], v[{ACS+2*i}:{ACS+2*i+1}], v[{XF+2*i}:{XF+2*i+1}]')
    for i in range(8): g(f'v_cvt_pk_bf16_f32 v{96+i}, v{T+2*i}, v{T+2*i+1}')
    for q in range(4): g(f'buffer_store_dwordx2 v[{96+2*q}:{97+2*q}], v{vXO}, s[68:71], 0 offen offset:{16*q}')
    g.stamp()

def build(stamps=False):
    g1=G(stamps)
    entry(g1,'L1_end')
    g1('''s_and_b32 s49, s31, 15
    s_cmp_ge_u32 s49, 14
    s_cbranch_scc1 L1_dft''')
    n0=g1.nst
    p1_mlp(g1); g1.dump_stamps(TS_OFF)
    g1('s_endpgm\nL1_dft:\ns_sub_u32 s49, s49, 14')
    g1.nst=n0
    p1_dft(g1); g1.dump_stamps(TS_OFF)
    g1('L1_end:\ns_endpgm')
    g2=G(stamps)
    entry(g2,'L2_end')
    p2(g2); g2.dump_stamps(TS_OFF+65536)
    g2('L2_end:\ns_endpgm')
    b1='\n'.join(hazard.fix(g1.a.l))+'\n'; b2='\n'.join(hazard.fix(g2.a.l))+'\n'
    return wrap([dict(name='fnet_p1_kernel',body=b1,grid=256,block=256,lds=163840,vgpr=256,accum=256),
                 dict(name='fnet_p2_kernel',body=b2,grid=256,block=256,lds=163840,vgpr=512,accum=256)],HDR)
if __name__=='__main__':
    out=sys.argv[1]; st=len(sys.argv)>2 and sys.argv[2]=='stamps'
    open(out,'w').write(build(st))
```

```python
import sys, math, struct
sys.path.insert(0,'tools')
from asmlib import A, wrap, KN
import hazard

def f2u(x): return struct.unpack('<I',struct.pack('<f',x))[0]
U_OFF = 8<<20
F_OFF = 12<<20
ST_OFF = 13<<20
CS_REL = 65536
TS_OFF = 200<<20
SPIN = 0x40000
HDR = open('recurrent_scan__spectral_fnet__mixer_channel_mlp__prompt.s.ref').read().split('; Override launch')[0]

class G:
    def __init__(s, stamps=False, opt=None):
        s.a=A(); s.stamps=stamps; s.nst=0; s.vm=[]; s.sideq=[]; s.opt=opt or {}
    def __call__(s,t): s.a(t)
    def vmem(s, text, tag):
        s(text); s.vm.append(tag)
        assert len(s.vm)<=63, 'vmcnt overflow'
    def wait(s, tag):
        idx=[i for i,x in enumerate(s.vm) if x==tag]
        if not idx: return
        n=idx[-1]+1
        s(f's_waitcnt vmcnt({len(s.vm)-n})'); del s.vm[:n]
    def waitall(s):
        s('s_waitcnt vmcnt(0)'); s.vm.clear()
    def side(s, n=1):
        for _ in range(n):
            if s.sideq: s.sideq.pop(0)()
    def flush_side(s):
        while s.sideq: s.sideq.pop(0)()
    def stamp(s, name='main'):
        if s.stamps and (name==s.opt.get('set','main') or (s.nst==0)):
            assert s.nst<10
            s(f's_{"memtime" if s.opt.get("cyc") else "memrealtime"} s[{80+2*s.nst}:{81+2*s.nst}]'); s.nst+=1
    def dump_stamps(s, base):
        if not s.stamps: return
        s('s_waitcnt lgkmcnt(0)')
        for i in range(12): s(f'v_mov_b32 v{4+i}, s{80+2*i}' if i<s.nst else f'v_mov_b32 v{4+i}, 0')
        s(f'''s_mov_b32 s72, s28
        s_mov_b32 s73, s29
        s_mov_b32 s74, 0x10000000
        s_mov_b32 s75, 0x20000
        s_lshl_b32 s76, s2, 2
        s_add_u32 s76, s76, s3
        s_lshl_b32 s76, s76, 6
        s_add_u32 s76, s76, {base}
        v_mov_b32 v16, 0
        v_cmp_eq_u32 vcc, 0, v0
        s_and_saveexec_b64 s[78:79], vcc
        buffer_store_dwordx4 v[4:7], v16, s[72:75], s76 offen
        buffer_store_dwordx4 v[8:11], v16, s[72:75], s76 offen offset:16
        buffer_store_dwordx4 v[12:15], v16, s[72:75], s76 offen offset:32
        s_mov_b64 exec, s[78:79]''')

def srd(g, d, ptr, nbytes, add=0):
    if add: g(f's_add_u32 s{d}, s{ptr}, {add}\ns_addc_u32 s{d+1}, s{ptr+1}, 0')
    else:   g(f's_mov_b32 s{d}, s{ptr}\ns_mov_b32 s{d+1}, s{ptr+1}')
    g(f's_mov_b32 s{d+2}, {nbytes}\ns_mov_b32 s{d+3}, 0x20000')

def t1_of(g, dst, rb, sh, tmp):
    g(f'''s_sub_u32 {tmp}, 32, {rb}
    s_cmp_eq_u32 {rb}, 0
    s_cselect_b32 {tmp}, 16, {tmp}
    s_cmp_eq_u32 {sh}, 0
    s_cselect_b32 {dst}, {rb}, {tmp}''')

vD0,vD1 = 248,249
vT = [250,251,252,253]
XR, vB2, vXO = 240, 254, 255

def w2_setup(g):
    g('''s_and_b32 s70, s31, 7
    s_lshr_b32 s53, s31, 4
    s_lshl_b32 s54, s30, 1
    s_add_u32 s45, s53, s54
    s_bfe_u32 s54, s31, 0x10003''')
    t1_of(g,'s71','s45','s54','s53')
    g(f'''s_lshr_b32 s53, s31, 3
    s_mul_i32 s44, s53, 7
    s_lshl_b32 s68, s44, 14
    s_lshl_b32 s69, s3, 13
    v_lshrrev_b32 v244, 3, v0
    v_bfe_u32 v245, v0, 4, 1
    v_lshlrev_b32 v246, 2, v245
    v_and_b32 v247, 7, v0
    v_xor_b32 v246, v246, v247
    v_lshlrev_b32 v246, 4, v246
    v_lshl_add_u32 v246, v244, 10, v246
    s_mul_i32 s53, s3, {448*1024}
    s_lshl_b32 s54, s70, 7
    s_add_u32 s53, s53, s54
    v_add_u32 v{vD0}, s53, v246
    v_add_u32 v{vD1}, {8192-1024}, v{vD0}
    v_lshrrev_b32 v244, 5, v0
    v_bfe_u32 v246, v0, 2, 2
    v_lshl_add_u32 v247, v244, 2, v246
    v_lshlrev_b32 v247, 7, v247
    v_lshrrev_b32 v246, 1, v246
    s_and_b32 s53, s3, 1
    v_xor_b32 v246, s53, v246
    v_lshl_add_u32 v247, v246, 6, v247
    v_lshl_add_u32 v247, v245, 5, v247
    v_and_b32 v246, 3, v0
    v_lshl_add_u32 v247, v246, 3, v247
    v_add_u32 v{vT[0]}, s69, v247
    v_xor_b32 v{vT[1]}, 64, v{vT[0]}
    v_add_u32 v{vT[2]}, 0x10000, v{vT[0]}
    v_add_u32 v{vT[3]}, 0x10000, v{vT[1]}''')
    srd(g,64,20,1792*512*2)
    srd(g,72,22,1024); srd(g,76,4,2097152)
    g(f'''s_lshr_b32 s53, s3, 1
    s_lshl_b32 s53, s53, 5
    v_and_b32 v246, 31, v0
    v_add_u32 v245, s53, v246
    v_lshlrev_b32 v245, 5, v245
    v_add_u32 v245, s71, v245
    v_lshlrev_b32 v245, 10, v245
    v_lshl_add_u32 v245, v244, 3, v245
    s_lshl_b32 s53, s70, 7
    s_and_b32 s54, s3, 1
    s_lshl_b32 s54, s54, 6
    s_add_u32 s53, s53, s54
    v_add_u32 v{vXO}, s53, v245
    v_lshl_add_u32 v{vB2}, v246, 1, s53''')
def xb2_ops(g):
    def o0(): g.vmem(f'buffer_load_ushort v{vB2}, v{vB2}, s[72:75], 0 offen','b2')
    def mk(q):
        def o(): g.vmem(f'buffer_load_dwordx2 v[{XR+2*q}:{XR+2*q+1}], v{vXO}, s[76:79], 0 offen offset:{16*q}','xr')
        return o
    return [o0]+[mk(q) for q in range(4)]
def epoch_load(g):
    g(f's_add_u32 s60, s28, {F_OFF+4096}\ns_addc_u32 s61, s29, 0\ns_load_dword s47, s[60:61], 0')
def nonce(g):
    g('s_mul_i32 s47, s47, 0x9e3779b1\ns_add_u32 s47, s47, 0x85ebca6b')
def w2_dma_ops(g, ks):
    s=ks%16; lds=(s>>2)*32768+(s&3)*2048
    def op0():
        g(f's_add_u32 m0, s69, {lds}')
        g.vmem(f'buffer_load_dwordx4 v{vD0}, s[64:67], s68 offen lds', f'w{ks}')
    def op1():
        g.vmem(f'buffer_load_dwordx4 v{vD1}, s[64:67], s68 offen offset:1024 lds', f'w{ks}')
        g(f's_add_u32 s68, s68, 16384\ns_cmp_eq_u32 s68, {28*16384}\ns_cselect_b32 s68, 0, s68')
    return [op0,op1]
def w2_trr(g, ks):
    s=ks%16; hi=2*(s>>3); off=((s>>2)&1)*32768+(s&3)*2048
    for a_ in range(2):
        for q in range(2):
            r=8*ks+4*a_+2*q
            g(f'ds_read_b64_tr_b16 a[{r}:{r+1}], v{vT[hi+a_]} offset:{off+1024*q}')

def entry(g):
    g('''s_cmp_ge_u32 s2, 256
    s_cbranch_scc1 L_end''')
    g.stamp()
    g('''s_load_dwordx16 s[4:19], s[0:1], 0
    s_load_dwordx8 s[20:27], s[0:1], 64
    s_load_dwordx2 s[28:29], s[0:1], 96
    v_lshrrev_b32 v1, 6, v0
    s_and_b32 s30, s2, 7
    s_lshr_b32 s31, s2, 3''')
    if g.opt.get('codepf',1):
        g(f'''s_getpc_b64 s[50:51]
        L_pc:
        s_lshl_b32 s53, s31, 10
        v_lshl_add_u32 v2, v0, 2, s53
        v_min_u32 v2, L_codeend-L_pc-4, v2''')
        g.vmem('global_load_dword v3, v2, s[50:51]','pf')
    rot=g.opt.get('rot',1)
    g('''v_readfirstlane_b32 s3, v1
    v_and_b32 v0, 63, v0
    s_lshr_b32 s48, s30, 1
    s_lshl_b32 s48, s48, 2
    s_lshr_b32 s100, s31, 3
    s_add_u32 s48, s48, s100
    s_and_b32 s49, s31, 7''')
    if rot==1:   g('s_lshl_b32 s56, s100, 1\ns_add_u32 s56, s56, s49\ns_and_b32 s56, s56, 7')
    elif rot==2: g('s_add_u32 s56, s100, s49\ns_and_b32 s56, s56, 1\ns_lshl_b32 s56, s56, 2')
    elif rot==4: g('s_add_u32 s56, s100, s49\ns_and_b32 s56, s56, 3\ns_lshl_b32 s56, s56, 1')
    g('''s_and_b32 s53, s30, 1
    s_cmp_eq_u32 s49, 7
    s_cbranch_scc1 L_dft''')

def p1_mlp(g):
    ACC=64
    vX=[56,57,58,59]; vW=[6,7,8,9]; vB=[10,11,12,13]; vA=[18,19]
    vCS=22; vB1=[20,21]; vSA,vCA=14,15
    rot=g.opt.get('rot',1)
    g('''s_mul_i32 s54, s53, 7
    s_add_u32 s49, s49, s54
    s_and_b32 s50, s3, 1
    s_lshr_b32 s51, s3, 1''')
    g('s_lshl_b32 s63, s48, 1\ns_add_u32 s63, s63, s53')
    t1_of(g,'s52','s48','s51','s53')
    g(f'''v_lshrrev_b32 v24, 3, v0
    v_lshrrev_b32 v25, 4, v0
    v_and_b32 v26, 7, v0
    v_xor_b32 v26, v26, v25
    v_lshlrev_b32 v26, 4, v26
    v_lshl_add_u32 v26, v24, 15, v26
    s_lshl_b32 s53, s52, 10
    s_lshl_b32 s54, s50, 20
    s_add_u32 s53, s53, s54
    v_add_u32 v{vX[0]}, s53, v26
    v_xor_b32 v27, 64, v{vX[0]}
    v_add_u32 v{vX[1]}, {262144-1024}, v27
    v_add_u32 v{vX[2]}, {2*(262144-1024)}, v{vX[0]}
    v_add_u32 v{vX[3]}, {3*(262144-1024)}, v27
    v_and_b32 v26, 15, v0
    v_lshlrev_b32 v27, 2, v25
    v_xor_b32 v26, v26, v27
    v_lshlrev_b32 v26, 4, v26
    v_mul_u32_u24 v27, 3584, v25
    v_add_u32 v26, v26, v27
    s_mul_i32 s53, s3, 57344
    s_lshl_b32 s54, s49, 8
    s_add_u32 s53, s53, s54
    v_add_u32 v{vW[0]}, s53, v26
    v_add_u32 v{vW[1]}, 13312, v{vW[0]}
    v_add_u32 v{vW[2]}, {2*13312}, v{vW[0]}
    v_add_u32 v{vW[3]}, {3*13312}, v{vW[0]}
    s_lshl_b32 s55, s3, 12
    s_waitcnt lgkmcnt(0)''')
    srd(g,32,4,2097152); srd(g,36,16,512*1792*2)
    def stage_ops(st):
        slot=st&3
        def mk(i):
            def op():
                if i==0: g(f's_lshl_b32 s57, s56, 7\ns_mul_i32 s58, s56, 229376\ns_add_u32 m0, s55, {slot*32768}')
                if i==4: g(f's_add_u32 m0, s55, {slot*32768+16384}\ns_add_u32 s56, s56, 1\ns_and_b32 s56, s56, 7')
                if i<4: g.vmem(f'buffer_load_dwordx4 v{vX[i]}, s[32:35], s57 offen offset:{1024*i} lds',f's{st}')
                else:   g.vmem(f'buffer_load_dwordx4 v{vW[i-4]}, s[36:39], s58 offen offset:{1024*(i-4)} lds',f's{st}')
            return op
        return [mk(i) for i in range(8)]
    D=g.opt.get('depth',3)
    for st in range(2):
        for op in stage_ops(st): op()
    epoch_load(g)
    g('''s_lshl_b32 s46, s48, 7
    s_lshl_b32 s53, s49, 2
    s_add_u32 s46, s46, s53''')
    g(f'''v_and_b32 v24, 31, v0
    v_lshrrev_b32 v25, 5, v0
    v_bfe_u32 v26, v0, 1, 3
    v_xor_b32 v26, v26, v25
    s_lshl_b32 s53, s51, 13
    v_lshlrev_b32 v27, 7, v24
    v_add_u32 v27, s53, v27''')
    for kk in range(4):
        g(f'''v_xor_b32 v28, {2*kk}, v26
        v_lshl_add_u32 v{vB[kk]}, v28, 4, v27''')
    g(f'''v_bfe_u32 v26, v0, 2, 2
    v_lshl_add_u32 v27, v25, 3, v26
    v_lshlrev_b32 v27, 8, v27
    s_lshl_b32 s53, s50, 1
    s_add_u32 s53, s53, s51
    v_xor_b32 v26, s53, v26
    v_lshl_add_u32 v27, v26, 6, v27
    v_bfe_u32 v26, v0, 4, 1
    v_lshl_add_u32 v27, v26, 5, v27
    v_and_b32 v26, 3, v0
    v_lshl_add_u32 v27, v26, 3, v27
    v_add_u32 v{vA[0]}, 16384, v27
    v_xor_b32 v{vA[1]}, 64, v{vA[0]}
    v_mov_b32 v{vCS}, 0
    s_lshl_b32 s53, s53, 5
    v_add_u32 v26, s53, v24
    s_lshl_b32 s54, s49, 7
    v_add_lshl_u32 v{vB1[0]}, v26, s54, 1
    v_xor_b32 v{vB1[1]}, 64, v{vB1[0]}
    s_lshl_b32 s53, s49, 2
    s_lshr_b32 s54, s48, 2
    s_add_u32 s53, s53, s54
    s_lshl_b32 s53, s53, 12
    s_add_u32 s53, s53, {CS_REL}
    v_lshl_add_u32 v26, v26, 5, s53
    s_lshl_b32 s54, s100, 3
    v_add_u32 v16, s54, v26
    v_lshl_add_u32 v{vCA}, v25, 4, v26
    v_xor_b32 v17, 0x400, v{vCA}
    s_lshl_b32 s53, s63, 11
    s_lshl_b32 s54, s51, 10
    s_add_u32 s53, s53, s54
    v_lshl_add_u32 v{vSA}, v24, 4, s53''')
    srd(g,40,18,1792*2)
    for t in range(2): g.vmem(f'buffer_load_ushort v{vB1[t]}, v{vB1[t]}, s[40:43], 0 offen','b1')
    srd(g,40,28,CS_REL+14*4*4096,add=ST_OFF)
    w2_setup(g)
    if D==3:
        for op in stage_ops(2): op()
    def fr(s_):
        b=[32,128][s_]
        return dict(A=[b,b+4],B=[b+8,b+12])
    def reads(st,kk):
        f=fr(kk&1); o=(st&1)*32768
        for t in range(2):
            for q in range(2):
                g(f'ds_read_b64_tr_b16 v[{f["A"][t]+2*q}:{f["A"][t]+2*q+1}], v{vA[t]} offset:{o+4096*kk+1024*q}')
        for u in range(2): g(f'ds_read_b128 v[{f["B"][u]}:{f["B"][u]+3}], v{vB[kk]} offset:{o+4096*u}')
    ncs = 2 if rot in (1,4) else 4
    def compute(st,kk):
        f=fr(kk&1)
        n=0
        for t in range(2):
            for u in range(2):
                d=ACC+16*(2*t+u)
                c=f'v[{d}:{d+15}]' if not (st==0 and kk==0) else '0'
                g(f'v_mfma_f32_32x32x16_bf16 v[{d}:{d+15}], v[{f["A"][t]}:{f["A"][t]+3}], v[{f["B"][u]}:{f["B"][u]+3}], {c}')
                if n in (0,2): g.side()
                n+=1
        if st<ncs:
            for i in range(4): g(f'v_dot2c_f32_bf16 v{vCS}, s59, v{f["A"][0]+i}')
    def gather_ops():
        def mk(r,v,off):
            def o(): g.vmem(f'buffer_load_dwordx4 v[{r}:{r+3}], v{v}, s[40:43], 0 offen offset:{off} sc1','ga')
            return o
        return [mk(144,vSA,0),mk(148,vSA,512),mk(152,vCA,0),mk(156,17,0)]
    for st in range(8):
        g.wait(f's{st}')
        if st==0: g('s_waitcnt lgkmcnt(0)')
        g('s_barrier')
        g.stamp('st')
        if st==0:
            g.stamp(); nonce(g)
        if st in (2,4,6):
            for r in vB+vA: g(f'v_xor_b32 v{r}, 0x10000, v{r}')
        if st<ncs and st%2==0:
            if ncs==2: g('s_mov_b32 s59, 0x3f803f80')
            else: g(f's_lshr_b32 s53, s100, 1\ns_cmp_eq_u32 s53, {st>>1}\ns_cselect_b32 s59, 0x3f803f80, 0')
        reads(st,0)
        if st+D<8: g.sideq+=stage_ops(st+D)
        if st==ncs:
            g(f'''v_mov_b32 v23, v{vCS}
            v_permlane32_swap_b32 v{vCS}, v23
            v_add_f32 v{vCS}, v{vCS}, v23
            v_mov_b32 v23, s47''')
            g.vmem(f'buffer_store_dwordx2 v[{vCS}:23], v16, s[40:43], 0 offen sc1','csp')
        if st==5: g.sideq+=xb2_ops(g)
        if st>=5 and not g.opt.get('w2late'):
            for ks in range(4*(st-5),4*(st-5)+4): g.sideq+=w2_dma_ops(g,ks)
        if st==7: g.sideq=gather_ops()+g.sideq
        for kk in range(4):
            if kk<3:
                reads(st,kk+1); g('s_waitcnt lgkmcnt(6)')
            else: g('s_waitcnt lgkmcnt(0)')
            compute(st,kk)
            if st>=5: g.side()
        g.flush_side()
    g('s_barrier')
    g.stamp(); g.stamp('st')
    sv=list(g.vm)
    g.wait('ga')
    g(f'''s_mov_b32 s56, {SPIN}
    L_gchk:
    v_xor_b32 v24, s47, v147
    v_xor_b32 v25, s47, v151
    v_xor_b32 v26, s47, v153
    v_xor_b32 v27, s47, v155
    v_xor_b32 v28, s47, v157
    v_xor_b32 v29, s47, v159
    v_or3_b32 v24, v24, v25, v26
    v_or3_b32 v27, v27, v28, v29
    v_or_b32 v24, v24, v27
    v_cmp_ne_u32 vcc, 0, v24
    s_cbranch_vccz L_gok
    s_sleep 1''')
    keep=list(g.vm)
    for op in gather_ops(): op()
    g.vm=keep
    g('''s_waitcnt vmcnt(0)
    s_sub_u32 s56, s56, 1
    s_cbranch_scc0 L_gchk
    L_gok:''')
    g('''v_add_f32 v152, v152, v154
    v_add_f32 v156, v156, v158
    v_mov_b32 v153, v152
    v_mov_b32 v157, v156
    v_cmp_gt_u32 vcc, 32, v0
    v_permlane32_swap_b32 v152, v153
    v_permlane32_swap_b32 v156, v157
    v_add_f32 v154, v152, v153
    v_add_f32 v158, v156, v157''')
    for t,b in enumerate((152,156)):
        g(f'''v_cvt_pk_bf16_f32 v{b}, v{b+2}, v{b+2}
        v_lshl_or_b32 v{b+1}, v{vB1[t]}, 16, v{vB1[t]}
        v_lshlrev_b32 v{b+3}, 16, v{b}
        v_sub_f32 v{b+2}, v{b+2}, v{b+3}
        v_cndmask_b32 v{b}, 0, v{b}, vcc
        v_cvt_pk_bf16_f32 v{b+2}, v{b+2}, 0
        v_cndmask_b32 v{b+1}, 0, v{b+1}, vcc
        v_mov_b32 v{b+3}, 0
        v_cndmask_b32 v{b+2}, 0, v{b+2}, vcc''')
    c0=-2*math.sqrt(2/math.pi)*math.log2(math.e); c1=c0*0.044715
    for u,b in enumerate((144,148)):
        K,RI=[48,52][u],[50,54][u]
        g(f'''v_rcp_f32 v24, v{b+2}
        v_mov_b32 v{RI}, v{b+2}
        v_mov_b32 v{b+2}, v{b}
        v_mov_b32 v{b+3}, 0
        v_mul_f32 v{K+1}, {f2u(c0):#x}, v24
        v_mul_f32 v25, v24, v24
        v_mul_f32 v25, v25, v24
        v_mul_f32 v{K}, {f2u(c1):#x}, v25''')
    Aex=[152,156]; Bex=[144,148]
    for ks in range(0 if g.opt.get('w2late') else 12,16): g.sideq+=w2_dma_ops(g,ks)
    for t in range(2):
        for u in range(2):
            d=ACC+16*(2*t+u)
            g(f'v_mfma_f32_32x32x16_bf16 v[{d}:{d+15}], v[{Aex[t]}:{Aex[t]+3}], v[{Bex[u]}:{Bex[u]+3}], v[{d}:{d+15}]')
    srd(g,40,28,7340032)
    g('''s_mul_i32 s53, s52, 112
    s_lshl_b32 s54, s49, 3
    s_add_u32 s53, s53, s54
    s_lshl_b32 s54, s50, 2
    s_add_u32 s53, s53, s54
    s_lshl_b32 s53, s53, 11
    s_lshl_b32 s54, s51, 12
    s_add_u32 s60, s53, s54
    s_xor_b32 s61, s60, 0x400
    s_xor_b32 s62, s60, 0x1000
    s_xor_b32 s63, s60, 0x1400
    v_lshlrev_b32 v56, 4, v0''')
    g.stamp()
    def w2_pair(ks):
        def a():
            g.wait(f'w{ks+1}'); w2_trr(g,ks); w2_trr(g,ks+1)
        d0=w2_dma_ops(g,ks+16); d1=w2_dma_ops(g,ks+17)
        def b():
            g('s_waitcnt lgkmcnt(0)'); d0[0]()
        return [a,b,d0[1],d1[0],d1[1]]
    for ks in range(0,12,2): g.sideq+=w2_pair(ks)
    nsub=0
    for t in range(2):
        for u in range(2):
            d=ACC+16*(2*t+u); K=[48,52][u]; RI=[50,54][u]
            for j in range(2):
                P=[d+8*j+2*i for i in range(4)]
                tm=[2+2*i for i in range(4)]
                o=[24,28][j]
                for i in range(4): g(f'v_pk_mul_f32 v[{tm[i]}:{tm[i]+1}], v[{P[i]}:{P[i]+1}], v[{P[i]}:{P[i]+1}]')
                for i in range(4): g(f'v_pk_fma_f32 v[{tm[i]}:{tm[i]+1}], v[{tm[i]}:{tm[i]+1}], v[{K}:{K+1}], v[{K}:{K+1}] op_sel:[0,0,1] op_sel_hi:[1,0,1]')
                g.side()
                for i in range(4): g(f'v_pk_mul_f32 v[{tm[i]}:{tm[i]+1}], v[{tm[i]}:{tm[i]+1}], v[{P[i]}:{P[i]+1}]')
                for i in range(8):
                    g(f'v_exp_f32 v{2+i}, v{2+i}')
                    if i==3: g.side()
                g.side()
                for i in range(4): g(f'v_pk_fma_f32 v[{tm[i]}:{tm[i]+1}], v[{tm[i]}:{tm[i]+1}], v[{RI}:{RI+1}], v[{RI}:{RI+1}] op_sel:[0,0,0] op_sel_hi:[1,0,0]')
                for i in range(8):
                    g(f'v_rcp_f32 v{2+i}, v{2+i}')
                    if i==3: g.side()
                g.side()
                for i in range(4): g(f'v_pk_mul_f32 v[{tm[i]}:{tm[i]+1}], v[{tm[i]}:{tm[i]+1}], v[{P[i]}:{P[i]+1}]')
                for i in range(4): g(f'v_cvt_pk_bf16_f32 v{o+i}, v{tm[i]}, v{tm[i]+1}')
                g.vmem(f'buffer_store_dwordx4 v[{o}:{o+3}], v56, s[40:43], s{60+2*t+u} offen offset:{2048*j} sc1','st')
                nsub+=1
    g.stamp()
    g.flush_side()

def p1_dft(g):
    RAW=64
    vBr0=56; vXL=57; vSP=58; vBd=[4,5,6,7]; vWe,vWo=8,9; vFA=[10,11,12,13]; vFB=[14,15,16,17]
    CC=[192,196]; SS=[200,204]; NS=[208,212]
    RC=[216,218,220,222]
    g('''s_mov_b32 s49, s53
    s_lshr_b32 s51, s3, 1''')
    t1_of(g,'s52','s48','s51','s53')
    g(f'''s_and_b32 s50, s3, 1
    s_lshl_b32 s53, s50, 5
    s_add_u32 s53, s53, s52
    s_lshl_b32 s53, s53, 10
    v_lshrrev_b32 v24, 3, v0
    v_lshrrev_b32 v25, 4, v0
    v_and_b32 v26, 7, v0
    v_lshlrev_b32 v27, 4, v26
    v_lshl_add_u32 v27, v24, 16, v27
    v_add_u32 v{vXL}, s53, v27
    s_waitcnt lgkmcnt(0)''')
    srd(g,32,4,2097152)
    def xops(gi):
        def mk(j):
            def op():
                if j==0: g(f's_mov_b32 s58, {gi*524288}')
                r=RAW+32*gi+4*j
                g.vmem(f'buffer_load_dwordx4 v[{r}:{r+3}], v{vXL}, s[32:35], s58 offen offset:{128*j}',f'x{gi}')
            return op
        return [mk(j) for j in range(8)]
    for gi in range(2):
        for op in xops(gi): op()
    epoch_load(g)
    srd(g,36,10,524288); srd(g,40,12,524288)
    g(f'''s_lshl_b32 s46, s48, 7
    s_lshl_b32 s53, s49, 2
    s_add_u32 s46, s46, s53
    s_add_u32 s46, s46, 56
    v_xor_b32 v26, v26, v25
    v_lshlrev_b32 v26, 4, v26
    v_lshl_add_u32 v27, v24, 11, v26
    s_lshl_b32 s53, s3, 16
    s_lshl_b32 s54, s49, 10
    s_add_u32 s53, s53, s54
    v_add_u32 v{vBd[0]}, s53, v27
    v_xor_b32 v28, 64, v{vBd[0]}
    v_add_u32 v{vBd[1]}, {16384-1024}, v28
    v_add_u32 v{vBd[2]}, {2*(16384-1024)}, v{vBd[0]}
    v_add_u32 v{vBd[3]}, {3*(16384-1024)}, v28
    v_add_u32 v28, 0x40000, v{vBd[0]}
    v_cmp_gt_u32 vcc, 1024, v{vBd[0]}
    v_cndmask_b32 v{vBr0}, v{vBd[0]}, v28, vcc
    v_lshl_add_u32 v27, v24, 7, v26
    s_lshl_b32 s53, s3, 12
    v_add_u32 v{vWe}, s53, v27
    v_xor_b32 v{vWo}, 64, v{vWe}
    s_mul_i32 s55, s3, 24576
    s_add_u32 s55, s55, 65536
    s_lshl_b32 s53, s48, 1
    s_add_u32 s53, s53, s49
    s_lshl_b32 s53, s53, 11
    s_lshl_b32 s54, s51, 10
    s_add_u32 s53, s53, s54
    s_lshl_b32 s54, s50, 4
    s_add_u32 s53, s53, s54
    v_lshl_add_u32 v{vSP}, v24, 5, s53''')
    def bops(st):
        slot=st%3
        def mk(i):
            def op():
                if i==0: g(f's_mov_b32 s57, {128*st}\ns_add_u32 m0, s55, {slot*8192}')
                if i==4: g(f's_add_u32 m0, s55, {slot*8192+4096}')
                if i<4: g.vmem(f'buffer_load_dwordx4 v{vBr0 if i==0 else vBd[i]}, s[36:39], s57 offen offset:{1024*i} lds',f'B{st}')
                else:   g.vmem(f'buffer_load_dwordx4 v{vBd[i-4]}, s[40:43], s57 offen offset:{1024*(i-4)} lds',f'B{st}')
            return op
        return [mk(i) for i in range(8)]
    g(f'''v_and_b32 v24, 31, v0
    v_lshrrev_b32 v25, 5, v0
    v_bfe_u32 v26, v0, 1, 3
    v_xor_b32 v26, v26, v25
    v_lshlrev_b32 v27, 7, v24''')
    for kk in range(4):
        g(f'''v_xor_b32 v28, {2*kk}, v26
        v_lshl_add_u32 v{vFA[kk]}, v28, 4, v27
        v_add_u32 v{vFB[kk]}, s55, v{vFA[kk]}''')
    g(f'''v_cvt_f32_u32 v26, v24
    v_mul_f32 v26, {f2u(1/32):#x}, v26
    v_cvt_f32_u32 v27, v25
    v_mul_f32 v27, 4.0, v27
    v_mul_f32 v27, v27, v26
    v_mul_f32 v28, {f2u(5.0):#x}, v26''')
    g.sideq+=xops(2)+xops(3)
    for j in range(2):
        for i2 in range(4):
            for e in range(2):
                i=2*i2+e
                if not (j==0 and i==0):
                    g(f'v_add_f32 v27, v27, v{28 if i%4==0 else 26}')
                g(f'v_fract_f32 v29, v27\nv_cos_f32 v{20+e}, v29\nv_sin_f32 v{22+e}, v29')
            g(f'v_cvt_pk_bf16_f32 v{CC[j]+i2}, v20, v21\nv_cvt_pk_bf16_f32 v{SS[j]+i2}, v22, v23\nv_xor_b32 v{NS[j]+i2}, 0x80008000, v{SS[j]+i2}')
    w2_setup(g)
    srd(g,32,4,2097152)
    g(f'''s_mov_b32 s59, 0x3f803f80
    s_cmp_eq_u32 s49, 0
    s_cselect_b32 s60, 1.0, -1.0
    s_mov_b32 s61, s60
    s_cselect_b32 s62, -2.0, 0
    s_waitcnt lgkmcnt(0)''')
    nonce(g)
    srd(g,16,28,65536,add=ST_OFF)
    eps=f'{f2u(1e-5):#x}'
    first=True
    for gi in range(4):
        R=RAW+32*gi
        g.wait(f'x{gi}')
        if gi==0: g.stamp()
        if gi==2: g.sideq+=bops(0)+bops(1)
        g('v_mov_b32 v20, 0\nv_mov_b32 v21, 0\nv_mov_b32 v22, 0\nv_mov_b32 v23, 0')
        for i in range(32):
            g(f'v_dot2c_f32_bf16 v{20+(i&1)}, s59, v{R+i}\nv_dot2c_f32_bf16 v{22+(i&1)}, v{R+i}, v{R+i}')
            if i%4==3: g.side()
        g('v_add_f32 v20, v20, v21\nv_add_f32 v22, v22, v23')
        for dpp in ('quad_perm:[1,0,3,2]','quad_perm:[2,3,0,1]','row_half_mirror'):
            g(f'v_add_f32_dpp v20, v20, v20 {dpp} row_mask:0xf bank_mask:0xf\nv_add_f32_dpp v22, v22, v22 {dpp} row_mask:0xf bank_mask:0xf')
        o=32+4*(gi&1); r1=RC[gi]
        g(f'''v_mul_f32 v24, {f2u(-1/512):#x}, v20
        v_mul_f32 v25, {f2u(1/512):#x}, v22
        v_fma_f32 v25, -v24, v24, v25
        v_cvt_pk_bf16_f32 v27, v24, v24
        v_max_f32 v25, 0, v25
        v_lshlrev_b32 v27, 16, v27
        v_cvt_pk_bf16_f32 v26, v25, v25
        v_sub_f32 v27, v24, v27
        v_lshlrev_b32 v26, 16, v26
        v_cvt_pk_bf16_f32 v{o}, v24, v27
        v_add_f32 v26, {eps}, v26
        v_cvt_pk_bf16_f32 v26, v26, v26
        v_lshlrev_b32 v26, 16, v26
        v_sqrt_f32 v26, v26
        v_mul_f32 v24, s62, v24
        v_cvt_pk_bf16_f32 v26, v26, v26
        v_lshlrev_b32 v26, 16, v26
        v_rcp_f32 v{r1}, v26
        v_mov_b32 v{o+3}, s47
        v_mul_f32 v25, v25, v{r1}
        v_mul_f32 v{r1+1}, -v24, v{r1}
        v_mul_f32 v25, v25, v{r1}
        v_cvt_pk_bf16_f32 v25, v25, v25
        v_lshlrev_b32 v25, 16, v25
        v_add_f32 v25, {eps}, v25
        v_cvt_pk_bf16_f32 v25, v25, v25
        v_lshlrev_b32 v25, 16, v25
        v_sqrt_f32 v25, v25
        v_cvt_pk_bf16_f32 v25, v25, v25
        v_lshlrev_b32 v25, 16, v25
        v_mul_f32 v{o+2}, v25, v26
        v_cvt_pk_bf16_f32 v25, v{o+2}, v{o+2}
        v_lshlrev_b32 v25, 16, v25
        v_sub_f32 v25, v{o+2}, v25
        v_cvt_pk_bf16_f32 v{o+1}, v{o+2}, v25''')
        g.vmem(f'buffer_store_dwordx4 v[{o}:{o+3}], v{vSP}, s[16:19], 0 offen offset:{256*gi} sc1','sp')
    g.sideq+=bops(2)+xb2_ops(g)
    for gi in range(4):
        R=RAW+32*gi; r1=RC[gi]
        for j in range(4):
            o=[24,28][j&1]
            for i in range(4):
                a_=R+4*j+i; b_=R+4*(j+4)+i; t=40+4*i
                g(f'''v_lshlrev_b32 v{t}, 16, v{a_}
                v_and_b32 v{t+1}, 0xffff0000, v{a_}
                v_lshlrev_b32 v{t+2}, 16, v{b_}
                v_and_b32 v{t+3}, 0xffff0000, v{b_}''')
            g.side()
            for i in range(4):
                t=40+4*i
                g(f'v_pk_fma_f32 v[{t}:{t+1}], v[{t+2}:{t+3}], s[60:61], v[{t}:{t+1}]')
            for i in range(4):
                t=40+4*i
                g(f'v_pk_fma_f32 v[{t}:{t+1}], v[{t}:{t+1}], v[{r1}:{r1+1}], v[{r1}:{r1+1}] op_sel:[0,0,1] op_sel_hi:[1,0,1]')
            for i in range(4):
                t=40+4*i
                g(f'v_cvt_pk_bf16_f32 v{o+i}, v{t}, v{t+1}')
            g.side()
            g(f'ds_write_b128 v{vWo if gi&1 else vWe}, v[{o}:{o+3}] offset:{16384*j+1024*gi}')
    g.flush_side()
    g('s_waitcnt lgkmcnt(0)\ns_barrier')
    g.stamp()
    ACC=64
    def fr(s_):
        b=[32,216][s_]
        return dict(A=[b,b+4,b+8,b+12],B=[b+16,b+20])
    def reads(n):
        st,kk=n>>2,n&3; f=fr(n&1)
        if kk==0: g.wait(f'B{st}')
        for ab in range(2): g(f'ds_read_b128 v[{f["B"][ab]}:{f["B"][ab]+3}], v{vFB[kk]} offset:{(st%3)*8192+4096*ab}')
        for ti in range(4): g(f'ds_read_b128 v[{f["A"][ti]}:{f["A"][ti]+3}], v{vFA[kk]} offset:{st*16384+4096*ti}')
    reads(0)
    for n in range(16):
        if n<15:
            reads(n+1); g('s_waitcnt lgkmcnt(6)')
        else: g('s_waitcnt lgkmcnt(0)')
        if n==3: g.sideq+=bops(3)
        f=fr(n&1)
        for ti in range(4):
            for ab in range(2):
                d=ACC+32*ti+16*ab
                c=f'v[{d}:{d+15}]' if n else '0'
                g(f'v_mfma_f32_32x32x16_bf16 v[{d}:{d+15}], v[{f["A"][ti]}:{f["A"][ti]+3}], v[{f["B"][ab]}:{f["B"][ab]+3}], {c}')
                if ab: g.side()
    g('s_barrier')
    g.stamp()
    for ks in range(16): g.sideq+=w2_dma_ops(g,ks)
    for ti in range(4):
        Z=[32,216][ti&1]
        for ab in range(2):
            d=ACC+32*ti+16*ab
            for i in range(8): g(f'v_cvt_pk_bf16_f32 v{Z+8*ab+i}, v{d+2*i}, v{d+2*i+1}')
        za=[Z,Z+4]; zb=[Z+8,Z+12]; ur=ACC+32*ti; ui=ur+16
        seq=[(ur,CC[0],za[0],1),(ui,CC[0],zb[0],1),(ur,CC[1],za[1],0),(ui,CC[1],zb[1],0),(ur,SS[0],zb[0],0),(ui,NS[0],za[0],0),(ur,SS[1],zb[1],0),(ui,NS[1],za[1],0)]
        for n,(d,am,bm,first) in enumerate(seq):
            g(f'v_mfma_f32_32x32x16_bf16 v[{d}:{d+15}], v[{am}:{am+3}], v[{bm}:{bm+3}], '+('0' if first else f'v[{d}:{d+15}]'))
            if n&1: g.side()
    srd(g,40,28,2097152,add=U_OFF)
    g(f'''v_and_b32 v24, 31, v0
    v_lshrrev_b32 v25, 5, v0
    v_lshlrev_b32 v24, 4, v24
    v_lshl_add_u32 v24, v25, 18, v24
    s_lshl_b32 s53, s3, 9
    v_add_u32 v24, s53, v24
    s_lshl_b32 s53, s48, 1
    s_add_u32 s53, s53, s49
    s_lshl_b32 s53, s53, 11''')
    for r in range(16):
        o=32+4*(r&3)
        for ti in range(4): g(f'v_cvt_pk_bf16_f32 v{o+ti}, v{ACC+32*ti+r}, v{ACC+32*ti+16+r}')
        g(f's_add_u32 s54, s53, {(8*(r>>2)+(r&3))*65536}')
        g.vmem(f'buffer_store_dwordx4 v[{o}:{o+3}], v24, s[40:43], s54 offen sc1','st')
    g.stamp()
    g.flush_side()
    for ks in range(0,12,2):
        g.wait(f'w{ks+1}'); w2_trr(g,ks); w2_trr(g,ks+1); g('s_waitcnt lgkmcnt(0)')
        for k2 in (ks+16,ks+17):
            for op in w2_dma_ops(g,k2): op()

def p2(g):
    ACC=64; ACS=128; TW=144
    vH0,vH1,vU,vFL=6,7,8,9
    HR=[16+8*i for i in range(6)]+[192+8*i for i in range(6)]
    g.vm=['old']
    g(f'''s_and_b32 s50, s3, 1
    s_lshr_b32 s51, s3, 1
    v_lshrrev_b32 v10, 5, v0
    v_and_b32 v11, 31, v0
    v_lshrrev_b32 v12, 10, v{vXO}
    s_cmp_lt_u32 s70, 4
    s_cselect_b32 s60, 0, -1
    s_cselect_b32 s61, 0, 513
    s_and_b32 s63, s60, 0x80000000
    s_or_b32 s63, s63, {f2u(1/2048):#x}
    v_cvt_f32_u32 v12, v12
    v_mul_f32 v12, s63, v12
    v_cvt_f32_u32 v13, v10
    v_mul_f32 v13, v13, v12
    v_mul_f32 v14, {f2u(32.0):#x}, v12
    v_add_f32 v12, v12, v12
    v_mul_f32 v15, 0.5, v14
    v_cmp_gt_u32 vcc, 32, v0
    v_cndmask_b32 v15, v14, v15, vcc''')
    for j in range(8):
        if j: g('v_add_f32 v13, v13, v12')
        g(f'''v_add_f32 v3, v13, v14
        v_sub_f32 v4, v{15 if j==0 else 14}, v13
        v_add_f32 v5, v4, v14
        v_fract_f32 v2, v13
        v_fract_f32 v3, v3
        v_fract_f32 v4, v4
        v_fract_f32 v5, v5''')
        for i in range(4): g(f'v_cos_f32 v{176+2*i}, v{2+i}\nv_sin_f32 v{177+2*i}, v{2+i}')
        for i in range(4): g(f'v_cvt_pk_bf16_f32 v{TW+4*j+i}, v{176+2*i}, v{177+2*i}')
    srd(g,32,28,8192,add=F_OFF); srd(g,36,28,7340032); srd(g,40,28,2097152,add=U_OFF); srd(g,72,24,2097152)
    g(f'''s_lshl_b32 s53, s70, 6
    s_lshl_b32 s54, s50, 5
    s_add_u32 s53, s53, s54
    v_add_u32 v12, s53, v11
    v_xor_b32 v13, s60, v12
    v_add_u32 v13, s61, v13
    v_and_b32 v15, 1, v13
    v_lshlrev_b32 v15, 11, v15
    v_bfe_u32 v13, v13, 1, 7
    v_lshl_add_u32 v13, v13, 4, v15
    v_lshl_add_u32 v13, v10, 12, v13
    v_mov_b32 v15, 0x40000000
    v_cmp_eq_u32 vcc, 0, v12
    v_cndmask_b32 v{vU}, v13, v15, vcc
    s_sub_u32 s62, 32, s71
    s_and_b32 s62, s62, 31
    s_cmp_lt_u32 s70, 4
    s_cselect_b32 s62, s71, s62
    s_lshl_b32 s62, s62, 16
    v_mov_b32 v185, 0
    v_mov_b32 v186, 0
    v_mov_b32 v187, 0
    v_mov_b32 v188, 0x3f80
    v_cmp_gt_u32 vcc, 32, v0
    v_cndmask_b32 v188, 0, v188, vcc
    v_mov_b32 v189, 0
    v_mov_b32 v190, 0
    v_mov_b32 v191, 0
    s_lshl_b32 s53, s51, 10
    v_lshl_add_u32 v{vH0}, v0, 4, s53
    v_xor_b32 v{vH1}, 0x400, v{vH0}
    s_mul_i32 s57, s71, 112
    s_mul_i32 s53, s3, 28
    s_add_u32 s57, s57, s53
    s_lshl_b32 s57, s57, 11
    s_add_u32 s59, s57, {28*2048}
    s_lshl_b32 s53, s44, 11
    s_add_u32 s58, s57, s53
    s_lshl_b32 s53, s45, 7
    v_min_u32 v13, 13, v0
    v_lshl_add_u32 v4, v13, 2, s53
    v_and_b32 v13, 3, v0
    v_lshlrev_b32 v13, 4, v13
    v_lshrrev_b32 v14, 2, v0
    v_lshl_add_u32 v{vFL}, v14, 7, v13
    v_mov_b32 v2, s47
    v_mov_b32 v3, s46
    s_mov_b32 s56, {SPIN}''')
    g.waitall()
    g('s_barrier')
    g.stamp()
    g('''s_cmp_lg_u32 s3, 0
    s_cbranch_scc1 L_nosig
    s_mov_b64 exec, 1
    buffer_store_dword v2, v3, s[32:35], 0 offen sc1
    s_mov_b64 exec, -1
    L_nosig:''')
    for ks in range(12,28): w2_trr(g,ks)
    g(f'''v_mov_b32 v184, v{vB2}
    s_cmp_lg_u32 s3, 1
    s_cbranch_scc1 L_go
    L_poll:
    buffer_load_dword v3, v4, s[32:35], 0 offen sc1
    s_waitcnt vmcnt(0)
    v_cmp_ne_u32 vcc, s47, v3
    s_cbranch_vccz L_go
    s_sleep {g.opt.get('sleep',3)}
    s_sub_u32 s56, s56, 1
    s_cbranch_scc0 L_poll
    L_go:
    s_barrier''')
    g.vm=['flag']
    g.stamp()
    hidx=[0]
    def hload():
        ks=hidx[0]; r=HR[ks%12]
        g.vmem(f'buffer_load_dwordx4 v[{r}:{r+3}], v{vH0}, s[36:39], s58 offen sc1',f'h{ks}')
        g.vmem(f'buffer_load_dwordx4 v[{r+4}:{r+7}], v{vH1}, s[36:39], s58 offen sc1',f'h{ks}')
        g('s_add_u32 s58, s58, 2048\ns_cmp_eq_u32 s58, s59\ns_cselect_b32 s58, s57, s58')
        hidx[0]+=1
    HD=g.opt.get('hdepth',8)
    for i in range(HD): hload()
    g('s_waitcnt lgkmcnt(0)')
    g(f'v_mfma_f32_32x32x16_bf16 v[{ACC}:{ACC+15}], v[184:187], v[188:191], 0')
    for d in (1,2,3):
        g(f's_add_u32 s53, s69, {d*32768}\nv_lshl_add_u32 v{9+d}, v0, 4, s53')
    KF=g.opt.get('kflag',6)
    NL=g.opt.get('nlast',3)
    def mf(ks,a_,b):
        r=HR[ks%12]; d=ACC+16*(a_+2*b)
        c='0' if (ks==0 and (a_ or b)) else f'v[{d}:{d+15}]'
        g(f'v_mfma_f32_32x32x16_bf16 v[{d}:{d+15}], a[{8*ks+4*a_}:{8*ks+4*a_+3}], v[{r+4*b}:{r+4*b+3}], {c}')
    checked=False
    for ks in range(28-NL):
        g.wait(f'h{ks}')
        if ks==0: g.stamp()
        for b in range(2):
            for a_ in range(2): mf(ks,a_,b)
            if b==0 and g.sideq: g.side()
        if hidx[0]<28: hload()
        if ks==KF: g.vmem(f'buffer_load_dwordx4 v[176:179], v{vFL}, s[32:35], 0 offen sc1','fl')
        if 'fl' not in g.vm and ks>KF and not checked:
            checked=True
            g(f'''L_chk:
            v_xor_b32 v176, s47, v176
            v_xor_b32 v177, s47, v177
            v_xor_b32 v178, s47, v178
            v_xor_b32 v179, s47, v179
            v_or3_b32 v176, v176, v177, v178
            v_or_b32 v176, v176, v179
            v_cmp_ne_u32 vcc, 0, v176
            s_cbranch_vccz L_allset
            s_sleep 1
            buffer_load_dwordx4 v[176:179], v{vFL}, s[32:35], 0 offen sc1
            s_waitcnt vmcnt(0)
            s_sub_u32 s56, s56, 1
            s_cbranch_scc0 L_chk
            L_allset:''')
            def mku(j):
                def op():
                    g(f's_add_u32 s53, s62, {8192*j}')
                    g.vmem(f'buffer_load_dwordx4 a[{224+4*j}:{227+4*j}], v{vU}, s[40:43], s53 offen sc1','u')
                return op
            g.sideq+=[mku(j) for j in range(8)]
    assert checked
    g.flush_side()
    XF=176
    def wr(d):
        for q in range(4):
            r=ACC+16*d+4*q
            g(f'ds_write_b128 v{9+d}, v[{r}:{r+3}] offset:{1024*q}')
    for n,d in enumerate((3,2,1,0)):
        for ks in range(28-NL,28):
            g.wait(f'h{ks}')
            mf(ks,d&1,d>>1)
        if n==1:
            for i in range(4): g(f'v_lshlrev_b32 v{XF+2*i}, 16, v{XR+i}\nv_and_b32 v{XF+2*i+1}, 0xffff0000, v{XR+i}')
            wr(3)
        if n==2:
            for i in range(4,8): g(f'v_lshlrev_b32 v{XF+2*i}, 16, v{XR+i}\nv_and_b32 v{XF+2*i+1}, 0xffff0000, v{XR+i}')
            wr(2)
    g.stamp()
    g.waitall()
    for j in range(8):
        g(f'v_mfma_f32_32x32x16_bf16 v[{ACS}:{ACS+15}], a[{224+4*j}:{227+4*j}], v[{TW+4*j}:{TW+4*j+3}], '+('0' if j==0 else f'v[{ACS}:{ACS+15}]'))
        if j==0: wr(1)
    for d in (1,2,3):
        g(f'v_xor_b32 v{9+d}, {d*8192}, v{9+d}')
    g(f's_mov_b32 s60, {f2u(-math.log2(math.e)):#x}\ns_mov_b32 s61, s60\ns_mov_b32 s62, 1.0\ns_mov_b32 s63, 1.0')
    g('s_waitcnt lgkmcnt(0)\ns_barrier')
    for q in range(4):
        for d in range(3):
            r=16+16*d+4*q
            g(f'ds_read_b128 v[{r}:{r+3}], v{10+d} offset:{1024*q}')
    T=80
    for hf in range(2):
        g(f's_waitcnt lgkmcnt({6-6*hf})')
        I=range(4*hf,4*hf+4)
        for i in I: g(f'v_pk_add_f32 v[{16+2*i}:{17+2*i}], v[{16+2*i}:{17+2*i}], v[{32+2*i}:{33+2*i}]')
        for i in I: g(f'v_pk_add_f32 v[{ACC+2*i}:{ACC+2*i+1}], v[{ACC+2*i}:{ACC+2*i+1}], v[{48+2*i}:{49+2*i}]')
        for i in I: g(f'v_pk_add_f32 v[{ACC+2*i}:{ACC+2*i+1}], v[{ACC+2*i}:{ACC+2*i+1}], v[{16+2*i}:{17+2*i}]')
        for i in I: g(f'v_pk_mul_f32 v[{T+2*i}:{T+2*i+1}], v[{ACC+2*i}:{ACC+2*i+1}], s[60:61]')
        for i in I: g(f'v_exp_f32 v{T+2*i}, v{T+2*i}\nv_exp_f32 v{T+2*i+1}, v{T+2*i+1}')
        for i in I: g(f'v_pk_add_f32 v[{T+2*i}:{T+2*i+1}], v[{T+2*i}:{T+2*i+1}], s[62:63]')
        for i in I: g(f'v_rcp_f32 v{T+2*i}, v{T+2*i}\nv_rcp_f32 v{T+2*i+1}, v{T+2*i+1}')
        for i in I: g(f'v_pk_mul_f32 v[{ACS+2*i}:{ACS+2*i+1}], v[{ACS+2*i}:{ACS+2*i+1}], v[{ACC+2*i}:{ACC+2*i+1}]')
        for i in I: g(f'v_pk_fma_f32 v[{T+2*i}:{T+2*i+1}], v[{T+2*i}:{T+2*i+1}], v[{ACS+2*i}:{ACS+2*i+1}], v[{XF+2*i}:{XF+2*i+1}]')
        for i in I: g(f'v_cvt_pk_bf16_f32 v{96+i}, v{T+2*i}, v{T+2*i+1}')
        for q in (2*hf,2*hf+1): g(f'buffer_store_dwordx2 v[{96+2*q}:{97+2*q}], v{vXO}, s[72:75], 0 offen offset:{16*q}')
    g('''s_add_u32 s53, s2, s3
    s_cmp_lg_u32 s53, 0
    s_cbranch_scc1 L_noep
    v_mov_b32 v192, s47
    v_mov_b32 v193, 4096
    s_mov_b64 exec, 1
    buffer_store_dword v192, v193, s[32:35], 0 offen sc1
    s_mov_b64 exec, -1
    L_noep:''')
    g.stamp()

def build(stamps=False, opt=None):
    g=G(stamps,opt)
    entry(g)
    vm0=list(g.vm); n0=g.nst
    p1_mlp(g)
    n1=g.nst
    g('s_branch L_p2\nL_dft:')
    g.vm=list(vm0); g.nst=n0
    p1_dft(g)
    g.nst=max(g.nst,n1)
    g('L_p2:')
    p2(g); g.dump_stamps(TS_OFF)
    g('L_end:\ns_endpgm\nL_codeend:')
    body='\n'.join(hazard.fix(g.a.l))+'\n'
    return wrap([dict(name=KN,body=body,grid=256,block=256,lds=163840,vgpr=512,accum=256)],HDR)
if __name__=='__main__':
    out=sys.argv[1]; st='stamps' in sys.argv[2:]
    opt={}
    for a in sys.argv[2:]:
        if '=' in a:
            k,v=a.split('='); opt[k]=int(v) if v.lstrip('-').isdigit() else v
    open(out,'w').write(build(st,opt))
```

```python
import sys, math, struct
sys.path.insert(0,'tools')
from asmlib import A, wrap, KN
import hazard
from gen3 import G, srd, t1_of, f2u, HDR, U_OFF, F_OFF, ST_OFF, CS_REL, TS_OFF, SPIN, epoch_load, nonce

vD0,vD1 = 248,249
vT = [250,251,252,253]
XR, vB2, vXO = 240, 254, 255
vSG,vH0,vH1,vU,vFL,vPL = 58,59,60,61,62,63
MF='v_mfma_f32_32x32x16_bf16'

def p2_setup(g, dft):
    g('''s_and_b32 s70, s31, 7
    s_lshr_b32 s53, s31, 4
    s_lshl_b32 s54, s30, 1
    s_add_u32 s45, s53, s54
    s_bfe_u32 s54, s31, 0x10003''')
    t1_of(g,'s71','s45','s54','s53')
    g(f'''s_lshr_b32 s53, s31, 3
    s_mul_i32 s44, s53, 7
    s_lshl_b32 s68, s44, 14
    s_lshl_b32 s69, s3, 13
    v_lshrrev_b32 v24, 3, v0
    v_bfe_u32 v25, v0, 4, 1
    v_lshlrev_b32 v26, 2, v25
    v_and_b32 v27, 7, v0
    v_xor_b32 v26, v26, v27
    v_lshlrev_b32 v26, 4, v26
    v_lshl_add_u32 v26, v24, 10, v26
    s_mul_i32 s53, s3, {448*1024}
    s_lshl_b32 s54, s70, 7
    s_add_u32 s53, s53, s54
    v_add_u32 v{vD0}, s53, v26
    v_add_u32 v{vD1}, {8192-1024}, v{vD0}
    v_lshl_add_u32 v{XR}, v0, 10, s53
    v_lshrrev_b32 v24, 5, v0
    v_bfe_u32 v26, v0, 2, 2
    v_lshl_add_u32 v27, v24, 2, v26
    v_lshlrev_b32 v27, 7, v27
    v_lshrrev_b32 v26, 1, v26
    s_and_b32 s53, s3, 1
    v_xor_b32 v26, s53, v26
    v_lshl_add_u32 v27, v26, 6, v27
    v_lshl_add_u32 v27, v25, 5, v27
    v_and_b32 v26, 3, v0
    v_lshl_add_u32 v27, v26, 3, v27
    v_add_u32 v{vT[0]}, s69, v27
    v_xor_b32 v{vT[1]}, 64, v{vT[0]}
    v_add_u32 v{vT[2]}, 0x10000, v{vT[0]}
    v_add_u32 v{vT[3]}, 0x10000, v{vT[1]}''')
    srd(g,64,20,1792*512*2)
    srd(g,72,22,1024); srd(g,76,4,2097152)
    g(f'''v_lshlrev_b32 v26, 4, v26
    v_lshrrev_b32 v27, 2, v0
    v_lshl_add_u32 v{vFL}, v27, 7, v26
    s_lshl_b32 s53, s45, 7
    v_min_u32 v26, 13, v0
    v_lshl_add_u32 v{vPL}, v26, 2, s53
    s_lshr_b32 s54, s3, 1
    s_lshl_b32 s53, s54, 10
    v_lshl_add_u32 v{vH0}, v0, 4, s53
    v_xor_b32 v{vH1}, 0x400, v{vH0}
    s_lshl_b32 s53, s54, 5
    v_and_b32 v26, 31, v0
    v_add_u32 v25, s53, v26
    v_lshlrev_b32 v25, 5, v25
    v_add_u32 v25, s71, v25
    v_lshlrev_b32 v27, 10, v25
    v_lshl_add_u32 v27, v24, 3, v27
    s_lshl_b32 s53, s70, 7
    s_and_b32 s54, s3, 1
    s_lshl_b32 s54, s54, 6
    s_add_u32 s53, s53, s54
    v_add_u32 v{vXO}, s53, v27
    v_lshl_add_u32 v{vB2}, v26, 1, s53
    v_lshrrev_b32 v26, 1, v{vB2}
    s_cmp_lt_u32 s70, 4
    s_cselect_b32 s53, 0, -1
    s_cselect_b32 s54, 0, 513
    v_xor_b32 v27, s53, v26
    v_add_u32 v27, s54, v27
    v_and_b32 v28, 1, v27
    v_lshlrev_b32 v28, 11, v28
    v_bfe_u32 v27, v27, 1, 7
    v_lshl_add_u32 v27, v27, 4, v28
    v_lshl_add_u32 v27, v24, 12, v27
    v_mov_b32 v28, 0x40000000
    v_cmp_eq_u32 vcc, 0, v26
    v_cndmask_b32 v{vU}, v27, v28, vcc
    s_and_b32 s53, s53, 0x80000000
    s_or_b32 s53, s53, {f2u(1/2048):#x}
    v_cvt_f32_u32 v25, v25
    v_mul_f32 v25, s53, v25
    v_cvt_f32_u32 v26, v24
    v_mul_f32 v26, v26, v25
    v_mul_f32 v27, {f2u(32.0):#x}, v25
    v_add_f32 v25, v25, v25
    v_mul_f32 v29, 0.5, v27
    v_cmp_gt_u32 vcc, 32, v0
    v_cndmask_b32 v29, v27, v29, vcc''')
    if dft:
        g(f'''s_cmp_eq_u32 s3, 0
        s_cselect_b32 s53, s46, 0x40000000
        v_mov_b32 v30, s53
        v_cmp_eq_u32 vcc, 0, v0
        v_cndmask_b32 v{vSG}, v28, v30, vcc''')
    else: g(f'v_mov_b32 v{vSG}, v28')
    for j in range(8):
        if j: g('v_add_f32 v26, v26, v25')
        g(f'''v_add_f32 v21, v26, v27
        v_sub_f32 v22, v{29 if j==0 else 27}, v26
        v_add_f32 v23, v22, v27
        v_fract_f32 v20, v26
        v_fract_f32 v21, v21
        v_fract_f32 v22, v22
        v_fract_f32 v23, v23''')
        for i in range(4): g(f'v_cos_f32 v{32+2*i}, v{20+i}\nv_sin_f32 v{33+2*i}, v{20+i}')
        for i in range(4): g(f'v_cvt_pk_bf16_f32 v{40+i}, v{32+2*i}, v{33+2*i}')
        for i in range(4): g(f'v_accvgpr_write_b32 a{224+4*j+i}, v{40+i}')
def w2pf_ops(g):
    def o0(): g.vmem(f'buffer_load_dword v1, v{XR}, s[64:67], s68 offen','pf')
    def o1():
        g('s_add_u32 s53, s68, 0x10000'); g.vmem(f'buffer_load_dword v1, v{XR}, s[64:67], s53 offen','pf')
    return [o0,o1]
def xb2_ops(g):
    def o0(): g.vmem(f'buffer_load_ushort v{vB2}, v{vB2}, s[72:75], 0 offen','b2')
    def mk(q):
        def o(): g.vmem(f'buffer_load_dwordx2 v[{XR+2*q}:{XR+2*q+1}], v{vXO}, s[76:79], 0 offen offset:{16*q}','xr')
        return o
    return [o0]+[mk(q) for q in range(4)]
def w2_dma_ops(g, ks, base='s69', lds=None):
    s=ks%16
    if lds is None: lds=(s>>2)*32768+(s&3)*2048
    def op0():
        g(f's_add_u32 m0, {base}, {lds}')
        g.vmem(f'buffer_load_dwordx4 v{vD0}, s[64:67], s68 offen lds', f'w{ks}')
    def op1():
        g.vmem(f'buffer_load_dwordx4 v{vD1}, s[64:67], s68 offen offset:1024 lds', f'w{ks}')
        g(f's_add_u32 s68, s68, 16384\ns_cmp_eq_u32 s68, {28*16384}\ns_cselect_b32 s68, 0, s68')
    return [op0,op1]
def w2_trr(g, ks, regs=None, off=None):
    s=ks%16
    if regs is None:
        hi=2*(s>>3); regs=vT[hi:hi+2]; off=((s>>2)&1)*32768+(s&3)*2048
    for a_ in range(2):
        for q in range(2):
            r=8*ks+4*a_+2*q
            g(f'ds_read_b64_tr_b16 a[{r}:{r+1}], v{regs[a_]} offset:{off+1024*q}')

def entry(g):
    g('''s_cmp_ge_u32 s2, 256
    s_cbranch_scc1 L_end''')
    g.stamp()
    g('''s_load_dwordx16 s[4:19], s[0:1], 0
    s_load_dwordx8 s[20:27], s[0:1], 64
    s_load_dwordx2 s[28:29], s[0:1], 96
    v_lshrrev_b32 v1, 6, v0
    s_and_b32 s30, s2, 7
    s_lshr_b32 s31, s2, 3
    v_readfirstlane_b32 s3, v1''')
    if g.opt.get('codepf',1):
        g(f'''s_getpc_b64 s[50:51]
        L_pc:
        s_lshl_b32 s53, s31, 10
        v_lshl_add_u32 v2, v0, 2, s53
        v_min_u32 v2, L_codeend-L_pc-4, v2''')
        g.vmem('global_load_dword v1, v2, s[50:51]','pf')
    rot=g.opt.get('rot',1)
    g('''v_and_b32 v0, 63, v0
    s_lshr_b32 s48, s30, 1
    s_lshl_b32 s55, s48, 1
    s_lshl_b32 s48, s48, 2
    s_lshr_b32 s100, s31, 3
    s_add_u32 s48, s48, s100
    s_and_b32 s49, s31, 7''')
    if rot==1:   g('s_lshl_b32 s56, s100, 1\ns_add_u32 s56, s56, s49\ns_and_b32 s56, s56, 7')
    elif rot==2: g('s_add_u32 s56, s100, s49\ns_and_b32 s56, s56, 1\ns_lshl_b32 s56, s56, 2')
    elif rot==4: g('s_add_u32 s56, s100, s49\ns_and_b32 s56, s56, 3\ns_lshl_b32 s56, s56, 1')
    elif rot==0: g('s_mov_b32 s56, 0')
    if g.opt.get('xph',0): g('s_add_u32 s56, s56, s55\ns_and_b32 s56, s56, 7')
    g('''s_and_b32 s53, s30, 1
    s_cmp_eq_u32 s49, 7
    s_cbranch_scc1 L_dft''')

def p1_mlp(g):
    ACC=64
    vX=[2,3,4,5]; vW=[6,7,8,9]; vB=[10,11,12,13]; vA=[18,19]
    vSA,vCA,vCP,vCB=14,15,16,17
    vB1=[56,57]; CSA=160; SEL=164; GA=144
    rot=g.opt.get('rot',1)
    g('''s_mul_i32 s54, s53, 7
    s_add_u32 s49, s49, s54
    s_and_b32 s50, s3, 1
    s_lshr_b32 s51, s3, 1''')
    g('s_lshl_b32 s63, s48, 1\ns_add_u32 s63, s63, s53')
    t1_of(g,'s52','s48','s51','s53')
    g(f'''v_lshrrev_b32 v24, 3, v0
    v_lshrrev_b32 v25, 4, v0
    v_and_b32 v26, 7, v0
    v_xor_b32 v26, v26, v25
    v_lshlrev_b32 v26, 4, v26
    v_lshl_add_u32 v26, v24, 15, v26
    s_lshl_b32 s53, s52, 10
    s_lshl_b32 s54, s50, 20
    s_add_u32 s53, s53, s54
    v_add_u32 v{vX[0]}, s53, v26
    v_xor_b32 v27, 64, v{vX[0]}
    v_add_u32 v{vX[1]}, {262144-1024}, v27
    v_add_u32 v{vX[2]}, {2*(262144-1024)}, v{vX[0]}
    v_add_u32 v{vX[3]}, {3*(262144-1024)}, v27
    v_and_b32 v26, 15, v0
    v_lshlrev_b32 v27, 2, v25
    v_xor_b32 v26, v26, v27
    v_lshlrev_b32 v26, 4, v26
    v_mul_u32_u24 v27, 3584, v25
    v_add_u32 v26, v26, v27
    s_mul_i32 s53, s3, 57344
    s_lshl_b32 s54, s49, 8
    s_add_u32 s53, s53, s54
    v_add_u32 v{vW[0]}, s53, v26
    v_add_u32 v{vW[1]}, 13312, v{vW[0]}
    v_add_u32 v{vW[2]}, {2*13312}, v{vW[0]}
    v_add_u32 v{vW[3]}, {3*13312}, v{vW[0]}
    s_lshl_b32 s55, s3, 12
    s_waitcnt lgkmcnt(0)''')
    srd(g,32,4,2097152); srd(g,36,16,512*1792*2)
    def stage_ops(st):
        slot=st&3
        def mk(i):
            def op():
                if i==0: g(f's_lshl_b32 s57, s56, 7\ns_mul_i32 s58, s56, 229376\ns_add_u32 m0, s55, {slot*32768}')
                if i==4: g(f's_add_u32 m0, s55, {slot*32768+16384}\ns_add_u32 s56, s56, 1\ns_and_b32 s56, s56, 7')
                if i<4: g.vmem(f'buffer_load_dwordx4 v{vX[i]}, s[32:35], s57 offen offset:{1024*i} lds',f's{st}')
                else:   g.vmem(f'buffer_load_dwordx4 v{vW[i-4]}, s[36:39], s58 offen offset:{1024*(i-4)} lds',f's{st}')
            return op
        return [mk(i) for i in range(8)]
    D=g.opt.get('depth',3)
    for st in range(2):
        for op in stage_ops(st): op()
    epoch_load(g)
    g('''s_lshl_b32 s46, s48, 7
    s_lshl_b32 s53, s49, 2
    s_add_u32 s46, s46, s53''')
    g(f'''v_and_b32 v24, 31, v0
    v_lshrrev_b32 v25, 5, v0
    v_bfe_u32 v26, v0, 1, 3
    v_xor_b32 v26, v26, v25
    s_lshl_b32 s53, s51, 13
    v_lshlrev_b32 v27, 7, v24
    v_add_u32 v27, s53, v27''')
    for kk in range(4):
        g(f'''v_xor_b32 v28, {2*kk}, v26
        v_lshl_add_u32 v{vB[kk]}, v28, 4, v27''')
    g(f'''v_bfe_u32 v26, v0, 2, 2
    v_lshl_add_u32 v27, v25, 3, v26
    v_lshlrev_b32 v27, 8, v27
    s_lshl_b32 s53, s50, 1
    s_add_u32 s53, s53, s51
    v_xor_b32 v26, s53, v26
    v_lshl_add_u32 v27, v26, 6, v27
    v_bfe_u32 v26, v0, 4, 1
    v_lshl_add_u32 v27, v26, 5, v27
    v_and_b32 v28, 3, v0
    v_lshl_add_u32 v27, v28, 3, v27
    v_add_u32 v{vA[0]}, 16384, v27
    v_xor_b32 v{vA[1]}, 64, v{vA[0]}
    v_bfe_u32 v27, v0, 2, 1
    v_xor_b32 v26, v26, v27
    v_or_b32 v26, v26, v28
    v_mov_b32 v27, 0x3f803f80
    v_cmp_eq_u32 vcc, 0, v26
    v_cndmask_b32 v{SEL+4}, 0, v27, vcc
    s_lshl_b32 s53, s53, 5
    v_add_u32 v26, s53, v24
    s_lshl_b32 s54, s49, 7
    v_add_lshl_u32 v{vB1[0]}, v26, s54, 1
    v_xor_b32 v{vB1[1]}, 64, v{vB1[0]}
    s_lshl_b32 s53, s49, 2
    s_lshr_b32 s54, s48, 2
    s_add_u32 s53, s53, s54
    s_lshl_b32 s53, s53, 12
    s_add_u32 s53, s53, {CS_REL}
    v_lshl_add_u32 v26, v26, 5, s53
    s_lshl_b32 s54, s100, 3
    v_add_u32 v{vCP}, s54, v26
    v_lshl_add_u32 v{vCA}, v25, 4, v26
    v_xor_b32 v{vCB}, 0x400, v{vCA}
    s_lshl_b32 s53, s63, 11
    s_lshl_b32 s54, s51, 10
    s_add_u32 s53, s53, s54
    v_lshl_add_u32 v{vSA}, v24, 4, s53''')
    srd(g,40,18,1792*2)
    for t in range(2): g.vmem(f'buffer_load_ushort v{vB1[t]}, v{vB1[t]}, s[40:43], 0 offen','b1')
    srd(g,40,28,CS_REL+14*4*4096,add=ST_OFF)
    p2_setup(g,False)
    if D==3:
        for op in stage_ops(2): op()
    def fr(s_):
        b=[32,128][s_]
        return dict(A=[b,b+4],B=[b+8,b+12])
    def reads(n):
        st,kk=n>>2,n&3
        f=fr(n&1); o=(st&1)*32768
        for t in range(2):
            for q in range(2):
                g(f'ds_read_b64_tr_b16 v[{f["A"][t]+2*q}:{f["A"][t]+2*q+1}], v{vA[t]} offset:{o+4096*kk+1024*q}')
        for u in range(2): g(f'ds_read_b128 v[{f["B"][u]}:{f["B"][u]+3}], v{vB[kk]} offset:{o+4096*u}')
    ncs = {1:2,4:2,2:4,0:8}[rot]
    def setsel(st):
        if ncs==2: cond=None
        elif ncs==4: cond=f's_lshr_b32 s53, s100, 1\ns_cmp_eq_u32 s53, {st>>1}'
        else: cond=f's_cmp_eq_u32 s100, {st>>1}'
        if cond is None:
            for i in range(4): g(f'v_mov_b32 v{SEL+i}, v{SEL+4}')
        else:
            g(cond+'\ns_cselect_b32 s53, -1, 0')
            for i in range(4): g(f'v_and_b32 v{SEL+i}, s53, v{SEL+4}')
    def compute(n):
        st,kk=n>>2,n&3
        f=fr(n&1); m=0
        for t in range(2):
            for u in range(2):
                d=ACC+16*(2*t+u)
                c=f'v[{d}:{d+15}]' if n else '0'
                g(f'{MF} v[{d}:{d+15}], v[{f["A"][t]}:{f["A"][t]+3}], v[{f["B"][u]}:{f["B"][u]+3}], {c}')
                if m in (0,2) or (m==3 and st>=4): g.side()
                m+=1
        if st<ncs:
            g(f'v_mfma_f32_16x16x32_bf16 v[{CSA}:{CSA+3}], v[{SEL}:{SEL+3}], v[{f["A"][0]}:{f["A"][0]+3}], '+(f'v[{CSA}:{CSA+3}]' if n else '0'))
    def gather_ops():
        def mk(r,v,off):
            def o(): g.vmem(f'buffer_load_dwordx4 v[{r}:{r+3}], v{v}, s[40:43], 0 offen offset:{off} sc1','ga')
            return o
        return [mk(GA,vSA,0),mk(GA+4,vSA,512),mk(GA+8,vCA,0),mk(GA+12,vCB,0)]
    def publish():
        g(f'v_mov_b32 v{CSA+1}, s47')
        g.vmem(f'buffer_store_dwordx2 v[{CSA}:{CSA+1}], v{vCP}, s[40:43], 0 offen sc1','csp')
    def enter(st):
        g.wait(f's{st}')
        g('s_barrier')
        g.stamp('st')
        if st in (2,4,6):
            for r in vB+vA: g(f'v_xor_b32 v{r}, 0x10000, v{r}')
        reads(4*st)
        if st+D<8: g.sideq+=stage_ops(st+D)
        if st==g.opt.get('pfst',1): g.sideq+=w2pf_ops(g)
        if st==4: g.sideq+=xb2_ops(g)
        if st>=5:
            if st==7: g.sideq+=gather_ops()
            for ks in range(4*(st-5),4*(st-5)+4): g.sideq+=w2_dma_ops(g,ks)
    g('s_waitcnt lgkmcnt(0)')
    nonce(g); setsel(0)
    enter(0); g.stamp()
    for n in range(32):
        st,kk=n>>2,n&3
        if kk<3:
            reads(n+1); g('s_waitcnt lgkmcnt(6)')
        else:
            g.flush_side()
            g('s_waitcnt lgkmcnt(0)')
            if st<7: enter(st+1)
            else: g('s_barrier')
        if kk==1 and st==ncs and ncs<8: publish()
        compute(n)
        if kk==3 and st+1<ncs and (st+1)%2==0: setsel(st+1)
    if ncs==8: publish()
    g.flush_side()
    g.stamp(); g.stamp('st')
    g.wait('ga')
    g(f'''s_mov_b32 s56, {SPIN}
    L_gchk:
    v_xor_b32 v24, s47, v{GA+3}
    v_xor_b32 v25, s47, v{GA+7}
    v_xor_b32 v26, s47, v{GA+9}
    v_xor_b32 v27, s47, v{GA+11}
    v_xor_b32 v28, s47, v{GA+13}
    v_xor_b32 v29, s47, v{GA+15}
    v_or3_b32 v24, v24, v25, v26
    v_or3_b32 v27, v27, v28, v29
    v_or_b32 v24, v24, v27
    v_cmp_ne_u32 vcc, 0, v24
    s_cbranch_vccz L_gok
    s_sleep 2''')
    keep=list(g.vm)
    for op in gather_ops(): op()
    g.vm=keep
    g('''s_waitcnt vmcnt(0)
    s_sub_u32 s56, s56, 1
    s_cbranch_scc0 L_gchk
    L_gok:''')
    a0,a1=GA+8,GA+12
    c0=-2*math.sqrt(2/math.pi)*math.log2(math.e); c1=c0*0.044715
    g(f'''v_add_f32 v{a0}, v{a0}, v{a0+2}
    v_add_f32 v{a1}, v{a1}, v{a1+2}
    v_rcp_f32 v24, v{GA+2}
    v_mov_b32 v{a0+1}, v{a0}
    v_mov_b32 v{a1+1}, v{a1}
    v_rcp_f32 v26, v{GA+6}
    v_cmp_gt_u32 vcc, 32, v0
    v_permlane32_swap_b32 v{a0}, v{a0+1}
    v_permlane32_swap_b32 v{a1}, v{a1+1}
    v_mov_b32 v50, v{GA+2}
    v_mov_b32 v54, v{GA+6}
    v_add_f32 v{a0+2}, v{a0}, v{a0+1}
    v_add_f32 v{a1+2}, v{a1}, v{a1+1}
    v_mov_b32 v{GA+2}, v{GA}
    v_mov_b32 v{GA+6}, v{GA+4}
    v_cvt_pk_bf16_f32 v{a0}, v{a0+2}, v{a0+2}
    v_cvt_pk_bf16_f32 v{a1}, v{a1+2}, v{a1+2}
    v_lshl_or_b32 v{a0+1}, v{vB1[0]}, 16, v{vB1[0]}
    v_lshl_or_b32 v{a1+1}, v{vB1[1]}, 16, v{vB1[1]}
    v_lshlrev_b32 v{a0+3}, 16, v{a0}
    v_lshlrev_b32 v{a1+3}, 16, v{a1}
    v_cndmask_b32 v{a0}, 0, v{a0}, vcc
    v_cndmask_b32 v{a1}, 0, v{a1}, vcc
    v_sub_f32 v{a0+2}, v{a0+2}, v{a0+3}
    v_sub_f32 v{a1+2}, v{a1+2}, v{a1+3}
    v_cndmask_b32 v{a0+1}, 0, v{a0+1}, vcc
    v_cndmask_b32 v{a1+1}, 0, v{a1+1}, vcc
    v_cvt_pk_bf16_f32 v{a0+2}, v{a0+2}, 0
    v_cvt_pk_bf16_f32 v{a1+2}, v{a1+2}, 0
    v_mov_b32 v{a0+3}, 0
    v_mov_b32 v{a1+3}, 0
    v_cndmask_b32 v{a0+2}, 0, v{a0+2}, vcc
    v_cndmask_b32 v{a1+2}, 0, v{a1+2}, vcc
    v_mov_b32 v{GA+3}, 0
    v_mov_b32 v{GA+7}, 0''')
    Aex=[a0,a1]; Bex=[GA,GA+4]
    for t in range(2):
        for u in range(2):
            d=ACC+16*(2*t+u)
            g(f'{MF} v[{d}:{d+15}], v[{Aex[t]}:{Aex[t]+3}], v[{Bex[u]}:{Bex[u]+3}], v[{d}:{d+15}]')
    g(f'''v_mul_f32 v25, v24, v24
    v_mul_f32 v27, v26, v26
    v_mul_f32 v49, {f2u(c0):#x}, v24
    v_mul_f32 v53, {f2u(c0):#x}, v26
    v_mul_f32 v25, v25, v24
    v_mul_f32 v27, v27, v26
    v_mul_f32 v48, {f2u(c1):#x}, v25
    v_mul_f32 v52, {f2u(c1):#x}, v27''')
    srd(g,40,28,7340032)
    g('''s_mul_i32 s53, s52, 112
    s_lshl_b32 s54, s49, 3
    s_add_u32 s53, s53, s54
    s_lshl_b32 s54, s50, 2
    s_add_u32 s53, s53, s54
    s_lshl_b32 s53, s53, 11
    s_lshl_b32 s54, s51, 12
    s_add_u32 s60, s53, s54
    s_xor_b32 s61, s60, 0x400
    s_xor_b32 s62, s60, 0x1000
    s_xor_b32 s63, s60, 0x1400
    v_lshlrev_b32 v56, 4, v0''')
    g.stamp()
    for ks in range(12,16): g.sideq+=w2_dma_ops(g,ks)
    def w2_pair(ks):
        def a():
            g.wait(f'w{ks+1}'); w2_trr(g,ks); w2_trr(g,ks+1)
        d0=w2_dma_ops(g,ks+16); d1=w2_dma_ops(g,ks+17)
        def b():
            g('s_waitcnt lgkmcnt(0)'); d0[0]()
        return [a,b,d0[1],d1[0],d1[1]]
    for ks in range(0,12,2): g.sideq+=w2_pair(ks)
    for t in range(2):
        for u in range(2):
            d=ACC+16*(2*t+u); K=[48,52][u]; RI=[50,54][u]
            for j in range(2):
                P=[d+8*j+2*i for i in range(4)]
                tm=[2+2*i for i in range(4)]
                o=[24,28][j]
                for i in range(4): g(f'v_pk_mul_f32 v[{tm[i]}:{tm[i]+1}], v[{P[i]}:{P[i]+1}], v[{P[i]}:{P[i]+1}]')
                for i in range(4): g(f'v_pk_fma_f32 v[{tm[i]}:{tm[i]+1}], v[{tm[i]}:{tm[i]+1}], v[{K}:{K+1}], v[{K}:{K+1}] op_sel:[0,0,1] op_sel_hi:[1,0,1]')
                g.side()
                for i in range(4): g(f'v_pk_mul_f32 v[{tm[i]}:{tm[i]+1}], v[{tm[i]}:{tm[i]+1}], v[{P[i]}:{P[i]+1}]')
                for i in range(8):
                    g(f'v_exp_f32 v{2+i}, v{2+i}')
                    if i==3: g.side()
                g.side()
                for i in range(4): g(f'v_pk_fma_f32 v[{tm[i]}:{tm[i]+1}], v[{tm[i]}:{tm[i]+1}], v[{RI}:{RI+1}], v[{RI}:{RI+1}] op_sel:[0,0,0] op_sel_hi:[1,0,0]')
                for i in range(8):
                    g(f'v_rcp_f32 v{2+i}, v{2+i}')
                    if i==3: g.side()
                g.side()
                for i in range(4): g(f'v_pk_mul_f32 v[{tm[i]}:{tm[i]+1}], v[{tm[i]}:{tm[i]+1}], v[{P[i]}:{P[i]+1}]')
                for i in range(4): g(f'v_cvt_pk_bf16_f32 v{o+i}, v{tm[i]}, v{tm[i]+1}')
                g.vmem(f'buffer_store_dwordx4 v[{o}:{o+3}], v56, s[40:43], s{60+2*t+u} offen offset:{2048*j} sc1','st')
    g.flush_side()
    g.stamp()
    g.wait('w15')
    for ks in range(12,16): w2_trr(g,ks)
    srd(g,32,28,8192,add=F_OFF)
    g('v_mov_b32 v2, s47\nv_mov_b32 v3, s46')
    g.waitall()
    g('''s_barrier
    s_cmp_lg_u32 s3, 0
    s_cbranch_scc1 L_p2
    s_mov_b64 exec, 1
    buffer_store_dword v2, v3, s[32:35], 0 offen sc1
    s_mov_b64 exec, -1
    s_branch L_p2''')

def p1_dft(g):
    RAW=64
    vBr0=56; vXL=57; vSP=3; vBd=[4,5,6,7]; vWe,vWo=8,9; vFA=[10,11,12,13]; vFB=[14,15,16,17]; vTB=[18,19]
    CC=[192,196]; SS=[200,204]; NS=[208,212]
    RC=[216,218,220,222]
    g('''s_mov_b32 s49, s53
    s_lshr_b32 s51, s3, 1''')
    t1_of(g,'s52','s48','s51','s53')
    g(f'''s_and_b32 s50, s3, 1
    s_lshl_b32 s53, s50, 5
    s_add_u32 s53, s53, s52
    s_lshl_b32 s53, s53, 10
    v_lshrrev_b32 v24, 3, v0
    v_lshrrev_b32 v25, 4, v0
    v_and_b32 v26, 7, v0
    v_lshlrev_b32 v27, 4, v26
    v_lshl_add_u32 v27, v24, 16, v27
    v_add_u32 v{vXL}, s53, v27
    s_waitcnt lgkmcnt(0)''')
    srd(g,32,4,2097152)
    def xops(gi):
        def mk(j):
            def op():
                if j==0: g(f's_mov_b32 s58, {gi*524288}')
                r=RAW+32*gi+4*j
                g.vmem(f'buffer_load_dwordx4 v[{r}:{r+3}], v{vXL}, s[32:35], s58 offen offset:{128*j}',f'x{gi}')
            return op
        return [mk(j) for j in range(8)]
    for gi in range(2):
        for op in xops(gi): op()
    epoch_load(g)
    srd(g,36,10,524288); srd(g,40,12,524288); srd(g,16,28,65536,add=ST_OFF)
    g(f'''s_lshl_b32 s46, s48, 7
    s_lshl_b32 s53, s49, 2
    s_add_u32 s46, s46, s53
    s_add_u32 s46, s46, 56
    v_xor_b32 v26, v26, v25
    v_lshlrev_b32 v26, 4, v26
    v_lshl_add_u32 v27, v24, 11, v26
    s_lshl_b32 s53, s3, 16
    s_lshl_b32 s54, s49, 10
    s_add_u32 s53, s53, s54
    v_add_u32 v{vBd[0]}, s53, v27
    v_xor_b32 v28, 64, v{vBd[0]}
    v_add_u32 v{vBd[1]}, {16384-1024}, v28
    v_add_u32 v{vBd[2]}, {2*(16384-1024)}, v{vBd[0]}
    v_add_u32 v{vBd[3]}, {3*(16384-1024)}, v28
    v_add_u32 v28, 0x40000, v{vBd[0]}
    v_cmp_gt_u32 vcc, 1024, v{vBd[0]}
    v_cndmask_b32 v{vBr0}, v{vBd[0]}, v28, vcc
    v_lshl_add_u32 v27, v24, 7, v26
    s_lshl_b32 s53, s3, 12
    v_add_u32 v{vWe}, s53, v27
    v_xor_b32 v{vWo}, 64, v{vWe}
    s_mul_i32 s55, s3, 24576
    s_add_u32 s55, s55, 65536
    s_lshl_b32 s53, s48, 1
    s_add_u32 s53, s53, s49
    s_lshl_b32 s53, s53, 11
    s_lshl_b32 s54, s51, 10
    s_add_u32 s53, s53, s54
    s_lshl_b32 s54, s50, 4
    s_add_u32 s53, s53, s54
    v_lshl_add_u32 v{vSP}, v24, 5, s53''')
    def bops(st):
        slot=st%3
        def mk(i):
            def op():
                if i==0: g(f's_mov_b32 s57, {128*st}\ns_add_u32 m0, s55, {slot*8192}')
                if i==4: g(f's_add_u32 m0, s55, {slot*8192+4096}')
                if i<4: g.vmem(f'buffer_load_dwordx4 v{vBr0 if i==0 else vBd[i]}, s[36:39], s57 offen offset:{1024*i} lds',f'B{st}')
                else:   g.vmem(f'buffer_load_dwordx4 v{vBd[i-4]}, s[40:43], s57 offen offset:{1024*(i-4)} lds',f'B{st}')
            return op
        return [mk(i) for i in range(8)]
    g(f'''v_and_b32 v24, 31, v0
    v_lshrrev_b32 v25, 5, v0
    v_bfe_u32 v26, v0, 1, 3
    v_xor_b32 v26, v26, v25
    v_lshlrev_b32 v27, 7, v24''')
    for kk in range(4):
        g(f'''v_xor_b32 v28, {2*kk}, v26
        v_lshl_add_u32 v{vFA[kk]}, v28, 4, v27
        v_add_u32 v{vFB[kk]}, s55, v{vFA[kk]}''')
    g(f'''v_cvt_f32_u32 v26, v24
    v_mul_f32 v26, {f2u(1/32):#x}, v26
    v_cvt_f32_u32 v27, v25
    v_mul_f32 v27, 4.0, v27
    v_mul_f32 v27, v27, v26
    v_mul_f32 v28, {f2u(5.0):#x}, v26''')
    for j in range(2):
        for i2 in range(4):
            for e in range(2):
                i=2*i2+e
                if not (j==0 and i==0):
                    g(f'v_add_f32 v27, v27, v{28 if i%4==0 else 26}')
                g(f'v_fract_f32 v29, v27\nv_cos_f32 v{20+e}, v29\nv_sin_f32 v{22+e}, v29')
            g(f'v_cvt_pk_bf16_f32 v{CC[j]+i2}, v20, v21\nv_cvt_pk_bf16_f32 v{SS[j]+i2}, v22, v23\nv_xor_b32 v{NS[j]+i2}, 0x80008000, v{SS[j]+i2}')
    p2_setup(g,True)
    g(f'''s_sub_u32 s53, s55, s69
    v_add_u32 v{vTB[0]}, s53, v{vT[0]}
    v_add_u32 v{vTB[1]}, s53, v{vT[1]}
    s_mov_b32 s59, 0x3f803f80
    s_cmp_eq_u32 s49, 0
    s_cselect_b32 s60, 1.0, -1.0
    s_mov_b32 s61, s60
    s_cselect_b32 s62, -2.0, 0
    s_waitcnt lgkmcnt(0)''')
    nonce(g)
    eps=f'{f2u(1e-5):#x}'
    chainq=[]
    def ch(n=1):
        for _ in range(n):
            if chainq: chainq.pop(0)()
    def stats(gi):
        R=RAW+32*gi; S=[224,228][gi&1]
        g.wait(f'x{gi}')
        if gi==0: g.stamp()
        for i in range(4): g(f'v_mov_b32 v{S+i}, 0')
        for i in range(32):
            g(f'v_dot2c_f32_bf16 v{S+(i&1)}, s59, v{R+i}\nv_dot2c_f32_bf16 v{S+2+(i&1)}, v{R+i}, v{R+i}')
            if i%4==3: g.side()
            if i>=1: ch(2)
        while chainq: ch()
        o=232+4*(gi&1); r1=RC[gi]; a,b,c,d=20,21,22,23
        lines=f'''v_add_f32 v{S}, v{S}, v{S+1}
        v_add_f32 v{S+2}, v{S+2}, v{S+3}
        v_add_f32_dpp v{S}, v{S}, v{S} quad_perm:[1,0,3,2] row_mask:0xf bank_mask:0xf
        v_add_f32_dpp v{S+2}, v{S+2}, v{S+2} quad_perm:[1,0,3,2] row_mask:0xf bank_mask:0xf
        v_add_f32_dpp v{S}, v{S}, v{S} quad_perm:[2,3,0,1] row_mask:0xf bank_mask:0xf
        v_add_f32_dpp v{S+2}, v{S+2}, v{S+2} quad_perm:[2,3,0,1] row_mask:0xf bank_mask:0xf
        v_add_f32_dpp v{S}, v{S}, v{S} row_half_mirror row_mask:0xf bank_mask:0xf
        v_add_f32_dpp v{S+2}, v{S+2}, v{S+2} row_half_mirror row_mask:0xf bank_mask:0xf
        v_mul_f32 v{a}, {f2u(-1/512):#x}, v{S}
        v_mul_f32 v{b}, {f2u(1/512):#x}, v{S+2}
        v_fma_f32 v{b}, -v{a}, v{a}, v{b}
        v_cvt_pk_bf16_f32 v{d}, v{a}, v{a}
        v_max_f32 v{b}, 0, v{b}
        v_lshlrev_b32 v{d}, 16, v{d}
        v_cvt_pk_bf16_f32 v{c}, v{b}, v{b}
        v_sub_f32 v{d}, v{a}, v{d}
        v_lshlrev_b32 v{c}, 16, v{c}
        v_cvt_pk_bf16_f32 v{o}, v{a}, v{d}
        v_add_f32 v{c}, {eps}, v{c}
        v_mul_f32 v{a}, s62, v{a}
        v_cvt_pk_bf16_f32 v{c}, v{c}, v{c}
        v_mov_b32 v{o+3}, s47
        v_lshlrev_b32 v{c}, 16, v{c}
        v_sqrt_f32 v{c}, v{c}
        v_cvt_pk_bf16_f32 v{c}, v{c}, v{c}
        v_lshlrev_b32 v{c}, 16, v{c}
        v_rcp_f32 v{r1}, v{c}
        v_mul_f32 v{b}, v{b}, v{r1}
        v_mul_f32 v{r1+1}, -v{a}, v{r1}
        v_mul_f32 v{b}, v{b}, v{r1}
        v_cvt_pk_bf16_f32 v{b}, v{b}, v{b}
        v_lshlrev_b32 v{b}, 16, v{b}
        v_add_f32 v{b}, {eps}, v{b}
        v_cvt_pk_bf16_f32 v{b}, v{b}, v{b}
        v_lshlrev_b32 v{b}, 16, v{b}
        v_sqrt_f32 v{b}, v{b}
        v_cvt_pk_bf16_f32 v{b}, v{b}, v{b}
        v_lshlrev_b32 v{b}, 16, v{b}
        v_mul_f32 v{o+2}, v{b}, v{c}
        v_cvt_pk_bf16_f32 v{b}, v{o+2}, v{o+2}
        v_lshlrev_b32 v{b}, 16, v{b}
        v_sub_f32 v{b}, v{o+2}, v{b}
        v_cvt_pk_bf16_f32 v{o+1}, v{o+2}, v{b}'''.split('\n')
        for ln in lines: chainq.append(lambda ln=ln: g(ln))
        chainq.append(lambda: g.vmem(f'buffer_store_dwordx4 v[{o}:{o+3}], v{vSP}, s[16:19], 0 offen offset:{256*gi} sc1','sp'))
    def bfly(gi):
        R=RAW+32*gi; r1=RC[gi]
        for j in range(4):
            o=[24,28][j&1]
            for i in range(4):
                a_=R+4*j+i; b_=R+4*(j+4)+i; t=40+4*i
                g(f'v_lshlrev_b32 v{t}, 16, v{a_}\nv_and_b32 v{t+1}, 0xffff0000, v{a_}'); ch()
                g(f'v_lshlrev_b32 v{t+2}, 16, v{b_}\nv_and_b32 v{t+3}, 0xffff0000, v{b_}'); ch()
            g.side()
            for i in range(4):
                t=40+4*i
                g(f'v_pk_fma_f32 v[{t}:{t+1}], v[{t+2}:{t+3}], s[60:61], v[{t}:{t+1}]'); ch()
            for i in range(4):
                t=40+4*i
                g(f'v_pk_fma_f32 v[{t}:{t+1}], v[{t}:{t+1}], v[{r1}:{r1+1}], v[{r1}:{r1+1}] op_sel:[0,0,1] op_sel_hi:[1,0,1]')
            for i in range(4):
                t=40+4*i
                g(f'v_cvt_pk_bf16_f32 v{o+i}, v{t}, v{t+1}')
            g.side()
            g(f'ds_write_b128 v{vWo if gi&1 else vWe}, v[{o}:{o+3}] offset:{16384*j+1024*gi}')
        while chainq: ch()
    g.sideq+=xops(2)+xops(3)+bops(0)+w2pf_ops(g)+bops(1)+bops(2)+xb2_ops(g)
    stats(0); stats(1); bfly(0); stats(2); bfly(1); stats(3); bfly(2); bfly(3)
    g.flush_side()
    g('s_waitcnt lgkmcnt(0)\ns_barrier')
    g.stamp()
    ACC=64
    def fr(s_):
        b=[32,216][s_]
        return dict(A=[b,b+4,b+8,b+12],B=[b+16,b+20])
    def reads(n):
        st,kk=n>>2,n&3; f=fr(n&1)
        if kk==0: g.wait(f'B{st}')
        for ab in range(2): g(f'ds_read_b128 v[{f["B"][ab]}:{f["B"][ab]+3}], v{vFB[kk]} offset:{(st%3)*8192+4096*ab}')
        for ti in range(4): g(f'ds_read_b128 v[{f["A"][ti]}:{f["A"][ti]+3}], v{vFA[kk]} offset:{st*16384+4096*ti}')
    woff=lambda ks: (8192 if (ks>>2)!=1 else 16384)+(ks&3)*2048
    reads(0)
    for n in range(16):
        extra=0
        if n<15: reads(n+1)
        if n==13:
            g.wait('w3')
            for ks in range(4): w2_trr(g,ks,vTB,woff(ks))
            g('s_waitcnt lgkmcnt(15)')
        elif n==14:
            g('s_waitcnt lgkmcnt(6)')
            for ks in range(8,12): g.sideq+=w2_dma_ops(g,ks,'s55',woff(ks))
        elif n<15: g('s_waitcnt lgkmcnt(6)')
        else: g('s_waitcnt lgkmcnt(0)')
        if n==3: g.sideq+=bops(3)
        if n==7:
            for ks in range(4): g.sideq+=w2_dma_ops(g,ks,'s55',woff(ks))
        if n==11:
            for ks in range(4,8): g.sideq+=w2_dma_ops(g,ks,'s55',woff(ks))
        f=fr(n&1)
        for ti in range(4):
            for ab in range(2):
                d=ACC+32*ti+16*ab
                c=f'v[{d}:{d+15}]' if n else '0'
                g(f'{MF} v[{d}:{d+15}], v[{f["A"][ti]}:{f["A"][ti]+3}], v[{f["B"][ab]}:{f["B"][ab]+3}], {c}')
                if ab: g.side()
    g.flush_side()
    g.wait('w11')
    for ks in range(4,12): w2_trr(g,ks,vTB,woff(ks))
    g('s_waitcnt lgkmcnt(0)\ns_barrier')
    g.stamp()
    for ks in range(12,28): g.sideq+=w2_dma_ops(g,ks)
    for ti in range(4):
        Z=[32,216][ti&1]
        for ab in range(2):
            d=ACC+32*ti+16*ab
            for i in range(8): g(f'v_cvt_pk_bf16_f32 v{Z+8*ab+i}, v{d+2*i}, v{d+2*i+1}')
        za=[Z,Z+4]; zb=[Z+8,Z+12]; ur=ACC+32*ti; ui=ur+16
        seq=[(ur,CC[0],za[0],1),(ui,CC[0],zb[0],1),(ur,CC[1],za[1],0),(ui,CC[1],zb[1],0),(ur,SS[0],zb[0],0),(ui,NS[0],za[0],0),(ur,SS[1],zb[1],0),(ui,NS[1],za[1],0)]
        for n,(d,am,bm,first) in enumerate(seq):
            g(f'{MF} v[{d}:{d+15}], v[{am}:{am+3}], v[{bm}:{bm+3}], '+('0' if first else f'v[{d}:{d+15}]'))
            g.side()
    g.flush_side()
    srd(g,40,28,2097152,add=U_OFF)
    g(f'''v_and_b32 v24, 31, v0
    v_lshrrev_b32 v25, 5, v0
    v_lshlrev_b32 v24, 4, v24
    v_lshl_add_u32 v24, v25, 18, v24
    s_lshl_b32 s53, s3, 9
    v_add_u32 v24, s53, v24
    s_lshl_b32 s53, s48, 1
    s_add_u32 s53, s53, s49
    s_lshl_b32 s53, s53, 11''')
    for r in range(16):
        o=32+4*(r&3)
        for ti in range(4): g(f'v_cvt_pk_bf16_f32 v{o+ti}, v{ACC+32*ti+r}, v{ACC+32*ti+16+r}')
        g(f's_add_u32 s54, s53, {(8*(r>>2)+(r&3))*65536}')
        g.vmem(f'buffer_store_dwordx4 v[{o}:{o+3}], v24, s[40:43], s54 offen sc1','st')
    g.stamp()
    g.wait('w27')
    for ks in range(12,16): w2_trr(g,ks)
    srd(g,32,28,8192,add=F_OFF)

def p2(g):
    ACC=64; ACS=128; UF=144
    HR=[2+0]*0+[16+8*i for i in range(5)]+[192+8*i for i in range(6)]
    NH=len(HR)
    g.stamp()
    for ks in range(16,28): w2_trr(g,ks)
    srd(g,36,28,7340032); srd(g,40,28,2097152,add=U_OFF); srd(g,72,24,2097152)
    g(f'''s_sub_u32 s62, 32, s71
    s_and_b32 s62, s62, 31
    s_cmp_lt_u32 s70, 4
    s_cselect_b32 s62, s71, s62
    s_lshl_b32 s62, s62, 16
    v_mov_b32 v184, v{vB2}
    v_mov_b32 v185, 0
    v_mov_b32 v186, 0
    v_mov_b32 v187, 0
    v_mov_b32 v188, 0x3f80
    v_cmp_gt_u32 vcc, 32, v0
    v_cndmask_b32 v188, 0, v188, vcc
    v_mov_b32 v189, 0
    v_mov_b32 v190, 0
    v_mov_b32 v191, 0
    s_mul_i32 s57, s71, 112
    s_mul_i32 s53, s3, 28
    s_add_u32 s57, s57, s53
    s_lshl_b32 s57, s57, 11
    s_add_u32 s59, s57, {28*2048}
    s_lshl_b32 s53, s44, 11
    s_add_u32 s58, s57, s53
    v_mov_b32 v2, s47
    s_mov_b32 s56, {SPIN}
    {MF} v[{ACC}:{ACC+15}], v[184:187], v[188:191], 0''')
    for d in (1,2,3):
        g(f's_add_u32 s53, s69, {d*32768}\nv_lshl_add_u32 v{9+d}, v0, 4, s53')
    g(f'''s_cmp_lg_u32 s3, 1
    s_cbranch_scc1 L_go
    L_poll:
    buffer_load_dword v3, v{vPL}, s[32:35], 0 offen sc1
    s_waitcnt vmcnt(0)
    v_cmp_ne_u32 vcc, s47, v3
    s_cbranch_vccz L_go
    s_sleep {g.opt.get('sleep',3)}
    s_sub_u32 s56, s56, 1
    s_cbranch_scc0 L_poll
    L_go:
    s_barrier''')
    g.vm=['old']
    g.stamp()
    hidx=[0]
    def hload():
        ks=hidx[0]; r=HR[ks%NH]
        g.vmem(f'buffer_load_dwordx4 v[{r}:{r+3}], v{vH0}, s[36:39], s58 offen sc1',f'h{ks}')
        g.vmem(f'buffer_load_dwordx4 v[{r+4}:{r+7}], v{vH1}, s[36:39], s58 offen sc1',f'h{ks}')
        g('s_add_u32 s58, s58, 2048\ns_cmp_eq_u32 s58, s59\ns_cselect_b32 s58, s57, s58')
        hidx[0]+=1
    HD=g.opt.get('hdepth',8)
    for i in range(HD): hload()
    g('s_waitcnt lgkmcnt(0)')
    KF=g.opt.get('kflag',8)
    NL=g.opt.get('nlast',3)
    def mf(ks,a_,b):
        r=HR[ks%NH]; d=ACC+16*(a_+2*b)
        c='0' if (ks==0 and (a_ or b)) else f'v[{d}:{d+15}]'
        g(f'{MF} v[{d}:{d+15}], a[{8*ks+4*a_}:{8*ks+4*a_+3}], v[{r+4*b}:{r+4*b+3}], {c}')
    checked=False
    for ks in range(28-NL):
        g.wait(f'h{ks}')
        if ks==0:
            g.stamp()
            g('s_barrier')
            g.vmem(f'buffer_store_dword v2, v{vSG}, s[32:35], 0 offen sc1','sig')
        for b in range(2):
            for a_ in range(2): mf(ks,a_,b)
            if b==0 and g.sideq: g.side()
        if hidx[0]<28: hload()
        if ks==KF: g.vmem(f'buffer_load_dwordx4 v[176:179], v{vFL}, s[32:35], 0 offen sc1','fl')
        if 'fl' not in g.vm and ks>KF and not checked:
            checked=True
            g(f'''L_chk:
            v_xor_b32 v176, s47, v176
            v_xor_b32 v177, s47, v177
            v_xor_b32 v178, s47, v178
            v_xor_b32 v179, s47, v179
            v_or3_b32 v176, v176, v177, v178
            v_or_b32 v176, v176, v179
            v_cmp_ne_u32 vcc, 0, v176
            s_cbranch_vccz L_allset
            s_sleep 4
            buffer_load_dwordx4 v[176:179], v{vFL}, s[32:35], 0 offen sc1
            s_waitcnt vmcnt(0)
            s_sub_u32 s56, s56, 1
            s_cbranch_scc0 L_chk
            L_allset:''')
            def mku(j):
                def op():
                    g(f's_add_u32 s53, s62, {8192*j}')
                    g.vmem(f'buffer_load_dwordx4 v[{UF+4*j}:{UF+4*j+3}], v{vU}, s[40:43], s53 offen sc1','u')
                return op
            g.sideq+=[mku(j) for j in range(8)]
    assert checked
    g.flush_side()
    XF=176
    def wr(d):
        for q in range(4):
            r=ACC+16*d+4*q
            g(f'ds_write_b128 v{9+d}, v[{r}:{r+3}] offset:{1024*q}')
    for n,d in enumerate((3,2,1,0)):
        for ks in range(28-NL,28):
            g.wait(f'h{ks}')
            mf(ks,d&1,d>>1)
        if n==1:
            for i in range(4): g(f'v_lshlrev_b32 v{XF+2*i}, 16, v{XR+i}\nv_and_b32 v{XF+2*i+1}, 0xffff0000, v{XR+i}')
            wr(3)
        if n==2:
            for i in range(4,8): g(f'v_lshlrev_b32 v{XF+2*i}, 16, v{XR+i}\nv_and_b32 v{XF+2*i+1}, 0xffff0000, v{XR+i}')
            wr(2)
    g.stamp()
    g.waitall()
    for j in range(8):
        g(f'{MF} v[{ACS}:{ACS+15}], v[{UF+4*j}:{UF+4*j+3}], a[{224+4*j}:{227+4*j}], '+('0' if j==0 else f'v[{ACS}:{ACS+15}]'))
        if j==0: wr(1)
    for d in (1,2,3):
        g(f'v_xor_b32 v{9+d}, {d*8192}, v{9+d}')
    g(f's_mov_b32 s60, {f2u(-math.log2(math.e)):#x}\ns_mov_b32 s61, s60\ns_mov_b32 s62, 1.0\ns_mov_b32 s63, 1.0')
    g('s_waitcnt lgkmcnt(0)\ns_barrier')
    for q in range(4):
        for d in range(3):
            r=192+16*d+4*q
            g(f'ds_read_b128 v[{r}:{r+3}], v{10+d} offset:{1024*q}')
    T=80
    for hf in range(2):
        g(f's_waitcnt lgkmcnt({6-6*hf})')
        I=range(4*hf,4*hf+4)
        for i in I: g(f'v_pk_add_f32 v[{192+2*i}:{193+2*i}], v[{192+2*i}:{193+2*i}], v[{208+2*i}:{209+2*i}]')
        for i in I: g(f'v_pk_add_f32 v[{ACC+2*i}:{ACC+2*i+1}], v[{ACC+2*i}:{ACC+2*i+1}], v[{224+2*i}:{225+2*i}]')
        for i in I: g(f'v_pk_add_f32 v[{ACC+2*i}:{ACC+2*i+1}], v[{ACC+2*i}:{ACC+2*i+1}], v[{192+2*i}:{193+2*i}]')
        for i in I: g(f'v_pk_mul_f32 v[{T+2*i}:{T+2*i+1}], v[{ACC+2*i}:{ACC+2*i+1}], s[60:61]')
        for i in I: g(f'v_exp_f32 v{T+2*i}, v{T+2*i}\nv_exp_f32 v{T+2*i+1}, v{T+2*i+1}')
        for i in I: g(f'v_pk_add_f32 v[{T+2*i}:{T+2*i+1}], v[{T+2*i}:{T+2*i+1}], s[62:63]')
        for i in I: g(f'v_rcp_f32 v{T+2*i}, v{T+2*i}\nv_rcp_f32 v{T+2*i+1}, v{T+2*i+1}')
        for i in I: g(f'v_pk_mul_f32 v[{ACS+2*i}:{ACS+2*i+1}], v[{ACS+2*i}:{ACS+2*i+1}], v[{ACC+2*i}:{ACC+2*i+1}]')
        for i in I: g(f'v_pk_fma_f32 v[{T+2*i}:{T+2*i+1}], v[{T+2*i}:{T+2*i+1}], v[{ACS+2*i}:{ACS+2*i+1}], v[{XF+2*i}:{XF+2*i+1}]')
        for i in I: g(f'v_cvt_pk_bf16_f32 v{96+i}, v{T+2*i}, v{T+2*i+1}')
        for q in (2*hf,2*hf+1): g(f'buffer_store_dwordx2 v[{96+2*q}:{97+2*q}], v{vXO}, s[72:75], 0 offen offset:{16*q}')
    g('''s_add_u32 s53, s2, s3
    s_cmp_lg_u32 s53, 0
    s_cbranch_scc1 L_noep
    v_mov_b32 v3, 4096
    s_mov_b64 exec, 1
    buffer_store_dword v2, v3, s[32:35], 0 offen sc1
    s_mov_b64 exec, -1
    L_noep:''')
    g.stamp()

def build(stamps=False, opt=None):
    g=G(stamps,opt)
    entry(g)
    vm0=list(g.vm); n0=g.nst
    p1_mlp(g)
    n1=g.nst
    g('L_dft:')
    g.vm=list(vm0); g.nst=n0
    p1_dft(g)
    g.nst=max(g.nst,n1)
    g('L_p2:')
    p2(g); g.dump_stamps(TS_OFF)
    g('L_end:\ns_endpgm\nL_codeend:')
    body='\n'.join(hazard.fix(g.a.l))+'\n'
    return wrap([dict(name=KN,body=body,grid=256,block=256,lds=163840,vgpr=512,accum=256)],HDR)
if __name__=='__main__':
    out=sys.argv[1]; st='stamps' in sys.argv[2:]
    opt={}
    for a in sys.argv[2:]:
        if '=' in a:
            k,v=a.split('='); opt[k]=int(v) if v.lstrip('-').isdigit() else v
    open(out,'w').write(build(st,opt))
```

```python
import sys, math, struct, re
sys.path.insert(0,'tools')
from asmlib import A, wrap, KN
import hazard
from gen3 import G, srd, t1_of, f2u, HDR, U_OFF, ST_OFF, CS_REL, TS_OFF, SPIN

F_OFF = 12<<20
F2 = 8192
WT_OFF = 14<<20
vB2, vXO = 254, 255
vD=[226+i for i in range(0)]
vDM=[246,247,248,249]
vT=[250,251,252,253]
XR=238
vSG,vH0,vH1,vU,vFL,vPL = 58,59,60,61,62,63
MF='v_mfma_f32_32x32x16_bf16'
OOB='0x40000000'

class Rec:
    def __init__(s): s.l=[]
    def __call__(s,t):
        for x in t.split('\n'):
            x=x.strip()
            if x: s.l.append(x)
def misc(g, n):
    while n>0 and g.miscq:
        x=g.miscq.pop(0); g(x)
        n-= x.count('\n')+1 + (1 if ('v_cos' in x or 'v_sin' in x) else 0)
def epoch_load(g):
    g(f's_add_u32 s60, s28, {F_OFF+4096}\ns_addc_u32 s61, s29, 0\ns_load_dword s47, s[60:61], 0')
def nonce(g):
    g('s_mul_i32 s47, s47, 0x9e3779b1\ns_add_u32 s47, s47, 0x85ebca6b')

def p2_setup_ops(g, dft):
    r=Rec(); t=lambda i:f'v{1000+i}'
    if g.opt.get('p2arr',84)==48:
        r('''s_and_b32 s70, s31, 7
        s_lshr_b32 s0, s31, 4
        s_lshl_b32 s1, s30, 1
        s_add_u32 s45, s0, s1
        s_bfe_u32 s1, s31, 0x10003''')
    else:
        r('''s_and_b32 s70, s30, 1
        s_lshl_b32 s70, s70, 2
        s_lshr_b32 s0, s31, 2
        s_add_u32 s0, s0, s31
        s_and_b32 s0, s0, 3
        s_add_u32 s70, s70, s0
        s_lshr_b32 s45, s30, 1
        s_lshl_b32 s45, s45, 2
        s_lshr_b32 s0, s31, 3
        s_add_u32 s45, s45, s0
        s_bfe_u32 s1, s31, 0x10002''')
    r.l.append('s_sub_u32 s0, 32, s45\ns_cmp_eq_u32 s45, 0\ns_cselect_b32 s0, 16, s0\ns_cmp_eq_u32 s1, 0\ns_cselect_b32 s71, s45, s0')
    wr=g.opt.get('wrot',3)
    if wr==0: r('s_mov_b32 s44, 0')
    elif wr==1: r('s_mul_i32 s44, s30, 7\ns_lshr_b32 s44, s44, 2')
    elif wr==3: r('s_lshr_b32 s44, s31, 2\ns_mul_i32 s44, s44, 7\ns_lshr_b32 s44, s44, 2')
    elif wr==4: r('s_lshr_b32 s44, s31, 3\ns_mul_i32 s44, s44, 7\ns_lshr_b32 s44, s44, 1')
    elif wr==2: r('s_lshr_b32 s44, s30, 1\ns_mul_i32 s44, s44, 7\ns_lshr_b32 s44, s44, 1')
    r(f'''s_lshl_b32 s68, s44, 15
    s_lshl_b32 s69, s3, 13
    v_lshrrev_b32 {t(4)}, 3, v0
    v_bfe_u32 {t(5)}, v0, 4, 1
    v_lshlrev_b32 {t(6)}, 2, {t(5)}
    v_and_b32 {t(7)}, 7, v0
    v_xor_b32 {t(6)}, {t(6)}, {t(7)}
    v_lshlrev_b32 {t(6)}, 4, {t(6)}
    v_lshl_add_u32 {t(6)}, {t(4)}, 10, {t(6)}
    s_mul_i32 s0, s3, {448*1024}
    s_lshl_b32 s1, s70, 7
    s_add_u32 s0, s0, s1
    v_add_u32 v{vDM[0]}, s0, {t(6)}
    v_add_u32 v{vDM[1]}, {7168}, v{vDM[0]}
    v_add_u32 v{vDM[2]}, {2*7168}, v{vDM[0]}
    v_add_u32 v{vDM[3]}, {3*7168}, v{vDM[0]}''')
    srd(r,64,20,1792*512*2)
    early=r.l; r=Rec()
    srd(r,72,22,1024); srd(r,76,4,2097152)
    r(f'''v_lshrrev_b32 {t(4)}, 5, v0
    v_bfe_u32 {t(5)}, v0, 4, 1
    v_bfe_u32 {t(6)}, v0, 2, 2
    v_lshl_add_u32 {t(7)}, {t(4)}, 2, {t(6)}
    v_lshlrev_b32 {t(7)}, 7, {t(7)}
    v_lshrrev_b32 {t(6)}, 1, {t(6)}
    s_and_b32 s0, s3, 1
    v_xor_b32 {t(6)}, s0, {t(6)}
    v_lshl_add_u32 {t(7)}, {t(6)}, 6, {t(7)}
    v_lshl_add_u32 {t(7)}, {t(5)}, 5, {t(7)}
    v_and_b32 {t(6)}, 3, v0
    v_lshl_add_u32 {t(7)}, {t(6)}, 3, {t(7)}
    v_add_u32 v{vT[0]}, s69, {t(7)}
    v_xor_b32 v{vT[1]}, 64, v{vT[0]}
    v_add_u32 v{vT[2]}, 0x18000, v{vT[0]}
    v_add_u32 v{vT[3]}, 0x18000, v{vT[1]}
    v_lshlrev_b32 {t(6)}, 4, {t(6)}
    v_lshrrev_b32 {t(7)}, 2, v0
    v_lshl_add_u32 v{vFL}, {t(7)}, 7, {t(6)}
    s_lshl_b32 s0, s45, 7
    v_min_u32 {t(6)}, 13, v0
    v_lshl_add_u32 v{vPL}, {t(6)}, 2, s0
    s_lshr_b32 s1, s3, 1
    s_lshl_b32 s0, s1, 10
    v_lshl_add_u32 v{vH0}, v0, 4, s0
    v_xor_b32 v{vH1}, 0x400, v{vH0}
    s_lshl_b32 s0, s1, 5
    v_and_b32 {t(6)}, 31, v0
    v_add_u32 {t(5)}, s0, {t(6)}
    v_lshlrev_b32 {t(5)}, 5, {t(5)}
    v_add_u32 {t(5)}, s71, {t(5)}
    v_lshlrev_b32 {t(7)}, 10, {t(5)}
    v_lshl_add_u32 {t(7)}, {t(4)}, 3, {t(7)}
    s_lshl_b32 s0, s70, 7
    s_and_b32 s1, s3, 1
    s_lshl_b32 s1, s1, 6
    s_add_u32 s0, s0, s1
    v_add_u32 v{vXO}, s0, {t(7)}
    v_lshl_add_u32 v{vB2}, {t(6)}, 1, s0
    v_lshrrev_b32 {t(6)}, 1, v{vB2}''')
    r.l.append('s_cmp_lt_u32 s70, 4\ns_cselect_b32 s0, 0, -1\ns_cselect_b32 s1, 0, 513')
    r(f'''v_xor_b32 {t(7)}, s0, {t(6)}
    v_add_u32 {t(7)}, s1, {t(7)}
    v_and_b32 {t(8)}, 1, {t(7)}
    v_lshlrev_b32 {t(8)}, 11, {t(8)}
    v_bfe_u32 {t(7)}, {t(7)}, 1, 7
    v_lshl_add_u32 {t(7)}, {t(7)}, 4, {t(8)}
    v_lshl_add_u32 {t(7)}, {t(4)}, 12, {t(7)}
    v_mov_b32 {t(8)}, {OOB}
    v_cmp_eq_u32 vcc, 0, {t(6)}
    s_and_b32 s0, s0, 0x80000000
    s_or_b32 s0, s0, {f2u(1/2048):#x}
    v_cndmask_b32 v{vU}, {t(7)}, {t(8)}, vcc
    v_cvt_f32_u32 {t(5)}, {t(5)}
    v_mul_f32 {t(5)}, s0, {t(5)}
    v_cvt_f32_u32 {t(6)}, {t(4)}
    v_mul_f32 {t(6)}, {t(6)}, {t(5)}
    v_mul_f32 {t(7)}, {f2u(32.0):#x}, {t(5)}
    v_cmp_gt_u32 vcc, 32, v0
    v_add_f32 {t(5)}, {t(5)}, {t(5)}
    v_mul_f32 {t(9)}, 0.5, {t(7)}
    v_cndmask_b32 {t(9)}, {t(7)}, {t(9)}, vcc''')
    if True:
        r.l.append(f's_cmp_eq_u32 s3, 0\ns_cselect_b32 s0, s46, {OOB}')
        r(f'''v_cmp_eq_u32 vcc, 0, v0
        v_mov_b32 {t(10)}, s0
        s_nop 0
        v_cndmask_b32 v{vSG}, {t(8)}, {t(10)}, vcc''')
    else: r(f'v_mov_b32 v{vSG}, {t(8)}')
    addr=r.l; r=Rec()
    for j in range(8):
        if j: r(f'v_add_f32 {t(6)}, {t(6)}, {t(5)}')
        r(f'''v_add_f32 {t(1)}, {t(6)}, {t(7)}
        v_sub_f32 {t(2)}, {t(9) if j==0 else t(7)}, {t(6)}
        v_fract_f32 {t(0)}, {t(6)}
        v_add_f32 {t(3)}, {t(2)}, {t(7)}
        v_fract_f32 {t(1)}, {t(1)}
        v_fract_f32 {t(2)}, {t(2)}
        v_fract_f32 {t(3)}, {t(3)}''')
        for i in range(4): r(f'v_cos_f32 {t(12+2*i)}, {t(i)}\nv_sin_f32 {t(13+2*i)}, {t(i)}')
        for i in range(4): r(f'v_cvt_pk_bf16_f32 {t(20+i)}, {t(12+2*i)}, {t(13+2*i)}')
        for i in range(4): r(f'v_accvgpr_write_b32 a{224+4*j+i}, {t(20+i)}')
    return early, addr, r.l
def remap(L, TM):
    return [re.sub(r'v(10\d\d)\b', lambda m:'v%d'%TM[int(m.group(1))-1000], x) for x in L]
def xb2_ops(g):
    def o0(): g.vmem(f'buffer_load_ushort v{vB2}, v{vB2}, s[72:75], 0 offen','b2')
    def mk(q):
        def o(): g.vmem(f'buffer_load_dwordx2 v[{XR+2*q}:{XR+2*q+1}], v{vXO}, s[76:79], 0 offen offset:{16*q}','xr')
        return o
    return [o0]+[mk(q) for q in range(4)]
def ppos(pr):
    p=pr%10
    return 131072+p*4096 if p<2 else ((p-2)>>1)*32768+(p&1)*4096
def w2_pair_ops(g, pr, base='s69', lds=None):
    if lds is None: lds=ppos(pr)
    def mk(i):
        def op():
            if i==0: g(f's_add_u32 m0, {base}, {lds}')
            g.vmem(f'buffer_load_dwordx4 v{vDM[i]}, s[64:67], s68 offen offset:{1024*i} lds', f'w{pr}')
            if i==3 and pr<13: g(f's_add_u32 s68, s68, 32768\ns_cmp_eq_u32 s68, {14*32768}\ns_cselect_b32 s68, 0, s68')
        return op
    return [mk(i) for i in range(4)]
def w2_trl(pr, regs=None, off=None):
    if regs is None:
        off=ppos(pr)
        if off>=65536 and off<0x18000: regs=('hi',);
        if off<65536: regs=vT[0:2]
        elif off>=0x18000: regs=vT[2:4]; off-=0x18000
        else: regs=[vTm0,vTm1]; off-=65536
    L=[]
    for k in range(2):
        for a_ in range(2):
            for q in range(2):
                r=8*(2*pr+k)+4*a_+2*q
                L.append(f'ds_read_b64_tr_b16 a[{r}:{r+1}], v{regs[a_]} offset:{off+2048*k+1024*q}')
    return L
vTm0,vTm1=14,15

def entry(g):
    g('''s_cmp_ge_u32 s2, 256
    s_cbranch_scc1 L_end''')
    g.stamp()
    g('''s_load_dwordx16 s[4:19], s[0:1], 0
    s_load_dwordx8 s[20:27], s[0:1], 64
    s_load_dwordx2 s[28:29], s[0:1], 96
    v_lshrrev_b32 v1, 6, v0
    s_and_b32 s30, s2, 7
    s_lshr_b32 s31, s2, 3
    v_readfirstlane_b32 s3, v1''')
    if g.opt.get('codepf',1):
        g(f'''s_getpc_b64 s[50:51]
        L_pc:
        s_lshl_b32 s53, s31, 10
        v_lshl_add_u32 v2, v0, 2, s53
        v_min_u32 v2, L_codeend-L_pc-4, v2''')
        g.vmem('global_load_dword v1, v2, s[50:51]','pf')
    rot=g.opt.get('rot',1)
    g('''v_and_b32 v0, 63, v0
    s_lshr_b32 s48, s30, 1
    s_lshl_b32 s55, s48, 1
    s_lshl_b32 s48, s48, 2
    s_and_b32 s100, s31, 3
    s_add_u32 s48, s48, s100
    s_lshr_b32 s49, s31, 2
    s_sub_u32 s49, s49, 1
    s_and_b32 s49, s49, 7''') if g.opt.get('dftfirst',1) else g('''v_and_b32 v0, 63, v0
    s_lshr_b32 s48, s30, 1
    s_lshl_b32 s55, s48, 1
    s_lshl_b32 s48, s48, 2
    s_lshr_b32 s100, s31, 3
    s_add_u32 s48, s48, s100
    s_and_b32 s49, s31, 7''')
    if rot==1:   g('s_lshl_b32 s56, s100, 1\ns_add_u32 s56, s56, s49\ns_and_b32 s56, s56, 7')
    elif rot==2: g('s_add_u32 s56, s100, s49\ns_and_b32 s56, s56, 1\ns_lshl_b32 s56, s56, 2')
    elif rot==4: g('s_add_u32 s56, s100, s49\ns_and_b32 s56, s56, 3\ns_lshl_b32 s56, s56, 1')
    elif rot==0: g('s_mov_b32 s56, 0')
    if g.opt.get('xph',0): g('s_add_u32 s56, s56, s55\ns_and_b32 s56, s56, 7')
    g('''s_and_b32 s53, s30, 1
    s_cmp_eq_u32 s49, 7
    s_cbranch_scc1 L_dft''')

def p1_mlp(g):
    ACC=64
    vX=[2,3,4,5]; vW=[6,7,8,9]; vB=[10,11,12,13]; vA=[18,19]
    vSA,vCA,vCP,vCB=14,15,16,17
    vB1=[56,57]; CSA=164; SEL=168; GA=144; GF=160
    WP=200; vP0,vP1,vPT,vPS,vPF=208,209,210,211,212
    rot=g.opt.get('rot',1)
    g('''s_mul_i32 s54, s53, 7
    s_add_u32 s49, s49, s54
    s_and_b32 s50, s3, 1
    s_lshr_b32 s51, s3, 1''')
    g('s_lshl_b32 s63, s48, 1\ns_add_u32 s63, s63, s53')
    t1_of(g,'s52','s48','s51','s53')
    g(f'''v_lshrrev_b32 v24, 3, v0
    v_lshrrev_b32 v25, 4, v0
    v_and_b32 v28, 7, v0
    v_xor_b32 v26, v28, v25
    v_lshlrev_b32 v26, 4, v26
    v_lshl_add_u32 v26, v24, 15, v26
    s_lshl_b32 s53, s52, 10
    s_lshl_b32 s54, s50, 20
    s_add_u32 s53, s53, s54
    v_add_u32 v{vX[0]}, s53, v26
    v_xor_b32 v27, 64, v{vX[0]}
    v_add_u32 v{vX[1]}, {262144-1024}, v27
    v_add_u32 v{vX[2]}, {2*(262144-1024)}, v{vX[0]}
    v_add_u32 v{vX[3]}, {3*(262144-1024)}, v27
    v_and_b32 v26, 15, v0
    v_lshlrev_b32 v27, 2, v25
    v_xor_b32 v26, v26, v27
    v_lshlrev_b32 v26, 4, v26
    v_mul_u32_u24 v29, 3584, v25
    v_add_u32 v26, v26, v29
    s_mul_i32 s53, s3, 57344
    s_lshl_b32 s54, s49, 8
    s_add_u32 s53, s53, s54
    v_add_u32 v{vW[0]}, s53, v26
    v_add_u32 v{vW[1]}, 13312, v{vW[0]}
    v_add_u32 v{vW[2]}, {2*13312}, v{vW[0]}
    v_add_u32 v{vW[3]}, {3*13312}, v{vW[0]}
    s_lshl_b32 s55, s3, 12
    s_waitcnt lgkmcnt(0)''')
    srd(g,32,4,2097152); srd(g,36,16,512*1792*2)
    def stage_ops(st):
        slot=st&3
        def mk(i):
            def op():
                if i==0: g(f's_lshl_b32 s57, s56, 7\ns_mul_i32 s58, s56, 229376\ns_add_u32 m0, s55, {slot*32768}')
                if i==4: g(f's_add_u32 m0, s55, {slot*32768+16384}\ns_add_u32 s56, s56, 1\ns_and_b32 s56, s56, 7')
                if i<4: g.vmem(f'buffer_load_dwordx4 v{vX[i]}, s[32:35], s57 offen offset:{1024*i} lds',f's{st}')
                else:   g.vmem(f'buffer_load_dwordx4 v{vW[i-4]}, s[36:39], s58 offen offset:{1024*(i-4)} lds',f's{st}')
            return op
        return [mk(i) for i in range(8)]
    D=g.opt.get('depth',3)
    for op in stage_ops(0)+stage_ops(1): op()
    epoch_load(g)
    g(f'''s_lshl_b32 s46, s48, 7
    s_lshl_b32 s53, s49, 2
    s_add_u32 s46, s46, s53
    v_and_b32 v24, 31, v0
    v_lshrrev_b32 v25, 5, v0
    v_bfe_u32 v26, v0, 1, 3
    v_xor_b32 v26, v26, v25
    s_lshl_b32 s53, s51, 13
    v_lshlrev_b32 v27, 7, v24
    v_add_u32 v27, s53, v27''')
    for kk in range(4):
        g(f'''v_xor_b32 v28, {2*kk}, v26
        v_lshl_add_u32 v{vB[kk]}, v28, 4, v27''')
    g(f'''v_bfe_u32 v26, v0, 2, 2
    v_lshl_add_u32 v27, v25, 3, v26
    v_lshlrev_b32 v27, 8, v27
    s_lshl_b32 s53, s50, 1
    s_add_u32 s53, s53, s51
    v_xor_b32 v26, s53, v26
    v_lshl_add_u32 v27, v26, 6, v27
    v_bfe_u32 v26, v0, 4, 1
    v_and_b32 v28, 3, v0
    v_lshlrev_b32 v30, 3, v28
    v_lshl_add_u32 v30, v26, 5, v30
    s_movk_i32 s59, 0x4000
    v_add3_u32 v{vA[0]}, v27, v30, s59
    v_xor_b32 v{vA[1]}, 64, v{vA[0]}
    v_bfe_u32 v27, v0, 2, 1
    v_xor_b32 v26, v26, v27
    v_or_b32 v26, v26, v28
    v_mov_b32 v27, 0x3f803f80
    v_cmp_eq_u32 vcc, 0, v26
    s_lshl_b32 s53, s53, 5
    v_add_u32 v26, s53, v24
    v_cndmask_b32 v{SEL+4}, 0, v27, vcc
    s_lshl_b32 s54, s49, 7
    v_add_lshl_u32 v{vB1[0]}, v26, s54, 1
    v_xor_b32 v{vB1[1]}, 64, v{vB1[0]}''')
    srd(g,40,18,1792*2)
    for t in range(2): g.vmem(f'buffer_load_ushort v{vB1[t]}, v{vB1[t]}, s[40:43], 0 offen','b1')
    g(f'''s_lshl_b32 s53, s49, 2
    s_lshr_b32 s54, s48, 2
    s_add_u32 s53, s53, s54
    s_lshl_b32 s53, s53, 12
    s_add_u32 s53, s53, {CS_REL+(ST_OFF-F_OFF)}
    v_lshl_add_u32 v26, v26, 5, s53
    s_lshl_b32 s54, s100, 3
    v_add_u32 v{vCP}, s54, v26
    v_lshl_add_u32 v{vCA}, v25, 4, v26
    v_xor_b32 v{vCB}, 0x400, v{vCA}
    s_lshl_b32 s53, s63, 11
    s_lshl_b32 s54, s51, 10
    s_add_u32 s53, s53, s54
    s_add_u32 s53, s53, {ST_OFF-F_OFF}
    v_lshl_add_u32 v{vSA}, v24, 4, s53
''')
    srd(g,40,28,4<<20,add=F_OFF)
    if D==3:
        for op in stage_ops(2): op()
    g('s_waitcnt lgkmcnt(0)')
    early,addr,trig=p2_setup_ops(g,False)
    TM={i:176+i for i in range(24)}
    early,addr,trig=[remap(x,TM) for x in (early,addr,trig)]
    vBh=[200,201,202,203]; vAh=[204,205]
    g.miscq=[f'v_add_u32 v{h}, 0x10000, v{l}' for h,l in zip(vBh+vAh,vB+vA)]+early+addr+trig
    def fr(s_):
        b=[32,128][s_]
        return dict(A=[b,b+4],B=[b+8,b+12])
    def rd(n):
        st,kk=n>>2,n&3
        f=fr(n&1); o=(st&1)*32768; hi=(st>>1)&1
        tr=lambda t,q: f'ds_read_b64_tr_b16 v[{f["A"][t]+2*q}:{f["A"][t]+2*q+1}], v{[vA,vAh][hi][t]} offset:{o+4096*kk+1024*q}'
        bb=lambda u: f'ds_read_b128 v[{f["B"][u]}:{f["B"][u]+3}], v{[vB,vBh][hi][kk]} offset:{o+4096*u}'
        return [tr(0,0),tr(0,1),bb(0),bb(1),tr(1,0),tr(1,1)]
    ncs = {1:2,4:2,2:4,0:8}[rot]
    def setsel(st):
        if ncs==2: cond=None
        elif ncs==4: cond=f's_lshr_b32 s53, s100, 1\ns_cmp_eq_u32 s53, {st>>1}'
        else: cond=f's_cmp_eq_u32 s100, {st>>1}'
        if cond is None:
            for i in range(4): g(f'v_mov_b32 v{SEL+i}, v{SEL+4}')
        else:
            g(cond+'\ns_cselect_b32 s53, -1, 0')
            for i in range(4): g(f'v_and_b32 v{SEL+i}, s53, v{SEL+4}')
    def gather_ops():
        def mk(r,v,off):
            def o(): g.vmem(f'buffer_load_dwordx4 v[{r}:{r+3}], v{v}, s[40:43], 0 offen offset:{off} sc1','ga')
            return o
        return [mk(GA,vSA,0),mk(GA+4,vSA,512),mk(GA+8,vCA,0),mk(GA+12,vCB,0)]
    def publish():
        g(f'v_mov_b32 v{CSA+1}, s47')
        g.vmem(f'buffer_store_dwordx2 v[{CSA}:{CSA+1}], v{vCP}, s[40:43], 0 offen sc1','csp')
    WPS=g.opt.get('wpstage',1)
    WSCHED={'a':{2:[0],3:[1],5:[2,3],6:[4],7:[5,6]},'b':{3:[0],4:[1],5:[2],6:[3,4],7:[5]},'c':{5:[0,1],6:[2],7:[3,4]},'d':{1:[0],2:[1],5:[2,3],6:[4,5],7:[6]},'e':{5:[0,1],6:[2,3],7:[4,5]},'f':{4:[0],5:[1],6:[2,3],7:[4,5]},'g':{5:[0],6:[1],7:[2,3]},'h':{4:[0,1],7:[2,3,4]},'i':{4:[0,1],7:[2,3]},'j':{4:[0,1]},'k':{3:[0,1],6:[2,3],7:[4,5]},'l':{4:[0,1],6:[2],7:[3,4]},'m':{1:[(0,0)],2:[(0,1)],3:[(1,0)],4:[(1,1)],5:[2,3],6:[4,5],7:[6]},'n':{1:[(0,0)],2:[(0,1)],3:[(1,0)],4:[(1,1)],6:[2,3],7:[4,5]},'o':{1:[0],2:[1],5:[2,3],6:[4,5],7:[6,7]},'p':{5:[0,1],7:[2]},'q':{5:[0,1]},'r':{5:[0,1],6:[2]}}[g.opt.get('wsched','e')]
    half={}
    MX=g.opt.get('mx',5)
    nw=len(set((p[0] if isinstance(p,tuple) else p) for x in WSCHED.values() for p in x))
    def enter(st):
        g.flush_side()
        g.wait(f's{st}')
        g('s_barrier')
        g.stamp('st')
        if st+D<8: g.sideq+=stage_ops(st+D)
        if st==max(ncs,g.opt.get('pubst',2)) and ncs<8: g.sideq.append(publish)
        if st in WSCHED:
            while len(g.miscq)>len(trig)+len(addr): misc(g,1)
        if st==g.opt.get('gast',7): g.sideq+=gather_ops()
        for pr in WSCHED.get(st,[]):
            if isinstance(pr,tuple):
                if pr[1]==0: half[pr[0]]=w2_pair_ops(g,pr[0])
                ops=half[pr[0]][2*pr[1]:2*pr[1]+2]
                if pr[1]==1: ops=[lambda p=pr[0],o=ops[0]:(g(f's_add_u32 m0, s69, {ppos(p)}'),o())]+ops[1:]
                g.sideq+=ops
            else: g.sideq+=w2_pair_ops(g,pr)
    nonce(g); setsel(0)
    enter(0); g.stamp()
    for x in rd(0): g(x)
    for n in range(32):
        st,kk=n>>2,n&3
        f=fr(n&1)
        def mf(t,u):
            d=ACC+16*(2*t+u)
            g(f'{MF} v[{d}:{d+15}], v[{f["A"][t]}:{f["A"][t]+3}], v[{f["B"][u]}:{f["B"][u]+3}], '+(f'v[{d}:{d+15}]' if n else '0'))
        nx = rd(n+1) if n<31 else []
        if kk==3:
            g('s_waitcnt lgkmcnt(0)'); mf(0,0)
            if st<7: enter(st+1)
            else: g.flush_side(); g('s_barrier')
            for x in nx[:3]: g(x)
            mf(0,1)
            for x in nx[3:]: g(x)
            mf(1,0)
        else:
            g('s_waitcnt lgkmcnt(3)'); mf(0,0)
            for x in nx[:3]: g(x)
            g('s_waitcnt lgkmcnt(5)'); mf(0,1)
            for x in nx[3:]: g(x)
            g('s_waitcnt lgkmcnt(6)'); mf(1,0)
        had=bool(g.sideq); g.side(); misc(g, 2 if had else MX)
        if st<ncs:
            g(f'v_mfma_f32_16x16x32_bf16 v[{CSA}:{CSA+3}], v[{SEL}:{SEL+3}], v[{f["A"][0]}:{f["A"][0]+3}], '+(f'v[{CSA}:{CSA+3}]' if n else '0'))
        mf(1,1)
        had=bool(g.sideq); g.side(2 if len(g.sideq)>2*(3-kk)+1 else 1); misc(g,2 if had else MX)
        if kk==3 and st+1<ncs and (st+1)%2==0: setsel(st+1)
    if ncs==8: publish()
    g.flush_side()
    g.stamp(); g.stamp('st'); g.stamp('tail')
    g.wait('ga')
    g(f'''s_mov_b32 s56, {SPIN}
    L_gchk:
    v_xor_b32 v24, s47, v{GA+3}
    v_xor_b32 v25, s47, v{GA+7}
    v_xor_b32 v26, s47, v{GA+9}
    v_xor_b32 v27, s47, v{GA+11}
    v_xor_b32 v28, s47, v{GA+13}
    v_xor_b32 v29, s47, v{GA+15}
    v_or3_b32 v24, v24, v25, v26
    v_or3_b32 v27, v27, v28, v29
    v_or_b32 v24, v24, v27
    v_cmp_ne_u32 vcc, 0, v24
    s_cbranch_vccz L_gok
    s_sleep 8''')
    keep=list(g.vm)
    for op in gather_ops(): op()
    g.vm=keep
    g('''s_waitcnt vmcnt(0)
    s_sub_u32 s56, s56, 1
    s_cbranch_scc0 L_gchk
    L_gok:''')
    for pr in range(nw,10): g.sideq+=w2_pair_ops(g,pr)
    a0,a1=GA+8,GA+12
    c0=-2*math.sqrt(2/math.pi)*math.log2(math.e); c1=c0*0.044715
    g(f'''v_add_f32 v{a0}, v{a0}, v{a0+2}
    v_add_f32 v{a1}, v{a1}, v{a1+2}
    v_rcp_f32 v24, v{GA+2}
    v_mov_b32 v{a0+1}, v{a0}
    v_mov_b32 v{a1+1}, v{a1}
    v_rcp_f32 v26, v{GA+6}
    v_cmp_gt_u32 vcc, 32, v0
    v_permlane32_swap_b32 v{a0}, v{a0+1}
    v_permlane32_swap_b32 v{a1}, v{a1+1}
    v_mov_b32 v50, v{GA+2}
    v_mov_b32 v54, v{GA+6}
    v_add_f32 v{a0+2}, v{a0}, v{a0+1}
    v_add_f32 v{a1+2}, v{a1}, v{a1+1}
    v_mov_b32 v{GA+2}, v{GA}
    v_mov_b32 v{GA+6}, v{GA+4}
    v_cvt_pk_bf16_f32 v{a0}, v{a0+2}, v{a0+2}
    v_cvt_pk_bf16_f32 v{a1}, v{a1+2}, v{a1+2}
    v_lshl_or_b32 v{a0+1}, v{vB1[0]}, 16, v{vB1[0]}
    v_lshl_or_b32 v{a1+1}, v{vB1[1]}, 16, v{vB1[1]}
    v_lshlrev_b32 v{a0+3}, 16, v{a0}
    v_lshlrev_b32 v{a1+3}, 16, v{a1}
    v_cndmask_b32 v{a0}, 0, v{a0}, vcc
    v_cndmask_b32 v{a1}, 0, v{a1}, vcc
    v_sub_f32 v{a0+2}, v{a0+2}, v{a0+3}
    v_sub_f32 v{a1+2}, v{a1+2}, v{a1+3}
    v_cndmask_b32 v{a0+1}, 0, v{a0+1}, vcc
    v_cndmask_b32 v{a1+1}, 0, v{a1+1}, vcc
    v_cvt_pk_bf16_f32 v{a0+2}, v{a0+2}, 0
    v_cvt_pk_bf16_f32 v{a1+2}, v{a1+2}, 0
    v_mov_b32 v{a0+3}, 0
    v_mov_b32 v{a1+3}, 0
    v_cndmask_b32 v{a0+2}, 0, v{a0+2}, vcc
    v_cndmask_b32 v{a1+2}, 0, v{a1+2}, vcc
    v_mov_b32 v{GA+3}, 0
    v_mov_b32 v{GA+7}, 0''')
    Aex=[a0,a1]; Bex=[GA,GA+4]
    for t in range(2):
        for u in range(2):
            d=ACC+16*(2*t+u)
            g(f'{MF} v[{d}:{d+15}], v[{Aex[t]}:{Aex[t]+3}], v[{Bex[u]}:{Bex[u]+3}], v[{d}:{d+15}]')
    g(f'''v_mul_f32 v25, v24, v24
    v_mul_f32 v27, v26, v26
    v_mul_f32 v49, {f2u(c0):#x}, v24
    v_mul_f32 v53, {f2u(c0):#x}, v26
    v_mul_f32 v25, v25, v24
    v_mul_f32 v27, v27, v26
    v_mul_f32 v48, {f2u(c1):#x}, v25
    v_mul_f32 v52, {f2u(c1):#x}, v27''')
    srd(g,36,28,7340032)
    g('''s_mul_i32 s53, s52, 112
    s_lshl_b32 s54, s49, 3
    s_add_u32 s53, s53, s54
    s_lshl_b32 s54, s50, 2
    s_add_u32 s53, s53, s54
    s_lshl_b32 s53, s53, 11
    s_lshl_b32 s54, s51, 12
    s_add_u32 s60, s53, s54
    s_xor_b32 s61, s60, 0x400
    s_xor_b32 s62, s60, 0x1000
    s_xor_b32 s63, s60, 0x1400
    v_lshlrev_b32 v56, 4, v0''')
    g.stamp()
    while len(g.miscq)>len(trig): misc(g,1)
    def trop(pr,h):
        def op():
            if h==0: g.wait(f'w{pr}')
            for x in w2_trl(pr)[4*h:4*h+4]: g(x)
        return op
    for pr in range(4):
        g.sideq+=[trop(pr,0),trop(pr,1)]
    NS=g.opt.get('gside',3)
    for t in range(2):
        for u in range(2):
            d=ACC+16*(2*t+u); K=[48,52][u]; RI=[50,54][u]
            for j in range(2):
                P=[d+8*j+2*i for i in range(4)]
                tm=[2+2*i for i in range(4)]
                o=[24,28][j]
                for i in range(4): g(f'v_pk_mul_f32 v[{tm[i]}:{tm[i]+1}], v[{P[i]}:{P[i]+1}], v[{P[i]}:{P[i]+1}]')
                for i in range(4): g(f'v_pk_fma_f32 v[{tm[i]}:{tm[i]+1}], v[{tm[i]}:{tm[i]+1}], v[{K}:{K+1}], v[{K}:{K+1}] op_sel:[0,0,1] op_sel_hi:[1,0,1]')
                if NS>=1: g.side()
                for i in range(4): g(f'v_pk_mul_f32 v[{tm[i]}:{tm[i]+1}], v[{tm[i]}:{tm[i]+1}], v[{P[i]}:{P[i]+1}]')
                for i in range(8):
                    g(f'v_exp_f32 v{2+i}, v{2+i}')
                    if i==3 and NS>=4: g.side()
                if NS>=2: g.side()
                for i in range(4): g(f'v_pk_fma_f32 v[{tm[i]}:{tm[i]+1}], v[{tm[i]}:{tm[i]+1}], v[{RI}:{RI+1}], v[{RI}:{RI+1}] op_sel:[0,0,0] op_sel_hi:[1,0,0]')
                for i in range(8):
                    g(f'v_rcp_f32 v{2+i}, v{2+i}')
                    if i==3 and NS>=5: g.side()
                if NS>=3: g.side()
                for i in range(4): g(f'v_pk_mul_f32 v[{tm[i]}:{tm[i]+1}], v[{tm[i]}:{tm[i]+1}], v[{P[i]}:{P[i]+1}]')
                for i in range(4): g(f'v_cvt_pk_bf16_f32 v{o+i}, v{tm[i]}, v{tm[i]+1}')
                g.vmem(f'buffer_store_dwordx4 v[{o}:{o+3}], v56, s[36:39], s{60+2*t+u} offen offset:{2048*j} sc1','st')
    g.stamp()
    print('after GELU: side',len(g.sideq),'misc',len(g.miscq),file=sys.stderr)
    g.stamp('tail')
    g.flush_side()
    g(f'v_add_u32 v{vTm0}, 0x10000, v{vT[0]}\nv_add_u32 v{vTm1}, 0x10000, v{vT[1]}')
    g('s_waitcnt lgkmcnt(0)')
    NB=g.opt.get('nbefore',0)
    for pr in range(10,10+NB):
        for op in w2_pair_ops(g,pr): op()
    for pr in range(4,4+g.opt.get('trbefore',4)):
        g.wait(f'w{pr}')
        for x in w2_trl(pr): g(x)
    g(f'v_mov_b32 v2, s47')
    g.stamp('tail')
    g.wait('st')
    g.stamp('tail')
    g('s_barrier')
    g.vmem(f'buffer_store_dword v2, v{vSG}, s[40:43], 0 offen sc1','flag')
    g.stamp('tail')
    for pr in range(10+NB,14):
        for op in w2_pair_ops(g,pr): op()
    xo=xb2_ops(g)
    for op in xo[:4]: op()
    misc(g,9999)
    for pr in range(4+g.opt.get('trbefore',4),14):
        g.wait(f'w{pr}')
        for x in w2_trl(pr): g(x)
    g.vmem(f'buffer_load_dword v3, v{vPL}, s[40:43], 0 offen sc1','poll')
    xo[4]()
    g('s_branch L_p2')

def p1_dft(g):
    RAW=64
    vBr0=56; vXL=[57,18,19,2]; vSP=3; vBd=[4,5,6,7]; vWe,vWo=8,9; vFA=[10,11,12,13]; vFB=[14,15,16,17]
    CC=[192,196]; SS=[200,204]; NS=[208,212]
    RC=[216,218,220,222]
    g('''s_mov_b32 s49, s53
    s_lshr_b32 s51, s3, 1''')
    t1_of(g,'s52','s48','s51','s53')
    g(f'''s_and_b32 s50, s3, 1
    s_lshl_b32 s53, s50, 5
    s_add_u32 s53, s53, s52
    s_lshl_b32 s53, s53, 10
    v_lshrrev_b32 v24, 3, v0
    v_lshrrev_b32 v25, 4, v0
    v_and_b32 v26, 7, v0
    v_lshlrev_b32 v27, 4, v26
    v_lshl_add_u32 v27, v24, 16, v27
    s_lshl_b32 s54, s100, 7
    v_add3_u32 v{vXL[0]}, v27, s53, 0
    v_add_u32 v{vXL[0]}, s54, v{vXL[0]}
    v_xor_b32 v{vXL[1]}, 0x80, v{vXL[0]}
    v_xor_b32 v{vXL[2]}, 0x100, v{vXL[0]}
    v_xor_b32 v{vXL[3]}, 0x180, v{vXL[0]}
    s_waitcnt lgkmcnt(0)''')
    srd(g,32,4,2097152)
    def xops(gi):
        def mk(j):
            def op():
                if j==0: g(f's_mov_b32 s58, {gi*524288}')
                r=RAW+32*gi+4*j
                g.vmem(f'buffer_load_dwordx4 v[{r}:{r+3}], v{vXL[j&3]}, s[32:35], s58 offen offset:{512*(j>>2)}',f'x{gi}')
            return op
        return [mk(j) for j in range(8)]
    for gi in range(2):
        for op in xops(gi): op()
    epoch_load(g)
    srd(g,36,10,524288); srd(g,16,12,524288); srd(g,40,28,4<<20,add=F_OFF)
    g(f'''s_lshl_b32 s46, s48, 7
    s_lshl_b32 s53, s49, 2
    s_add_u32 s46, s46, s53
    s_add_u32 s46, s46, 56
    v_xor_b32 v26, v26, v25
    v_lshlrev_b32 v26, 4, v26
    v_lshl_add_u32 v27, v24, 11, v26
    s_lshl_b32 s53, s3, 16
    s_lshl_b32 s54, s49, 10
    s_add_u32 s53, s53, s54
    v_add_u32 v{vBd[0]}, s53, v27
    v_xor_b32 v28, 64, v{vBd[0]}
    v_add_u32 v{vBd[1]}, {16384-1024}, v28
    v_add_u32 v{vBd[2]}, {2*(16384-1024)}, v{vBd[0]}
    v_add_u32 v{vBd[3]}, {3*(16384-1024)}, v28
    v_add_u32 v28, 0x40000, v{vBd[0]}
    v_cmp_gt_u32 vcc, 1024, v{vBd[0]}
    v_lshl_add_u32 v27, v24, 7, v26
    s_lshl_b32 s53, s3, 12
    v_cndmask_b32 v{vBr0}, v{vBd[0]}, v28, vcc
    v_add_u32 v{vWe}, s53, v27
    v_xor_b32 v{vWo}, 64, v{vWe}
    s_mul_i32 s55, s3, 24576
    s_add_u32 s55, s55, 65536
    s_lshl_b32 s53, s48, 1
    s_add_u32 s53, s53, s49
    s_lshl_b32 s53, s53, 11
    s_lshl_b32 s54, s51, 10
    s_add_u32 s53, s53, s54
    s_lshl_b32 s54, s50, 4
    s_add_u32 s53, s53, s54
    s_add_u32 s53, s53, {ST_OFF-F_OFF}
    v_lshl_add_u32 v{vSP}, v24, 5, s53''')
    def bops(st):
        slot=st&1
        def mk(i):
            def op():
                if i==0: g(f's_xor_b32 s57, s100, {st}\ns_lshl_b32 s57, s57, 7\ns_add_u32 m0, s55, {slot*8192}')
                if i==4: g(f's_add_u32 m0, s55, {slot*8192+4096}')
                if i<4: g.vmem(f'buffer_load_dwordx4 v{vBr0 if i==0 else vBd[i]}, s[36:39], s57 offen offset:{1024*i} lds',f'B{st}')
                else:   g.vmem(f'buffer_load_dwordx4 v{vBd[i-4]}, s[16:19], s57 offen offset:{1024*(i-4)} lds',f'B{st}')
            return op
        return [mk(i) for i in range(8)]
    g(f'''v_and_b32 v24, 31, v0
    v_lshrrev_b32 v25, 5, v0
    v_bfe_u32 v26, v0, 1, 3
    v_xor_b32 v26, v26, v25
    v_lshlrev_b32 v27, 7, v24''')
    for kk in range(4):
        g(f'''v_xor_b32 v28, {2*kk}, v26
        v_lshl_add_u32 v{vFA[kk]}, v28, 4, v27
        v_add_u32 v{vFB[kk]}, s55, v{vFA[kk]}''')
    g(f'''v_cvt_f32_u32 v26, v24
    v_mul_f32 v26, {f2u(1/32):#x}, v26
    v_cvt_f32_u32 v27, v25
    v_mul_f32 v27, 4.0, v27
    v_mul_f32 v27, v27, v26
    v_mul_f32 v28, {f2u(5.0):#x}, v26''')
    for j in range(2):
        for i2 in range(4):
            for e in range(2):
                i=2*i2+e
                if not (j==0 and i==0):
                    g(f'v_add_f32 v27, v27, v{28 if i%4==0 else 26}')
                g(f'v_fract_f32 v29, v27\nv_cos_f32 v{20+e}, v29\nv_sin_f32 v{22+e}, v29')
            g(f'v_cvt_pk_bf16_f32 v{CC[j]+i2}, v20, v21\nv_cvt_pk_bf16_f32 v{SS[j]+i2}, v22, v23\nv_xor_b32 v{NS[j]+i2}, 0x80008000, v{SS[j]+i2}')
    early,addr,trig=p2_setup_ops(g,True)
    TM={0:20,1:21,2:22,3:23,4:24,5:25,6:26,7:27,8:28,9:29,10:30,12:2,13:3,14:8,15:9,16:31,17:57,18:240,19:241,20:242,21:243,22:244,23:245}
    early,addr,trig=[remap(x,TM) for x in (early,addr,trig)]
    g(f'''s_mov_b32 s59, 0x3f803f80
    s_movk_i32 s60, 0x3f80
    s_mov_b32 s61, 0x3f800000
    s_lshl_b32 s53, s49, 15
    s_or_b32 s62, s60, s53
    s_lshl_b32 s63, s62, 16
    s_cmp_eq_u32 s49, 0
    s_cselect_b32 s101, 2.0, 0
    s_waitcnt lgkmcnt(0)''')
    nonce(g)
    eps=f'{f2u(1e-5):#x}'
    chainq=[]
    def ch(n=1):
        for _ in range(n):
            if chainq: chainq.pop(0)()
    def stats(gi):
        R=RAW+32*gi; S=[224,228][gi&1]
        g.wait(f'x{gi}')
        if gi==0: g.stamp()
        for i in range(32):
            if i<2: g(f'v_dot2_f32_bf16 v{S+i}, v{R+i}, s59, 0\nv_dot2_f32_bf16 v{S+2+i}, v{R+i}, v{R+i}, 0')
            else:   g(f'v_dot2c_f32_bf16 v{S+(i&1)}, s59, v{R+i}\nv_dot2c_f32_bf16 v{S+2+(i&1)}, v{R+i}, v{R+i}')
            if i%4==3: g.side()
            if i>=2: ch(2)
        while chainq: ch()
        o=232+4*(gi&1); r1=RC[gi]; a,b,c,d=20,21,22,23
        lines=f'''v_add_f32 v{S}, v{S}, v{S+1}
        v_add_f32 v{S+2}, v{S+2}, v{S+3}
        v_add_f32_dpp v{S}, v{S}, v{S} quad_perm:[1,0,3,2] row_mask:0xf bank_mask:0xf
        v_add_f32_dpp v{S+2}, v{S+2}, v{S+2} quad_perm:[1,0,3,2] row_mask:0xf bank_mask:0xf
        v_add_f32_dpp v{S}, v{S}, v{S} quad_perm:[2,3,0,1] row_mask:0xf bank_mask:0xf
        v_add_f32_dpp v{S+2}, v{S+2}, v{S+2} quad_perm:[2,3,0,1] row_mask:0xf bank_mask:0xf
        v_add_f32_dpp v{S}, v{S}, v{S} row_half_mirror row_mask:0xf bank_mask:0xf
        v_add_f32_dpp v{S+2}, v{S+2}, v{S+2} row_half_mirror row_mask:0xf bank_mask:0xf
        v_mul_f32 v{a}, {f2u(-1/512):#x}, v{S}
        v_mul_f32 v{b}, {f2u(1/512):#x}, v{S+2}
        v_fma_f32 v{b}, -v{a}, v{a}, v{b}
        v_cvt_pk_bf16_f32 v{d}, v{a}, v{a}
        v_max_f32 v{b}, 0, v{b}
        v_lshlrev_b32 v{d}, 16, v{d}
        v_cvt_pk_bf16_f32 v{c}, 0, v{b}
        v_sub_f32 v{d}, v{a}, v{d}
        v_add_f32 v{c}, {eps}, v{c}
        v_cvt_pk_bf16_f32 v{o}, v{a}, v{d}
        v_cvt_pk_bf16_f32 v{c}, 0, v{c}
        v_mul_f32 v{r1+1}, s101, v{a}
        v_sqrt_f32 v{c}, v{c}
        v_mov_b32 v{o+3}, s47
        v_cvt_pk_bf16_f32 v{c}, 0, v{c}
        v_rcp_f32 v{r1}, v{c}
        v_mul_f32 v{b}, v{b}, v{r1}
        v_mul_f32 v{b}, v{b}, v{r1}
        v_cvt_pk_bf16_f32 v{b}, 0, v{b}
        v_add_f32 v{b}, {eps}, v{b}
        v_cvt_pk_bf16_f32 v{b}, 0, v{b}
        v_sqrt_f32 v{b}, v{b}
        v_cvt_pk_bf16_f32 v{b}, 0, v{b}
        v_mul_f32 v{o+2}, v{b}, v{c}
        v_cvt_pk_bf16_f32 v{b}, 0, v{o+2}
        v_sub_f32 v{b}, v{o+2}, v{b}
        v_cvt_pk_bf16_f32 v{o+1}, v{o+2}, v{b}'''.split('\n')
        for ln in lines: chainq.append(lambda ln=ln: g(ln))
        chainq.append(lambda: g.vmem(f'buffer_store_dwordx4 v[{o}:{o+3}], v{vSP}, s[40:43], 0 offen offset:{256*gi} sc1','sp'))
    def bfly(gi):
        R=RAW+32*gi; r1=RC[gi]
        for j in range(4):
            o=[24,28][j&1]; T=[40,48][j&1]
            for i in range(4):
                a_=R+4*j+i; t=T+2*i
                g(f'v_dot2_f32_bf16 v{t}, v{a_}, s60, v{r1+1}\nv_dot2_f32_bf16 v{t+1}, v{a_}, s61, v{r1+1}'); ch()
            g.side()
            for i in range(4):
                b_=R+4*(j+4)+i; t=T+2*i
                g(f'v_dot2c_f32_bf16 v{t}, s62, v{b_}\nv_dot2c_f32_bf16 v{t+1}, s63, v{b_}'); ch()
            ch(2)
            for i in range(4):
                t=T+2*i
                g(f'v_pk_mul_f32 v[{t}:{t+1}], v[{t}:{t+1}], v[{r1}:{r1+1}] op_sel_hi:[1,0]')
            g.side()
            for i in range(4):
                t=T+2*i
                g(f'v_cvt_pk_bf16_f32 v{o+i}, v{t}, v{t+1}')
            g(f'ds_write_b128 v{vWo if gi&1 else vWe}, v[{o}:{o+3}] offset:{16384*j+1024*gi}')
        while chainq: ch()
    W0=16384
    wl={0:W0,1:W0+4096,2:W0,3:W0+4096,4:W0,5:W0+4096,6:W0,7:W0+4096,8:0,9:4096,10:W0,11:W0+4096,12:8192,13:8192+4096}
    wd=lambda pr: w2_pair_ops(g,pr,'s55',wl[pr])
    order=g.opt.get('dord','a')
    plan={'a':[[],xops(2),xops(3),bops(0),bops(1),[],'w',[]],
          'b':[xops(2),xops(3),bops(0),bops(1),[],[],'w',[]],
          'c':[[],xops(2)+xops(3),bops(0),bops(1),[],'w',[],[]]}[order]
    for k,(fn,gi) in enumerate(((stats,0),(stats,1),(bfly,0),(stats,2),(bfly,1),(stats,3),(bfly,2),(bfly,3))):
        if plan[k]=='w':
            for x in early: g(x)
            g.sideq+=wd(0)+wd(1)
        else: g.sideq+=plan[k]
        if fn is stats:
            while any(1 for op in plan[max(k-2,0)] if False): pass
        fn(gi); g.stamp('dst')
        if order=='c' and k==1: g.flush_side()
    g.flush_side()
    g('s_waitcnt lgkmcnt(0)\ns_barrier')
    g.stamp(); g.stamp('dst')
    ACC=64
    def fr(s_):
        b=[32,216][s_]
        return dict(A=[b,b+4,b+8,b+12],B=[b+16,b+20])
    def rd(n):
        st,kk=n>>2,n&3; f=fr(n&1)
        bb=lambda ab: f'ds_read_b128 v[{f["B"][ab]}:{f["B"][ab]+3}], v{vFB[kk]} offset:{(st&1)*8192+4096*ab}'
        aa=lambda ti: f'ds_read_b128 v[{f["A"][ti]}:{f["A"][ti]+3}], v{vFA[kk]} offset:{st*16384+4096*ti}'
        return [aa(0),bb(0),bb(1),aa(1),aa(2),aa(3)]
    g.wait('B0')
    for x in rd(0): g(x)
    vTB=[18,19]
    nT=[i for i,x in enumerate(addr) if f'v_add_u32 v{vT[3]}' in x][0]+1
    for x in addr[8:nT]+['s_sub_u32 s0, s55, s69',f'v_add_u32 v18, s0, v{vT[0]}',f'v_add_u32 v19, s0, v{vT[1]}']: g(x)
    g.miscq=addr[:8]+addr[nT:]+trig
    TRS={0:0,1:1,5:2,6:3,9:4,10:5,13:6,14:7}
    DMS={1:[2],2:[3],6:[4],7:[5],10:[6],11:[7,8],12:[9],14:[10],15:[11]}
    for n in range(16):
        f=fr(n&1)
        def mf(ti,ab):
            d=ACC+32*ti+16*ab
            g(f'{MF} v[{d}:{d+15}], v[{f["A"][ti]}:{f["A"][ti]+3}], v[{f["B"][ab]}:{f["B"][ab]+3}], '+(f'v[{d}:{d+15}]' if n else '0'))
        nx=rd(n+1) if n<15 else []
        g('s_waitcnt lgkmcnt(0)'); mf(0,0)
        if n==3: g.sideq+=bops(2)
        if n==7: g.sideq+=bops(3)
        for pr in DMS.get(n,[]): g.sideq+=wd(pr)
        if (n+1)%4==0 and n<15: g.wait(f'B{(n+1)>>2}')
        for x in nx[:3]: g(x)
        mf(0,1)
        for x in nx[3:]: g(x)
        mf(1,0)
        trq=[]
        if n in TRS:
            assert not any(True for op in g.sideq if getattr(op,'pr',None)==TRS[n])
            g.wait(f'w{TRS[n]}'); trq=w2_trl(TRS[n],vTB,wl[TRS[n]])
        for k,(ti,ab) in enumerate(((1,1),(2,0),(2,1),(3,0),(3,1))):
            if trq and k>=3:
                for x in trq[:4]: g(x)
                trq=trq[4:]
            else:
                had=bool(g.sideq); g.side(); misc(g,2 if had else 4)
            mf(ti,ab)
        had=bool(g.sideq); g.side(); misc(g,2 if had else 4)
    g.stamp(); g.stamp('s1')
    g.sideq+=wd(12)+wd(13)
    def trop(pr):
        def op():
            g.wait(f'w{pr}')
            for x in w2_trl(pr,vTB,wl[pr])[:4]: g(x)
        def op2():
            for x in w2_trl(pr,vTB,wl[pr])[4:]: g(x)
        return [op,op2]
    for pr in range(8,12): g.sideq+=trop(pr)
    g.sideq+=[lambda: [misc(g,1) for _ in range(len(g.miscq)-len(trig))]]
    def zc(ti):
        Z=[32,216][ti&1]; L=[]
        for ab in range(2):
            d=ACC+32*ti+16*ab
            for i in range(8): L.append(f'v_cvt_pk_bf16_f32 v{Z+8*ab+i}, v{d+2*i}, v{d+2*i+1}')
        return L
    for x in zc(0): g(x)
    for ti in range(4):
        Z=[32,216][ti&1]
        za=[Z,Z+4]; zb=[Z+8,Z+12]; ur=ACC+32*ti; ui=ur+16
        nxt=zc(ti+1) if ti<3 else []
        seq=[(ur,CC[0],za[0],1),(ui,CC[0],zb[0],1),(ur,CC[1],za[1],0),(ui,CC[1],zb[1],0),(ur,SS[0],zb[0],0),(ui,NS[0],za[0],0),(ur,SS[1],zb[1],0),(ui,NS[1],za[1],0)]
        for n,(d,am,bm,first) in enumerate(seq):
            g(f'{MF} v[{d}:{d+15}], v[{am}:{am+3}], v[{bm}:{bm+3}], '+('0' if first else f'v[{d}:{d+15}]'))
            for x in nxt[2*n:2*n+2]: g(x)
            had=bool(g.sideq); g.side(); misc(g,(0 if had else 2)+(0 if nxt else 2))
    g.stamp('s1')
    g.flush_side(); misc(g,9999)
    g.stamp('s1')
    for op in xb2_ops(g): op()
    for pr in (12,13):
        for op in trop(pr): op()
    g.stamp('s1')
    srd(g,36,28,2097152,add=U_OFF)
    g(f'''v_and_b32 v24, 31, v0
    v_lshrrev_b32 v25, 5, v0
    v_lshlrev_b32 v24, 4, v24
    v_lshl_add_u32 v24, v25, 18, v24
    s_lshl_b32 s53, s3, 9
    v_add_u32 v24, s53, v24
    s_lshl_b32 s53, s48, 1
    s_add_u32 s53, s53, s49
    s_lshl_b32 s53, s53, 11''')
    for r in range(16):
        o=32+4*(r&3)
        for ti in range(4): g(f'v_cvt_pk_bf16_f32 v{o+ti}, v{ACC+32*ti+r}, v{ACC+32*ti+16+r}')
        g(f's_add_u32 s54, s53, {(8*(r>>2)+(r&3))*65536}')
        g.vmem(f'buffer_store_dwordx4 v[{o}:{o+3}], v24, s[36:39], s54 offen sc1','st')
    g.stamp(); g.stamp('s1')
    g('v_mov_b32 v2, s47')
    g.vmem(f'buffer_load_dword v3, v{vPL}, s[40:43], 0 offen sc1','poll')
    g.wait('st')
    g.stamp('s1')
    g('s_waitcnt lgkmcnt(0)\ns_barrier')
    g(f'buffer_store_dword v2, v{vSG}, s[40:43], 0 offen sc1')

def p2(g):
    ACC=64; ACS=128; UF=144
    HR=[16+8*i for i in range(5)]+[192+8*i for i in range(5)]
    NH=len(HR)
    g.stamp(); g.stamp('tail')
    srd(g,36,28,7340032); srd(g,32,28,2097152,add=U_OFF); srd(g,72,24,2097152)
    g(f'''s_sub_u32 s62, 32, s71
    s_and_b32 s62, s62, 31
    s_cmp_lt_u32 s70, 4
    s_cselect_b32 s62, s71, s62
    s_lshl_b32 s62, s62, 16
    v_mov_b32 v185, 0
    v_mov_b32 v186, 0
    v_mov_b32 v187, 0
    v_mov_b32 v188, 0x3f80
    v_cmp_gt_u32 vcc, 32, v0
    v_mov_b32 v189, 0
    v_mov_b32 v190, 0
    v_cndmask_b32 v188, 0, v188, vcc
    v_mov_b32 v191, 0
    s_mul_i32 s57, s71, 112
    s_mul_i32 s53, s3, 28
    s_add_u32 s57, s57, s53
    s_lshl_b32 s57, s57, 11
    s_add_u32 s59, s57, {28*2048}
    s_lshl_b32 s53, s44, 12
    s_add_u32 s58, s57, s53
    v_mov_b32 v2, s47
    s_mov_b32 s56, {SPIN}''')
    for d in (1,2,3):
        g(f's_add_u32 s53, s69, {d*32768}\nv_lshl_add_u32 v{9+d}, v0, 4, s53')
    g(f'''s_waitcnt vmcnt(1)
    v_mov_b32 v184, v{vB2}
    L_poll:
    v_cmp_ne_u32 vcc, s47, v3
    s_cbranch_vccz L_go
    s_sleep {g.opt.get('sleep',4)}
    buffer_load_dword v3, v{vPL}, s[40:43], 0 offen sc1
    s_waitcnt vmcnt(0)
    s_sub_u32 s56, s56, 1
    s_cbranch_scc0 L_poll
    L_go:''')
    g.vm=['old']*30
    g.stamp(); g.stamp('tail')
    hidx=[0]
    def hload():
        ks=hidx[0]; r=HR[ks%NH]
        g.vmem(f'buffer_load_dwordx4 v[{r}:{r+3}], v{vH0}, s[36:39], s58 offen offset:{2048*(ks&1)} sc1',f'h{ks}')
        g.vmem(f'buffer_load_dwordx4 v[{r+4}:{r+7}], v{vH1}, s[36:39], s58 offen offset:{2048*(ks&1)} sc1',f'h{ks}')
        if ks&1 and ks<27: g('s_add_u32 s58, s58, 4096\ns_cmp_eq_u32 s58, s59\ns_cselect_b32 s58, s57, s58')
        hidx[0]+=1
    HD=g.opt.get('hdepth',8)
    for i in range(HD): hload()
    g(f's_waitcnt lgkmcnt(0)\n{MF} v[{ACC}:{ACC+15}], v[184:187], v[188:191], 0')
    KF=g.opt.get('kflag',9)
    NL=g.opt.get('nlast',3)
    def mf(ks,a_,b):
        r=HR[ks%NH]; d=ACC+16*(a_+2*b)
        c='0' if (ks==0 and (a_ or b)) else f'v[{d}:{d+15}]'
        g(f'{MF} v[{d}:{d+15}], a[{8*ks+4*a_}:{8*ks+4*a_+3}], v[{r+4*b}:{r+4*b+3}], {c}')
    checked=False
    for ks in range(28-NL):
        g.wait(f'h{ks}')
        if ks==0:
            g.stamp()
        for b in range(2):
            for a_ in range(2): mf(ks,a_,b)
            if b==0 and g.sideq: g.side()
        if hidx[0]<28: hload()
        elif g.sideq: g.side()
        if ks==KF: g.vmem(f'buffer_load_dwordx4 v[176:179], v{vFL}, s[40:43], 0 offen sc1','fl')
        if 'fl' not in g.vm and ks>KF and not checked:
            checked=True
            g(f'''L_chk:
            v_xor_b32 v176, s47, v176
            v_xor_b32 v177, s47, v177
            v_xor_b32 v178, s47, v178
            v_xor_b32 v179, s47, v179
            v_or3_b32 v176, v176, v177, v178
            v_or_b32 v176, v176, v179
            v_cmp_ne_u32 vcc, 0, v176
            s_cbranch_vccz L_allset
            s_sleep 8
            buffer_load_dwordx4 v[176:179], v{vFL}, s[40:43], 0 offen sc1
            s_waitcnt vmcnt(0)
            s_sub_u32 s56, s56, 1
            s_cbranch_scc0 L_chk
            L_allset:''')
            def mku(j):
                def op():
                    g(f's_add_u32 s53, s62, {8192*j}')
                    g.vmem(f'buffer_load_dwordx4 v[{UF+4*j}:{UF+4*j+3}], v{vU}, s[32:35], s53 offen sc1','u')
                return op
            g.sideq+=[mku(j) for j in range(8)]
    assert checked
    g.flush_side()
    XF=176
    def wr(d):
        for q in range(4):
            r=ACC+16*d+4*q
            g(f'ds_write_b128 v{9+d}, v[{r}:{r+3}] offset:{1024*q}')
    for n,d in enumerate((3,2,1,0)):
        for ks in range(28-NL,28):
            g.wait(f'h{ks}')
            mf(ks,d&1,d>>1)
        if n==1:
            for i in range(4): g(f'v_lshlrev_b32 v{XF+2*i}, 16, v{XR+i}\nv_and_b32 v{XF+2*i+1}, 0xffff0000, v{XR+i}')
            wr(3)
        if n==2:
            for i in range(4,8): g(f'v_lshlrev_b32 v{XF+2*i}, 16, v{XR+i}\nv_and_b32 v{XF+2*i+1}, 0xffff0000, v{XR+i}')
            wr(2)
    g.stamp()
    g(f's_mov_b32 s60, {f2u(-math.log2(math.e)):#x}\ns_mov_b32 s61, s60\ns_mov_b32 s62, 1.0\ns_mov_b32 s63, 1.0')
    def smm():
        g.waitall()
        for j in range(8):
            g(f'{MF} v[{ACS}:{ACS+15}], v[{UF+4*j}:{UF+4*j+3}], a[{224+4*j}:{227+4*j}], '+('0' if j==0 else f'v[{ACS}:{ACS+15}]'))
    wr(1)
    if g.opt.get('searly',1): smm()
    for d in (1,2,3): g(f'v_xor_b32 v{9+d}, {d*8192}, v{9+d}')
    g('s_waitcnt lgkmcnt(0)\ns_barrier')
    for q in range(4):
        for d in range(3):
            r=[192,208,16][d]+4*q
            g(f'ds_read_b128 v[{r}:{r+3}], v{10+d} offset:{1024*q}')
    if not g.opt.get('searly',1): smm()
    T=80
    for hf in range(2):
        g(f's_waitcnt lgkmcnt({6-6*hf})')
        I=range(4*hf,4*hf+4)
        for i in I: g(f'v_pk_add_f32 v[{192+2*i}:{193+2*i}], v[{192+2*i}:{193+2*i}], v[{208+2*i}:{209+2*i}]')
        for i in I: g(f'v_pk_add_f32 v[{ACC+2*i}:{ACC+2*i+1}], v[{ACC+2*i}:{ACC+2*i+1}], v[{16+2*i}:{17+2*i}]')
        for i in I: g(f'v_pk_add_f32 v[{ACC+2*i}:{ACC+2*i+1}], v[{ACC+2*i}:{ACC+2*i+1}], v[{192+2*i}:{193+2*i}]')
        for i in I: g(f'v_pk_mul_f32 v[{T+2*i}:{T+2*i+1}], v[{ACC+2*i}:{ACC+2*i+1}], s[60:61]')
        for i in I: g(f'v_exp_f32 v{T+2*i}, v{T+2*i}\nv_exp_f32 v{T+2*i+1}, v{T+2*i+1}')
        for i in I: g(f'v_pk_add_f32 v[{T+2*i}:{T+2*i+1}], v[{T+2*i}:{T+2*i+1}], s[62:63]')
        for i in I: g(f'v_rcp_f32 v{T+2*i}, v{T+2*i}\nv_rcp_f32 v{T+2*i+1}, v{T+2*i+1}')
        for i in I: g(f'v_pk_mul_f32 v[{ACS+2*i}:{ACS+2*i+1}], v[{ACS+2*i}:{ACS+2*i+1}], v[{ACC+2*i}:{ACC+2*i+1}]')
        for i in I: g(f'v_pk_fma_f32 v[{T+2*i}:{T+2*i+1}], v[{T+2*i}:{T+2*i+1}], v[{ACS+2*i}:{ACS+2*i+1}], v[{XF+2*i}:{XF+2*i+1}]')
        for i in I: g(f'v_cvt_pk_bf16_f32 v{96+i}, v{T+2*i}, v{T+2*i+1}')
        for q in (2*hf,2*hf+1): g(f'buffer_store_dwordx2 v[{96+2*q}:{97+2*q}], v{vXO}, s[72:75], 0 offen offset:{16*q} {g.opt.get("outfl","")}')
    g('''s_add_u32 s53, s2, s3
    s_cmp_lg_u32 s53, 0
    s_cbranch_scc1 L_noep
    v_mov_b32 v3, 4096
    s_mov_b64 exec, 1
    buffer_store_dword v2, v3, s[40:43], 0 offen sc1
    s_mov_b64 exec, -1
    L_noep:''')
    g.stamp()

def build(stamps=False, opt=None):
    g=G(stamps,opt); g.miscq=[]
    entry(g)
    vm0=list(g.vm); n0=g.nst
    p1_mlp(g)
    n1=g.nst
    g('L_dft:')
    g.vm=list(vm0); g.nst=n0; g.miscq=[]
    p1_dft(g)
    g.nst=max(g.nst,n1)
    g('L_p2:')
    p2(g); g.dump_stamps(TS_OFF)
    g('L_end:\ns_endpgm\nL_codeend:')
    body='\n'.join(hazard.fix(g.a.l))+'\n'
    return wrap([dict(name=KN,body=body,grid=256,block=256,lds=163840,vgpr=512,accum=256)],HDR)
if __name__=='__main__':
    out=sys.argv[1]; st='stamps' in sys.argv[2:]
    opt={}
    for a in sys.argv[2:]:
        if '=' in a:
            k,v=a.split('='); opt[k]=int(v) if v.lstrip('-').isdigit() else v
    open(out,'w').write(build(st,opt))
```

```python
import sys, math, struct, re
sys.path.insert(0,'tools')
from asmlib import A, wrap, KN
import hazard
from gen3 import G, srd, t1_of, f2u, HDR, U_OFF, ST_OFF, CS_REL, TS_OFF, SPIN

F_OFF = 12<<20
F2 = 8192
FU=32768; EPO=40960
WT_OFF = 14<<20
vB2, vXO = 254, 255
vD=[226+i for i in range(0)]
vDM=[246,247,248,249]
vT=[250,251,252,253]
XR=246
vSG,vH0,vH1,vU,vFL,vPL = 58,59,60,61,62,63
vTT=245
MF='v_mfma_f32_32x32x16_bf16'
OOB='0x40000000'

class Rec:
    def __init__(s): s.l=[]
    def __call__(s,t):
        for x in t.split('\n'):
            x=x.strip()
            if x: s.l.append(x)
def ool(g, text):
    g.outofline+=[x.strip() if x.strip().endswith(':') else '    '+x.strip() for x in text.split('\n') if x.strip()]
def misc(g, n):
    while n>0 and g.miscq:
        x=g.miscq.pop(0); g(x)
        n-= x.count('\n')+1 + (1 if ('v_cos' in x or 'v_sin' in x) else 0)
def epoch_load(g):
    g(f's_add_u32 s60, s28, {F_OFF+EPO}\ns_addc_u32 s61, s29, 0\ns_load_dword s47, s[60:61], 0')
def nonce(g):
    g('s_mul_i32 s47, s47, 0x9e3779b1\ns_add_u32 s47, s47, 0x85ebca6b')

def p2_setup_ops(g, dft):
    r=Rec(); t=lambda i:f'v{1000+i}'
    if g.opt.get('p2arr',84)==48:
        r('''s_and_b32 s70, s31, 7
        s_lshr_b32 s0, s31, 4
        s_lshl_b32 s1, s30, 1
        s_add_u32 s45, s0, s1
        s_bfe_u32 s1, s31, 0x10003''')
    else:
        r('''s_and_b32 s70, s30, 1
        s_lshl_b32 s70, s70, 2
        s_lshr_b32 s0, s31, 2
        s_add_u32 s0, s0, s31
        s_and_b32 s0, s0, 3
        s_add_u32 s70, s70, s0
        s_lshr_b32 s45, s30, 1
        s_lshl_b32 s45, s45, 2
        s_lshr_b32 s0, s31, 3
        s_add_u32 s45, s45, s0
        s_bfe_u32 s1, s31, 0x10002''')
    r.l.append('s_sub_u32 s0, 32, s45\ns_cmp_eq_u32 s45, 0\ns_cselect_b32 s0, 16, s0\ns_cmp_eq_u32 s1, 0\ns_cselect_b32 s71, s45, s0')
    wr=g.opt.get('wrot',3)
    if wr==0: r('s_mov_b32 s44, 0')
    elif wr==1: r('s_mul_i32 s44, s30, 7\ns_lshr_b32 s44, s44, 2')
    elif wr==3: r('s_lshr_b32 s44, s31, 2\ns_mul_i32 s44, s44, 7\ns_lshr_b32 s44, s44, 2')
    elif wr==5: r('s_lshr_b32 s44, s31, 2\ns_max_u32 s44, s44, 1\ns_sub_u32 s44, s44, 1\ns_lshl_b32 s44, s44, 1')
    elif wr==4: r('s_lshr_b32 s44, s31, 3\ns_mul_i32 s44, s44, 7\ns_lshr_b32 s44, s44, 1')
    elif wr==2: r('s_lshr_b32 s44, s30, 1\ns_mul_i32 s44, s44, 7\ns_lshr_b32 s44, s44, 1')
    ho={0:None,1:(1,7),2:(1,4),3:(3,3),4:(3,1),5:(1,2)}[g.opt.get('hoff',0)]
    if ho:
        r.l.append(f's_and_b32 s0, s70, {ho[0]}\ns_mul_i32 s0, s0, {ho[1]}\ns_add_u32 s44, s44, s0\ns_cmp_ge_u32 s44, 14\ns_cselect_b32 s0, 14, 0\ns_sub_u32 s44, s44, s0'.replace('{ho[0]}',str(ho[0])) )
    r(f'''s_lshl_b32 s68, s44, 15
    s_lshl_b32 s69, s3, 13
    v_lshrrev_b32 {t(4)}, 3, v0
    v_bfe_u32 {t(5)}, v0, 4, 1
    v_lshlrev_b32 {t(6)}, 2, {t(5)}
    v_and_b32 {t(7)}, 7, v0
    v_xor_b32 {t(6)}, {t(6)}, {t(7)}
    v_lshlrev_b32 {t(6)}, 4, {t(6)}
    v_lshl_add_u32 {t(6)}, {t(4)}, 10, {t(6)}
    s_mul_i32 s0, s3, {448*1024}
    s_lshl_b32 s1, s70, 7
    s_add_u32 s0, s0, s1
    v_add_u32 v{vDM[0]}, s0, {t(6)}
    v_add_u32 v{vDM[1]}, {7168}, v{vDM[0]}
    v_add_u32 v{vDM[2]}, {2*7168}, v{vDM[0]}
    v_add_u32 v{vDM[3]}, {3*7168}, v{vDM[0]}''')
    srd(r,64,20,1792*512*2)
    early=r.l; r=Rec()
    srd(r,72,22,1024); srd(r,76,4,2097152)
    r(f'''v_lshrrev_b32 {t(4)}, 5, v0
    v_bfe_u32 {t(5)}, v0, 4, 1
    v_bfe_u32 {t(6)}, v0, 2, 2
    v_lshl_add_u32 {t(7)}, {t(4)}, 2, {t(6)}
    v_lshlrev_b32 {t(7)}, 7, {t(7)}
    v_lshrrev_b32 {t(6)}, 1, {t(6)}
    s_and_b32 s0, s3, 1
    v_xor_b32 {t(6)}, s0, {t(6)}
    v_lshl_add_u32 {t(7)}, {t(6)}, 6, {t(7)}
    v_lshl_add_u32 {t(7)}, {t(5)}, 5, {t(7)}
    v_and_b32 {t(6)}, 3, v0
    v_lshl_add_u32 {t(7)}, {t(6)}, 3, {t(7)}
    v_add_u32 v{vT[0]}, s69, {t(7)}
    v_xor_b32 v{vT[1]}, 64, v{vT[0]}
    v_add_u32 v{vT[2]}, 0x18000, v{vT[0]}
    v_add_u32 v{vT[3]}, 0x18000, v{vT[1]}
    s_lshl_b32 s0, s30, 9
    s_add_u32 s0, s0, {FU}
    v_and_b32 {t(7)}, 31, v0
    v_lshl_add_u32 v{vFL}, {t(7)}, 2, s0
    s_lshl_b32 s0, s45, 1
    s_and_b32 s1, s30, 1
    s_add_u32 s0, s0, s1
    s_lshl_b32 s0, s0, 2
    s_add_u32 s0, s0, s3
    s_lshl_b32 s0, s0, 8
    v_and_b32 {t(6)}, 3, v0
    v_lshl_add_u32 v{vPL}, {t(6)}, 2, s0
    s_lshr_b32 s1, s3, 1
    s_lshl_b32 s0, s1, 10
    v_lshl_add_u32 v{vH0}, v0, 4, s0
    v_xor_b32 v{vH1}, 0x400, v{vH0}
    s_lshl_b32 s0, s1, 5
    v_and_b32 {t(6)}, 31, v0
    v_add_u32 {t(5)}, s0, {t(6)}
    v_lshlrev_b32 {t(5)}, 5, {t(5)}
    v_add_u32 v{vTT}, s71, {t(5)}
    s_lshl_b32 s0, s0, 15
    s_lshl_b32 s1, s71, 10
    s_add_u32 s1, s1, s0
    v_lshrrev_b32 {t(5)}, 2, v0
    v_lshlrev_b32 {t(5)}, 15, {t(5)}
    v_lshrrev_b32 {t(7)}, 4, v0
    v_xor_b32 {t(7)}, {t(7)}, v0
    v_and_b32 {t(7)}, 3, {t(7)}
    v_lshl_add_u32 {t(5)}, {t(7)}, 4, {t(5)}
    v_add_u32 {t(5)}, s1, {t(5)}
    s_lshl_b32 s0, s70, 7
    s_and_b32 s1, s3, 1
    s_lshl_b32 s1, s1, 6
    s_add_u32 s0, s0, s1
    v_add_u32 v{vXO}, s0, {t(5)}
    v_lshl_add_u32 v{vB2}, {t(6)}, 1, s0
    s_lshr_b32 s0, s0, 1
    v_and_b32 {t(5)}, 20, v0
    v_bfe_u32 {t(7)}, v0, 1, 1
    v_lshl_add_u32 {t(5)}, {t(7)}, 3, {t(5)}
    v_and_b32 {t(7)}, 1, v0
    v_lshl_add_u32 {t(5)}, {t(7)}, 1, {t(5)}
    v_bfe_u32 {t(7)}, v0, 3, 1
    v_add3_u32 {t(6)}, {t(5)}, {t(7)}, s0''')
    r.l.append('s_cmp_lt_u32 s70, 4\ns_cselect_b32 s0, 0, -1\ns_cselect_b32 s1, 0, 513')
    r(f'''v_xor_b32 {t(7)}, s0, {t(6)}
    v_add_u32 {t(7)}, s1, {t(7)}
    v_and_b32 {t(8)}, 1, {t(7)}
    v_lshlrev_b32 {t(8)}, 11, {t(8)}
    v_bfe_u32 {t(7)}, {t(7)}, 1, 7
    v_lshl_add_u32 {t(7)}, {t(7)}, 4, {t(8)}
    v_lshl_add_u32 {t(7)}, {t(4)}, 12, {t(7)}
    v_mov_b32 {t(8)}, {OOB}
    v_cmp_eq_u32 vcc, 0, {t(6)}
    s_nop 0
    v_cndmask_b32 v{vU}, {t(7)}, {t(8)}, vcc''')
    if True:
        r.l.append(f's_cmp_eq_u32 s3, 0\ns_cselect_b32 s0, s46, {OOB}')
        if dft:
            r(f'''v_cmp_gt_u32 vcc, 8, v0
            v_lshl_add_u32 {t(10)}, v0, 9, s0
            s_nop 0
            v_cndmask_b32 v{vSG}, {t(8)}, {t(10)}, vcc''')
        else:
            r(f'''v_lshrrev_b32 {t(5)}, 1, v0
            v_mul_u32_u24 {t(6)}, 7, {t(5)}
            v_lshrrev_b32 {t(6)}, 1, {t(6)}
            v_sub_u32 {t(6)}, s49, {t(6)}
            v_and_b32 {t(7)}, 1, v0
            v_lshl_add_u32 {t(7)}, {t(7)}, 2, {t(5)}
            v_cmp_gt_u32 vcc, 4, {t(6)}
            v_lshlrev_b32 {t(7)}, 8, {t(7)}
            v_lshl_add_u32 {t(7)}, {t(6)}, 2, {t(7)}
            v_add_u32 {t(10)}, s0, {t(7)}
            v_cndmask_b32 {t(10)}, {t(8)}, {t(10)}, vcc
            v_cmp_gt_u32 vcc, 8, v0
            s_nop 1
            v_cndmask_b32 v{vSG}, {t(8)}, {t(10)}, vcc''')
    else: r(f'v_mov_b32 v{vSG}, {t(8)}')
    return early, r.l, []
def trig_ops():
    r=Rec(); t=lambda i:f'v{1000+i}'
    r.l.append(f's_cmp_lt_u32 s70, 4\ns_cselect_b32 s0, 0, 0x80000000')
    r(f'''s_or_b32 s0, s0, {f2u(1/2048):#x}
    v_mov_b32 {t(5)}, v{vTT}
    v_lshrrev_b32 {t(6)}, 5, v0
    v_cvt_f32_u32 {t(5)}, {t(5)}
    v_cvt_f32_u32 {t(6)}, {t(6)}
    v_mul_f32 {t(5)}, s0, {t(5)}
    v_cmp_gt_u32 s[0:1], 32, v0
    v_mul_f32 {t(6)}, {t(6)}, {t(5)}
    v_mul_f32 {t(7)}, {f2u(32.0):#x}, {t(5)}
    v_add_f32 {t(5)}, {t(5)}, {t(5)}
    v_mul_f32 {t(9)}, 0.5, {t(7)}
    v_cndmask_b32 {t(9)}, {t(7)}, {t(9)}, s[0:1]''')
    for j in range(8):
        if j: r(f'v_add_f32 {t(6)}, {t(6)}, {t(5)}')
        r(f'''v_add_f32 {t(1)}, {t(6)}, {t(7)}
        v_sub_f32 {t(2)}, {t(9) if j==0 else t(7)}, {t(6)}
        v_fract_f32 {t(0)}, {t(6)}
        v_add_f32 {t(3)}, {t(2)}, {t(7)}
        v_fract_f32 {t(1)}, {t(1)}
        v_fract_f32 {t(2)}, {t(2)}
        v_fract_f32 {t(3)}, {t(3)}''')
        for i in range(4): r(f'v_cos_f32 {t(12+2*i)}, {t(i)}\nv_sin_f32 {t(13+2*i)}, {t(i)}')
        for i in range(4): r(f'v_cvt_pk_bf16_f32 {t(20+i)}, {t(12+2*i)}, {t(13+2*i)}')
        for i in range(4): r(f'v_accvgpr_write_b32 a{224+4*j+i}, {t(20+i)}')
    TM={0:4,1:5,2:6,3:7,5:13,6:14,7:15,9:8}
    TM.update({12+i:128+i for i in range(8)}); TM.update({20+i:232+i for i in range(4)})
    return remap(r.l,TM)
def remap(L, TM):
    return [re.sub(r'v(10\d\d)\b', lambda m:'v%d'%TM[int(m.group(1))-1000], x) for x in L]
def xb2_ops(g):
    def o0(): g.vmem(f'buffer_load_ushort v{vB2}, v{vB2}, s[72:75], 0 offen','b2')
    return [o0]
def ppos(pr):
    p=pr%10
    return 131072+p*4096 if p<2 else ((p-2)>>1)*32768+(p&1)*4096
def w2_pair_ops(g, pr, base='s69', lds=None):
    if lds is None: lds=ppos(pr)
    def mk(i):
        def op():
            if i==0: g(f's_add_u32 m0, {base}, {lds}')
            g.vmem(f'buffer_load_dwordx4 v{vDM[i]}, s[64:67], s68 offen offset:{1024*i} lds', f'w{pr}')
            if i==3 and pr<13: g(f's_add_u32 s68, s68, 32768\ns_cmp_eq_u32 s68, {14*32768}\ns_cselect_b32 s68, 0, s68')
        return op
    return [mk(i) for i in range(4)]
def w2_trl(pr, regs=None, off=None):
    if regs is None:
        off=ppos(pr)
        if off>=65536 and off<0x18000: regs=('hi',);
        if off<65536: regs=vT[0:2]
        elif off>=0x18000: regs=vT[2:4]; off-=0x18000
        else: regs=[vTm0,vTm1]; off-=65536
    L=[]
    for k in range(2):
        for a_ in range(2):
            for q in range(2):
                r=8*(2*pr+k)+4*a_+2*q
                L.append(f'ds_read_b64_tr_b16 a[{r}:{r+1}], v{regs[a_]} offset:{off+2048*k+1024*q}')
    return L
vTm0,vTm1=14,15

def entry(g):
    g('''s_cmp_ge_u32 s2, 256
    s_cbranch_scc1 L_end''')
    g.stamp()
    g('''s_load_dwordx16 s[4:19], s[0:1], 0
    s_load_dwordx8 s[20:27], s[0:1], 64
    s_load_dwordx2 s[28:29], s[0:1], 96
    v_lshrrev_b32 v1, 6, v0
    s_and_b32 s30, s2, 7
    s_lshr_b32 s31, s2, 3
    v_readfirstlane_b32 s3, v1''')
    if g.opt.get('codepf',1):
        g(f'''s_getpc_b64 s[50:51]
        L_pc:
        s_lshl_b32 s53, s31, 10
        v_lshl_add_u32 v2, v0, 2, s53
        v_min_u32 v2, L_codeend-L_pc-4, v2''')
        g.vmem('global_load_dword v1, v2, s[50:51]','pf')
    if g.opt.get('p1arr',48)==216:
        g('''v_and_b32 v0, 63, v0
        s_lshl_b32 s48, s30, 1
        s_and_b32 s53, s31, 1
        s_cmp_lt_u32 s31, 4
        s_cbranch_scc1 L_dft0
        s_add_u32 s48, s48, s53
        s_lshr_b32 s49, s31, 1
        s_sub_u32 s49, s49, 2
        s_mov_b32 s100, s53''')
        r=g.opt.get('rot',1)
        if r==1: g('s_lshl_b32 s56, s53, 2\ns_add_u32 s56, s56, s49\ns_and_b32 s56, s56, 7')
        elif r==2: g('s_add_u32 s56, s53, s49\ns_and_b32 s56, s56, 1\ns_lshl_b32 s56, s56, 2')
        elif r==4: g('s_lshl_b32 s56, s53, 1\ns_add_u32 s56, s56, s49\ns_and_b32 s56, s56, 3\ns_lshl_b32 s56, s56, 1')
        if g.opt.get('xph',0): g('s_add_u32 s56, s56, s30\ns_and_b32 s56, s56, 7')
        return
    rot=g.opt.get('rot',1)
    g('''v_and_b32 v0, 63, v0
    s_lshr_b32 s48, s30, 1
    s_lshl_b32 s55, s48, 1
    s_lshl_b32 s48, s48, 2
    s_and_b32 s100, s31, 3
    s_add_u32 s48, s48, s100
    s_lshr_b32 s49, s31, 2
    s_sub_u32 s49, s49, 1
    s_and_b32 s49, s49, 7''') if g.opt.get('dftfirst',1) else g('''v_and_b32 v0, 63, v0
    s_lshr_b32 s48, s30, 1
    s_lshl_b32 s55, s48, 1
    s_lshl_b32 s48, s48, 2
    s_lshr_b32 s100, s31, 3
    s_add_u32 s48, s48, s100
    s_and_b32 s49, s31, 7''')
    if rot==1:   g('s_lshl_b32 s56, s100, 1\ns_add_u32 s56, s56, s49\ns_and_b32 s56, s56, 7')
    elif rot==2: g('s_add_u32 s56, s100, s49\ns_and_b32 s56, s56, 1\ns_lshl_b32 s56, s56, 2')
    elif rot==4: g('s_add_u32 s56, s100, s49\ns_and_b32 s56, s56, 3\ns_lshl_b32 s56, s56, 1')
    elif rot==0: g('s_mov_b32 s56, 0')
    if g.opt.get('xph',0): g('s_add_u32 s56, s56, s55\ns_and_b32 s56, s56, 7')
    g('''s_and_b32 s53, s30, 1
    s_cmp_eq_u32 s49, 7
    s_cbranch_scc0 L_mlp''')

def p1_mlp(g):
    ACC=64
    vX=[2,3,4,5]; vW=[6,7,8,9]; vB=[10,11,12,13]; vA=[18,19]
    vSA,vCA,vCP,vCB=14,15,16,17
    vB1=[56,57]; CSA=164; SEL=168; GA=144; GF=160
    WP=200; vP0,vP1,vPT,vPS,vPF=208,209,210,211,212
    rot=g.opt.get('rot',1)
    A216=g.opt.get('p1arr',48)==216
    if A216:
        g('s_and_b32 s50, s3, 1\ns_lshr_b32 s51, s3, 1\ns_and_b32 s53, s49, 1')
    else:
        g('''s_mul_i32 s54, s53, 7
        s_add_u32 s49, s49, s54
        s_and_b32 s50, s3, 1
        s_lshr_b32 s51, s3, 1''')
    g('s_lshl_b32 s63, s48, 1\ns_add_u32 s63, s63, s53')
    t1_of(g,'s52','s48','s51','s53')
    g(f'''v_lshrrev_b32 v24, 3, v0
    v_lshrrev_b32 v25, 4, v0
    v_and_b32 v28, 7, v0
    v_xor_b32 v26, v28, v25
    v_lshlrev_b32 v26, 4, v26
    v_lshl_add_u32 v26, v24, 15, v26
    s_lshl_b32 s53, s52, 10
    s_lshl_b32 s54, s50, 20
    s_add_u32 s53, s53, s54
    v_add_u32 v{vX[0]}, s53, v26
    v_xor_b32 v27, 64, v{vX[0]}
    v_add_u32 v{vX[1]}, {262144-1024}, v27
    v_add_u32 v{vX[2]}, {2*(262144-1024)}, v{vX[0]}
    v_add_u32 v{vX[3]}, {3*(262144-1024)}, v27
    v_and_b32 v26, 15, v0
    v_lshlrev_b32 v27, 2, v25
    v_xor_b32 v26, v26, v27
    v_lshlrev_b32 v26, 4, v26
    v_mul_u32_u24 v29, 3584, v25
    v_add_u32 v26, v26, v29
    s_mul_i32 s53, s3, 57344
    s_lshl_b32 s54, s49, 8
    s_add_u32 s53, s53, s54
    v_add_u32 v{vW[0]}, s53, v26
    v_add_u32 v{vW[1]}, 13312, v{vW[0]}
    v_add_u32 v{vW[2]}, {2*13312}, v{vW[0]}
    v_add_u32 v{vW[3]}, {3*13312}, v{vW[0]}
    s_lshl_b32 s55, s3, 12''')
    g.stamp('pro')
    g('s_waitcnt lgkmcnt(0)')
    g.stamp('pro')
    srd(g,32,4,2097152); srd(g,36,16,512*1792*2)
    def stage_ops(st):
        slot=st&3
        def mk(i):
            def op():
                if i==0: g(f's_lshl_b32 s57, s56, 7\ns_mul_i32 s58, s56, 229376\ns_add_u32 m0, s55, {slot*32768}')
                if i==4: g(f's_add_u32 m0, s55, {slot*32768+16384}\ns_add_u32 s56, s56, 1\ns_and_b32 s56, s56, 7')
                if i<4: g.vmem(f'buffer_load_dwordx4 v{vX[i]}, s[32:35], s57 offen offset:{1024*i} lds',f's{st}')
                else:   g.vmem(f'buffer_load_dwordx4 v{vW[i-4]}, s[36:39], s58 offen offset:{1024*(i-4)} lds',f's{st}')
            return op
        return [mk(i) for i in range(8)]
    D=g.opt.get('depth',3)
    for op in stage_ops(0): op()
    g.stamp('pro')
    for op in stage_ops(1): op()
    g.stamp('pro')
    epoch_load(g)
    g(f'''s_lshl_b32 s46, s48, 11
    v_and_b32 v24, 31, v0
    v_lshrrev_b32 v25, 5, v0
    v_bfe_u32 v26, v0, 1, 3
    v_xor_b32 v26, v26, v25
    s_lshl_b32 s53, s51, 13
    v_lshlrev_b32 v27, 7, v24
    v_add_u32 v27, s53, v27''')
    for kk in range(4):
        g(f'''v_xor_b32 v28, {2*kk}, v26
        v_lshl_add_u32 v{vB[kk]}, v28, 4, v27''')
    g(f'''v_bfe_u32 v26, v0, 2, 2
    v_lshl_add_u32 v27, v25, 3, v26
    v_lshlrev_b32 v27, 8, v27
    s_lshl_b32 s53, s50, 1
    s_add_u32 s53, s53, s51
    v_xor_b32 v26, s53, v26
    v_lshl_add_u32 v27, v26, 6, v27
    v_bfe_u32 v26, v0, 4, 1
    v_and_b32 v28, 3, v0
    v_lshlrev_b32 v30, 3, v28
    v_lshl_add_u32 v30, v26, 5, v30
    s_movk_i32 s59, 0x4000
    v_add3_u32 v{vA[0]}, v27, v30, s59
    v_xor_b32 v{vA[1]}, 64, v{vA[0]}
    v_bfe_u32 v27, v0, 2, 1
    v_xor_b32 v26, v26, v27
    v_or_b32 v26, v26, v28
    v_mov_b32 v27, 0x3f803f80
    v_cmp_eq_u32 vcc, 0, v26
    s_lshl_b32 s53, s53, 5
    v_add_u32 v26, s53, v24
    v_cndmask_b32 v{SEL+4}, 0, v27, vcc
    s_lshl_b32 s54, s49, 7
    v_add_lshl_u32 v{vB1[0]}, v26, s54, 1
    v_xor_b32 v{vB1[1]}, 64, v{vB1[0]}''')
    srd(g,40,18,1792*2)
    for t in range(2): g.vmem(f'buffer_load_ushort v{vB1[t]}, v{vB1[t]}, s[40:43], 0 offen','b1')
    if A216:
        g(f'''s_lshl_b32 s53, s49, 3
        s_lshr_b32 s54, s48, 1
        s_add_u32 s53, s53, s54
        s_lshl_b32 s53, s53, 11
        s_add_u32 s53, s53, {CS_REL+(ST_OFF-F_OFF)}
        v_lshl_add_u32 v{vCA}, v26, 4, s53
        s_lshl_b32 s54, s100, 3
        v_add_u32 v{vCP}, s54, v{vCA}
        v_xor_b32 v{vCB}, 0x200, v{vCA}''')
    else: g(f'''s_lshl_b32 s53, s49, 2
    s_lshr_b32 s54, s48, 2
    s_add_u32 s53, s53, s54
    s_lshl_b32 s53, s53, 12
    s_add_u32 s53, s53, {CS_REL+(ST_OFF-F_OFF)}
    v_lshl_add_u32 v26, v26, 5, s53
    s_lshl_b32 s54, s100, 3
    v_add_u32 v{vCP}, s54, v26
    v_lshl_add_u32 v{vCA}, v25, 4, v26
    v_xor_b32 v{vCB}, 0x400, v{vCA}''')
    g(f'''
    s_lshl_b32 s53, s63, 11
    s_lshl_b32 s54, s51, 10
    s_add_u32 s53, s53, s54
    s_add_u32 s53, s53, {ST_OFF-F_OFF}
    v_lshl_add_u32 v{vSA}, v24, 4, s53
''')
    srd(g,40,28,4<<20,add=F_OFF)
    g.stamp('pro')
    if D==3:
        for op in stage_ops(2): op()
    g.stamp('pro')
    g('s_waitcnt lgkmcnt(0)')
    early,addr,trig=p2_setup_ops(g,False)
    TM={i:176+i for i in range(24)}
    early,addr,trig=[remap(x,TM) for x in (early,addr,trig)]
    vBh=[200,201,202,203]; vAh=[204,205]
    g.miscq=[f'v_add_u32 v{h}, 0x10000, v{l}' for h,l in zip(vBh+vAh,vB+vA)]+early+addr+trig
    def fr(s_):
        b=[32,128][s_]
        return dict(A=[b,b+4],B=[b+8,b+12])
    def rd(n):
        st,kk=n>>2,n&3
        f=fr(n&1); o=(st&1)*32768; hi=(st>>1)&1
        tr=lambda t,q: f'ds_read_b64_tr_b16 v[{f["A"][t]+2*q}:{f["A"][t]+2*q+1}], v{[vA,vAh][hi][t]} offset:{o+4096*kk+1024*q}'
        bb=lambda u: f'ds_read_b128 v[{f["B"][u]}:{f["B"][u]+3}], v{[vB,vBh][hi][kk]} offset:{o+4096*u}'
        return [tr(0,0),tr(0,1),bb(0),bb(1),tr(1,0),tr(1,1)]
    ncs = 4 if A216 else {1:2,4:2,2:4,0:8}[rot]
    def setsel(st):
        if ncs==2 or A216: cond=None
        elif ncs==4: cond=f's_lshr_b32 s53, s100, 1\ns_cmp_eq_u32 s53, {st>>1}'
        else: cond=f's_cmp_eq_u32 s100, {st>>1}'
        if cond is None:
            for i in range(4): g(f'v_mov_b32 v{SEL+i}, v{SEL+4}')
        else:
            g(cond+'\ns_cselect_b32 s53, -1, 0')
            for i in range(4): g(f'v_and_b32 v{SEL+i}, s53, v{SEL+4}')
    def gather_ops():
        def mk(r,v,off):
            def o(): g.vmem(f'buffer_load_dwordx4 v[{r}:{r+3}], v{v}, s[40:43], 0 offen offset:{off} sc1','ga')
            return o
        return [mk(GA,vSA,0),mk(GA+4,vSA,512),mk(GA+8,vCA,0),mk(GA+12,vCB,0)]
    def publish():
        g(f'v_mov_b32 v{CSA+1}, s47')
        g.vmem(f'buffer_store_dwordx2 v[{CSA}:{CSA+1}], v{vCP}, s[40:43], 0 offen sc1','csp')
    WPS=g.opt.get('wpstage',1)
    WSCHED={'a':{2:[0],3:[1],5:[2,3],6:[4],7:[5,6]},'b':{3:[0],4:[1],5:[2],6:[3,4],7:[5]},'c':{5:[0,1],6:[2],7:[3,4]},'d':{1:[0],2:[1],5:[2,3],6:[4,5],7:[6]},'e':{5:[0,1],6:[2,3],7:[4,5]},'f':{4:[0],5:[1],6:[2,3],7:[4,5]},'g':{5:[0],6:[1],7:[2,3]},'h':{4:[0,1],7:[2,3,4]},'i':{4:[0,1],7:[2,3]},'j':{4:[0,1]},'k':{3:[0,1],6:[2,3],7:[4,5]},'l':{4:[0,1],6:[2],7:[3,4]},'m':{1:[(0,0)],2:[(0,1)],3:[(1,0)],4:[(1,1)],5:[2,3],6:[4,5],7:[6]},'n':{1:[(0,0)],2:[(0,1)],3:[(1,0)],4:[(1,1)],6:[2,3],7:[4,5]},'o':{1:[0],2:[1],5:[2,3],6:[4,5],7:[6,7]},'p':{5:[0,1],7:[2]},'q':{5:[0,1]},'r':{5:[0,1],6:[2]},'s':{5:[0,1],7:[2,3]},'t':{5:[0,1],6:[2],7:[3]}}[g.opt.get('wsched','o')]
    half={}
    MX=g.opt.get('mx',5)
    nw=len(set((p[0] if isinstance(p,tuple) else p) for x in WSCHED.values() for p in x))
    def enter(st):
        g.flush_side()
        g.wait(f's{st}')
        g('s_barrier')
        g.stamp('st')
        if st+D<8: g.sideq+=stage_ops(st+D)
        if st==max(ncs,g.opt.get('pubst',4)) and ncs<8: g.sideq.append(publish)
        if st in WSCHED:
            while len(g.miscq)>len(trig)+len(addr): misc(g,1)
        if st==g.opt.get('gast',7): g.sideq+=gather_ops()
        for pr in WSCHED.get(st,[]):
            if isinstance(pr,tuple):
                if pr[1]==0: half[pr[0]]=w2_pair_ops(g,pr[0])
                ops=half[pr[0]][2*pr[1]:2*pr[1]+2]
                if pr[1]==1: ops=[lambda p=pr[0],o=ops[0]:(g(f's_add_u32 m0, s69, {ppos(p)}'),o())]+ops[1:]
                g.sideq+=ops
            else: g.sideq+=w2_pair_ops(g,pr)
    nonce(g); setsel(0)
    enter(0); g.stamp(); g.stamp('pro')
    for x in rd(0): g(x)
    for n in range(32):
        st,kk=n>>2,n&3
        f=fr(n&1)
        def mf(t,u):
            d=ACC+16*(2*t+u)
            g(f'{MF} v[{d}:{d+15}], v[{f["A"][t]}:{f["A"][t]+3}], v[{f["B"][u]}:{f["B"][u]+3}], '+(f'v[{d}:{d+15}]' if n else '0'))
        nx = rd(n+1) if n<31 else []
        if kk==3:
            g('s_waitcnt lgkmcnt(0)'); mf(0,0)
            if st<7: enter(st+1)
            else: g.flush_side(); g('s_barrier')
            for x in nx[:3]: g(x)
            mf(0,1)
            for x in nx[3:]: g(x)
            mf(1,0)
        else:
            g('s_waitcnt lgkmcnt(3)'); mf(0,0)
            for x in nx[:3]: g(x)
            g('s_waitcnt lgkmcnt(5)'); mf(0,1)
            for x in nx[3:]: g(x)
            g('s_waitcnt lgkmcnt(6)'); mf(1,0)
        had=bool(g.sideq); g.side(); misc(g, 2 if had else MX)
        if st<ncs:
            g(f'v_mfma_f32_16x16x32_bf16 v[{CSA}:{CSA+3}], v[{SEL}:{SEL+3}], v[{f["A"][0]}:{f["A"][0]+3}], '+(f'v[{CSA}:{CSA+3}]' if n else '0'))
        mf(1,1)
        had=bool(g.sideq); g.side(2 if len(g.sideq)>2*(3-kk)+1 else 1); misc(g,2 if had else MX)
        if kk==3 and st+1<ncs and (st+1)%2==0: setsel(st+1)
    if ncs==8: publish()
    g.flush_side()
    g.stamp(); g.stamp('st'); g.stamp('tail')
    g.wait('ga')
    g(f'''s_mov_b32 s56, {SPIN}
    L_gchk:
    v_xor_b32 v24, s47, v{GA+3}
    v_xor_b32 v25, s47, v{GA+7}
    v_xor_b32 v26, s47, v{GA+9}
    v_xor_b32 v27, s47, v{GA+11}
    v_xor_b32 v28, s47, v{GA+13}
    v_xor_b32 v29, s47, v{GA+15}
    v_or3_b32 v24, v24, v25, v26
    v_or3_b32 v27, v27, v28, v29
    v_or_b32 v24, v24, v27
    v_cmp_ne_u32 vcc, 0, v24
    s_cbranch_vccnz L_gslow
    L_gok:''')
    keep=list(g.vm); main=g.a.l; g.a.l=[]
    g('L_gslow:\ns_sleep 8')
    for op in gather_ops(): op()
    g('s_waitcnt vmcnt(0)\ns_sub_u32 s56, s56, 1\ns_cbranch_scc0 L_gchk\ns_branch L_gok')
    g.outofline+=g.a.l; g.a.l=main; g.vm=keep
    for pr in range(nw,10): g.sideq+=w2_pair_ops(g,pr)
    a0,a1=GA+8,GA+12
    c0=-2*math.sqrt(2/math.pi)*math.log2(math.e); c1=c0*0.044715
    g(f'''v_add_f32 v{a0}, v{a0}, v{a0+2}
    v_add_f32 v{a1}, v{a1}, v{a1+2}
    v_rcp_f32 v24, v{GA+2}
    v_mov_b32 v{a0+1}, v{a0}
    v_mov_b32 v{a1+1}, v{a1}
    v_rcp_f32 v26, v{GA+6}
    v_cmp_gt_u32 vcc, 32, v0
    v_permlane32_swap_b32 v{a0}, v{a0+1}
    v_permlane32_swap_b32 v{a1}, v{a1+1}
    v_mov_b32 v50, v{GA+2}
    v_mov_b32 v54, v{GA+6}
    {'v_mov_b32' if A216 else 'v_add_f32'} v{a0+2}, v{a0}{'' if A216 else f', v{a0+1}'}
    {'v_mov_b32' if A216 else 'v_add_f32'} v{a1+2}, v{a1}{'' if A216 else f', v{a1+1}'}
    v_mov_b32 v{GA+2}, v{GA}
    v_mov_b32 v{GA+6}, v{GA+4}
    v_cvt_pk_bf16_f32 v{a0}, v{a0+2}, v{a0+2}
    v_cvt_pk_bf16_f32 v{a1}, v{a1+2}, v{a1+2}
    v_lshl_or_b32 v{a0+1}, v{vB1[0]}, 16, v{vB1[0]}
    v_lshl_or_b32 v{a1+1}, v{vB1[1]}, 16, v{vB1[1]}
    v_lshlrev_b32 v{a0+3}, 16, v{a0}
    v_lshlrev_b32 v{a1+3}, 16, v{a1}
    v_cndmask_b32 v{a0}, 0, v{a0}, vcc
    v_cndmask_b32 v{a1}, 0, v{a1}, vcc
    v_sub_f32 v{a0+2}, v{a0+2}, v{a0+3}
    v_sub_f32 v{a1+2}, v{a1+2}, v{a1+3}
    v_cndmask_b32 v{a0+1}, 0, v{a0+1}, vcc
    v_cndmask_b32 v{a1+1}, 0, v{a1+1}, vcc
    v_cvt_pk_bf16_f32 v{a0+2}, v{a0+2}, 0
    v_cvt_pk_bf16_f32 v{a1+2}, v{a1+2}, 0
    v_mov_b32 v{a0+3}, 0
    v_mov_b32 v{a1+3}, 0
    v_cndmask_b32 v{a0+2}, 0, v{a0+2}, vcc
    v_cndmask_b32 v{a1+2}, 0, v{a1+2}, vcc
    v_mov_b32 v{GA+3}, 0
    v_mov_b32 v{GA+7}, 0''')
    Aex=[a0,a1]; Bex=[GA,GA+4]
    for t in range(2):
        for u in range(2):
            d=ACC+16*(2*t+u)
            g(f'{MF} v[{d}:{d+15}], v[{Aex[t]}:{Aex[t]+3}], v[{Bex[u]}:{Bex[u]+3}], v[{d}:{d+15}]')
    g(f'''v_mul_f32 v25, v24, v24
    v_mul_f32 v27, v26, v26
    v_mul_f32 v49, {f2u(c0):#x}, v24
    v_mul_f32 v53, {f2u(c0):#x}, v26
    v_mul_f32 v25, v25, v24
    v_mul_f32 v27, v27, v26
    v_mul_f32 v48, {f2u(c1):#x}, v25
    v_mul_f32 v52, {f2u(c1):#x}, v27''')
    srd(g,36,28,7340032)
    g('''s_mul_i32 s53, s52, 112
    s_lshl_b32 s54, s49, 3
    s_add_u32 s53, s53, s54
    s_lshl_b32 s54, s50, 2
    s_add_u32 s53, s53, s54
    s_lshl_b32 s53, s53, 11
    s_lshl_b32 s54, s51, 12
    s_add_u32 s60, s53, s54
    s_xor_b32 s61, s60, 0x400
    s_xor_b32 s62, s60, 0x1000
    s_xor_b32 s63, s60, 0x1400
    v_lshlrev_b32 v56, 4, v0''')
    g.stamp()
    while len(g.miscq)>len(trig): misc(g,1)
    def trop(pr,h):
        def op():
            if h==0: g.wait(f'w{pr}')
            for x in w2_trl(pr)[4*h:4*h+4]: g(x)
        return op
    xo=xb2_ops(g)
    trs=[]
    for pr in range(4): trs+=[trop(pr,0),trop(pr,1)]
    g.sideq+=xo+trs
    NS=g.opt.get('gside',4)
    for t in range(2):
        for u in range(2):
            d=ACC+16*(2*t+u); K=[48,52][u]; RI=[50,54][u]
            for j in range(2):
                NS=g.opt.get('gside',4) if 4*t+2*u+j>=g.opt.get('gstart',0) else 0
                P=[d+8*j+2*i for i in range(4)]
                tm=[2+2*i for i in range(4)]
                o=[24,28][j]
                for i in range(4): g(f'v_pk_mul_f32 v[{tm[i]}:{tm[i]+1}], v[{P[i]}:{P[i]+1}], v[{P[i]}:{P[i]+1}]')
                for i in range(4): g(f'v_pk_fma_f32 v[{tm[i]}:{tm[i]+1}], v[{tm[i]}:{tm[i]+1}], v[{K}:{K+1}], v[{K}:{K+1}] op_sel:[0,0,1] op_sel_hi:[1,0,1]')
                if NS>=1: g.side()
                for i in range(4): g(f'v_pk_mul_f32 v[{tm[i]}:{tm[i]+1}], v[{tm[i]}:{tm[i]+1}], v[{P[i]}:{P[i]+1}]')
                for i in range(8):
                    g(f'v_exp_f32 v{2+i}, v{2+i}')
                    if i==3 and NS>=4: g.side()
                if NS>=2: g.side()
                for i in range(4): g(f'v_pk_fma_f32 v[{tm[i]}:{tm[i]+1}], v[{tm[i]}:{tm[i]+1}], v[{RI}:{RI+1}], v[{RI}:{RI+1}] op_sel:[0,0,0] op_sel_hi:[1,0,0]')
                for i in range(8):
                    g(f'v_rcp_f32 v{2+i}, v{2+i}')
                    if i==3 and NS>=5: g.side()
                if NS>=3: g.side()
                for i in range(4): g(f'v_pk_mul_f32 v[{tm[i]}:{tm[i]+1}], v[{tm[i]}:{tm[i]+1}], v[{P[i]}:{P[i]+1}]')
                for i in range(4): g(f'v_cvt_pk_bf16_f32 v{o+i}, v{tm[i]}, v{tm[i]+1}')
                g.vmem(f'buffer_store_dwordx4 v[{o}:{o+3}], v56, s[36:39], s{60+2*t+u} offen offset:{2048*j} {"" if g.opt.get("hplain") else "sc1"}','st')
    g.stamp()
    print('after GELU: side',len(g.sideq),'misc',len(g.miscq),file=sys.stderr)
    g.stamp('tail')
    g.flush_side()
    g(f'v_add_u32 v{vTm0}, 0x10000, v{vT[0]}\nv_add_u32 v{vTm1}, 0x10000, v{vT[1]}')
    g('s_waitcnt lgkmcnt(0)')
    NB=g.opt.get('nbefore',0)
    for pr in range(10,10+NB):
        for op in w2_pair_ops(g,pr): op()
    for pr in range(4,4+g.opt.get('trbefore',4)):
        g.wait(f'w{pr}')
        for x in w2_trl(pr): g(x)
    g(f'v_mov_b32 v2, s47')
    g.stamp('tail')
    g.wait('st')
    g.stamp('tail')
    g('s_barrier')
    g.vmem(f'buffer_store_dword v2, v{vSG}, s[40:43], 0 offen {"" if g.opt.get("fplain") else "sc1"}','flag')
    g.stamp('tail')
    for pr in range(10+NB,14):
        for op in w2_pair_ops(g,pr): op()
    for pr in range(4+g.opt.get('trbefore',4),14):
        g.wait(f'w{pr}')
        for x in w2_trl(pr): g(x)
    g('v_not_b32 v3, v2\ns_branch L_p2')

def p1_dft(g):
    RAW=64
    vBr0=56; vXL=[57,18,19,2]; vSP=3; vBd=[4,5,6,7]; vWe,vWo=8,9; vFA=[10,11,12,13]; vFB=[14,15,16,17]
    CC=[192,196]; SS=[200,204]; NS=[208,212]
    RC=[216,218,220,222]
    if g.opt.get('p1arr',48)==216:
        g('L_dft0:\ns_lshr_b32 s100, s31, 1\ns_add_u32 s48, s48, s100\ns_lshl_b32 s100, s100, 1')
    g('''s_mov_b32 s49, s53
    s_lshr_b32 s51, s3, 1''')
    t1_of(g,'s52','s48','s51','s53')
    g(f'''s_and_b32 s50, s3, 1
    s_lshl_b32 s53, s50, 5
    s_add_u32 s53, s53, s52
    s_lshl_b32 s53, s53, 10
    v_lshrrev_b32 v24, 3, v0
    v_lshrrev_b32 v25, 4, v0
    v_and_b32 v26, 7, v0
    v_lshlrev_b32 v27, 4, v26
    v_lshl_add_u32 v27, v24, 16, v27
    s_lshl_b32 s54, s100, 7
    v_add3_u32 v{vXL[0]}, v27, s53, 0
    v_add_u32 v{vXL[0]}, s54, v{vXL[0]}
    v_xor_b32 v{vXL[1]}, 0x80, v{vXL[0]}
    v_xor_b32 v{vXL[2]}, 0x100, v{vXL[0]}
    v_xor_b32 v{vXL[3]}, 0x180, v{vXL[0]}
    s_waitcnt lgkmcnt(0)''')
    srd(g,32,4,2097152)
    def xops(gi):
        def mk(j):
            def op():
                if j==0: g(f's_mov_b32 s58, {gi*524288}')
                r=RAW+32*gi+4*j
                g.vmem(f'buffer_load_dwordx4 v[{r}:{r+3}], v{vXL[j&3]}, s[32:35], s58 offen offset:{512*(j>>2)}',f'x{gi}')
            return op
        return [mk(j) for j in range(8)]
    DO=g.opt.get('dord','d')
    for gi in range(1 if DO in 'de' else 2):
        for op in xops(gi): op()
    if DO not in 'de': g('@@SPLIT@@')
    epoch_load(g)
    srd(g,36,10,524288); srd(g,16,12,524288); srd(g,40,28,4<<20,add=F_OFF)
    g(f'''s_lshl_b32 s46, s48, 3
    s_lshl_b32 s53, s49, 2
    s_add_u32 s46, s46, s53
    s_add_u32 s46, s46, {FU}
    v_xor_b32 v26, v26, v25
    v_lshlrev_b32 v26, 4, v26
    v_lshl_add_u32 v27, v24, 11, v26
    s_lshl_b32 s53, s3, 16
    s_lshl_b32 s54, s49, 10
    s_add_u32 s53, s53, s54
    v_add_u32 v{vBd[0]}, s53, v27
    v_xor_b32 v28, 64, v{vBd[0]}
    v_add_u32 v{vBd[1]}, {16384-1024}, v28
    v_add_u32 v{vBd[2]}, {2*(16384-1024)}, v{vBd[0]}
    v_add_u32 v{vBd[3]}, {3*(16384-1024)}, v28
    v_add_u32 v28, 0x40000, v{vBd[0]}
    v_cmp_gt_u32 vcc, 1024, v{vBd[0]}
    v_lshl_add_u32 v27, v24, 7, v26
    s_lshl_b32 s53, s3, 12
    v_cndmask_b32 v{vBr0}, v{vBd[0]}, v28, vcc
    v_add_u32 v{vWe}, s53, v27
    v_xor_b32 v{vWo}, 64, v{vWe}
    s_mul_i32 s55, s3, 24576
    s_add_u32 s55, s55, 65536
    s_lshl_b32 s53, s48, 1
    s_add_u32 s53, s53, s49
    s_lshl_b32 s53, s53, 11
    s_lshl_b32 s54, s51, 10
    s_add_u32 s53, s53, s54
    s_lshl_b32 s54, s50, 4
    s_add_u32 s53, s53, s54
    s_add_u32 s53, s53, {ST_OFF-F_OFF}
    v_lshl_add_u32 v{vSP}, v24, 5, s53''')
    def bops(st):
        slot=st&1
        def mk(i):
            def op():
                if i==0: g(f's_xor_b32 s57, s100, {st}\ns_lshl_b32 s57, s57, 7\ns_add_u32 m0, s55, {slot*8192}')
                if i==4: g(f's_add_u32 m0, s55, {slot*8192+4096}')
                if i<4: g.vmem(f'buffer_load_dwordx4 v{vBr0 if i==0 else vBd[i]}, s[36:39], s57 offen offset:{1024*i} lds',f'B{st}')
                else:   g.vmem(f'buffer_load_dwordx4 v{vBd[i-4]}, s[16:19], s57 offen offset:{1024*(i-4)} lds',f'B{st}')
            return op
        return [mk(i) for i in range(8)]
    if DO in 'de':
        for op in bops(0): op()
        g('@@SPLIT@@')
    g(f'''v_and_b32 v24, 31, v0
    v_lshrrev_b32 v25, 5, v0
    v_bfe_u32 v26, v0, 1, 3
    v_xor_b32 v26, v26, v25
    v_lshlrev_b32 v27, 7, v24''')
    for kk in range(4):
        g(f'''v_xor_b32 v28, {2*kk}, v26
        v_lshl_add_u32 v{vFA[kk]}, v28, 4, v27
        v_add_u32 v{vFB[kk]}, s55, v{vFA[kk]}''')
    g(f'''v_cvt_f32_u32 v26, v24
    v_mul_f32 v26, {f2u(1/32):#x}, v26
    v_cvt_f32_u32 v27, v25
    v_mul_f32 v27, 4.0, v27
    v_mul_f32 v27, v27, v26
    v_mul_f32 v28, {f2u(5.0):#x}, v26''')
    for j in range(2):
        for i2 in range(4):
            for e in range(2):
                i=2*i2+e
                if not (j==0 and i==0):
                    g(f'v_add_f32 v27, v27, v{28 if i%4==0 else 26}')
                g(f'v_fract_f32 v29, v27\nv_cos_f32 v{20+e}, v29\nv_sin_f32 v{22+e}, v29')
            g(f'v_cvt_pk_bf16_f32 v{CC[j]+i2}, v20, v21\nv_cvt_pk_bf16_f32 v{SS[j]+i2}, v22, v23\nv_xor_b32 v{NS[j]+i2}, 0x80008000, v{SS[j]+i2}')
    early,addr,trig=p2_setup_ops(g,True)
    TM={0:20,1:21,2:22,3:23,4:24,5:25,6:26,7:27,8:28,9:29,10:30,12:2,13:3,14:8,15:9,16:31,17:57,18:240,19:241,20:242,21:243,22:244,23:245}
    early,addr,trig=[remap(x,TM) for x in (early,addr,trig)]
    g(f'''s_mov_b32 s59, 0x3f803f80
    s_movk_i32 s60, 0x3f80
    s_mov_b32 s61, 0x3f800000
    s_lshl_b32 s53, s49, 15
    s_or_b32 s62, s60, s53
    s_lshl_b32 s63, s62, 16
    s_cmp_eq_u32 s49, 0
    s_cselect_b32 s101, 2.0, 0
    s_waitcnt lgkmcnt(0)''')
    nonce(g)
    eps=f'{f2u(1e-5):#x}'
    chainq=[]
    def ch(n=1):
        for _ in range(n):
            if chainq: chainq.pop(0)()
    def stats(gi):
        R=RAW+32*gi; S=[224,228][gi&1]
        g.wait(f'x{gi}')
        if gi==0: g.stamp()
        for i in range(32):
            if i<2: g(f'v_dot2_f32_bf16 v{S+i}, v{R+i}, s59, 0\nv_dot2_f32_bf16 v{S+2+i}, v{R+i}, v{R+i}, 0')
            else:   g(f'v_dot2c_f32_bf16 v{S+(i&1)}, s59, v{R+i}\nv_dot2c_f32_bf16 v{S+2+(i&1)}, v{R+i}, v{R+i}')
            if i%4==3: g.side()
            if i>=2: ch(2)
        while chainq: ch()
        o=232+4*(gi&1); r1=RC[gi]; a,b,c,d=20,21,22,23
        lines=f'''v_add_f32 v{S}, v{S}, v{S+1}
        v_add_f32 v{S+2}, v{S+2}, v{S+3}
        v_add_f32_dpp v{S}, v{S}, v{S} quad_perm:[1,0,3,2] row_mask:0xf bank_mask:0xf
        v_add_f32_dpp v{S+2}, v{S+2}, v{S+2} quad_perm:[1,0,3,2] row_mask:0xf bank_mask:0xf
        v_add_f32_dpp v{S}, v{S}, v{S} quad_perm:[2,3,0,1] row_mask:0xf bank_mask:0xf
        v_add_f32_dpp v{S+2}, v{S+2}, v{S+2} quad_perm:[2,3,0,1] row_mask:0xf bank_mask:0xf
        v_add_f32_dpp v{S}, v{S}, v{S} row_half_mirror row_mask:0xf bank_mask:0xf
        v_add_f32_dpp v{S+2}, v{S+2}, v{S+2} row_half_mirror row_mask:0xf bank_mask:0xf
        v_mul_f32 v{a}, {f2u(-1/512):#x}, v{S}
        v_mul_f32 v{b}, {f2u(1/512):#x}, v{S+2}
        v_fma_f32 v{b}, -v{a}, v{a}, v{b}
        v_cvt_pk_bf16_f32 v{d}, v{a}, v{a}
        v_max_f32 v{b}, 0, v{b}
        v_lshlrev_b32 v{d}, 16, v{d}
        v_cvt_pk_bf16_f32 v{c}, 0, v{b}
        v_sub_f32 v{d}, v{a}, v{d}
        v_add_f32 v{c}, {eps}, v{c}
        v_cvt_pk_bf16_f32 v{o}, v{a}, v{d}
        v_cvt_pk_bf16_f32 v{c}, 0, v{c}
        v_mul_f32 v{r1+1}, s101, v{a}
        v_sqrt_f32 v{c}, v{c}
        v_mov_b32 v{o+3}, s47
        v_cvt_pk_bf16_f32 v{c}, 0, v{c}
        v_rcp_f32 v{r1}, v{c}
        v_mul_f32 v{b}, v{b}, v{r1}
        v_mul_f32 v{b}, v{b}, v{r1}
        v_cvt_pk_bf16_f32 v{b}, 0, v{b}
        v_add_f32 v{b}, {eps}, v{b}
        v_cvt_pk_bf16_f32 v{b}, 0, v{b}
        v_sqrt_f32 v{b}, v{b}
        v_cvt_pk_bf16_f32 v{b}, 0, v{b}
        v_mul_f32 v{o+2}, v{b}, v{c}
        v_cvt_pk_bf16_f32 v{b}, 0, v{o+2}
        v_sub_f32 v{b}, v{o+2}, v{b}
        v_cvt_pk_bf16_f32 v{o+1}, v{o+2}, v{b}'''.split('\n')
        for ln in lines: chainq.append(lambda ln=ln: g(ln))
        chainq.append(lambda: g.vmem(f'buffer_store_dwordx4 v[{o}:{o+3}], v{vSP}, s[40:43], 0 offen offset:{256*gi} sc1','sp'))
    def bfly(gi):
        R=RAW+32*gi; r1=RC[gi]
        for j in range(4):
            o=[24,28][j&1]; T=[40,48][j&1]
            for i in range(4):
                a_=R+4*j+i; t=T+2*i
                g(f'v_dot2_f32_bf16 v{t}, v{a_}, s60, v{r1+1}\nv_dot2_f32_bf16 v{t+1}, v{a_}, s61, v{r1+1}'); ch()
            g.side()
            for i in range(4):
                b_=R+4*(j+4)+i; t=T+2*i
                g(f'v_dot2c_f32_bf16 v{t}, s62, v{b_}\nv_dot2c_f32_bf16 v{t+1}, s63, v{b_}'); ch()
            ch(2)
            for i in range(4):
                t=T+2*i
                g(f'v_pk_mul_f32 v[{t}:{t+1}], v[{t}:{t+1}], v[{r1}:{r1+1}] op_sel_hi:[1,0]')
            g.side()
            for i in range(4):
                t=T+2*i
                g(f'v_cvt_pk_bf16_f32 v{o+i}, v{t}, v{t+1}')
            g(f'ds_write_b128 v{vWo if gi&1 else vWe}, v[{o}:{o+3}] offset:{16384*j+1024*gi}')
        while chainq: ch()
    W0=16384
    wl={0:W0,1:W0+4096,2:W0,3:W0+4096,4:W0,5:W0+4096,6:W0,7:W0+4096,8:0,9:4096,10:W0,11:W0+4096,12:8192,13:8192+4096}
    wd=lambda pr: w2_pair_ops(g,pr,'s55',wl[pr])
    order=g.opt.get('dord','d')
    plan={'a':[[],xops(2),xops(3),bops(0),bops(1),[],'w',[]],
          'b':[xops(2),xops(3),bops(0),bops(1),[],[],'w',[]],
          'c':[[],xops(2)+xops(3),bops(0),bops(1),[],'w',[],[]],
          'd':[xops(2),xops(3),[],bops(1),[],[],'w',[]],
          'e':[[],xops(2),xops(3),bops(1),[],[],'w',[]]}[order]
    if order in 'de':
        for op in xops(1): op()
    seq=((stats,0),(stats,1),(bfly,0),(stats,2),(bfly,1),(stats,3),(bfly,2),(bfly,3))
    if g.opt.get('sfirst'):
        seq=((stats,0),(stats,1),(stats,2),(stats,3),(bfly,0),(bfly,1),(bfly,2),(bfly,3))
        plan=[xops(2),xops(3),bops(0),[],bops(1),[],'w',[]] if order not in 'de' else [xops(2),xops(3),[],bops(1),[],[],'w',[]]
    for k,(fn,gi) in enumerate(seq):
        if plan[k]=='w':
            for x in early: g(x)
            g.sideq+=wd(0)+wd(1)
        else: g.sideq+=plan[k]
        if fn is stats:
            while any(1 for op in plan[max(k-2,0)] if False): pass
        fn(gi); g.stamp('dst')
        if order=='c' and k==1: g.flush_side()
    g.flush_side()
    g('s_waitcnt lgkmcnt(0)\ns_barrier')
    g.stamp(); g.stamp('dst')
    ACC=64
    def fr(s_):
        b=[32,216][s_]
        return dict(A=[b,b+4,b+8,b+12],B=[b+16,b+20])
    def rd(n):
        st,kk=n>>2,n&3; f=fr(n&1)
        bb=lambda ab: f'ds_read_b128 v[{f["B"][ab]}:{f["B"][ab]+3}], v{vFB[kk]} offset:{(st&1)*8192+4096*ab}'
        aa=lambda ti: f'ds_read_b128 v[{f["A"][ti]}:{f["A"][ti]+3}], v{vFA[kk]} offset:{st*16384+4096*ti}'
        return [aa(0),bb(0),bb(1),aa(1),aa(2),aa(3)]
    g.wait('B0')
    for x in rd(0): g(x)
    vTB=[18,19]
    nT=[i for i,x in enumerate(addr) if f'v_add_u32 v{vT[3]}' in x][0]+1
    for x in addr[8:nT]+['s_sub_u32 s0, s55, s69',f'v_add_u32 v18, s0, v{vT[0]}',f'v_add_u32 v19, s0, v{vT[1]}']: g(x)
    g.miscq=addr[:8]+addr[nT:]+trig
    TRS={0:0,1:1,5:2,6:3,9:4,10:5,13:6,14:7}
    DMS={1:[2],2:[3],6:[4],7:[5],10:[6],11:[7,8],12:[9],14:[10],15:[11]}
    for n in range(16):
        f=fr(n&1)
        def mf(ti,ab):
            d=ACC+32*ti+16*ab
            g(f'{MF} v[{d}:{d+15}], v[{f["A"][ti]}:{f["A"][ti]+3}], v[{f["B"][ab]}:{f["B"][ab]+3}], '+(f'v[{d}:{d+15}]' if n else '0'))
        nx=rd(n+1) if n<15 else []
        g('s_waitcnt lgkmcnt(0)'); mf(0,0)
        if n==3: g.sideq+=bops(2)
        if n==7: g.sideq+=bops(3)
        for pr in DMS.get(n,[]): g.sideq+=wd(pr)
        if (n+1)%4==0 and n<15: g.wait(f'B{(n+1)>>2}')
        for x in nx[:3]: g(x)
        mf(0,1)
        for x in nx[3:]: g(x)
        mf(1,0)
        trq=[]
        if n in TRS:
            assert not any(True for op in g.sideq if getattr(op,'pr',None)==TRS[n])
            g.wait(f'w{TRS[n]}'); trq=w2_trl(TRS[n],vTB,wl[TRS[n]])
        for k,(ti,ab) in enumerate(((1,1),(2,0),(2,1),(3,0),(3,1))):
            if trq and k>=3:
                for x in trq[:4]: g(x)
                trq=trq[4:]
            else:
                had=bool(g.sideq); g.side(); misc(g,2 if had else 4)
            mf(ti,ab)
        had=bool(g.sideq); g.side(); misc(g,2 if had else 4)
    g.stamp(); g.stamp('s1')
    g.sideq+=wd(12)+wd(13)
    def trop(pr):
        def op():
            g.wait(f'w{pr}')
            for x in w2_trl(pr,vTB,wl[pr])[:4]: g(x)
        def op2():
            for x in w2_trl(pr,vTB,wl[pr])[4:]: g(x)
        return [op,op2]
    for pr in range(8,12): g.sideq+=trop(pr)
    g.sideq+=[lambda: [misc(g,1) for _ in range(len(g.miscq)-len(trig))]]
    def zc(ti):
        Z=[32,216][ti&1]; L=[]
        for ab in range(2):
            d=ACC+32*ti+16*ab
            for i in range(8): L.append(f'v_cvt_pk_bf16_f32 v{Z+8*ab+i}, v{d+2*i}, v{d+2*i+1}')
        return L
    for x in zc(0): g(x)
    for ti in range(4):
        Z=[32,216][ti&1]
        za=[Z,Z+4]; zb=[Z+8,Z+12]; ur=ACC+32*ti; ui=ur+16
        nxt=zc(ti+1) if ti<3 else []
        seq=[(ur,CC[0],za[0],1),(ui,CC[0],zb[0],1),(ur,CC[1],za[1],0),(ui,CC[1],zb[1],0),(ur,SS[0],zb[0],0),(ui,NS[0],za[0],0),(ur,SS[1],zb[1],0),(ui,NS[1],za[1],0)]
        for n,(d,am,bm,first) in enumerate(seq):
            g(f'{MF} v[{d}:{d+15}], v[{am}:{am+3}], v[{bm}:{bm+3}], '+('0' if first else f'v[{d}:{d+15}]'))
            for x in nxt[2*n:2*n+2]: g(x)
            had=bool(g.sideq); g.side(); misc(g,(0 if had else 2)+(0 if nxt else 2))
    g.stamp('s1')
    g.flush_side(); misc(g,9999)
    g.stamp('s1')
    for op in xb2_ops(g): op()
    for pr in (12,13):
        for op in trop(pr): op()
    g.stamp('s1')
    srd(g,36,28,2097152,add=U_OFF)
    g(f'''v_and_b32 v24, 31, v0
    v_lshrrev_b32 v25, 5, v0
    v_lshlrev_b32 v24, 4, v24
    v_lshl_add_u32 v24, v25, 18, v24
    s_lshl_b32 s53, s3, 9
    v_add_u32 v24, s53, v24
    s_lshl_b32 s53, s48, 1
    s_add_u32 s53, s53, s49
    s_lshl_b32 s53, s53, 11''')
    for r in range(16):
        o=32+4*(r&3)
        for ti in range(4): g(f'v_cvt_pk_bf16_f32 v{o+ti}, v{ACC+32*ti+r}, v{ACC+32*ti+16+r}')
        g(f's_add_u32 s54, s53, {(8*(r>>2)+(r&3))*65536}')
        g.vmem(f'buffer_store_dwordx4 v[{o}:{o+3}], v24, s[36:39], s54 offen sc1','st')
    g.stamp(); g.stamp('s1')
    g('v_mov_b32 v2, s47')
    g.vmem(f'buffer_load_dword v3, v{vPL}, s[40:43], 0 offen sc1','poll')
    g.wait('poll')
    g.stamp('s1')
    g('s_waitcnt lgkmcnt(0)\ns_barrier')
    g(f'buffer_store_dword v2, v{vSG}, s[40:43], 0 offen sc1')

def p2(g):
    ACC=64; ACS=128; UF=144
    HR=[16+8*i for i in range(5)]+[192+8*i for i in range(5)]
    NH=len(HR)
    g.stamp(); g.stamp('tail')
    srd(g,36,28,7340032); srd(g,32,28,2097152,add=U_OFF); srd(g,72,24,2097152)
    g(f'''s_sub_u32 s62, 32, s71
    s_and_b32 s62, s62, 31
    s_cmp_lt_u32 s70, 4
    s_cselect_b32 s62, s71, s62
    s_lshl_b32 s62, s62, 16
    v_mov_b32 v185, 0
    v_mov_b32 v186, 0
    v_mov_b32 v187, 0
    v_mov_b32 v188, 0x3f80
    v_cmp_gt_u32 vcc, 32, v0
    v_mov_b32 v189, 0
    v_mov_b32 v190, 0
    v_cndmask_b32 v188, 0, v188, vcc
    v_mov_b32 v191, 0
    s_mul_i32 s57, s71, 112
    s_mul_i32 s53, s3, 28
    s_add_u32 s57, s57, s53
    s_lshl_b32 s57, s57, 11
    s_add_u32 s59, s57, {28*2048}
    s_lshl_b32 s53, s44, 12
    s_add_u32 s58, s57, s53
    v_mov_b32 v2, s47
    s_mov_b32 s56, {SPIN}''')
    for d in (1,2,3):
        g(f's_add_u32 s53, s69, {d*32768}\nv_lshl_add_u32 v{9+d}, v0, 4, s53')
    g(f'v_mov_b32 v9, v{vFL}')
    g(f'''v_mov_b32 v184, v{vB2}
    v_cmp_ne_u32 vcc, s47, v3
    s_cbranch_vccz L_go
    L_poll:
    buffer_load_dword v3, v{vPL}, s[40:43], 0 offen sc1
    s_waitcnt vmcnt(0)
    v_cmp_ne_u32 vcc, s47, v3
    s_cbranch_vccz L_go
    s_sleep {g.opt.get('sleep',4)}
    s_sub_u32 s56, s56, 1
    s_cbranch_scc0 L_poll
    L_go:''')
    g.vm=['old']*30
    g.stamp(); g.stamp('tail')
    hidx=[0]
    def hload():
        ks=hidx[0]; r=HR[ks%NH]
        g.vmem(f'buffer_load_dwordx4 v[{r}:{r+3}], v{vH0}, s[36:39], s58 offen offset:{2048*(ks&1)} {g.opt.get("hld","sc1").replace("none","")}',f'h{ks}')
        g.vmem(f'buffer_load_dwordx4 v[{r+4}:{r+7}], v{vH1}, s[36:39], s58 offen offset:{2048*(ks&1)} {g.opt.get("hld","sc1").replace("none","")}',f'h{ks}')
        if ks&1 and ks<27: g('s_add_u32 s58, s58, 4096\ns_cmp_eq_u32 s58, s59\ns_cselect_b32 s58, s57, s58')
        hidx[0]+=1
    HD=g.opt.get('hdepth',8)
    g(f's_waitcnt lgkmcnt(0)\ns_add_u32 m0, s69, 4096\ns_mov_b32 s55, 0x80000')
    for i in range(HD): hload()
    g(f'{MF} v[{ACC}:{ACC+15}], v[184:187], v[188:191], 0')
    XA=[236,237,238,239]
    xa=Rec()
    xa(f'''v_and_b32 v236, 31, v0
    v_lshrrev_b32 v237, 5, v0
    v_lshlrev_b32 v237, 3, v237
    v_lshl_add_u32 v237, v236, 6, v237
    v_bfe_u32 v236, v0, 2, 2
    v_lshl_add_u32 v236, v236, 4, v237
    s_add_u32 s0, s69, 4096
    v_add_u32 v236, s0, v236
    v_xor_b32 v237, 16, v236
    v_xor_b32 v238, 32, v236
    v_xor_b32 v239, 48, v236
    v_lshl_add_u32 v240, v0, 4, s0''')
    KF=g.opt.get('kflag',9)
    NL=g.opt.get('nlast',3)
    def mf(ks,a_,b):
        r=HR[ks%NH]; d=ACC+16*(a_+2*b)
        c='0' if (ks==0 and (a_ or b)) else f'v[{d}:{d+15}]'
        g(f'{MF} v[{d}:{d+15}], a[{8*ks+4*a_}:{8*ks+4*a_+3}], v[{r+4*b}:{r+4*b+3}], {c}')
    checked=False
    g.miscq=xa.l+trig_ops()
    for ks in range(28-NL):
        g.wait(f'h{ks}')
        if ks==0:
            g.stamp()
        for b in range(2):
            for a_ in range(2):
                mf(ks,a_,b)
                if not (a_==1 and b==1): misc(g,g.opt.get('p2misc',4))
            if b==0 and g.sideq: g.side()
        if hidx[0]<28: hload()
        elif g.sideq: g.side()
        if ks==g.opt.get('kx',2):
            g.vmem(f'buffer_load_dwordx4 v{vXO}, s[76:79], 0 offen lds','xl')
            g('s_add_u32 m0, m0, 1024')
            g.vmem(f'buffer_load_dwordx4 v{vXO}, s[76:79], s55 offen lds','xl')
        if ks==22:
            assert 'xl' not in g.vm
            for q in range(4): g(f'ds_read_b64 v[{XR+2*q}:{XR+2*q+1}], v{XA[q]}')
        if ks==KF: g.vmem(f'buffer_load_dword v176, v9, s[40:43], 0 offen sc1','fl')
        if 'fl' not in g.vm and ks>KF and not checked:
            checked=True
            g(f'''L_chk:
            v_cmp_ne_u32 vcc, s47, v176
            s_cbranch_vccnz L_uslow
            L_allset:''')
            ool(g,'''L_uslow:
            s_sleep 4
            buffer_load_dword v176, v9, s[40:43], 0 offen sc1
            s_waitcnt vmcnt(0)
            s_sub_u32 s56, s56, 1
            s_cbranch_scc0 L_chk
            s_branch L_allset''')
            def mku(j):
                def op():
                    g(f's_add_u32 s53, s62, {8192*j}')
                    g.vmem(f'buffer_load_dwordx4 v[{UF+4*j}:{UF+4*j+3}], v{vU}, s[32:35], s53 offen sc1','u')
                return op
            g.sideq+=[mku(j) for j in range(8)]
    assert checked and not g.miscq
    g.flush_side()
    XF=176
    def wr(d):
        for q in range(4):
            r=ACC+16*d+4*q
            g(f'ds_write_b128 v{9+d}, v[{r}:{r+3}] offset:{1024*q}')
    for n,d in enumerate((3,2,1,0)):
        for ks in range(28-NL,28):
            g.wait(f'h{ks}')
            mf(ks,d&1,d>>1)
        if n==0: g('s_waitcnt lgkmcnt(0)')
        if n==1:
            for i in range(4): g(f'v_lshlrev_b32 v{XF+2*i}, 16, v{XR+i}\nv_and_b32 v{XF+2*i+1}, 0xffff0000, v{XR+i}')
            wr(3)
        if n==2:
            for i in range(4,8): g(f'v_lshlrev_b32 v{XF+2*i}, 16, v{XR+i}\nv_and_b32 v{XF+2*i+1}, 0xffff0000, v{XR+i}')
            wr(2)
    g.stamp()
    g(f's_mov_b32 s60, {f2u(-math.log2(math.e)):#x}\ns_mov_b32 s61, s60\ns_mov_b32 s62, 1.0\ns_mov_b32 s63, 1.0')
    def smm(J):
        for j in J:
            g(f'{MF} v[{ACS}:{ACS+15}], v[{UF+4*j}:{UF+4*j+3}], a[{224+4*j}:{227+4*j}], '+('0' if j==0 else f'v[{ACS}:{ACS+15}]'))
    wr(1)
    g.waitall()
    SB=g.opt.get('sbar',3)
    smm(range(SB))
    for d in (1,2,3): g(f'v_xor_b32 v{9+d}, {d*8192}, v{9+d}')
    g('s_waitcnt lgkmcnt(0)\ns_barrier')
    rds=[f'ds_read_b128 v[{[192,208,16][d]+4*q}:{[192,208,16][d]+4*q+3}], v{10+d} offset:{1024*q}' for q in range(4) for d in range(3)]
    for j in range(SB,8):
        smm([j])
        for x in rds[:4]: g(x)
        del rds[:4]
    for x in rds: g(x)
    g('''s_lshl_b32 s1, s2, 2
    s_add_u32 s1, s1, s3
    s_cmp_lg_u32 s1, 803
    s_cbranch_scc1 L_noep0
    v_lshrrev_b32 v4, 2, v0
    v_and_b32 v5, 3, v0
    v_lshl_add_u32 v4, v4, 3, v5
    v_lshlrev_b32 v4, 8, v4
    buffer_load_dwordx4 v[6:9], v4, s[40:43], 0 offen sc1
    L_noep0:''')
    T=80
    for hf in range(2):
        g(f's_waitcnt lgkmcnt({6-6*hf})')
        I=range(4*hf,4*hf+4)
        for i in I: g(f'v_pk_add_f32 v[{192+2*i}:{193+2*i}], v[{192+2*i}:{193+2*i}], v[{208+2*i}:{209+2*i}]')
        for i in I: g(f'v_pk_add_f32 v[{ACC+2*i}:{ACC+2*i+1}], v[{ACC+2*i}:{ACC+2*i+1}], v[{16+2*i}:{17+2*i}]')
        for i in I: g(f'v_pk_add_f32 v[{ACC+2*i}:{ACC+2*i+1}], v[{ACC+2*i}:{ACC+2*i+1}], v[{192+2*i}:{193+2*i}]')
        for i in I: g(f'v_pk_mul_f32 v[{T+2*i}:{T+2*i+1}], v[{ACC+2*i}:{ACC+2*i+1}], s[60:61]')
        for i in I: g(f'v_exp_f32 v{T+2*i}, v{T+2*i}\nv_exp_f32 v{T+2*i+1}, v{T+2*i+1}')
        for i in I: g(f'v_pk_add_f32 v[{T+2*i}:{T+2*i+1}], v[{T+2*i}:{T+2*i+1}], s[62:63]')
        for i in I: g(f'v_rcp_f32 v{T+2*i}, v{T+2*i}\nv_rcp_f32 v{T+2*i+1}, v{T+2*i+1}')
        sp=lambda r: ACS+4*(2*(r>>3)+(r&1))+2*((r>>2)&1)+((r>>1)&1)
        for i in I:
            for r in (2*i,2*i+1): g(f'v_mul_f32 v{ACC+r}, v{ACC+r}, v{sp(r)}')
        for i in I: g(f'v_pk_fma_f32 v[{T+2*i}:{T+2*i+1}], v[{T+2*i}:{T+2*i+1}], v[{ACC+2*i}:{ACC+2*i+1}], v[{XF+2*i}:{XF+2*i+1}]')
        for i in I: g(f'v_cvt_pk_bf16_f32 v{96+i}, v{T+2*i}, v{T+2*i+1}')
        for q in (2*hf,2*hf+1): g(f'ds_write_b64 v{XA[q]}, v[{96+2*q}:{97+2*q}]')
    g('s_waitcnt lgkmcnt(0)\nds_read_b128 v[104:107], v240\nds_read_b128 v[108:111], v240 offset:1024\ns_waitcnt lgkmcnt(1)')
    g(f'buffer_store_dwordx4 v[104:107], v{vXO}, s[72:75], 0 offen {g.opt.get("outfl","")}\ns_waitcnt lgkmcnt(0)\nbuffer_store_dwordx4 v[108:111], v{vXO}, s[72:75], s55 offen {g.opt.get("outfl","")}')
    g(f'''s_cmp_lg_u32 s1, 803
    s_cbranch_scc1 L_noep
    s_waitcnt vmcnt(2)
    L_ep:
    v_xor_b32 v6, s47, v6
    v_xor_b32 v7, s47, v7
    v_xor_b32 v8, s47, v8
    v_xor_b32 v9, s47, v9
    v_or3_b32 v6, v6, v7, v8
    v_or_b32 v6, v6, v9
    v_cmp_ne_u32 vcc, 0, v6
    s_cbranch_vccz L_epok
    s_sleep 8
    buffer_load_dwordx4 v[6:9], v4, s[40:43], 0 offen sc1
    s_waitcnt vmcnt(0)
    s_sub_u32 s56, s56, 1
    s_cbranch_scc0 L_ep
    L_epok:
    v_mov_b32 v3, {EPO}
    s_mov_b64 exec, 1
    buffer_store_dword v2, v3, s[40:43], 0 offen sc1
    s_mov_b64 exec, -1
    L_noep:''')
    g.stamp()

def build(stamps=False, opt=None):
    g=G(stamps,opt); g.miscq=[]; g.outofline=[]
    entry(g)
    head=list(g.a.l); vm0=list(g.vm); n0=g.nst
    g.a.l=[]; p1_mlp(g); mlp=list(g.a.l); n1=g.nst
    g.a.l=[]; g.vm=list(vm0); g.nst=n0; g.miscq=[]
    p1_dft(g); dft=list(g.a.l)
    k=[i for i,x in enumerate(dft) if '@@SPLIT@@' in x][0]
    g.nst=max(g.nst,n1)
    g.a.l=[]; p2(g); g.dump_stamps(TS_OFF); tail=list(g.a.l)
    lines=head+dft[:k]+['    s_branch L_dft','L_mlp:']+mlp+['L_dft:']+dft[k+1:]+['L_p2:']+tail+['L_end:','    s_endpgm']+g.outofline+['L_codeend:']
    body='\n'.join(hazard.fix(lines))+'\n'
    return wrap([dict(name=KN,body=body,grid=256,block=256,lds=163840,vgpr=512,accum=256)],HDR)
if __name__=='__main__':
    out=sys.argv[1]; st='stamps' in sys.argv[2:]
    opt={}
    for a in sys.argv[2:]:
        if '=' in a:
            k,v=a.split('='); opt[k]=int(v) if v.lstrip('-').isdigit() else v
    open(out,'w').write(build(st,opt))
```

```python
import sys, math, struct, re
sys.path.insert(0,'tools')
from asmlib import A, wrap, KN
import hazard
from gen3 import G, srd, t1_of, f2u, HDR, U_OFF, ST_OFF, CS_REL, TS_OFF, SPIN

F_OFF = 12<<20
F2 = 8192
FU=32768; EPO=40960
WT_OFF = 14<<20
vB2, vXO = 254, 255
vD=[226+i for i in range(0)]
vDM=[246,247,248,249]
vT=[250,251,252,253]
XR=246
vSG,vH0,vH1,vU,vFL,vPL = 58,59,60,61,62,63
vTT=245
MF='v_mfma_f32_32x32x16_bf16'
OOB='0x40000000'

class Rec:
    def __init__(s): s.l=[]
    def __call__(s,t):
        for x in t.split('\n'):
            x=x.strip()
            if x: s.l.append(x)
def ool(g, text):
    g.outofline+=[x.strip() if x.strip().endswith(':') else '    '+x.strip() for x in text.split('\n') if x.strip()]
def misc(g, n):
    while n>0 and g.miscq:
        x=g.miscq.pop(0); g(x)
        n-= x.count('\n')+1 + (1 if ('v_cos' in x or 'v_sin' in x) else 0)
def epoch_load(g):
    g(f's_add_u32 s60, s28, {F_OFF+EPO}\ns_addc_u32 s61, s29, 0\ns_load_dword s47, s[60:61], 0')
def nonce(g):
    g('s_mul_i32 s47, s47, 0x9e3779b1\ns_add_u32 s47, s47, 0x85ebca6b')

def p2_setup_ops(g, dft):
    r=Rec(); t=lambda i:f'v{1000+i}'
    if g.opt.get('p2arr',84)==48:
        r('''s_and_b32 s70, s31, 7
        s_lshr_b32 s0, s31, 4
        s_lshl_b32 s1, s30, 1
        s_add_u32 s45, s0, s1
        s_bfe_u32 s1, s31, 0x10003''')
    else:
        r('''s_and_b32 s70, s30, 1
        s_lshl_b32 s70, s70, 2
        s_lshr_b32 s0, s31, 2
        s_add_u32 s0, s0, s31
        s_and_b32 s0, s0, 3
        s_add_u32 s70, s70, s0
        s_lshr_b32 s45, s30, 1
        s_lshl_b32 s45, s45, 2
        s_lshr_b32 s0, s31, 3
        s_add_u32 s45, s45, s0
        s_bfe_u32 s1, s31, 0x10002''')
    r.l.append('s_sub_u32 s0, 32, s45\ns_cmp_eq_u32 s45, 0\ns_cselect_b32 s0, 16, s0\ns_cmp_eq_u32 s1, 0\ns_cselect_b32 s71, s45, s0')
    wr=g.opt.get('wrot',3)
    if wr==0: r('s_mov_b32 s44, 0')
    elif wr==1: r('s_mul_i32 s44, s30, 7\ns_lshr_b32 s44, s44, 2')
    elif wr==3: r('s_lshr_b32 s44, s31, 2\ns_mul_i32 s44, s44, 7\ns_lshr_b32 s44, s44, 2')
    elif wr==5: r('s_lshr_b32 s44, s31, 2\ns_max_u32 s44, s44, 1\ns_sub_u32 s44, s44, 1\ns_lshl_b32 s44, s44, 1')
    elif wr==4: r('s_lshr_b32 s44, s31, 3\ns_mul_i32 s44, s44, 7\ns_lshr_b32 s44, s44, 1')
    elif wr==2: r('s_lshr_b32 s44, s30, 1\ns_mul_i32 s44, s44, 7\ns_lshr_b32 s44, s44, 1')
    ho={0:None,1:(1,7),2:(1,4),3:(3,3),4:(3,1),5:(1,2)}[g.opt.get('hoff',0)]
    if ho:
        r.l.append(f's_and_b32 s0, s70, {ho[0]}\ns_mul_i32 s0, s0, {ho[1]}\ns_add_u32 s44, s44, s0\ns_cmp_ge_u32 s44, 14\ns_cselect_b32 s0, 14, 0\ns_sub_u32 s44, s44, s0'.replace('{ho[0]}',str(ho[0])) )
    r(f'''s_lshl_b32 s68, s44, 15
    s_lshl_b32 s69, s3, 13
    v_lshrrev_b32 {t(4)}, 3, v0
    v_bfe_u32 {t(5)}, v0, 4, 1
    v_lshlrev_b32 {t(6)}, 2, {t(5)}
    v_and_b32 {t(7)}, 7, v0
    v_xor_b32 {t(6)}, {t(6)}, {t(7)}
    v_lshlrev_b32 {t(6)}, 4, {t(6)}
    v_lshl_add_u32 {t(6)}, {t(4)}, 10, {t(6)}
    s_mul_i32 s0, s3, {448*1024}
    s_lshl_b32 s1, s70, 7
    s_add_u32 s0, s0, s1
    v_add_u32 v{vDM[0]}, s0, {t(6)}
    v_add_u32 v{vDM[1]}, {7168}, v{vDM[0]}
    v_add_u32 v{vDM[2]}, {2*7168}, v{vDM[0]}
    v_add_u32 v{vDM[3]}, {3*7168}, v{vDM[0]}''')
    srd(r,64,20,1792*512*2)
    early=r.l; r=Rec()
    srd(r,72,22,1024); srd(r,76,4,2097152)
    r(f'''v_lshrrev_b32 {t(4)}, 5, v0
    v_bfe_u32 {t(5)}, v0, 4, 1
    v_bfe_u32 {t(6)}, v0, 2, 2
    v_lshl_add_u32 {t(7)}, {t(4)}, 2, {t(6)}
    v_lshlrev_b32 {t(7)}, 7, {t(7)}
    v_lshrrev_b32 {t(6)}, 1, {t(6)}
    s_and_b32 s0, s3, 1
    v_xor_b32 {t(6)}, s0, {t(6)}
    v_lshl_add_u32 {t(7)}, {t(6)}, 6, {t(7)}
    v_lshl_add_u32 {t(7)}, {t(5)}, 5, {t(7)}
    v_and_b32 {t(6)}, 3, v0
    v_lshl_add_u32 {t(7)}, {t(6)}, 3, {t(7)}
    v_add_u32 v{vT[0]}, s69, {t(7)}
    v_xor_b32 v{vT[1]}, 64, v{vT[0]}
    v_add_u32 v{vT[2]}, 0x18000, v{vT[0]}
    v_add_u32 v{vT[3]}, 0x18000, v{vT[1]}
    s_lshl_b32 s0, s30, 9
    s_add_u32 s0, s0, {FU}
    v_and_b32 {t(7)}, 31, v0
    v_lshl_add_u32 v{vFL}, {t(7)}, 2, s0
    s_lshl_b32 s0, s45, 1
    s_and_b32 s1, s30, 1
    s_add_u32 s0, s0, s1
    s_lshl_b32 s0, s0, 2
    s_add_u32 s0, s0, s3
    s_lshl_b32 s0, s0, 8
    v_and_b32 {t(6)}, 3, v0
    v_lshl_add_u32 v{vPL}, {t(6)}, 2, s0
    s_lshr_b32 s1, s3, 1
    s_lshl_b32 s0, s1, 10
    v_lshl_add_u32 v{vH0}, v0, 4, s0
    v_xor_b32 v{vH1}, 0x400, v{vH0}
    s_lshl_b32 s0, s1, 5
    v_and_b32 {t(6)}, 31, v0
    v_add_u32 {t(5)}, s0, {t(6)}
    v_lshlrev_b32 {t(5)}, 5, {t(5)}
    v_add_u32 v{vTT}, s71, {t(5)}
    s_lshl_b32 s0, s0, 15
    s_lshl_b32 s1, s71, 10
    s_add_u32 s1, s1, s0
    v_lshrrev_b32 {t(5)}, 2, v0
    v_lshlrev_b32 {t(5)}, 15, {t(5)}
    v_lshrrev_b32 {t(7)}, 4, v0
    v_xor_b32 {t(7)}, {t(7)}, v0
    v_and_b32 {t(7)}, 3, {t(7)}
    v_lshl_add_u32 {t(5)}, {t(7)}, 4, {t(5)}
    v_add_u32 {t(5)}, s1, {t(5)}
    s_lshl_b32 s0, s70, 7
    s_and_b32 s1, s3, 1
    s_lshl_b32 s1, s1, 6
    s_add_u32 s0, s0, s1
    v_add_u32 v{vXO}, s0, {t(5)}
    v_lshl_add_u32 v{vB2}, {t(6)}, 1, s0
    s_lshr_b32 s0, s0, 1
    v_and_b32 {t(5)}, 20, v0
    v_bfe_u32 {t(7)}, v0, 1, 1
    v_lshl_add_u32 {t(5)}, {t(7)}, 3, {t(5)}
    v_and_b32 {t(7)}, 1, v0
    v_lshl_add_u32 {t(5)}, {t(7)}, 1, {t(5)}
    v_bfe_u32 {t(7)}, v0, 3, 1
    v_add3_u32 {t(6)}, {t(5)}, {t(7)}, s0''')
    r.l.append('s_cmp_lt_u32 s70, 4\ns_cselect_b32 s0, 0, -1\ns_cselect_b32 s1, 0, 513')
    r(f'''v_xor_b32 {t(7)}, s0, {t(6)}
    v_add_u32 {t(7)}, s1, {t(7)}
    v_and_b32 {t(8)}, 1, {t(7)}
    v_lshlrev_b32 {t(8)}, 11, {t(8)}
    v_bfe_u32 {t(7)}, {t(7)}, 1, 7
    v_lshl_add_u32 {t(7)}, {t(7)}, 4, {t(8)}
    v_lshl_add_u32 {t(7)}, {t(4)}, 12, {t(7)}
    v_mov_b32 {t(8)}, {OOB}
    v_cmp_eq_u32 vcc, 0, {t(6)}
    s_nop 0
    v_cndmask_b32 v{vU}, {t(7)}, {t(8)}, vcc''')
    if True:
        r.l.append(f's_cmp_eq_u32 s3, 0\ns_cselect_b32 s0, s46, {OOB}')
        if dft:
            r(f'''v_cmp_gt_u32 vcc, 8, v0
            v_lshl_add_u32 {t(10)}, v0, 9, s0
            s_nop 0
            v_cndmask_b32 v{vSG}, {t(8)}, {t(10)}, vcc''')
        else:
            r(f'''v_lshrrev_b32 {t(5)}, 1, v0
            v_mul_u32_u24 {t(6)}, 7, {t(5)}
            v_lshrrev_b32 {t(6)}, 1, {t(6)}
            v_sub_u32 {t(6)}, s49, {t(6)}
            v_and_b32 {t(7)}, 1, v0
            v_lshl_add_u32 {t(7)}, {t(7)}, 2, {t(5)}
            v_cmp_gt_u32 vcc, 4, {t(6)}
            v_lshlrev_b32 {t(7)}, 8, {t(7)}
            v_lshl_add_u32 {t(7)}, {t(6)}, 2, {t(7)}
            v_add_u32 {t(10)}, s0, {t(7)}
            v_cndmask_b32 {t(10)}, {t(8)}, {t(10)}, vcc
            v_cmp_gt_u32 vcc, 8, v0
            s_nop 1
            v_cndmask_b32 v{vSG}, {t(8)}, {t(10)}, vcc''')
    else: r(f'v_mov_b32 v{vSG}, {t(8)}')
    return early, r.l, []
def trig_ops(fract=True, TMX=None):
    r=Rec(); t=lambda i:f'v{1000+i}'
    r.l.append(f's_cmp_lt_u32 s70, 4\ns_cselect_b32 s0, 0, 0x80000000')
    r(f'''s_or_b32 s0, s0, {f2u(1/2048):#x}
    v_mov_b32 {t(5)}, v{vTT}
    v_lshrrev_b32 {t(6)}, 5, v0
    v_cvt_f32_u32 {t(5)}, {t(5)}
    v_cvt_f32_u32 {t(6)}, {t(6)}
    v_mul_f32 {t(5)}, s0, {t(5)}
    v_cmp_gt_u32 s[0:1], 32, v0
    v_mul_f32 {t(6)}, {t(6)}, {t(5)}
    v_mul_f32 {t(7)}, {f2u(32.0):#x}, {t(5)}
    v_add_f32 {t(5)}, {t(5)}, {t(5)}
    v_mul_f32 {t(9)}, 0.5, {t(7)}
    v_cndmask_b32 {t(9)}, {t(7)}, {t(9)}, s[0:1]''')
    for j in range(8):
        if j: r(f'v_add_f32 {t(6)}, {t(6)}, {t(5)}')
        if fract:
            r(f'''v_add_f32 {t(1)}, {t(6)}, {t(7)}
            v_sub_f32 {t(2)}, {t(9) if j==0 else t(7)}, {t(6)}
            v_fract_f32 {t(0)}, {t(6)}
            v_add_f32 {t(3)}, {t(2)}, {t(7)}
            v_fract_f32 {t(1)}, {t(1)}
            v_fract_f32 {t(2)}, {t(2)}
            v_fract_f32 {t(3)}, {t(3)}''')
        else:
            r(f'''v_add_f32 {t(1)}, {t(6)}, {t(7)}
            v_sub_f32 {t(2)}, {t(9) if j==0 else t(7)}, {t(6)}
            v_add_f32 {t(3)}, {t(2)}, {t(7)}''')
        for i in range(4):
            a_=t(i) if (fract or i) else t(6)
            r(f'v_cos_f32 {t(12+2*i)}, {a_}\nv_sin_f32 {t(13+2*i)}, {a_}')
        for i in range(4): r(f'v_cvt_pk_bf16_f32 {t(20+i)}, {t(12+2*i)}, {t(13+2*i)}')
        for i in range(4): r(f'v_accvgpr_write_b32 a{224+4*j+i}, {t(20+i)}')
    TM={0:4,1:5,2:6,3:7,5:13,6:14,7:15,9:8}
    TM.update({12+i:128+i for i in range(8)}); TM.update({20+i:232+i for i in range(4)})
    return remap(r.l,TMX or TM)
def remap(L, TM):
    return [re.sub(r'v(10\d\d)\b', lambda m:'v%d'%TM[int(m.group(1))-1000], x) for x in L]
def xb2_ops(g):
    def o0(): g.vmem(f'buffer_load_ushort v{vB2}, v{vB2}, s[72:75], 0 offen','b2')
    return [o0]
def ppos(pr):
    p=pr%10
    return 131072+p*4096 if p<2 else ((p-2)>>1)*32768+(p&1)*4096
def w2_pair_ops(g, pr, base='s69', lds=None):
    if lds is None: lds=ppos(pr)
    def mk(i):
        def op():
            if i==0: g(f's_add_u32 m0, {base}, {lds}')
            g.vmem(f'buffer_load_dwordx4 v{vDM[i]}, s[64:67], s68 offen offset:{1024*i} lds', f'w{pr}')
            if i==3 and pr<13: g(f's_add_u32 s68, s68, 32768\ns_cmp_eq_u32 s68, {14*32768}\ns_cselect_b32 s68, 0, s68')
        return op
    return [mk(i) for i in range(4)]
def w2_trl(pr, regs=None, off=None):
    if regs is None:
        off=ppos(pr)
        if off>=65536 and off<0x18000: regs=('hi',);
        if off<65536: regs=vT[0:2]
        elif off>=0x18000: regs=vT[2:4]; off-=0x18000
        else: regs=[vTm0,vTm1]; off-=65536
    L=[]
    for k in range(2):
        for a_ in range(2):
            for q in range(2):
                r=8*(2*pr+k)+4*a_+2*q
                L.append(f'ds_read_b64_tr_b16 a[{r}:{r+1}], v{regs[a_]} offset:{off+2048*k+1024*q}')
    return L
vJ=[[241,242],[243,244],[14,15]]
vTm0,vTm1=14,15

def entry(g):
    g('''s_cmp_ge_u32 s2, 256
    s_cbranch_scc1 L_end''')
    g.stamp()
    g('''s_load_dwordx16 s[4:19], s[0:1], 0
    s_load_dwordx8 s[20:27], s[0:1], 64
    s_load_dwordx2 s[28:29], s[0:1], 96
    v_lshrrev_b32 v1, 6, v0
    s_and_b32 s30, s2, 7
    s_lshr_b32 s31, s2, 3
    v_readfirstlane_b32 s3, v1''')
    if g.opt.get('codepf',1):
        g(f'''s_getpc_b64 s[50:51]
        L_pc:
        s_lshl_b32 s53, s31, 10
        v_lshl_add_u32 v2, v0, 2, s53
        v_min_u32 v2, L_codeend-L_pc-4, v2''')
        g.vmem('global_load_dword v1, v2, s[50:51]','pf')
    if g.opt.get('p1arr',48)==216:
        g('''v_and_b32 v0, 63, v0
        s_lshl_b32 s48, s30, 1
        s_and_b32 s53, s31, 1
        s_cmp_lt_u32 s31, 4
        s_cbranch_scc1 L_dft0
        s_add_u32 s48, s48, s53
        s_lshr_b32 s49, s31, 1
        s_sub_u32 s49, s49, 2
        s_mov_b32 s100, s53''')
        r=g.opt.get('rot',4)
        if r==1: g('s_lshl_b32 s56, s53, 2\ns_add_u32 s56, s56, s49\ns_and_b32 s56, s56, 7')
        elif r==2: g('s_add_u32 s56, s53, s49\ns_and_b32 s56, s56, 1\ns_lshl_b32 s56, s56, 2')
        elif r==4: g('s_lshl_b32 s56, s53, 1\ns_add_u32 s56, s56, s49\ns_and_b32 s56, s56, 3\ns_lshl_b32 s56, s56, 1')
        if g.opt.get('xph',0): g('s_add_u32 s56, s56, s30\ns_and_b32 s56, s56, 7')
        return
    rot=g.opt.get('rot',4)
    g('''v_and_b32 v0, 63, v0
    s_lshr_b32 s48, s30, 1
    s_lshl_b32 s55, s48, 1
    s_lshl_b32 s48, s48, 2
    s_and_b32 s100, s31, 3
    s_add_u32 s48, s48, s100
    s_lshr_b32 s49, s31, 2
    s_sub_u32 s49, s49, 1
    s_and_b32 s49, s49, 7''') if g.opt.get('dftfirst',1) else g('''v_and_b32 v0, 63, v0
    s_lshr_b32 s48, s30, 1
    s_lshl_b32 s55, s48, 1
    s_lshl_b32 s48, s48, 2
    s_lshr_b32 s100, s31, 3
    s_add_u32 s48, s48, s100
    s_and_b32 s49, s31, 7''')
    if rot==1:   g('s_lshl_b32 s56, s100, 1\ns_add_u32 s56, s56, s49\ns_and_b32 s56, s56, 7')
    elif rot==2: g('s_add_u32 s56, s100, s49\ns_and_b32 s56, s56, 1\ns_lshl_b32 s56, s56, 2')
    elif rot==4: g('s_add_u32 s56, s100, s49\ns_and_b32 s56, s56, 3\ns_lshl_b32 s56, s56, 1')
    elif rot==0: g('s_mov_b32 s56, 0')
    if g.opt.get('xph',0): g('s_add_u32 s56, s56, s55\ns_and_b32 s56, s56, 7')
    g('''s_and_b32 s53, s30, 1
    s_cmp_eq_u32 s49, 7
    s_cbranch_scc1 L_dfte''')

def p1_mlp(g):
    ACC=64
    vX=[2,3,4,5]; vW=[6,7,8,9]; vB=[10,11,12,13]; vA=[18,19]
    vSA,vCA,vCP,vCB=14,15,16,17
    vB1=[56,57]; CSA=164; SEL=168; GA=144; GF=160
    WP=200; vP0,vP1,vPT,vPS,vPF=208,209,210,211,212
    rot=g.opt.get('rot',4)
    A216=g.opt.get('p1arr',48)==216
    if A216:
        g('s_and_b32 s50, s3, 1\ns_lshr_b32 s51, s3, 1\ns_and_b32 s53, s49, 1')
    else:
        g('''s_mul_i32 s54, s53, 7
        s_add_u32 s49, s49, s54
        s_and_b32 s50, s3, 1
        s_lshr_b32 s51, s3, 1''')
    g('s_lshl_b32 s63, s48, 1\ns_add_u32 s63, s63, s53')
    t1_of(g,'s52','s48','s51','s53')
    g(f'''v_lshrrev_b32 v24, 3, v0
    v_lshrrev_b32 v25, 4, v0
    v_and_b32 v28, 7, v0
    v_xor_b32 v26, v28, v25
    v_lshlrev_b32 v26, 4, v26
    v_lshl_add_u32 v26, v24, 15, v26
    s_lshl_b32 s53, s52, 10
    s_lshl_b32 s54, s50, 20
    s_add_u32 s53, s53, s54
    v_add_u32 v{vX[0]}, s53, v26
    v_xor_b32 v27, 64, v{vX[0]}
    v_add_u32 v{vX[1]}, {262144-1024}, v27
    v_add_u32 v{vX[2]}, {2*(262144-1024)}, v{vX[0]}
    v_add_u32 v{vX[3]}, {3*(262144-1024)}, v27
    v_and_b32 v26, 15, v0
    v_lshlrev_b32 v27, 2, v25
    v_xor_b32 v26, v26, v27
    v_lshlrev_b32 v26, 4, v26
    v_mul_u32_u24 v29, 3584, v25
    v_add_u32 v26, v26, v29
    s_mul_i32 s53, s3, 57344
    s_lshl_b32 s54, s49, 8
    s_add_u32 s53, s53, s54
    v_add_u32 v{vW[0]}, s53, v26
    v_add_u32 v{vW[1]}, 13312, v{vW[0]}
    v_add_u32 v{vW[2]}, {2*13312}, v{vW[0]}
    v_add_u32 v{vW[3]}, {3*13312}, v{vW[0]}
    s_lshl_b32 s55, s3, 12''')
    g.stamp('pro')
    g('s_waitcnt lgkmcnt(0)')
    g.stamp('pro')
    srd(g,32,4,2097152); srd(g,36,16,512*1792*2)
    def stage_ops(st):
        slot=st&3
        def mk(i):
            def op():
                if i==0: g(f's_lshl_b32 s57, s56, 7\ns_mul_i32 s58, s56, 229376\ns_add_u32 m0, s55, {slot*32768}')
                if i==4: g(f's_add_u32 m0, s55, {slot*32768+16384}\ns_add_u32 s56, s56, 1\ns_and_b32 s56, s56, 7')
                if i<4: g.vmem(f'buffer_load_dwordx4 v{vX[i]}, s[32:35], s57 offen offset:{1024*i} lds',f's{st}')
                else:   g.vmem(f'buffer_load_dwordx4 v{vW[i-4]}, s[36:39], s58 offen offset:{1024*(i-4)} lds',f's{st}')
            return op
        return [mk(i) for i in range(8)]
    D=g.opt.get('depth',3)
    for op in stage_ops(0): op()
    g.stamp('pro')
    for op in stage_ops(1): op()
    g('@@SPLIT@@')
    g.stamp('pro')
    epoch_load(g)
    g(f'''s_lshl_b32 s46, s48, 11
    v_and_b32 v24, 31, v0
    v_lshrrev_b32 v25, 5, v0
    v_bfe_u32 v26, v0, 1, 3
    v_xor_b32 v26, v26, v25
    s_lshl_b32 s53, s51, 13
    v_lshlrev_b32 v27, 7, v24
    v_add_u32 v27, s53, v27''')
    for kk in range(4):
        g(f'''v_xor_b32 v28, {2*kk}, v26
        v_lshl_add_u32 v{vB[kk]}, v28, 4, v27''')
    g(f'''v_bfe_u32 v26, v0, 2, 2
    v_lshl_add_u32 v27, v25, 3, v26
    v_lshlrev_b32 v27, 8, v27
    s_lshl_b32 s53, s50, 1
    s_add_u32 s53, s53, s51
    v_xor_b32 v26, s53, v26
    v_lshl_add_u32 v27, v26, 6, v27
    v_bfe_u32 v26, v0, 4, 1
    v_and_b32 v28, 3, v0
    v_lshlrev_b32 v30, 3, v28
    v_lshl_add_u32 v30, v26, 5, v30
    s_movk_i32 s59, 0x4000
    v_add3_u32 v{vA[0]}, v27, v30, s59
    v_xor_b32 v{vA[1]}, 64, v{vA[0]}
    v_bfe_u32 v27, v0, 2, 1
    v_xor_b32 v26, v26, v27
    v_or_b32 v26, v26, v28
    v_mov_b32 v27, 0x3f803f80
    v_cmp_eq_u32 vcc, 0, v26
    s_lshl_b32 s53, s53, 5
    v_add_u32 v26, s53, v24
    v_cndmask_b32 v{SEL+4}, 0, v27, vcc
    s_lshl_b32 s54, s49, 7
    v_add_lshl_u32 v{vB1[0]}, v26, s54, 1
    v_xor_b32 v{vB1[1]}, 64, v{vB1[0]}''')
    srd(g,40,18,1792*2)
    for t in range(2): g.vmem(f'buffer_load_ushort v{vB1[t]}, v{vB1[t]}, s[40:43], 0 offen','b1')
    if A216:
        g(f'''s_lshl_b32 s53, s49, 3
        s_lshr_b32 s54, s48, 1
        s_add_u32 s53, s53, s54
        s_lshl_b32 s53, s53, 11
        s_add_u32 s53, s53, {CS_REL+(ST_OFF-F_OFF)}
        v_lshl_add_u32 v{vCA}, v26, 4, s53
        s_lshl_b32 s54, s100, 3
        v_add_u32 v{vCP}, s54, v{vCA}
        v_xor_b32 v{vCB}, 0x200, v{vCA}''')
    else: g(f'''s_lshl_b32 s53, s49, 2
    s_lshr_b32 s54, s48, 2
    s_add_u32 s53, s53, s54
    s_lshl_b32 s53, s53, 12
    s_add_u32 s53, s53, {CS_REL+(ST_OFF-F_OFF)}
    v_lshl_add_u32 v26, v26, 5, s53
    s_lshl_b32 s54, s100, 3
    v_add_u32 v{vCP}, s54, v26
    v_lshl_add_u32 v{vCA}, v25, 4, v26
    v_xor_b32 v{vCB}, 0x400, v{vCA}''')
    g(f'''
    s_lshl_b32 s53, s63, 11
    s_lshl_b32 s54, s51, 10
    s_add_u32 s53, s53, s54
    s_add_u32 s53, s53, {ST_OFF-F_OFF}
    v_lshl_add_u32 v{vSA}, v24, 4, s53
''')
    srd(g,40,28,4<<20,add=F_OFF)
    g.stamp('pro')
    WS0=g.opt.get('wsched','o')
    if D==3 and WS0!='y':
        for op in stage_ops(2): op()
    g.stamp('pro')
    g('s_waitcnt lgkmcnt(0)')
    early,addr,trig=p2_setup_ops(g,False)
    TM={i:176+i for i in range(24)}
    early,addr,trig=[remap(x,TM) for x in (early,addr,trig)]
    vBh=[200,201,202,203]; vAh=[204,205]
    g.miscq=[f'v_add_u32 v{h}, 0x10000, v{l}' for h,l in zip(vBh+vAh,vB+vA)]+early+addr+trig
    def fr(s_):
        b=[32,128][s_]
        return dict(A=[b,b+4],B=[b+8,b+12])
    def rd(n):
        st,kk=n>>2,n&3
        f=fr(n&1); o=(st&1)*32768; hi=(st>>1)&1
        tr=lambda t,q: f'ds_read_b64_tr_b16 v[{f["A"][t]+2*q}:{f["A"][t]+2*q+1}], v{[vA,vAh][hi][t]} offset:{o+4096*kk+1024*q}'
        bb=lambda u: f'ds_read_b128 v[{f["B"][u]}:{f["B"][u]+3}], v{[vB,vBh][hi][kk]} offset:{o+4096*u}'
        return [tr(0,0),tr(0,1),bb(0),bb(1),tr(1,0),tr(1,1)]
    ncs = 4 if A216 else {1:2,4:2,2:4,0:8}[rot]
    def setsel(st):
        if ncs==2 or A216: cond=None
        elif ncs==4: cond=f's_lshr_b32 s53, s100, 1\ns_cmp_eq_u32 s53, {st>>1}'
        else: cond=f's_cmp_eq_u32 s100, {st>>1}'
        if cond is None:
            for i in range(4): g(f'v_mov_b32 v{SEL+i}, v{SEL+4}')
        else:
            g(cond+'\ns_cselect_b32 s53, -1, 0')
            for i in range(4): g(f'v_and_b32 v{SEL+i}, s53, v{SEL+4}')
    def gather_ops():
        def mk(r,v,off):
            def o(): g.vmem(f'buffer_load_dwordx4 v[{r}:{r+3}], v{v}, s[40:43], 0 offen offset:{off} sc1','ga')
            return o
        return [mk(GA,vSA,0),mk(GA+4,vSA,512),mk(GA+8,vCA,0),mk(GA+12,vCB,0)]
    def publish():
        g(f'v_mov_b32 v{CSA+1}, s47')
        g.vmem(f'buffer_store_dwordx2 v[{CSA}:{CSA+1}], v{vCP}, s[40:43], 0 offen sc1','csp')
    WPS=g.opt.get('wpstage',1)
    WSCHED={'a':{2:[0],3:[1],5:[2,3],6:[4],7:[5,6]},'b':{3:[0],4:[1],5:[2],6:[3,4],7:[5]},'c':{5:[0,1],6:[2],7:[3,4]},'d':{1:[0],2:[1],5:[2,3],6:[4,5],7:[6]},'e':{5:[0,1],6:[2,3],7:[4,5]},'f':{4:[0],5:[1],6:[2,3],7:[4,5]},'g':{5:[0],6:[1],7:[2,3]},'h':{4:[0,1],7:[2,3,4]},'i':{4:[0,1],7:[2,3]},'j':{4:[0,1]},'k':{3:[0,1],6:[2,3],7:[4,5]},'l':{4:[0,1],6:[2],7:[3,4]},'m':{1:[(0,0)],2:[(0,1)],3:[(1,0)],4:[(1,1)],5:[2,3],6:[4,5],7:[6]},'n':{1:[(0,0)],2:[(0,1)],3:[(1,0)],4:[(1,1)],6:[2,3],7:[4,5]},'o':{1:[0],2:[1],5:[2,3],6:[4,5],7:[6,7]},'p':{5:[0,1],7:[2]},'q':{5:[0,1]},'r':{5:[0,1],6:[2]},'s':{5:[0,1],7:[2,3]},'t':{5:[0,1],6:[2],7:[3]},'u':{1:[0,1],5:[2,3],6:[4,5],7:[6,7]},'v':{0:[0,1],5:[2,3],6:[4,5],7:[6,7]},'w':{2:[0,1],5:[2,3],6:[4,5],7:[6,7]},'x':{-1:[0,1],5:[2,3],6:[4,5],7:[6,7]},'y':{-2:[0,1],5:[2,3],6:[4,5],7:[6,7]}}[g.opt.get('wsched','o')]
    half={}
    prevtr=[0]
    NTL=g.opt.get('ntl',4)
    TRL={n:(i>>1,i&1) for i,n in enumerate([20,21,22,23,26,27,28,29,30,31][:2*NTL])}
    MX=g.opt.get('mx',5)
    nw=len(set((p[0] if isinstance(p,tuple) else p) for x in WSCHED.values() for p in x))
    def enter(st):
        g.flush_side()
        g.wait(f's{st}')
        g('s_barrier')
        g.stamp('st')
        if st+D<8: g.sideq+=stage_ops(st+D)
        if st==max(ncs,g.opt.get('pubst',4)) and ncs<8: g.sideq.append(publish)
        if st==6: g.miscq+=hr.l
        if st in WSCHED and st<6:
            while len(g.miscq)>len(trig)+len(addr): misc(g,1)
        if st==g.opt.get('gast',7) and not g.opt.get('galast'): g.sideq+=gather_ops()
        for pr in WSCHED.get(st,[]):
            if isinstance(pr,tuple):
                if pr[1]==0: half[pr[0]]=w2_pair_ops(g,pr[0])
                ops=half[pr[0]][2*pr[1]:2*pr[1]+2]
                if pr[1]==1: ops=[lambda p=pr[0],o=ops[0]:(g(f's_add_u32 m0, s69, {ppos(p)}'),o())]+ops[1:]
                g.sideq+=ops
            else: g.sideq+=w2_pair_ops(g,pr)
        if st==g.opt.get('gast',7) and g.opt.get('galast'): g.sideq+=gather_ops()
    if WS0 in 'xy':
        while len(g.miscq)>len(trig)+len(addr): misc(g,1)
        for op in w2_pair_ops(g,0)+w2_pair_ops(g,1): op()
        if WS0=='y':
            for op in stage_ops(2): op()
    hr=Rec()
    srd(hr,36,28,7340032)
    hr('''s_mul_i32 s53, s52, 112
    s_lshl_b32 s54, s49, 3
    s_add_u32 s53, s53, s54
    s_lshl_b32 s54, s50, 2
    s_add_u32 s53, s53, s54
    s_lshl_b32 s53, s53, 11
    s_lshl_b32 s54, s51, 12
    s_add_u32 s60, s53, s54
    s_xor_b32 s61, s60, 0x400
    s_xor_b32 s62, s60, 0x1000
    s_xor_b32 s63, s60, 0x1400
''')
    nonce(g); setsel(0)
    enter(0); g.stamp(); g.stamp('pro')
    for x in rd(0): g(x)
    for n in range(32):
        st,kk=n>>2,n&3
        f=fr(n&1)
        def mf(t,u):
            d=ACC+16*(2*t+u)
            g(f'{MF} v[{d}:{d+15}], v[{f["A"][t]}:{f["A"][t]+3}], v[{f["B"][u]}:{f["B"][u]+3}], '+(f'v[{d}:{d+15}]' if n else '0'))
        nx = rd(n+1) if n<31 else []
        xt=prevtr[0]; prevtr[0]=0
        if kk==3:
            g(f's_waitcnt lgkmcnt({xt})'); mf(0,0)
            if st<7: enter(st+1)
            else: g.flush_side(); g('s_barrier')
            for x in nx[:3]: g(x)
            mf(0,1)
            for x in nx[3:]: g(x)
            mf(1,0)
        else:
            g(f's_waitcnt lgkmcnt({3+xt})'); mf(0,0)
            for x in nx[:3]: g(x)
            g(f's_waitcnt lgkmcnt({5+xt})'); mf(0,1)
            for x in nx[3:]: g(x)
            g(f's_waitcnt lgkmcnt({6+xt})'); mf(1,0)
        if n in TRL:
            pr,h=TRL[n]
            if h==0: g.wait(f'w{pr}')
            for x in w2_trl(pr)[4*h:4*h+4]: g(x)
            prevtr[0]=4
        else:
            had=bool(g.sideq); g.side(); misc(g, 2 if had else MX)
        if st<ncs:
            g(f'v_mfma_f32_16x16x32_bf16 v[{CSA}:{CSA+3}], v[{SEL}:{SEL+3}], v[{f["A"][0]}:{f["A"][0]+3}], '+(f'v[{CSA}:{CSA+3}]' if n else '0'))
        mf(1,1)
        had=bool(g.sideq); g.side(2 if (len(g.sideq)>2*(3-kk)+1 or n in TRL) else 1); misc(g,2 if had else MX)
        if kk==3 and st+1<ncs and (st+1)%2==0: setsel(st+1)
    if ncs==8: publish()
    g.flush_side(); misc(g,9999)
    g.stamp(); g.stamp('st'); g.stamp('tail')
    g.wait('ga')
    g(f'''s_mov_b32 s56, {SPIN}
    L_gchk:
    v_xor_b32 v24, s47, v{GA+3}
    v_xor_b32 v25, s47, v{GA+7}
    v_xor_b32 v26, s47, v{GA+9}
    v_xor_b32 v27, s47, v{GA+11}
    v_xor_b32 v28, s47, v{GA+13}
    v_xor_b32 v29, s47, v{GA+15}
    v_or3_b32 v24, v24, v25, v26
    v_or3_b32 v27, v27, v28, v29
    v_or_b32 v24, v24, v27
    v_cmp_ne_u32 vcc, 0, v24
    s_cbranch_vccnz L_gslow
    L_gok:''')
    keep=list(g.vm); main=g.a.l; g.a.l=[]
    g('L_gslow:\ns_sleep 8')
    for op in gather_ops(): op()
    g('s_waitcnt vmcnt(0)\ns_sub_u32 s56, s56, 1\ns_cbranch_scc0 L_gchk\ns_branch L_gok')
    g.outofline+=g.a.l; g.a.l=main; g.vm=keep
    NG=g.opt.get('ng',10)
    assert NG<=10+NTL
    g('s_waitcnt lgkmcnt(0)')
    for pr in range(nw,NG): g.sideq+=w2_pair_ops(g,pr)
    a0,a1=GA+8,GA+12
    c0=-2*math.sqrt(2/math.pi)*math.log2(math.e); c1=c0*0.044715
    g(f'''v_add_f32 v{a0}, v{a0}, v{a0+2}
    v_add_f32 v{a1}, v{a1}, v{a1+2}
    v_rcp_f32 v24, v{GA+2}
    v_mov_b32 v{a0+1}, v{a0}
    v_mov_b32 v{a1+1}, v{a1}
    v_rcp_f32 v26, v{GA+6}
    v_cmp_gt_u32 vcc, 32, v0
    v_permlane32_swap_b32 v{a0}, v{a0+1}
    v_permlane32_swap_b32 v{a1}, v{a1+1}
    v_mov_b32 v50, v{GA+2}
    v_mov_b32 v54, v{GA+6}
    {'v_mov_b32' if A216 else 'v_add_f32'} v{a0+2}, v{a0}{'' if A216 else f', v{a0+1}'}
    {'v_mov_b32' if A216 else 'v_add_f32'} v{a1+2}, v{a1}{'' if A216 else f', v{a1+1}'}
    v_mov_b32 v{GA+2}, v{GA}
    v_mov_b32 v{GA+6}, v{GA+4}
    v_cvt_pk_bf16_f32 v{a0}, v{a0+2}, v{a0+2}
    v_cvt_pk_bf16_f32 v{a1}, v{a1+2}, v{a1+2}
    v_lshl_or_b32 v{a0+1}, v{vB1[0]}, 16, v{vB1[0]}
    v_lshl_or_b32 v{a1+1}, v{vB1[1]}, 16, v{vB1[1]}
    v_lshlrev_b32 v{a0+3}, 16, v{a0}
    v_lshlrev_b32 v{a1+3}, 16, v{a1}
    v_cndmask_b32 v{a0}, 0, v{a0}, vcc
    v_cndmask_b32 v{a1}, 0, v{a1}, vcc
    v_sub_f32 v{a0+2}, v{a0+2}, v{a0+3}
    v_sub_f32 v{a1+2}, v{a1+2}, v{a1+3}
    v_cndmask_b32 v{a0+1}, 0, v{a0+1}, vcc
    v_cndmask_b32 v{a1+1}, 0, v{a1+1}, vcc
    v_cvt_pk_bf16_f32 v{a0+2}, v{a0+2}, 0
    v_cvt_pk_bf16_f32 v{a1+2}, v{a1+2}, 0
    v_mov_b32 v{a0+3}, 0
    v_mov_b32 v{a1+3}, 0
    v_cndmask_b32 v{a0+2}, 0, v{a0+2}, vcc
    v_cndmask_b32 v{a1+2}, 0, v{a1+2}, vcc
    v_mov_b32 v{GA+3}, 0
    v_mov_b32 v{GA+7}, 0''')
    Aex=[a0,a1]; Bex=[GA,GA+4]
    for t in range(2):
        for u in range(2):
            d=ACC+16*(2*t+u)
            g(f'{MF} v[{d}:{d+15}], v[{Aex[t]}:{Aex[t]+3}], v[{Bex[u]}:{Bex[u]+3}], v[{d}:{d+15}]')
    g(f'''v_mul_f32 v25, v24, v24
    v_mul_f32 v27, v26, v26
    v_mul_f32 v49, {f2u(c0):#x}, v24
    v_mul_f32 v53, {f2u(c0):#x}, v26
    v_mul_f32 v25, v25, v24
    v_mul_f32 v27, v27, v26
    v_mul_f32 v48, {f2u(c1):#x}, v25
    v_mul_f32 v52, {f2u(c1):#x}, v27''')
    g('v_lshlrev_b32 v56, 4, v0')
    g.stamp()
    while len(g.miscq)>len(trig): misc(g,1)
    def trop(pr,h):
        def op():
            if h==0: g.wait(f'w{pr}')
            for x in w2_trl(pr)[4*h:4*h+4]: g(x)
        return op
    xo=xb2_ops(g)
    trs=[]
    for pr in range(NTL,4): trs+=[trop(pr,0),trop(pr,1)]
    g.sideq+=xo+trs
    NS=g.opt.get('gside',4)
    for t in range(2):
        for u in range(2):
            d=ACC+16*(2*t+u); K=[48,52][u]; RI=[50,54][u]
            for j in range(2):
                NS=g.opt.get('gside',4) if 4*t+2*u+j>=g.opt.get('gstart',0) else 0
                P=[d+8*j+2*i for i in range(4)]
                tm=[2+2*i for i in range(4)]
                o=[24,28][j]
                for i in range(4): g(f'v_pk_mul_f32 v[{tm[i]}:{tm[i]+1}], v[{P[i]}:{P[i]+1}], v[{P[i]}:{P[i]+1}]')
                for i in range(4): g(f'v_pk_fma_f32 v[{tm[i]}:{tm[i]+1}], v[{tm[i]}:{tm[i]+1}], v[{K}:{K+1}], v[{K}:{K+1}] op_sel:[0,0,1] op_sel_hi:[1,0,1]')
                if NS>=1: g.side()
                for i in range(4): g(f'v_pk_mul_f32 v[{tm[i]}:{tm[i]+1}], v[{tm[i]}:{tm[i]+1}], v[{P[i]}:{P[i]+1}]')
                for i in range(8):
                    g(f'v_exp_f32 v{2+i}, v{2+i}')
                    if i==3 and NS>=4: g.side()
                if NS>=2: g.side()
                for i in range(4): g(f'v_pk_fma_f32 v[{tm[i]}:{tm[i]+1}], v[{tm[i]}:{tm[i]+1}], v[{RI}:{RI+1}], v[{RI}:{RI+1}] op_sel:[0,0,0] op_sel_hi:[1,0,0]')
                for i in range(8):
                    g(f'v_rcp_f32 v{2+i}, v{2+i}')
                    if i==3 and NS>=5: g.side()
                if NS>=3: g.side()
                for i in range(4): g(f'v_pk_mul_f32 v[{tm[i]}:{tm[i]+1}], v[{tm[i]}:{tm[i]+1}], v[{P[i]}:{P[i]+1}]')
                for i in range(4): g(f'v_cvt_pk_bf16_f32 v{o+i}, v{tm[i]}, v{tm[i]+1}')
                g.vmem(f'buffer_store_dwordx4 v[{o}:{o+3}], v56, s[36:39], s{60+2*t+u} offen offset:{2048*j} {"" if g.opt.get("hplain") else "sc1"}','st')
    g.stamp()
    print('after GELU: side',len(g.sideq),'misc',len(g.miscq),file=sys.stderr)
    g.stamp('tail')
    g.flush_side()
    g(f'v_mov_b32 v2, s47\nv_add_u32 v{vTm0}, 0x10000, v{vT[0]}\nv_add_u32 v{vTm1}, 0x10000, v{vT[1]}')
    NJ=g.opt.get('nj',4)
    for k in range(NJ//2): g(f'v_add_u32 v{vJ[k][0]}, {ppos(12-2*k)}, v{vT[0]}\nv_add_u32 v{vJ[k][1]}, {ppos(12-2*k)}, v{vT[1]}')
    for d in (1,2,3): g(f's_add_u32 s{5+d}, s69, {d*32768}\ns_xor_b32 s{8+d}, s{5+d}, {d*8192}')
    g(f's_add_u32 s12, s69, {32768+4096}')
    TB=g.opt.get('trbefore',1)
    for pr in range(max(4,NTL),4+TB):
        g.wait(f'w{pr}')
        for x in w2_trl(pr): g(x)
    g.stamp('tail')
    g.wait('st')
    g.stamp('tail')
    g('s_barrier')
    g.vmem(f'buffer_store_dword v2, v{vSG}, s[40:43], 0 offen sc1','flag')
    g.stamp('tail')
    g('s_waitcnt lgkmcnt(0)')
    for pr in range(NG,14):
        for op in w2_pair_ops(g,pr): op()
    for pr in range(max(4+TB,NTL),14-NJ):
        g.wait(f'w{pr}')
        for x in w2_trl(pr): g(x)
    g('v_not_b32 v3, v2\ns_branch L_p2')

def p1_dft(g):
    RAW=64
    vBr0=56; vXL=[57,18,19,2]; vSP=3; vBd=[4,5,6,7]; vWe,vWo=8,9; vFA=[10,11,12,13]; vFB=[14,15,16,17]
    CC=[192,196]; SS=[200,204]; NS=[208,212]
    RC=[216,218,220,222]
    if g.opt.get('p1arr',48)==216:
        g('L_dft0:\ns_lshr_b32 s100, s31, 1\ns_add_u32 s48, s48, s100\ns_lshl_b32 s100, s100, 1')
    g('''s_mov_b32 s49, s53
    s_lshr_b32 s51, s3, 1''')
    t1_of(g,'s52','s48','s51','s53')
    g(f'''s_and_b32 s50, s3, 1
    s_lshl_b32 s53, s50, 5
    s_add_u32 s53, s53, s52
    s_lshl_b32 s53, s53, 10
    v_lshrrev_b32 v24, 3, v0
    v_lshrrev_b32 v25, 4, v0
    v_and_b32 v26, 7, v0
    v_lshlrev_b32 v27, 4, v26
    v_lshl_add_u32 v27, v24, 16, v27
    s_lshl_b32 s54, s100, 7
    v_add3_u32 v{vXL[0]}, v27, s53, 0
    v_add_u32 v{vXL[0]}, s54, v{vXL[0]}
    v_xor_b32 v{vXL[1]}, 0x80, v{vXL[0]}
    v_xor_b32 v{vXL[2]}, 0x100, v{vXL[0]}
    v_xor_b32 v{vXL[3]}, 0x180, v{vXL[0]}
    s_waitcnt lgkmcnt(0)''')
    srd(g,32,4,2097152)
    def xops(gi):
        def mk(j):
            def op():
                if j==0: g(f's_mov_b32 s58, {gi*524288}')
                r=RAW+32*gi+4*j
                g.vmem(f'buffer_load_dwordx4 v[{r}:{r+3}], v{vXL[j&3]}, s[32:35], s58 offen offset:{512*(j>>2)}',f'x{gi}')
            return op
        return [mk(j) for j in range(8)]
    DO=g.opt.get('dord','d')
    for gi in range(1 if DO in 'de' else 2):
        for op in xops(gi): op()
    if DO not in 'de': g('@@SPLIT@@')
    epoch_load(g)
    srd(g,36,10,524288); srd(g,16,12,524288); srd(g,40,28,4<<20,add=F_OFF)
    g(f'''s_lshl_b32 s46, s48, 3
    s_lshl_b32 s53, s49, 2
    s_add_u32 s46, s46, s53
    s_add_u32 s46, s46, {FU}
    v_xor_b32 v26, v26, v25
    v_lshlrev_b32 v26, 4, v26
    v_lshl_add_u32 v27, v24, 11, v26
    s_lshl_b32 s53, s3, 16
    s_lshl_b32 s54, s49, 10
    s_add_u32 s53, s53, s54
    v_add_u32 v{vBd[0]}, s53, v27
    v_xor_b32 v28, 64, v{vBd[0]}
    v_add_u32 v{vBd[1]}, {16384-1024}, v28
    v_add_u32 v{vBd[2]}, {2*(16384-1024)}, v{vBd[0]}
    v_add_u32 v{vBd[3]}, {3*(16384-1024)}, v28
    v_add_u32 v28, 0x40000, v{vBd[0]}
    v_cmp_gt_u32 vcc, 1024, v{vBd[0]}
    v_lshl_add_u32 v27, v24, 7, v26
    s_lshl_b32 s53, s3, 12
    v_cndmask_b32 v{vBr0}, v{vBd[0]}, v28, vcc
    v_add_u32 v{vWe}, s53, v27
    v_xor_b32 v{vWo}, 64, v{vWe}
    s_mul_i32 s55, s3, 24576
    s_add_u32 s55, s55, 65536
    s_lshl_b32 s53, s48, 1
    s_add_u32 s53, s53, s49
    s_lshl_b32 s53, s53, 11
    s_lshl_b32 s54, s51, 10
    s_add_u32 s53, s53, s54
    s_lshl_b32 s54, s50, 4
    s_add_u32 s53, s53, s54
    s_add_u32 s53, s53, {ST_OFF-F_OFF}
    v_lshl_add_u32 v{vSP}, v24, 5, s53''')
    def bops(st):
        slot=st&1
        def mk(i):
            def op():
                if i==0: g(f's_xor_b32 s57, s100, {st}\ns_lshl_b32 s57, s57, 7\ns_add_u32 m0, s55, {slot*8192}')
                if i==4: g(f's_add_u32 m0, s55, {slot*8192+4096}')
                if i<4: g.vmem(f'buffer_load_dwordx4 v{vBr0 if i==0 else vBd[i]}, s[36:39], s57 offen offset:{1024*i} lds',f'B{st}')
                else:   g.vmem(f'buffer_load_dwordx4 v{vBd[i-4]}, s[16:19], s57 offen offset:{1024*(i-4)} lds',f'B{st}')
            return op
        return [mk(i) for i in range(8)]
    if DO in 'de':
        for op in bops(0): op()
        g('@@SPLIT@@')
    g(f'''v_and_b32 v24, 31, v0
    v_lshrrev_b32 v25, 5, v0
    v_bfe_u32 v26, v0, 1, 3
    v_xor_b32 v26, v26, v25
    v_lshlrev_b32 v27, 7, v24''')
    for kk in range(4):
        g(f'''v_xor_b32 v28, {2*kk}, v26
        v_lshl_add_u32 v{vFA[kk]}, v28, 4, v27
        v_add_u32 v{vFB[kk]}, s55, v{vFA[kk]}''')
    g(f'''v_cvt_f32_u32 v26, v24
    v_mul_f32 v26, {f2u(1/32):#x}, v26
    v_cvt_f32_u32 v27, v25
    v_mul_f32 v27, 4.0, v27
    v_mul_f32 v27, v27, v26
    v_mul_f32 v28, {f2u(5.0):#x}, v26''')
    for j in range(2):
        for i2 in range(4):
            for e in range(2):
                i=2*i2+e
                if not (j==0 and i==0):
                    g(f'v_add_f32 v27, v27, v{28 if i%4==0 else 26}')
                g(f'v_fract_f32 v29, v27\nv_cos_f32 v{20+e}, v29\nv_sin_f32 v{22+e}, v29')
            g(f'v_cvt_pk_bf16_f32 v{CC[j]+i2}, v20, v21\nv_cvt_pk_bf16_f32 v{SS[j]+i2}, v22, v23\nv_xor_b32 v{NS[j]+i2}, 0x80008000, v{SS[j]+i2}')
    early,addr,trig=p2_setup_ops(g,True)
    TM={0:20,1:21,2:22,3:23,4:24,5:25,6:26,7:27,8:28,9:29,10:30,12:2,13:3,14:8,15:9,16:31,17:57,18:240,19:241,20:242,21:243,22:244,23:245}
    early,addr,trig=[remap(x,TM) for x in (early,addr,trig)]
    g(f'''s_mov_b32 s59, 0x3f803f80
    s_movk_i32 s60, 0x3f80
    s_mov_b32 s61, 0x3f800000
    s_lshl_b32 s53, s49, 15
    s_or_b32 s62, s60, s53
    s_lshl_b32 s63, s62, 16
    s_cmp_eq_u32 s49, 0
    s_cselect_b32 s101, 2.0, 0
    s_waitcnt lgkmcnt(0)''')
    nonce(g)
    eps=f'{f2u(1e-5):#x}'
    chainq=[]
    def ch(n=1):
        for _ in range(n):
            if chainq: chainq.pop(0)()
    def stats(gi):
        R=RAW+32*gi; S=[224,228][gi&1]
        g.wait(f'x{gi}')
        if gi==0: g.stamp()
        for i in range(32):
            if i<2: g(f'v_dot2_f32_bf16 v{S+i}, v{R+i}, s59, 0\nv_dot2_f32_bf16 v{S+2+i}, v{R+i}, v{R+i}, 0')
            else:   g(f'v_dot2c_f32_bf16 v{S+(i&1)}, s59, v{R+i}\nv_dot2c_f32_bf16 v{S+2+(i&1)}, v{R+i}, v{R+i}')
            if i%4==3: g.side()
            if i>=2: ch(2)
        while chainq: ch()
        o=232+4*(gi&1); r1=RC[gi]; a,b,c,d=20,21,22,23
        lines=f'''v_add_f32 v{S}, v{S}, v{S+1}
        v_add_f32 v{S+2}, v{S+2}, v{S+3}
        v_add_f32_dpp v{S}, v{S}, v{S} quad_perm:[1,0,3,2] row_mask:0xf bank_mask:0xf
        v_add_f32_dpp v{S+2}, v{S+2}, v{S+2} quad_perm:[1,0,3,2] row_mask:0xf bank_mask:0xf
        v_add_f32_dpp v{S}, v{S}, v{S} quad_perm:[2,3,0,1] row_mask:0xf bank_mask:0xf
        v_add_f32_dpp v{S+2}, v{S+2}, v{S+2} quad_perm:[2,3,0,1] row_mask:0xf bank_mask:0xf
        v_add_f32_dpp v{S}, v{S}, v{S} row_half_mirror row_mask:0xf bank_mask:0xf
        v_add_f32_dpp v{S+2}, v{S+2}, v{S+2} row_half_mirror row_mask:0xf bank_mask:0xf
        v_mul_f32 v{a}, {f2u(-1/512):#x}, v{S}
        v_mul_f32 v{b}, {f2u(1/512):#x}, v{S+2}
        v_fma_f32 v{b}, -v{a}, v{a}, v{b}
        v_cvt_pk_bf16_f32 v{d}, v{a}, v{a}
        v_max_f32 v{b}, 0, v{b}
        v_lshlrev_b32 v{d}, 16, v{d}
        v_cvt_pk_bf16_f32 v{c}, 0, v{b}
        v_sub_f32 v{d}, v{a}, v{d}
        v_add_f32 v{c}, {eps}, v{c}
        v_cvt_pk_bf16_f32 v{o}, v{a}, v{d}
        v_cvt_pk_bf16_f32 v{c}, 0, v{c}
        v_mul_f32 v{r1+1}, s101, v{a}
        v_sqrt_f32 v{c}, v{c}
        v_mov_b32 v{o+3}, s47
        v_cvt_pk_bf16_f32 v{c}, 0, v{c}
        v_rcp_f32 v{r1}, v{c}
        v_mul_f32 v{b}, v{b}, v{r1}
        v_mul_f32 v{b}, v{b}, v{r1}
        v_cvt_pk_bf16_f32 v{b}, 0, v{b}
        v_add_f32 v{b}, {eps}, v{b}
        v_cvt_pk_bf16_f32 v{b}, 0, v{b}
        v_sqrt_f32 v{b}, v{b}
        v_cvt_pk_bf16_f32 v{b}, 0, v{b}
        v_mul_f32 v{o+2}, v{b}, v{c}
        v_cvt_pk_bf16_f32 v{b}, 0, v{o+2}
        v_sub_f32 v{b}, v{o+2}, v{b}
        v_cvt_pk_bf16_f32 v{o+1}, v{o+2}, v{b}'''.split('\n')
        for ln in lines: chainq.append(lambda ln=ln: g(ln))
        chainq.append(lambda: g.vmem(f'buffer_store_dwordx4 v[{o}:{o+3}], v{vSP}, s[40:43], 0 offen offset:{256*gi} sc1','sp'))
    def bfly(gi):
        R=RAW+32*gi; r1=RC[gi]
        for j in range(4):
            o=[24,28][j&1]; T=[40,48][j&1]
            for i in range(4):
                a_=R+4*j+i; t=T+2*i
                g(f'v_dot2_f32_bf16 v{t}, v{a_}, s60, v{r1+1}\nv_dot2_f32_bf16 v{t+1}, v{a_}, s61, v{r1+1}'); ch()
            g.side()
            for i in range(4):
                b_=R+4*(j+4)+i; t=T+2*i
                g(f'v_dot2c_f32_bf16 v{t}, s62, v{b_}\nv_dot2c_f32_bf16 v{t+1}, s63, v{b_}'); ch()
            ch(2)
            for i in range(4):
                t=T+2*i
                g(f'v_pk_mul_f32 v[{t}:{t+1}], v[{t}:{t+1}], v[{r1}:{r1+1}] op_sel_hi:[1,0]')
            g.side()
            for i in range(4):
                t=T+2*i
                g(f'v_cvt_pk_bf16_f32 v{o+i}, v{t}, v{t+1}')
            g(f'ds_write_b128 v{vWo if gi&1 else vWe}, v[{o}:{o+3}] offset:{16384*j+1024*gi}')
        while chainq: ch()
    W0=16384
    wl={0:W0,1:W0+4096,2:W0,3:W0+4096,4:W0,5:W0+4096,6:W0,7:W0+4096,8:0,9:4096,10:W0,11:W0+4096,12:8192,13:8192+4096}
    wd=lambda pr: w2_pair_ops(g,pr,'s55',wl[pr])
    order=g.opt.get('dord','d')
    plan={'a':[[],xops(2),xops(3),bops(0),bops(1),[],'w',[]],
          'b':[xops(2),xops(3),bops(0),bops(1),[],[],'w',[]],
          'c':[[],xops(2)+xops(3),bops(0),bops(1),[],'w',[],[]],
          'd':[xops(2),xops(3),[],bops(1),[],[],'w',[]],
          'e':[[],xops(2),xops(3),bops(1),[],[],'w',[]]}[order]
    if order in 'de':
        for op in xops(1): op()
    seq=((stats,0),(stats,1),(bfly,0),(stats,2),(bfly,1),(stats,3),(bfly,2),(bfly,3))
    if g.opt.get('sfirst'):
        seq=((stats,0),(stats,1),(stats,2),(stats,3),(bfly,0),(bfly,1),(bfly,2),(bfly,3))
        plan=[xops(2),xops(3),bops(0),[],bops(1),[],'w',[]] if order not in 'de' else [xops(2),xops(3),[],bops(1),[],[],'w',[]]
    for k,(fn,gi) in enumerate(seq):
        if plan[k]=='w':
            for x in early: g(x)
            g.sideq+=wd(0)+wd(1)
        else: g.sideq+=plan[k]
        if fn is stats:
            while any(1 for op in plan[max(k-2,0)] if False): pass
        fn(gi); g.stamp('dst')
        if order=='c' and k==1: g.flush_side()
    g.flush_side()
    g('s_waitcnt lgkmcnt(0)\ns_barrier')
    g.stamp(); g.stamp('dst')
    ACC=64
    def fr(s_):
        b=[32,216][s_]
        return dict(A=[b,b+4,b+8,b+12],B=[b+16,b+20])
    def rd(n):
        st,kk=n>>2,n&3; f=fr(n&1)
        bb=lambda ab: f'ds_read_b128 v[{f["B"][ab]}:{f["B"][ab]+3}], v{vFB[kk]} offset:{(st&1)*8192+4096*ab}'
        aa=lambda ti: f'ds_read_b128 v[{f["A"][ti]}:{f["A"][ti]+3}], v{vFA[kk]} offset:{st*16384+4096*ti}'
        return [aa(0),bb(0),bb(1),aa(1),aa(2),aa(3)]
    g.wait('B0')
    for x in rd(0): g(x)
    vTB=[18,19]
    nT=[i for i,x in enumerate(addr) if f'v_add_u32 v{vT[3]}' in x][0]+1
    for x in addr[8:nT]+['s_sub_u32 s0, s55, s69',f'v_add_u32 v18, s0, v{vT[0]}',f'v_add_u32 v19, s0, v{vT[1]}']: g(x)
    if not g.opt.get('trigp2',1):
        trig=trig_ops(0,{1:20,2:21,3:22,5:23,6:30,7:31,9:57,12:2,13:3,14:8,15:9,16:240,17:241,18:242,19:243,20:24,21:25,22:26,23:27})
    g.miscq=addr[:8]+addr[nT:]+trig
    TRS={0:0,1:1,5:2,6:3,9:4,10:5,13:6,14:7}
    DMS={1:[2],2:[3],6:[4],7:[5],10:[6],11:[7,8],12:[9],14:[10],15:[11]}
    for n in range(16):
        f=fr(n&1)
        def mf(ti,ab):
            d=ACC+32*ti+16*ab
            g(f'{MF} v[{d}:{d+15}], v[{f["A"][ti]}:{f["A"][ti]+3}], v[{f["B"][ab]}:{f["B"][ab]+3}], '+(f'v[{d}:{d+15}]' if n else '0'))
        nx=rd(n+1) if n<15 else []
        g('s_waitcnt lgkmcnt(0)'); mf(0,0)
        if n==3: g.sideq+=bops(2)
        if n==7: g.sideq+=bops(3)
        for pr in DMS.get(n,[]): g.sideq+=wd(pr)
        if (n+1)%4==0 and n<15: g.wait(f'B{(n+1)>>2}')
        for x in nx[:3]: g(x)
        mf(0,1)
        for x in nx[3:]: g(x)
        mf(1,0)
        trq=[]
        if n in TRS:
            assert not any(True for op in g.sideq if getattr(op,'pr',None)==TRS[n])
            g.wait(f'w{TRS[n]}'); trq=w2_trl(TRS[n],vTB,wl[TRS[n]])
        for k,(ti,ab) in enumerate(((1,1),(2,0),(2,1),(3,0),(3,1))):
            if trq and k>=3:
                for x in trq[:4]: g(x)
                trq=trq[4:]
            else:
                had=bool(g.sideq); g.side(); misc(g,2 if had else 4)
            mf(ti,ab)
        had=bool(g.sideq); g.side(); misc(g,2 if had else 4)
    g.stamp(); g.stamp('s1')
    g.sideq+=wd(12)+wd(13)
    def trop(pr):
        def op():
            g.wait(f'w{pr}')
            for x in w2_trl(pr,vTB,wl[pr])[:4]: g(x)
        def op2():
            for x in w2_trl(pr,vTB,wl[pr])[4:]: g(x)
        return [op,op2]
    NJ=g.opt.get('nj',4)
    for pr in range(8,min(12,14-NJ)): g.sideq+=trop(pr)
    g.sideq+=[lambda: [misc(g,1) for _ in range(len(g.miscq)-len(trig))]]
    def zc(ti):
        Z=[32,216][ti&1]; L=[]
        for ab in range(2):
            d=ACC+32*ti+16*ab
            for i in range(8): L.append(f'v_cvt_pk_bf16_f32 v{Z+8*ab+i}, v{d+2*i}, v{d+2*i+1}')
        return L
    for x in zc(0): g(x)
    for ti in range(4):
        Z=[32,216][ti&1]
        za=[Z,Z+4]; zb=[Z+8,Z+12]; ur=ACC+32*ti; ui=ur+16
        nxt=zc(ti+1) if ti<3 else []
        seq=[(ur,CC[0],za[0],1),(ui,CC[0],zb[0],1),(ur,CC[1],za[1],0),(ui,CC[1],zb[1],0),(ur,SS[0],zb[0],0),(ui,NS[0],za[0],0),(ur,SS[1],zb[1],0),(ui,NS[1],za[1],0)]
        for n,(d,am,bm,first) in enumerate(seq):
            g(f'{MF} v[{d}:{d+15}], v[{am}:{am+3}], v[{bm}:{bm+3}], '+('0' if first else f'v[{d}:{d+15}]'))
            for x in nxt[2*n:2*n+2]: g(x)
            had=bool(g.sideq); g.side(); misc(g,(0 if had else 2)+(0 if nxt else 2))
    g.stamp('s1')
    g.flush_side(); misc(g,9999)
    g.stamp('s1')
    for op in xb2_ops(g): op()
    for pr in (12,13):
        if pr<14-NJ:
            for op in trop(pr): op()
    for k in range(NJ//2): g(f'v_add_u32 v{vJ[k][0]}, {wl[12-2*k]}, v{vTB[0]}\nv_add_u32 v{vJ[k][1]}, {wl[12-2*k]}, v{vTB[1]}')
    g.stamp('s1')
    srd(g,36,28,2097152,add=U_OFF)
    g(f'''v_and_b32 v24, 31, v0
    v_lshrrev_b32 v25, 5, v0
    v_lshlrev_b32 v24, 4, v24
    v_lshl_add_u32 v24, v25, 18, v24
    s_lshl_b32 s53, s3, 9
    v_add_u32 v24, s53, v24
    s_lshl_b32 s53, s48, 1
    s_add_u32 s53, s53, s49
    s_lshl_b32 s53, s53, 11''')
    for r in range(16):
        o=32+4*(r&3)
        for ti in range(4): g(f'v_cvt_pk_bf16_f32 v{o+ti}, v{ACC+32*ti+r}, v{ACC+32*ti+16+r}')
        g(f's_add_u32 s54, s53, {(8*(r>>2)+(r&3))*65536}')
        g.vmem(f'buffer_store_dwordx4 v[{o}:{o+3}], v24, s[36:39], s54 offen sc1','st')
    g.stamp(); g.stamp('s1')
    g('v_mov_b32 v2, s47')
    g.vmem(f'buffer_load_dword v3, v{vPL}, s[40:43], 0 offen sc1','poll')
    g.wait('poll')
    g.stamp('s1')
    g('s_waitcnt lgkmcnt(0)\ns_barrier')
    g(f'buffer_store_dword v2, v{vSG}, s[40:43], 0 offen sc1')
    g('s_lshl_b32 s53, s3, 12')
    for d in (1,2,3): g(f's_add_u32 s{5+d}, s53, {(d-1)*16384}\ns_xor_b32 s{8+d}, s{5+d}, {d*4096}')
    g('s_lshr_b32 s12, s53, 1\ns_add_u32 s12, s12, 49152')

def p2(g):
    ACC=64; ACS=128; UF=144
    XS=32768+4096
    HR=[16+8*i for i in range(5)]+[192+8*i for i in range(5)]
    NH=len(HR)
    g.stamp(); g.stamp('tail')
    srd(g,36,28,7340032); srd(g,32,28,2097152,add=U_OFF); srd(g,72,24,2097152)
    g(f'''s_sub_u32 s62, 32, s71
    s_and_b32 s62, s62, 31
    s_cmp_lt_u32 s70, 4
    s_cselect_b32 s62, s71, s62
    s_lshl_b32 s62, s62, 16
    v_mov_b32 v185, 0
    v_mov_b32 v186, 0
    v_mov_b32 v187, 0
    v_mov_b32 v188, 0x3f80
    v_cmp_gt_u32 vcc, 32, v0
    v_mov_b32 v189, 0
    v_mov_b32 v190, 0
    v_cndmask_b32 v188, 0, v188, vcc
    v_mov_b32 v191, 0
    s_mul_i32 s57, s71, 112
    s_mul_i32 s53, s3, 28
    s_add_u32 s57, s57, s53
    s_lshl_b32 s57, s57, 11
    s_add_u32 s59, s57, {28*2048}
    s_lshl_b32 s53, s44, 12
    s_add_u32 s58, s57, s53
    v_mov_b32 v2, s47
    s_mov_b32 s56, {SPIN}''')
    for d in (1,2,3):
        g(f'v_lshl_add_u32 v{9+d}, v0, 4, s{5+d}')
    g(f'v_mov_b32 v9, v{vFL}')
    g(f'''v_mov_b32 v184, v{vB2}
    v_cmp_ne_u32 vcc, s47, v3
    s_cbranch_vccz L_go
    L_poll:
    buffer_load_dword v3, v{vPL}, s[40:43], 0 offen sc1
    s_waitcnt vmcnt(0)
    v_cmp_ne_u32 vcc, s47, v3
    s_cbranch_vccz L_go
    s_sleep {g.opt.get('sleep',4)}
    s_sub_u32 s56, s56, 1
    s_cbranch_scc0 L_poll
    L_go:''')
    g.vm=['old']*30
    g.stamp(); g.stamp('tail')
    hidx=[0]
    def hload():
        ks=hidx[0]; r=HR[ks%NH]
        g.vmem(f'buffer_load_dwordx4 v[{r}:{r+3}], v{vH0}, s[36:39], s58 offen offset:{2048*(ks&1)} {g.opt.get("hld","sc1").replace("none","")}',f'h{ks}')
        g.vmem(f'buffer_load_dwordx4 v[{r+4}:{r+7}], v{vH1}, s[36:39], s58 offen offset:{2048*(ks&1)} {g.opt.get("hld","sc1").replace("none","")}',f'h{ks}')
        if ks&1 and ks<27: g('s_add_u32 s58, s58, 4096\ns_cmp_eq_u32 s58, s59\ns_cselect_b32 s58, s57, s58')
        hidx[0]+=1
    HD=g.opt.get('hdepth',8)
    g(f's_waitcnt lgkmcnt(0)\ns_mov_b32 s69, s12\ns_mov_b32 m0, s12\ns_mov_b32 s55, 0x80000')
    for i in range(HD): hload()
    g(f'{MF} v[{ACC}:{ACC+15}], v[184:187], v[188:191], 0')
    XA=[236,237,238,239]
    xa=Rec()
    xa(f'''v_and_b32 v236, 31, v0
    v_lshrrev_b32 v237, 5, v0
    v_lshlrev_b32 v237, 3, v237
    v_lshl_add_u32 v237, v236, 6, v237
    v_bfe_u32 v236, v0, 2, 2
    v_lshl_add_u32 v236, v236, 4, v237
    v_add_u32 v236, s69, v236
    v_xor_b32 v237, 16, v236
    v_xor_b32 v238, 32, v236
    v_xor_b32 v239, 48, v236
    v_lshl_add_u32 v240, v0, 4, s69''')
    KF=g.opt.get('kflag',12)
    NL=g.opt.get('nlast',3)
    def mf(ks,a_,b):
        r=HR[ks%NH]; d=ACC+16*(a_+2*b)
        c='0' if (ks==0 and (a_ or b)) else f'v[{d}:{d+15}]'
        g(f'{MF} v[{d}:{d+15}], a[{8*ks+4*a_}:{8*ks+4*a_+3}], v[{r+4*b}:{r+4*b+3}], {c}')
    checked=False
    NJ=g.opt.get('nj',4)
    jit=[x for pr in range(14-NJ,14) for x in w2_trl(pr,vJ[(13-pr)>>1],4096*(pr&1))]
    g.miscq=xa.l+(trig_ops(0) if g.opt.get('trigp2',1) else [])
    for ks in range(28-NL):
        g.wait(f'h{ks}')
        if NJ and ks==16: g('s_waitcnt lgkmcnt(0)')
        if ks==0:
            g.stamp()
        for b in range(2):
            for a_ in range(2):
                mf(ks,a_,b)
                if a_==0 and b==0 and ks>=1 and jit:
                    for x in jit[:4]: g(x)
                    del jit[:4]
                elif not (a_==1 and b==1): misc(g,g.opt.get('p2misc',4))
            if b==0 and g.sideq: g.side()
        if hidx[0]<28: hload()
        elif g.sideq: g.side()
        if ks==g.opt.get('kx',2):
            g.vmem(f'buffer_load_dwordx4 v{vXO}, s[76:79], 0 offen lds','xl')
            g('s_add_u32 m0, m0, 1024')
            g.vmem(f'buffer_load_dwordx4 v{vXO}, s[76:79], s55 offen lds','xl')
        if ks==22:
            assert 'xl' not in g.vm
            for q in range(4): g(f'ds_read_b64 v[{XR+2*q}:{XR+2*q+1}], v{XA[q]}')
        if ks==KF: g.vmem(f'buffer_load_dword v176, v9, s[40:43], 0 offen sc1','fl')
        if 'fl' not in g.vm and ks>KF and not checked:
            checked=True
            g(f'''L_chk:
            v_cmp_ne_u32 vcc, s47, v176
            s_cbranch_vccnz L_uslow
            L_allset:''')
            ool(g,'''L_uslow:
            s_sleep 4
            buffer_load_dword v176, v9, s[40:43], 0 offen sc1
            s_waitcnt vmcnt(0)
            s_sub_u32 s56, s56, 1
            s_cbranch_scc0 L_chk
            s_branch L_allset''')
            def mku(j):
                def op():
                    g(f's_add_u32 s53, s62, {8192*j}')
                    g.vmem(f'buffer_load_dwordx4 v[{UF+4*j}:{UF+4*j+3}], v{vU}, s[32:35], s53 offen sc1','u')
                return op
            g.sideq+=[mku(j) for j in range(8)]
    assert checked and not g.miscq
    g.flush_side()
    XF=176
    def wr(d):
        for q in range(4):
            r=ACC+16*d+4*q
            g(f'ds_write_b128 v{9+d}, v[{r}:{r+3}] offset:{1024*q}')
    for n,d in enumerate((3,2,1,0)):
        for ks in range(28-NL,28):
            g.wait(f'h{ks}')
            mf(ks,d&1,d>>1)
        if n==0: g('s_waitcnt lgkmcnt(0)')
        if n==1:
            for i in range(4): g(f'v_lshlrev_b32 v{XF+2*i}, 16, v{XR+i}\nv_and_b32 v{XF+2*i+1}, 0xffff0000, v{XR+i}')
            wr(3)
        if n==2:
            for i in range(4,8): g(f'v_lshlrev_b32 v{XF+2*i}, 16, v{XR+i}\nv_and_b32 v{XF+2*i+1}, 0xffff0000, v{XR+i}')
            wr(2)
    g.stamp()
    g(f's_mov_b32 s60, {f2u(-math.log2(math.e)):#x}\ns_mov_b32 s61, s60\ns_mov_b32 s62, 1.0\ns_mov_b32 s63, 1.0')
    def smm(J):
        for j in J:
            g(f'{MF} v[{ACS}:{ACS+15}], v[{UF+4*j}:{UF+4*j+3}], a[{224+4*j}:{227+4*j}], '+('0' if j==0 else f'v[{ACS}:{ACS+15}]'))
    wr(1)
    g.waitall()
    SB=g.opt.get('sbar',3)
    smm(range(SB))
    for d in (1,2,3): g(f'v_lshl_add_u32 v{9+d}, v0, 4, s{8+d}')
    g('s_waitcnt lgkmcnt(0)\ns_barrier')
    rds=[f'ds_read_b128 v[{[192,208,16][d]+4*q}:{[192,208,16][d]+4*q+3}], v{10+d} offset:{1024*q}' for q in range(4) for d in range(3)]
    for j in range(SB,8):
        smm([j])
        for x in rds[:4]: g(x)
        del rds[:4]
    for x in rds: g(x)
    g('''s_lshl_b32 s1, s2, 2
    s_add_u32 s1, s1, s3
    s_cmp_lg_u32 s1, 803
    s_cbranch_scc1 L_noep0
    v_lshrrev_b32 v4, 2, v0
    v_and_b32 v5, 3, v0
    v_lshl_add_u32 v4, v4, 3, v5
    v_lshlrev_b32 v4, 8, v4
    buffer_load_dwordx4 v[6:9], v4, s[40:43], 0 offen sc1
    L_noep0:''')
    T=80
    for hf in range(2):
        g(f's_waitcnt lgkmcnt({6-6*hf})')
        I=range(4*hf,4*hf+4)
        for i in I: g(f'v_pk_add_f32 v[{192+2*i}:{193+2*i}], v[{192+2*i}:{193+2*i}], v[{208+2*i}:{209+2*i}]')
        for i in I: g(f'v_pk_add_f32 v[{ACC+2*i}:{ACC+2*i+1}], v[{ACC+2*i}:{ACC+2*i+1}], v[{16+2*i}:{17+2*i}]')
        for i in I: g(f'v_pk_add_f32 v[{ACC+2*i}:{ACC+2*i+1}], v[{ACC+2*i}:{ACC+2*i+1}], v[{192+2*i}:{193+2*i}]')
        for i in I: g(f'v_pk_mul_f32 v[{T+2*i}:{T+2*i+1}], v[{ACC+2*i}:{ACC+2*i+1}], s[60:61]')
        for i in I: g(f'v_exp_f32 v{T+2*i}, v{T+2*i}\nv_exp_f32 v{T+2*i+1}, v{T+2*i+1}')
        for i in I: g(f'v_pk_add_f32 v[{T+2*i}:{T+2*i+1}], v[{T+2*i}:{T+2*i+1}], s[62:63]')
        for i in I: g(f'v_rcp_f32 v{T+2*i}, v{T+2*i}\nv_rcp_f32 v{T+2*i+1}, v{T+2*i+1}')
        sp=lambda r: ACS+4*(2*(r>>3)+(r&1))+2*((r>>2)&1)+((r>>1)&1)
        for i in I:
            for r in (2*i,2*i+1): g(f'v_mul_f32 v{ACC+r}, v{ACC+r}, v{sp(r)}')
        for i in I: g(f'v_pk_fma_f32 v[{T+2*i}:{T+2*i+1}], v[{T+2*i}:{T+2*i+1}], v[{ACC+2*i}:{ACC+2*i+1}], v[{XF+2*i}:{XF+2*i+1}]')
        for i in I: g(f'v_cvt_pk_bf16_f32 v{96+i}, v{T+2*i}, v{T+2*i+1}')
        for q in (2*hf,2*hf+1): g(f'ds_write_b64 v{XA[q]}, v[{96+2*q}:{97+2*q}]')
    g('s_waitcnt lgkmcnt(0)\nds_read_b128 v[104:107], v240\nds_read_b128 v[108:111], v240 offset:1024\ns_waitcnt lgkmcnt(1)')
    g(f'buffer_store_dwordx4 v[104:107], v{vXO}, s[72:75], 0 offen {g.opt.get("outfl","")}\ns_waitcnt lgkmcnt(0)\nbuffer_store_dwordx4 v[108:111], v{vXO}, s[72:75], s55 offen {g.opt.get("outfl","")}')
    g(f'''s_cmp_lg_u32 s1, 803
    s_cbranch_scc1 L_noep
    s_waitcnt vmcnt(2)
    L_ep:
    v_xor_b32 v6, s47, v6
    v_xor_b32 v7, s47, v7
    v_xor_b32 v8, s47, v8
    v_xor_b32 v9, s47, v9
    v_or3_b32 v6, v6, v7, v8
    v_or_b32 v6, v6, v9
    v_cmp_ne_u32 vcc, 0, v6
    s_cbranch_vccz L_epok
    s_sleep 8
    buffer_load_dwordx4 v[6:9], v4, s[40:43], 0 offen sc1
    s_waitcnt vmcnt(0)
    s_sub_u32 s56, s56, 1
    s_cbranch_scc0 L_ep
    L_epok:
    v_mov_b32 v3, {EPO}
    s_mov_b64 exec, 1
    buffer_store_dword v2, v3, s[40:43], 0 offen sc1
    s_mov_b64 exec, -1
    L_noep:''')
    g.stamp()

def build(stamps=False, opt=None):
    g=G(stamps,opt); g.miscq=[]; g.outofline=[]
    entry(g)
    head=list(g.a.l); vm0=list(g.vm); n0=g.nst
    g.a.l=[]; p1_mlp(g); mlp=list(g.a.l); n1=g.nst
    g.a.l=[]; g.vm=list(vm0); g.nst=n0; g.miscq=[]
    p1_dft(g); dft=list(g.a.l)
    k=[i for i,x in enumerate(dft) if '@@SPLIT@@' in x][0]
    g.nst=max(g.nst,n1)
    g.a.l=[]; p2(g); g.dump_stamps(TS_OFF); tail=list(g.a.l)
    km=[i for i,x in enumerate(mlp) if '@@SPLIT@@' in x][0]
    lines=head+mlp[:km]+['    s_branch L_mlp','L_dfte:']+dft[:k]+['    s_branch L_dft','L_mlp:']+mlp[km+1:]+['L_dft:']+dft[k+1:]+['L_p2:']+tail+['L_end:','    s_endpgm']+g.outofline+['L_codeend:']
    body='\n'.join(hazard.fix(lines))+'\n'
    return wrap([dict(name=KN,body=body,grid=256,block=256,lds=163840,vgpr=512,accum=256)],HDR)
if __name__=='__main__':
    out=sys.argv[1]; st='stamps' in sys.argv[2:]
    opt={}
    for a in sys.argv[2:]:
        if '=' in a:
            k,v=a.split('='); opt[k]=int(v) if v.lstrip('-').isdigit() else v
    open(out,'w').write(build(st,opt))
```

```python
import sys, math, struct, re
sys.path.insert(0,'tools')
from asmlib import A, wrap, KN
import hazard
from gen3 import G, srd, t1_of, f2u, HDR, U_OFF, ST_OFF, CS_REL, TS_OFF, SPIN

F_OFF = 12<<20
F2 = 8192
FU=32768; EPO=40960
WT_OFF = 14<<20
vB2, vXO = 254, 255
vD=[226+i for i in range(0)]
vDM=[246,247,248,249]
vT=[250,251,252,253]
XR=246
vSG,vH0,vH1,vU,vFL,vPL = 58,59,60,61,62,63
vTT=245
MF='v_mfma_f32_32x32x16_bf16'
OOB='0x40000000'

class Rec:
    def __init__(s): s.l=[]
    def __call__(s,t):
        for x in t.split('\n'):
            x=x.strip()
            if x: s.l.append(x)
def ool(g, text):
    g.outofline+=[x.strip() if x.strip().endswith(':') else '    '+x.strip() for x in text.split('\n') if x.strip()]
def misc(g, n):
    while n>0 and g.miscq:
        x=g.miscq.pop(0); g(x)
        n-= x.count('\n')+1 + (1 if ('v_cos' in x or 'v_sin' in x) else 0)
def epoch_load(g):
    g(f's_add_u32 s60, s28, {F_OFF+EPO}\ns_addc_u32 s61, s29, 0\ns_load_dword s47, s[60:61], 0')
def nonce(g):
    g('s_mul_i32 s47, s47, 0x9e3779b1\ns_add_u32 s47, s47, 0x85ebca6b')

def p2_setup_ops(g, dft):
    r=Rec(); t=lambda i:f'v{1000+i}'
    if g.opt.get('p2arr',84)==48:
        r('''s_and_b32 s70, s31, 7
        s_lshr_b32 s0, s31, 4
        s_lshl_b32 s1, s30, 1
        s_add_u32 s45, s0, s1
        s_bfe_u32 s1, s31, 0x10003''')
    else:
        r('''s_and_b32 s70, s30, 1
        s_lshl_b32 s70, s70, 2
        s_lshr_b32 s0, s31, 2
        s_add_u32 s0, s0, s31
        s_and_b32 s0, s0, 3
        s_add_u32 s70, s70, s0
        s_lshr_b32 s45, s30, 1
        s_lshl_b32 s45, s45, 2
        s_lshr_b32 s0, s31, 3
        s_add_u32 s45, s45, s0
        s_bfe_u32 s1, s31, 0x10002''')
    r.l.append('s_sub_u32 s0, 32, s45\ns_cmp_eq_u32 s45, 0\ns_cselect_b32 s0, 16, s0\ns_cmp_eq_u32 s1, 0\ns_cselect_b32 s71, s45, s0')
    wr=g.opt.get('wrot',3)
    if wr==0: r('s_mov_b32 s44, 0')
    elif wr==1: r('s_mul_i32 s44, s30, 7\ns_lshr_b32 s44, s44, 2')
    elif wr==3: r('s_lshr_b32 s44, s31, 2\ns_mul_i32 s44, s44, 7\ns_lshr_b32 s44, s44, 2')
    elif wr==5: r('s_lshr_b32 s44, s31, 2\ns_max_u32 s44, s44, 1\ns_sub_u32 s44, s44, 1\ns_lshl_b32 s44, s44, 1')
    elif wr==4: r('s_lshr_b32 s44, s31, 3\ns_mul_i32 s44, s44, 7\ns_lshr_b32 s44, s44, 1')
    elif wr==2: r('s_lshr_b32 s44, s30, 1\ns_mul_i32 s44, s44, 7\ns_lshr_b32 s44, s44, 1')
    ho={0:None,1:(1,7),2:(1,4),3:(3,3),4:(3,1),5:(1,2)}[g.opt.get('hoff',0)]
    if ho:
        r.l.append(f's_and_b32 s0, s70, {ho[0]}\ns_mul_i32 s0, s0, {ho[1]}\ns_add_u32 s44, s44, s0\ns_cmp_ge_u32 s44, 14\ns_cselect_b32 s0, 14, 0\ns_sub_u32 s44, s44, s0'.replace('{ho[0]}',str(ho[0])) )
    r(f'''s_lshl_b32 s68, s44, 15
    s_lshl_b32 s69, s3, 13
    v_lshrrev_b32 {t(4)}, 3, v0
    v_bfe_u32 {t(5)}, v0, 4, 1
    v_lshlrev_b32 {t(6)}, 2, {t(5)}
    v_and_b32 {t(7)}, 7, v0
    v_xor_b32 {t(6)}, {t(6)}, {t(7)}
    v_lshlrev_b32 {t(6)}, 4, {t(6)}
    v_lshl_add_u32 {t(6)}, {t(4)}, 10, {t(6)}
    s_mul_i32 s0, s3, {448*1024}
    s_lshl_b32 s1, s70, 7
    s_add_u32 s0, s0, s1
    v_add_u32 v{vDM[0]}, s0, {t(6)}
    v_add_u32 v{vDM[1]}, {7168}, v{vDM[0]}
    v_add_u32 v{vDM[2]}, {2*7168}, v{vDM[0]}
    v_add_u32 v{vDM[3]}, {3*7168}, v{vDM[0]}''')
    srd(r,64,20,1792*512*2)
    early=r.l; r=Rec()
    srd(r,72,22,1024); srd(r,76,4,2097152)
    r(f'''v_lshrrev_b32 {t(4)}, 5, v0
    v_bfe_u32 {t(5)}, v0, 4, 1
    v_bfe_u32 {t(6)}, v0, 2, 2
    v_lshl_add_u32 {t(7)}, {t(4)}, 2, {t(6)}
    v_lshlrev_b32 {t(7)}, 7, {t(7)}
    v_lshrrev_b32 {t(6)}, 1, {t(6)}
    s_and_b32 s0, s3, 1
    v_xor_b32 {t(6)}, s0, {t(6)}
    v_lshl_add_u32 {t(7)}, {t(6)}, 6, {t(7)}
    v_lshl_add_u32 {t(7)}, {t(5)}, 5, {t(7)}
    v_and_b32 {t(6)}, 3, v0
    v_lshl_add_u32 {t(7)}, {t(6)}, 3, {t(7)}
    v_add_u32 v{vT[0]}, s69, {t(7)}
    v_xor_b32 v{vT[1]}, 64, v{vT[0]}
    v_add_u32 v{vT[2]}, 0x18000, v{vT[0]}
    v_add_u32 v{vT[3]}, 0x18000, v{vT[1]}
    s_lshl_b32 s0, s30, 9
    s_add_u32 s0, s0, {FU}
    v_and_b32 {t(7)}, 31, v0
    v_lshl_add_u32 v{vFL}, {t(7)}, 2, s0
    s_lshl_b32 s0, s45, 1
    s_and_b32 s1, s30, 1
    s_add_u32 s0, s0, s1
    s_lshl_b32 s0, s0, 2
    s_add_u32 s0, s0, s3
    s_lshl_b32 s0, s0, 8
    v_and_b32 {t(6)}, 3, v0
    v_lshl_add_u32 v{vPL}, {t(6)}, 2, s0
    s_lshr_b32 s1, s3, 1
    s_lshl_b32 s0, s1, 10
    v_lshl_add_u32 v{vH0}, v0, 4, s0
    v_xor_b32 v{vH1}, 0x400, v{vH0}
    s_lshl_b32 s0, s1, 5
    v_and_b32 {t(6)}, 31, v0
    v_add_u32 {t(5)}, s0, {t(6)}
    v_lshlrev_b32 {t(5)}, 5, {t(5)}
    v_add_u32 v{vTT}, s71, {t(5)}
    s_lshl_b32 s0, s0, 15
    s_lshl_b32 s1, s71, 10
    s_add_u32 s1, s1, s0
    v_lshrrev_b32 {t(5)}, 2, v0
    v_lshlrev_b32 {t(5)}, 15, {t(5)}
    v_lshrrev_b32 {t(7)}, 4, v0
    v_xor_b32 {t(7)}, {t(7)}, v0
    v_and_b32 {t(7)}, 3, {t(7)}
    v_lshl_add_u32 {t(5)}, {t(7)}, 4, {t(5)}
    v_add_u32 {t(5)}, s1, {t(5)}
    s_lshl_b32 s0, s70, 7
    s_and_b32 s1, s3, 1
    s_lshl_b32 s1, s1, 6
    s_add_u32 s0, s0, s1
    v_add_u32 v{vXO}, s0, {t(5)}
    v_lshl_add_u32 v{vB2}, {t(6)}, 1, s0
    s_lshr_b32 s0, s0, 1
    v_and_b32 {t(5)}, 20, v0
    v_bfe_u32 {t(7)}, v0, 1, 1
    v_lshl_add_u32 {t(5)}, {t(7)}, 3, {t(5)}
    v_and_b32 {t(7)}, 1, v0
    v_lshl_add_u32 {t(5)}, {t(7)}, 1, {t(5)}
    v_bfe_u32 {t(7)}, v0, 3, 1
    v_add3_u32 {t(6)}, {t(5)}, {t(7)}, s0''')
    r.l.append('s_cmp_lt_u32 s70, 4\ns_cselect_b32 s0, 0, -1\ns_cselect_b32 s1, 0, 513')
    r(f'''v_xor_b32 {t(7)}, s0, {t(6)}
    v_add_u32 {t(7)}, s1, {t(7)}
    v_and_b32 {t(8)}, 1, {t(7)}
    v_lshlrev_b32 {t(8)}, 11, {t(8)}
    v_bfe_u32 {t(7)}, {t(7)}, 1, 7
    v_lshl_add_u32 {t(7)}, {t(7)}, 4, {t(8)}
    v_lshl_add_u32 {t(7)}, {t(4)}, 12, {t(7)}
    v_mov_b32 {t(8)}, {OOB}
    v_cmp_eq_u32 vcc, 0, {t(6)}
    s_nop 0
    v_cndmask_b32 v{vU}, {t(7)}, {t(8)}, vcc''')
    if True:
        r.l.append(f's_cmp_eq_u32 s3, 0\ns_cselect_b32 s0, s46, {OOB}')
        if dft:
            r(f'''v_cmp_gt_u32 vcc, 8, v0
            v_lshl_add_u32 {t(10)}, v0, 9, s0
            s_nop 0
            v_cndmask_b32 v{vSG}, {t(8)}, {t(10)}, vcc''')
        else:
            r(f'''v_lshrrev_b32 {t(5)}, 1, v0
            v_mul_u32_u24 {t(6)}, 7, {t(5)}
            v_lshrrev_b32 {t(6)}, 1, {t(6)}
            v_sub_u32 {t(6)}, s49, {t(6)}
            v_and_b32 {t(7)}, 1, v0
            v_lshl_add_u32 {t(7)}, {t(7)}, 2, {t(5)}
            v_cmp_gt_u32 vcc, 4, {t(6)}
            v_lshlrev_b32 {t(7)}, 8, {t(7)}
            v_lshl_add_u32 {t(7)}, {t(6)}, 2, {t(7)}
            v_add_u32 {t(10)}, s0, {t(7)}
            v_cndmask_b32 {t(10)}, {t(8)}, {t(10)}, vcc
            v_cmp_gt_u32 vcc, 8, v0
            s_nop 1
            v_cndmask_b32 v{vSG}, {t(8)}, {t(10)}, vcc''')
    else: r(f'v_mov_b32 v{vSG}, {t(8)}')
    return early, r.l, []
def trig_ops(fract=True, TMX=None):
    r=Rec(); t=lambda i:f'v{1000+i}'
    r.l.append(f's_cmp_lt_u32 s70, 4\ns_cselect_b32 s0, 0, 0x80000000')
    r(f'''s_or_b32 s0, s0, {f2u(1/2048):#x}
    v_mov_b32 {t(5)}, v{vTT}
    v_lshrrev_b32 {t(6)}, 5, v0
    v_cvt_f32_u32 {t(5)}, {t(5)}
    v_cvt_f32_u32 {t(6)}, {t(6)}
    v_mul_f32 {t(5)}, s0, {t(5)}
    v_cmp_gt_u32 s[0:1], 32, v0
    v_mul_f32 {t(6)}, {t(6)}, {t(5)}
    v_mul_f32 {t(7)}, {f2u(32.0):#x}, {t(5)}
    v_add_f32 {t(5)}, {t(5)}, {t(5)}
    v_mul_f32 {t(9)}, 0.5, {t(7)}
    v_cndmask_b32 {t(9)}, {t(7)}, {t(9)}, s[0:1]''')
    for j in range(8):
        if j: r(f'v_add_f32 {t(6)}, {t(6)}, {t(5)}')
        if fract:
            r(f'''v_add_f32 {t(1)}, {t(6)}, {t(7)}
            v_sub_f32 {t(2)}, {t(9) if j==0 else t(7)}, {t(6)}
            v_fract_f32 {t(0)}, {t(6)}
            v_add_f32 {t(3)}, {t(2)}, {t(7)}
            v_fract_f32 {t(1)}, {t(1)}
            v_fract_f32 {t(2)}, {t(2)}
            v_fract_f32 {t(3)}, {t(3)}''')
        else:
            r(f'''v_add_f32 {t(1)}, {t(6)}, {t(7)}
            v_sub_f32 {t(2)}, {t(9) if j==0 else t(7)}, {t(6)}
            v_add_f32 {t(3)}, {t(2)}, {t(7)}''')
        for i in range(4):
            a_=t(i) if (fract or i) else t(6)
            r(f'v_cos_f32 {t(12+2*i)}, {a_}\nv_sin_f32 {t(13+2*i)}, {a_}')
        for i in range(4): r(f'v_cvt_pk_bf16_f32 {t(20+i)}, {t(12+2*i)}, {t(13+2*i)}')
        for i in range(4): r(f'v_accvgpr_write_b32 a{224+4*j+i}, {t(20+i)}')
    TM={0:4,1:5,2:6,3:7,5:13,6:14,7:15,9:8}
    TM.update({12+i:128+i for i in range(8)}); TM.update({20+i:232+i for i in range(4)})
    return remap(r.l,TMX or TM)
def remap(L, TM):
    return [re.sub(r'v(10\d\d)\b', lambda m:'v%d'%TM[int(m.group(1))-1000], x) for x in L]
def xb2_ops(g):
    def o0(): g.vmem(f'buffer_load_ushort v{vB2}, v{vB2}, s[72:75], 0 offen','b2')
    return [o0]
def ppos(pr):
    p=pr%10
    return 131072+p*4096 if p<2 else ((p-2)>>1)*32768+(p&1)*4096
def w2_pair_ops(g, pr, base='s69', lds=None):
    if lds is None: lds=ppos(pr)
    def mk(i):
        def op():
            if i==0: g(f's_add_u32 m0, {base}, {lds}')
            g.vmem(f'buffer_load_dwordx4 v{vDM[i]}, s[64:67], s68 offen offset:{1024*i} lds', f'w{pr}')
            if i==3 and pr<13: g(f's_add_u32 s68, s68, 32768\ns_cmp_eq_u32 s68, {14*32768}\ns_cselect_b32 s68, 0, s68')
        return op
    return [mk(i) for i in range(4)]
def w2_trl(pr, regs=None, off=None):
    if regs is None:
        off=ppos(pr)
        if off>=65536 and off<0x18000: regs=('hi',);
        if off<65536: regs=vT[0:2]
        elif off>=0x18000: regs=vT[2:4]; off-=0x18000
        else: regs=[vTm0,vTm1]; off-=65536
    L=[]
    for k in range(2):
        for a_ in range(2):
            for q in range(2):
                r=8*(2*pr+k)+4*a_+2*q
                L.append(f'ds_read_b64_tr_b16 a[{r}:{r+1}], v{regs[a_]} offset:{off+2048*k+1024*q}')
    return L
vJ=[[241,242],[243,244]]
vTm0,vTm1=14,15

def entry(g):
    g('''s_cmp_ge_u32 s2, 256
    s_cbranch_scc1 L_end''')
    g.stamp()
    g('''s_load_dwordx16 s[4:19], s[0:1], 0
    s_load_dwordx8 s[20:27], s[0:1], 64
    s_load_dwordx2 s[28:29], s[0:1], 96
    v_lshrrev_b32 v1, 6, v0
    s_and_b32 s30, s2, 7
    s_lshr_b32 s31, s2, 3
    v_readfirstlane_b32 s3, v1''')
    if g.opt.get('codepf',1):
        g(f'''s_getpc_b64 s[50:51]
        L_pc:
        s_mul_i32 s53, s31, 1280
        v_lshl_add_u32 v2, v0, 3, s53
        v_min_u32 v2, L_codeend-L_pc-4, v2''')
        g.vmem('global_load_dword v1, v2, s[50:51]','pf')
    if g.opt.get('p1arr',48)==216:
        g('''v_and_b32 v0, 63, v0
        s_lshl_b32 s48, s30, 1
        s_and_b32 s53, s31, 1
        s_cmp_lt_u32 s31, 4
        s_cbranch_scc1 L_dft0
        s_add_u32 s48, s48, s53
        s_lshr_b32 s49, s31, 1
        s_sub_u32 s49, s49, 2
        s_mov_b32 s100, s53''')
        r=g.opt.get('rot',4)
        if r==1: g('s_lshl_b32 s56, s53, 2\ns_add_u32 s56, s56, s49\ns_and_b32 s56, s56, 7')
        elif r==2: g('s_add_u32 s56, s53, s49\ns_and_b32 s56, s56, 1\ns_lshl_b32 s56, s56, 2')
        elif r==4: g('s_lshl_b32 s56, s53, 1\ns_add_u32 s56, s56, s49\ns_and_b32 s56, s56, 3\ns_lshl_b32 s56, s56, 1')
        if g.opt.get('xph',0): g('s_add_u32 s56, s56, s30\ns_and_b32 s56, s56, 7')
        return
    rot=g.opt.get('rot',4)
    g('''v_and_b32 v0, 63, v0
    s_lshr_b32 s48, s30, 1
    s_lshl_b32 s55, s48, 1
    s_lshl_b32 s48, s48, 2
    s_and_b32 s100, s31, 3
    s_add_u32 s48, s48, s100
    s_lshr_b32 s49, s31, 2
    s_sub_u32 s49, s49, 1
    s_and_b32 s49, s49, 7''') if g.opt.get('dftfirst',1) else g('''v_and_b32 v0, 63, v0
    s_lshr_b32 s48, s30, 1
    s_lshl_b32 s55, s48, 1
    s_lshl_b32 s48, s48, 2
    s_lshr_b32 s100, s31, 3
    s_add_u32 s48, s48, s100
    s_and_b32 s49, s31, 7''')
    if rot==1:   g('s_lshl_b32 s56, s100, 1\ns_add_u32 s56, s56, s49\ns_and_b32 s56, s56, 7')
    elif rot==2: g('s_add_u32 s56, s100, s49\ns_and_b32 s56, s56, 1\ns_lshl_b32 s56, s56, 2')
    elif rot==4: g('s_add_u32 s56, s100, s49\ns_and_b32 s56, s56, 3\ns_lshl_b32 s56, s56, 1')
    elif rot==0: g('s_mov_b32 s56, 0')
    if g.opt.get('xph',0): g('s_add_u32 s56, s56, s55\ns_and_b32 s56, s56, 7')
    g('''s_and_b32 s53, s30, 1
    s_cmp_eq_u32 s49, 7
    s_cbranch_scc1 L_dfte''')

def p1_mlp(g):
    ACC=64
    vX=[2,3,4,5]; vW=[6,7,8,9]; vB=[10,11,12,13]; vA=[18,19]
    vSA,vCA,vCP,vCB=14,15,16,17
    vB1=[56,57]; CSA=164; SEL=168; GA=144; GF=160
    WP=200; vP0,vP1,vPT,vPS,vPF=208,209,210,211,212
    rot=g.opt.get('rot',4)
    A216=g.opt.get('p1arr',48)==216
    if A216:
        g('s_and_b32 s50, s3, 1\ns_lshr_b32 s51, s3, 1\ns_and_b32 s53, s49, 1')
    else:
        g('''s_mul_i32 s54, s53, 7
        s_add_u32 s49, s49, s54
        s_and_b32 s50, s3, 1
        s_lshr_b32 s51, s3, 1''')
    g('s_lshl_b32 s63, s48, 1\ns_add_u32 s63, s63, s53')
    t1_of(g,'s52','s48','s51','s53')
    g(f'''v_lshrrev_b32 v24, 3, v0
    v_lshrrev_b32 v25, 4, v0
    v_and_b32 v28, 7, v0
    v_xor_b32 v26, v28, v25
    v_lshlrev_b32 v26, 4, v26
    v_lshl_add_u32 v26, v24, 15, v26
    s_lshl_b32 s53, s52, 10
    s_lshl_b32 s54, s50, 20
    s_add_u32 s53, s53, s54
    v_add_u32 v{vX[0]}, s53, v26
    v_xor_b32 v27, 64, v{vX[0]}
    v_add_u32 v{vX[1]}, {262144-1024}, v27
    v_add_u32 v{vX[2]}, {2*(262144-1024)}, v{vX[0]}
    v_add_u32 v{vX[3]}, {3*(262144-1024)}, v27
    v_and_b32 v26, 15, v0
    v_lshlrev_b32 v27, 2, v25
    v_xor_b32 v26, v26, v27
    v_lshlrev_b32 v26, 4, v26
    v_mul_u32_u24 v29, 3584, v25
    v_add_u32 v26, v26, v29
    s_mul_i32 s53, s3, 57344
    s_lshl_b32 s54, s49, 8
    s_add_u32 s53, s53, s54
    v_add_u32 v{vW[0]}, s53, v26
    v_add_u32 v{vW[1]}, 13312, v{vW[0]}
    v_add_u32 v{vW[2]}, {2*13312}, v{vW[0]}
    v_add_u32 v{vW[3]}, {3*13312}, v{vW[0]}
    s_lshl_b32 s55, s3, 12''')
    g.stamp('pro')
    g('s_waitcnt lgkmcnt(0)')
    g.stamp('pro')
    srd(g,32,4,2097152); srd(g,36,16,512*1792*2)
    def stage_ops(st):
        slot=st&3
        def mk(i):
            def op():
                if i==0: g(f's_lshl_b32 s57, s56, 7\ns_mul_i32 s58, s56, 229376\ns_add_u32 m0, s55, {slot*32768}')
                if i==4: g(f's_add_u32 m0, s55, {slot*32768+16384}\ns_add_u32 s56, s56, 1\ns_and_b32 s56, s56, 7')
                if i<4: g.vmem(f'buffer_load_dwordx4 v{vX[i]}, s[32:35], s57 offen offset:{1024*i} lds',f's{st}')
                else:   g.vmem(f'buffer_load_dwordx4 v{vW[i-4]}, s[36:39], s58 offen offset:{1024*(i-4)} lds',f's{st}')
            return op
        return [mk(i) for i in range(8)]
    D=g.opt.get('depth',3)
    for op in stage_ops(0): op()
    g.stamp('pro')
    for op in stage_ops(1): op()
    g('@@SPLIT@@')
    g.stamp('pro')
    epoch_load(g)
    g(f'''s_lshl_b32 s46, s48, 11
    v_and_b32 v24, 31, v0
    v_lshrrev_b32 v25, 5, v0
    v_bfe_u32 v26, v0, 1, 3
    v_xor_b32 v26, v26, v25
    s_lshl_b32 s53, s51, 13
    v_lshlrev_b32 v27, 7, v24
    v_add_u32 v27, s53, v27''')
    for kk in range(4):
        g(f'''v_xor_b32 v28, {2*kk}, v26
        v_lshl_add_u32 v{vB[kk]}, v28, 4, v27''')
    g(f'''v_bfe_u32 v26, v0, 2, 2
    v_lshl_add_u32 v27, v25, 3, v26
    v_lshlrev_b32 v27, 8, v27
    s_lshl_b32 s53, s50, 1
    s_add_u32 s53, s53, s51
    v_xor_b32 v26, s53, v26
    v_lshl_add_u32 v27, v26, 6, v27
    v_bfe_u32 v26, v0, 4, 1
    v_and_b32 v28, 3, v0
    v_lshlrev_b32 v30, 3, v28
    v_lshl_add_u32 v30, v26, 5, v30
    s_movk_i32 s59, 0x4000
    v_add3_u32 v{vA[0]}, v27, v30, s59
    v_xor_b32 v{vA[1]}, 64, v{vA[0]}
    v_bfe_u32 v27, v0, 2, 1
    v_xor_b32 v26, v26, v27
    v_or_b32 v26, v26, v28
    v_mov_b32 v27, 0x3f803f80
    v_cmp_eq_u32 vcc, 0, v26
    s_lshl_b32 s53, s53, 5
    v_add_u32 v26, s53, v24
    v_cndmask_b32 v{SEL+4}, 0, v27, vcc
    s_lshl_b32 s54, s49, 7
    v_add_lshl_u32 v{vB1[0]}, v26, s54, 1
    v_xor_b32 v{vB1[1]}, 64, v{vB1[0]}''')
    srd(g,40,18,1792*2)
    for t in range(2): g.vmem(f'buffer_load_ushort v{vB1[t]}, v{vB1[t]}, s[40:43], 0 offen','b1')
    if A216:
        g(f'''s_lshl_b32 s53, s49, 3
        s_lshr_b32 s54, s48, 1
        s_add_u32 s53, s53, s54
        s_lshl_b32 s53, s53, 11
        s_add_u32 s53, s53, {CS_REL+(ST_OFF-F_OFF)}
        v_lshl_add_u32 v{vCA}, v26, 4, s53
        s_lshl_b32 s54, s100, 3
        v_add_u32 v{vCP}, s54, v{vCA}
        v_xor_b32 v{vCB}, 0x200, v{vCA}''')
    else: g(f'''s_lshl_b32 s53, s49, 2
    s_lshr_b32 s54, s48, 2
    s_add_u32 s53, s53, s54
    s_lshl_b32 s53, s53, 12
    s_add_u32 s53, s53, {CS_REL+(ST_OFF-F_OFF)}
    v_lshl_add_u32 v26, v26, 5, s53
    s_lshl_b32 s54, s100, 3
    v_add_u32 v{vCP}, s54, v26
    v_lshl_add_u32 v{vCA}, v25, 4, v26
    v_xor_b32 v{vCB}, 0x400, v{vCA}''')
    g(f'''
    s_lshl_b32 s53, s63, 11
    s_lshl_b32 s54, s51, 10
    s_add_u32 s53, s53, s54
    s_add_u32 s53, s53, {ST_OFF-F_OFF}
    v_lshl_add_u32 v{vSA}, v24, 4, s53
''')
    srd(g,40,28,4<<20,add=F_OFF)
    g.stamp('pro')
    WS0=g.opt.get('wsched','o')
    if D==3 and WS0!='y':
        for op in stage_ops(2): op()
    g.stamp('pro')
    g('s_waitcnt lgkmcnt(0)')
    early,addr,trig=p2_setup_ops(g,False)
    TM={i:176+i for i in range(24)}
    early,addr,trig=[remap(x,TM) for x in (early,addr,trig)]
    vBh=[200,201,202,203]; vAh=[204,205]
    g.miscq=[f'v_add_u32 v{h}, 0x10000, v{l}' for h,l in zip(vBh+vAh,vB+vA)]+early+addr+trig
    def fr(s_):
        b=[32,128][s_]
        return dict(A=[b,b+4],B=[b+8,b+12])
    def rd(n):
        st,kk=n>>2,n&3
        f=fr(n&1); o=(st&1)*32768; hi=(st>>1)&1
        tr=lambda t,q: f'ds_read_b64_tr_b16 v[{f["A"][t]+2*q}:{f["A"][t]+2*q+1}], v{[vA,vAh][hi][t]} offset:{o+4096*kk+1024*q}'
        bb=lambda u: f'ds_read_b128 v[{f["B"][u]}:{f["B"][u]+3}], v{[vB,vBh][hi][kk]} offset:{o+4096*u}'
        return [tr(0,0),tr(0,1),bb(0),bb(1),tr(1,0),tr(1,1)]
    ncs = 4 if A216 else {1:2,4:2,2:4,0:8}[rot]
    def setsel(st):
        if ncs==2 or A216: cond=None
        elif ncs==4: cond=f's_lshr_b32 s53, s100, 1\ns_cmp_eq_u32 s53, {st>>1}'
        else: cond=f's_cmp_eq_u32 s100, {st>>1}'
        if cond is None:
            for i in range(4): g(f'v_mov_b32 v{SEL+i}, v{SEL+4}')
        else:
            g(cond+'\ns_cselect_b32 s53, -1, 0')
            for i in range(4): g(f'v_and_b32 v{SEL+i}, s53, v{SEL+4}')
    def gather_ops():
        def mk(r,v,off):
            def o(): g.vmem(f'buffer_load_dwordx4 v[{r}:{r+3}], v{v}, s[40:43], 0 offen offset:{off} sc1','ga')
            return o
        return [mk(GA,vSA,0),mk(GA+4,vSA,512),mk(GA+8,vCA,0),mk(GA+12,vCB,0)]
    def publish():
        g(f'v_mov_b32 v{CSA+1}, s47')
        g.vmem(f'buffer_store_dwordx2 v[{CSA}:{CSA+1}], v{vCP}, s[40:43], 0 offen sc1','csp')
    WPS=g.opt.get('wpstage',1)
    WSCHED={'a':{2:[0],3:[1],5:[2,3],6:[4],7:[5,6]},'b':{3:[0],4:[1],5:[2],6:[3,4],7:[5]},'c':{5:[0,1],6:[2],7:[3,4]},'d':{1:[0],2:[1],5:[2,3],6:[4,5],7:[6]},'e':{5:[0,1],6:[2,3],7:[4,5]},'f':{4:[0],5:[1],6:[2,3],7:[4,5]},'g':{5:[0],6:[1],7:[2,3]},'h':{4:[0,1],7:[2,3,4]},'i':{4:[0,1],7:[2,3]},'j':{4:[0,1]},'k':{3:[0,1],6:[2,3],7:[4,5]},'l':{4:[0,1],6:[2],7:[3,4]},'m':{1:[(0,0)],2:[(0,1)],3:[(1,0)],4:[(1,1)],5:[2,3],6:[4,5],7:[6]},'n':{1:[(0,0)],2:[(0,1)],3:[(1,0)],4:[(1,1)],6:[2,3],7:[4,5]},'o':{1:[0],2:[1],5:[2,3],6:[4,5],7:[6,7]},'p':{5:[0,1],7:[2]},'q':{5:[0,1]},'r':{5:[0,1],6:[2]},'s':{5:[0,1],7:[2,3]},'t':{5:[0,1],6:[2],7:[3]},'u':{1:[0,1],5:[2,3],6:[4,5],7:[6,7]},'v':{0:[0,1],5:[2,3],6:[4,5],7:[6,7]},'w':{2:[0,1],5:[2,3],6:[4,5],7:[6,7]},'x':{-1:[0,1],5:[2,3],6:[4,5],7:[6,7]},'y':{-2:[0,1],5:[2,3],6:[4,5],7:[6,7]}}[g.opt.get('wsched','o')]
    half={}
    prevtr=[0]
    NTL=g.opt.get('ntl',5)
    TRL={n:(i>>1,i&1) for i,n in enumerate([20,21,22,23,26,27,28,29,30,31][:2*NTL])}
    MX=g.opt.get('mx',5)
    nw=len(set((p[0] if isinstance(p,tuple) else p) for x in WSCHED.values() for p in x))
    def enter(st):
        g.flush_side()
        g.wait(f's{st}')
        g('s_barrier')
        g.stamp('st')
        if st+D<8: g.sideq+=stage_ops(st+D)
        if st==max(ncs,g.opt.get('pubst',4)) and ncs<8: g.sideq.append(publish)
        if st==6: g.miscq+=hr.l
        if st in WSCHED and st<6:
            while len(g.miscq)>len(trig)+len(addr): misc(g,1)
        if st==g.opt.get('gast',7) and not g.opt.get('galast'): g.sideq+=gather_ops()
        for pr in WSCHED.get(st,[]):
            if isinstance(pr,tuple):
                if pr[1]==0: half[pr[0]]=w2_pair_ops(g,pr[0])
                ops=half[pr[0]][2*pr[1]:2*pr[1]+2]
                if pr[1]==1: ops=[lambda p=pr[0],o=ops[0]:(g(f's_add_u32 m0, s69, {ppos(p)}'),o())]+ops[1:]
                g.sideq+=ops
            else: g.sideq+=w2_pair_ops(g,pr)
        if st==g.opt.get('gast',7) and g.opt.get('galast'): g.sideq+=gather_ops()
    if WS0 in 'xy':
        while len(g.miscq)>len(trig)+len(addr): misc(g,1)
        for op in w2_pair_ops(g,0)+w2_pair_ops(g,1): op()
        if WS0=='y':
            for op in stage_ops(2): op()
    hr=Rec()
    srd(hr,36,28,7340032)
    hr('''s_mul_i32 s53, s52, 112
    s_lshl_b32 s54, s49, 3
    s_add_u32 s53, s53, s54
    s_lshl_b32 s54, s50, 2
    s_add_u32 s53, s53, s54
    s_lshl_b32 s53, s53, 11
    s_lshl_b32 s54, s51, 12
    s_add_u32 s60, s53, s54
    s_xor_b32 s61, s60, 0x400
    s_xor_b32 s62, s60, 0x1000
    s_xor_b32 s63, s60, 0x1400
''')
    nonce(g); setsel(0)
    enter(0); g.stamp(); g.stamp('pro')
    for x in rd(0): g(x)
    for n in range(32):
        st,kk=n>>2,n&3
        f=fr(n&1)
        def mf(t,u):
            d=ACC+16*(2*t+u)
            g(f'{MF} v[{d}:{d+15}], v[{f["A"][t]}:{f["A"][t]+3}], v[{f["B"][u]}:{f["B"][u]+3}], '+(f'v[{d}:{d+15}]' if n else '0'))
        nx = rd(n+1) if n<31 else []
        xt=prevtr[0]; prevtr[0]=0
        if kk==3:
            g(f's_waitcnt lgkmcnt({xt})'); mf(0,0)
            if st<7: enter(st+1)
            else: g.flush_side(); g('s_barrier')
            for x in nx[:3]: g(x)
            mf(0,1)
            for x in nx[3:]: g(x)
            mf(1,0)
        else:
            g(f's_waitcnt lgkmcnt({3+xt})'); mf(0,0)
            for x in nx[:3]: g(x)
            g(f's_waitcnt lgkmcnt({5+xt})'); mf(0,1)
            for x in nx[3:]: g(x)
            g(f's_waitcnt lgkmcnt({6+xt})'); mf(1,0)
        if n in TRL:
            pr,h=TRL[n]
            if h==0: g.wait(f'w{pr}')
            for x in w2_trl(pr)[4*h:4*h+4]: g(x)
            prevtr[0]=4
        else:
            had=bool(g.sideq); g.side(); misc(g, 2 if had else MX)
        if st<ncs:
            g(f'v_mfma_f32_16x16x32_bf16 v[{CSA}:{CSA+3}], v[{SEL}:{SEL+3}], v[{f["A"][0]}:{f["A"][0]+3}], '+(f'v[{CSA}:{CSA+3}]' if n else '0'))
        mf(1,1)
        had=bool(g.sideq); g.side(2 if (len(g.sideq)>2*(3-kk)+1 or n in TRL) else 1); misc(g,2 if had else MX)
        if kk==3 and st+1<ncs and (st+1)%2==0: setsel(st+1)
    if ncs==8: publish()
    g.flush_side(); misc(g,9999)
    g.stamp(); g.stamp('st'); g.stamp('tail')
    g.wait('ga')
    g(f'''s_mov_b32 s56, {SPIN}
    L_gchk:
    v_xor_b32 v24, s47, v{GA+3}
    v_xor_b32 v25, s47, v{GA+7}
    v_xor_b32 v26, s47, v{GA+9}
    v_xor_b32 v27, s47, v{GA+11}
    v_xor_b32 v28, s47, v{GA+13}
    v_xor_b32 v29, s47, v{GA+15}
    v_or3_b32 v24, v24, v25, v26
    v_or3_b32 v27, v27, v28, v29
    v_or_b32 v24, v24, v27
    v_cmp_ne_u32 vcc, 0, v24
    s_cbranch_vccnz L_gslow
    L_gok:''')
    keep=list(g.vm); main=g.a.l; g.a.l=[]
    g('L_gslow:\ns_sleep 8')
    for op in gather_ops(): op()
    g('s_waitcnt vmcnt(0)\ns_sub_u32 s56, s56, 1\ns_cbranch_scc0 L_gchk\ns_branch L_gok')
    g.outofline+=g.a.l; g.a.l=main; g.vm=keep
    NG=g.opt.get('ng',10)
    assert NG<=10+NTL
    g('s_waitcnt lgkmcnt(0)')
    for pr in range(nw,NG): g.sideq+=w2_pair_ops(g,pr)
    a0,a1=GA+8,GA+12
    c0=-2*math.sqrt(2/math.pi)*math.log2(math.e); c1=c0*0.044715
    g(f'''v_add_f32 v{a0}, v{a0}, v{a0+2}
    v_add_f32 v{a1}, v{a1}, v{a1+2}
    v_rcp_f32 v24, v{GA+2}
    v_mov_b32 v{a0+1}, v{a0}
    v_mov_b32 v{a1+1}, v{a1}
    v_rcp_f32 v26, v{GA+6}
    v_cmp_gt_u32 vcc, 32, v0
    v_permlane32_swap_b32 v{a0}, v{a0+1}
    v_permlane32_swap_b32 v{a1}, v{a1+1}
    v_mov_b32 v50, v{GA+2}
    v_mov_b32 v54, v{GA+6}
    {'v_mov_b32' if A216 else 'v_add_f32'} v{a0+2}, v{a0}{'' if A216 else f', v{a0+1}'}
    {'v_mov_b32' if A216 else 'v_add_f32'} v{a1+2}, v{a1}{'' if A216 else f', v{a1+1}'}
    v_mov_b32 v{GA+2}, v{GA}
    v_mov_b32 v{GA+6}, v{GA+4}
    v_cvt_pk_bf16_f32 v{a0}, v{a0+2}, v{a0+2}
    v_cvt_pk_bf16_f32 v{a1}, v{a1+2}, v{a1+2}
    v_lshl_or_b32 v{a0+1}, v{vB1[0]}, 16, v{vB1[0]}
    v_lshl_or_b32 v{a1+1}, v{vB1[1]}, 16, v{vB1[1]}
    v_lshlrev_b32 v{a0+3}, 16, v{a0}
    v_lshlrev_b32 v{a1+3}, 16, v{a1}
    v_cndmask_b32 v{a0}, 0, v{a0}, vcc
    v_cndmask_b32 v{a1}, 0, v{a1}, vcc
    v_sub_f32 v{a0+2}, v{a0+2}, v{a0+3}
    v_sub_f32 v{a1+2}, v{a1+2}, v{a1+3}
    v_cndmask_b32 v{a0+1}, 0, v{a0+1}, vcc
    v_cndmask_b32 v{a1+1}, 0, v{a1+1}, vcc
    v_cvt_pk_bf16_f32 v{a0+2}, v{a0+2}, 0
    v_cvt_pk_bf16_f32 v{a1+2}, v{a1+2}, 0
    v_mov_b32 v{a0+3}, 0
    v_mov_b32 v{a1+3}, 0
    v_cndmask_b32 v{a0+2}, 0, v{a0+2}, vcc
    v_cndmask_b32 v{a1+2}, 0, v{a1+2}, vcc
    v_mov_b32 v{GA+3}, 0
    v_mov_b32 v{GA+7}, 0''')
    Aex=[a0,a1]; Bex=[GA,GA+4]
    for t in range(2):
        for u in range(2):
            d=ACC+16*(2*t+u)
            g(f'{MF} v[{d}:{d+15}], v[{Aex[t]}:{Aex[t]+3}], v[{Bex[u]}:{Bex[u]+3}], v[{d}:{d+15}]')
    g(f'''v_mul_f32 v25, v24, v24
    v_mul_f32 v27, v26, v26
    v_mul_f32 v49, {f2u(c0):#x}, v24
    v_mul_f32 v53, {f2u(c0):#x}, v26
    v_mul_f32 v25, v25, v24
    v_mul_f32 v27, v27, v26
    v_mul_f32 v48, {f2u(c1):#x}, v25
    v_mul_f32 v52, {f2u(c1):#x}, v27''')
    g('v_lshlrev_b32 v56, 4, v0')
    g.stamp()
    while len(g.miscq)>len(trig): misc(g,1)
    def trop(pr,h):
        def op():
            if h==0: g.wait(f'w{pr}')
            for x in w2_trl(pr)[4*h:4*h+4]: g(x)
        return op
    xo=xb2_ops(g)
    trs=[]
    for pr in range(NTL,4):
        if not g.opt.get('trpost'): trs+=[trop(pr,0),trop(pr,1)]
    g.sideq+=xo+trs
    NS=g.opt.get('gside',4)
    for t in range(2):
        for u in range(2):
            d=ACC+16*(2*t+u); K=[48,52][u]; RI=[50,54][u]
            for j in range(2):
                NS=g.opt.get('gside',4) if 4*t+2*u+j>=g.opt.get('gstart',0) else 0
                P=[d+8*j+2*i for i in range(4)]
                tm=[2+2*i for i in range(4)]
                o=[24,28][j]
                for i in range(4): g(f'v_pk_mul_f32 v[{tm[i]}:{tm[i]+1}], v[{P[i]}:{P[i]+1}], v[{P[i]}:{P[i]+1}]')
                for i in range(4): g(f'v_pk_fma_f32 v[{tm[i]}:{tm[i]+1}], v[{tm[i]}:{tm[i]+1}], v[{K}:{K+1}], v[{K}:{K+1}] op_sel:[0,0,1] op_sel_hi:[1,0,1]')
                if NS>=1: g.side()
                for i in range(4): g(f'v_pk_mul_f32 v[{tm[i]}:{tm[i]+1}], v[{tm[i]}:{tm[i]+1}], v[{P[i]}:{P[i]+1}]')
                for i in range(8):
                    g(f'v_exp_f32 v{2+i}, v{2+i}')
                    if i==3 and NS>=4: g.side()
                if NS>=2: g.side()
                for i in range(4): g(f'v_pk_fma_f32 v[{tm[i]}:{tm[i]+1}], v[{tm[i]}:{tm[i]+1}], v[{RI}:{RI+1}], v[{RI}:{RI+1}] op_sel:[0,0,0] op_sel_hi:[1,0,0]')
                for i in range(8):
                    g(f'v_rcp_f32 v{2+i}, v{2+i}')
                    if i==3 and NS>=5: g.side()
                if NS>=3: g.side()
                for i in range(4): g(f'v_pk_mul_f32 v[{tm[i]}:{tm[i]+1}], v[{tm[i]}:{tm[i]+1}], v[{P[i]}:{P[i]+1}]')
                for i in range(4): g(f'v_cvt_pk_bf16_f32 v{o+i}, v{tm[i]}, v{tm[i]+1}')
                g.vmem(f'buffer_store_dwordx4 v[{o}:{o+3}], v56, s[36:39], s{60+2*t+u} offen offset:{2048*j} {"" if g.opt.get("hplain") else "sc1"}','st')
    g.stamp()
    print('after GELU: side',len(g.sideq),'misc',len(g.miscq),file=sys.stderr)
    g.stamp('tail')
    g.flush_side()
    g(f'v_mov_b32 v2, s47\nv_add_u32 v{vTm0}, 0x10000, v{vT[0]}\nv_add_u32 v{vTm1}, 0x10000, v{vT[1]}')
    NJ=g.opt.get('nj',4)
    for k in range(0 if g.opt.get('merge',1) else NJ//2): g(f'v_add_u32 v{vJ[k][0]}, {ppos(12-2*k)}, v{vT[0]}\nv_add_u32 v{vJ[k][1]}, {ppos(12-2*k)}, v{vT[1]}')
    for d in (1,2,3): g(f's_add_u32 s{5+d}, s69, {d*32768}\ns_xor_b32 s{8+d}, s{5+d}, {d*8192}')
    g(f's_add_u32 s12, s69, {32768+4096}')
    TB=g.opt.get('trbefore',1)
    for pr in range(max(4,NTL),4+TB):
        g.wait(f'w{pr}')
        for x in w2_trl(pr): g(x)
    g.stamp('tail')
    g.wait('st')
    g.stamp('tail')
    g('s_barrier')
    g.vmem(f'buffer_store_dword v2, v{vSG}, s[40:43], 0 offen sc1','flag')
    g.stamp('tail')
    if g.opt.get('merge',1):
        g.nw=NG
        return
    for pr in range(NG,10):
        for op in w2_pair_ops(g,pr): op()
    if g.opt.get('trpost'):
        for pr in range(NTL,4):
            g.wait(f'w{pr}')
            for x in w2_trl(pr): g(x)
    g('s_waitcnt lgkmcnt(0)')
    for pr in range(max(NG,10),14):
        for op in w2_pair_ops(g,pr): op()
    for pr in range(max(4+TB,NTL),14-NJ):
        g.wait(f'w{pr}')
        for x in w2_trl(pr): g(x)
    g('v_not_b32 v3, v2')

def p1_dft(g):
    RAW=64
    vBr0=56; vXL=[57,18,19,2]; vSP=3; vBd=[4,5,6,7]; vWe,vWo=8,9; vFA=[10,11,12,13]; vFB=[14,15,16,17]
    CC=[192,196]; SS=[200,204]; NS=[208,212]
    RC=[216,218,220,222]
    if g.opt.get('p1arr',48)==216:
        g('L_dft0:\ns_lshr_b32 s100, s31, 1\ns_add_u32 s48, s48, s100\ns_lshl_b32 s100, s100, 1')
    g('''s_mov_b32 s49, s53
    s_lshr_b32 s51, s3, 1''')
    t1_of(g,'s52','s48','s51','s53')
    g(f'''s_and_b32 s50, s3, 1
    s_lshl_b32 s53, s50, 5
    s_add_u32 s53, s53, s52
    s_lshl_b32 s53, s53, 10
    v_lshrrev_b32 v24, 3, v0
    v_lshrrev_b32 v25, 4, v0
    v_and_b32 v26, 7, v0
    v_lshlrev_b32 v27, 4, v26
    v_lshl_add_u32 v27, v24, 16, v27
    s_lshl_b32 s54, s100, 7
    v_add3_u32 v{vXL[0]}, v27, s53, 0
    v_add_u32 v{vXL[0]}, s54, v{vXL[0]}
    v_xor_b32 v{vXL[1]}, 0x80, v{vXL[0]}
    v_xor_b32 v{vXL[2]}, 0x100, v{vXL[0]}
    v_xor_b32 v{vXL[3]}, 0x180, v{vXL[0]}
    s_waitcnt lgkmcnt(0)''')
    srd(g,32,4,2097152)
    def xops(gi):
        def mk(j):
            def op():
                if j==0: g(f's_mov_b32 s58, {gi*524288}')
                r=RAW+32*gi+4*j
                g.vmem(f'buffer_load_dwordx4 v[{r}:{r+3}], v{vXL[j&3]}, s[32:35], s58 offen offset:{512*(j>>2)}',f'x{gi}')
            return op
        return [mk(j) for j in range(8)]
    DO=g.opt.get('dord','a')
    for gi in range(1 if DO in 'de' else 2):
        for op in xops(gi): op()
    if DO not in 'de': g('@@SPLIT@@')
    epoch_load(g)
    srd(g,36,10,524288); srd(g,16,12,524288); srd(g,40,28,4<<20,add=F_OFF)
    g(f'''s_lshl_b32 s46, s48, 3
    s_lshl_b32 s53, s49, 2
    s_add_u32 s46, s46, s53
    s_add_u32 s46, s46, {FU}
    v_xor_b32 v26, v26, v25
    v_lshlrev_b32 v26, 4, v26
    v_lshl_add_u32 v27, v24, 11, v26
    s_lshl_b32 s53, s3, 16
    s_lshl_b32 s54, s49, 10
    s_add_u32 s53, s53, s54
    v_add_u32 v{vBd[0]}, s53, v27
    v_xor_b32 v28, 64, v{vBd[0]}
    v_add_u32 v{vBd[1]}, {16384-1024}, v28
    v_add_u32 v{vBd[2]}, {2*(16384-1024)}, v{vBd[0]}
    v_add_u32 v{vBd[3]}, {3*(16384-1024)}, v28
    v_add_u32 v28, 0x40000, v{vBd[0]}
    v_cmp_gt_u32 vcc, 1024, v{vBd[0]}
    v_lshl_add_u32 v27, v24, 7, v26
    s_lshl_b32 s53, s3, 12
    v_cndmask_b32 v{vBr0}, v{vBd[0]}, v28, vcc
    v_add_u32 v{vWe}, s53, v27
    v_xor_b32 v{vWo}, 64, v{vWe}
    s_mul_i32 s55, s3, 24576
    s_add_u32 s55, s55, 65536
    s_lshl_b32 s53, s48, 1
    s_add_u32 s53, s53, s49
    s_lshl_b32 s53, s53, 11
    s_lshl_b32 s54, s51, 10
    s_add_u32 s53, s53, s54
    s_lshl_b32 s54, s50, 4
    s_add_u32 s53, s53, s54
    s_add_u32 s53, s53, {ST_OFF-F_OFF}
    v_lshl_add_u32 v{vSP}, v24, 5, s53''')
    def bops(st):
        slot=st&1
        def mk(i):
            def op():
                if i==0: g(f's_xor_b32 s57, s100, {st}\ns_lshl_b32 s57, s57, 7\ns_add_u32 m0, s55, {slot*8192}')
                if i==4: g(f's_add_u32 m0, s55, {slot*8192+4096}')
                if i<4: g.vmem(f'buffer_load_dwordx4 v{vBr0 if i==0 else vBd[i]}, s[36:39], s57 offen offset:{1024*i} lds',f'B{st}')
                else:   g.vmem(f'buffer_load_dwordx4 v{vBd[i-4]}, s[16:19], s57 offen offset:{1024*(i-4)} lds',f'B{st}')
            return op
        return [mk(i) for i in range(8)]
    if DO in 'de':
        for op in bops(0): op()
        g('@@SPLIT@@')
    g(f'''v_and_b32 v24, 31, v0
    v_lshrrev_b32 v25, 5, v0
    v_bfe_u32 v26, v0, 1, 3
    v_xor_b32 v26, v26, v25
    v_lshlrev_b32 v27, 7, v24''')
    for kk in range(4):
        g(f'''v_xor_b32 v28, {2*kk}, v26
        v_lshl_add_u32 v{vFA[kk]}, v28, 4, v27
        v_add_u32 v{vFB[kk]}, s55, v{vFA[kk]}''')
    g(f'''v_cvt_f32_u32 v26, v24
    v_mul_f32 v26, {f2u(1/32):#x}, v26
    v_cvt_f32_u32 v27, v25
    v_mul_f32 v27, 4.0, v27
    v_mul_f32 v27, v27, v26
    v_mul_f32 v28, {f2u(5.0):#x}, v26''')
    for j in range(2):
        for i2 in range(4):
            for e in range(2):
                i=2*i2+e
                if not (j==0 and i==0):
                    g(f'v_add_f32 v27, v27, v{28 if i%4==0 else 26}')
                g(f'v_fract_f32 v29, v27\nv_cos_f32 v{20+e}, v29\nv_sin_f32 v{22+e}, v29')
            g(f'v_cvt_pk_bf16_f32 v{CC[j]+i2}, v20, v21\nv_cvt_pk_bf16_f32 v{SS[j]+i2}, v22, v23\nv_xor_b32 v{NS[j]+i2}, 0x80008000, v{SS[j]+i2}')
    early,addr,trig=p2_setup_ops(g,True)
    TM={0:20,1:21,2:22,3:23,4:24,5:25,6:26,7:27,8:28,9:29,10:30,12:2,13:3,14:8,15:9,16:31,17:57,18:240,19:241,20:242,21:243,22:244,23:245}
    early,addr,trig=[remap(x,TM) for x in (early,addr,trig)]
    g(f'''s_mov_b32 s59, 0x3f803f80
    s_movk_i32 s60, 0x3f80
    s_mov_b32 s61, 0x3f800000
    s_lshl_b32 s53, s49, 15
    s_or_b32 s62, s60, s53
    s_lshl_b32 s63, s62, 16
    s_cmp_eq_u32 s49, 0
    s_cselect_b32 s101, 2.0, 0
    s_waitcnt lgkmcnt(0)''')
    nonce(g)
    eps=f'{f2u(1e-5):#x}'
    chainq=[]
    def ch(n=1):
        for _ in range(n):
            if chainq: chainq.pop(0)()
    def stats(gi):
        R=RAW+32*gi; S=[224,228][gi&1]
        g.wait(f'x{gi}')
        if gi==0: g.stamp()
        for i in range(32):
            if i<2: g(f'v_dot2_f32_bf16 v{S+i}, v{R+i}, s59, 0\nv_dot2_f32_bf16 v{S+2+i}, v{R+i}, v{R+i}, 0')
            else:   g(f'v_dot2c_f32_bf16 v{S+(i&1)}, s59, v{R+i}\nv_dot2c_f32_bf16 v{S+2+(i&1)}, v{R+i}, v{R+i}')
            if i%4==3: g.side()
            if i>=2: ch(2)
        while chainq: ch()
        o=232+4*(gi&1); r1=RC[gi]; a,b,c,d=20,21,22,23
        lines=f'''v_add_f32 v{S}, v{S}, v{S+1}
        v_add_f32 v{S+2}, v{S+2}, v{S+3}
        v_add_f32_dpp v{S}, v{S}, v{S} quad_perm:[1,0,3,2] row_mask:0xf bank_mask:0xf
        v_add_f32_dpp v{S+2}, v{S+2}, v{S+2} quad_perm:[1,0,3,2] row_mask:0xf bank_mask:0xf
        v_add_f32_dpp v{S}, v{S}, v{S} quad_perm:[2,3,0,1] row_mask:0xf bank_mask:0xf
        v_add_f32_dpp v{S+2}, v{S+2}, v{S+2} quad_perm:[2,3,0,1] row_mask:0xf bank_mask:0xf
        v_add_f32_dpp v{S}, v{S}, v{S} row_half_mirror row_mask:0xf bank_mask:0xf
        v_add_f32_dpp v{S+2}, v{S+2}, v{S+2} row_half_mirror row_mask:0xf bank_mask:0xf
        v_mul_f32 v{a}, {f2u(-1/512):#x}, v{S}
        v_mul_f32 v{b}, {f2u(1/512):#x}, v{S+2}
        v_fma_f32 v{b}, -v{a}, v{a}, v{b}
        v_cvt_pk_bf16_f32 v{d}, v{a}, v{a}
        v_max_f32 v{b}, 0, v{b}
        v_lshlrev_b32 v{d}, 16, v{d}
        v_cvt_pk_bf16_f32 v{c}, 0, v{b}
        v_sub_f32 v{d}, v{a}, v{d}
        v_add_f32 v{c}, {eps}, v{c}
        v_cvt_pk_bf16_f32 v{o}, v{a}, v{d}
        v_cvt_pk_bf16_f32 v{c}, 0, v{c}
        v_mul_f32 v{r1+1}, s101, v{a}
        v_sqrt_f32 v{c}, v{c}
        v_mov_b32 v{o+3}, s47
        v_cvt_pk_bf16_f32 v{c}, 0, v{c}
        v_rcp_f32 v{r1}, v{c}
        v_mul_f32 v{b}, v{b}, v{r1}
        v_mul_f32 v{b}, v{b}, v{r1}
        v_cvt_pk_bf16_f32 v{b}, 0, v{b}
        v_add_f32 v{b}, {eps}, v{b}
        v_cvt_pk_bf16_f32 v{b}, 0, v{b}
        v_sqrt_f32 v{b}, v{b}
        v_cvt_pk_bf16_f32 v{b}, 0, v{b}
        v_mul_f32 v{o+2}, v{b}, v{c}
        v_cvt_pk_bf16_f32 v{b}, 0, v{o+2}
        v_sub_f32 v{b}, v{o+2}, v{b}
        v_cvt_pk_bf16_f32 v{o+1}, v{o+2}, v{b}'''.split('\n')
        for ln in lines: chainq.append(lambda ln=ln: g(ln))
        chainq.append(lambda: g.vmem(f'buffer_store_dwordx4 v[{o}:{o+3}], v{vSP}, s[40:43], 0 offen offset:{256*gi} sc1','sp'))
    def bfly(gi):
        R=RAW+32*gi; r1=RC[gi]
        for j in range(4):
            o=[24,28][j&1]; T=[40,48][j&1]
            for i in range(4):
                a_=R+4*j+i; t=T+2*i
                g(f'v_dot2_f32_bf16 v{t}, v{a_}, s60, v{r1+1}\nv_dot2_f32_bf16 v{t+1}, v{a_}, s61, v{r1+1}'); ch()
            g.side()
            for i in range(4):
                b_=R+4*(j+4)+i; t=T+2*i
                g(f'v_dot2c_f32_bf16 v{t}, s62, v{b_}\nv_dot2c_f32_bf16 v{t+1}, s63, v{b_}'); ch()
            ch(2)
            for i in range(4):
                t=T+2*i
                g(f'v_pk_mul_f32 v[{t}:{t+1}], v[{t}:{t+1}], v[{r1}:{r1+1}] op_sel_hi:[1,0]')
            g.side()
            for i in range(4):
                t=T+2*i
                g(f'v_cvt_pk_bf16_f32 v{o+i}, v{t}, v{t+1}')
            g(f'ds_write_b128 v{vWo if gi&1 else vWe}, v[{o}:{o+3}] offset:{16384*j+1024*gi}')
        while chainq: ch()
    W0=16384
    LATEW=g.opt.get('latew',0)
    wl={0:W0,1:W0+4096,2:W0,3:W0+4096,4:W0,5:W0+4096,6:W0,7:W0+4096,8:0,9:4096,10:W0,11:W0+4096,12:8192,13:8192+4096}
    if LATEW: wl={0:W0,1:W0+4096,2:W0,3:W0+4096,4:W0,5:W0+4096,6:0,7:4096,8:W0,9:W0+4096,10:8192,11:8192+4096,12:0,13:4096}
    wd=lambda pr: w2_pair_ops(g,pr,'s55',wl[pr])
    order=g.opt.get('dord','a')
    plan={'a':[[],xops(2),xops(3),bops(0),bops(1),[],'w',[]],
          'b':[xops(2),xops(3),bops(0),bops(1),[],[],'w',[]],
          'c':[[],xops(2)+xops(3),bops(0),bops(1),[],'w',[],[]],
          'd':[xops(2),xops(3),[],bops(1),[],[],'w',[]],
          'e':[[],xops(2),xops(3),bops(1),[],[],'w',[]]}[order]
    if order in 'de':
        for op in xops(1): op()
    seq=((stats,0),(stats,1),(bfly,0),(stats,2),(bfly,1),(stats,3),(bfly,2),(bfly,3))
    if g.opt.get('sfirst'):
        seq=((stats,0),(stats,1),(stats,2),(stats,3),(bfly,0),(bfly,1),(bfly,2),(bfly,3))
        plan=[xops(2),xops(3),bops(0),[],bops(1),[],'w',[]] if order not in 'de' else [xops(2),xops(3),[],bops(1),[],[],'w',[]]
    for k,(fn,gi) in enumerate(seq):
        if plan[k]=='w':
            if not LATEW:
                for x in early: g(x)
                g.sideq+=wd(0)+wd(1)
        else: g.sideq+=plan[k]
        if fn is stats:
            while any(1 for op in plan[max(k-2,0)] if False): pass
        fn(gi); g.stamp('dst')
        if order=='c' and k==1: g.flush_side()
    g.flush_side()
    g('s_waitcnt lgkmcnt(0)\ns_barrier')
    g.stamp(); g.stamp('dst')
    ACC=64
    def fr(s_):
        b=[32,216][s_]
        return dict(A=[b,b+4,b+8,b+12],B=[b+16,b+20])
    def rd(n):
        st,kk=n>>2,n&3; f=fr(n&1)
        bb=lambda ab: f'ds_read_b128 v[{f["B"][ab]}:{f["B"][ab]+3}], v{vFB[kk]} offset:{(st&1)*8192+4096*ab}'
        aa=lambda ti: f'ds_read_b128 v[{f["A"][ti]}:{f["A"][ti]+3}], v{vFA[kk]} offset:{st*16384+4096*ti}'
        return [aa(0),bb(0),bb(1),aa(1),aa(2),aa(3)]
    g.wait('B0')
    for x in rd(0): g(x)
    vTB=[18,19]
    nT=[i for i,x in enumerate(addr) if f'v_add_u32 v{vT[3]}' in x][0]+1
    pre=addr[8:nT]+['s_sub_u32 s0, s55, s69',f'v_add_u32 v18, s0, v{vT[0]}',f'v_add_u32 v19, s0, v{vT[1]}']
    if not LATEW:
        for x in pre: g(x)
    if not g.opt.get('trigp2',1):
        trig=trig_ops(0,{1:20,2:21,3:22,5:23,6:30,7:31,9:57,12:2,13:3,14:8,15:9,16:240,17:241,18:242,19:243,20:24,21:25,22:26,23:27})
    g.miscq=addr[:8]+addr[nT:]+trig
    TRS={0:0,1:1,5:2,6:3,9:4,10:5,13:6,14:7}
    DMS={1:[2],2:[3],6:[4],7:[5],10:[6],11:[7,8],12:[9],14:[10],15:[11]}
    if LATEW:
        TRS={4:0,5:1,8:2,9:3,11:4,12:5,14:6,15:7}
        DMS={1:[0,1],5:[2],6:[3],9:[4],10:[5],11:[6,7],12:[8],13:[9]}
        g.miscq=early+pre+g.miscq
    for n in range(16):
        f=fr(n&1)
        def mf(ti,ab):
            d=ACC+32*ti+16*ab
            g(f'{MF} v[{d}:{d+15}], v[{f["A"][ti]}:{f["A"][ti]+3}], v[{f["B"][ab]}:{f["B"][ab]+3}], '+(f'v[{d}:{d+15}]' if n else '0'))
        nx=rd(n+1) if n<15 else []
        if n%2==0: g.stamp('dm')
        g('s_waitcnt lgkmcnt(0)'); mf(0,0)
        if n==3: g.sideq+=bops(2)
        if n==7: g.sideq+=bops(3)
        if LATEW and n==1:
            while any(x in g.miscq for x in early): misc(g,1)
        if LATEW and n==4:
            while any(x in g.miscq for x in pre): misc(g,1)
        for pr in DMS.get(n,[]): g.sideq+=wd(pr)
        if (n+1)%4==0 and n<15: g.wait(f'B{(n+1)>>2}')
        for x in nx[:3]: g(x)
        mf(0,1)
        for x in nx[3:]: g(x)
        mf(1,0)
        trq=[]
        if n in TRS:
            assert not any(True for op in g.sideq if getattr(op,'pr',None)==TRS[n])
            g.wait(f'w{TRS[n]}'); trq=w2_trl(TRS[n],vTB,wl[TRS[n]])
        for k,(ti,ab) in enumerate(((1,1),(2,0),(2,1),(3,0),(3,1))):
            if trq and k>=3:
                for x in trq[:4]: g(x)
                trq=trq[4:]
            else:
                had=bool(g.sideq); g.side(); misc(g,2 if had else 4)
            mf(ti,ab)
        had=bool(g.sideq); g.side(); misc(g,2 if had else 4)
    g.stamp(); g.stamp('s1'); g.stamp('dm')
    if LATEW: g.flush_side(); g.sideq+=wd(10)+wd(11)+[lambda: g('s_waitcnt lgkmcnt(0)')]
    g.sideq+=wd(12)+wd(13)
    def trop(pr):
        def op():
            g.wait(f'w{pr}')
            for x in w2_trl(pr,vTB,wl[pr])[:4]: g(x)
        def op2():
            for x in w2_trl(pr,vTB,wl[pr])[4:]: g(x)
        return [op,op2]
    NJ=g.opt.get('nj',4)
    for pr in range(8,min(12,14-NJ)): g.sideq+=trop(pr)
    g.sideq+=[lambda: [misc(g,1) for _ in range(len(g.miscq)-len(trig))]]
    def zc(ti):
        Z=[32,216][ti&1]; L=[]
        for ab in range(2):
            d=ACC+32*ti+16*ab
            for i in range(8): L.append(f'v_cvt_pk_bf16_f32 v{Z+8*ab+i}, v{d+2*i}, v{d+2*i+1}')
        return L
    for x in zc(0): g(x)
    for ti in range(4):
        Z=[32,216][ti&1]
        za=[Z,Z+4]; zb=[Z+8,Z+12]; ur=ACC+32*ti; ui=ur+16
        nxt=zc(ti+1) if ti<3 else []
        seq=[(ur,CC[0],za[0],1),(ui,CC[0],zb[0],1),(ur,CC[1],za[1],0),(ui,CC[1],zb[1],0),(ur,SS[0],zb[0],0),(ui,NS[0],za[0],0),(ur,SS[1],zb[1],0),(ui,NS[1],za[1],0)]
        for n,(d,am,bm,first) in enumerate(seq):
            g(f'{MF} v[{d}:{d+15}], v[{am}:{am+3}], v[{bm}:{bm+3}], '+('0' if first else f'v[{d}:{d+15}]'))
            for x in nxt[2*n:2*n+2]: g(x)
            had=bool(g.sideq); g.side(); misc(g,(0 if had else 2)+(0 if nxt else 2))
    g.stamp('s1')
    g.flush_side(); misc(g,9999)
    g.stamp('s1')
    for op in xb2_ops(g): op()
    for pr in (12,13):
        if pr<14-NJ:
            for op in trop(pr): op()
    for k in range(NJ//2): g(f'v_add_u32 v{vJ[k][0]}, {wl[12-2*k]}, v{vTB[0]}\nv_add_u32 v{vJ[k][1]}, {wl[12-2*k]}, v{vTB[1]}')
    g.stamp('s1')
    srd(g,36,28,2097152,add=U_OFF)
    g(f'''v_and_b32 v24, 31, v0
    v_lshrrev_b32 v25, 5, v0
    v_lshlrev_b32 v24, 4, v24
    v_lshl_add_u32 v24, v25, 18, v24
    s_lshl_b32 s53, s3, 9
    v_add_u32 v24, s53, v24
    s_lshl_b32 s53, s48, 1
    s_add_u32 s53, s53, s49
    s_lshl_b32 s53, s53, 11''')
    for r in range(16):
        o=32+4*(r&3)
        for ti in range(4): g(f'v_cvt_pk_bf16_f32 v{o+ti}, v{ACC+32*ti+r}, v{ACC+32*ti+16+r}')
        g(f's_add_u32 s54, s53, {(8*(r>>2)+(r&3))*65536}')
        g.vmem(f'buffer_store_dwordx4 v[{o}:{o+3}], v24, s[36:39], s54 offen sc1','st')
    g.stamp(); g.stamp('s1')
    g('v_mov_b32 v2, s47')
    g.vmem(f'buffer_load_dword v3, v{vPL}, s[40:43], 0 offen sc1','poll')
    g.wait('poll')
    g.stamp('s1')
    g('s_waitcnt lgkmcnt(0)\ns_barrier')
    g(f'buffer_store_dword v2, v{vSG}, s[40:43], 0 offen sc1')
    g('s_lshl_b32 s53, s3, 12')
    for d in (1,2,3): g(f's_add_u32 s{5+d}, s53, {(d-1)*16384}\ns_xor_b32 s{8+d}, s{5+d}, {d*4096}')
    g('s_lshr_b32 s12, s53, 1\ns_add_u32 s12, s12, 49152')

def p2(g, role):
    M=(role=='m') and g.opt.get('merge',1)
    X=role
    ACC=64; ACS=128; UF=144
    XS=32768+4096
    HR=[16+8*i for i in range(5)]+[192+8*i for i in range(5)]
    NH=len(HR)
    g.stamp(); g.stamp('tail')
    srd(g,36,28,7340032); srd(g,32,28,2097152,add=U_OFF); srd(g,72,24,2097152)
    g(f'''s_sub_u32 s62, 32, s71
    s_and_b32 s62, s62, 31
    s_cmp_lt_u32 s70, 4
    s_cselect_b32 s62, s71, s62
    s_lshl_b32 s62, s62, 16
    v_mov_b32 v185, 0
    v_mov_b32 v186, 0
    v_mov_b32 v187, 0
    v_mov_b32 v188, 0x3f80
    v_cmp_gt_u32 vcc, 32, v0
    v_mov_b32 v189, 0
    v_mov_b32 v190, 0
    v_cndmask_b32 v188, 0, v188, vcc
    v_mov_b32 v191, 0
    s_mul_i32 s57, s71, 112
    s_mul_i32 s53, s3, 28
    s_add_u32 s57, s57, s53
    s_lshl_b32 s57, s57, 11
    s_add_u32 s59, s57, {28*2048}
    s_lshl_b32 s53, s44, 12
    s_add_u32 s58, s57, s53
    v_mov_b32 v2, s47
    s_mov_b32 s56, {SPIN}''')
    for d in (1,2,3):
        g(f'v_lshl_add_u32 v{9+d}, v0, 4, s{5+d}')
    g(f'v_mov_b32 v9, v{vFL}')
    if M:
        NW=g.nw; ops=[]
        for pr in range(NW,8): ops+=w2_pair_ops(g,pr)
        t01=w2_trl(0)+w2_trl(1)
        for n,op in enumerate(ops):
            op()
            if n==3: g.wait('w1')
            if n>=3 and t01:
                for x in t01[:2]: g(x)
                del t01[:2]
        for x in t01: g(x)
        g.vmem(f'buffer_load_dword v3, v{vPL}, s[40:43], 0 offen sc1','poll')
        for pr in (8,9):
            for op in w2_pair_ops(g,pr): op()
        g.wait('poll')
    g(f'''v_mov_b32 v184, v{vB2}
    v_cmp_ne_u32 vcc, s47, v3
    s_cbranch_vccz L_go
    L_poll:
    buffer_load_dword v3, v{vPL}, s[40:43], 0 offen sc1
    s_waitcnt vmcnt(0)
    v_cmp_ne_u32 vcc, s47, v3
    s_cbranch_vccz L_go
    s_sleep {g.opt.get('sleep',4)}
    s_sub_u32 s56, s56, 1
    s_cbranch_scc0 L_poll
    L_go:''')
    if not M: g.vm=['old']*30
    g.stamp(); g.stamp('tail')
    hidx=[0]
    def hload():
        ks=hidx[0]; r=HR[ks%NH]
        g.vmem(f'buffer_load_dwordx4 v[{r}:{r+3}], v{vH0}, s[36:39], s58 offen offset:{2048*(ks&1)} {g.opt.get("hld","sc1").replace("none","")}',f'h{ks}')
        g.vmem(f'buffer_load_dwordx4 v[{r+4}:{r+7}], v{vH1}, s[36:39], s58 offen offset:{2048*(ks&1)} {g.opt.get("hld","sc1").replace("none","")}',f'h{ks}')
        if ks&1 and ks<27: g('s_add_u32 s58, s58, 4096\ns_cmp_eq_u32 s58, s59\ns_cselect_b32 s58, s57, s58')
        hidx[0]+=1
    HD=g.opt.get('hdepth',8)
    g(f's_waitcnt lgkmcnt(0)\ns_mov_b32 s55, 0x80000')
    for i in range(HD): hload()
    g(f'{MF} v[{ACC}:{ACC+15}], v[184:187], v[188:191], 0')
    XA=[236,237,238,239]
    xa=Rec()
    xa(f'''v_and_b32 v236, 31, v0
    v_lshrrev_b32 v237, 5, v0
    v_lshlrev_b32 v237, 3, v237
    v_lshl_add_u32 v237, v236, 6, v237
    v_bfe_u32 v236, v0, 2, 2
    v_lshl_add_u32 v236, v236, 4, v237
    v_add_u32 v236, s12, v236
    v_xor_b32 v237, 16, v236
    v_xor_b32 v238, 32, v236
    v_xor_b32 v239, 48, v236
    v_lshl_add_u32 v240, v0, 4, s12''')
    KF=g.opt.get('kflag',12)
    NL=g.opt.get('nlast',3)
    def mf(ks,a_,b):
        r=HR[ks%NH]; d=ACC+16*(a_+2*b)
        c='0' if (ks==0 and (a_ or b)) else f'v[{d}:{d+15}]'
        g(f'{MF} v[{d}:{d+15}], a[{8*ks+4*a_}:{8*ks+4*a_+3}], v[{r+4*b}:{r+4*b+3}], {c}')
    checked=False
    NJ=g.opt.get('nj',4)
    jit=[x for pr in range(14-NJ,14) for x in w2_trl(pr,vJ[(13-pr)>>1],4096*(pr&1))]
    late=[]
    if M:
        jit=[x for pr in range(2,14) for x in w2_trl(pr)]
        for pr in range(10,14): late+=w2_pair_ops(g,pr)
    g.miscq=xa.l+(trig_ops(0) if g.opt.get('trigp2',1) else [])
    for ks in range(28-NL):
        g.wait(f'h{ks}')
        if NJ and ks==16 and not M: g('s_waitcnt lgkmcnt(0)')
        if M and ks>=4 and ks%2==0: g('s_waitcnt lgkmcnt(8)')
        if M and ks>=16 and ks%2==0 and ks<=22: g.wait(f'w{ks//2+2}')
        if ks==0:
            g.stamp()
        for b in range(2):
            for a_ in range(2):
                mf(ks,a_,b)
                if a_==0 and b==0 and (ks>=1 or M) and jit:
                    for x in jit[:4]: g(x)
                    del jit[:4]
                elif a_==1 and b==0 and late:
                    late.pop(0)(); late.pop(0)()
                elif not (a_==1 and b==1): misc(g,g.opt.get('p2misc',6 if M else 4))
            if b==0 and g.sideq: g.side()
        if hidx[0]<28: hload()
        elif g.sideq: g.side()
        if ks==(10 if M else 2):
            g('s_mov_b32 m0, s12')
            g.vmem(f'buffer_load_dwordx4 v{vXO}, s[76:79], 0 offen lds','xl')
            g('s_add_u32 m0, m0, 1024')
            g.vmem(f'buffer_load_dwordx4 v{vXO}, s[76:79], s55 offen lds','xl')
        if ks==(24 if M else 22):
            assert 'xl' not in g.vm
            for q in range(4): g(f'ds_read_b64 v[{XR+2*q}:{XR+2*q+1}], v{XA[q]}')
        if ks==KF: g.vmem(f'buffer_load_dword v176, v9, s[40:43], 0 offen sc1','fl')
        if 'fl' not in g.vm and ks>KF and not checked:
            checked=True
            g(f'''L_chk:
            v_cmp_ne_u32 vcc, s47, v176
            s_cbranch_vccnz L_uslow
            L_allset:''')
            ool(g,'''L_uslow:
            s_sleep 4
            buffer_load_dword v176, v9, s[40:43], 0 offen sc1
            s_waitcnt vmcnt(0)
            s_sub_u32 s56, s56, 1
            s_cbranch_scc0 L_chk
            s_branch L_allset''')
            def mku(j):
                def op():
                    g(f's_add_u32 s53, s62, {8192*j}')
                    g.vmem(f'buffer_load_dwordx4 v[{UF+4*j}:{UF+4*j+3}], v{vU}, s[32:35], s53 offen sc1','u')
                return op
            g.sideq+=[mku(j) for j in range(8)]
    assert checked
    if g.miscq: print('p2',role,'misc left',len(g.miscq),file=sys.stderr)
    misc(g,9999)
    g.flush_side()
    if M: g('s_waitcnt lgkmcnt(4)')
    XF=176
    def wr(d):
        for q in range(4):
            r=ACC+16*d+4*q
            g(f'ds_write_b128 v{9+d}, v[{r}:{r+3}] offset:{1024*q}')
    for n,d in enumerate((3,2,1,0)):
        for ks in range(28-NL,28):
            g.wait(f'h{ks}')
            mf(ks,d&1,d>>1)
        if n==0: g('s_waitcnt lgkmcnt(0)')
        if n==1:
            for i in range(4): g(f'v_lshlrev_b32 v{XF+2*i}, 16, v{XR+i}\nv_and_b32 v{XF+2*i+1}, 0xffff0000, v{XR+i}')
            wr(3)
        if n==2:
            for i in range(4,8): g(f'v_lshlrev_b32 v{XF+2*i}, 16, v{XR+i}\nv_and_b32 v{XF+2*i+1}, 0xffff0000, v{XR+i}')
            wr(2)
    g.stamp()
    g(f's_mov_b32 s60, {f2u(-math.log2(math.e)):#x}\ns_mov_b32 s61, s60\ns_mov_b32 s62, 1.0\ns_mov_b32 s63, 1.0')
    def smm(J):
        for j in J:
            g(f'{MF} v[{ACS}:{ACS+15}], v[{UF+4*j}:{UF+4*j+3}], a[{224+4*j}:{227+4*j}], '+('0' if j==0 else f'v[{ACS}:{ACS+15}]'))
    wr(1)
    g.waitall()
    SB=g.opt.get('sbar',3)
    smm(range(SB))
    for d in (1,2,3): g(f'v_lshl_add_u32 v{9+d}, v0, 4, s{8+d}')
    g('s_waitcnt lgkmcnt(0)\ns_barrier')
    rds=[f'ds_read_b128 v[{[192,208,16][d]+4*q}:{[192,208,16][d]+4*q+3}], v{10+d} offset:{1024*q}' for q in range(4) for d in range(3)]
    for j in range(SB,8):
        smm([j])
        for x in rds[:4]: g(x)
        del rds[:4]
    for x in rds: g(x)
    g('''s_lshl_b32 s1, s2, 2
    s_add_u32 s1, s1, s3
    s_cmp_lg_u32 s1, 803
    s_cbranch_scc1 L_noep0
    v_lshrrev_b32 v4, 2, v0
    v_and_b32 v5, 3, v0
    v_lshl_add_u32 v4, v4, 3, v5
    v_lshlrev_b32 v4, 8, v4
    buffer_load_dwordx4 v[6:9], v4, s[40:43], 0 offen sc1
    L_noep0:''')
    T=80
    for hf in range(2):
        g(f's_waitcnt lgkmcnt({6-6*hf})')
        I=range(4*hf,4*hf+4)
        for i in I: g(f'v_pk_add_f32 v[{192+2*i}:{193+2*i}], v[{192+2*i}:{193+2*i}], v[{208+2*i}:{209+2*i}]')
        for i in I: g(f'v_pk_add_f32 v[{ACC+2*i}:{ACC+2*i+1}], v[{ACC+2*i}:{ACC+2*i+1}], v[{16+2*i}:{17+2*i}]')
        for i in I: g(f'v_pk_add_f32 v[{ACC+2*i}:{ACC+2*i+1}], v[{ACC+2*i}:{ACC+2*i+1}], v[{192+2*i}:{193+2*i}]')
        for i in I: g(f'v_pk_mul_f32 v[{T+2*i}:{T+2*i+1}], v[{ACC+2*i}:{ACC+2*i+1}], s[60:61]')
        for i in I: g(f'v_exp_f32 v{T+2*i}, v{T+2*i}\nv_exp_f32 v{T+2*i+1}, v{T+2*i+1}')
        for i in I: g(f'v_pk_add_f32 v[{T+2*i}:{T+2*i+1}], v[{T+2*i}:{T+2*i+1}], s[62:63]')
        for i in I: g(f'v_rcp_f32 v{T+2*i}, v{T+2*i}\nv_rcp_f32 v{T+2*i+1}, v{T+2*i+1}')
        sp=lambda r: ACS+4*(2*(r>>3)+(r&1))+2*((r>>2)&1)+((r>>1)&1)
        for i in I:
            for r in (2*i,2*i+1): g(f'v_mul_f32 v{ACC+r}, v{ACC+r}, v{sp(r)}')
        for i in I: g(f'v_pk_fma_f32 v[{T+2*i}:{T+2*i+1}], v[{T+2*i}:{T+2*i+1}], v[{ACC+2*i}:{ACC+2*i+1}], v[{XF+2*i}:{XF+2*i+1}]')
        for i in I: g(f'v_cvt_pk_bf16_f32 v{96+i}, v{T+2*i}, v{T+2*i+1}')
        for q in (2*hf,2*hf+1): g(f'ds_write_b64 v{XA[q]}, v[{96+2*q}:{97+2*q}]')
    g('s_waitcnt lgkmcnt(0)\nds_read_b128 v[104:107], v240\nds_read_b128 v[108:111], v240 offset:1024\ns_waitcnt lgkmcnt(1)')
    g(f'buffer_store_dwordx4 v[104:107], v{vXO}, s[72:75], 0 offen {g.opt.get("outfl","")}\ns_waitcnt lgkmcnt(0)\nbuffer_store_dwordx4 v[108:111], v{vXO}, s[72:75], s55 offen {g.opt.get("outfl","")}')
    g(f'''s_cmp_lg_u32 s1, 803
    s_cbranch_scc1 L_noep
    s_waitcnt vmcnt(2)
    L_ep:
    v_xor_b32 v6, s47, v6
    v_xor_b32 v7, s47, v7
    v_xor_b32 v8, s47, v8
    v_xor_b32 v9, s47, v9
    v_or3_b32 v6, v6, v7, v8
    v_or_b32 v6, v6, v9
    v_cmp_ne_u32 vcc, 0, v6
    s_cbranch_vccz L_epok
    s_sleep 8
    buffer_load_dwordx4 v[6:9], v4, s[40:43], 0 offen sc1
    s_waitcnt vmcnt(0)
    s_sub_u32 s56, s56, 1
    s_cbranch_scc0 L_ep
    L_epok:
    v_mov_b32 v3, {EPO}
    s_mov_b64 exec, 1
    buffer_store_dword v2, v3, s[40:43], 0 offen sc1
    s_mov_b64 exec, -1
    L_noep:''')
    g.stamp()

def build(stamps=False, opt=None):
    global vTm0,vTm1
    if (opt or {}).get('merge',1): vTm0,vTm1=241,242
    g=G(stamps,opt); g.miscq=[]; g.outofline=[]
    def sfx(L,x): return [re.sub(r'\b(L_go|L_poll|L_chk|L_uslow|L_allset|L_noep0|L_noep|L_epok|L_ep)\b', r'\1_'+x, l) for l in L]
    entry(g)
    head=list(g.a.l); vm0=list(g.vm); n0=g.nst
    g.a.l=[]; p1_mlp(g); mlp=list(g.a.l)
    oo=g.outofline; g.outofline=[]
    g.a.l=[]; p2(g,'m'); g.dump_stamps(TS_OFF); mlp+=sfx(g.a.l,'m')+['    s_endpgm']; oo+=sfx(g.outofline,'m'); g.outofline=[]
    g.a.l=[]; g.vm=list(vm0); g.nst=n0; g.miscq=[]
    p1_dft(g); dft=list(g.a.l)
    k=[i for i,x in enumerate(dft) if '@@SPLIT@@' in x][0]
    g.a.l=[]; p2(g,'d'); g.dump_stamps(TS_OFF); dft+=sfx(g.a.l,'d'); oo+=sfx(g.outofline,'d')
    km=[i for i,x in enumerate(mlp) if '@@SPLIT@@' in x][0]
    lines=head+mlp[:km]+['    s_branch L_mlp','L_dfte:']+dft[:k]+['    s_branch L_dft','L_mlp:']+mlp[km+1:]+['L_dft:']+dft[k+1:]+['L_end:','    s_endpgm']+oo+['L_codeend:']
    body='\n'.join(hazard.fix(lines))+'\n'
    return wrap([dict(name=KN,body=body,grid=256,block=256,lds=163840,vgpr=512,accum=256)],HDR)
if __name__=='__main__':
    out=sys.argv[1]; st='stamps' in sys.argv[2:]
    opt={}
    for a in sys.argv[2:]:
        if '=' in a:
            k,v=a.split('='); opt[k]=int(v) if v.lstrip('-').isdigit() else v
    open(out,'w').write(build(st,opt))
```

```python
import sys, math, struct, re
sys.path.insert(0,'tools')
from asmlib import A, wrap, KN
import hazard
from gen3 import G, srd, t1_of, f2u, HDR, U_OFF, ST_OFF, CS_REL, TS_OFF, SPIN

F_OFF = 12<<20
F2 = 8192
FU=32768; EPO=40960
A0_REL=(ST_OFF-F_OFF)+(512<<10)
WT_OFF = 14<<20
vB2, vXO = 254, 255
vD=[226+i for i in range(0)]
vDM=[246,247,248,249]
vT=[250,251,252,253]
XR=246
vSG,vH0,vH1,vU,vFL,vPL = 58,59,60,61,62,63
vTT=245
MF='v_mfma_f32_32x32x16_bf16'
OOB='0x40000000'

class Rec:
    def __init__(s): s.l=[]
    def __call__(s,t):
        for x in t.split('\n'):
            x=x.strip()
            if x: s.l.append(x)
def ool(g, text):
    g.outofline+=[x.strip() if x.strip().endswith(':') else '    '+x.strip() for x in text.split('\n') if x.strip()]
def misc(g, n):
    while n>0 and g.miscq:
        x=g.miscq.pop(0); g(x)
        n-= x.count('\n')+1 + (1 if ('v_cos' in x or 'v_sin' in x) else 0)
def epoch_load(g):
    g(f's_add_u32 s60, s28, {F_OFF+EPO}\ns_addc_u32 s61, s29, 0\ns_load_dword s47, s[60:61], 0')
def nonce(g):
    g('s_mul_i32 s47, s47, 0x9e3779b1\ns_add_u32 s47, s47, 0x85ebca6b')

def p2_setup_ops(g, dft):
    r=Rec(); t=lambda i:f'v{1000+i}'
    if g.opt.get('p2arr',84)==48:
        r('''s_and_b32 s70, s31, 7
        s_lshr_b32 s0, s31, 4
        s_lshl_b32 s1, s30, 1
        s_add_u32 s45, s0, s1
        s_bfe_u32 s1, s31, 0x10003''')
    else:
        r('''s_and_b32 s70, s30, 1
        s_lshl_b32 s70, s70, 2
        s_lshr_b32 s0, s31, 2
        s_add_u32 s0, s0, s31
        s_and_b32 s0, s0, 3
        s_add_u32 s70, s70, s0
        s_lshr_b32 s45, s30, 1
        s_lshl_b32 s45, s45, 2
        s_lshr_b32 s0, s31, 3
        s_add_u32 s45, s45, s0
        s_bfe_u32 s1, s31, 0x10002''')
    r.l.append('s_sub_u32 s0, 32, s45\ns_cmp_eq_u32 s45, 0\ns_cselect_b32 s0, 16, s0\ns_cmp_eq_u32 s1, 0\ns_cselect_b32 s71, s45, s0')
    wr=g.opt.get('wrot',3)
    if wr==0: r('s_mov_b32 s44, 0')
    elif wr==1: r('s_mul_i32 s44, s30, 7\ns_lshr_b32 s44, s44, 2')
    elif wr==3: r('s_lshr_b32 s44, s31, 2\ns_mul_i32 s44, s44, 7\ns_lshr_b32 s44, s44, 2')
    elif wr==5: r('s_lshr_b32 s44, s31, 2\ns_max_u32 s44, s44, 1\ns_sub_u32 s44, s44, 1\ns_lshl_b32 s44, s44, 1')
    elif wr==4: r('s_lshr_b32 s44, s31, 3\ns_mul_i32 s44, s44, 7\ns_lshr_b32 s44, s44, 1')
    elif wr==2: r('s_lshr_b32 s44, s30, 1\ns_mul_i32 s44, s44, 7\ns_lshr_b32 s44, s44, 1')
    ho={0:None,1:(1,7),2:(1,4),3:(3,3),4:(3,1),5:(1,2)}[g.opt.get('hoff',0)]
    if ho:
        r.l.append(f's_and_b32 s0, s70, {ho[0]}\ns_mul_i32 s0, s0, {ho[1]}\ns_add_u32 s44, s44, s0\ns_cmp_ge_u32 s44, 14\ns_cselect_b32 s0, 14, 0\ns_sub_u32 s44, s44, s0'.replace('{ho[0]}',str(ho[0])) )
    r(f'''s_lshl_b32 s68, s44, 15
    s_lshl_b32 s69, s3, 13
    v_lshrrev_b32 {t(4)}, 3, v0
    v_bfe_u32 {t(5)}, v0, 4, 1
    v_lshlrev_b32 {t(6)}, 2, {t(5)}
    v_and_b32 {t(7)}, 7, v0
    v_xor_b32 {t(6)}, {t(6)}, {t(7)}
    v_lshlrev_b32 {t(6)}, 4, {t(6)}
    v_lshl_add_u32 {t(6)}, {t(4)}, 10, {t(6)}
    s_mul_i32 s0, s3, {448*1024}
    s_lshl_b32 s1, s70, 7
    s_add_u32 s0, s0, s1
    v_add_u32 v{vDM[0]}, s0, {t(6)}
    v_add_u32 v{vDM[1]}, {7168}, v{vDM[0]}
    v_add_u32 v{vDM[2]}, {2*7168}, v{vDM[0]}
    v_add_u32 v{vDM[3]}, {3*7168}, v{vDM[0]}''')
    srd(r,64,20,1792*512*2)
    early=r.l; r=Rec()
    srd(r,72,22,1024); srd(r,76,4,2097152)
    r(f'''v_lshrrev_b32 {t(4)}, 5, v0
    v_bfe_u32 {t(5)}, v0, 4, 1
    v_bfe_u32 {t(6)}, v0, 2, 2
    v_lshl_add_u32 {t(7)}, {t(4)}, 2, {t(6)}
    v_lshlrev_b32 {t(7)}, 7, {t(7)}
    v_lshrrev_b32 {t(6)}, 1, {t(6)}
    s_and_b32 s0, s3, 1
    v_xor_b32 {t(6)}, s0, {t(6)}
    v_lshl_add_u32 {t(7)}, {t(6)}, 6, {t(7)}
    v_lshl_add_u32 {t(7)}, {t(5)}, 5, {t(7)}
    v_and_b32 {t(6)}, 3, v0
    v_lshl_add_u32 {t(7)}, {t(6)}, 3, {t(7)}
    v_add_u32 v{vT[0]}, s69, {t(7)}
    v_xor_b32 v{vT[1]}, 64, v{vT[0]}
    v_add_u32 v{vT[2]}, 0x18000, v{vT[0]}
    v_add_u32 v{vT[3]}, 0x18000, v{vT[1]}
    s_lshl_b32 s0, s30, 9
    s_add_u32 s0, s0, {FU}
    v_and_b32 {t(7)}, 31, v0
    v_lshl_add_u32 v{vFL}, {t(7)}, 2, s0
    s_lshl_b32 s0, s45, 1
    s_and_b32 s1, s30, 1
    s_add_u32 s0, s0, s1
    s_lshl_b32 s0, s0, 2
    s_add_u32 s0, s0, s3
    s_lshl_b32 s0, s0, 8
    v_and_b32 {t(6)}, 3, v0
    v_lshl_add_u32 v{vPL}, {t(6)}, 2, s0
    s_lshr_b32 s1, s3, 1
    s_lshl_b32 s0, s1, 10
    v_lshl_add_u32 v{vH0}, v0, 4, s0
    v_xor_b32 v{vH1}, 0x400, v{vH0}
    s_lshl_b32 s0, s1, 5
    v_and_b32 {t(6)}, 31, v0
    v_add_u32 {t(5)}, s0, {t(6)}
    v_lshlrev_b32 {t(5)}, 5, {t(5)}
    v_add_u32 v{vTT}, s71, {t(5)}
    s_lshl_b32 s0, s0, 15
    s_lshl_b32 s1, s71, 10
    s_add_u32 s1, s1, s0
    v_lshrrev_b32 {t(5)}, 2, v0
    v_lshlrev_b32 {t(5)}, 15, {t(5)}
    v_lshrrev_b32 {t(7)}, 4, v0
    v_xor_b32 {t(7)}, {t(7)}, v0
    v_and_b32 {t(7)}, 3, {t(7)}
    v_lshl_add_u32 {t(5)}, {t(7)}, 4, {t(5)}
    v_add_u32 {t(5)}, s1, {t(5)}
    s_lshl_b32 s0, s70, 7
    s_and_b32 s1, s3, 1
    s_lshl_b32 s1, s1, 6
    s_add_u32 s0, s0, s1
    v_add_u32 v{vXO}, s0, {t(5)}
    v_lshl_add_u32 v{vB2}, {t(6)}, 1, s0
    s_lshr_b32 s0, s0, 1
    v_and_b32 {t(5)}, 20, v0
    v_bfe_u32 {t(7)}, v0, 1, 1
    v_lshl_add_u32 {t(5)}, {t(7)}, 3, {t(5)}
    v_and_b32 {t(7)}, 1, v0
    v_lshl_add_u32 {t(5)}, {t(7)}, 1, {t(5)}
    v_bfe_u32 {t(7)}, v0, 3, 1
    v_add3_u32 {t(6)}, {t(5)}, {t(7)}, s0''')
    r.l.append('s_cmp_lt_u32 s70, 4\ns_cselect_b32 s0, 0, -1\ns_cselect_b32 s1, 0, 513')
    r(f'''v_xor_b32 {t(7)}, s0, {t(6)}
    v_add_u32 {t(7)}, s1, {t(7)}
    v_and_b32 {t(8)}, 1, {t(7)}
    v_lshlrev_b32 {t(8)}, 11, {t(8)}
    v_bfe_u32 {t(7)}, {t(7)}, 1, 7
    v_lshl_add_u32 {t(7)}, {t(7)}, 4, {t(8)}
    v_lshl_add_u32 {t(7)}, {t(4)}, 12, {t(7)}
    v_or_b32 {t(8)}, 0x200000, {t(7)}
    v_cmp_eq_u32 vcc, 0, {t(6)}
    s_nop 0
    v_cndmask_b32 v{vU}, {t(7)}, {t(8)}, vcc
    v_mov_b32 {t(8)}, {OOB}''')
    if True:
        r.l.append(f's_cmp_eq_u32 s3, 0\ns_cselect_b32 s0, s46, {OOB}')
        if dft:
            r(f'''v_cmp_gt_u32 vcc, 8, v0
            v_lshl_add_u32 {t(10)}, v0, 9, s0
            s_nop 0
            v_cndmask_b32 v{vSG}, {t(8)}, {t(10)}, vcc''')
        else:
            r(f'''v_lshrrev_b32 {t(5)}, 1, v0
            v_mul_u32_u24 {t(6)}, 7, {t(5)}
            v_lshrrev_b32 {t(6)}, 1, {t(6)}
            v_sub_u32 {t(6)}, s49, {t(6)}
            v_and_b32 {t(7)}, 1, v0
            v_lshl_add_u32 {t(7)}, {t(7)}, 2, {t(5)}
            v_cmp_gt_u32 vcc, 4, {t(6)}
            v_lshlrev_b32 {t(7)}, 8, {t(7)}
            v_lshl_add_u32 {t(7)}, {t(6)}, 2, {t(7)}
            v_add_u32 {t(10)}, s0, {t(7)}
            v_cndmask_b32 {t(10)}, {t(8)}, {t(10)}, vcc
            v_cmp_gt_u32 vcc, 8, v0
            s_nop 1
            v_cndmask_b32 v{vSG}, {t(8)}, {t(10)}, vcc''')
    else: r(f'v_mov_b32 v{vSG}, {t(8)}')
    return early, r.l, []
def trig_ops(fract=True, TMX=None):
    r=Rec(); t=lambda i:f'v{1000+i}'
    r.l.append(f's_cmp_lt_u32 s70, 4\ns_cselect_b32 s0, 0, 0x80000000')
    r(f'''s_or_b32 s0, s0, {f2u(1/2048):#x}
    v_mov_b32 {t(5)}, v{vTT}
    v_lshrrev_b32 {t(6)}, 5, v0
    v_cvt_f32_u32 {t(5)}, {t(5)}
    v_cvt_f32_u32 {t(6)}, {t(6)}
    v_mul_f32 {t(5)}, s0, {t(5)}
    v_cmp_gt_u32 s[0:1], 32, v0
    v_mul_f32 {t(6)}, {t(6)}, {t(5)}
    v_mul_f32 {t(7)}, {f2u(32.0):#x}, {t(5)}
    v_add_f32 {t(5)}, {t(5)}, {t(5)}
    v_mul_f32 {t(9)}, 0.5, {t(7)}
    v_cndmask_b32 {t(9)}, {t(7)}, {t(9)}, s[0:1]''')
    for j in range(8):
        if j: r(f'v_add_f32 {t(6)}, {t(6)}, {t(5)}')
        if fract:
            r(f'''v_add_f32 {t(1)}, {t(6)}, {t(7)}
            v_sub_f32 {t(2)}, {t(9) if j==0 else t(7)}, {t(6)}
            v_fract_f32 {t(0)}, {t(6)}
            v_add_f32 {t(3)}, {t(2)}, {t(7)}
            v_fract_f32 {t(1)}, {t(1)}
            v_fract_f32 {t(2)}, {t(2)}
            v_fract_f32 {t(3)}, {t(3)}''')
        else:
            r(f'''v_add_f32 {t(1)}, {t(6)}, {t(7)}
            v_sub_f32 {t(2)}, {t(9) if j==0 else t(7)}, {t(6)}
            v_add_f32 {t(3)}, {t(2)}, {t(7)}''')
        for i in range(4):
            a_=t(i) if (fract or i) else t(6)
            r(f'v_cos_f32 {t(12+2*i)}, {a_}\nv_sin_f32 {t(13+2*i)}, {a_}')
        for i in range(4): r(f'v_cvt_pk_bf16_f32 {t(20+i)}, {t(12+2*i)}, {t(13+2*i)}')
        for i in range(4): r(f'v_accvgpr_write_b32 a{224+4*j+i}, {t(20+i)}')
    TM={0:4,1:5,2:6,3:7,5:13,6:14,7:15,9:8}
    TM.update({12+i:128+i for i in range(8)}); TM.update({20+i:232+i for i in range(4)})
    return remap(r.l,TMX or TM)
def remap(L, TM):
    return [re.sub(r'v(10\d\d)\b', lambda m:'v%d'%TM[int(m.group(1))-1000], x) for x in L]
def xb2_ops(g):
    def o0(): g.vmem(f'buffer_load_ushort v{vB2}, v{vB2}, s[72:75], 0 offen','b2')
    return [o0]
def ppos(pr):
    p=pr%10
    return 131072+p*4096 if p<2 else ((p-2)>>1)*32768+(p&1)*4096
def w2_pair_ops(g, pr, base='s69', lds=None):
    if lds is None: lds=ppos(pr)
    def mk(i):
        def op():
            if i==0: g(f's_add_u32 m0, {base}, {lds}')
            g.vmem(f'buffer_load_dwordx4 v{vDM[i]}, s[64:67], s68 offen offset:{1024*i} lds', f'w{pr}')
            if i==3 and pr<13: g(f's_add_u32 s68, s68, 32768\ns_cmp_eq_u32 s68, {14*32768}\ns_cselect_b32 s68, 0, s68')
        return op
    return [mk(i) for i in range(4)]
def w2_trl(pr, regs=None, off=None):
    if regs is None:
        off=ppos(pr)
        if off>=65536 and off<0x18000: regs=('hi',);
        if off<65536: regs=vT[0:2]
        elif off>=0x18000: regs=vT[2:4]; off-=0x18000
        else: regs=[vTm0,vTm1]; off-=65536
    L=[]
    for k in range(2):
        for a_ in range(2):
            for q in range(2):
                r=8*(2*pr+k)+4*a_+2*q
                L.append(f'ds_read_b64_tr_b16 a[{r}:{r+1}], v{regs[a_]} offset:{off+2048*k+1024*q}')
    return L
vJ=[[241,242],[243,244]]
vTm0,vTm1=14,15

def entry(g):
    g('''s_cmp_ge_u32 s2, 256
    s_cbranch_scc1 L_end''')
    g.stamp()
    g('''s_load_dwordx16 s[4:19], s[0:1], 0
    s_load_dwordx8 s[20:27], s[0:1], 64
    s_load_dwordx2 s[28:29], s[0:1], 96
    v_lshrrev_b32 v1, 6, v0
    s_and_b32 s30, s2, 7
    s_lshr_b32 s31, s2, 3
    v_readfirstlane_b32 s3, v1''')
    if g.opt.get('codepf',1):
        g(f'''s_getpc_b64 s[50:51]
        L_pc:
        s_mul_i32 s53, s31, 1280
        v_lshl_add_u32 v2, v0, 3, s53
        v_min_u32 v2, L_codeend-L_pc-4, v2''')
        g.vmem('global_load_dword v1, v2, s[50:51]','pf')
    if g.opt.get('p1arr',48)==216:
        g('''v_and_b32 v0, 63, v0
        s_lshl_b32 s48, s30, 1
        s_and_b32 s53, s31, 1
        s_cmp_lt_u32 s31, 4
        s_cbranch_scc1 L_dft0
        s_add_u32 s48, s48, s53
        s_lshr_b32 s49, s31, 1
        s_sub_u32 s49, s49, 2
        s_mov_b32 s100, s53''')
        r=g.opt.get('rot',4)
        if r==1: g('s_lshl_b32 s56, s53, 2\ns_add_u32 s56, s56, s49\ns_and_b32 s56, s56, 7')
        elif r==2: g('s_add_u32 s56, s53, s49\ns_and_b32 s56, s56, 1\ns_lshl_b32 s56, s56, 2')
        elif r==4: g('s_lshl_b32 s56, s53, 1\ns_add_u32 s56, s56, s49\ns_and_b32 s56, s56, 3\ns_lshl_b32 s56, s56, 1')
        if g.opt.get('xph',0): g('s_add_u32 s56, s56, s30\ns_and_b32 s56, s56, 7')
        return
    rot=g.opt.get('rot',4)
    g('''v_and_b32 v0, 63, v0
    s_lshr_b32 s48, s30, 1
    s_lshl_b32 s55, s48, 1
    s_lshl_b32 s48, s48, 2
    s_and_b32 s100, s31, 3
    s_add_u32 s48, s48, s100
    s_lshr_b32 s49, s31, 2
    s_sub_u32 s49, s49, 1
    s_and_b32 s49, s49, 7''') if g.opt.get('dftfirst',1) else g('''v_and_b32 v0, 63, v0
    s_lshr_b32 s48, s30, 1
    s_lshl_b32 s55, s48, 1
    s_lshl_b32 s48, s48, 2
    s_lshr_b32 s100, s31, 3
    s_add_u32 s48, s48, s100
    s_and_b32 s49, s31, 7''')
    if rot==1:   g('s_lshl_b32 s56, s100, 1\ns_add_u32 s56, s56, s49\ns_and_b32 s56, s56, 7')
    elif rot==2: g('s_add_u32 s56, s100, s49\ns_and_b32 s56, s56, 1\ns_lshl_b32 s56, s56, 2')
    elif rot==4: g('s_add_u32 s56, s100, s49\ns_and_b32 s56, s56, 3\ns_lshl_b32 s56, s56, 1')
    elif rot==0: g('s_mov_b32 s56, 0')
    if g.opt.get('xph',0): g('s_add_u32 s56, s56, s55\ns_and_b32 s56, s56, 7')
    g('''s_and_b32 s53, s30, 1
    s_cmp_eq_u32 s49, 7
    s_cbranch_scc1 L_dfte''')

def p1_mlp(g):
    ACC=64
    vX=[2,3,4,5]; vW=[6,7,8,9]; vB=[10,11,12,13]; vA=[18,19]
    vSA,vCA,vCP,vCB=14,15,16,17
    vB1=[56,57]; CSA=164; SEL=168; GA=144; GF=160
    WP=200; vP0,vP1,vPT,vPS,vPF=208,209,210,211,212
    rot=g.opt.get('rot',4)
    A216=g.opt.get('p1arr',48)==216
    if A216:
        g('s_and_b32 s50, s3, 1\ns_lshr_b32 s51, s3, 1\ns_and_b32 s53, s49, 1')
    else:
        g('''s_mul_i32 s54, s53, 7
        s_add_u32 s49, s49, s54
        s_and_b32 s50, s3, 1
        s_lshr_b32 s51, s3, 1''')
    g('s_lshl_b32 s63, s48, 1\ns_add_u32 s63, s63, s53')
    t1_of(g,'s52','s48','s51','s53')
    g(f'''v_lshrrev_b32 v24, 3, v0
    v_lshrrev_b32 v25, 4, v0
    v_and_b32 v28, 7, v0
    v_xor_b32 v26, v28, v25
    v_lshlrev_b32 v26, 4, v26
    v_lshl_add_u32 v26, v24, 15, v26
    s_lshl_b32 s53, s52, 10
    s_lshl_b32 s54, s50, 20
    s_add_u32 s53, s53, s54
    v_add_u32 v{vX[0]}, s53, v26
    v_xor_b32 v27, 64, v{vX[0]}
    v_add_u32 v{vX[1]}, {262144-1024}, v27
    v_add_u32 v{vX[2]}, {2*(262144-1024)}, v{vX[0]}
    v_add_u32 v{vX[3]}, {3*(262144-1024)}, v27
    v_and_b32 v26, 15, v0
    v_lshlrev_b32 v27, 2, v25
    v_xor_b32 v26, v26, v27
    v_lshlrev_b32 v26, 4, v26
    v_mul_u32_u24 v29, 3584, v25
    v_add_u32 v26, v26, v29
    s_mul_i32 s53, s3, 57344
    s_lshl_b32 s54, s49, 8
    s_add_u32 s53, s53, s54
    v_add_u32 v{vW[0]}, s53, v26
    v_add_u32 v{vW[1]}, 13312, v{vW[0]}
    v_add_u32 v{vW[2]}, {2*13312}, v{vW[0]}
    v_add_u32 v{vW[3]}, {3*13312}, v{vW[0]}
    s_lshl_b32 s55, s3, 12''')
    g.stamp('pro')
    g('s_waitcnt lgkmcnt(0)')
    g.stamp('pro')
    srd(g,32,4,2097152); srd(g,36,16,512*1792*2)
    def stage_ops(st):
        slot=st&3
        def mk(i):
            def op():
                if i==0: g(f's_lshl_b32 s57, s56, 7\ns_mul_i32 s58, s56, 229376\ns_add_u32 m0, s55, {slot*32768}')
                if i==4: g(f's_add_u32 m0, s55, {slot*32768+16384}\ns_add_u32 s56, s56, 1\ns_and_b32 s56, s56, 7')
                if i<4: g.vmem(f'buffer_load_dwordx4 v{vX[i]}, s[32:35], s57 offen offset:{1024*i} lds',f's{st}')
                else:   g.vmem(f'buffer_load_dwordx4 v{vW[i-4]}, s[36:39], s58 offen offset:{1024*(i-4)} lds',f's{st}')
            return op
        return [mk(i) for i in range(8)]
    D=g.opt.get('depth',3)
    for op in stage_ops(0): op()
    g.stamp('pro')
    for op in stage_ops(1): op()
    g('@@SPLIT@@')
    g.stamp('pro')
    epoch_load(g)
    g(f'''s_lshl_b32 s46, s48, 11
    v_and_b32 v24, 31, v0
    v_lshrrev_b32 v25, 5, v0
    v_bfe_u32 v26, v0, 1, 3
    v_xor_b32 v26, v26, v25
    s_lshl_b32 s53, s51, 13
    v_lshlrev_b32 v27, 7, v24
    v_add_u32 v27, s53, v27''')
    for kk in range(4):
        g(f'''v_xor_b32 v28, {2*kk}, v26
        v_lshl_add_u32 v{vB[kk]}, v28, 4, v27''')
    g(f'''v_bfe_u32 v26, v0, 2, 2
    v_lshl_add_u32 v27, v25, 3, v26
    v_lshlrev_b32 v27, 8, v27
    s_lshl_b32 s53, s50, 1
    s_add_u32 s53, s53, s51
    v_xor_b32 v26, s53, v26
    v_lshl_add_u32 v27, v26, 6, v27
    v_bfe_u32 v26, v0, 4, 1
    v_and_b32 v28, 3, v0
    v_lshlrev_b32 v30, 3, v28
    v_lshl_add_u32 v30, v26, 5, v30
    s_movk_i32 s59, 0x4000
    v_add3_u32 v{vA[0]}, v27, v30, s59
    v_xor_b32 v{vA[1]}, 64, v{vA[0]}
    v_bfe_u32 v27, v0, 2, 1
    v_xor_b32 v26, v26, v27
    v_or_b32 v26, v26, v28
    v_mov_b32 v27, 0x3f803f80
    v_cmp_eq_u32 vcc, 0, v26
    s_lshl_b32 s53, s53, 5
    v_add_u32 v26, s53, v24
    v_cndmask_b32 v{SEL+4}, 0, v27, vcc
    s_lshl_b32 s54, s49, 7
    v_add_lshl_u32 v{vB1[0]}, v26, s54, 1
    v_xor_b32 v{vB1[1]}, 64, v{vB1[0]}''')
    srd(g,40,18,1792*2)
    for t in range(2): g.vmem(f'buffer_load_ushort v{vB1[t]}, v{vB1[t]}, s[40:43], 0 offen','b1')
    if A216:
        g(f'''s_lshl_b32 s53, s49, 3
        s_lshr_b32 s54, s48, 1
        s_add_u32 s53, s53, s54
        s_lshl_b32 s53, s53, 11
        s_add_u32 s53, s53, {CS_REL+(ST_OFF-F_OFF)}
        v_lshl_add_u32 v{vCA}, v26, 4, s53
        s_lshl_b32 s54, s100, 3
        v_add_u32 v{vCP}, s54, v{vCA}
        v_xor_b32 v{vCB}, 0x200, v{vCA}''')
    else: g(f'''s_lshl_b32 s53, s49, 2
    s_lshr_b32 s54, s48, 2
    s_add_u32 s53, s53, s54
    s_lshl_b32 s53, s53, 12
    s_add_u32 s53, s53, {CS_REL+(ST_OFF-F_OFF)}
    v_lshl_add_u32 v26, v26, 5, s53
    s_lshl_b32 s54, s100, 3
    v_add_u32 v{vCP}, s54, v26
    v_lshl_add_u32 v{vCA}, v25, 4, v26
    v_xor_b32 v{vCB}, 0x400, v{vCA}''')
    g(f'''
    s_lshl_b32 s53, s63, 11
    s_lshl_b32 s54, s51, 10
    s_add_u32 s53, s53, s54
    s_add_u32 s53, s53, {ST_OFF-F_OFF}
    v_lshl_add_u32 v{vSA}, v24, 4, s53
''')
    srd(g,40,28,4<<20,add=F_OFF)
    g.stamp('pro')
    WS0=g.opt.get('wsched','o')
    if D==3 and WS0!='y':
        for op in stage_ops(2): op()
    g.stamp('pro')
    g('s_waitcnt lgkmcnt(0)')
    early,addr,trig=p2_setup_ops(g,False)
    TM={i:176+i for i in range(24)}
    early,addr,trig=[remap(x,TM) for x in (early,addr,trig)]
    vBh=[200,201,202,203]; vAh=[204,205]
    g.miscq=[f'v_add_u32 v{h}, 0x10000, v{l}' for h,l in zip(vBh+vAh,vB+vA)]+early+addr+trig
    def fr(s_):
        b=[32,128][s_]
        return dict(A=[b,b+4],B=[b+8,b+12])
    def rd(n):
        st,kk=n>>2,n&3
        f=fr(n&1); o=(st&1)*32768; hi=(st>>1)&1
        tr=lambda t,q: f'ds_read_b64_tr_b16 v[{f["A"][t]+2*q}:{f["A"][t]+2*q+1}], v{[vA,vAh][hi][t]} offset:{o+4096*kk+1024*q}'
        bb=lambda u: f'ds_read_b128 v[{f["B"][u]}:{f["B"][u]+3}], v{[vB,vBh][hi][kk]} offset:{o+4096*u}'
        return [tr(0,0),tr(0,1),bb(0),bb(1),tr(1,0),tr(1,1)]
    ncs = 4 if A216 else {1:2,4:2,2:4,0:8}[rot]
    def setsel(st):
        if ncs==2 or A216: cond=None
        elif ncs==4: cond=f's_lshr_b32 s53, s100, 1\ns_cmp_eq_u32 s53, {st>>1}'
        else: cond=f's_cmp_eq_u32 s100, {st>>1}'
        if cond is None:
            for i in range(4): g(f'v_mov_b32 v{SEL+i}, v{SEL+4}')
        else:
            g(cond+'\ns_cselect_b32 s53, -1, 0')
            for i in range(4): g(f'v_and_b32 v{SEL+i}, s53, v{SEL+4}')
    def gather_ops():
        def mk(r,v,off):
            def o(): g.vmem(f'buffer_load_dwordx4 v[{r}:{r+3}], v{v}, s[40:43], 0 offen offset:{off} sc1','ga')
            return o
        return [mk(GA,vSA,0),mk(GA+4,vSA,512),mk(GA+8,vCA,0),mk(GA+12,vCB,0)]
    def publish():
        g(f'v_mov_b32 v{CSA+1}, s47')
        g.vmem(f'buffer_store_dwordx2 v[{CSA}:{CSA+1}], v{vCP}, s[40:43], 0 offen sc1','csp')
    WPS=g.opt.get('wpstage',1)
    WSCHED={'a':{2:[0],3:[1],5:[2,3],6:[4],7:[5,6]},'b':{3:[0],4:[1],5:[2],6:[3,4],7:[5]},'c':{5:[0,1],6:[2],7:[3,4]},'d':{1:[0],2:[1],5:[2,3],6:[4,5],7:[6]},'e':{5:[0,1],6:[2,3],7:[4,5]},'f':{4:[0],5:[1],6:[2,3],7:[4,5]},'g':{5:[0],6:[1],7:[2,3]},'h':{4:[0,1],7:[2,3,4]},'i':{4:[0,1],7:[2,3]},'j':{4:[0,1]},'k':{3:[0,1],6:[2,3],7:[4,5]},'l':{4:[0,1],6:[2],7:[3,4]},'m':{1:[(0,0)],2:[(0,1)],3:[(1,0)],4:[(1,1)],5:[2,3],6:[4,5],7:[6]},'n':{1:[(0,0)],2:[(0,1)],3:[(1,0)],4:[(1,1)],6:[2,3],7:[4,5]},'o':{1:[0],2:[1],5:[2,3],6:[4,5],7:[6,7]},'p':{5:[0,1],7:[2]},'q':{5:[0,1]},'r':{5:[0,1],6:[2]},'s':{5:[0,1],7:[2,3]},'t':{5:[0,1],6:[2],7:[3]},'u':{1:[0,1],5:[2,3],6:[4,5],7:[6,7]},'v':{0:[0,1],5:[2,3],6:[4,5],7:[6,7]},'w':{2:[0,1],5:[2,3],6:[4,5],7:[6,7]},'x':{-1:[0,1],5:[2,3],6:[4,5],7:[6,7]},'y':{-2:[0,1],5:[2,3],6:[4,5],7:[6,7]}}[g.opt.get('wsched','o')]
    half={}
    prevtr=[0]
    NTL=g.opt.get('ntl',5)
    TRL={n:(i>>1,i&1) for i,n in enumerate([20,21,22,23,26,27,28,29,30,31][:2*NTL])}
    MX=g.opt.get('mx',5)
    nw=len(set((p[0] if isinstance(p,tuple) else p) for x in WSCHED.values() for p in x))
    def enter(st):
        g.flush_side()
        g.wait(f's{st}')
        g('s_barrier')
        g.stamp('st')
        if st+D<8: g.sideq+=stage_ops(st+D)
        if st==max(ncs,g.opt.get('pubst',4)) and ncs<8: g.sideq.append(publish)
        if st==6: g.miscq+=hr.l
        if st in WSCHED and st<6:
            while len(g.miscq)>len(trig)+len(addr): misc(g,1)
        if st==g.opt.get('gast',7) and not g.opt.get('galast'): g.sideq+=gather_ops()
        for pr in WSCHED.get(st,[]):
            if isinstance(pr,tuple):
                if pr[1]==0: half[pr[0]]=w2_pair_ops(g,pr[0])
                ops=half[pr[0]][2*pr[1]:2*pr[1]+2]
                if pr[1]==1: ops=[lambda p=pr[0],o=ops[0]:(g(f's_add_u32 m0, s69, {ppos(p)}'),o())]+ops[1:]
                g.sideq+=ops
            else: g.sideq+=w2_pair_ops(g,pr)
        if st==g.opt.get('gast',7) and g.opt.get('galast'): g.sideq+=gather_ops()
    if WS0 in 'xy':
        while len(g.miscq)>len(trig)+len(addr): misc(g,1)
        for op in w2_pair_ops(g,0)+w2_pair_ops(g,1): op()
        if WS0=='y':
            for op in stage_ops(2): op()
    hr=Rec()
    srd(hr,36,28,7340032)
    hr('''s_mul_i32 s53, s52, 112
    s_lshl_b32 s54, s49, 3
    s_add_u32 s53, s53, s54
    s_lshl_b32 s54, s50, 2
    s_add_u32 s53, s53, s54
    s_lshl_b32 s53, s53, 11
    s_lshl_b32 s54, s51, 12
    s_add_u32 s60, s53, s54
    s_xor_b32 s61, s60, 0x400
    s_xor_b32 s62, s60, 0x1000
    s_xor_b32 s63, s60, 0x1400
''')
    nonce(g); setsel(0)
    enter(0); g.stamp(); g.stamp('pro')
    for x in rd(0): g(x)
    for n in range(32):
        st,kk=n>>2,n&3
        f=fr(n&1)
        def mf(t,u):
            d=ACC+16*(2*t+u)
            g(f'{MF} v[{d}:{d+15}], v[{f["A"][t]}:{f["A"][t]+3}], v[{f["B"][u]}:{f["B"][u]+3}], '+(f'v[{d}:{d+15}]' if n else '0'))
        nx = rd(n+1) if n<31 else []
        xt=prevtr[0]; prevtr[0]=0
        if kk==3:
            g(f's_waitcnt lgkmcnt({xt})'); mf(0,0)
            if st<7: enter(st+1)
            else: g.flush_side(); g('s_barrier')
            for x in nx[:3]: g(x)
            mf(0,1)
            for x in nx[3:]: g(x)
            mf(1,0)
        else:
            g(f's_waitcnt lgkmcnt({3+xt})'); mf(0,0)
            for x in nx[:3]: g(x)
            g(f's_waitcnt lgkmcnt({5+xt})'); mf(0,1)
            for x in nx[3:]: g(x)
            g(f's_waitcnt lgkmcnt({6+xt})'); mf(1,0)
        if n in TRL:
            pr,h=TRL[n]
            if h==0: g.wait(f'w{pr}')
            for x in w2_trl(pr)[4*h:4*h+4]: g(x)
            prevtr[0]=4
        else:
            had=bool(g.sideq); g.side(); misc(g, 2 if had else MX)
        if st<ncs:
            g(f'v_mfma_f32_16x16x32_bf16 v[{CSA}:{CSA+3}], v[{SEL}:{SEL+3}], v[{f["A"][0]}:{f["A"][0]+3}], '+(f'v[{CSA}:{CSA+3}]' if n else '0'))
        mf(1,1)
        had=bool(g.sideq); g.side(2 if (len(g.sideq)>2*(3-kk)+1 or n in TRL) else 1); misc(g,2 if had else MX)
        if kk==3 and st+1<ncs and (st+1)%2==0: setsel(st+1)
    if ncs==8: publish()
    g.flush_side(); misc(g,9999)
    g.stamp(); g.stamp('st'); g.stamp('tail')
    g.wait('ga')
    g(f'''s_mov_b32 s56, {SPIN}
    L_gchk:
    v_xor_b32 v24, s47, v{GA+3}
    v_xor_b32 v25, s47, v{GA+7}
    v_xor_b32 v26, s47, v{GA+9}
    v_xor_b32 v27, s47, v{GA+11}
    v_xor_b32 v28, s47, v{GA+13}
    v_xor_b32 v29, s47, v{GA+15}
    v_or3_b32 v24, v24, v25, v26
    v_or3_b32 v27, v27, v28, v29
    v_or_b32 v24, v24, v27
    v_cmp_ne_u32 vcc, 0, v24
    s_cbranch_vccnz L_gslow
    L_gok:''')
    keep=list(g.vm); main=g.a.l; g.a.l=[]
    g('L_gslow:\ns_sleep 8')
    for op in gather_ops(): op()
    g('s_waitcnt vmcnt(0)\ns_sub_u32 s56, s56, 1\ns_cbranch_scc0 L_gchk\ns_branch L_gok')
    g.outofline+=g.a.l; g.a.l=main; g.vm=keep
    NG=g.opt.get('ng',10)
    assert NG<=10+NTL
    g('s_waitcnt lgkmcnt(0)')
    for pr in range(nw,NG): g.sideq+=w2_pair_ops(g,pr)
    a0,a1=GA+8,GA+12
    c0=-2*math.sqrt(2/math.pi)*math.log2(math.e); c1=c0*0.044715
    g(f'''v_add_f32 v{a0}, v{a0}, v{a0+2}
    v_add_f32 v{a1}, v{a1}, v{a1+2}
    v_rcp_f32 v24, v{GA+2}
    v_mov_b32 v{a0+1}, v{a0}
    v_mov_b32 v{a1+1}, v{a1}
    v_rcp_f32 v26, v{GA+6}
    v_cmp_gt_u32 vcc, 32, v0
    v_permlane32_swap_b32 v{a0}, v{a0+1}
    v_permlane32_swap_b32 v{a1}, v{a1+1}
    v_mov_b32 v50, v{GA+2}
    v_mov_b32 v54, v{GA+6}
    {'v_mov_b32' if A216 else 'v_add_f32'} v{a0+2}, v{a0}{'' if A216 else f', v{a0+1}'}
    {'v_mov_b32' if A216 else 'v_add_f32'} v{a1+2}, v{a1}{'' if A216 else f', v{a1+1}'}
    v_mov_b32 v{GA+2}, v{GA}
    v_mov_b32 v{GA+6}, v{GA+4}
    v_cvt_pk_bf16_f32 v{a0}, v{a0+2}, v{a0+2}
    v_cvt_pk_bf16_f32 v{a1}, v{a1+2}, v{a1+2}
    v_lshl_or_b32 v{a0+1}, v{vB1[0]}, 16, v{vB1[0]}
    v_lshl_or_b32 v{a1+1}, v{vB1[1]}, 16, v{vB1[1]}
    v_lshlrev_b32 v{a0+3}, 16, v{a0}
    v_lshlrev_b32 v{a1+3}, 16, v{a1}
    v_cndmask_b32 v{a0}, 0, v{a0}, vcc
    v_cndmask_b32 v{a1}, 0, v{a1}, vcc
    v_sub_f32 v{a0+2}, v{a0+2}, v{a0+3}
    v_sub_f32 v{a1+2}, v{a1+2}, v{a1+3}
    v_cndmask_b32 v{a0+1}, 0, v{a0+1}, vcc
    v_cndmask_b32 v{a1+1}, 0, v{a1+1}, vcc
    v_cvt_pk_bf16_f32 v{a0+2}, v{a0+2}, 0
    v_cvt_pk_bf16_f32 v{a1+2}, v{a1+2}, 0
    v_mov_b32 v{a0+3}, 0
    v_mov_b32 v{a1+3}, 0
    v_cndmask_b32 v{a0+2}, 0, v{a0+2}, vcc
    v_cndmask_b32 v{a1+2}, 0, v{a1+2}, vcc
    v_mov_b32 v{GA+3}, 0
    v_mov_b32 v{GA+7}, 0''')
    Aex=[a0,a1]; Bex=[GA,GA+4]
    for t in range(2):
        for u in range(2):
            d=ACC+16*(2*t+u)
            g(f'{MF} v[{d}:{d+15}], v[{Aex[t]}:{Aex[t]+3}], v[{Bex[u]}:{Bex[u]+3}], v[{d}:{d+15}]')
    g(f'''v_mul_f32 v25, v24, v24
    v_mul_f32 v27, v26, v26
    v_mul_f32 v49, {f2u(c0):#x}, v24
    v_mul_f32 v53, {f2u(c0):#x}, v26
    v_mul_f32 v25, v25, v24
    v_mul_f32 v27, v27, v26
    v_mul_f32 v48, {f2u(c1):#x}, v25
    v_mul_f32 v52, {f2u(c1):#x}, v27''')
    g('v_lshlrev_b32 v56, 4, v0')
    g.stamp()
    while len(g.miscq)>len(trig): misc(g,1)
    def trop(pr,h):
        def op():
            if h==0: g.wait(f'w{pr}')
            for x in w2_trl(pr)[4*h:4*h+4]: g(x)
        return op
    xo=xb2_ops(g)
    trs=[]
    for pr in range(NTL,4):
        if not g.opt.get('trpost'): trs+=[trop(pr,0),trop(pr,1)]
    g.sideq+=xo+trs
    NS=g.opt.get('gside',4)
    for t in range(2):
        for u in range(2):
            d=ACC+16*(2*t+u); K=[48,52][u]; RI=[50,54][u]
            for j in range(2):
                NS=g.opt.get('gside',4) if 4*t+2*u+j>=g.opt.get('gstart',0) else 0
                P=[d+8*j+2*i for i in range(4)]
                tm=[2+2*i for i in range(4)]
                o=[24,28][j]
                for i in range(4): g(f'v_pk_mul_f32 v[{tm[i]}:{tm[i]+1}], v[{P[i]}:{P[i]+1}], v[{P[i]}:{P[i]+1}]')
                for i in range(4): g(f'v_pk_fma_f32 v[{tm[i]}:{tm[i]+1}], v[{tm[i]}:{tm[i]+1}], v[{K}:{K+1}], v[{K}:{K+1}] op_sel:[0,0,1] op_sel_hi:[1,0,1]')
                if NS>=1: g.side()
                for i in range(4): g(f'v_pk_mul_f32 v[{tm[i]}:{tm[i]+1}], v[{tm[i]}:{tm[i]+1}], v[{P[i]}:{P[i]+1}]')
                for i in range(8):
                    g(f'v_exp_f32 v{2+i}, v{2+i}')
                    if i==3 and NS>=4: g.side()
                if NS>=2: g.side()
                for i in range(4): g(f'v_pk_fma_f32 v[{tm[i]}:{tm[i]+1}], v[{tm[i]}:{tm[i]+1}], v[{RI}:{RI+1}], v[{RI}:{RI+1}] op_sel:[0,0,0] op_sel_hi:[1,0,0]')
                for i in range(8):
                    g(f'v_rcp_f32 v{2+i}, v{2+i}')
                    if i==3 and NS>=5: g.side()
                if NS>=3: g.side()
                for i in range(4): g(f'v_pk_mul_f32 v[{tm[i]}:{tm[i]+1}], v[{tm[i]}:{tm[i]+1}], v[{P[i]}:{P[i]+1}]')
                for i in range(4): g(f'v_cvt_pk_bf16_f32 v{o+i}, v{tm[i]}, v{tm[i]+1}')
                g.vmem(f'buffer_store_dwordx4 v[{o}:{o+3}], v56, s[36:39], s{60+2*t+u} offen offset:{2048*j} {"" if g.opt.get("hplain") else "sc1"}','st')
    g.stamp()
    print('after GELU: side',len(g.sideq),'misc',len(g.miscq),file=sys.stderr)
    g.stamp('tail')
    g.flush_side()
    g(f'v_mov_b32 v2, s47\nv_add_u32 v{vTm0}, 0x10000, v{vT[0]}\nv_add_u32 v{vTm1}, 0x10000, v{vT[1]}')
    NJ=g.opt.get('nj',4)
    for k in range(0 if g.opt.get('merge',0) else NJ//2): g(f'v_add_u32 v{vJ[k][0]}, {ppos(12-2*k)}, v{vT[0]}\nv_add_u32 v{vJ[k][1]}, {ppos(12-2*k)}, v{vT[1]}')
    for d in (1,2,3): g(f's_add_u32 s{5+d}, s69, {d*32768}\ns_xor_b32 s{8+d}, s{5+d}, {d*8192}')
    g(f's_add_u32 s12, s69, {32768+4096}')
    TB=g.opt.get('trbefore',1)
    for pr in range(max(4,NTL),4+TB):
        g.wait(f'w{pr}')
        for x in w2_trl(pr): g(x)
    g.stamp('tail')
    g.wait('st')
    g.stamp('tail')
    g('s_barrier')
    g.vmem(f'buffer_store_dword v2, v{vSG}, s[40:43], 0 offen sc1','flag')
    g.stamp('tail')
    if g.opt.get('merge',0):
        g.nw=NG
        return
    for pr in range(NG,10):
        for op in w2_pair_ops(g,pr): op()
    if g.opt.get('trpost'):
        for pr in range(NTL,4):
            g.wait(f'w{pr}')
            for x in w2_trl(pr): g(x)
    g('s_waitcnt lgkmcnt(0)')
    for pr in range(max(NG,10),14):
        for op in w2_pair_ops(g,pr): op()
    for pr in range(max(4+TB,NTL),14-NJ):
        g.wait(f'w{pr}')
        for x in w2_trl(pr): g(x)
    g('v_not_b32 v3, v2')

def p1_dft(g):
    RAW=64
    vBr0=56; vXL=[57,18,19,2]; vSP=3; vA0=244; vBd=[4,5,6,7]; vWe,vWo=8,9; vFA=[10,11,12,13]; vFB=[14,15,16,17]
    CC=[192,196]; SS=[200,204]; NS=[208,212]
    RC=[216,218,220,222]
    if g.opt.get('p1arr',48)==216:
        g('L_dft0:\ns_lshr_b32 s100, s31, 1\ns_add_u32 s48, s48, s100\ns_lshl_b32 s100, s100, 1')
    g('''s_mov_b32 s49, s53
    s_lshr_b32 s51, s3, 1''')
    t1_of(g,'s52','s48','s51','s53')
    g(f'''s_and_b32 s50, s3, 1
    s_lshl_b32 s53, s50, 5
    s_add_u32 s53, s53, s52
    s_lshl_b32 s53, s53, 10
    v_lshrrev_b32 v24, 3, v0
    v_lshrrev_b32 v25, 4, v0
    v_and_b32 v26, 7, v0
    v_lshlrev_b32 v27, 4, v26
    v_lshl_add_u32 v27, v24, 16, v27
    s_lshl_b32 s54, s100, 7
    v_add3_u32 v{vXL[0]}, v27, s53, 0
    v_add_u32 v{vXL[0]}, s54, v{vXL[0]}
    v_xor_b32 v{vXL[1]}, 0x80, v{vXL[0]}
    v_xor_b32 v{vXL[2]}, 0x100, v{vXL[0]}
    v_xor_b32 v{vXL[3]}, 0x180, v{vXL[0]}
    s_waitcnt lgkmcnt(0)''')
    srd(g,32,4,2097152)
    def xops(gi):
        def mk(j):
            def op():
                if j==0: g(f's_mov_b32 s58, {gi*524288}')
                r=RAW+32*gi+4*j
                g.vmem(f'buffer_load_dwordx4 v[{r}:{r+3}], v{vXL[j&3]}, s[32:35], s58 offen offset:{512*(j>>2)}',f'x{gi}')
            return op
        return [mk(j) for j in range(8)]
    DO=g.opt.get('dord','a')
    for gi in range(1 if DO in 'de' else 2):
        for op in xops(gi): op()
    if DO not in 'de': g('@@SPLIT@@')
    epoch_load(g)
    srd(g,36,10,524288); srd(g,16,12,524288); srd(g,40,28,4<<20,add=F_OFF)
    g(f'''s_lshl_b32 s46, s48, 3
    s_lshl_b32 s53, s49, 2
    s_add_u32 s46, s46, s53
    s_add_u32 s46, s46, {FU}
    v_xor_b32 v26, v26, v25
    v_lshlrev_b32 v26, 4, v26
    v_lshl_add_u32 v27, v24, 11, v26
    s_lshl_b32 s53, s3, 16
    s_lshl_b32 s54, s49, 10
    s_add_u32 s53, s53, s54
    v_add_u32 v{vBd[0]}, s53, v27
    v_xor_b32 v28, 64, v{vBd[0]}
    v_add_u32 v{vBd[1]}, {16384-1024}, v28
    v_add_u32 v{vBd[2]}, {2*(16384-1024)}, v{vBd[0]}
    v_add_u32 v{vBd[3]}, {3*(16384-1024)}, v28
    v_add_u32 v28, 0x40000, v{vBd[0]}
    v_cmp_gt_u32 vcc, 1024, v{vBd[0]}
    v_lshl_add_u32 v27, v24, 7, v26
    s_lshl_b32 s53, s3, 12
    v_cndmask_b32 v{vBr0}, v{vBd[0]}, v28, vcc
    v_add_u32 v{vWe}, s53, v27
    v_xor_b32 v{vWo}, 64, v{vWe}
    s_mul_i32 s55, s3, 24576
    s_add_u32 s55, s55, 65536
    s_lshl_b32 s53, s48, 1
    s_add_u32 s53, s53, s49
    s_lshl_b32 s53, s53, 11
    s_lshl_b32 s54, s51, 10
    s_add_u32 s53, s53, s54
    s_lshl_b32 s54, s50, 4
    s_add_u32 s53, s53, s54
    s_add_u32 s53, s53, {ST_OFF-F_OFF}
    v_lshl_add_u32 v{vSP}, v24, 5, s53
    s_lshl_b32 s53, s48, 1
    s_add_u32 s53, s53, s49
    s_lshl_b32 s53, s53, 9
    s_add_u32 s13, s53, {A0_REL}
    s_lshl_b32 s54, s3, 7
    s_add_u32 s53, s13, s54
    v_lshl_add_u32 v{vA0}, v24, 2, s53
    v_and_b32 v242, 3, v0
    v_lshl_add_u32 v{vA0}, v242, 5, v{vA0}''')
    def bops(st):
        slot=st&1
        def mk(i):
            def op():
                if i==0: g(f's_xor_b32 s57, s100, {st}\ns_lshl_b32 s57, s57, 7\ns_add_u32 m0, s55, {slot*8192}')
                if i==4: g(f's_add_u32 m0, s55, {slot*8192+4096}')
                if i<4: g.vmem(f'buffer_load_dwordx4 v{vBr0 if i==0 else vBd[i]}, s[36:39], s57 offen offset:{1024*i} lds',f'B{st}')
                else:   g.vmem(f'buffer_load_dwordx4 v{vBd[i-4]}, s[16:19], s57 offen offset:{1024*(i-4)} lds',f'B{st}')
            return op
        return [mk(i) for i in range(8)]
    if DO in 'de':
        for op in bops(0): op()
        g('@@SPLIT@@')
    g(f'''v_and_b32 v24, 31, v0
    v_lshrrev_b32 v25, 5, v0
    v_bfe_u32 v26, v0, 1, 3
    v_xor_b32 v26, v26, v25
    v_lshlrev_b32 v27, 7, v24''')
    for kk in range(4):
        g(f'''v_xor_b32 v28, {2*kk}, v26
        v_lshl_add_u32 v{vFA[kk]}, v28, 4, v27
        v_add_u32 v{vFB[kk]}, s55, v{vFA[kk]}''')
    g(f'''v_cvt_f32_u32 v26, v24
    v_mul_f32 v26, {f2u(1/32):#x}, v26
    v_cvt_f32_u32 v27, v25
    v_mul_f32 v27, 4.0, v27
    v_mul_f32 v27, v27, v26
    v_mul_f32 v28, {f2u(5.0):#x}, v26''')
    for j in range(2):
        for i2 in range(4):
            for e in range(2):
                i=2*i2+e
                if not (j==0 and i==0):
                    g(f'v_add_f32 v27, v27, v{28 if i%4==0 else 26}')
                g(f'v_fract_f32 v29, v27\nv_cos_f32 v{20+e}, v29\nv_sin_f32 v{22+e}, v29')
            g(f'v_cvt_pk_bf16_f32 v{CC[j]+i2}, v20, v21\nv_cvt_pk_bf16_f32 v{SS[j]+i2}, v22, v23\nv_xor_b32 v{NS[j]+i2}, 0x80008000, v{SS[j]+i2}')
    early,addr,trig=p2_setup_ops(g,True)
    TM={0:20,1:21,2:22,3:23,4:24,5:25,6:26,7:27,8:28,9:29,10:30,12:2,13:3,14:8,15:9,16:31,17:57,18:240,19:241,20:242,21:243,22:244,23:245}
    early,addr,trig=[remap(x,TM) for x in (early,addr,trig)]
    g(f'''s_mov_b32 s59, 0x3f803f80
    s_movk_i32 s60, 0x3f80
    s_mov_b32 s61, 0x3f800000
    s_lshl_b32 s53, s49, 15
    s_or_b32 s62, s60, s53
    s_lshl_b32 s63, s62, 16
    s_cmp_eq_u32 s49, 0
    s_cselect_b32 s101, 2.0, 0
    s_waitcnt lgkmcnt(0)''')
    nonce(g)
    eps=f'{f2u(1e-5):#x}'
    chainq=[]
    def ch(n=1):
        for _ in range(n):
            if chainq: chainq.pop(0)()
    def stats(gi):
        R=RAW+32*gi; S=[224,228][gi&1]
        g.wait(f'x{gi}')
        if gi==0: g.stamp()
        for i in range(32):
            if i<2: g(f'v_dot2_f32_bf16 v{S+i}, v{R+i}, s59, 0\nv_dot2_f32_bf16 v{S+2+i}, v{R+i}, v{R+i}, 0')
            else:   g(f'v_dot2c_f32_bf16 v{S+(i&1)}, s59, v{R+i}\nv_dot2c_f32_bf16 v{S+2+(i&1)}, v{R+i}, v{R+i}')
            if i%4==3: g.side()
            if i>=2: ch(2)
        while chainq: ch()
        o=232+4*(gi&1); r1=RC[gi]; a,b,c,d=20,21,22,23
        lines=f'''v_add_f32 v{S}, v{S}, v{S+1}
        v_add_f32 v{S+2}, v{S+2}, v{S+3}
        v_add_f32_dpp v{S}, v{S}, v{S} quad_perm:[1,0,3,2] row_mask:0xf bank_mask:0xf
        v_add_f32_dpp v{S+2}, v{S+2}, v{S+2} quad_perm:[1,0,3,2] row_mask:0xf bank_mask:0xf
        v_add_f32_dpp v{S}, v{S}, v{S} quad_perm:[2,3,0,1] row_mask:0xf bank_mask:0xf
        v_add_f32_dpp v{S+2}, v{S+2}, v{S+2} quad_perm:[2,3,0,1] row_mask:0xf bank_mask:0xf
        v_add_f32_dpp v{S}, v{S}, v{S} row_half_mirror row_mask:0xf bank_mask:0xf
        v_add_f32_dpp v{S+2}, v{S+2}, v{S+2} row_half_mirror row_mask:0xf bank_mask:0xf
        v_mul_f32 v{a}, {f2u(-1/512):#x}, v{S}
        v_mul_f32 v{b}, {f2u(1/512):#x}, v{S+2}
        v_fma_f32 v{b}, -v{a}, v{a}, v{b}
        v_cvt_pk_bf16_f32 v{d}, v{a}, v{a}
        v_max_f32 v{b}, 0, v{b}
        v_lshlrev_b32 v{d}, 16, v{d}
        v_cvt_pk_bf16_f32 v{c}, 0, v{b}
        v_sub_f32 v{d}, v{a}, v{d}
        v_add_f32 v{c}, {eps}, v{c}
        v_cvt_pk_bf16_f32 v{o}, v{a}, v{d}
        v_cvt_pk_bf16_f32 v{c}, 0, v{c}
        v_mul_f32 v{r1+1}, s101, v{a}
        v_sqrt_f32 v{c}, v{c}
        v_mov_b32 v{o+3}, s47
        v_cvt_pk_bf16_f32 v{c}, 0, v{c}
        v_rcp_f32 v{r1}, v{c}
        v_mul_f32 v{d}, {f2u(-512.0):#x}, v{d}
        v_mul_f32 v{b}, v{b}, v{r1}
        v_mul_f32 v{241 if gi else 240}, v{d}, v{r1}
        v_mul_f32 v{b}, v{b}, v{r1}
        v_cvt_pk_bf16_f32 v{b}, 0, v{b}
        v_add_f32 v{b}, {eps}, v{b}
        v_cvt_pk_bf16_f32 v{b}, 0, v{b}
        v_sqrt_f32 v{b}, v{b}
        v_cvt_pk_bf16_f32 v{b}, 0, v{b}
        v_mul_f32 v{o+2}, v{b}, v{c}
        v_cvt_pk_bf16_f32 v{b}, 0, v{o+2}
        v_sub_f32 v{b}, v{o+2}, v{b}
        v_cvt_pk_bf16_f32 v{o+1}, v{o+2}, v{b}'''.split('\n')
        for ln in lines: chainq.append(lambda ln=ln: g(ln))
        chainq.append(lambda: g.vmem(f'buffer_store_dwordx4 v[{o}:{o+3}], v{vSP}, s[40:43], 0 offen offset:{256*gi} sc1','sp'))
        if gi: chainq.append(lambda: g(f'v_cmp_eq_u32 vcc, {gi}, v242\ns_nop 1\nv_cndmask_b32 v240, v240, v241, vcc'))
        if gi==3: chainq.append(lambda: g.vmem(f'buffer_store_dword v240, v{vA0}, s[40:43], 0 offen sc1','a0'))
    def bfly(gi):
        R=RAW+32*gi; r1=RC[gi]
        for j in range(4):
            o=[24,28][j&1]; T=[40,48][j&1]
            for i in range(4):
                a_=R+4*j+i; t=T+2*i
                g(f'v_dot2_f32_bf16 v{t}, v{a_}, s60, v{r1+1}\nv_dot2_f32_bf16 v{t+1}, v{a_}, s61, v{r1+1}'); ch()
            g.side()
            for i in range(4):
                b_=R+4*(j+4)+i; t=T+2*i
                g(f'v_dot2c_f32_bf16 v{t}, s62, v{b_}\nv_dot2c_f32_bf16 v{t+1}, s63, v{b_}'); ch()
            ch(2)
            for i in range(4):
                t=T+2*i
                g(f'v_pk_mul_f32 v[{t}:{t+1}], v[{t}:{t+1}], v[{r1}:{r1+1}] op_sel_hi:[1,0]')
            g.side()
            for i in range(4):
                t=T+2*i
                g(f'v_cvt_pk_bf16_f32 v{o+i}, v{t}, v{t+1}')
            g(f'ds_write_b128 v{vWo if gi&1 else vWe}, v[{o}:{o+3}] offset:{16384*j+1024*gi}')
        while chainq: ch()
    W0=16384
    LATEW=g.opt.get('latew',0)
    wl={0:W0,1:W0+4096,2:W0,3:W0+4096,4:W0,5:W0+4096,6:W0,7:W0+4096,8:0,9:4096,10:W0,11:W0+4096,12:8192,13:8192+4096}
    if LATEW: wl={0:W0,1:W0+4096,2:W0,3:W0+4096,4:W0,5:W0+4096,6:0,7:4096,8:W0,9:W0+4096,10:8192,11:8192+4096,12:0,13:4096}
    wd=lambda pr: w2_pair_ops(g,pr,'s55',wl[pr])
    order=g.opt.get('dord','a')
    plan={'a':[[],xops(2),xops(3),bops(0),bops(1),[],'w',[]],
          'b':[xops(2),xops(3),bops(0),bops(1),[],[],'w',[]],
          'c':[[],xops(2)+xops(3),bops(0),bops(1),[],'w',[],[]],
          'd':[xops(2),xops(3),[],bops(1),[],[],'w',[]],
          'e':[[],xops(2),xops(3),bops(1),[],[],'w',[]]}[order]
    if order in 'de':
        for op in xops(1): op()
    seq=((stats,0),(stats,1),(bfly,0),(stats,2),(bfly,1),(stats,3),(bfly,2),(bfly,3))
    if g.opt.get('sfirst'):
        seq=((stats,0),(stats,1),(stats,2),(stats,3),(bfly,0),(bfly,1),(bfly,2),(bfly,3))
        plan=[xops(2),xops(3),bops(0),[],bops(1),[],'w',[]] if order not in 'de' else [xops(2),xops(3),[],bops(1),[],[],'w',[]]
    for k,(fn,gi) in enumerate(seq):
        if plan[k]=='w':
            if not LATEW:
                for x in early: g(x)
                g.sideq+=wd(0)+wd(1)
        else: g.sideq+=plan[k]
        if fn is stats:
            while any(1 for op in plan[max(k-2,0)] if False): pass
        fn(gi); g.stamp('dst')
        if order=='c' and k==1: g.flush_side()
    g.flush_side()
    g('s_waitcnt lgkmcnt(0)\ns_barrier')
    g.stamp(); g.stamp('dst')
    ACC=64
    def fr(s_):
        b=[32,216][s_]
        return dict(A=[b,b+4,b+8,b+12],B=[b+16,b+20])
    def rd(n):
        st,kk=n>>2,n&3; f=fr(n&1)
        bb=lambda ab: f'ds_read_b128 v[{f["B"][ab]}:{f["B"][ab]+3}], v{vFB[kk]} offset:{(st&1)*8192+4096*ab}'
        aa=lambda ti: f'ds_read_b128 v[{f["A"][ti]}:{f["A"][ti]+3}], v{vFA[kk]} offset:{st*16384+4096*ti}'
        return [aa(0),bb(0),bb(1),aa(1),aa(2),aa(3)]
    g.wait('B0')
    for x in rd(0): g(x)
    vTB=[18,19]
    nT=[i for i,x in enumerate(addr) if f'v_add_u32 v{vT[3]}' in x][0]+1
    pre=addr[8:nT]+['s_sub_u32 s0, s55, s69',f'v_add_u32 v18, s0, v{vT[0]}',f'v_add_u32 v19, s0, v{vT[1]}']
    if not LATEW:
        for x in pre: g(x)
    if not g.opt.get('trigp2',1):
        trig=trig_ops(0,{1:20,2:21,3:22,5:23,6:30,7:31,9:57,12:2,13:3,14:8,15:9,16:240,17:241,18:242,19:243,20:24,21:25,22:26,23:27})
    g.miscq=addr[:8]+addr[nT:]+trig
    TRS={0:0,1:1,5:2,6:3,9:4,10:5,13:6,14:7}
    DMS={1:[2],2:[3],6:[4],7:[5],10:[6],11:[7,8],12:[9],14:[10],15:[11]}
    if LATEW:
        TRS={4:0,5:1,8:2,9:3,11:4,12:5,14:6,15:7}
        DMS={1:[0,1],5:[2],6:[3],9:[4],10:[5],11:[6,7],12:[8],13:[9]}
        g.miscq=early+pre+g.miscq
    for n in range(16):
        f=fr(n&1)
        def mf(ti,ab):
            d=ACC+32*ti+16*ab
            g(f'{MF} v[{d}:{d+15}], v[{f["A"][ti]}:{f["A"][ti]+3}], v[{f["B"][ab]}:{f["B"][ab]+3}], '+(f'v[{d}:{d+15}]' if n else '0'))
        nx=rd(n+1) if n<15 else []
        if n%2==0: g.stamp('dm')
        g('s_waitcnt lgkmcnt(0)'); mf(0,0)
        if n==3: g.sideq+=bops(2)
        if n==7: g.sideq+=bops(3)
        if LATEW and n==1:
            while any(x in g.miscq for x in early): misc(g,1)
        if LATEW and n==4:
            while any(x in g.miscq for x in pre): misc(g,1)
        if n==8:
            assert 'a0' not in g.vm
            while len(g.miscq)>len(trig): misc(g,1)
            g('s_barrier')
            g.miscq+=[f'v_and_b32 v2, 3, v0',f'v_lshrrev_b32 v3, 5, v0',f'v_lshlrev_b32 v3, 4, v3',f'v_lshl_add_u32 v2, v2, 7, v3',f'v_add_u32 v2, s13, v2',
                      f'v_and_b32 v3, 28, v0',f'v_cmp_eq_u32 vcc, 0, v3',f'v_mov_b32 v3, {OOB}','s_nop 0',f'v_cndmask_b32 v2, v3, v2, vcc']
        if n==9:
            misc(g,9999)
            g.sideq+=[(lambda q=q: g.vmem(f'buffer_load_dwordx4 v[{[20,24,28,240][q]}:{[20,24,28,240][q]+3}], v2, s[40:43], 0 offen offset:{32*q} sc1','al')) for q in range(4)]
        if n==15:
            g.wait('al')
            g.miscq+=[f'v_cvt_pk_bf16_f32 v{20+i}, v{20+2*i}, v{21+2*i}' for i in range(4)]+[f'v_cvt_pk_bf16_f32 v28, v28, v29','v_cvt_pk_bf16_f32 v29, v30, v31','v_cvt_pk_bf16_f32 v30, v240, v241','v_cvt_pk_bf16_f32 v31, v242, v243']
        for pr in DMS.get(n,[]): g.sideq+=wd(pr)
        if (n+1)%4==0 and n<15: g.wait(f'B{(n+1)>>2}')
        for x in nx[:3]: g(x)
        mf(0,1)
        for x in nx[3:]: g(x)
        mf(1,0)
        trq=[]
        if n in TRS:
            assert not any(True for op in g.sideq if getattr(op,'pr',None)==TRS[n])
            g.wait(f'w{TRS[n]}'); trq=w2_trl(TRS[n],vTB,wl[TRS[n]])
        for k,(ti,ab) in enumerate(((1,1),(2,0),(2,1),(3,0),(3,1))):
            if trq and k>=3:
                for x in trq[:4]: g(x)
                trq=trq[4:]
            else:
                had=bool(g.sideq); g.side(); misc(g,2 if had else 4)
            mf(ti,ab)
        had=bool(g.sideq); g.side(); misc(g,2 if had else 4)
    g.stamp(); g.stamp('s1'); g.stamp('dm')
    if LATEW: g.flush_side(); g.sideq+=wd(10)+wd(11)+[lambda: g('s_waitcnt lgkmcnt(0)')]
    g.sideq+=wd(12)+wd(13)
    def trop(pr):
        def op():
            g.wait(f'w{pr}')
            for x in w2_trl(pr,vTB,wl[pr])[:4]: g(x)
        def op2():
            for x in w2_trl(pr,vTB,wl[pr])[4:]: g(x)
        return [op,op2]
    NJ=g.opt.get('nj',4)
    for pr in range(8,min(12,14-NJ)): g.sideq+=trop(pr)
    g.sideq+=[lambda: [misc(g,1) for _ in range(len(g.miscq)-len(trig))]]
    def zc(ti):
        Z=[32,216][ti&1]; L=[]
        for ab in range(2):
            d=ACC+32*ti+16*ab
            for i in range(8): L.append(f'v_cvt_pk_bf16_f32 v{Z+8*ab+i}, v{d+2*i}, v{d+2*i+1}')
        return L
    for x in zc(0): g(x)
    for ti in range(4):
        Z=[32,216][ti&1]
        za=[Z,Z+4]; zb=[Z+8,Z+12]; ur=ACC+32*ti; ui=ur+16
        nxt=zc(ti+1) if ti<3 else []
        seq=[(ur,CC[0],za[0],1),(ui,CC[0],zb[0],1),(ur,CC[1],za[1],0),(ui,CC[1],zb[1],0),(ur,SS[0],zb[0],0),(ui,NS[0],za[0],0),(ur,SS[1],zb[1],0),(ui,NS[1],za[1],0)]
        for n,(d,am,bm,first) in enumerate(seq):
            g(f'{MF} v[{d}:{d+15}], v[{am}:{am+3}], v[{bm}:{bm+3}], '+('0' if first else f'v[{d}:{d+15}]'))
            for x in nxt[2*n:2*n+2]: g(x)
            had=bool(g.sideq); g.side(); misc(g,(0 if had else 2)+(0 if nxt else 2))
    g.stamp('s1')
    g.flush_side(); misc(g,9999)
    g.stamp('s1')
    for op in xb2_ops(g): op()
    for pr in (12,13):
        if pr<14-NJ:
            for op in trop(pr): op()
    for k in range(NJ//2): g(f'v_add_u32 v{vJ[k][0]}, {wl[12-2*k]}, v{vTB[0]}\nv_add_u32 v{vJ[k][1]}, {wl[12-2*k]}, v{vTB[1]}')
    g.stamp('s1')
    srd(g,36,28,4<<20,add=U_OFF)
    g(f'''v_and_b32 v24, 31, v0
    v_lshrrev_b32 v25, 5, v0
    v_lshlrev_b32 v24, 4, v24
    v_lshl_add_u32 v24, v25, 18, v24
    s_lshl_b32 s53, s3, 9
    v_add_u32 v24, s53, v24
    s_lshl_b32 s53, s48, 1
    s_add_u32 s53, s53, s49
    s_lshl_b32 s53, s53, 11''')
    for r in range(16):
        o=32+4*(r&3)
        for ti in range(4): g(f'v_cvt_pk_bf16_f32 v{o+ti}, v{ACC+32*ti+r}, v{ACC+32*ti+16+r}')
        g(f's_add_u32 s54, s53, {(8*(r>>2)+(r&3))*65536}')
        g.vmem(f'buffer_store_dwordx4 v[{o}:{o+3}], v24, s[36:39], s54 offen sc1','st')
        if r<4:
            d,am,bm,first=((224,20,CC[0],1),(240,20,NS[0],1),(224,28,CC[1],0),(240,28,NS[1],0))[r]
            g(f'{MF} a[{d}:{d+15}], v[{am}:{am+3}], v[{bm}:{bm+3}], '+('0' if first else f'a[{d}:{d+15}]'))
        if r==6:
            for i in range(4): g(f'v_accvgpr_read_b32 v{48+2*i}, a{224+i}\nv_accvgpr_read_b32 v{49+2*i}, a{240+i}')
            g(f'''s_lshl_b32 s0, s48, 12
            s_add_u32 s0, s0, 0x200000
            s_lshl_b32 s1, s49, 2
            s_add_u32 s1, s1, s3
            s_cmp_eq_u32 s1, 1
            s_cselect_b32 s0, s0, {OOB}
            v_lshl_add_u32 v2, v0, 16, s0
            v_mov_b32 v3, {OOB}
            v_cmp_gt_u32 vcc, 32, v0''')
            for i in range(4): g(f'v_cvt_pk_bf16_f32 v{28+i}, v{48+2*i}, v{49+2*i}')
            g('v_cndmask_b32 v2, v3, v2, vcc')
            g.vmem('buffer_store_dwordx4 v[28:31], v2, s[36:39], 0 offen sc1','st')
    g.stamp(); g.stamp('s1')
    g('v_mov_b32 v2, s47')
    g.vmem(f'buffer_load_dword v3, v{vPL}, s[40:43], 0 offen sc1','poll')
    g.wait('poll')
    g.stamp('s1')
    g('s_waitcnt lgkmcnt(0)\ns_barrier')
    g(f'buffer_store_dword v2, v{vSG}, s[40:43], 0 offen sc1')
    g('s_lshl_b32 s53, s3, 12')
    for d in (1,2,3): g(f's_add_u32 s{5+d}, s53, {(d-1)*16384}\ns_xor_b32 s{8+d}, s{5+d}, {d*4096}')
    g('s_lshr_b32 s12, s53, 1\ns_add_u32 s12, s12, 49152')

def p2(g, role):
    M=(role=='m') and g.opt.get('merge',0)
    X=role
    ACC=64; ACS=128; UF=144
    XS=32768+4096
    HR=[16+8*i for i in range(5)]+[192+8*i for i in range(5)]
    NH=len(HR)
    g.stamp(); g.stamp('tail')
    srd(g,36,28,7340032); srd(g,32,28,4<<20,add=U_OFF); srd(g,72,24,2097152)
    g(f'''s_sub_u32 s62, 32, s71
    s_and_b32 s62, s62, 31
    s_cmp_lt_u32 s70, 4
    s_cselect_b32 s62, s71, s62
    s_lshl_b32 s62, s62, 16
    v_mov_b32 v185, 0
    v_mov_b32 v186, 0
    v_mov_b32 v187, 0
    v_mov_b32 v188, 0x3f80
    v_cmp_gt_u32 vcc, 32, v0
    v_mov_b32 v189, 0
    v_mov_b32 v190, 0
    v_cndmask_b32 v188, 0, v188, vcc
    v_mov_b32 v191, 0
    s_mul_i32 s57, s71, 112
    s_mul_i32 s53, s3, 28
    s_add_u32 s57, s57, s53
    s_lshl_b32 s57, s57, 11
    s_add_u32 s59, s57, {28*2048}
    s_lshl_b32 s53, s44, 12
    s_add_u32 s58, s57, s53
    v_mov_b32 v2, s47
    s_mov_b32 s56, {SPIN}''')
    for d in (1,2,3):
        g(f'v_lshl_add_u32 v{9+d}, v0, 4, s{5+d}')
    g(f'v_mov_b32 v9, v{vFL}')
    if M:
        NW=g.nw; ops=[]
        for pr in range(NW,8): ops+=w2_pair_ops(g,pr)
        t01=w2_trl(0)+w2_trl(1)
        for n,op in enumerate(ops):
            op()
            if n==3: g.wait('w1')
            if n>=3 and t01:
                for x in t01[:2]: g(x)
                del t01[:2]
        for x in t01: g(x)
        g.vmem(f'buffer_load_dword v3, v{vPL}, s[40:43], 0 offen sc1','poll')
        for pr in (8,9):
            for op in w2_pair_ops(g,pr): op()
        g.wait('poll')
    g(f'''v_mov_b32 v184, v{vB2}
    v_cmp_ne_u32 vcc, s47, v3
    s_cbranch_vccz L_go
    L_poll:
    buffer_load_dword v3, v{vPL}, s[40:43], 0 offen sc1
    s_waitcnt vmcnt(0)
    v_cmp_ne_u32 vcc, s47, v3
    s_cbranch_vccz L_go
    s_sleep {g.opt.get('sleep',4)}
    s_sub_u32 s56, s56, 1
    s_cbranch_scc0 L_poll
    L_go:''')
    if not M: g.vm=['old']*30
    g.stamp(); g.stamp('tail')
    hidx=[0]
    def hload():
        ks=hidx[0]; r=HR[ks%NH]
        g.vmem(f'buffer_load_dwordx4 v[{r}:{r+3}], v{vH0}, s[36:39], s58 offen offset:{2048*(ks&1)} {g.opt.get("hld","sc1").replace("none","")}',f'h{ks}')
        g.vmem(f'buffer_load_dwordx4 v[{r+4}:{r+7}], v{vH1}, s[36:39], s58 offen offset:{2048*(ks&1)} {g.opt.get("hld","sc1").replace("none","")}',f'h{ks}')
        if ks&1 and ks<27: g('s_add_u32 s58, s58, 4096\ns_cmp_eq_u32 s58, s59\ns_cselect_b32 s58, s57, s58')
        hidx[0]+=1
    HD=g.opt.get('hdepth',8)
    g(f's_waitcnt lgkmcnt(0)\ns_mov_b32 s55, 0x80000')
    for i in range(HD): hload()
    g(f'{MF} v[{ACC}:{ACC+15}], v[184:187], v[188:191], 0')
    XA=[236,237,238,239]
    xa=Rec()
    xa(f'''v_and_b32 v236, 31, v0
    v_lshrrev_b32 v237, 5, v0
    v_lshlrev_b32 v237, 3, v237
    v_lshl_add_u32 v237, v236, 6, v237
    v_bfe_u32 v236, v0, 2, 2
    v_lshl_add_u32 v236, v236, 4, v237
    v_add_u32 v236, s12, v236
    v_xor_b32 v237, 16, v236
    v_xor_b32 v238, 32, v236
    v_xor_b32 v239, 48, v236
    v_lshl_add_u32 v240, v0, 4, s12''')
    KF=g.opt.get('kflag',12)
    NL=g.opt.get('nlast',3)
    def mf(ks,a_,b):
        r=HR[ks%NH]; d=ACC+16*(a_+2*b)
        c='0' if (ks==0 and (a_ or b)) else f'v[{d}:{d+15}]'
        g(f'{MF} v[{d}:{d+15}], a[{8*ks+4*a_}:{8*ks+4*a_+3}], v[{r+4*b}:{r+4*b+3}], {c}')
    checked=False
    NJ=g.opt.get('nj',4)
    jit=[x for pr in range(14-NJ,14) for x in w2_trl(pr,vJ[(13-pr)>>1],4096*(pr&1))]
    late=[]
    if M:
        jit=[x for pr in range(2,14) for x in w2_trl(pr)]
        for pr in range(10,14): late+=w2_pair_ops(g,pr)
    g.miscq=xa.l+(trig_ops(0) if g.opt.get('trigp2',1) else [])
    for ks in range(28-NL):
        g.wait(f'h{ks}')
        if NJ and ks==16 and not M: g('s_waitcnt lgkmcnt(0)')
        if M and ks>=4 and ks%2==0: g('s_waitcnt lgkmcnt(8)')
        if M and ks>=16 and ks%2==0 and ks<=22: g.wait(f'w{ks//2+2}')
        if ks==0:
            g.stamp()
        for b in range(2):
            for a_ in range(2):
                mf(ks,a_,b)
                if a_==0 and b==0 and (ks>=1 or M) and jit:
                    for x in jit[:4]: g(x)
                    del jit[:4]
                elif a_==1 and b==0 and late:
                    late.pop(0)(); late.pop(0)()
                elif not (a_==1 and b==1): misc(g,g.opt.get('p2misc',6 if M else 4))
            if b==0 and g.sideq: g.side()
        if hidx[0]<28: hload()
        elif g.sideq: g.side()
        if ks==(10 if M else 2):
            g('s_mov_b32 m0, s12')
            g.vmem(f'buffer_load_dwordx4 v{vXO}, s[76:79], 0 offen lds','xl')
            g('s_add_u32 m0, m0, 1024')
            g.vmem(f'buffer_load_dwordx4 v{vXO}, s[76:79], s55 offen lds','xl')
        if ks==(24 if M else 22):
            assert 'xl' not in g.vm
            for q in range(4): g(f'ds_read_b64 v[{XR+2*q}:{XR+2*q+1}], v{XA[q]}')
        if ks==KF: g.vmem(f'buffer_load_dword v176, v9, s[40:43], 0 offen sc1','fl')
        if 'fl' not in g.vm and ks>KF and not checked:
            checked=True
            g(f'''L_chk:
            v_cmp_ne_u32 vcc, s47, v176
            s_cbranch_vccnz L_uslow
            L_allset:''')
            ool(g,'''L_uslow:
            s_sleep 4
            buffer_load_dword v176, v9, s[40:43], 0 offen sc1
            s_waitcnt vmcnt(0)
            s_sub_u32 s56, s56, 1
            s_cbranch_scc0 L_chk
            s_branch L_allset''')
            def mku(j):
                def op():
                    g(f's_add_u32 s53, s62, {8192*j}')
                    g.vmem(f'buffer_load_dwordx4 v[{UF+4*j}:{UF+4*j+3}], v{vU}, s[32:35], s53 offen sc1','u')
                return op
            g.sideq+=[mku(j) for j in range(8)]
    assert checked
    if g.miscq: print('p2',role,'misc left',len(g.miscq),file=sys.stderr)
    misc(g,9999)
    g.flush_side()
    if M: g('s_waitcnt lgkmcnt(4)')
    XF=176
    def wr(d):
        for q in range(4):
            r=ACC+16*d+4*q
            g(f'ds_write_b128 v{9+d}, v[{r}:{r+3}] offset:{1024*q}')
    for n,d in enumerate((3,2,1,0)):
        for ks in range(28-NL,28):
            g.wait(f'h{ks}')
            mf(ks,d&1,d>>1)
        if n==0: g('s_waitcnt lgkmcnt(0)')
        if n==1:
            for i in range(4): g(f'v_lshlrev_b32 v{XF+2*i}, 16, v{XR+i}\nv_and_b32 v{XF+2*i+1}, 0xffff0000, v{XR+i}')
            wr(3)
        if n==2:
            for i in range(4,8): g(f'v_lshlrev_b32 v{XF+2*i}, 16, v{XR+i}\nv_and_b32 v{XF+2*i+1}, 0xffff0000, v{XR+i}')
            wr(2)
    g.stamp()
    g(f's_mov_b32 s60, {f2u(-math.log2(math.e)):#x}\ns_mov_b32 s61, s60\ns_mov_b32 s62, 1.0\ns_mov_b32 s63, 1.0')
    def smm(J):
        for j in J:
            g(f'{MF} v[{ACS}:{ACS+15}], v[{UF+4*j}:{UF+4*j+3}], a[{224+4*j}:{227+4*j}], '+('0' if j==0 else f'v[{ACS}:{ACS+15}]'))
    wr(1)
    g.waitall()
    SB=g.opt.get('sbar',3)
    smm(range(SB))
    for d in (1,2,3): g(f'v_lshl_add_u32 v{9+d}, v0, 4, s{8+d}')
    g('s_waitcnt lgkmcnt(0)\ns_barrier')
    rds=[f'ds_read_b128 v[{[192,208,16][d]+4*q}:{[192,208,16][d]+4*q+3}], v{10+d} offset:{1024*q}' for q in range(4) for d in range(3)]
    for j in range(SB,8):
        smm([j])
        for x in rds[:4]: g(x)
        del rds[:4]
    for x in rds: g(x)
    g('''s_lshl_b32 s1, s2, 2
    s_add_u32 s1, s1, s3
    s_cmp_lg_u32 s1, 803
    s_cbranch_scc1 L_noep0
    v_lshrrev_b32 v4, 2, v0
    v_and_b32 v5, 3, v0
    v_lshl_add_u32 v4, v4, 3, v5
    v_lshlrev_b32 v4, 8, v4
    buffer_load_dwordx4 v[6:9], v4, s[40:43], 0 offen sc1
    L_noep0:''')
    T=80
    for hf in range(2):
        g(f's_waitcnt lgkmcnt({6-6*hf})')
        I=range(4*hf,4*hf+4)
        for i in I: g(f'v_pk_add_f32 v[{192+2*i}:{193+2*i}], v[{192+2*i}:{193+2*i}], v[{208+2*i}:{209+2*i}]')
        for i in I: g(f'v_pk_add_f32 v[{ACC+2*i}:{ACC+2*i+1}], v[{ACC+2*i}:{ACC+2*i+1}], v[{16+2*i}:{17+2*i}]')
        for i in I: g(f'v_pk_add_f32 v[{ACC+2*i}:{ACC+2*i+1}], v[{ACC+2*i}:{ACC+2*i+1}], v[{192+2*i}:{193+2*i}]')
        for i in I: g(f'v_pk_mul_f32 v[{T+2*i}:{T+2*i+1}], v[{ACC+2*i}:{ACC+2*i+1}], s[60:61]')
        for i in I: g(f'v_exp_f32 v{T+2*i}, v{T+2*i}\nv_exp_f32 v{T+2*i+1}, v{T+2*i+1}')
        for i in I: g(f'v_pk_add_f32 v[{T+2*i}:{T+2*i+1}], v[{T+2*i}:{T+2*i+1}], s[62:63]')
        for i in I: g(f'v_rcp_f32 v{T+2*i}, v{T+2*i}\nv_rcp_f32 v{T+2*i+1}, v{T+2*i+1}')
        sp=lambda r: ACS+4*(2*(r>>3)+(r&1))+2*((r>>2)&1)+((r>>1)&1)
        for i in I:
            for r in (2*i,2*i+1): g(f'v_mul_f32 v{ACC+r}, v{ACC+r}, v{sp(r)}')
        for i in I: g(f'v_pk_fma_f32 v[{T+2*i}:{T+2*i+1}], v[{T+2*i}:{T+2*i+1}], v[{ACC+2*i}:{ACC+2*i+1}], v[{XF+2*i}:{XF+2*i+1}]')
        for i in I: g(f'v_cvt_pk_bf16_f32 v{96+i}, v{T+2*i}, v{T+2*i+1}')
        for q in (2*hf,2*hf+1): g(f'ds_write_b64 v{XA[q]}, v[{96+2*q}:{97+2*q}]')
    g('s_waitcnt lgkmcnt(0)\nds_read_b128 v[104:107], v240\nds_read_b128 v[108:111], v240 offset:1024\ns_waitcnt lgkmcnt(1)')
    g(f'buffer_store_dwordx4 v[104:107], v{vXO}, s[72:75], 0 offen {g.opt.get("outfl","")}\ns_waitcnt lgkmcnt(0)\nbuffer_store_dwordx4 v[108:111], v{vXO}, s[72:75], s55 offen {g.opt.get("outfl","")}')
    g(f'''s_cmp_lg_u32 s1, 803
    s_cbranch_scc1 L_noep
    s_waitcnt vmcnt(2)
    L_ep:
    v_xor_b32 v6, s47, v6
    v_xor_b32 v7, s47, v7
    v_xor_b32 v8, s47, v8
    v_xor_b32 v9, s47, v9
    v_or3_b32 v6, v6, v7, v8
    v_or_b32 v6, v6, v9
    v_cmp_ne_u32 vcc, 0, v6
    s_cbranch_vccz L_epok
    s_sleep 8
    buffer_load_dwordx4 v[6:9], v4, s[40:43], 0 offen sc1
    s_waitcnt vmcnt(0)
    s_sub_u32 s56, s56, 1
    s_cbranch_scc0 L_ep
    L_epok:
    v_mov_b32 v3, {EPO}
    s_mov_b64 exec, 1
    buffer_store_dword v2, v3, s[40:43], 0 offen sc1
    s_mov_b64 exec, -1
    L_noep:''')
    g.stamp()

def build(stamps=False, opt=None):
    global vTm0,vTm1
    if (opt or {}).get('merge',0): vTm0,vTm1=241,242
    g=G(stamps,opt); g.miscq=[]; g.outofline=[]
    def sfx(L,x): return [re.sub(r'\b(L_go|L_poll|L_chk|L_uslow|L_allset|L_noep0|L_noep|L_epok|L_ep)\b', r'\1_'+x, l) for l in L]
    entry(g)
    head=list(g.a.l); vm0=list(g.vm); n0=g.nst
    g.a.l=[]; p1_mlp(g); mlp=list(g.a.l)
    oo=g.outofline; g.outofline=[]
    g.a.l=[]; p2(g,'m'); g.dump_stamps(TS_OFF); mlp+=sfx(g.a.l,'m')+['    s_endpgm']; oo+=sfx(g.outofline,'m'); g.outofline=[]
    g.a.l=[]; g.vm=list(vm0); g.nst=n0; g.miscq=[]
    p1_dft(g); dft=list(g.a.l)
    k=[i for i,x in enumerate(dft) if '@@SPLIT@@' in x][0]
    g.a.l=[]; p2(g,'d'); g.dump_stamps(TS_OFF); dft+=sfx(g.a.l,'d'); oo+=sfx(g.outofline,'d')
    km=[i for i,x in enumerate(mlp) if '@@SPLIT@@' in x][0]
    lines=head+mlp[:km]+['    s_branch L_mlp','L_dfte:']+dft[:k]+['    s_branch L_dft','L_mlp:']+mlp[km+1:]+['L_dft:']+dft[k+1:]+['L_end:','    s_endpgm']+oo+['L_codeend:']
    body='\n'.join(hazard.fix(lines))+'\n'
    return wrap([dict(name=KN,body=body,grid=256,block=256,lds=163840,vgpr=512,accum=256)],HDR)
if __name__=='__main__':
    out=sys.argv[1]; st='stamps' in sys.argv[2:]
    opt={}
    for a in sys.argv[2:]:
        if '=' in a:
            k,v=a.split('='); opt[k]=int(v) if v.lstrip('-').isdigit() else v
    open(out,'w').write(build(st,opt))
```

```python
import sys, math, struct, re
sys.path.insert(0,'tools')
from asmlib import A, wrap, KN
import hazard
from gen3 import G, srd, t1_of, f2u, HDR, U_OFF, ST_OFF, CS_REL, TS_OFF, SPIN

F_OFF = 12<<20
F2 = 8192
FU=32768; EPO=40960
A0_REL=(ST_OFF-F_OFF)+(512<<10)
WT_OFF = 14<<20
vB2, vXO = 254, 255
vD=[226+i for i in range(0)]
vDM=[246,247,248,249]
vT=[250,251,252,253]
XR=246
vSG,vH0,vH1,vU,vFL,vPL = 58,59,60,61,62,63
vTT=245
MF='v_mfma_f32_32x32x16_bf16'
OOB='0x40000000'

class Rec:
    def __init__(s): s.l=[]
    def __call__(s,t):
        for x in t.split('\n'):
            x=x.strip()
            if x: s.l.append(x)
def ool(g, text):
    g.outofline+=[x.strip() if x.strip().endswith(':') else '    '+x.strip() for x in text.split('\n') if x.strip()]
def misc(g, n):
    while n>0 and g.miscq:
        x=g.miscq.pop(0); g(x)
        n-= x.count('\n')+1 + (1 if ('v_cos' in x or 'v_sin' in x) else 0)
def epoch_load(g):
    g(f's_add_u32 s60, s28, {F_OFF+EPO}\ns_addc_u32 s61, s29, 0\ns_load_dword s47, s[60:61], 0')
def nonce(g):
    g('s_mul_i32 s47, s47, 0x9e3779b1\ns_add_u32 s47, s47, 0x85ebca6b')

def p2_setup_ops(g, dft):
    r=Rec(); t=lambda i:f'v{1000+i}'
    if g.opt.get('p2arr',84)==48:
        r('''s_and_b32 s70, s31, 7
        s_lshr_b32 s0, s31, 4
        s_lshl_b32 s1, s30, 1
        s_add_u32 s45, s0, s1
        s_bfe_u32 s1, s31, 0x10003''')
    else:
        r('''s_and_b32 s70, s30, 1
        s_lshl_b32 s70, s70, 2
        s_lshr_b32 s0, s31, 2
        s_add_u32 s0, s0, s31
        s_and_b32 s0, s0, 3
        s_add_u32 s70, s70, s0
        s_lshr_b32 s45, s30, 1
        s_lshl_b32 s45, s45, 2
        s_lshr_b32 s0, s31, 3
        s_add_u32 s45, s45, s0
        s_bfe_u32 s1, s31, 0x10002''')
    r.l.append('s_sub_u32 s0, 32, s45\ns_cmp_eq_u32 s45, 0\ns_cselect_b32 s0, 16, s0\ns_cmp_eq_u32 s1, 0\ns_cselect_b32 s71, s45, s0')
    wr=g.opt.get('wrot',3)
    if wr==0: r('s_mov_b32 s44, 0')
    elif wr==1: r('s_mul_i32 s44, s30, 7\ns_lshr_b32 s44, s44, 2')
    elif wr==3: r('s_lshr_b32 s44, s31, 2\ns_mul_i32 s44, s44, 7\ns_lshr_b32 s44, s44, 2')
    elif wr==5: r('s_lshr_b32 s44, s31, 2\ns_max_u32 s44, s44, 1\ns_sub_u32 s44, s44, 1\ns_lshl_b32 s44, s44, 1')
    elif wr==4: r('s_lshr_b32 s44, s31, 3\ns_mul_i32 s44, s44, 7\ns_lshr_b32 s44, s44, 1')
    elif wr==2: r('s_lshr_b32 s44, s30, 1\ns_mul_i32 s44, s44, 7\ns_lshr_b32 s44, s44, 1')
    ho={0:None,1:(1,7),2:(1,4),3:(3,3),4:(3,1),5:(1,2)}[g.opt.get('hoff',0)]
    if ho:
        r.l.append(f's_and_b32 s0, s70, {ho[0]}\ns_mul_i32 s0, s0, {ho[1]}\ns_add_u32 s44, s44, s0\ns_cmp_ge_u32 s44, 14\ns_cselect_b32 s0, 14, 0\ns_sub_u32 s44, s44, s0'.replace('{ho[0]}',str(ho[0])) )
    r(f'''s_lshl_b32 s68, s44, 15
    s_lshl_b32 s69, s3, 13
    v_lshrrev_b32 {t(4)}, 3, v0
    v_bfe_u32 {t(5)}, v0, 4, 1
    v_lshlrev_b32 {t(6)}, 2, {t(5)}
    v_and_b32 {t(7)}, 7, v0
    v_xor_b32 {t(6)}, {t(6)}, {t(7)}
    v_lshlrev_b32 {t(6)}, 4, {t(6)}
    v_lshl_add_u32 {t(6)}, {t(4)}, 10, {t(6)}
    s_mul_i32 s0, s3, {448*1024}
    s_lshl_b32 s1, s70, 7
    s_add_u32 s0, s0, s1
    v_add_u32 v{vDM[0]}, s0, {t(6)}
    v_add_u32 v{vDM[1]}, {7168}, v{vDM[0]}
    v_add_u32 v{vDM[2]}, {2*7168}, v{vDM[0]}
    v_add_u32 v{vDM[3]}, {3*7168}, v{vDM[0]}''')
    srd(r,64,20,1792*512*2)
    early=r.l; r=Rec()
    srd(r,72,22,1024); srd(r,76,4,2097152)
    r(f'''v_lshrrev_b32 {t(4)}, 5, v0
    v_bfe_u32 {t(5)}, v0, 4, 1
    v_bfe_u32 {t(6)}, v0, 2, 2
    v_lshl_add_u32 {t(7)}, {t(4)}, 2, {t(6)}
    v_lshlrev_b32 {t(7)}, 7, {t(7)}
    v_lshrrev_b32 {t(6)}, 1, {t(6)}
    s_and_b32 s0, s3, 1
    v_xor_b32 {t(6)}, s0, {t(6)}
    v_lshl_add_u32 {t(7)}, {t(6)}, 6, {t(7)}
    v_lshl_add_u32 {t(7)}, {t(5)}, 5, {t(7)}
    v_and_b32 {t(6)}, 3, v0
    v_lshl_add_u32 {t(7)}, {t(6)}, 3, {t(7)}
    v_add_u32 v{vT[0]}, s69, {t(7)}
    v_xor_b32 v{vT[1]}, 64, v{vT[0]}
    v_add_u32 v{vT[2]}, 0x18000, v{vT[0]}
    v_add_u32 v{vT[3]}, 0x18000, v{vT[1]}
    s_lshl_b32 s0, s30, 9
    s_add_u32 s0, s0, {FU}
    v_and_b32 {t(7)}, 31, v0
    v_lshl_add_u32 v{vFL}, {t(7)}, 2, s0
    s_lshl_b32 s0, s45, 1
    s_and_b32 s1, s30, 1
    s_add_u32 s0, s0, s1
    s_lshl_b32 s0, s0, 2
    s_add_u32 s0, s0, s3
    s_lshl_b32 s0, s0, 8
    v_and_b32 {t(6)}, 3, v0
    v_lshl_add_u32 v{vPL}, {t(6)}, 2, s0
    s_lshr_b32 s1, s3, 1
    s_lshl_b32 s0, s1, 10
    v_lshl_add_u32 v{vH0}, v0, 4, s0
    v_xor_b32 v{vH1}, 0x400, v{vH0}
    s_lshl_b32 s0, s1, 5
    v_and_b32 {t(6)}, 31, v0
    v_add_u32 {t(5)}, s0, {t(6)}
    v_lshlrev_b32 {t(5)}, 5, {t(5)}
    v_add_u32 v{vTT}, s71, {t(5)}
    s_lshl_b32 s0, s0, 15
    s_lshl_b32 s1, s71, 10
    s_add_u32 s1, s1, s0
    v_lshrrev_b32 {t(5)}, 2, v0
    v_lshlrev_b32 {t(5)}, 15, {t(5)}
    v_lshrrev_b32 {t(7)}, 4, v0
    v_xor_b32 {t(7)}, {t(7)}, v0
    v_and_b32 {t(7)}, 3, {t(7)}
    v_lshl_add_u32 {t(5)}, {t(7)}, 4, {t(5)}
    v_add_u32 {t(5)}, s1, {t(5)}
    s_lshl_b32 s0, s70, 7
    s_and_b32 s1, s3, 1
    s_lshl_b32 s1, s1, 6
    s_add_u32 s0, s0, s1
    v_add_u32 v{vXO}, s0, {t(5)}
    v_lshl_add_u32 v{vB2}, {t(6)}, 1, s0
    s_lshr_b32 s0, s0, 1
    v_and_b32 {t(5)}, 20, v0
    v_bfe_u32 {t(7)}, v0, 1, 1
    v_lshl_add_u32 {t(5)}, {t(7)}, 3, {t(5)}
    v_and_b32 {t(7)}, 1, v0
    v_lshl_add_u32 {t(5)}, {t(7)}, 1, {t(5)}
    v_bfe_u32 {t(7)}, v0, 3, 1
    v_add3_u32 {t(6)}, {t(5)}, {t(7)}, s0''')
    r.l.append('s_cmp_lt_u32 s70, 4\ns_cselect_b32 s0, 0, -1\ns_cselect_b32 s1, 0, 513')
    r(f'''v_xor_b32 {t(7)}, s0, {t(6)}
    v_add_u32 {t(7)}, s1, {t(7)}
    v_and_b32 {t(8)}, 1, {t(7)}
    v_lshlrev_b32 {t(8)}, 11, {t(8)}
    v_bfe_u32 {t(7)}, {t(7)}, 1, 7
    v_lshl_add_u32 {t(7)}, {t(7)}, 4, {t(8)}
    v_lshl_add_u32 {t(7)}, {t(4)}, 12, {t(7)}
    v_or_b32 {t(8)}, 0x200000, {t(7)}
    v_cmp_eq_u32 vcc, 0, {t(6)}
    s_nop 0
    v_cndmask_b32 v{vU}, {t(7)}, {t(8)}, vcc
    v_mov_b32 {t(8)}, {OOB}''')
    if True:
        r.l.append(f's_cmp_eq_u32 s3, 0\ns_cselect_b32 s0, s46, {OOB}')
        if dft:
            r(f'''v_cmp_gt_u32 vcc, 8, v0
            v_lshl_add_u32 {t(10)}, v0, 9, s0
            s_nop 0
            v_cndmask_b32 v{vSG}, {t(8)}, {t(10)}, vcc''')
        else:
            r(f'''v_lshrrev_b32 {t(5)}, 1, v0
            v_mul_u32_u24 {t(6)}, 7, {t(5)}
            v_lshrrev_b32 {t(6)}, 1, {t(6)}
            v_sub_u32 {t(6)}, s49, {t(6)}
            v_and_b32 {t(7)}, 1, v0
            v_lshl_add_u32 {t(7)}, {t(7)}, 2, {t(5)}
            v_cmp_gt_u32 vcc, 4, {t(6)}
            v_lshlrev_b32 {t(7)}, 8, {t(7)}
            v_lshl_add_u32 {t(7)}, {t(6)}, 2, {t(7)}
            v_add_u32 {t(10)}, s0, {t(7)}
            v_cndmask_b32 {t(10)}, {t(8)}, {t(10)}, vcc
            v_cmp_gt_u32 vcc, 8, v0
            s_nop 1
            v_cndmask_b32 v{vSG}, {t(8)}, {t(10)}, vcc''')
    else: r(f'v_mov_b32 v{vSG}, {t(8)}')
    return early, r.l, []
def trig_ops(fract=True, TMX=None):
    r=Rec(); t=lambda i:f'v{1000+i}'
    r.l.append(f's_cmp_lt_u32 s70, 4\ns_cselect_b32 s0, 0, 0x80000000')
    r(f'''s_or_b32 s0, s0, {f2u(1/2048):#x}
    v_mov_b32 {t(5)}, v{vTT}
    v_lshrrev_b32 {t(6)}, 5, v0
    v_cvt_f32_u32 {t(5)}, {t(5)}
    v_cvt_f32_u32 {t(6)}, {t(6)}
    v_mul_f32 {t(5)}, s0, {t(5)}
    v_cmp_gt_u32 s[0:1], 32, v0
    v_mul_f32 {t(6)}, {t(6)}, {t(5)}
    v_mul_f32 {t(7)}, {f2u(32.0):#x}, {t(5)}
    v_add_f32 {t(5)}, {t(5)}, {t(5)}
    v_mul_f32 {t(9)}, 0.5, {t(7)}
    v_cndmask_b32 {t(9)}, {t(7)}, {t(9)}, s[0:1]''')
    for j in range(8):
        if j: r(f'v_add_f32 {t(6)}, {t(6)}, {t(5)}')
        if fract:
            r(f'''v_add_f32 {t(1)}, {t(6)}, {t(7)}
            v_sub_f32 {t(2)}, {t(9) if j==0 else t(7)}, {t(6)}
            v_fract_f32 {t(0)}, {t(6)}
            v_add_f32 {t(3)}, {t(2)}, {t(7)}
            v_fract_f32 {t(1)}, {t(1)}
            v_fract_f32 {t(2)}, {t(2)}
            v_fract_f32 {t(3)}, {t(3)}''')
        else:
            r(f'''v_add_f32 {t(1)}, {t(6)}, {t(7)}
            v_sub_f32 {t(2)}, {t(9) if j==0 else t(7)}, {t(6)}
            v_add_f32 {t(3)}, {t(2)}, {t(7)}''')
        for i in range(4):
            a_=t(i) if (fract or i) else t(6)
            r(f'v_cos_f32 {t(12+2*i)}, {a_}\nv_sin_f32 {t(13+2*i)}, {a_}')
        for i in range(4): r(f'v_cvt_pk_bf16_f32 {t(20+i)}, {t(12+2*i)}, {t(13+2*i)}')
        for i in range(4): r(f'v_accvgpr_write_b32 a{224+4*j+i}, {t(20+i)}')
    TM={0:4,1:5,2:6,3:7,5:13,6:14,7:15,9:8}
    TM.update({12+i:128+i for i in range(8)}); TM.update({20+i:232+i for i in range(4)})
    return remap(r.l,TMX or TM)
def remap(L, TM):
    return [re.sub(r'v(10\d\d)\b', lambda m:'v%d'%TM[int(m.group(1))-1000], x) for x in L]
def xb2_ops(g):
    def o0(): g.vmem(f'buffer_load_ushort v{vB2}, v{vB2}, s[72:75], 0 offen','b2')
    return [o0]
def ppos(pr):
    p=pr%10
    return 131072+p*4096 if p<2 else ((p-2)>>1)*32768+(p&1)*4096
def w2_pair_ops(g, pr, base='s69', lds=None):
    if lds is None: lds=ppos(pr)
    def mk(i):
        def op():
            if i==0: g(f's_add_u32 m0, {base}, {lds}')
            g.vmem(f'buffer_load_dwordx4 v{vDM[i]}, s[64:67], s68 offen offset:{1024*i} lds', f'w{pr}')
            if i==3 and pr<13: g(f's_add_u32 s68, s68, 32768\ns_cmp_eq_u32 s68, {14*32768}\ns_cselect_b32 s68, 0, s68')
        return op
    return [mk(i) for i in range(4)]
def w2_trl(pr, regs=None, off=None):
    if regs is None:
        off=ppos(pr)
        if off>=65536 and off<0x18000: regs=('hi',);
        if off<65536: regs=vT[0:2]
        elif off>=0x18000: regs=vT[2:4]; off-=0x18000
        else: regs=[vTm0,vTm1]; off-=65536
    L=[]
    for k in range(2):
        for a_ in range(2):
            for q in range(2):
                r=8*(2*pr+k)+4*a_+2*q
                L.append(f'ds_read_b64_tr_b16 a[{r}:{r+1}], v{regs[a_]} offset:{off+2048*k+1024*q}')
    return L
vJ=[[241,242],[243,244]]
vTm0,vTm1=14,15

def entry(g):
    g('''s_cmp_ge_u32 s2, 256
    s_cbranch_scc1 L_end''')
    g.stamp()
    g('''s_load_dwordx16 s[4:19], s[0:1], 0
    s_load_dwordx8 s[20:27], s[0:1], 64
    s_load_dwordx2 s[28:29], s[0:1], 96
    v_lshrrev_b32 v1, 6, v0
    s_and_b32 s30, s2, 7
    s_lshr_b32 s31, s2, 3
    v_readfirstlane_b32 s3, v1''')
    if g.opt.get('codepf',1):
        g(f'''s_getpc_b64 s[50:51]
        L_pc:
        s_mul_i32 s53, s31, 1280
        v_lshl_add_u32 v2, v0, 3, s53
        v_min_u32 v2, L_codeend-L_pc-4, v2
        v_mov_b32 v3, s51
        v_add_co_u32 v2, vcc, s50, v2
        v_addc_co_u32 v3, vcc, 0, v3, vcc''')
        g.vmem('global_load_dword v1, v[2:3], off','pf')
    if g.opt.get('p1arr',48)==216:
        g('''v_and_b32 v0, 63, v0
        s_lshl_b32 s48, s30, 1
        s_and_b32 s53, s31, 1
        s_cmp_lt_u32 s31, 4
        s_cbranch_scc1 L_dft0
        s_add_u32 s48, s48, s53
        s_lshr_b32 s49, s31, 1
        s_sub_u32 s49, s49, 2
        s_mov_b32 s100, s53''')
        r=g.opt.get('rot',4)
        if r==1: g('s_lshl_b32 s56, s53, 2\ns_add_u32 s56, s56, s49\ns_and_b32 s56, s56, 7')
        elif r==2: g('s_add_u32 s56, s53, s49\ns_and_b32 s56, s56, 1\ns_lshl_b32 s56, s56, 2')
        elif r==4: g('s_lshl_b32 s56, s53, 1\ns_add_u32 s56, s56, s49\ns_and_b32 s56, s56, 3\ns_lshl_b32 s56, s56, 1')
        if g.opt.get('xph',0): g('s_add_u32 s56, s56, s30\ns_and_b32 s56, s56, 7')
        return
    rot=g.opt.get('rot',4)
    g('''v_and_b32 v0, 63, v0
    s_lshr_b32 s48, s30, 1
    s_lshl_b32 s55, s48, 1
    s_lshl_b32 s48, s48, 2
    s_and_b32 s100, s31, 3
    s_add_u32 s48, s48, s100
    s_lshr_b32 s49, s31, 2
    s_sub_u32 s49, s49, 1
    s_and_b32 s49, s49, 7''') if g.opt.get('dftfirst',1) else g('''v_and_b32 v0, 63, v0
    s_lshr_b32 s48, s30, 1
    s_lshl_b32 s55, s48, 1
    s_lshl_b32 s48, s48, 2
    s_lshr_b32 s100, s31, 3
    s_add_u32 s48, s48, s100
    s_and_b32 s49, s31, 7''')
    if rot==1:   g('s_lshl_b32 s56, s100, 1\ns_add_u32 s56, s56, s49\ns_and_b32 s56, s56, 7')
    elif rot==2: g('s_add_u32 s56, s100, s49\ns_and_b32 s56, s56, 1\ns_lshl_b32 s56, s56, 2')
    elif rot==4: g('s_add_u32 s56, s100, s49\ns_and_b32 s56, s56, 3\ns_lshl_b32 s56, s56, 1')
    elif rot==0: g('s_mov_b32 s56, 0')
    if g.opt.get('xph',0): g('s_add_u32 s56, s56, s55\ns_and_b32 s56, s56, 7')
    g('''s_and_b32 s53, s30, 1
    s_cmp_eq_u32 s49, 7
    s_cbranch_scc1 L_dfte''')

def p1_mlp(g):
    ACC=64
    vX=[2,3,4,5]; vW=[6,7,8,9]; vB=[10,11,12,13]; vA=[18,19]
    vSA,vCA,vCP,vCB=14,15,16,17
    vB1=[56,57]; CSA=164; SEL=168; GA=144; GF=160
    WP=200; vP0,vP1,vPT,vPS,vPF=208,209,210,211,212
    rot=g.opt.get('rot',4)
    A216=g.opt.get('p1arr',48)==216
    if A216:
        g('s_and_b32 s50, s3, 1\ns_lshr_b32 s51, s3, 1\ns_and_b32 s53, s49, 1')
    else:
        g('''s_mul_i32 s54, s53, 7
        s_add_u32 s49, s49, s54
        s_and_b32 s50, s3, 1
        s_lshr_b32 s51, s3, 1''')
    g('s_lshl_b32 s63, s48, 1\ns_add_u32 s63, s63, s53')
    t1_of(g,'s52','s48','s51','s53')
    g(f'''v_lshrrev_b32 v24, 3, v0
    v_lshrrev_b32 v25, 4, v0
    v_and_b32 v28, 7, v0
    v_xor_b32 v26, v28, v25
    v_lshlrev_b32 v26, 4, v26
    v_lshl_add_u32 v26, v24, 15, v26
    s_lshl_b32 s53, s52, 10
    s_lshl_b32 s54, s50, 20
    s_add_u32 s53, s53, s54
    v_add_u32 v{vX[0]}, s53, v26
    v_xor_b32 v27, 64, v{vX[0]}
    v_add_u32 v{vX[1]}, {262144-1024}, v27
    v_add_u32 v{vX[2]}, {2*(262144-1024)}, v{vX[0]}
    v_add_u32 v{vX[3]}, {3*(262144-1024)}, v27
    v_and_b32 v26, 15, v0
    v_lshlrev_b32 v27, 2, v25
    v_xor_b32 v26, v26, v27
    v_lshlrev_b32 v26, 4, v26
    v_mul_u32_u24 v29, 3584, v25
    v_add_u32 v26, v26, v29
    s_mul_i32 s53, s3, 57344
    s_lshl_b32 s54, s49, 8
    s_add_u32 s53, s53, s54
    v_add_u32 v{vW[0]}, s53, v26
    v_add_u32 v{vW[1]}, 13312, v{vW[0]}
    v_add_u32 v{vW[2]}, {2*13312}, v{vW[0]}
    v_add_u32 v{vW[3]}, {3*13312}, v{vW[0]}
    s_lshl_b32 s55, s3, 12''')
    g.stamp('pro')
    g('s_waitcnt lgkmcnt(0)')
    g.stamp('pro')
    srd(g,32,4,2097152); srd(g,36,16,512*1792*2)
    def stage_ops(st):
        slot=st&3
        def mk(i):
            def op():
                if i==0: g(f's_lshl_b32 s57, s56, 7\ns_mul_i32 s58, s56, 229376\ns_add_u32 m0, s55, {slot*32768}')
                if i==4: g(f's_add_u32 m0, s55, {slot*32768+16384}\ns_add_u32 s56, s56, 1\ns_and_b32 s56, s56, 7')
                if i<4: g.vmem(f'buffer_load_dwordx4 v{vX[i]}, s[32:35], s57 offen offset:{1024*i} lds',f's{st}')
                else:   g.vmem(f'buffer_load_dwordx4 v{vW[i-4]}, s[36:39], s58 offen offset:{1024*(i-4)} lds',f's{st}')
            return op
        return [mk(i) for i in range(8)]
    D=g.opt.get('depth',3)
    for op in stage_ops(0): op()
    g.stamp('pro')
    for op in stage_ops(1): op()
    g('@@SPLIT@@')
    g.stamp('pro')
    epoch_load(g)
    g(f'''s_lshl_b32 s46, s48, 11
    v_and_b32 v24, 31, v0
    v_lshrrev_b32 v25, 5, v0
    v_bfe_u32 v26, v0, 1, 3
    v_xor_b32 v26, v26, v25
    s_lshl_b32 s53, s51, 13
    v_lshlrev_b32 v27, 7, v24
    v_add_u32 v27, s53, v27''')
    for kk in range(4):
        g(f'''v_xor_b32 v28, {2*kk}, v26
        v_lshl_add_u32 v{vB[kk]}, v28, 4, v27''')
    g(f'''v_bfe_u32 v26, v0, 2, 2
    v_lshl_add_u32 v27, v25, 3, v26
    v_lshlrev_b32 v27, 8, v27
    s_lshl_b32 s53, s50, 1
    s_add_u32 s53, s53, s51
    v_xor_b32 v26, s53, v26
    v_lshl_add_u32 v27, v26, 6, v27
    v_bfe_u32 v26, v0, 4, 1
    v_and_b32 v28, 3, v0
    v_lshlrev_b32 v30, 3, v28
    v_lshl_add_u32 v30, v26, 5, v30
    s_movk_i32 s59, 0x4000
    v_add3_u32 v{vA[0]}, v27, v30, s59
    v_xor_b32 v{vA[1]}, 64, v{vA[0]}
    v_bfe_u32 v27, v0, 2, 1
    v_xor_b32 v26, v26, v27
    v_or_b32 v26, v26, v28
    v_mov_b32 v27, 0x3f803f80
    v_cmp_eq_u32 vcc, 0, v26
    s_lshl_b32 s53, s53, 5
    v_add_u32 v26, s53, v24
    v_cndmask_b32 v{SEL+4}, 0, v27, vcc
    s_lshl_b32 s54, s49, 7
    v_add_lshl_u32 v{vB1[0]}, v26, s54, 1
    v_xor_b32 v{vB1[1]}, 64, v{vB1[0]}''')
    srd(g,40,18,1792*2)
    for t in range(2): g.vmem(f'buffer_load_ushort v{vB1[t]}, v{vB1[t]}, s[40:43], 0 offen','b1')
    if A216:
        g(f'''s_lshl_b32 s53, s49, 3
        s_lshr_b32 s54, s48, 1
        s_add_u32 s53, s53, s54
        s_lshl_b32 s53, s53, 11
        s_add_u32 s53, s53, {CS_REL+(ST_OFF-F_OFF)}
        v_lshl_add_u32 v{vCA}, v26, 4, s53
        s_lshl_b32 s54, s100, 3
        v_add_u32 v{vCP}, s54, v{vCA}
        v_xor_b32 v{vCB}, 0x200, v{vCA}''')
    else: g(f'''s_lshl_b32 s53, s49, 2
    s_lshr_b32 s54, s48, 2
    s_add_u32 s53, s53, s54
    s_lshl_b32 s53, s53, 12
    s_add_u32 s53, s53, {CS_REL+(ST_OFF-F_OFF)}
    v_lshl_add_u32 v26, v26, 5, s53
    s_lshl_b32 s54, s100, 3
    v_add_u32 v{vCP}, s54, v26
    v_lshl_add_u32 v{vCA}, v25, 4, v26
    v_xor_b32 v{vCB}, 0x400, v{vCA}''')
    g(f'''
    s_lshl_b32 s53, s63, 11
    s_lshl_b32 s54, s51, 10
    s_add_u32 s53, s53, s54
    s_add_u32 s53, s53, {ST_OFF-F_OFF}
    v_lshl_add_u32 v{vSA}, v24, 4, s53
''')
    srd(g,40,28,4<<20,add=F_OFF)
    g.stamp('pro')
    WS0=g.opt.get('wsched','o')
    if D==3 and WS0!='y':
        for op in stage_ops(2): op()
    g.stamp('pro')
    g('s_waitcnt lgkmcnt(0)')
    early,addr,trig=p2_setup_ops(g,False)
    TM={i:176+i for i in range(24)}
    early,addr,trig=[remap(x,TM) for x in (early,addr,trig)]
    vBh=[200,201,202,203]; vAh=[204,205]
    g.miscq=[f'v_add_u32 v{h}, 0x10000, v{l}' for h,l in zip(vBh+vAh,vB+vA)]+early+addr+trig
    def fr(s_):
        b=[32,128][s_]
        return dict(A=[b,b+4],B=[b+8,b+12])
    def rd(n):
        st,kk=n>>2,n&3
        f=fr(n&1); o=(st&1)*32768; hi=(st>>1)&1
        tr=lambda t,q: f'ds_read_b64_tr_b16 v[{f["A"][t]+2*q}:{f["A"][t]+2*q+1}], v{[vA,vAh][hi][t]} offset:{o+4096*kk+1024*q}'
        bb=lambda u: f'ds_read_b128 v[{f["B"][u]}:{f["B"][u]+3}], v{[vB,vBh][hi][kk]} offset:{o+4096*u}'
        return [tr(0,0),tr(0,1),bb(0),bb(1),tr(1,0),tr(1,1)]
    ncs = 4 if A216 else {1:2,4:2,2:4,0:8}[rot]
    def setsel(st):
        if ncs==2 or A216: cond=None
        elif ncs==4: cond=f's_lshr_b32 s53, s100, 1\ns_cmp_eq_u32 s53, {st>>1}'
        else: cond=f's_cmp_eq_u32 s100, {st>>1}'
        if cond is None:
            for i in range(4): g(f'v_mov_b32 v{SEL+i}, v{SEL+4}')
        else:
            g(cond+'\ns_cselect_b32 s53, -1, 0')
            for i in range(4): g(f'v_and_b32 v{SEL+i}, s53, v{SEL+4}')
    def gather_ops():
        def mk(r,v,off):
            def o(): g.vmem(f'buffer_load_dwordx4 v[{r}:{r+3}], v{v}, s[40:43], 0 offen offset:{off} sc1','ga')
            return o
        return [mk(GA,vSA,0),mk(GA+4,vSA,512),mk(GA+8,vCA,0),mk(GA+12,vCB,0)]
    def publish():
        g(f'v_mov_b32 v{CSA+1}, s47')
        g.vmem(f'buffer_store_dwordx2 v[{CSA}:{CSA+1}], v{vCP}, s[40:43], 0 offen sc1','csp')
    WPS=g.opt.get('wpstage',1)
    WSCHED={'a':{2:[0],3:[1],5:[2,3],6:[4],7:[5,6]},'b':{3:[0],4:[1],5:[2],6:[3,4],7:[5]},'c':{5:[0,1],6:[2],7:[3,4]},'d':{1:[0],2:[1],5:[2,3],6:[4,5],7:[6]},'e':{5:[0,1],6:[2,3],7:[4,5]},'f':{4:[0],5:[1],6:[2,3],7:[4,5]},'g':{5:[0],6:[1],7:[2,3]},'h':{4:[0,1],7:[2,3,4]},'i':{4:[0,1],7:[2,3]},'j':{4:[0,1]},'k':{3:[0,1],6:[2,3],7:[4,5]},'l':{4:[0,1],6:[2],7:[3,4]},'m':{1:[(0,0)],2:[(0,1)],3:[(1,0)],4:[(1,1)],5:[2,3],6:[4,5],7:[6]},'n':{1:[(0,0)],2:[(0,1)],3:[(1,0)],4:[(1,1)],6:[2,3],7:[4,5]},'o':{1:[0],2:[1],5:[2,3],6:[4,5],7:[6,7]},'p':{5:[0,1],7:[2]},'q':{5:[0,1]},'r':{5:[0,1],6:[2]},'s':{5:[0,1],7:[2,3]},'t':{5:[0,1],6:[2],7:[3]},'u':{1:[0,1],5:[2,3],6:[4,5],7:[6,7]},'v':{0:[0,1],5:[2,3],6:[4,5],7:[6,7]},'w':{2:[0,1],5:[2,3],6:[4,5],7:[6,7]},'x':{-1:[0,1],5:[2,3],6:[4,5],7:[6,7]},'y':{-2:[0,1],5:[2,3],6:[4,5],7:[6,7]}}[g.opt.get('wsched','o')]
    half={}
    prevtr=[0]
    NTL=g.opt.get('ntl',5)
    TRL={n:(i>>1,i&1) for i,n in enumerate([20,21,22,23,26,27,28,29,30,31][:2*NTL])}
    MX=g.opt.get('mx',5)
    nw=len(set((p[0] if isinstance(p,tuple) else p) for x in WSCHED.values() for p in x))
    def enter(st):
        g.flush_side()
        g.wait(f's{st}')
        g('s_barrier')
        g.stamp('st')
        if st+D<8: g.sideq+=stage_ops(st+D)
        if st==max(ncs,g.opt.get('pubst',4)) and ncs<8: g.sideq.append(publish)
        if st==6: g.miscq+=hr.l
        if st in WSCHED and st<6:
            while len(g.miscq)>len(trig)+len(addr): misc(g,1)
        if st==g.opt.get('gast',7) and not g.opt.get('galast'): g.sideq+=gather_ops()
        for pr in WSCHED.get(st,[]):
            if isinstance(pr,tuple):
                if pr[1]==0: half[pr[0]]=w2_pair_ops(g,pr[0])
                ops=half[pr[0]][2*pr[1]:2*pr[1]+2]
                if pr[1]==1: ops=[lambda p=pr[0],o=ops[0]:(g(f's_add_u32 m0, s69, {ppos(p)}'),o())]+ops[1:]
                g.sideq+=ops
            else: g.sideq+=w2_pair_ops(g,pr)
        if st==g.opt.get('gast',7) and g.opt.get('galast'): g.sideq+=gather_ops()
    if WS0 in 'xy':
        while len(g.miscq)>len(trig)+len(addr): misc(g,1)
        for op in w2_pair_ops(g,0)+w2_pair_ops(g,1): op()
        if WS0=='y':
            for op in stage_ops(2): op()
    hr=Rec()
    srd(hr,36,28,7340032)
    hr('''s_mul_i32 s53, s52, 112
    s_lshl_b32 s54, s49, 3
    s_add_u32 s53, s53, s54
    s_lshl_b32 s54, s50, 2
    s_add_u32 s53, s53, s54
    s_lshl_b32 s53, s53, 11
    s_lshl_b32 s54, s51, 12
    s_add_u32 s60, s53, s54
    s_xor_b32 s61, s60, 0x400
    s_xor_b32 s62, s60, 0x1000
    s_xor_b32 s63, s60, 0x1400
''')
    nonce(g); setsel(0)
    enter(0); g.stamp(); g.stamp('pro')
    for x in rd(0): g(x)
    for n in range(32):
        st,kk=n>>2,n&3
        f=fr(n&1)
        def mf(t,u):
            d=ACC+16*(2*t+u)
            g(f'{MF} v[{d}:{d+15}], v[{f["A"][t]}:{f["A"][t]+3}], v[{f["B"][u]}:{f["B"][u]+3}], '+(f'v[{d}:{d+15}]' if n else '0'))
        nx = rd(n+1) if n<31 else []
        xt=prevtr[0]; prevtr[0]=0
        if kk==3:
            g(f's_waitcnt lgkmcnt({xt})'); mf(0,0)
            if st<7: enter(st+1)
            else: g.flush_side(); g('s_barrier')
            for x in nx[:3]: g(x)
            mf(0,1)
            for x in nx[3:]: g(x)
            mf(1,0)
        else:
            g(f's_waitcnt lgkmcnt({3+xt})'); mf(0,0)
            for x in nx[:3]: g(x)
            g(f's_waitcnt lgkmcnt({5+xt})'); mf(0,1)
            for x in nx[3:]: g(x)
            g(f's_waitcnt lgkmcnt({6+xt})'); mf(1,0)
        if n in TRL:
            pr,h=TRL[n]
            if h==0: g.wait(f'w{pr}')
            for x in w2_trl(pr)[4*h:4*h+4]: g(x)
            prevtr[0]=4
        else:
            had=bool(g.sideq); g.side(); misc(g, 2 if had else MX)
        if st<ncs:
            g(f'v_mfma_f32_16x16x32_bf16 v[{CSA}:{CSA+3}], v[{SEL}:{SEL+3}], v[{f["A"][0]}:{f["A"][0]+3}], '+(f'v[{CSA}:{CSA+3}]' if n else '0'))
        mf(1,1)
        had=bool(g.sideq); g.side(2 if (len(g.sideq)>2*(3-kk)+1 or n in TRL) else 1); misc(g,2 if had else MX)
        if kk==3 and st+1<ncs and (st+1)%2==0: setsel(st+1)
    if ncs==8: publish()
    g.flush_side(); misc(g,9999)
    g.stamp(); g.stamp('st'); g.stamp('tail')
    g.wait('ga')
    g(f'''s_mov_b32 s56, {SPIN}
    L_gchk:
    v_xor_b32 v24, s47, v{GA+3}
    v_xor_b32 v25, s47, v{GA+7}
    v_xor_b32 v26, s47, v{GA+9}
    v_xor_b32 v27, s47, v{GA+11}
    v_xor_b32 v28, s47, v{GA+13}
    v_xor_b32 v29, s47, v{GA+15}
    v_or3_b32 v24, v24, v25, v26
    v_or3_b32 v27, v27, v28, v29
    v_or_b32 v24, v24, v27
    v_cmp_ne_u32 vcc, 0, v24
    s_cbranch_vccnz L_gslow
    L_gok:''')
    keep=list(g.vm); main=g.a.l; g.a.l=[]
    g('L_gslow:\ns_sleep 8')
    for op in gather_ops(): op()
    g('s_waitcnt vmcnt(0)\ns_sub_u32 s56, s56, 1\ns_cbranch_scc0 L_gchk\ns_branch L_gok')
    g.outofline+=g.a.l; g.a.l=main; g.vm=keep
    NG=g.opt.get('ng',10)
    assert NG<=10+NTL
    g('s_waitcnt lgkmcnt(0)')
    for pr in range(nw,NG): g.sideq+=w2_pair_ops(g,pr)
    a0,a1=GA+8,GA+12
    c0=-2*math.sqrt(2/math.pi)*math.log2(math.e); c1=c0*0.044715
    g(f'''v_add_f32 v{a0}, v{a0}, v{a0+2}
    v_add_f32 v{a1}, v{a1}, v{a1+2}
    v_rcp_f32 v24, v{GA+2}
    v_mov_b32 v{a0+1}, v{a0}
    v_mov_b32 v{a1+1}, v{a1}
    v_rcp_f32 v26, v{GA+6}
    v_cmp_gt_u32 vcc, 32, v0
    v_permlane32_swap_b32 v{a0}, v{a0+1}
    v_permlane32_swap_b32 v{a1}, v{a1+1}
    v_mov_b32 v50, v{GA+2}
    v_mov_b32 v54, v{GA+6}
    {'v_mov_b32' if A216 else 'v_add_f32'} v{a0+2}, v{a0}{'' if A216 else f', v{a0+1}'}
    {'v_mov_b32' if A216 else 'v_add_f32'} v{a1+2}, v{a1}{'' if A216 else f', v{a1+1}'}
    v_mov_b32 v{GA+2}, v{GA}
    v_mov_b32 v{GA+6}, v{GA+4}
    v_cvt_pk_bf16_f32 v{a0}, v{a0+2}, v{a0+2}
    v_cvt_pk_bf16_f32 v{a1}, v{a1+2}, v{a1+2}
    v_lshl_or_b32 v{a0+1}, v{vB1[0]}, 16, v{vB1[0]}
    v_lshl_or_b32 v{a1+1}, v{vB1[1]}, 16, v{vB1[1]}
    v_lshlrev_b32 v{a0+3}, 16, v{a0}
    v_lshlrev_b32 v{a1+3}, 16, v{a1}
    v_cndmask_b32 v{a0}, 0, v{a0}, vcc
    v_cndmask_b32 v{a1}, 0, v{a1}, vcc
    v_sub_f32 v{a0+2}, v{a0+2}, v{a0+3}
    v_sub_f32 v{a1+2}, v{a1+2}, v{a1+3}
    v_cndmask_b32 v{a0+1}, 0, v{a0+1}, vcc
    v_cndmask_b32 v{a1+1}, 0, v{a1+1}, vcc
    v_cvt_pk_bf16_f32 v{a0+2}, v{a0+2}, 0
    v_cvt_pk_bf16_f32 v{a1+2}, v{a1+2}, 0
    v_mov_b32 v{a0+3}, 0
    v_mov_b32 v{a1+3}, 0
    v_cndmask_b32 v{a0+2}, 0, v{a0+2}, vcc
    v_cndmask_b32 v{a1+2}, 0, v{a1+2}, vcc
    v_mov_b32 v{GA+3}, 0
    v_mov_b32 v{GA+7}, 0''')
    Aex=[a0,a1]; Bex=[GA,GA+4]
    for t in range(2):
        for u in range(2):
            d=ACC+16*(2*t+u)
            g(f'{MF} v[{d}:{d+15}], v[{Aex[t]}:{Aex[t]+3}], v[{Bex[u]}:{Bex[u]+3}], v[{d}:{d+15}]')
    g(f'''v_mul_f32 v25, v24, v24
    v_mul_f32 v27, v26, v26
    v_mul_f32 v49, {f2u(c0):#x}, v24
    v_mul_f32 v53, {f2u(c0):#x}, v26
    v_mul_f32 v25, v25, v24
    v_mul_f32 v27, v27, v26
    v_mul_f32 v48, {f2u(c1):#x}, v25
    v_mul_f32 v52, {f2u(c1):#x}, v27''')
    g('v_lshlrev_b32 v56, 4, v0')
    g.stamp()
    while len(g.miscq)>len(trig): misc(g,1)
    def trop(pr,h):
        def op():
            if h==0: g.wait(f'w{pr}')
            for x in w2_trl(pr)[4*h:4*h+4]: g(x)
        return op
    xo=xb2_ops(g)
    trs=[]
    for pr in range(NTL,4):
        if not g.opt.get('trpost'): trs+=[trop(pr,0),trop(pr,1)]
    g.sideq+=xo+trs
    NS=g.opt.get('gside',4)
    for t in range(2):
        for u in range(2):
            d=ACC+16*(2*t+u); K=[48,52][u]; RI=[50,54][u]
            for j in range(2):
                NS=g.opt.get('gside',4) if 4*t+2*u+j>=g.opt.get('gstart',0) else 0
                P=[d+8*j+2*i for i in range(4)]
                tm=[2+2*i for i in range(4)]
                o=[24,28][j]
                for i in range(4): g(f'v_pk_mul_f32 v[{tm[i]}:{tm[i]+1}], v[{P[i]}:{P[i]+1}], v[{P[i]}:{P[i]+1}]')
                for i in range(4): g(f'v_pk_fma_f32 v[{tm[i]}:{tm[i]+1}], v[{tm[i]}:{tm[i]+1}], v[{K}:{K+1}], v[{K}:{K+1}] op_sel:[0,0,1] op_sel_hi:[1,0,1]')
                if NS>=1: g.side()
                for i in range(4): g(f'v_pk_mul_f32 v[{tm[i]}:{tm[i]+1}], v[{tm[i]}:{tm[i]+1}], v[{P[i]}:{P[i]+1}]')
                for i in range(8):
                    g(f'v_exp_f32 v{2+i}, v{2+i}')
                    if i==3 and NS>=4: g.side()
                if NS>=2: g.side()
                for i in range(4): g(f'v_pk_fma_f32 v[{tm[i]}:{tm[i]+1}], v[{tm[i]}:{tm[i]+1}], v[{RI}:{RI+1}], v[{RI}:{RI+1}] op_sel:[0,0,0] op_sel_hi:[1,0,0]')
                for i in range(8):
                    g(f'v_rcp_f32 v{2+i}, v{2+i}')
                    if i==3 and NS>=5: g.side()
                if NS>=3: g.side()
                for i in range(4): g(f'v_pk_mul_f32 v[{tm[i]}:{tm[i]+1}], v[{tm[i]}:{tm[i]+1}], v[{P[i]}:{P[i]+1}]')
                for i in range(4): g(f'v_cvt_pk_bf16_f32 v{o+i}, v{tm[i]}, v{tm[i]+1}')
                g.vmem(f'buffer_store_dwordx4 v[{o}:{o+3}], v56, s[36:39], s{60+2*t+u} offen offset:{2048*j} {"" if g.opt.get("hplain") else "sc1"}','st')
    g.stamp()
    print('after GELU: side',len(g.sideq),'misc',len(g.miscq),file=sys.stderr)
    g.stamp('tail')
    g.flush_side()
    g(f'v_mov_b32 v2, s47\nv_add_u32 v{vTm0}, 0x10000, v{vT[0]}\nv_add_u32 v{vTm1}, 0x10000, v{vT[1]}')
    NJ=g.opt.get('nj',4)
    for k in range(0 if g.opt.get('merge',0) else NJ//2): g(f'v_add_u32 v{vJ[k][0]}, {ppos(12-2*k)}, v{vT[0]}\nv_add_u32 v{vJ[k][1]}, {ppos(12-2*k)}, v{vT[1]}')
    for d in (1,2,3): g(f's_add_u32 s{5+d}, s69, {d*32768}\ns_xor_b32 s{8+d}, s{5+d}, {d*8192}')
    g(f's_add_u32 s12, s69, {32768+4096}')
    TB=g.opt.get('trbefore',1)
    for pr in range(max(4,NTL),4+TB):
        g.wait(f'w{pr}')
        for x in w2_trl(pr): g(x)
    g.stamp('tail')
    g.wait('st')
    g.stamp('tail')
    g('s_barrier')
    g.vmem(f'buffer_store_dword v2, v{vSG}, s[40:43], 0 offen sc1','flag')
    g.stamp('tail')
    if g.opt.get('merge',0):
        g.nw=NG
        return
    for pr in range(NG,10):
        for op in w2_pair_ops(g,pr): op()
    if g.opt.get('trpost'):
        for pr in range(NTL,4):
            g.wait(f'w{pr}')
            for x in w2_trl(pr): g(x)
    g('s_waitcnt lgkmcnt(0)')
    for pr in range(max(NG,10),14):
        for op in w2_pair_ops(g,pr): op()
    for pr in range(max(4+TB,NTL),14-NJ):
        g.wait(f'w{pr}')
        for x in w2_trl(pr): g(x)
    g('v_not_b32 v3, v2')

def p1_dft(g):
    RAW=64
    vBr0=56; vXL=[57,18,19,2]; vSP=3; vA0=244; vBd=[4,5,6,7]; vWe,vWo=8,9; vFA=[10,11,12,13]; vFB=[14,15,16,17]
    CC=[192,196]; SS=[200,204]; NS=[208,212]
    RC=[216,218,220,222]
    if g.opt.get('p1arr',48)==216:
        g('L_dft0:\ns_lshr_b32 s100, s31, 1\ns_add_u32 s48, s48, s100\ns_lshl_b32 s100, s100, 1')
    g('''s_mov_b32 s49, s53
    s_lshr_b32 s51, s3, 1''')
    t1_of(g,'s52','s48','s51','s53')
    g(f'''s_and_b32 s50, s3, 1
    s_lshl_b32 s53, s50, 5
    s_add_u32 s53, s53, s52
    s_lshl_b32 s53, s53, 10
    v_lshrrev_b32 v24, 3, v0
    v_lshrrev_b32 v25, 4, v0
    v_and_b32 v26, 7, v0
    v_lshlrev_b32 v27, 4, v26
    v_lshl_add_u32 v27, v24, 16, v27
    s_lshl_b32 s54, s100, 7
    v_add3_u32 v{vXL[0]}, v27, s53, 0
    v_add_u32 v{vXL[0]}, s54, v{vXL[0]}
    v_xor_b32 v{vXL[1]}, 0x80, v{vXL[0]}
    v_xor_b32 v{vXL[2]}, 0x100, v{vXL[0]}
    v_xor_b32 v{vXL[3]}, 0x180, v{vXL[0]}
    s_waitcnt lgkmcnt(0)''')
    srd(g,32,4,2097152)
    def xops(gi):
        def mk(j):
            def op():
                if j==0: g(f's_mov_b32 s58, {gi*524288}')
                r=RAW+32*gi+4*j
                g.vmem(f'buffer_load_dwordx4 v[{r}:{r+3}], v{vXL[j&3]}, s[32:35], s58 offen offset:{512*(j>>2)}',f'x{gi}')
            return op
        return [mk(j) for j in range(8)]
    DO=g.opt.get('dord','a')
    for gi in range(1 if DO in 'de' else 2):
        for op in xops(gi): op()
    if DO not in 'de': g('@@SPLIT@@')
    epoch_load(g)
    srd(g,36,10,524288); srd(g,16,12,524288); srd(g,40,28,4<<20,add=F_OFF)
    g(f'''s_lshl_b32 s46, s48, 3
    s_lshl_b32 s53, s49, 2
    s_add_u32 s46, s46, s53
    s_add_u32 s46, s46, {FU}
    v_xor_b32 v26, v26, v25
    v_lshlrev_b32 v26, 4, v26
    v_lshl_add_u32 v27, v24, 11, v26
    s_lshl_b32 s53, s3, 16
    s_lshl_b32 s54, s49, 10
    s_add_u32 s53, s53, s54
    v_add_u32 v{vBd[0]}, s53, v27
    v_xor_b32 v28, 64, v{vBd[0]}
    v_add_u32 v{vBd[1]}, {16384-1024}, v28
    v_add_u32 v{vBd[2]}, {2*(16384-1024)}, v{vBd[0]}
    v_add_u32 v{vBd[3]}, {3*(16384-1024)}, v28
    v_add_u32 v28, 0x40000, v{vBd[0]}
    v_cmp_gt_u32 vcc, 1024, v{vBd[0]}
    v_lshl_add_u32 v27, v24, 7, v26
    s_lshl_b32 s53, s3, 12
    v_cndmask_b32 v{vBr0}, v{vBd[0]}, v28, vcc
    v_add_u32 v{vWe}, s53, v27
    v_xor_b32 v{vWo}, 64, v{vWe}
    s_mul_i32 s55, s3, 24576
    s_add_u32 s55, s55, 65536
    s_lshl_b32 s53, s48, 1
    s_add_u32 s53, s53, s49
    s_lshl_b32 s53, s53, 11
    s_lshl_b32 s54, s51, 10
    s_add_u32 s53, s53, s54
    s_lshl_b32 s54, s50, 4
    s_add_u32 s53, s53, s54
    s_add_u32 s53, s53, {ST_OFF-F_OFF}
    v_lshl_add_u32 v{vSP}, v24, 5, s53
    s_lshl_b32 s53, s48, 1
    s_add_u32 s53, s53, s49
    s_lshl_b32 s53, s53, 9
    s_add_u32 s13, s53, {A0_REL}
    s_lshl_b32 s54, s3, 7
    s_add_u32 s53, s13, s54
    v_lshl_add_u32 v{vA0}, v24, 2, s53
    v_and_b32 v242, 3, v0
    v_lshl_add_u32 v{vA0}, v242, 5, v{vA0}''')
    def bops(st):
        slot=st&1
        def mk(i):
            def op():
                if i==0: g(f's_xor_b32 s57, s100, {st}\ns_lshl_b32 s57, s57, 7\ns_add_u32 m0, s55, {slot*8192}')
                if i==4: g(f's_add_u32 m0, s55, {slot*8192+4096}')
                if i<4: g.vmem(f'buffer_load_dwordx4 v{vBr0 if i==0 else vBd[i]}, s[36:39], s57 offen offset:{1024*i} lds',f'B{st}')
                else:   g.vmem(f'buffer_load_dwordx4 v{vBd[i-4]}, s[16:19], s57 offen offset:{1024*(i-4)} lds',f'B{st}')
            return op
        return [mk(i) for i in range(8)]
    if DO in 'de':
        for op in bops(0): op()
        g('@@SPLIT@@')
    g(f'''v_and_b32 v24, 31, v0
    v_lshrrev_b32 v25, 5, v0
    v_bfe_u32 v26, v0, 1, 3
    v_xor_b32 v26, v26, v25
    v_lshlrev_b32 v27, 7, v24''')
    for kk in range(4):
        g(f'''v_xor_b32 v28, {2*kk}, v26
        v_lshl_add_u32 v{vFA[kk]}, v28, 4, v27
        v_add_u32 v{vFB[kk]}, s55, v{vFA[kk]}''')
    g(f'''v_cvt_f32_u32 v26, v24
    v_mul_f32 v26, {f2u(1/32):#x}, v26
    v_cvt_f32_u32 v27, v25
    v_mul_f32 v27, 4.0, v27
    v_mul_f32 v27, v27, v26
    v_mul_f32 v28, {f2u(5.0):#x}, v26''')
    for j in range(2):
        for i2 in range(4):
            for e in range(2):
                i=2*i2+e
                if not (j==0 and i==0):
                    g(f'v_add_f32 v27, v27, v{28 if i%4==0 else 26}')
                g(f'v_fract_f32 v29, v27\nv_cos_f32 v{20+e}, v29\nv_sin_f32 v{22+e}, v29')
            g(f'v_cvt_pk_bf16_f32 v{CC[j]+i2}, v20, v21\nv_cvt_pk_bf16_f32 v{SS[j]+i2}, v22, v23\nv_xor_b32 v{NS[j]+i2}, 0x80008000, v{SS[j]+i2}')
    early,addr,trig=p2_setup_ops(g,True)
    TM={0:20,1:21,2:22,3:23,4:24,5:25,6:26,7:27,8:28,9:29,10:30,12:2,13:3,14:8,15:9,16:31,17:57,18:240,19:241,20:242,21:243,22:244,23:245}
    early,addr,trig=[remap(x,TM) for x in (early,addr,trig)]
    g(f'''s_mov_b32 s59, 0x3f803f80
    s_movk_i32 s60, 0x3f80
    s_mov_b32 s61, 0x3f800000
    s_lshl_b32 s53, s49, 15
    s_or_b32 s62, s60, s53
    s_lshl_b32 s63, s62, 16
    s_cmp_eq_u32 s49, 0
    s_cselect_b32 s101, 2.0, 0
    s_waitcnt lgkmcnt(0)''')
    nonce(g)
    eps=f'{f2u(1e-5):#x}'
    chainq=[]
    def ch(n=1):
        for _ in range(n):
            if chainq: chainq.pop(0)()
    def stats(gi):
        R=RAW+32*gi; S=[224,228][gi&1]
        g.wait(f'x{gi}')
        if gi==0: g.stamp()
        for i in range(32):
            if i<2: g(f'v_dot2_f32_bf16 v{S+i}, v{R+i}, s59, 0\nv_dot2_f32_bf16 v{S+2+i}, v{R+i}, v{R+i}, 0')
            else:   g(f'v_dot2c_f32_bf16 v{S+(i&1)}, s59, v{R+i}\nv_dot2c_f32_bf16 v{S+2+(i&1)}, v{R+i}, v{R+i}')
            if i%4==3: g.side()
            if i>=2: ch(2)
        while chainq: ch()
        o=232+4*(gi&1); r1=RC[gi]; a,b,c,d=20,21,22,23
        lines=f'''v_add_f32 v{S}, v{S}, v{S+1}
        v_add_f32 v{S+2}, v{S+2}, v{S+3}
        v_add_f32_dpp v{S}, v{S}, v{S} quad_perm:[1,0,3,2] row_mask:0xf bank_mask:0xf
        v_add_f32_dpp v{S+2}, v{S+2}, v{S+2} quad_perm:[1,0,3,2] row_mask:0xf bank_mask:0xf
        v_add_f32_dpp v{S}, v{S}, v{S} quad_perm:[2,3,0,1] row_mask:0xf bank_mask:0xf
        v_add_f32_dpp v{S+2}, v{S+2}, v{S+2} quad_perm:[2,3,0,1] row_mask:0xf bank_mask:0xf
        v_add_f32_dpp v{S}, v{S}, v{S} row_half_mirror row_mask:0xf bank_mask:0xf
        v_add_f32_dpp v{S+2}, v{S+2}, v{S+2} row_half_mirror row_mask:0xf bank_mask:0xf
        v_mul_f32 v{a}, {f2u(-1/512):#x}, v{S}
        v_mul_f32 v{b}, {f2u(1/512):#x}, v{S+2}
        v_fma_f32 v{b}, -v{a}, v{a}, v{b}
        v_cvt_pk_bf16_f32 v{d}, v{a}, v{a}
        v_max_f32 v{b}, 0, v{b}
        v_lshlrev_b32 v{d}, 16, v{d}
        v_cvt_pk_bf16_f32 v{c}, 0, v{b}
        v_sub_f32 v{d}, v{a}, v{d}
        v_add_f32 v{c}, {eps}, v{c}
        v_cvt_pk_bf16_f32 v{o}, v{a}, v{d}
        v_cvt_pk_bf16_f32 v{c}, 0, v{c}
        v_mul_f32 v{r1+1}, s101, v{a}
        v_sqrt_f32 v{c}, v{c}
        v_mov_b32 v{o+3}, s47
        v_cvt_pk_bf16_f32 v{c}, 0, v{c}
        v_rcp_f32 v{r1}, v{c}
        v_mul_f32 v{d}, {f2u(-512.0):#x}, v{d}
        v_mul_f32 v{b}, v{b}, v{r1}
        v_mul_f32 v{241 if gi else 240}, v{d}, v{r1}
        v_mul_f32 v{b}, v{b}, v{r1}
        v_cvt_pk_bf16_f32 v{b}, 0, v{b}
        v_add_f32 v{b}, {eps}, v{b}
        v_cvt_pk_bf16_f32 v{b}, 0, v{b}
        v_sqrt_f32 v{b}, v{b}
        v_cvt_pk_bf16_f32 v{b}, 0, v{b}
        v_mul_f32 v{o+2}, v{b}, v{c}
        v_cvt_pk_bf16_f32 v{b}, 0, v{o+2}
        v_sub_f32 v{b}, v{o+2}, v{b}
        v_cvt_pk_bf16_f32 v{o+1}, v{o+2}, v{b}'''.split('\n')
        for ln in lines: chainq.append(lambda ln=ln: g(ln))
        chainq.append(lambda: g.vmem(f'buffer_store_dwordx4 v[{o}:{o+3}], v{vSP}, s[40:43], 0 offen offset:{256*gi} sc1','sp'))
        if gi: chainq.append(lambda: g(f'v_cmp_eq_u32 vcc, {gi}, v242\ns_nop 1\nv_cndmask_b32 v240, v240, v241, vcc'))
        if gi==3: chainq.append(lambda: g.vmem(f'buffer_store_dword v240, v{vA0}, s[40:43], 0 offen sc1','a0'))
    def bfly(gi):
        R=RAW+32*gi; r1=RC[gi]
        for j in range(4):
            o=[24,28][j&1]; T=[40,48][j&1]
            for i in range(4):
                a_=R+4*j+i; t=T+2*i
                g(f'v_dot2_f32_bf16 v{t}, v{a_}, s60, v{r1+1}\nv_dot2_f32_bf16 v{t+1}, v{a_}, s61, v{r1+1}'); ch()
            g.side()
            for i in range(4):
                b_=R+4*(j+4)+i; t=T+2*i
                g(f'v_dot2c_f32_bf16 v{t}, s62, v{b_}\nv_dot2c_f32_bf16 v{t+1}, s63, v{b_}'); ch()
            ch(2)
            for i in range(4):
                t=T+2*i
                g(f'v_pk_mul_f32 v[{t}:{t+1}], v[{t}:{t+1}], v[{r1}:{r1+1}] op_sel_hi:[1,0]')
            g.side()
            for i in range(4):
                t=T+2*i
                g(f'v_cvt_pk_bf16_f32 v{o+i}, v{t}, v{t+1}')
            g(f'ds_write_b128 v{vWo if gi&1 else vWe}, v[{o}:{o+3}] offset:{16384*j+1024*gi}')
        while chainq: ch()
    W0=16384
    LATEW=g.opt.get('latew',0)
    wl={0:W0,1:W0+4096,2:W0,3:W0+4096,4:W0,5:W0+4096,6:W0,7:W0+4096,8:0,9:4096,10:W0,11:W0+4096,12:8192,13:8192+4096}
    if LATEW: wl={0:W0,1:W0+4096,2:W0,3:W0+4096,4:W0,5:W0+4096,6:0,7:4096,8:W0,9:W0+4096,10:8192,11:8192+4096,12:0,13:4096}
    wd=lambda pr: w2_pair_ops(g,pr,'s55',wl[pr])
    order=g.opt.get('dord','a')
    plan={'a':[[],xops(2),xops(3),bops(0),bops(1),[],'w',[]],
          'b':[xops(2),xops(3),bops(0),bops(1),[],[],'w',[]],
          'c':[[],xops(2)+xops(3),bops(0),bops(1),[],'w',[],[]],
          'd':[xops(2),xops(3),[],bops(1),[],[],'w',[]],
          'e':[[],xops(2),xops(3),bops(1),[],[],'w',[]]}[order]
    if order in 'de':
        for op in xops(1): op()
    seq=((stats,0),(stats,1),(bfly,0),(stats,2),(bfly,1),(stats,3),(bfly,2),(bfly,3))
    if g.opt.get('sfirst'):
        seq=((stats,0),(stats,1),(stats,2),(stats,3),(bfly,0),(bfly,1),(bfly,2),(bfly,3))
        plan=[xops(2),xops(3),bops(0),[],bops(1),[],'w',[]] if order not in 'de' else [xops(2),xops(3),[],bops(1),[],[],'w',[]]
    for k,(fn,gi) in enumerate(seq):
        if plan[k]=='w':
            if not LATEW:
                for x in early: g(x)
                g.sideq+=wd(0)+wd(1)
        else: g.sideq+=plan[k]
        if fn is stats:
            while any(1 for op in plan[max(k-2,0)] if False): pass
        fn(gi); g.stamp('dst')
        if order=='c' and k==1: g.flush_side()
    g.flush_side()
    g('s_waitcnt lgkmcnt(0)\ns_barrier')
    g.stamp(); g.stamp('dst')
    ACC=64
    def fr(s_):
        b=[32,216][s_]
        return dict(A=[b,b+4,b+8,b+12],B=[b+16,b+20])
    def rd(n):
        st,kk=n>>2,n&3; f=fr(n&1)
        bb=lambda ab: f'ds_read_b128 v[{f["B"][ab]}:{f["B"][ab]+3}], v{vFB[kk]} offset:{(st&1)*8192+4096*ab}'
        aa=lambda ti: f'ds_read_b128 v[{f["A"][ti]}:{f["A"][ti]+3}], v{vFA[kk]} offset:{st*16384+4096*ti}'
        return [aa(0),bb(0),bb(1),aa(1),aa(2),aa(3)]
    g.wait('B0')
    for x in rd(0): g(x)
    vTB=[18,19]
    nT=[i for i,x in enumerate(addr) if f'v_add_u32 v{vT[3]}' in x][0]+1
    pre=addr[8:nT]+['s_sub_u32 s0, s55, s69',f'v_add_u32 v18, s0, v{vT[0]}',f'v_add_u32 v19, s0, v{vT[1]}']
    if not LATEW:
        for x in pre: g(x)
    if not g.opt.get('trigp2',1):
        trig=trig_ops(0,{1:20,2:21,3:22,5:23,6:30,7:31,9:57,12:2,13:3,14:8,15:9,16:240,17:241,18:242,19:243,20:24,21:25,22:26,23:27})
    g.miscq=addr[:8]+addr[nT:]+trig
    TRS={0:0,1:1,5:2,6:3,9:4,10:5,13:6,14:7}
    DMS={1:[2],2:[3],6:[4],7:[5],10:[6],11:[7,8],12:[9],14:[10],15:[11]}
    if LATEW:
        TRS={4:0,5:1,8:2,9:3,11:4,12:5,14:6,15:7}
        DMS={1:[0,1],5:[2],6:[3],9:[4],10:[5],11:[6,7],12:[8],13:[9]}
        g.miscq=early+pre+g.miscq
    for n in range(16):
        f=fr(n&1)
        def mf(ti,ab):
            d=ACC+32*ti+16*ab
            g(f'{MF} v[{d}:{d+15}], v[{f["A"][ti]}:{f["A"][ti]+3}], v[{f["B"][ab]}:{f["B"][ab]+3}], '+(f'v[{d}:{d+15}]' if n else '0'))
        nx=rd(n+1) if n<15 else []
        if n%2==0: g.stamp('dm')
        g('s_waitcnt lgkmcnt(0)'); mf(0,0)
        if n==3: g.sideq+=bops(2)
        if n==7: g.sideq+=bops(3)
        if LATEW and n==1:
            while any(x in g.miscq for x in early): misc(g,1)
        if LATEW and n==4:
            while any(x in g.miscq for x in pre): misc(g,1)
        if n==8:
            assert 'a0' not in g.vm
            while len(g.miscq)>len(trig): misc(g,1)
            g('s_barrier')
            g.miscq+=[f'v_and_b32 v2, 3, v0',f'v_lshrrev_b32 v3, 5, v0',f'v_lshlrev_b32 v3, 4, v3',f'v_lshl_add_u32 v2, v2, 7, v3',f'v_add_u32 v2, s13, v2',
                      f'v_and_b32 v3, 28, v0',f'v_cmp_eq_u32 vcc, 0, v3',f'v_mov_b32 v3, {OOB}','s_nop 0',f'v_cndmask_b32 v2, v3, v2, vcc']
        if n==9:
            misc(g,9999)
            g.sideq+=[(lambda q=q: g.vmem(f'buffer_load_dwordx4 v[{[20,24,28,240][q]}:{[20,24,28,240][q]+3}], v2, s[40:43], 0 offen offset:{32*q} sc1','al')) for q in range(4)]
        if n==15:
            g.wait('al')
            g.miscq+=[f'v_cvt_pk_bf16_f32 v{20+i}, v{20+2*i}, v{21+2*i}' for i in range(4)]+[f'v_cvt_pk_bf16_f32 v28, v28, v29','v_cvt_pk_bf16_f32 v29, v30, v31','v_cvt_pk_bf16_f32 v30, v240, v241','v_cvt_pk_bf16_f32 v31, v242, v243']
        for pr in DMS.get(n,[]): g.sideq+=wd(pr)
        if (n+1)%4==0 and n<15: g.wait(f'B{(n+1)>>2}')
        for x in nx[:3]: g(x)
        mf(0,1)
        for x in nx[3:]: g(x)
        mf(1,0)
        trq=[]
        if n in TRS:
            assert not any(True for op in g.sideq if getattr(op,'pr',None)==TRS[n])
            g.wait(f'w{TRS[n]}'); trq=w2_trl(TRS[n],vTB,wl[TRS[n]])
        for k,(ti,ab) in enumerate(((1,1),(2,0),(2,1),(3,0),(3,1))):
            if trq and k>=3:
                for x in trq[:4]: g(x)
                trq=trq[4:]
            else:
                had=bool(g.sideq); g.side(); misc(g,2 if had else 4)
            mf(ti,ab)
        had=bool(g.sideq); g.side(); misc(g,2 if had else 4)
    g.stamp(); g.stamp('s1'); g.stamp('dm')
    if LATEW: g.flush_side(); g.sideq+=wd(10)+wd(11)+[lambda: g('s_waitcnt lgkmcnt(0)')]
    g.sideq+=wd(12)+wd(13)
    def trop(pr):
        def op():
            g.wait(f'w{pr}')
            for x in w2_trl(pr,vTB,wl[pr])[:4]: g(x)
        def op2():
            for x in w2_trl(pr,vTB,wl[pr])[4:]: g(x)
        return [op,op2]
    NJ=g.opt.get('nj',4)
    for pr in range(8,min(12,14-NJ)): g.sideq+=trop(pr)
    g.sideq+=[lambda: [misc(g,1) for _ in range(len(g.miscq)-len(trig))]]
    def zc(ti):
        Z=[32,216][ti&1]; L=[]
        for ab in range(2):
            d=ACC+32*ti+16*ab
            for i in range(8): L.append(f'v_cvt_pk_bf16_f32 v{Z+8*ab+i}, v{d+2*i}, v{d+2*i+1}')
        return L
    for x in zc(0): g(x)
    for ti in range(4):
        Z=[32,216][ti&1]
        za=[Z,Z+4]; zb=[Z+8,Z+12]; ur=ACC+32*ti; ui=ur+16
        nxt=zc(ti+1) if ti<3 else []
        seq=[(ur,CC[0],za[0],1),(ui,CC[0],zb[0],1),(ur,CC[1],za[1],0),(ui,CC[1],zb[1],0),(ur,SS[0],zb[0],0),(ui,NS[0],za[0],0),(ur,SS[1],zb[1],0),(ui,NS[1],za[1],0)]
        for n,(d,am,bm,first) in enumerate(seq):
            g(f'{MF} v[{d}:{d+15}], v[{am}:{am+3}], v[{bm}:{bm+3}], '+('0' if first else f'v[{d}:{d+15}]'))
            for x in nxt[2*n:2*n+2]: g(x)
            had=bool(g.sideq); g.side(); misc(g,(0 if had else 2)+(0 if nxt else 2))
    g.stamp('s1')
    g.flush_side(); misc(g,9999)
    g.stamp('s1')
    for op in xb2_ops(g): op()
    for pr in (12,13):
        if pr<14-NJ:
            for op in trop(pr): op()
    for k in range(NJ//2): g(f'v_add_u32 v{vJ[k][0]}, {wl[12-2*k]}, v{vTB[0]}\nv_add_u32 v{vJ[k][1]}, {wl[12-2*k]}, v{vTB[1]}')
    g.stamp('s1')
    srd(g,36,28,4<<20,add=U_OFF)
    g(f'''v_and_b32 v24, 31, v0
    v_lshrrev_b32 v25, 5, v0
    v_lshlrev_b32 v24, 4, v24
    v_lshl_add_u32 v24, v25, 18, v24
    s_lshl_b32 s53, s3, 9
    v_add_u32 v24, s53, v24
    s_lshl_b32 s53, s48, 1
    s_add_u32 s53, s53, s49
    s_lshl_b32 s53, s53, 11''')
    for r in range(16):
        o=32+4*(r&3)
        for ti in range(4): g(f'v_cvt_pk_bf16_f32 v{o+ti}, v{ACC+32*ti+r}, v{ACC+32*ti+16+r}')
        g(f's_add_u32 s54, s53, {(8*(r>>2)+(r&3))*65536}')
        g.vmem(f'buffer_store_dwordx4 v[{o}:{o+3}], v24, s[36:39], s54 offen sc1','st')
        if r<4:
            d,am,bm,first=((224,20,CC[0],1),(240,20,NS[0],1),(224,28,CC[1],0),(240,28,NS[1],0))[r]
            g(f'{MF} a[{d}:{d+15}], v[{am}:{am+3}], v[{bm}:{bm+3}], '+('0' if first else f'a[{d}:{d+15}]'))
        if r==6:
            for i in range(4): g(f'v_accvgpr_read_b32 v{48+2*i}, a{224+i}\nv_accvgpr_read_b32 v{49+2*i}, a{240+i}')
            g(f'''s_lshl_b32 s0, s48, 12
            s_add_u32 s0, s0, 0x200000
            s_lshl_b32 s1, s49, 2
            s_add_u32 s1, s1, s3
            s_cmp_eq_u32 s1, 1
            s_cselect_b32 s0, s0, {OOB}
            v_lshl_add_u32 v2, v0, 16, s0
            v_mov_b32 v3, {OOB}
            v_cmp_gt_u32 vcc, 32, v0''')
            for i in range(4): g(f'v_cvt_pk_bf16_f32 v{28+i}, v{48+2*i}, v{49+2*i}')
            g('v_cndmask_b32 v2, v3, v2, vcc')
            g.vmem('buffer_store_dwordx4 v[28:31], v2, s[36:39], 0 offen sc1','st')
    g.stamp(); g.stamp('s1')
    g('v_mov_b32 v2, s47')
    g.vmem(f'buffer_load_dword v3, v{vPL}, s[40:43], 0 offen sc1','poll')
    g.wait('poll')
    g.stamp('s1')
    g('s_waitcnt lgkmcnt(0)\ns_barrier')
    g(f'buffer_store_dword v2, v{vSG}, s[40:43], 0 offen sc1')
    g('s_lshl_b32 s53, s3, 12')
    for d in (1,2,3): g(f's_add_u32 s{5+d}, s53, {(d-1)*16384}\ns_xor_b32 s{8+d}, s{5+d}, {d*4096}')
    g('s_lshr_b32 s12, s53, 1\ns_add_u32 s12, s12, 49152')

def p2(g, role):
    M=(role=='m') and g.opt.get('merge',0)
    X=role
    ACC=64; ACS=128; UF=144
    XS=32768+4096
    HR=[16+8*i for i in range(5)]+[192+8*i for i in range(5)]
    NH=len(HR)
    g.stamp(); g.stamp('tail')
    srd(g,36,28,7340032); srd(g,32,28,4<<20,add=U_OFF); srd(g,72,24,2097152)
    g(f'''s_sub_u32 s62, 32, s71
    s_and_b32 s62, s62, 31
    s_cmp_lt_u32 s70, 4
    s_cselect_b32 s62, s71, s62
    s_lshl_b32 s62, s62, 16
    v_mov_b32 v185, 0
    v_mov_b32 v186, 0
    v_mov_b32 v187, 0
    v_mov_b32 v188, 0x3f80
    v_cmp_gt_u32 vcc, 32, v0
    v_mov_b32 v189, 0
    v_mov_b32 v190, 0
    v_cndmask_b32 v188, 0, v188, vcc
    v_mov_b32 v191, 0
    s_mul_i32 s57, s71, 112
    s_mul_i32 s53, s3, 28
    s_add_u32 s57, s57, s53
    s_lshl_b32 s57, s57, 11
    s_add_u32 s59, s57, {28*2048}
    s_lshl_b32 s53, s44, 12
    s_add_u32 s58, s57, s53
    v_mov_b32 v2, s47
    s_mov_b32 s56, {SPIN}''')
    for d in (1,2,3):
        g(f'v_lshl_add_u32 v{9+d}, v0, 4, s{5+d}')
    g(f'v_mov_b32 v9, v{vFL}')
    if M:
        NW=g.nw; ops=[]
        for pr in range(NW,8): ops+=w2_pair_ops(g,pr)
        t01=w2_trl(0)+w2_trl(1)
        for n,op in enumerate(ops):
            op()
            if n==3: g.wait('w1')
            if n>=3 and t01:
                for x in t01[:2]: g(x)
                del t01[:2]
        for x in t01: g(x)
        g.vmem(f'buffer_load_dword v3, v{vPL}, s[40:43], 0 offen sc1','poll')
        for pr in (8,9):
            for op in w2_pair_ops(g,pr): op()
        g.wait('poll')
    if role=='m' and not M: g(f'L_poll:\nbuffer_load_dword v3, v{vPL}, s[40:43], 0 offen sc1\nv_mov_b32 v184, v{vB2}\ns_waitcnt vmcnt(0)')
    else: g(f'v_mov_b32 v184, v{vB2}\nL_poll:')
    g('v_cmp_ne_u32 vcc, s47, v3\ns_cbranch_vccnz L_pslow\nL_go:')
    ool(g,f'''L_pslow:
    s_sleep {g.opt.get('sleep',4)}
    '''+('' if (role=='m' and not M) else f'buffer_load_dword v3, v{vPL}, s[40:43], 0 offen sc1\ns_waitcnt vmcnt(0)\n')+'''s_sub_u32 s56, s56, 1
    s_cbranch_scc0 L_poll
    s_branch L_go''')
    if not M: g.vm=['old']*30
    g.stamp(); g.stamp('tail')
    hidx=[0]
    def hload():
        ks=hidx[0]; r=HR[ks%NH]
        g.vmem(f'buffer_load_dwordx4 v[{r}:{r+3}], v{vH0}, s[36:39], s58 offen offset:{2048*(ks&1)} {g.opt.get("hld","sc1").replace("none","")}',f'h{ks}')
        g.vmem(f'buffer_load_dwordx4 v[{r+4}:{r+7}], v{vH1}, s[36:39], s58 offen offset:{2048*(ks&1)} {g.opt.get("hld","sc1").replace("none","")}',f'h{ks}')
        if ks&1 and ks<27: g('s_add_u32 s58, s58, 4096\ns_cmp_eq_u32 s58, s59\ns_cselect_b32 s58, s57, s58')
        hidx[0]+=1
    HD=g.opt.get('hdepth',8)
    g(f's_waitcnt lgkmcnt(0)\ns_mov_b32 s55, 0x80000')
    for i in range(HD): hload()
    g(f'{MF} v[{ACC}:{ACC+15}], v[184:187], v[188:191], 0')
    XA=[236,237,238,239]
    xa=Rec()
    xa(f'''v_and_b32 v236, 31, v0
    v_lshrrev_b32 v237, 5, v0
    v_lshlrev_b32 v237, 3, v237
    v_lshl_add_u32 v237, v236, 6, v237
    v_bfe_u32 v236, v0, 2, 2
    v_lshl_add_u32 v236, v236, 4, v237
    v_add_u32 v236, s12, v236
    v_xor_b32 v237, 16, v236
    v_xor_b32 v238, 32, v236
    v_xor_b32 v239, 48, v236
    v_lshl_add_u32 v240, v0, 4, s12''')
    KF=g.opt.get('kflag',12)
    NL=g.opt.get('nlast',3)
    def mf(ks,a_,b):
        r=HR[ks%NH]; d=ACC+16*(a_+2*b)
        c='0' if (ks==0 and (a_ or b)) else f'v[{d}:{d+15}]'
        g(f'{MF} v[{d}:{d+15}], a[{8*ks+4*a_}:{8*ks+4*a_+3}], v[{r+4*b}:{r+4*b+3}], {c}')
    checked=False
    NJ=g.opt.get('nj',4)
    jit=[x for pr in range(14-NJ,14) for x in w2_trl(pr,vJ[(13-pr)>>1],4096*(pr&1))]
    late=[]
    if M:
        jit=[x for pr in range(2,14) for x in w2_trl(pr)]
        for pr in range(10,14): late+=w2_pair_ops(g,pr)
    g.miscq=xa.l+(trig_ops(0) if g.opt.get('trigp2',1) else [])
    for ks in range(28-NL):
        g.wait(f'h{ks}')
        if NJ and ks==16 and not M: g('s_waitcnt lgkmcnt(0)')
        if M and ks>=4 and ks%2==0: g('s_waitcnt lgkmcnt(8)')
        if M and ks>=16 and ks%2==0 and ks<=22: g.wait(f'w{ks//2+2}')
        if ks==0:
            g.stamp()
        for b in range(2):
            for a_ in range(2):
                mf(ks,a_,b)
                if a_==0 and b==0 and (ks>=1 or M) and jit:
                    for x in jit[:4]: g(x)
                    del jit[:4]
                elif a_==1 and b==0 and late:
                    late.pop(0)(); late.pop(0)()
                elif not (a_==1 and b==1): misc(g,g.opt.get('p2misc',6 if M else 4))
            if b==0 and g.sideq: g.side()
        if hidx[0]<28: hload()
        elif g.sideq: g.side()
        if ks==(10 if M else 2):
            g('s_mov_b32 m0, s12')
            g.vmem(f'buffer_load_dwordx4 v{vXO}, s[76:79], 0 offen lds','xl')
            g('s_add_u32 m0, m0, 1024')
            g.vmem(f'buffer_load_dwordx4 v{vXO}, s[76:79], s55 offen lds','xl')
        if ks==(24 if M else 22):
            assert 'xl' not in g.vm
            for q in range(4): g(f'ds_read_b64 v[{XR+2*q}:{XR+2*q+1}], v{XA[q]}')
        if ks==KF: g.vmem(f'buffer_load_dword v176, v9, s[40:43], 0 offen sc1','fl')
        if 'fl' not in g.vm and ks>KF and not checked:
            checked=True
            g(f'''L_chk:
            v_cmp_ne_u32 vcc, s47, v176
            s_cbranch_vccnz L_uslow
            L_allset:''')
            ool(g,'''L_uslow:
            s_sleep 4
            buffer_load_dword v176, v9, s[40:43], 0 offen sc1
            s_waitcnt vmcnt(0)
            s_sub_u32 s56, s56, 1
            s_cbranch_scc0 L_chk
            s_branch L_allset''')
            def mku(j):
                def op():
                    g(f's_add_u32 s53, s62, {8192*j}')
                    g.vmem(f'buffer_load_dwordx4 v[{UF+4*j}:{UF+4*j+3}], v{vU}, s[32:35], s53 offen sc1','u')
                return op
            g.sideq+=[mku(j) for j in range(8)]
    assert checked
    if g.miscq: print('p2',role,'misc left',len(g.miscq),file=sys.stderr)
    misc(g,9999)
    g.flush_side()
    if M: g('s_waitcnt lgkmcnt(4)')
    XF=176
    def wr(d):
        for q in range(4):
            r=ACC+16*d+4*q
            g(f'ds_write_b128 v{9+d}, v[{r}:{r+3}] offset:{1024*q}')
    for n,d in enumerate((3,2,1,0)):
        for ks in range(28-NL,28):
            g.wait(f'h{ks}')
            mf(ks,d&1,d>>1)
        if n==0: g('s_waitcnt lgkmcnt(0)')
        if n==1:
            for i in range(4): g(f'v_lshlrev_b32 v{XF+2*i}, 16, v{XR+i}\nv_and_b32 v{XF+2*i+1}, 0xffff0000, v{XR+i}')
            wr(3)
        if n==2:
            for i in range(4,8): g(f'v_lshlrev_b32 v{XF+2*i}, 16, v{XR+i}\nv_and_b32 v{XF+2*i+1}, 0xffff0000, v{XR+i}')
            wr(2)
    g.stamp()
    g(f's_mov_b32 s60, {f2u(-math.log2(math.e)):#x}\ns_mov_b32 s61, s60\ns_mov_b32 s62, 1.0\ns_mov_b32 s63, 1.0')
    def smm(J):
        for j in J:
            g(f'{MF} v[{ACS}:{ACS+15}], v[{UF+4*j}:{UF+4*j+3}], a[{224+4*j}:{227+4*j}], '+('0' if j==0 else f'v[{ACS}:{ACS+15}]'))
    wr(1)
    g.waitall()
    SB=g.opt.get('sbar',3)
    smm(range(SB))
    for d in (1,2,3): g(f'v_lshl_add_u32 v{9+d}, v0, 4, s{8+d}')
    g('s_waitcnt lgkmcnt(0)\ns_barrier')
    rds=[f'ds_read_b128 v[{[192,208,16][d]+4*q}:{[192,208,16][d]+4*q+3}], v{10+d} offset:{1024*q}' for q in range(4) for d in range(3)]
    for j in range(SB,8):
        smm([j])
        for x in rds[:4]: g(x)
        del rds[:4]
    for x in rds: g(x)
    if role=='m':
        g('s_lshl_b32 s1, s2, 2\ns_add_u32 s1, s1, s3\ns_cmp_eq_u32 s1, 803\ns_cbranch_scc1 L_ep0\nL_noep0:')
        ool(g,'''L_ep0:
        v_lshrrev_b32 v4, 2, v0
        v_and_b32 v5, 3, v0
        v_lshl_add_u32 v4, v4, 3, v5
        v_lshlrev_b32 v4, 8, v4
        buffer_load_dwordx4 v[6:9], v4, s[40:43], 0 offen sc1
        s_branch L_noep0''')
    T=80
    for hf in range(2):
        g(f's_waitcnt lgkmcnt({6-6*hf})')
        I=range(4*hf,4*hf+4)
        for i in I: g(f'v_pk_add_f32 v[{192+2*i}:{193+2*i}], v[{192+2*i}:{193+2*i}], v[{208+2*i}:{209+2*i}]')
        for i in I: g(f'v_pk_add_f32 v[{ACC+2*i}:{ACC+2*i+1}], v[{ACC+2*i}:{ACC+2*i+1}], v[{16+2*i}:{17+2*i}]')
        for i in I: g(f'v_pk_add_f32 v[{ACC+2*i}:{ACC+2*i+1}], v[{ACC+2*i}:{ACC+2*i+1}], v[{192+2*i}:{193+2*i}]')
        for i in I: g(f'v_pk_mul_f32 v[{T+2*i}:{T+2*i+1}], v[{ACC+2*i}:{ACC+2*i+1}], s[60:61]')
        for i in I: g(f'v_exp_f32 v{T+2*i}, v{T+2*i}\nv_exp_f32 v{T+2*i+1}, v{T+2*i+1}')
        for i in I: g(f'v_pk_add_f32 v[{T+2*i}:{T+2*i+1}], v[{T+2*i}:{T+2*i+1}], s[62:63]')
        for i in I: g(f'v_rcp_f32 v{T+2*i}, v{T+2*i}\nv_rcp_f32 v{T+2*i+1}, v{T+2*i+1}')
        sp=lambda r: ACS+4*(2*(r>>3)+(r&1))+2*((r>>2)&1)+((r>>1)&1)
        for i in I:
            for r in (2*i,2*i+1): g(f'v_mul_f32 v{ACC+r}, v{ACC+r}, v{sp(r)}')
        for i in I: g(f'v_pk_fma_f32 v[{T+2*i}:{T+2*i+1}], v[{T+2*i}:{T+2*i+1}], v[{ACC+2*i}:{ACC+2*i+1}], v[{XF+2*i}:{XF+2*i+1}]')
        for i in I: g(f'v_cvt_pk_bf16_f32 v{96+i}, v{T+2*i}, v{T+2*i+1}')
        for q in (2*hf,2*hf+1): g(f'ds_write_b64 v{XA[q]}, v[{96+2*q}:{97+2*q}]')
    g('s_waitcnt lgkmcnt(0)\nds_read_b128 v[104:107], v240\nds_read_b128 v[108:111], v240 offset:1024\ns_waitcnt lgkmcnt(1)')
    g(f'buffer_store_dwordx4 v[104:107], v{vXO}, s[72:75], 0 offen {g.opt.get("outfl","")}\ns_waitcnt lgkmcnt(0)\nbuffer_store_dwordx4 v[108:111], v{vXO}, s[72:75], s55 offen {g.opt.get("outfl","")}')
    if role=='m':
        g('s_cmp_eq_u32 s1, 803\ns_cbranch_scc1 L_ep1\nL_noep:')
        ool(g,f'''L_ep1:
        s_waitcnt vmcnt(2)
        L_ep:
        v_xor_b32 v6, s47, v6
        v_xor_b32 v7, s47, v7
        v_xor_b32 v8, s47, v8
        v_xor_b32 v9, s47, v9
        v_or3_b32 v6, v6, v7, v8
        v_or_b32 v6, v6, v9
        v_cmp_ne_u32 vcc, 0, v6
        s_cbranch_vccz L_epok
        s_sleep 8
        buffer_load_dwordx4 v[6:9], v4, s[40:43], 0 offen sc1
        s_waitcnt vmcnt(0)
        s_sub_u32 s56, s56, 1
        s_cbranch_scc0 L_ep
        L_epok:
        v_mov_b32 v3, {EPO}
        s_mov_b64 exec, 1
        buffer_store_dword v2, v3, s[40:43], 0 offen sc1
        s_mov_b64 exec, -1
        s_branch L_noep''')
    g.stamp()

def build(stamps=False, opt=None):
    global vTm0,vTm1
    if (opt or {}).get('merge',0): vTm0,vTm1=241,242
    g=G(stamps,opt); g.miscq=[]; g.outofline=[]
    def sfx(L,x): return [re.sub(r'\b(L_go|L_poll|L_pslow|L_ep0|L_ep1|L_chk|L_uslow|L_allset|L_noep0|L_noep|L_epok|L_ep)\b', r'\1_'+x, l) for l in L]
    entry(g)
    head=list(g.a.l); vm0=list(g.vm); n0=g.nst
    g.a.l=[]; p1_mlp(g); mlp=list(g.a.l)
    oo=g.outofline; g.outofline=[]
    g.a.l=[]; p2(g,'m'); g.dump_stamps(TS_OFF); mlp+=sfx(g.a.l,'m')+['    s_endpgm']; oo+=sfx(g.outofline,'m'); g.outofline=[]
    g.a.l=[]; g.vm=list(vm0); g.nst=n0; g.miscq=[]
    p1_dft(g); dft=list(g.a.l)
    k=[i for i,x in enumerate(dft) if '@@SPLIT@@' in x][0]
    g.a.l=[]; p2(g,'d'); g.dump_stamps(TS_OFF); dft+=sfx(g.a.l,'d'); oo+=sfx(g.outofline,'d')
    km=[i for i,x in enumerate(mlp) if '@@SPLIT@@' in x][0]
    lines=head+mlp[:km]+['    s_branch L_mlp','L_dfte:']+dft[:k]+['    s_branch L_dft','L_mlp:']+mlp[km+1:]+['L_dft:']+dft[k+1:]+['L_end:','    s_endpgm']+oo+['L_codeend:']
    body='\n'.join(hazard.fix(lines))+'\n'
    return wrap([dict(name=KN,body=body,grid=256,block=256,lds=163840,vgpr=512,accum=256)],HDR)
if __name__=='__main__':
    out=sys.argv[1]; st='stamps' in sys.argv[2:]
    opt={}
    for a in sys.argv[2:]:
        if '=' in a:
            k,v=a.split('='); opt[k]=int(v) if v.lstrip('-').isdigit() else v
    open(out,'w').write(build(st,opt))
```

```python
import sys, math, struct, re
sys.path.insert(0,'tools')
from asmlib import A, wrap, KN
import hazard
from gen3 import G, srd, t1_of, f2u, HDR, U_OFF, ST_OFF, CS_REL, TS_OFF, SPIN

F_OFF = 12<<20
F2 = 8192
FU=32768; EPO=40960
A0_REL=(ST_OFF-F_OFF)+(512<<10)
WT_OFF = 14<<20
vB2, vXO = 254, 255
vD=[226+i for i in range(0)]
vDM=[246,247,248,249]
vT=[250,251,252,253]
XR=246
vSG,vH0,vH1,vU,vFL,vPL = 58,59,60,61,62,63
vTT=245
MF='v_mfma_f32_32x32x16_bf16'
OOB='0x40000000'

class Rec:
    def __init__(s): s.l=[]
    def __call__(s,t):
        for x in t.split('\n'):
            x=x.strip()
            if x: s.l.append(x)
def ool(g, text):
    g.outofline+=[x.strip() if x.strip().endswith(':') else '    '+x.strip() for x in text.split('\n') if x.strip()]
def misc(g, n):
    while n>0 and g.miscq:
        x=g.miscq.pop(0); g(x)
        n-= x.count('\n')+1 + (1 if ('v_cos' in x or 'v_sin' in x) else 0)
def epoch_load(g):
    g(f's_add_u32 s60, s28, {F_OFF+EPO}\ns_addc_u32 s61, s29, 0\ns_load_dword s47, s[60:61], 0')
def nonce(g):
    g('s_mul_i32 s47, s47, 0x9e3779b1\ns_add_u32 s47, s47, 0x85ebca6b')

def p2_setup_ops(g, dft):
    r=Rec(); t=lambda i:f'v{1000+i}'
    if g.opt.get('p2arr',84)==48:
        r('''s_and_b32 s70, s31, 7
        s_lshr_b32 s0, s31, 4
        s_lshl_b32 s1, s30, 1
        s_add_u32 s45, s0, s1
        s_bfe_u32 s1, s31, 0x10003''')
    else:
        r('''s_and_b32 s70, s30, 1
        s_lshl_b32 s70, s70, 2
        s_lshr_b32 s0, s31, 2
        s_add_u32 s0, s0, s31
        s_and_b32 s0, s0, 3
        s_add_u32 s70, s70, s0
        s_lshr_b32 s45, s30, 1
        s_lshl_b32 s45, s45, 2
        s_lshr_b32 s0, s31, 3
        s_add_u32 s45, s45, s0
        s_bfe_u32 s1, s31, 0x10002''')
    r.l.append('s_sub_u32 s0, 32, s45\ns_cmp_eq_u32 s45, 0\ns_cselect_b32 s0, 16, s0\ns_cmp_eq_u32 s1, 0\ns_cselect_b32 s71, s45, s0')
    wr=g.opt.get('wrot',3)
    if wr==0: r('s_mov_b32 s44, 0')
    elif wr==1: r('s_mul_i32 s44, s30, 7\ns_lshr_b32 s44, s44, 2')
    elif wr==3: r('s_lshr_b32 s44, s31, 2\ns_mul_i32 s44, s44, 7\ns_lshr_b32 s44, s44, 2')
    elif wr==5: r('s_lshr_b32 s44, s31, 2\ns_max_u32 s44, s44, 1\ns_sub_u32 s44, s44, 1\ns_lshl_b32 s44, s44, 1')
    elif wr==4: r('s_lshr_b32 s44, s31, 3\ns_mul_i32 s44, s44, 7\ns_lshr_b32 s44, s44, 1')
    elif wr==2: r('s_lshr_b32 s44, s30, 1\ns_mul_i32 s44, s44, 7\ns_lshr_b32 s44, s44, 1')
    ho={0:None,1:(1,7),2:(1,4),3:(3,3),4:(3,1),5:(1,2)}[g.opt.get('hoff',0)]
    if ho:
        r.l.append(f's_and_b32 s0, s70, {ho[0]}\ns_mul_i32 s0, s0, {ho[1]}\ns_add_u32 s44, s44, s0\ns_cmp_ge_u32 s44, 14\ns_cselect_b32 s0, 14, 0\ns_sub_u32 s44, s44, s0'.replace('{ho[0]}',str(ho[0])) )
    r(f'''s_lshl_b32 s68, s44, 15
    s_lshl_b32 s69, s3, 13
    v_lshrrev_b32 {t(4)}, 3, v0
    v_bfe_u32 {t(5)}, v0, 4, 1
    v_lshlrev_b32 {t(6)}, 2, {t(5)}
    v_and_b32 {t(7)}, 7, v0
    v_xor_b32 {t(6)}, {t(6)}, {t(7)}
    v_lshlrev_b32 {t(6)}, 4, {t(6)}
    v_lshl_add_u32 {t(6)}, {t(4)}, 10, {t(6)}
    s_mul_i32 s0, s3, {448*1024}
    s_lshl_b32 s1, s70, 7
    s_add_u32 s0, s0, s1
    v_add_u32 v{vDM[0]}, s0, {t(6)}
    v_add_u32 v{vDM[1]}, {7168}, v{vDM[0]}
    v_add_u32 v{vDM[2]}, {2*7168}, v{vDM[0]}
    v_add_u32 v{vDM[3]}, {3*7168}, v{vDM[0]}''')
    srd(r,64,20,1792*512*2)
    early=r.l; r=Rec()
    srd(r,72,22,1024); srd(r,76,4,2097152)
    r(f'''v_lshrrev_b32 {t(4)}, 5, v0
    v_bfe_u32 {t(5)}, v0, 4, 1
    v_bfe_u32 {t(6)}, v0, 2, 2
    v_lshl_add_u32 {t(7)}, {t(4)}, 2, {t(6)}
    v_lshlrev_b32 {t(7)}, 7, {t(7)}
    v_lshrrev_b32 {t(6)}, 1, {t(6)}
    s_and_b32 s0, s3, 1
    v_xor_b32 {t(6)}, s0, {t(6)}
    v_lshl_add_u32 {t(7)}, {t(6)}, 6, {t(7)}
    v_lshl_add_u32 {t(7)}, {t(5)}, 5, {t(7)}
    v_and_b32 {t(6)}, 3, v0
    v_lshl_add_u32 {t(7)}, {t(6)}, 3, {t(7)}
    v_add_u32 v{vT[0]}, s69, {t(7)}
    v_xor_b32 v{vT[1]}, 64, v{vT[0]}
    v_add_u32 v{vT[2]}, 0x18000, v{vT[0]}
    v_add_u32 v{vT[3]}, 0x18000, v{vT[1]}
    s_lshl_b32 s0, s30, 9
    s_add_u32 s0, s0, {FU}
    v_and_b32 {t(7)}, 31, v0
    v_lshl_add_u32 v{vFL}, {t(7)}, 2, s0
    s_lshl_b32 s0, s45, 1
    s_and_b32 s1, s30, 1
    s_add_u32 s0, s0, s1
    s_lshl_b32 s0, s0, 2
    s_add_u32 s0, s0, s3
    s_lshl_b32 s0, s0, 8
    v_and_b32 {t(6)}, 3, v0
    v_lshl_add_u32 v{vPL}, {t(6)}, 2, s0
    s_lshr_b32 s1, s3, 1
    s_lshl_b32 s0, s1, 10
    v_lshl_add_u32 v{vH0}, v0, 4, s0
    v_xor_b32 v{vH1}, 0x400, v{vH0}
    s_lshl_b32 s0, s1, 5
    v_and_b32 {t(6)}, 31, v0
    v_add_u32 {t(5)}, s0, {t(6)}
    v_lshlrev_b32 {t(5)}, 5, {t(5)}
    v_add_u32 v{vTT}, s71, {t(5)}
    s_lshl_b32 s0, s0, 15
    s_lshl_b32 s1, s71, 10
    s_add_u32 s1, s1, s0
    v_lshrrev_b32 {t(5)}, 2, v0
    v_lshlrev_b32 {t(5)}, 15, {t(5)}
    v_lshrrev_b32 {t(7)}, 4, v0
    v_xor_b32 {t(7)}, {t(7)}, v0
    v_and_b32 {t(7)}, 3, {t(7)}
    v_lshl_add_u32 {t(5)}, {t(7)}, 4, {t(5)}
    v_add_u32 {t(5)}, s1, {t(5)}
    s_lshl_b32 s0, s70, 7
    s_and_b32 s1, s3, 1
    s_lshl_b32 s1, s1, 6
    s_add_u32 s0, s0, s1
    v_add_u32 v{vXO}, s0, {t(5)}
    v_lshl_add_u32 v{vB2}, {t(6)}, 1, s0
    s_lshr_b32 s0, s0, 1
    v_and_b32 {t(5)}, 20, v0
    v_bfe_u32 {t(7)}, v0, 1, 1
    v_lshl_add_u32 {t(5)}, {t(7)}, 3, {t(5)}
    v_and_b32 {t(7)}, 1, v0
    v_lshl_add_u32 {t(5)}, {t(7)}, 1, {t(5)}
    v_bfe_u32 {t(7)}, v0, 3, 1
    v_add3_u32 {t(6)}, {t(5)}, {t(7)}, s0''')
    r.l.append('s_cmp_lt_u32 s70, 4\ns_cselect_b32 s0, 0, -1\ns_cselect_b32 s1, 0, 513')
    r(f'''v_xor_b32 {t(7)}, s0, {t(6)}
    v_add_u32 {t(7)}, s1, {t(7)}
    v_and_b32 {t(8)}, 1, {t(7)}
    v_lshlrev_b32 {t(8)}, 11, {t(8)}
    v_bfe_u32 {t(7)}, {t(7)}, 1, 7
    v_lshl_add_u32 {t(7)}, {t(7)}, 4, {t(8)}
    v_lshl_add_u32 {t(7)}, {t(4)}, 12, {t(7)}
    v_or_b32 {t(8)}, 0x200000, {t(7)}
    v_cmp_eq_u32 vcc, 0, {t(6)}
    s_nop 0
    v_cndmask_b32 v{vU}, {t(7)}, {t(8)}, vcc
    v_mov_b32 {t(8)}, {OOB}''')
    if True:
        r.l.append(f's_cmp_eq_u32 s3, 0\ns_cselect_b32 s0, s46, {OOB}')
        if dft:
            r(f'''v_cmp_gt_u32 vcc, 8, v0
            v_lshl_add_u32 {t(10)}, v0, 9, s0
            s_nop 0
            v_cndmask_b32 v{vSG}, {t(8)}, {t(10)}, vcc''')
        else:
            r(f'''v_lshrrev_b32 {t(5)}, 1, v0
            v_mul_u32_u24 {t(6)}, 7, {t(5)}
            v_lshrrev_b32 {t(6)}, 1, {t(6)}
            v_sub_u32 {t(6)}, s49, {t(6)}
            v_and_b32 {t(7)}, 1, v0
            v_lshl_add_u32 {t(7)}, {t(7)}, 2, {t(5)}
            v_cmp_gt_u32 vcc, 4, {t(6)}
            v_lshlrev_b32 {t(7)}, 8, {t(7)}
            v_lshl_add_u32 {t(7)}, {t(6)}, 2, {t(7)}
            v_add_u32 {t(10)}, s0, {t(7)}
            v_cndmask_b32 {t(10)}, {t(8)}, {t(10)}, vcc
            v_cmp_gt_u32 vcc, 8, v0
            s_nop 1
            v_cndmask_b32 v{vSG}, {t(8)}, {t(10)}, vcc''')
    else: r(f'v_mov_b32 v{vSG}, {t(8)}')
    return early, r.l, []
def trig_ops(fract=True, TMX=None):
    r=Rec(); t=lambda i:f'v{1000+i}'
    r.l.append(f's_cmp_lt_u32 s70, 4\ns_cselect_b32 s0, 0, 0x80000000')
    r(f'''s_or_b32 s0, s0, {f2u(1/2048):#x}
    v_mov_b32 {t(5)}, v{vTT}
    v_lshrrev_b32 {t(6)}, 5, v0
    v_cvt_f32_u32 {t(5)}, {t(5)}
    v_cvt_f32_u32 {t(6)}, {t(6)}
    v_mul_f32 {t(5)}, s0, {t(5)}
    v_cmp_gt_u32 s[0:1], 32, v0
    v_mul_f32 {t(6)}, {t(6)}, {t(5)}
    v_mul_f32 {t(7)}, {f2u(32.0):#x}, {t(5)}
    v_add_f32 {t(5)}, {t(5)}, {t(5)}
    v_mul_f32 {t(9)}, 0.5, {t(7)}
    v_cndmask_b32 {t(9)}, {t(7)}, {t(9)}, s[0:1]''')
    for j in range(8):
        if j: r(f'v_add_f32 {t(6)}, {t(6)}, {t(5)}')
        if fract:
            r(f'''v_add_f32 {t(1)}, {t(6)}, {t(7)}
            v_sub_f32 {t(2)}, {t(9) if j==0 else t(7)}, {t(6)}
            v_fract_f32 {t(0)}, {t(6)}
            v_add_f32 {t(3)}, {t(2)}, {t(7)}
            v_fract_f32 {t(1)}, {t(1)}
            v_fract_f32 {t(2)}, {t(2)}
            v_fract_f32 {t(3)}, {t(3)}''')
        else:
            r(f'''v_add_f32 {t(1)}, {t(6)}, {t(7)}
            v_sub_f32 {t(2)}, {t(9) if j==0 else t(7)}, {t(6)}
            v_add_f32 {t(3)}, {t(2)}, {t(7)}''')
        for i in range(4):
            a_=t(i) if (fract or i) else t(6)
            r(f'v_cos_f32 {t(12+2*i)}, {a_}\nv_sin_f32 {t(13+2*i)}, {a_}')
        for i in range(4): r(f'v_cvt_pk_bf16_f32 {t(20+i)}, {t(12+2*i)}, {t(13+2*i)}')
        for i in range(4): r(f'v_accvgpr_write_b32 a{224+4*j+i}, {t(20+i)}')
    TM={0:4,1:5,2:6,3:7,5:13,6:14,7:15,9:8}
    TM.update({12+i:128+i for i in range(8)}); TM.update({20+i:232+i for i in range(4)})
    return remap(r.l,TMX or TM)
def remap(L, TM):
    return [re.sub(r'v(10\d\d)\b', lambda m:'v%d'%TM[int(m.group(1))-1000], x) for x in L]
def xb2_ops(g):
    def o0(): g.vmem(f'buffer_load_ushort v{vB2}, v{vB2}, s[72:75], 0 offen','b2')
    return [o0]
def ppos(pr):
    p=pr%10
    return 131072+p*4096 if p<2 else ((p-2)>>1)*32768+(p&1)*4096
def w2_pair_ops(g, pr, base='s69', lds=None):
    if lds is None: lds=ppos(pr)
    def mk(i):
        def op():
            if i==0: g(f's_add_u32 m0, {base}, {lds}')
            g.vmem(f'buffer_load_dwordx4 v{vDM[i]}, s[64:67], s68 offen offset:{1024*i} lds', f'w{pr}')
            if i==3 and pr<13: g(f's_add_u32 s68, s68, 32768\ns_cmp_eq_u32 s68, {14*32768}\ns_cselect_b32 s68, 0, s68')
        return op
    return [mk(i) for i in range(4)]
def w2_trl(pr, regs=None, off=None):
    if regs is None:
        off=ppos(pr)
        if off>=65536 and off<0x18000: regs=('hi',);
        if off<65536: regs=vT[0:2]
        elif off>=0x18000: regs=vT[2:4]; off-=0x18000
        else: regs=[vTm0,vTm1]; off-=65536
    L=[]
    for k in range(2):
        for a_ in range(2):
            for q in range(2):
                r=8*(2*pr+k)+4*a_+2*q
                L.append(f'ds_read_b64_tr_b16 a[{r}:{r+1}], v{regs[a_]} offset:{off+2048*k+1024*q}')
    return L
vJ=[[241,242],[243,244]]
vTm0,vTm1=14,15

def entry(g):
    g('''s_cmp_ge_u32 s2, 256
    s_cbranch_scc1 L_end''')
    g.stamp()
    g('''s_load_dwordx16 s[4:19], s[0:1], 0
    s_load_dwordx8 s[20:27], s[0:1], 64
    s_load_dwordx2 s[28:29], s[0:1], 96
    v_lshrrev_b32 v1, 6, v0
    s_and_b32 s30, s2, 7
    s_lshr_b32 s31, s2, 3
    v_readfirstlane_b32 s3, v1''')
    if g.opt.get('codepf',1):
        g(f'''s_getpc_b64 s[50:51]
        L_pc:
        s_mul_i32 s53, s31, 1280
        v_lshl_add_u32 v2, v0, 3, s53
        v_min_u32 v2, L_codeend-L_pc-4, v2
        v_mov_b32 v3, s51
        v_add_co_u32 v2, vcc, s50, v2
        v_addc_co_u32 v3, vcc, 0, v3, vcc''')
        g.vmem('global_load_dword v1, v[2:3], off','pf')
    if g.opt.get('p1arr',48)==216:
        g('''v_and_b32 v0, 63, v0
        s_lshl_b32 s48, s30, 1
        s_and_b32 s53, s31, 1
        s_cmp_lt_u32 s31, 4
        s_cbranch_scc1 L_dft0
        s_add_u32 s48, s48, s53
        s_lshr_b32 s49, s31, 1
        s_sub_u32 s49, s49, 2
        s_mov_b32 s100, s53''')
        r=g.opt.get('rot',4)
        if r==1: g('s_lshl_b32 s56, s53, 2\ns_add_u32 s56, s56, s49\ns_and_b32 s56, s56, 7')
        elif r==2: g('s_add_u32 s56, s53, s49\ns_and_b32 s56, s56, 1\ns_lshl_b32 s56, s56, 2')
        elif r==4: g('s_lshl_b32 s56, s53, 1\ns_add_u32 s56, s56, s49\ns_and_b32 s56, s56, 3\ns_lshl_b32 s56, s56, 1')
        if g.opt.get('xph',0): g('s_add_u32 s56, s56, s30\ns_and_b32 s56, s56, 7')
        return
    rot=g.opt.get('rot',4)
    g('''v_and_b32 v0, 63, v0
    s_lshr_b32 s48, s30, 1
    s_lshl_b32 s55, s48, 1
    s_lshl_b32 s48, s48, 2
    s_and_b32 s100, s31, 3
    s_add_u32 s48, s48, s100
    s_lshr_b32 s49, s31, 2
    s_sub_u32 s49, s49, 1
    s_and_b32 s49, s49, 7''') if g.opt.get('dftfirst',1) else g('''v_and_b32 v0, 63, v0
    s_lshr_b32 s48, s30, 1
    s_lshl_b32 s55, s48, 1
    s_lshl_b32 s48, s48, 2
    s_lshr_b32 s100, s31, 3
    s_add_u32 s48, s48, s100
    s_and_b32 s49, s31, 7''')
    if rot==1:   g('s_lshl_b32 s56, s100, 1\ns_add_u32 s56, s56, s49\ns_and_b32 s56, s56, 7')
    elif rot==2: g('s_add_u32 s56, s100, s49\ns_and_b32 s56, s56, 1\ns_lshl_b32 s56, s56, 2')
    elif rot==4: g('s_add_u32 s56, s100, s49\ns_and_b32 s56, s56, 3\ns_lshl_b32 s56, s56, 1')
    elif rot==0: g('s_mov_b32 s56, 0')
    if g.opt.get('xph',0): g('s_add_u32 s56, s56, s55\ns_and_b32 s56, s56, 7')
    g('''s_and_b32 s53, s30, 1
    s_cmp_eq_u32 s49, 7
    s_cbranch_scc1 L_dfte''')

def p1_mlp(g):
    ACC=64
    vX=[2,3,4,5]; vW=[6,7,8,9]; vB=[10,11,12,13]; vA=[18,19]
    vSA,vCA,vCP,vCB=14,15,16,17
    vB1=[56,57]; CSA=164; SEL=168; GA=144; GF=160
    WP=200; vP0,vP1,vPT,vPS,vPF=208,209,210,211,212
    rot=g.opt.get('rot',4)
    A216=g.opt.get('p1arr',48)==216
    if A216:
        g('s_and_b32 s50, s3, 1\ns_lshr_b32 s51, s3, 1\ns_and_b32 s53, s49, 1')
    else:
        g('''s_mul_i32 s54, s53, 7
        s_add_u32 s49, s49, s54
        s_and_b32 s50, s3, 1
        s_lshr_b32 s51, s3, 1''')
    g('s_lshl_b32 s63, s48, 1\ns_add_u32 s63, s63, s53')
    t1_of(g,'s52','s48','s51','s53')
    g(f'''v_lshrrev_b32 v24, 3, v0
    v_lshrrev_b32 v25, 4, v0
    v_and_b32 v28, 7, v0
    v_xor_b32 v26, v28, v25
    v_lshlrev_b32 v26, 4, v26
    v_lshl_add_u32 v26, v24, 15, v26
    s_lshl_b32 s53, s52, 10
    s_lshl_b32 s54, s50, 20
    s_add_u32 s53, s53, s54
    v_add_u32 v{vX[0]}, s53, v26
    v_xor_b32 v27, 64, v{vX[0]}
    v_add_u32 v{vX[1]}, {262144-1024}, v27
    v_add_u32 v{vX[2]}, {2*(262144-1024)}, v{vX[0]}
    v_add_u32 v{vX[3]}, {3*(262144-1024)}, v27
    v_and_b32 v26, 15, v0
    v_lshlrev_b32 v27, 2, v25
    v_xor_b32 v26, v26, v27
    v_lshlrev_b32 v26, 4, v26
    v_mul_u32_u24 v29, 3584, v25
    v_add_u32 v26, v26, v29
    s_mul_i32 s53, s3, 57344
    s_lshl_b32 s54, s49, 8
    s_add_u32 s53, s53, s54
    v_add_u32 v{vW[0]}, s53, v26
    v_add_u32 v{vW[1]}, 13312, v{vW[0]}
    v_add_u32 v{vW[2]}, {2*13312}, v{vW[0]}
    v_add_u32 v{vW[3]}, {3*13312}, v{vW[0]}
    s_lshl_b32 s55, s3, 12''')
    g.stamp('pro')
    g('s_waitcnt lgkmcnt(0)')
    g.stamp('pro')
    srd(g,32,4,2097152); srd(g,36,16,512*1792*2)
    def stage_ops(st):
        slot=st&3
        def mk(i):
            def op():
                if i==0: g(f's_lshl_b32 s57, s56, 7\ns_mul_i32 s58, s56, 229376\ns_add_u32 m0, s55, {slot*32768}')
                if i==4: g(f's_add_u32 m0, s55, {slot*32768+16384}\ns_add_u32 s56, s56, 1\ns_and_b32 s56, s56, 7')
                if i<4: g.vmem(f'buffer_load_dwordx4 v{vX[i]}, s[32:35], s57 offen offset:{1024*i} lds',f's{st}')
                else:   g.vmem(f'buffer_load_dwordx4 v{vW[i-4]}, s[36:39], s58 offen offset:{1024*(i-4)} lds',f's{st}')
            return op
        return [mk(i) for i in range(8)]
    D=g.opt.get('depth',3)
    for op in stage_ops(0): op()
    g.stamp('pro')
    for op in stage_ops(1): op()
    g('@@SPLIT@@')
    g.stamp('pro')
    epoch_load(g)
    g(f'''s_lshl_b32 s46, s48, 11
    v_and_b32 v24, 31, v0
    v_lshrrev_b32 v25, 5, v0
    v_bfe_u32 v26, v0, 1, 3
    v_xor_b32 v26, v26, v25
    s_lshl_b32 s53, s51, 13
    v_lshlrev_b32 v27, 7, v24
    v_add_u32 v27, s53, v27''')
    for kk in range(4):
        g(f'''v_xor_b32 v28, {2*kk}, v26
        v_lshl_add_u32 v{vB[kk]}, v28, 4, v27''')
    g(f'''v_bfe_u32 v26, v0, 2, 2
    v_lshl_add_u32 v27, v25, 3, v26
    v_lshlrev_b32 v27, 8, v27
    s_lshl_b32 s53, s50, 1
    s_add_u32 s53, s53, s51
    v_xor_b32 v26, s53, v26
    v_lshl_add_u32 v27, v26, 6, v27
    v_bfe_u32 v26, v0, 4, 1
    v_and_b32 v28, 3, v0
    v_lshlrev_b32 v30, 3, v28
    v_lshl_add_u32 v30, v26, 5, v30
    s_movk_i32 s59, 0x4000
    v_add3_u32 v{vA[0]}, v27, v30, s59
    v_xor_b32 v{vA[1]}, 64, v{vA[0]}
    v_bfe_u32 v27, v0, 2, 1
    v_xor_b32 v26, v26, v27
    v_or_b32 v26, v26, v28
    v_mov_b32 v27, 0x3f803f80
    v_cmp_eq_u32 vcc, 0, v26
    s_lshl_b32 s53, s53, 5
    v_add_u32 v26, s53, v24
    v_cndmask_b32 v{SEL+4}, 0, v27, vcc
    s_lshl_b32 s54, s49, 7
    v_add_lshl_u32 v{vB1[0]}, v26, s54, 1
    v_xor_b32 v{vB1[1]}, 64, v{vB1[0]}''')
    srd(g,40,18,1792*2)
    for t in range(2): g.vmem(f'buffer_load_ushort v{vB1[t]}, v{vB1[t]}, s[40:43], 0 offen','b1')
    if A216:
        g(f'''s_lshl_b32 s53, s49, 3
        s_lshr_b32 s54, s48, 1
        s_add_u32 s53, s53, s54
        s_lshl_b32 s53, s53, 11
        s_add_u32 s53, s53, {CS_REL+(ST_OFF-F_OFF)}
        v_lshl_add_u32 v{vCA}, v26, 4, s53
        s_lshl_b32 s54, s100, 3
        v_add_u32 v{vCP}, s54, v{vCA}
        v_xor_b32 v{vCB}, 0x200, v{vCA}''')
    else: g(f'''s_lshl_b32 s53, s49, 2
    s_lshr_b32 s54, s48, 2
    s_add_u32 s53, s53, s54
    s_lshl_b32 s53, s53, 12
    s_add_u32 s53, s53, {CS_REL+(ST_OFF-F_OFF)}
    v_lshl_add_u32 v26, v26, 5, s53
    s_lshl_b32 s54, s100, 3
    v_add_u32 v{vCP}, s54, v26
    v_lshl_add_u32 v{vCA}, v25, 4, v26
    v_xor_b32 v{vCB}, 0x400, v{vCA}''')
    g(f'''
    s_lshl_b32 s53, s63, 11
    s_lshl_b32 s54, s51, 10
    s_add_u32 s53, s53, s54
    s_add_u32 s53, s53, {ST_OFF-F_OFF}
    v_lshl_add_u32 v{vSA}, v24, 4, s53
''')
    srd(g,40,28,4<<20,add=F_OFF)
    g.stamp('pro')
    WS0=g.opt.get('wsched','o')
    if D==3 and WS0!='y':
        for op in stage_ops(2): op()
    g.stamp('pro')
    g('s_waitcnt lgkmcnt(0)')
    early,addr,trig=p2_setup_ops(g,False)
    TM={i:176+i for i in range(24)}
    early,addr,trig=[remap(x,TM) for x in (early,addr,trig)]
    vBh=[200,201,202,203]; vAh=[204,205]
    g.miscq=[f'v_add_u32 v{h}, 0x10000, v{l}' for h,l in zip(vBh+vAh,vB+vA)]+early+addr+trig
    def fr(s_):
        b=[32,128][s_]
        return dict(A=[b,b+4],B=[b+8,b+12])
    def rd(n):
        st,kk=n>>2,n&3
        f=fr(n&1); o=(st&1)*32768; hi=(st>>1)&1
        tr=lambda t,q: f'ds_read_b64_tr_b16 v[{f["A"][t]+2*q}:{f["A"][t]+2*q+1}], v{[vA,vAh][hi][t]} offset:{o+4096*kk+1024*q}'
        bb=lambda u: f'ds_read_b128 v[{f["B"][u]}:{f["B"][u]+3}], v{[vB,vBh][hi][kk]} offset:{o+4096*u}'
        return [tr(0,0),tr(0,1),bb(0),bb(1),tr(1,0),tr(1,1)]
    ncs = 4 if A216 else {1:2,4:2,2:4,0:8}[rot]
    def setsel(st):
        if ncs==2 or A216: cond=None
        elif ncs==4: cond=f's_lshr_b32 s53, s100, 1\ns_cmp_eq_u32 s53, {st>>1}'
        else: cond=f's_cmp_eq_u32 s100, {st>>1}'
        if cond is None:
            for i in range(4): g(f'v_mov_b32 v{SEL+i}, v{SEL+4}')
        else:
            g(cond+'\ns_cselect_b32 s53, -1, 0')
            for i in range(4): g(f'v_and_b32 v{SEL+i}, s53, v{SEL+4}')
    def gather_ops():
        def mk(r,v,off):
            def o(): g.vmem(f'buffer_load_dwordx4 v[{r}:{r+3}], v{v}, s[40:43], 0 offen offset:{off} sc1','ga')
            return o
        return [mk(GA,vSA,0),mk(GA+4,vSA,512),mk(GA+8,vCA,0),mk(GA+12,vCB,0)]
    def publish():
        g(f'v_mov_b32 v{CSA+1}, s47')
        g.vmem(f'buffer_store_dwordx2 v[{CSA}:{CSA+1}], v{vCP}, s[40:43], 0 offen sc1','csp')
    WPS=g.opt.get('wpstage',1)
    WSCHED={'a':{2:[0],3:[1],5:[2,3],6:[4],7:[5,6]},'b':{3:[0],4:[1],5:[2],6:[3,4],7:[5]},'c':{5:[0,1],6:[2],7:[3,4]},'d':{1:[0],2:[1],5:[2,3],6:[4,5],7:[6]},'e':{5:[0,1],6:[2,3],7:[4,5]},'f':{4:[0],5:[1],6:[2,3],7:[4,5]},'g':{5:[0],6:[1],7:[2,3]},'h':{4:[0,1],7:[2,3,4]},'i':{4:[0,1],7:[2,3]},'j':{4:[0,1]},'k':{3:[0,1],6:[2,3],7:[4,5]},'l':{4:[0,1],6:[2],7:[3,4]},'m':{1:[(0,0)],2:[(0,1)],3:[(1,0)],4:[(1,1)],5:[2,3],6:[4,5],7:[6]},'n':{1:[(0,0)],2:[(0,1)],3:[(1,0)],4:[(1,1)],6:[2,3],7:[4,5]},'o':{1:[0],2:[1],5:[2,3],6:[4,5],7:[6,7]},'p':{5:[0,1],7:[2]},'q':{5:[0,1]},'r':{5:[0,1],6:[2]},'s':{5:[0,1],7:[2,3]},'t':{5:[0,1],6:[2],7:[3]},'u':{1:[0,1],5:[2,3],6:[4,5],7:[6,7]},'v':{0:[0,1],5:[2,3],6:[4,5],7:[6,7]},'w':{2:[0,1],5:[2,3],6:[4,5],7:[6,7]},'x':{-1:[0,1],5:[2,3],6:[4,5],7:[6,7]},'y':{-2:[0,1],5:[2,3],6:[4,5],7:[6,7]}}[g.opt.get('wsched','o')]
    half={}
    prevtr=[0]
    NTL=g.opt.get('ntl',5)
    TRL={n:(i>>1,i&1) for i,n in enumerate([20,21,22,23,26,27,28,29,30,31][:2*NTL])}
    MX=g.opt.get('mx',5)
    nw=len(set((p[0] if isinstance(p,tuple) else p) for x in WSCHED.values() for p in x))
    def enter(st):
        g.flush_side()
        g.wait(f's{st}')
        g('s_barrier')
        g.stamp('st')
        if st+D<8: g.sideq+=stage_ops(st+D)
        if st==max(ncs,g.opt.get('pubst',4)) and ncs<8: g.sideq.append(publish)
        if st==6: g.miscq+=hr.l
        if st in WSCHED and st<6:
            while len(g.miscq)>len(trig)+len(addr): misc(g,1)
        if st==g.opt.get('gast',7) and not g.opt.get('galast'): g.sideq+=gather_ops()
        for pr in WSCHED.get(st,[]):
            if isinstance(pr,tuple):
                if pr[1]==0: half[pr[0]]=w2_pair_ops(g,pr[0])
                ops=half[pr[0]][2*pr[1]:2*pr[1]+2]
                if pr[1]==1: ops=[lambda p=pr[0],o=ops[0]:(g(f's_add_u32 m0, s69, {ppos(p)}'),o())]+ops[1:]
                g.sideq+=ops
            else: g.sideq+=w2_pair_ops(g,pr)
        if st==g.opt.get('gast',7) and g.opt.get('galast'): g.sideq+=gather_ops()
    if WS0 in 'xy':
        while len(g.miscq)>len(trig)+len(addr): misc(g,1)
        for op in w2_pair_ops(g,0)+w2_pair_ops(g,1): op()
        if WS0=='y':
            for op in stage_ops(2): op()
    hr=Rec()
    srd(hr,36,28,7340032)
    hr('''s_mul_i32 s53, s52, 112
    s_lshl_b32 s54, s49, 3
    s_add_u32 s53, s53, s54
    s_lshl_b32 s54, s50, 2
    s_add_u32 s53, s53, s54
    s_lshl_b32 s53, s53, 11
    s_lshl_b32 s54, s51, 12
    s_add_u32 s60, s53, s54
    s_xor_b32 s61, s60, 0x400
    s_xor_b32 s62, s60, 0x1000
    s_xor_b32 s63, s60, 0x1400
''')
    nonce(g); setsel(0)
    enter(0); g.stamp(); g.stamp('pro')
    for x in rd(0): g(x)
    for n in range(32):
        st,kk=n>>2,n&3
        f=fr(n&1)
        def mf(t,u):
            d=ACC+16*(2*t+u)
            g(f'{MF} v[{d}:{d+15}], v[{f["A"][t]}:{f["A"][t]+3}], v[{f["B"][u]}:{f["B"][u]+3}], '+(f'v[{d}:{d+15}]' if n else '0'))
        nx = rd(n+1) if n<31 else []
        xt=prevtr[0]; prevtr[0]=0
        if kk==3:
            g(f's_waitcnt lgkmcnt({xt})'); mf(0,0)
            if st<7: enter(st+1)
            else: g.flush_side(); g('s_barrier')
            for x in nx[:3]: g(x)
            mf(0,1)
            for x in nx[3:]: g(x)
            mf(1,0)
        else:
            g(f's_waitcnt lgkmcnt({3+xt})'); mf(0,0)
            for x in nx[:3]: g(x)
            g(f's_waitcnt lgkmcnt({5+xt})'); mf(0,1)
            for x in nx[3:]: g(x)
            g(f's_waitcnt lgkmcnt({6+xt})'); mf(1,0)
        if n in TRL:
            pr,h=TRL[n]
            if h==0: g.wait(f'w{pr}')
            for x in w2_trl(pr)[4*h:4*h+4]: g(x)
            prevtr[0]=4
        else:
            had=bool(g.sideq); g.side(); misc(g, 2 if had else MX)
        if st<ncs:
            g(f'v_mfma_f32_16x16x32_bf16 v[{CSA}:{CSA+3}], v[{SEL}:{SEL+3}], v[{f["A"][0]}:{f["A"][0]+3}], '+(f'v[{CSA}:{CSA+3}]' if n else '0'))
        mf(1,1)
        had=bool(g.sideq); g.side(2 if (len(g.sideq)>2*(3-kk)+1 or n in TRL) else 1); misc(g,2 if had else MX)
        if kk==3 and st+1<ncs and (st+1)%2==0: setsel(st+1)
    if ncs==8: publish()
    g.flush_side(); misc(g,9999)
    g.stamp(); g.stamp('st'); g.stamp('tail')
    g.wait('ga')
    g(f'''s_mov_b32 s56, {SPIN}
    L_gchk:
    v_xor_b32 v24, s47, v{GA+3}
    v_xor_b32 v25, s47, v{GA+7}
    v_xor_b32 v26, s47, v{GA+9}
    v_xor_b32 v27, s47, v{GA+11}
    v_xor_b32 v28, s47, v{GA+13}
    v_xor_b32 v29, s47, v{GA+15}
    v_or3_b32 v24, v24, v25, v26
    v_or3_b32 v27, v27, v28, v29
    v_or_b32 v24, v24, v27
    v_cmp_ne_u32 vcc, 0, v24
    s_cbranch_vccnz L_gslow
    L_gok:''')
    keep=list(g.vm); main=g.a.l; g.a.l=[]
    g('L_gslow:\ns_sleep 8')
    for op in gather_ops(): op()
    g('s_waitcnt vmcnt(0)\ns_sub_u32 s56, s56, 1\ns_cbranch_scc0 L_gchk\ns_branch L_gok')
    g.outofline+=g.a.l; g.a.l=main; g.vm=keep
    NG=g.opt.get('ng',10)
    assert NG<=10+NTL
    g('s_waitcnt lgkmcnt(0)')
    for pr in range(nw,NG): g.sideq+=w2_pair_ops(g,pr)
    a0,a1=GA+8,GA+12
    c0=-2*math.sqrt(2/math.pi)*math.log2(math.e); c1=c0*0.044715
    g(f'''v_add_f32 v{a0}, v{a0}, v{a0+2}
    v_add_f32 v{a1}, v{a1}, v{a1+2}
    v_rcp_f32 v24, v{GA+2}
    v_mov_b32 v{a0+1}, v{a0}
    v_mov_b32 v{a1+1}, v{a1}
    v_rcp_f32 v26, v{GA+6}
    v_cmp_gt_u32 vcc, 32, v0
    v_permlane32_swap_b32 v{a0}, v{a0+1}
    v_permlane32_swap_b32 v{a1}, v{a1+1}
    v_mov_b32 v50, v{GA+2}
    v_mov_b32 v54, v{GA+6}
    {'v_mov_b32' if A216 else 'v_add_f32'} v{a0+2}, v{a0}{'' if A216 else f', v{a0+1}'}
    {'v_mov_b32' if A216 else 'v_add_f32'} v{a1+2}, v{a1}{'' if A216 else f', v{a1+1}'}
    v_mov_b32 v{GA+2}, v{GA}
    v_mov_b32 v{GA+6}, v{GA+4}
    v_cvt_pk_bf16_f32 v{a0}, v{a0+2}, v{a0+2}
    v_cvt_pk_bf16_f32 v{a1}, v{a1+2}, v{a1+2}
    v_lshl_or_b32 v{a0+1}, v{vB1[0]}, 16, v{vB1[0]}
    v_lshl_or_b32 v{a1+1}, v{vB1[1]}, 16, v{vB1[1]}
    v_lshlrev_b32 v{a0+3}, 16, v{a0}
    v_lshlrev_b32 v{a1+3}, 16, v{a1}
    v_cndmask_b32 v{a0}, 0, v{a0}, vcc
    v_cndmask_b32 v{a1}, 0, v{a1}, vcc
    v_sub_f32 v{a0+2}, v{a0+2}, v{a0+3}
    v_sub_f32 v{a1+2}, v{a1+2}, v{a1+3}
    v_cndmask_b32 v{a0+1}, 0, v{a0+1}, vcc
    v_cndmask_b32 v{a1+1}, 0, v{a1+1}, vcc
    v_cvt_pk_bf16_f32 v{a0+2}, v{a0+2}, 0
    v_cvt_pk_bf16_f32 v{a1+2}, v{a1+2}, 0
    v_mov_b32 v{a0+3}, 0
    v_mov_b32 v{a1+3}, 0
    v_cndmask_b32 v{a0+2}, 0, v{a0+2}, vcc
    v_cndmask_b32 v{a1+2}, 0, v{a1+2}, vcc
    v_mov_b32 v{GA+3}, 0
    v_mov_b32 v{GA+7}, 0''')
    Aex=[a0,a1]; Bex=[GA,GA+4]
    for t in range(2):
        for u in range(2):
            d=ACC+16*(2*t+u)
            g(f'{MF} v[{d}:{d+15}], v[{Aex[t]}:{Aex[t]+3}], v[{Bex[u]}:{Bex[u]+3}], v[{d}:{d+15}]')
    g(f'''v_mul_f32 v25, v24, v24
    v_mul_f32 v27, v26, v26
    v_mul_f32 v49, {f2u(c0):#x}, v24
    v_mul_f32 v53, {f2u(c0):#x}, v26
    v_mul_f32 v25, v25, v24
    v_mul_f32 v27, v27, v26
    v_mul_f32 v48, {f2u(c1):#x}, v25
    v_mul_f32 v52, {f2u(c1):#x}, v27''')
    g('v_lshlrev_b32 v56, 4, v0')
    g.stamp()
    while len(g.miscq)>len(trig): misc(g,1)
    def trop(pr,h):
        def op():
            if h==0: g.wait(f'w{pr}')
            for x in w2_trl(pr)[4*h:4*h+4]: g(x)
        return op
    xo=xb2_ops(g)
    trs=[]
    for pr in range(NTL,4):
        if not g.opt.get('trpost'): trs+=[trop(pr,0),trop(pr,1)]
    g.sideq+=xo+trs
    NS=g.opt.get('gside',4)
    for t in range(2):
        for u in range(2):
            d=ACC+16*(2*t+u); K=[48,52][u]; RI=[50,54][u]
            for j in range(2):
                NS=g.opt.get('gside',4) if 4*t+2*u+j>=g.opt.get('gstart',0) else 0
                P=[d+8*j+2*i for i in range(4)]
                tm=[2+2*i for i in range(4)]
                o=[24,28][j]
                for i in range(4): g(f'v_pk_mul_f32 v[{tm[i]}:{tm[i]+1}], v[{P[i]}:{P[i]+1}], v[{P[i]}:{P[i]+1}]')
                for i in range(4): g(f'v_pk_fma_f32 v[{tm[i]}:{tm[i]+1}], v[{tm[i]}:{tm[i]+1}], v[{K}:{K+1}], v[{K}:{K+1}] op_sel:[0,0,1] op_sel_hi:[1,0,1]')
                if NS>=1: g.side()
                for i in range(4): g(f'v_pk_mul_f32 v[{tm[i]}:{tm[i]+1}], v[{tm[i]}:{tm[i]+1}], v[{P[i]}:{P[i]+1}]')
                for i in range(8):
                    g(f'v_exp_f32 v{2+i}, v{2+i}')
                    if i==3 and NS>=4: g.side()
                if NS>=2: g.side()
                for i in range(4): g(f'v_pk_fma_f32 v[{tm[i]}:{tm[i]+1}], v[{tm[i]}:{tm[i]+1}], v[{RI}:{RI+1}], v[{RI}:{RI+1}] op_sel:[0,0,0] op_sel_hi:[1,0,0]')
                for i in range(8):
                    g(f'v_rcp_f32 v{2+i}, v{2+i}')
                    if i==3 and NS>=5: g.side()
                if NS>=3: g.side()
                for i in range(4): g(f'v_pk_mul_f32 v[{tm[i]}:{tm[i]+1}], v[{tm[i]}:{tm[i]+1}], v[{P[i]}:{P[i]+1}]')
                for i in range(4): g(f'v_cvt_pk_bf16_f32 v{o+i}, v{tm[i]}, v{tm[i]+1}')
                g.vmem(f'buffer_store_dwordx4 v[{o}:{o+3}], v56, s[36:39], s{60+2*t+u} offen offset:{2048*j} {"" if g.opt.get("hplain") else "sc1"}','st')
    g.stamp()
    print('after GELU: side',len(g.sideq),'misc',len(g.miscq),file=sys.stderr)
    g.stamp('tail')
    g.flush_side()
    g(f'v_mov_b32 v2, s47\nv_add_u32 v{vTm0}, 0x10000, v{vT[0]}\nv_add_u32 v{vTm1}, 0x10000, v{vT[1]}')
    NJ=g.opt.get('nj',4)
    for k in range(0 if g.opt.get('merge',0) else NJ//2): g(f'v_add_u32 v{vJ[k][0]}, {ppos(12-2*k)}, v{vT[0]}\nv_add_u32 v{vJ[k][1]}, {ppos(12-2*k)}, v{vT[1]}')
    for d in (1,2,3): g(f's_add_u32 s{5+d}, s69, {d*32768}\ns_xor_b32 s{8+d}, s{5+d}, {d*8192}')
    g(f's_add_u32 s12, s69, {32768+4096}')
    TB=g.opt.get('trbefore',1)
    for pr in range(max(4,NTL),4+TB):
        g.wait(f'w{pr}')
        for x in w2_trl(pr): g(x)
    g.stamp('tail')
    g.wait('st')
    g.stamp('tail')
    g('s_barrier')
    g.vmem(f'buffer_store_dword v2, v{vSG}, s[40:43], 0 offen sc1','flag')
    g.stamp('tail')
    if g.opt.get('merge',0):
        g.nw=NG
        return
    for pr in range(NG,10):
        for op in w2_pair_ops(g,pr): op()
    if g.opt.get('trpost'):
        for pr in range(NTL,4):
            g.wait(f'w{pr}')
            for x in w2_trl(pr): g(x)
    g('s_waitcnt lgkmcnt(0)')
    for pr in range(max(NG,10),14):
        for op in w2_pair_ops(g,pr): op()
    for pr in range(max(4+TB,NTL),14-NJ):
        g.wait(f'w{pr}')
        for x in w2_trl(pr): g(x)
    g('v_not_b32 v3, v2')

def p1_dft(g):
    RAW=64
    vBr0=56; vXL=[57,18,19,2]; vSP=3; vA0=244; vBd=[4,5,6,7]; vWe,vWo=8,9; vFA=[10,11,12,13]; vFB=[14,15,16,17]
    CC=[192,196]; SS=[200,204]; NS=[208,212]
    RC=[216,218,220,222]
    if g.opt.get('p1arr',48)==216:
        g('L_dft0:\ns_lshr_b32 s100, s31, 1\ns_add_u32 s48, s48, s100\ns_lshl_b32 s100, s100, 1')
    g('''s_mov_b32 s49, s53
    s_lshr_b32 s51, s3, 1''')
    t1_of(g,'s52','s48','s51','s53')
    g(f'''s_and_b32 s50, s3, 1
    s_lshl_b32 s53, s50, 5
    s_add_u32 s53, s53, s52
    s_lshl_b32 s53, s53, 10
    v_lshrrev_b32 v24, 3, v0
    v_lshrrev_b32 v25, 4, v0
    v_and_b32 v26, 7, v0
    v_lshlrev_b32 v27, 4, v26
    v_lshl_add_u32 v27, v24, 16, v27
    s_lshl_b32 s54, s100, 7
    v_add3_u32 v{vXL[0]}, v27, s53, 0
    v_add_u32 v{vXL[0]}, s54, v{vXL[0]}
    v_xor_b32 v{vXL[1]}, 0x80, v{vXL[0]}
    v_xor_b32 v{vXL[2]}, 0x100, v{vXL[0]}
    v_xor_b32 v{vXL[3]}, 0x180, v{vXL[0]}
    s_waitcnt lgkmcnt(0)''')
    srd(g,32,4,2097152)
    def xops(gi):
        def mk(j):
            def op():
                if j==0: g(f's_mov_b32 s58, {gi*524288}')
                r=RAW+32*gi+4*j
                g.vmem(f'buffer_load_dwordx4 v[{r}:{r+3}], v{vXL[j&3]}, s[32:35], s58 offen offset:{512*(j>>2)}',f'x{gi}')
            return op
        return [mk(j) for j in range(8)]
    DO=g.opt.get('dord','a')
    for gi in range(1 if DO in 'de' else 2):
        for op in xops(gi): op()
    if DO not in 'de': g('@@SPLIT@@')
    epoch_load(g)
    srd(g,36,10,524288); srd(g,16,12,524288); srd(g,40,28,4<<20,add=F_OFF)
    g(f'''s_lshl_b32 s46, s48, 3
    s_lshl_b32 s53, s49, 2
    s_add_u32 s46, s46, s53
    s_add_u32 s46, s46, {FU}
    v_xor_b32 v26, v26, v25
    v_lshlrev_b32 v26, 4, v26
    v_lshl_add_u32 v27, v24, 11, v26
    s_lshl_b32 s53, s3, 16
    s_lshl_b32 s54, s49, 10
    s_add_u32 s53, s53, s54
    v_add_u32 v{vBd[0]}, s53, v27
    v_xor_b32 v28, 64, v{vBd[0]}
    v_add_u32 v{vBd[1]}, {16384-1024}, v28
    v_add_u32 v{vBd[2]}, {2*(16384-1024)}, v{vBd[0]}
    v_add_u32 v{vBd[3]}, {3*(16384-1024)}, v28
    v_add_u32 v28, 0x40000, v{vBd[0]}
    v_cmp_gt_u32 vcc, 1024, v{vBd[0]}
    v_lshl_add_u32 v27, v24, 7, v26
    s_lshl_b32 s53, s3, 12
    v_cndmask_b32 v{vBr0}, v{vBd[0]}, v28, vcc
    v_add_u32 v{vWe}, s53, v27
    v_xor_b32 v{vWo}, 64, v{vWe}
    s_mul_i32 s55, s3, 24576
    s_add_u32 s55, s55, 65536
    s_lshl_b32 s53, s48, 1
    s_add_u32 s53, s53, s49
    s_lshl_b32 s53, s53, 11
    s_lshl_b32 s54, s51, 10
    s_add_u32 s53, s53, s54
    s_lshl_b32 s54, s50, 4
    s_add_u32 s53, s53, s54
    s_add_u32 s53, s53, {ST_OFF-F_OFF}
    v_lshl_add_u32 v{vSP}, v24, 5, s53
    s_lshl_b32 s53, s48, 1
    s_add_u32 s53, s53, s49
    s_lshl_b32 s53, s53, 9
    s_add_u32 s13, s53, {A0_REL}
    s_lshl_b32 s54, s3, 7
    s_add_u32 s53, s13, s54
    v_lshl_add_u32 v{vA0}, v24, 2, s53
    v_and_b32 v242, 3, v0
    v_lshl_add_u32 v{vA0}, v242, 5, v{vA0}''')
    def bops(st):
        slot=st&1
        def mk(i):
            def op():
                if i==0: g(f's_xor_b32 s57, s100, {st}\ns_lshl_b32 s57, s57, 7\ns_add_u32 m0, s55, {slot*8192}')
                if i==4: g(f's_add_u32 m0, s55, {slot*8192+4096}')
                if i<4: g.vmem(f'buffer_load_dwordx4 v{vBr0 if i==0 else vBd[i]}, s[36:39], s57 offen offset:{1024*i} lds',f'B{st}')
                else:   g.vmem(f'buffer_load_dwordx4 v{vBd[i-4]}, s[16:19], s57 offen offset:{1024*(i-4)} lds',f'B{st}')
            return op
        return [mk(i) for i in range(8)]
    if DO in 'de':
        for op in bops(0): op()
        g('@@SPLIT@@')
    g(f'''v_and_b32 v24, 31, v0
    v_lshrrev_b32 v25, 5, v0
    v_bfe_u32 v26, v0, 1, 3
    v_xor_b32 v26, v26, v25
    v_lshlrev_b32 v27, 7, v24''')
    for kk in range(4):
        g(f'''v_xor_b32 v28, {2*kk}, v26
        v_lshl_add_u32 v{vFA[kk]}, v28, 4, v27
        v_add_u32 v{vFB[kk]}, s55, v{vFA[kk]}''')
    g(f'''v_cvt_f32_u32 v26, v24
    v_mul_f32 v26, {f2u(1/32):#x}, v26
    v_cvt_f32_u32 v27, v25
    v_mul_f32 v27, 4.0, v27
    v_mul_f32 v27, v27, v26
    v_mul_f32 v28, {f2u(5.0):#x}, v26''')
    for j in range(2):
        for i2 in range(4):
            for e in range(2):
                i=2*i2+e
                if not (j==0 and i==0):
                    g(f'v_add_f32 v27, v27, v{28 if i%4==0 else 26}')
                g(f'v_fract_f32 v29, v27\nv_cos_f32 v{20+e}, v29\nv_sin_f32 v{22+e}, v29')
            g(f'v_cvt_pk_bf16_f32 v{CC[j]+i2}, v20, v21\nv_cvt_pk_bf16_f32 v{SS[j]+i2}, v22, v23\nv_xor_b32 v{NS[j]+i2}, 0x80008000, v{SS[j]+i2}')
    early,addr,trig=p2_setup_ops(g,True)
    TM={0:20,1:21,2:22,3:23,4:24,5:25,6:26,7:27,8:28,9:29,10:30,12:2,13:3,14:8,15:9,16:31,17:57,18:240,19:241,20:242,21:243,22:244,23:245}
    early,addr,trig=[remap(x,TM) for x in (early,addr,trig)]
    g(f'''s_mov_b32 s59, 0x3f803f80
    s_movk_i32 s60, 0x3f80
    s_mov_b32 s61, 0x3f800000
    s_lshl_b32 s53, s49, 15
    s_or_b32 s62, s60, s53
    s_lshl_b32 s63, s62, 16
    s_cmp_eq_u32 s49, 0
    s_cselect_b32 s101, 2.0, 0
    s_waitcnt lgkmcnt(0)''')
    nonce(g)
    eps=f'{f2u(1e-5):#x}'
    chainq=[]
    def ch(n=1):
        for _ in range(n):
            if chainq: chainq.pop(0)()
    def stats(gi):
        R=RAW+32*gi; S=[224,228][gi&1]
        g.wait(f'x{gi}')
        if gi==0: g.stamp()
        for i in range(32):
            if i<2: g(f'v_dot2_f32_bf16 v{S+i}, v{R+i}, s59, 0\nv_dot2_f32_bf16 v{S+2+i}, v{R+i}, v{R+i}, 0')
            else:   g(f'v_dot2c_f32_bf16 v{S+(i&1)}, s59, v{R+i}\nv_dot2c_f32_bf16 v{S+2+(i&1)}, v{R+i}, v{R+i}')
            if i%4==3: g.side()
            if i>=2: ch(2)
        while chainq: ch()
        o=232+4*(gi&1); r1=RC[gi]; a,b,c,d=20,21,22,23
        lines=f'''v_add_f32 v{S}, v{S}, v{S+1}
        v_add_f32 v{S+2}, v{S+2}, v{S+3}
        v_add_f32_dpp v{S}, v{S}, v{S} quad_perm:[1,0,3,2] row_mask:0xf bank_mask:0xf
        v_add_f32_dpp v{S+2}, v{S+2}, v{S+2} quad_perm:[1,0,3,2] row_mask:0xf bank_mask:0xf
        v_add_f32_dpp v{S}, v{S}, v{S} quad_perm:[2,3,0,1] row_mask:0xf bank_mask:0xf
        v_add_f32_dpp v{S+2}, v{S+2}, v{S+2} quad_perm:[2,3,0,1] row_mask:0xf bank_mask:0xf
        v_add_f32_dpp v{S}, v{S}, v{S} row_half_mirror row_mask:0xf bank_mask:0xf
        v_add_f32_dpp v{S+2}, v{S+2}, v{S+2} row_half_mirror row_mask:0xf bank_mask:0xf
        v_mul_f32 v{a}, {f2u(-1/512):#x}, v{S}
        v_mul_f32 v{b}, {f2u(1/512):#x}, v{S+2}
        v_fma_f32 v{b}, -v{a}, v{a}, v{b}
        v_cvt_pk_bf16_f32 v{d}, v{a}, v{a}
        v_max_f32 v{b}, 0, v{b}
        v_lshlrev_b32 v{d}, 16, v{d}
        v_cvt_pk_bf16_f32 v{c}, 0, v{b}
        v_sub_f32 v{d}, v{a}, v{d}
        v_add_f32 v{c}, {eps}, v{c}
        v_cvt_pk_bf16_f32 v{o}, v{a}, v{d}
        v_cvt_pk_bf16_f32 v{c}, 0, v{c}
        v_mul_f32 v{r1+1}, s101, v{a}
        v_sqrt_f32 v{c}, v{c}
        v_mov_b32 v{o+3}, s47
        v_cvt_pk_bf16_f32 v{c}, 0, v{c}
        v_rcp_f32 v{r1}, v{c}
        v_mul_f32 v{d}, {f2u(-512.0):#x}, v{d}
        v_mul_f32 v{b}, v{b}, v{r1}
        v_mul_f32 v{241 if gi else 240}, v{d}, v{r1}
        v_mul_f32 v{b}, v{b}, v{r1}
        v_cvt_pk_bf16_f32 v{b}, 0, v{b}
        v_add_f32 v{b}, {eps}, v{b}
        v_cvt_pk_bf16_f32 v{b}, 0, v{b}
        v_sqrt_f32 v{b}, v{b}
        v_cvt_pk_bf16_f32 v{b}, 0, v{b}
        v_mul_f32 v{o+2}, v{b}, v{c}
        v_cvt_pk_bf16_f32 v{b}, 0, v{o+2}
        v_sub_f32 v{b}, v{o+2}, v{b}
        v_cvt_pk_bf16_f32 v{o+1}, v{o+2}, v{b}'''.split('\n')
        for ln in lines: chainq.append(lambda ln=ln: g(ln))
        chainq.append(lambda: g.vmem(f'buffer_store_dwordx4 v[{o}:{o+3}], v{vSP}, s[40:43], 0 offen offset:{256*gi} sc1','sp'))
        if gi: chainq.append(lambda: g(f'v_cmp_eq_u32 vcc, {gi}, v242\ns_nop 1\nv_cndmask_b32 v240, v240, v241, vcc'))
        if gi==3: chainq.append(lambda: g.vmem(f'buffer_store_dword v240, v{vA0}, s[40:43], 0 offen sc1','a0'))
    def bfly(gi):
        R=RAW+32*gi; r1=RC[gi]
        for j in range(4):
            o=[24,28][j&1]; T=[40,48][j&1]
            for i in range(4):
                a_=R+4*j+i; t=T+2*i
                g(f'v_dot2_f32_bf16 v{t}, v{a_}, s60, v{r1+1}\nv_dot2_f32_bf16 v{t+1}, v{a_}, s61, v{r1+1}'); ch()
            g.side()
            for i in range(4):
                b_=R+4*(j+4)+i; t=T+2*i
                g(f'v_dot2c_f32_bf16 v{t}, s62, v{b_}\nv_dot2c_f32_bf16 v{t+1}, s63, v{b_}'); ch()
            ch(2)
            for i in range(4):
                t=T+2*i
                g(f'v_pk_mul_f32 v[{t}:{t+1}], v[{t}:{t+1}], v[{r1}:{r1+1}] op_sel_hi:[1,0]')
            g.side()
            for i in range(4):
                t=T+2*i
                g(f'v_cvt_pk_bf16_f32 v{o+i}, v{t}, v{t+1}')
            g(f'ds_write_b128 v{vWo if gi&1 else vWe}, v[{o}:{o+3}] offset:{16384*j+1024*gi}')
        while chainq: ch()
    W0=16384
    LATEW=g.opt.get('latew',0)
    wl={0:W0,1:W0+4096,2:W0,3:W0+4096,4:W0,5:W0+4096,6:W0,7:W0+4096,8:0,9:4096,10:W0,11:W0+4096,12:8192,13:8192+4096}
    if LATEW: wl={0:W0,1:W0+4096,2:W0,3:W0+4096,4:W0,5:W0+4096,6:0,7:4096,8:W0,9:W0+4096,10:8192,11:8192+4096,12:0,13:4096}
    wd=lambda pr: w2_pair_ops(g,pr,'s55',wl[pr])
    order=g.opt.get('dord','a')
    plan={'a':[[],xops(2),xops(3),bops(0),bops(1),[],'w',[]],
          'b':[xops(2),xops(3),bops(0),bops(1),[],[],'w',[]],
          'c':[[],xops(2)+xops(3),bops(0),bops(1),[],'w',[],[]],
          'd':[xops(2),xops(3),[],bops(1),[],[],'w',[]],
          'e':[[],xops(2),xops(3),bops(1),[],[],'w',[]]}[order]
    if order in 'de':
        for op in xops(1): op()
    seq=((stats,0),(stats,1),(bfly,0),(stats,2),(bfly,1),(stats,3),(bfly,2),(bfly,3))
    if g.opt.get('sfirst'):
        seq=((stats,0),(stats,1),(stats,2),(stats,3),(bfly,0),(bfly,1),(bfly,2),(bfly,3))
        plan=[xops(2),xops(3),bops(0),[],bops(1),[],'w',[]] if order not in 'de' else [xops(2),xops(3),[],bops(1),[],[],'w',[]]
    for k,(fn,gi) in enumerate(seq):
        if plan[k]=='w':
            if not LATEW:
                for x in early: g(x)
                g.sideq+=wd(0)+wd(1)
        else: g.sideq+=plan[k]
        if fn is stats:
            while any(1 for op in plan[max(k-2,0)] if False): pass
        fn(gi); g.stamp('dst')
        if order=='c' and k==1: g.flush_side()
    g.flush_side()
    g('s_waitcnt lgkmcnt(0)\ns_barrier')
    g.stamp(); g.stamp('dst')
    ACC=64
    def fr(s_):
        b=[32,216][s_]
        return dict(A=[b,b+4,b+8,b+12],B=[b+16,b+20])
    def rd(n):
        st,kk=n>>2,n&3; f=fr(n&1)
        bb=lambda ab: f'ds_read_b128 v[{f["B"][ab]}:{f["B"][ab]+3}], v{vFB[kk]} offset:{(st&1)*8192+4096*ab}'
        aa=lambda ti: f'ds_read_b128 v[{f["A"][ti]}:{f["A"][ti]+3}], v{vFA[kk]} offset:{st*16384+4096*ti}'
        return [aa(0),bb(0),bb(1),aa(1),aa(2),aa(3)]
    g.wait('B0')
    for x in rd(0): g(x)
    vTB=[18,19]
    nT=[i for i,x in enumerate(addr) if f'v_add_u32 v{vT[3]}' in x][0]+1
    pre=addr[8:nT]+['s_sub_u32 s0, s55, s69',f'v_add_u32 v18, s0, v{vT[0]}',f'v_add_u32 v19, s0, v{vT[1]}']
    if not LATEW:
        for x in pre: g(x)
    if not g.opt.get('trigp2',1):
        trig=trig_ops(0,{1:20,2:21,3:22,5:23,6:30,7:31,9:57,12:2,13:3,14:8,15:9,16:240,17:241,18:242,19:243,20:24,21:25,22:26,23:27})
    g.miscq=addr[:8]+addr[nT:]+trig
    TRS={0:0,1:1,5:2,6:3,9:4,10:5,13:6,14:7}
    DMS={1:[2],2:[3],6:[4],7:[5],10:[6],11:[7,8],12:[9],14:[10],15:[11]}
    if LATEW:
        TRS={4:0,5:1,8:2,9:3,11:4,12:5,14:6,15:7}
        DMS={1:[0,1],5:[2],6:[3],9:[4],10:[5],11:[6,7],12:[8],13:[9]}
        g.miscq=early+pre+g.miscq
    for n in range(16):
        f=fr(n&1)
        def mf(ti,ab):
            d=ACC+32*ti+16*ab
            g(f'{MF} v[{d}:{d+15}], v[{f["A"][ti]}:{f["A"][ti]+3}], v[{f["B"][ab]}:{f["B"][ab]+3}], '+(f'v[{d}:{d+15}]' if n else '0'))
        nx=rd(n+1) if n<15 else []
        if n%2==0: g.stamp('dm')
        g('s_waitcnt lgkmcnt(0)'); mf(0,0)
        if n==3: g.sideq+=bops(2)
        if n==7: g.sideq+=bops(3)
        if LATEW and n==1:
            while any(x in g.miscq for x in early): misc(g,1)
        if LATEW and n==4:
            while any(x in g.miscq for x in pre): misc(g,1)
        if n==8:
            assert 'a0' not in g.vm
            while len(g.miscq)>len(trig): misc(g,1)
            g('s_barrier')
            g.miscq+=[f'v_and_b32 v2, 3, v0',f'v_lshrrev_b32 v3, 5, v0',f'v_lshlrev_b32 v3, 4, v3',f'v_lshl_add_u32 v2, v2, 7, v3',f'v_add_u32 v2, s13, v2',
                      f'v_and_b32 v3, 28, v0',f'v_cmp_eq_u32 vcc, 0, v3',f'v_mov_b32 v3, {OOB}','s_nop 0',f'v_cndmask_b32 v2, v3, v2, vcc']
        if n==9:
            misc(g,9999)
            g.sideq+=[(lambda q=q: g.vmem(f'buffer_load_dwordx4 v[{[20,24,28,240][q]}:{[20,24,28,240][q]+3}], v2, s[40:43], 0 offen offset:{32*q} sc1','al')) for q in range(4)]
        if n==15:
            g.wait('al')
            g.miscq+=[f'v_cvt_pk_bf16_f32 v{20+i}, v{20+2*i}, v{21+2*i}' for i in range(4)]+[f'v_cvt_pk_bf16_f32 v28, v28, v29','v_cvt_pk_bf16_f32 v29, v30, v31','v_cvt_pk_bf16_f32 v30, v240, v241','v_cvt_pk_bf16_f32 v31, v242, v243']
        for pr in DMS.get(n,[]): g.sideq+=wd(pr)
        if (n+1)%4==0 and n<15: g.wait(f'B{(n+1)>>2}')
        for x in nx[:3]: g(x)
        mf(0,1)
        for x in nx[3:]: g(x)
        mf(1,0)
        trq=[]
        if n in TRS:
            assert not any(True for op in g.sideq if getattr(op,'pr',None)==TRS[n])
            g.wait(f'w{TRS[n]}'); trq=w2_trl(TRS[n],vTB,wl[TRS[n]])
        for k,(ti,ab) in enumerate(((1,1),(2,0),(2,1),(3,0),(3,1))):
            if trq and k>=3:
                for x in trq[:4]: g(x)
                trq=trq[4:]
            else:
                had=bool(g.sideq); g.side(); misc(g,2 if had else 4)
            mf(ti,ab)
        had=bool(g.sideq); g.side(); misc(g,2 if had else 4)
    g.stamp(); g.stamp('s1'); g.stamp('dm')
    if LATEW: g.flush_side(); g.sideq+=wd(10)+wd(11)+[lambda: g('s_waitcnt lgkmcnt(0)')]
    g.sideq+=wd(12)+wd(13)
    def trop(pr):
        def op():
            g.wait(f'w{pr}')
            for x in w2_trl(pr,vTB,wl[pr])[:4]: g(x)
        def op2():
            for x in w2_trl(pr,vTB,wl[pr])[4:]: g(x)
        return [op,op2]
    NJ=g.opt.get('nj',4)
    for pr in range(8,min(12,14-NJ)): g.sideq+=trop(pr)
    g.sideq+=[lambda: [misc(g,1) for _ in range(len(g.miscq)-len(trig))]]
    def zc(ti):
        Z=[32,216][ti&1]; L=[]
        for ab in range(2):
            d=ACC+32*ti+16*ab
            for i in range(8): L.append(f'v_cvt_pk_bf16_f32 v{Z+8*ab+i}, v{d+2*i}, v{d+2*i+1}')
        return L
    for x in zc(0): g(x)
    for ti in range(4):
        Z=[32,216][ti&1]
        za=[Z,Z+4]; zb=[Z+8,Z+12]; ur=ACC+32*ti; ui=ur+16
        nxt=zc(ti+1) if ti<3 else []
        seq=[(ur,CC[0],za[0],1),(ui,CC[0],zb[0],1),(ur,CC[1],za[1],0),(ui,CC[1],zb[1],0),(ur,SS[0],zb[0],0),(ui,NS[0],za[0],0),(ur,SS[1],zb[1],0),(ui,NS[1],za[1],0)]
        for n,(d,am,bm,first) in enumerate(seq):
            g(f'{MF} v[{d}:{d+15}], v[{am}:{am+3}], v[{bm}:{bm+3}], '+('0' if first else f'v[{d}:{d+15}]'))
            for x in nxt[2*n:2*n+2]: g(x)
            had=bool(g.sideq); g.side(); misc(g,(0 if had else 2)+(0 if nxt else 2))
    g.stamp('s1')
    g.flush_side(); misc(g,9999)
    g.stamp('s1')
    for op in xb2_ops(g): op()
    for pr in (12,13):
        if pr<14-NJ:
            for op in trop(pr): op()
    for k in range(NJ//2): g(f'v_add_u32 v{vJ[k][0]}, {wl[12-2*k]}, v{vTB[0]}\nv_add_u32 v{vJ[k][1]}, {wl[12-2*k]}, v{vTB[1]}')
    g.stamp('s1')
    srd(g,36,28,4<<20,add=U_OFF)
    g(f'''v_and_b32 v24, 31, v0
    v_lshrrev_b32 v25, 5, v0
    v_lshlrev_b32 v24, 4, v24
    v_lshl_add_u32 v24, v25, 18, v24
    s_lshl_b32 s53, s3, 9
    v_add_u32 v24, s53, v24
    s_lshl_b32 s53, s48, 1
    s_add_u32 s53, s53, s49
    s_lshl_b32 s53, s53, 11''')
    for r in range(16):
        o=32+4*(r&3)
        for ti in range(4): g(f'v_cvt_pk_bf16_f32 v{o+ti}, v{ACC+32*ti+r}, v{ACC+32*ti+16+r}')
        g(f's_add_u32 s54, s53, {(8*(r>>2)+(r&3))*65536}')
        g.vmem(f'buffer_store_dwordx4 v[{o}:{o+3}], v24, s[36:39], s54 offen sc1','st')
        if r<4:
            d,am,bm,first=((224,20,CC[0],1),(240,20,NS[0],1),(224,28,CC[1],0),(240,28,NS[1],0))[r]
            g(f'{MF} a[{d}:{d+15}], v[{am}:{am+3}], v[{bm}:{bm+3}], '+('0' if first else f'a[{d}:{d+15}]'))
        if r==6:
            for i in range(4): g(f'v_accvgpr_read_b32 v{48+2*i}, a{224+i}\nv_accvgpr_read_b32 v{49+2*i}, a{240+i}')
            g(f'''s_lshl_b32 s0, s48, 12
            s_add_u32 s0, s0, 0x200000
            s_lshl_b32 s1, s49, 2
            s_add_u32 s1, s1, s3
            s_cmp_eq_u32 s1, 1
            s_cselect_b32 s0, s0, {OOB}
            v_lshl_add_u32 v2, v0, 16, s0
            v_mov_b32 v3, {OOB}
            v_cmp_gt_u32 vcc, 32, v0''')
            for i in range(4): g(f'v_cvt_pk_bf16_f32 v{28+i}, v{48+2*i}, v{49+2*i}')
            g('v_cndmask_b32 v2, v3, v2, vcc')
            g.vmem('buffer_store_dwordx4 v[28:31], v2, s[36:39], 0 offen sc1','st')
    g.stamp(); g.stamp('s1')
    g('v_mov_b32 v2, s47')
    g.vmem(f'buffer_load_dword v3, v{vPL}, s[40:43], 0 offen sc1','poll')
    g.wait('poll')
    g.stamp('s1')
    g('s_waitcnt lgkmcnt(0)\ns_barrier')
    g(f'buffer_store_dword v2, v{vSG}, s[40:43], 0 offen sc1')
    g('s_lshl_b32 s53, s3, 12')
    for d in (1,2,3): g(f's_add_u32 s{5+d}, s53, {(d-1)*16384}\ns_xor_b32 s{8+d}, s{5+d}, {d*4096}')
    g('s_lshr_b32 s12, s53, 1\ns_add_u32 s12, s12, 49152')

def p2(g, role):
    M=(role=='m') and g.opt.get('merge',0)
    X=role
    ACC=64; ACS=128; UF=144
    XS=32768+4096
    HR=[16+8*i for i in range(5)]+[192+8*i for i in range(5)]
    NH=len(HR)
    g.stamp(); g.stamp('tail')
    srd(g,36,28,7340032); srd(g,32,28,4<<20,add=U_OFF); srd(g,72,24,2097152)
    g(f'''s_sub_u32 s62, 32, s71
    s_and_b32 s62, s62, 31
    s_cmp_lt_u32 s70, 4
    s_cselect_b32 s62, s71, s62
    s_lshl_b32 s62, s62, 16
    v_mov_b32 v185, 0
    v_mov_b32 v186, 0
    v_mov_b32 v187, 0
    v_mov_b32 v188, 0x3f80
    v_cmp_gt_u32 vcc, 32, v0
    v_mov_b32 v189, 0
    v_mov_b32 v190, 0
    v_cndmask_b32 v188, 0, v188, vcc
    v_mov_b32 v191, 0
    s_mul_i32 s57, s71, 112
    s_mul_i32 s53, s3, 28
    s_add_u32 s57, s57, s53
    s_lshl_b32 s57, s57, 11
    s_add_u32 s59, s57, {28*2048}
    s_lshl_b32 s53, s44, 12
    s_add_u32 s58, s57, s53
    v_mov_b32 v2, s47
    s_mov_b32 s56, {SPIN}''')
    for d in (1,2,3):
        g(f'v_lshl_add_u32 v{9+d}, v0, 4, s{5+d}')
    g(f'v_mov_b32 v9, v{vFL}')
    if M:
        NW=g.nw; ops=[]
        for pr in range(NW,8): ops+=w2_pair_ops(g,pr)
        t01=w2_trl(0)+w2_trl(1)
        for n,op in enumerate(ops):
            op()
            if n==3: g.wait('w1')
            if n>=3 and t01:
                for x in t01[:2]: g(x)
                del t01[:2]
        for x in t01: g(x)
        g.vmem(f'buffer_load_dword v3, v{vPL}, s[40:43], 0 offen sc1','poll')
        for pr in (8,9):
            for op in w2_pair_ops(g,pr): op()
        g.wait('poll')
    if role=='m' and not M: g(f'L_poll:\nbuffer_load_dword v3, v{vPL}, s[40:43], 0 offen sc1\nv_mov_b32 v184, v{vB2}\ns_waitcnt vmcnt(0)')
    else: g(f'v_mov_b32 v184, v{vB2}\nL_poll:')
    g('v_cmp_ne_u32 vcc, s47, v3\ns_cbranch_vccnz L_pslow\nL_go:')
    ool(g,f'''L_pslow:
    s_sleep {g.opt.get('sleep',4)}
    '''+('' if (role=='m' and not M) else f'buffer_load_dword v3, v{vPL}, s[40:43], 0 offen sc1\ns_waitcnt vmcnt(0)\n')+'''s_sub_u32 s56, s56, 1
    s_cbranch_scc0 L_poll
    s_branch L_go''')
    if not M: g.vm=['old']*30
    g.stamp(); g.stamp('tail')
    hidx=[0]
    def hload():
        ks=hidx[0]; r=HR[ks%NH]
        g.vmem(f'buffer_load_dwordx4 v[{r}:{r+3}], v{vH0}, s[36:39], s58 offen offset:{2048*(ks&1)} {g.opt.get("hld","sc1").replace("none","")}',f'h{ks}')
        g.vmem(f'buffer_load_dwordx4 v[{r+4}:{r+7}], v{vH1}, s[36:39], s58 offen offset:{2048*(ks&1)} {g.opt.get("hld","sc1").replace("none","")}',f'h{ks}')
        if ks&1 and ks<27: g('s_add_u32 s58, s58, 4096\ns_cmp_eq_u32 s58, s59\ns_cselect_b32 s58, s57, s58')
        hidx[0]+=1
    HD=g.opt.get('hdepth',8)
    g(f's_waitcnt lgkmcnt(0)\ns_mov_b32 s55, 0x80000')
    for i in range(HD): hload()
    g(f'{MF} v[{ACC}:{ACC+15}], v[184:187], v[188:191], 0')
    XA=[236,237,238,239]
    xa=Rec()
    xa(f'''v_and_b32 v236, 31, v0
    v_lshrrev_b32 v237, 5, v0
    v_lshlrev_b32 v237, 3, v237
    v_lshl_add_u32 v237, v236, 6, v237
    v_bfe_u32 v236, v0, 2, 2
    v_lshl_add_u32 v236, v236, 4, v237
    v_add_u32 v236, s12, v236
    v_xor_b32 v237, 16, v236
    v_xor_b32 v238, 32, v236
    v_xor_b32 v239, 48, v236
    v_lshl_add_u32 v240, v0, 4, s12''')
    KF=g.opt.get('kflag',12)
    NL=g.opt.get('nlast',3)
    def mf(ks,a_,b):
        r=HR[ks%NH]; d=ACC+16*(a_+2*b)
        c='0' if (ks==0 and (a_ or b)) else f'v[{d}:{d+15}]'
        g(f'{MF} v[{d}:{d+15}], a[{8*ks+4*a_}:{8*ks+4*a_+3}], v[{r+4*b}:{r+4*b+3}], {c}')
    checked=False
    NJ=g.opt.get('nj',4)
    jit=[x for pr in range(14-NJ,14) for x in w2_trl(pr,vJ[(13-pr)>>1],4096*(pr&1))]
    late=[]
    if M:
        jit=[x for pr in range(2,14) for x in w2_trl(pr)]
        for pr in range(10,14): late+=w2_pair_ops(g,pr)
    g.miscq=xa.l+(trig_ops(0) if g.opt.get('trigp2',1) else [])
    for ks in range(28-NL):
        g.wait(f'h{ks}')
        if NJ and ks==16 and not M: g('s_waitcnt lgkmcnt(0)')
        if M and ks>=4 and ks%2==0: g('s_waitcnt lgkmcnt(8)')
        if M and ks>=16 and ks%2==0 and ks<=22: g.wait(f'w{ks//2+2}')
        if ks==0:
            g.stamp()
        for b in range(2):
            for a_ in range(2):
                mf(ks,a_,b)
                if a_==0 and b==0 and (ks>=1 or M) and jit:
                    for x in jit[:4]: g(x)
                    del jit[:4]
                elif a_==1 and b==0 and late:
                    late.pop(0)(); late.pop(0)()
                elif not (a_==1 and b==1): misc(g,g.opt.get('p2misc',6 if M else 4))
            if b==0 and g.sideq: g.side()
        if hidx[0]<28: hload()
        elif g.sideq: g.side()
        if ks==(10 if M else 2):
            g('s_mov_b32 m0, s12')
            g.vmem(f'buffer_load_dwordx4 v{vXO}, s[76:79], 0 offen lds','xl')
            g('s_add_u32 m0, m0, 1024')
            g.vmem(f'buffer_load_dwordx4 v{vXO}, s[76:79], s55 offen lds','xl')
        if ks==(24 if M else 22):
            assert 'xl' not in g.vm
            for q in range(4): g(f'ds_read_b64 v[{XR+2*q}:{XR+2*q+1}], v{XA[q]}')
        if ks==KF: g.vmem(f'buffer_load_dword v176, v9, s[40:43], 0 offen sc1','fl')
        if 'fl' not in g.vm and ks>KF and not checked:
            checked=True
            g(f'''L_chk:
            v_cmp_ne_u32 vcc, s47, v176
            s_cbranch_vccnz L_uslow
            L_allset:''')
            ool(g,'''L_uslow:
            s_sleep 4
            buffer_load_dword v176, v9, s[40:43], 0 offen sc1
            s_waitcnt vmcnt(0)
            s_sub_u32 s56, s56, 1
            s_cbranch_scc0 L_chk
            s_branch L_allset''')
            def mku(j):
                def op():
                    g(f's_add_u32 s53, s62, {8192*j}')
                    g.vmem(f'buffer_load_dwordx4 v[{UF+4*j}:{UF+4*j+3}], v{vU}, s[32:35], s53 offen sc1','u')
                return op
            g.sideq+=[mku(j) for j in range(8)]
    assert checked
    if g.miscq: print('p2',role,'misc left',len(g.miscq),file=sys.stderr)
    misc(g,9999)
    g.flush_side()
    if M: g('s_waitcnt lgkmcnt(4)')
    XF=176
    def wr(d):
        for q in range(4):
            r=ACC+16*d+4*q
            g(f'ds_write_b128 v{9+d}, v[{r}:{r+3}] offset:{1024*q}')
    for n,d in enumerate((3,2,1,0)):
        for ks in range(28-NL,28):
            g.wait(f'h{ks}')
            mf(ks,d&1,d>>1)
        if n==0: g('s_waitcnt lgkmcnt(0)')
        if n==1:
            for i in range(4): g(f'v_lshlrev_b32 v{XF+2*i}, 16, v{XR+i}\nv_and_b32 v{XF+2*i+1}, 0xffff0000, v{XR+i}')
            wr(3)
        if n==2:
            for i in range(4,8): g(f'v_lshlrev_b32 v{XF+2*i}, 16, v{XR+i}\nv_and_b32 v{XF+2*i+1}, 0xffff0000, v{XR+i}')
            wr(2)
    g.stamp()
    g(f's_mov_b32 s60, {f2u(-math.log2(math.e)):#x}\ns_mov_b32 s61, s60\ns_mov_b32 s62, 1.0\ns_mov_b32 s63, 1.0')
    def smm(J):
        for j in J:
            g(f'{MF} v[{ACS}:{ACS+15}], v[{UF+4*j}:{UF+4*j+3}], a[{224+4*j}:{227+4*j}], '+('0' if j==0 else f'v[{ACS}:{ACS+15}]'))
    wr(1)
    g.waitall()
    SB=g.opt.get('sbar',3)
    smm(range(SB))
    for d in (1,2,3): g(f'v_lshl_add_u32 v{9+d}, v0, 4, s{8+d}')
    g('s_waitcnt lgkmcnt(0)\ns_barrier')
    rds=[f'ds_read_b128 v[{[192,208,16][d]+4*q}:{[192,208,16][d]+4*q+3}], v{10+d} offset:{1024*q}' for q in range(4) for d in range(3)]
    for j in range(SB,8):
        smm([j])
        for x in rds[:4]: g(x)
        del rds[:4]
    for x in rds: g(x)
    if role=='m':
        g('s_lshl_b32 s1, s2, 2\ns_add_u32 s1, s1, s3\ns_cmp_eq_u32 s1, 803\ns_cbranch_scc1 L_ep0\nL_noep0:')
        ool(g,'''L_ep0:
        v_lshrrev_b32 v4, 2, v0
        v_and_b32 v5, 3, v0
        v_lshl_add_u32 v4, v4, 3, v5
        v_lshlrev_b32 v4, 8, v4
        buffer_load_dwordx4 v[6:9], v4, s[40:43], 0 offen sc1
        s_branch L_noep0''')
    T=80
    for hf in range(2):
        g(f's_waitcnt lgkmcnt({6-6*hf})')
        I=range(4*hf,4*hf+4)
        for i in I: g(f'v_pk_add_f32 v[{192+2*i}:{193+2*i}], v[{192+2*i}:{193+2*i}], v[{208+2*i}:{209+2*i}]')
        for i in I: g(f'v_pk_add_f32 v[{ACC+2*i}:{ACC+2*i+1}], v[{ACC+2*i}:{ACC+2*i+1}], v[{16+2*i}:{17+2*i}]')
        for i in I: g(f'v_pk_add_f32 v[{ACC+2*i}:{ACC+2*i+1}], v[{ACC+2*i}:{ACC+2*i+1}], v[{192+2*i}:{193+2*i}]')
        for i in I: g(f'v_pk_mul_f32 v[{T+2*i}:{T+2*i+1}], v[{ACC+2*i}:{ACC+2*i+1}], s[60:61]')
        for i in I: g(f'v_exp_f32 v{T+2*i}, v{T+2*i}\nv_exp_f32 v{T+2*i+1}, v{T+2*i+1}')
        for i in I: g(f'v_pk_add_f32 v[{T+2*i}:{T+2*i+1}], v[{T+2*i}:{T+2*i+1}], s[62:63]')
        for i in I: g(f'v_rcp_f32 v{T+2*i}, v{T+2*i}\nv_rcp_f32 v{T+2*i+1}, v{T+2*i+1}')
        sp=lambda r: ACS+4*(2*(r>>3)+(r&1))+2*((r>>2)&1)+((r>>1)&1)
        for i in I:
            for r in (2*i,2*i+1): g(f'v_mul_f32 v{ACC+r}, v{ACC+r}, v{sp(r)}')
        for i in I: g(f'v_pk_fma_f32 v[{T+2*i}:{T+2*i+1}], v[{T+2*i}:{T+2*i+1}], v[{ACC+2*i}:{ACC+2*i+1}], v[{XF+2*i}:{XF+2*i+1}]')
        for i in I: g(f'v_cvt_pk_bf16_f32 v{96+i}, v{T+2*i}, v{T+2*i+1}')
        for q in (2*hf,2*hf+1): g(f'ds_write_b64 v{XA[q]}, v[{96+2*q}:{97+2*q}]')
    g('s_waitcnt lgkmcnt(0)\nds_read_b128 v[104:107], v240\nds_read_b128 v[108:111], v240 offset:1024\ns_waitcnt lgkmcnt(1)')
    g(f'buffer_store_dwordx4 v[104:107], v{vXO}, s[72:75], 0 offen {g.opt.get("outfl","")}\ns_waitcnt lgkmcnt(0)\nbuffer_store_dwordx4 v[108:111], v{vXO}, s[72:75], s55 offen {g.opt.get("outfl","")}')
    if role=='m':
        g('s_cmp_eq_u32 s1, 803\ns_cbranch_scc1 L_ep1\nL_noep:')
        ool(g,f'''L_ep1:
        s_waitcnt vmcnt(2)
        L_ep:
        v_xor_b32 v6, s47, v6
        v_xor_b32 v7, s47, v7
        v_xor_b32 v8, s47, v8
        v_xor_b32 v9, s47, v9
        v_or3_b32 v6, v6, v7, v8
        v_or_b32 v6, v6, v9
        v_cmp_ne_u32 vcc, 0, v6
        s_cbranch_vccz L_epok
        s_sleep 8
        buffer_load_dwordx4 v[6:9], v4, s[40:43], 0 offen sc1
        s_waitcnt vmcnt(0)
        s_sub_u32 s56, s56, 1
        s_cbranch_scc0 L_ep
        L_epok:
        v_mov_b32 v3, {EPO}
        s_mov_b64 exec, 1
        buffer_store_dword v2, v3, s[40:43], 0 offen sc1
        s_mov_b64 exec, -1
        s_branch L_noep''')
    g.stamp()

DOC=""";
;   224 MLP workgroups: 128 rows x 128 hidden columns of gelu(LN(LN(x)) @ w1 + b1). The GEMM runs on raw x; both LayerNorms are
;     folded into one extra K-step (-mean * colsum(w1) + b1 / rstd) and a per-row scale. h goes to d_ws in MFMA fragment order.
;     butterfly + normalisation, half-size hidden DFT against the dft_hid tables, DFT-32 along the sequence (s = 64*s1 + s2) -> U.
;     Bins above 256 follow from the Hermitian symmetry; bin 0 is the residue left by the bf16-rounded mean.
; Hand-offs between workgroups: write-through stores, drained, then flag words / tagged granules holding a per-launch tag that is
; derived from an epoch word in d_ws (advanced once every workgroup has read it), so older launches' words never match.
"""
def build(stamps=False, opt=None):
    global vTm0,vTm1
    if (opt or {}).get('merge',0): vTm0,vTm1=241,242
    g=G(stamps,opt); g.miscq=[]; g.outofline=[]
    def sfx(L,x): return [re.sub(r'\b(L_go|L_poll|L_pslow|L_ep0|L_ep1|L_chk|L_uslow|L_allset|L_noep0|L_noep|L_epok|L_ep)\b', r'\1_'+x, l) for l in L]
    entry(g)
    head=list(g.a.l); vm0=list(g.vm); n0=g.nst
    g.a.l=[]; p1_mlp(g); mlp=list(g.a.l)
    oo=g.outofline; g.outofline=[]
    g.a.l=[]; p2(g,'m'); g.dump_stamps(TS_OFF); mlp+=sfx(g.a.l,'m')+['    s_endpgm']; oo+=sfx(g.outofline,'m'); g.outofline=[]
    g.a.l=[]; g.vm=list(vm0); g.nst=n0; g.miscq=[]
    p1_dft(g); dft=list(g.a.l)
    k=[i for i,x in enumerate(dft) if '@@SPLIT@@' in x][0]
    g.a.l=[]; p2(g,'d'); g.dump_stamps(TS_OFF); dft+=sfx(g.a.l,'d'); oo+=sfx(g.outofline,'d')
    km=[i for i,x in enumerate(mlp) if '@@SPLIT@@' in x][0]
    lines=head+mlp[:km]+['    s_branch L_mlp','L_dfte:']+dft[:k]+['    s_branch L_dft','L_mlp:']+mlp[km+1:]+['L_dft:']+dft[k+1:]+['L_end:','    s_endpgm']+oo+['L_codeend:']
    body='\n'.join(hazard.fix(lines))+'\n'
    txt=wrap([dict(name=KN,body=body,grid=256,block=256,lds=163840,vgpr=512,accum=256)],HDR)
    return txt.replace('.amdgcn_target',DOC+'.amdgcn_target',1)
if __name__=='__main__':
    out=sys.argv[1]; st='stamps' in sys.argv[2:]
    opt={}
    for a in sys.argv[2:]:
        if '=' in a:
            k,v=a.split('='); opt[k]=int(v) if v.lstrip('-').isdigit() else v
    open(out,'w').write(build(st,opt))
```

```python
import sys, math, struct, re
sys.path.insert(0,'tools')
from asmlib import A, wrap, KN
import hazard
from gen3 import G, srd, t1_of, f2u, HDR, U_OFF, ST_OFF, CS_REL, TS_OFF, SPIN

F_OFF = 12<<20
F2 = 8192
FU=32768; EPO=40960
A0_REL=(ST_OFF-F_OFF)+(512<<10)
WT_OFF = 14<<20
vB2, vXO = 254, 255
vD=[226+i for i in range(0)]
vDM=[246,247,248,249]
vT=[250,251,252,253]
XR=246
vSG,vH0,vH1,vU,vFL,vPL = 58,59,60,61,62,63
vTT=245
MF='v_mfma_f32_32x32x16_bf16'
OOB='0x40000000'

class Rec:
    def __init__(s): s.l=[]
    def __call__(s,t):
        for x in t.split('\n'):
            x=x.strip()
            if x: s.l.append(x)
def ool(g, text):
    g.outofline+=[x.strip() if x.strip().endswith(':') else '    '+x.strip() for x in text.split('\n') if x.strip()]
def misc(g, n):
    while n>0 and g.miscq:
        x=g.miscq.pop(0); g(x)
        n-= x.count('\n')+1 + (1 if ('v_cos' in x or 'v_sin' in x) else 0)
def epoch_load(g):
    g(f's_add_u32 s60, s28, {F_OFF+EPO}\ns_addc_u32 s61, s29, 0\ns_load_dword s47, s[60:61], 0')
def nonce(g):
    g('s_mul_i32 s47, s47, 0x9e3779b1\ns_add_u32 s47, s47, 0x85ebca6b')

def p2_setup_ops(g, dft):
    r=Rec(); t=lambda i:f'v{1000+i}'
    if g.opt.get('dmix',1):
        if dft: r('s_mul_i32 s31, s31, 9')
        else:
            for v in (1,2,3): r.l.append(f's_cmp_eq_u32 s31, {9*v}\ns_cselect_b32 s31, {v}, s31')
    if g.opt.get('p2arr',84)==48:
        r('''s_and_b32 s70, s31, 7
        s_lshr_b32 s0, s31, 4
        s_lshl_b32 s1, s30, 1
        s_add_u32 s45, s0, s1
        s_bfe_u32 s1, s31, 0x10003''')
    else:
        r('''s_and_b32 s70, s30, 1
        s_lshl_b32 s70, s70, 2
        s_lshr_b32 s0, s31, 2
        s_add_u32 s0, s0, s31
        s_and_b32 s0, s0, 3
        s_add_u32 s70, s70, s0
        s_lshr_b32 s45, s30, 1
        s_lshl_b32 s45, s45, 2
        s_lshr_b32 s0, s31, 3
        s_add_u32 s45, s45, s0
        s_bfe_u32 s1, s31, 0x10002''')
    r.l.append('s_sub_u32 s0, 32, s45\ns_cmp_eq_u32 s45, 0\ns_cselect_b32 s0, 16, s0\ns_cmp_eq_u32 s1, 0\ns_cselect_b32 s71, s45, s0')
    wr=g.opt.get('wrot',3)
    if wr==0: r('s_mov_b32 s44, 0')
    elif wr==1: r('s_mul_i32 s44, s30, 7\ns_lshr_b32 s44, s44, 2')
    elif wr==3: r('s_lshr_b32 s44, s31, 2\ns_mul_i32 s44, s44, 7\ns_lshr_b32 s44, s44, 2')
    elif wr==5: r('s_lshr_b32 s44, s31, 2\ns_max_u32 s44, s44, 1\ns_sub_u32 s44, s44, 1\ns_lshl_b32 s44, s44, 1')
    elif wr==4: r('s_lshr_b32 s44, s31, 3\ns_mul_i32 s44, s44, 7\ns_lshr_b32 s44, s44, 1')
    elif wr==2: r('s_lshr_b32 s44, s30, 1\ns_mul_i32 s44, s44, 7\ns_lshr_b32 s44, s44, 1')
    ho={0:None,1:(1,7),2:(1,4),3:(3,3),4:(3,1),5:(1,2)}[g.opt.get('hoff',0)]
    if ho:
        r.l.append(f's_and_b32 s0, s70, {ho[0]}\ns_mul_i32 s0, s0, {ho[1]}\ns_add_u32 s44, s44, s0\ns_cmp_ge_u32 s44, 14\ns_cselect_b32 s0, 14, 0\ns_sub_u32 s44, s44, s0'.replace('{ho[0]}',str(ho[0])) )
    r(f'''s_lshl_b32 s68, s44, 15
    s_lshl_b32 s69, s3, 13
    v_lshrrev_b32 {t(4)}, 3, v0
    v_bfe_u32 {t(5)}, v0, 4, 1
    v_lshlrev_b32 {t(6)}, 2, {t(5)}
    v_and_b32 {t(7)}, 7, v0
    v_xor_b32 {t(6)}, {t(6)}, {t(7)}
    v_lshlrev_b32 {t(6)}, 4, {t(6)}
    v_lshl_add_u32 {t(6)}, {t(4)}, 10, {t(6)}
    s_mul_i32 s0, s3, {448*1024}
    s_lshl_b32 s1, s70, 7
    s_add_u32 s0, s0, s1
    v_add_u32 v{vDM[0]}, s0, {t(6)}
    v_add_u32 v{vDM[1]}, {7168}, v{vDM[0]}
    v_add_u32 v{vDM[2]}, {2*7168}, v{vDM[0]}
    v_add_u32 v{vDM[3]}, {3*7168}, v{vDM[0]}''')
    srd(r,64,20,1792*512*2)
    early=r.l; r=Rec()
    srd(r,72,22,1024); srd(r,76,4,2097152)
    r(f'''v_lshrrev_b32 {t(4)}, 5, v0
    v_bfe_u32 {t(5)}, v0, 4, 1
    v_bfe_u32 {t(6)}, v0, 2, 2
    v_lshl_add_u32 {t(7)}, {t(4)}, 2, {t(6)}
    v_lshlrev_b32 {t(7)}, 7, {t(7)}
    v_lshrrev_b32 {t(6)}, 1, {t(6)}
    s_and_b32 s0, s3, 1
    v_xor_b32 {t(6)}, s0, {t(6)}
    v_lshl_add_u32 {t(7)}, {t(6)}, 6, {t(7)}
    v_lshl_add_u32 {t(7)}, {t(5)}, 5, {t(7)}
    v_and_b32 {t(6)}, 3, v0
    v_lshl_add_u32 {t(7)}, {t(6)}, 3, {t(7)}
    v_add_u32 v{vT[0]}, s69, {t(7)}
    v_xor_b32 v{vT[1]}, 64, v{vT[0]}
    v_add_u32 v{vT[2]}, 0x18000, v{vT[0]}
    v_add_u32 v{vT[3]}, 0x18000, v{vT[1]}
    s_lshl_b32 s0, s30, 9
    s_add_u32 s0, s0, {FU}
    v_and_b32 {t(7)}, 31, v0
    v_lshl_add_u32 v{vFL}, {t(7)}, 2, s0
    s_lshl_b32 s0, s45, 1
    s_and_b32 s1, s30, 1
    s_add_u32 s0, s0, s1
    s_lshl_b32 s0, s0, 2
    s_add_u32 s0, s0, s3
    s_lshl_b32 s0, s0, 8
    v_and_b32 {t(6)}, 3, v0
    v_lshl_add_u32 v{vPL}, {t(6)}, 2, s0
    s_lshr_b32 s1, s3, 1
    s_lshl_b32 s0, s1, 10
    v_lshl_add_u32 v{vH0}, v0, 4, s0
    v_xor_b32 v{vH1}, 0x400, v{vH0}
    s_lshl_b32 s0, s1, 5
    v_and_b32 {t(6)}, 31, v0
    v_add_u32 {t(5)}, s0, {t(6)}
    v_lshlrev_b32 {t(5)}, 5, {t(5)}
    v_add_u32 v{vTT}, s71, {t(5)}
    s_lshl_b32 s0, s0, 15
    s_lshl_b32 s1, s71, 10
    s_add_u32 s1, s1, s0
    v_lshrrev_b32 {t(5)}, 2, v0
    v_lshlrev_b32 {t(5)}, 15, {t(5)}
    v_lshrrev_b32 {t(7)}, 4, v0
    v_xor_b32 {t(7)}, {t(7)}, v0
    v_and_b32 {t(7)}, 3, {t(7)}
    v_lshl_add_u32 {t(5)}, {t(7)}, 4, {t(5)}
    v_add_u32 {t(5)}, s1, {t(5)}
    s_lshl_b32 s0, s70, 7
    s_and_b32 s1, s3, 1
    s_lshl_b32 s1, s1, 6
    s_add_u32 s0, s0, s1
    v_add_u32 v{vXO}, s0, {t(5)}
    v_lshl_add_u32 v{vB2}, {t(6)}, 1, s0
    s_lshr_b32 s0, s0, 1
    v_and_b32 {t(5)}, 20, v0
    v_bfe_u32 {t(7)}, v0, 1, 1
    v_lshl_add_u32 {t(5)}, {t(7)}, 3, {t(5)}
    v_and_b32 {t(7)}, 1, v0
    v_lshl_add_u32 {t(5)}, {t(7)}, 1, {t(5)}
    v_bfe_u32 {t(7)}, v0, 3, 1
    v_add3_u32 {t(6)}, {t(5)}, {t(7)}, s0''')
    r.l.append('s_cmp_lt_u32 s70, 4\ns_cselect_b32 s0, 0, -1\ns_cselect_b32 s1, 0, 513')
    r(f'''v_xor_b32 {t(7)}, s0, {t(6)}
    v_add_u32 {t(7)}, s1, {t(7)}
    v_and_b32 {t(8)}, 1, {t(7)}
    v_lshlrev_b32 {t(8)}, 11, {t(8)}
    v_bfe_u32 {t(7)}, {t(7)}, 1, 7
    v_lshl_add_u32 {t(7)}, {t(7)}, 4, {t(8)}
    v_lshl_add_u32 {t(7)}, {t(4)}, 12, {t(7)}
    v_or_b32 {t(8)}, 0x200000, {t(7)}
    v_cmp_eq_u32 vcc, 0, {t(6)}
    s_nop 0
    v_cndmask_b32 v{vU}, {t(7)}, {t(8)}, vcc
    v_mov_b32 {t(8)}, {OOB}''')
    if True:
        r.l.append(f's_cmp_eq_u32 s3, 0\ns_cselect_b32 s0, s46, {OOB}')
        if dft:
            r(f'''v_cmp_gt_u32 vcc, 8, v0
            v_lshl_add_u32 {t(10)}, v0, 9, s0
            s_nop 0
            v_cndmask_b32 v{vSG}, {t(8)}, {t(10)}, vcc''')
        else:
            r(f'''v_lshrrev_b32 {t(5)}, 1, v0
            v_mul_u32_u24 {t(6)}, 7, {t(5)}
            v_lshrrev_b32 {t(6)}, 1, {t(6)}
            v_sub_u32 {t(6)}, s49, {t(6)}
            v_and_b32 {t(7)}, 1, v0
            v_lshl_add_u32 {t(7)}, {t(7)}, 2, {t(5)}
            v_cmp_gt_u32 vcc, 4, {t(6)}
            v_lshlrev_b32 {t(7)}, 8, {t(7)}
            v_lshl_add_u32 {t(7)}, {t(6)}, 2, {t(7)}
            v_add_u32 {t(10)}, s0, {t(7)}
            v_cndmask_b32 {t(10)}, {t(8)}, {t(10)}, vcc
            v_cmp_gt_u32 vcc, 8, v0
            s_nop 1
            v_cndmask_b32 v{vSG}, {t(8)}, {t(10)}, vcc''')
    else: r(f'v_mov_b32 v{vSG}, {t(8)}')
    return early, r.l, []
def trig_ops(fract=True, TMX=None):
    r=Rec(); t=lambda i:f'v{1000+i}'
    r.l.append(f's_cmp_lt_u32 s70, 4\ns_cselect_b32 s0, 0, 0x80000000')
    r(f'''s_or_b32 s0, s0, {f2u(1/2048):#x}
    v_mov_b32 {t(5)}, v{vTT}
    v_lshrrev_b32 {t(6)}, 5, v0
    v_cvt_f32_u32 {t(5)}, {t(5)}
    v_cvt_f32_u32 {t(6)}, {t(6)}
    v_mul_f32 {t(5)}, s0, {t(5)}
    v_cmp_gt_u32 s[0:1], 32, v0
    v_mul_f32 {t(6)}, {t(6)}, {t(5)}
    v_mul_f32 {t(7)}, {f2u(32.0):#x}, {t(5)}
    v_add_f32 {t(5)}, {t(5)}, {t(5)}
    v_mul_f32 {t(9)}, 0.5, {t(7)}
    v_cndmask_b32 {t(9)}, {t(7)}, {t(9)}, s[0:1]''')
    for j in range(8):
        if j: r(f'v_add_f32 {t(6)}, {t(6)}, {t(5)}')
        if fract:
            r(f'''v_add_f32 {t(1)}, {t(6)}, {t(7)}
            v_sub_f32 {t(2)}, {t(9) if j==0 else t(7)}, {t(6)}
            v_fract_f32 {t(0)}, {t(6)}
            v_add_f32 {t(3)}, {t(2)}, {t(7)}
            v_fract_f32 {t(1)}, {t(1)}
            v_fract_f32 {t(2)}, {t(2)}
            v_fract_f32 {t(3)}, {t(3)}''')
        else:
            r(f'''v_add_f32 {t(1)}, {t(6)}, {t(7)}
            v_sub_f32 {t(2)}, {t(9) if j==0 else t(7)}, {t(6)}
            v_add_f32 {t(3)}, {t(2)}, {t(7)}''')
        for i in range(4):
            a_=t(i) if (fract or i) else t(6)
            r(f'v_cos_f32 {t(12+2*i)}, {a_}\nv_sin_f32 {t(13+2*i)}, {a_}')
        for i in range(4): r(f'v_cvt_pk_bf16_f32 {t(20+i)}, {t(12+2*i)}, {t(13+2*i)}')
        for i in range(4): r(f'v_accvgpr_write_b32 a{224+4*j+i}, {t(20+i)}')
    TM={0:4,1:5,2:6,3:7,5:13,6:14,7:15,9:8}
    TM.update({12+i:128+i for i in range(8)}); TM.update({20+i:232+i for i in range(4)})
    return remap(r.l,TMX or TM)
def remap(L, TM):
    return [re.sub(r'v(10\d\d)\b', lambda m:'v%d'%TM[int(m.group(1))-1000], x) for x in L]
def xb2_ops(g):
    def o0(): g.vmem(f'buffer_load_ushort v{vB2}, v{vB2}, s[72:75], 0 offen','b2')
    return [o0]
def ppos(pr):
    p=pr%10
    return 131072+p*4096 if p<2 else ((p-2)>>1)*32768+(p&1)*4096
def w2_pair_ops(g, pr, base='s69', lds=None):
    if lds is None: lds=ppos(pr)
    def mk(i):
        def op():
            if i==0: g(f's_add_u32 m0, {base}, {lds}')
            g.vmem(f'buffer_load_dwordx4 v{vDM[i]}, s[64:67], s68 offen offset:{1024*i} lds', f'w{pr}')
            if i==3 and pr<13: g(f's_add_u32 s68, s68, 32768\ns_cmp_eq_u32 s68, {14*32768}\ns_cselect_b32 s68, 0, s68')
        return op
    return [mk(i) for i in range(4)]
def w2_trl(pr, regs=None, off=None):
    if regs is None:
        off=ppos(pr)
        if off>=65536 and off<0x18000: regs=('hi',);
        if off<65536: regs=vT[0:2]
        elif off>=0x18000: regs=vT[2:4]; off-=0x18000
        else: regs=[vTm0,vTm1]; off-=65536
    L=[]
    for k in range(2):
        for a_ in range(2):
            for q in range(2):
                r=8*(2*pr+k)+4*a_+2*q
                L.append(f'ds_read_b64_tr_b16 a[{r}:{r+1}], v{regs[a_]} offset:{off+2048*k+1024*q}')
    return L
vJ=[[241,242],[243,244]]
vTm0,vTm1=14,15

def entry(g):
    g('''s_cmp_ge_u32 s2, 256
    s_cbranch_scc1 L_end''')
    g.stamp()
    g('''s_load_dwordx16 s[4:19], s[0:1], 0
    s_load_dwordx8 s[20:27], s[0:1], 64
    s_load_dwordx2 s[28:29], s[0:1], 96
    v_lshrrev_b32 v1, 6, v0
    s_and_b32 s30, s2, 7
    s_lshr_b32 s31, s2, 3
    v_readfirstlane_b32 s3, v1''')
    if g.opt.get('codepf',1):
        g(f'''s_getpc_b64 s[50:51]
        L_pc:
        s_mul_i32 s53, s31, 1280
        v_lshl_add_u32 v2, v0, 3, s53
        v_min_u32 v2, L_codeend-L_pc-4, v2
        v_mov_b32 v3, s51
        v_add_co_u32 v2, vcc, s50, v2
        v_addc_co_u32 v3, vcc, 0, v3, vcc''')
        g.vmem('global_load_dword v1, v[2:3], off','pf')
    if g.opt.get('p1arr',48)==216:
        g('''v_and_b32 v0, 63, v0
        s_lshl_b32 s48, s30, 1
        s_and_b32 s53, s31, 1
        s_cmp_lt_u32 s31, 4
        s_cbranch_scc1 L_dft0
        s_add_u32 s48, s48, s53
        s_lshr_b32 s49, s31, 1
        s_sub_u32 s49, s49, 2
        s_mov_b32 s100, s53''')
        r=g.opt.get('rot',4)
        if r==1: g('s_lshl_b32 s56, s53, 2\ns_add_u32 s56, s56, s49\ns_and_b32 s56, s56, 7')
        elif r==2: g('s_add_u32 s56, s53, s49\ns_and_b32 s56, s56, 1\ns_lshl_b32 s56, s56, 2')
        elif r==4: g('s_lshl_b32 s56, s53, 1\ns_add_u32 s56, s56, s49\ns_and_b32 s56, s56, 3\ns_lshl_b32 s56, s56, 1')
        if g.opt.get('xph',0): g('s_add_u32 s56, s56, s30\ns_and_b32 s56, s56, 7')
        return
    rot=g.opt.get('rot',4)
    g('''v_and_b32 v0, 63, v0
    s_lshr_b32 s48, s30, 1
    s_lshl_b32 s55, s48, 1
    s_lshl_b32 s48, s48, 2
    s_and_b32 s100, s31, 3
    s_add_u32 s48, s48, s100
    s_lshr_b32 s49, s31, 2
    s_sub_u32 s49, s49, 1
    s_and_b32 s49, s49, 7''') if g.opt.get('dftfirst',1) else g('''v_and_b32 v0, 63, v0
    s_lshr_b32 s48, s30, 1
    s_lshl_b32 s55, s48, 1
    s_lshl_b32 s48, s48, 2
    s_lshr_b32 s100, s31, 3
    s_add_u32 s48, s48, s100
    s_and_b32 s49, s31, 7''')
    if rot==1:   g('s_lshl_b32 s56, s100, 1\ns_add_u32 s56, s56, s49\ns_and_b32 s56, s56, 7')
    elif rot==2: g('s_add_u32 s56, s100, s49\ns_and_b32 s56, s56, 1\ns_lshl_b32 s56, s56, 2')
    elif rot==4: g('s_add_u32 s56, s100, s49\ns_and_b32 s56, s56, 3\ns_lshl_b32 s56, s56, 1')
    elif rot==0: g('s_mov_b32 s56, 0')
    if g.opt.get('xph',0): g('s_add_u32 s56, s56, s55\ns_and_b32 s56, s56, 7')
    g('''s_and_b32 s53, s30, 1
    s_cmp_eq_u32 s49, 7
    s_cbranch_scc1 L_dfte''')

def p1_mlp(g):
    ACC=64
    vX=[2,3,4,5]; vW=[6,7,8,9]; vB=[10,11,12,13]; vA=[18,19]
    vSA,vCA,vCP,vCB=14,15,16,17
    vB1=[56,57]; CSA=164; SEL=168; GA=144; GF=160
    WP=200; vP0,vP1,vPT,vPS,vPF=208,209,210,211,212
    rot=g.opt.get('rot',4)
    A216=g.opt.get('p1arr',48)==216
    if A216:
        g('s_and_b32 s50, s3, 1\ns_lshr_b32 s51, s3, 1\ns_and_b32 s53, s49, 1')
    else:
        g('''s_mul_i32 s54, s53, 7
        s_add_u32 s49, s49, s54
        s_and_b32 s50, s3, 1
        s_lshr_b32 s51, s3, 1''')
    g('s_lshl_b32 s63, s48, 1\ns_add_u32 s63, s63, s53')
    t1_of(g,'s52','s48','s51','s53')
    g(f'''v_lshrrev_b32 v24, 3, v0
    v_lshrrev_b32 v25, 4, v0
    v_and_b32 v28, 7, v0
    v_xor_b32 v26, v28, v25
    v_lshlrev_b32 v26, 4, v26
    v_lshl_add_u32 v26, v24, 15, v26
    s_lshl_b32 s53, s52, 10
    s_lshl_b32 s54, s50, 20
    s_add_u32 s53, s53, s54
    v_add_u32 v{vX[0]}, s53, v26
    v_xor_b32 v27, 64, v{vX[0]}
    v_add_u32 v{vX[1]}, {262144-1024}, v27
    v_add_u32 v{vX[2]}, {2*(262144-1024)}, v{vX[0]}
    v_add_u32 v{vX[3]}, {3*(262144-1024)}, v27
    v_and_b32 v26, 15, v0
    v_lshlrev_b32 v27, 2, v25
    v_xor_b32 v26, v26, v27
    v_lshlrev_b32 v26, 4, v26
    v_mul_u32_u24 v29, 3584, v25
    v_add_u32 v26, v26, v29
    s_mul_i32 s53, s3, 57344
    s_lshl_b32 s54, s49, 8
    s_add_u32 s53, s53, s54
    v_add_u32 v{vW[0]}, s53, v26
    v_add_u32 v{vW[1]}, 13312, v{vW[0]}
    v_add_u32 v{vW[2]}, {2*13312}, v{vW[0]}
    v_add_u32 v{vW[3]}, {3*13312}, v{vW[0]}
    s_lshl_b32 s55, s3, 12''')
    g.stamp('pro')
    g('s_waitcnt lgkmcnt(0)')
    g.stamp('pro')
    srd(g,32,4,2097152); srd(g,36,16,512*1792*2)
    def stage_ops(st):
        slot=st&3
        def mk(i):
            def op():
                if i==0: g(f's_lshl_b32 s57, s56, 7\ns_mul_i32 s58, s56, 229376\ns_add_u32 m0, s55, {slot*32768}')
                if i==4: g(f's_add_u32 m0, s55, {slot*32768+16384}\ns_add_u32 s56, s56, 1\ns_and_b32 s56, s56, 7')
                if i<4: g.vmem(f'buffer_load_dwordx4 v{vX[i]}, s[32:35], s57 offen offset:{1024*i} lds',f's{st}')
                else:   g.vmem(f'buffer_load_dwordx4 v{vW[i-4]}, s[36:39], s58 offen offset:{1024*(i-4)} lds',f's{st}')
            return op
        return [mk(i) for i in range(8)]
    D=g.opt.get('depth',3)
    for op in stage_ops(0): op()
    g.stamp('pro')
    for op in stage_ops(1): op()
    g('@@SPLIT@@')
    g.stamp('pro')
    epoch_load(g)
    g(f'''s_lshl_b32 s46, s48, 11
    v_and_b32 v24, 31, v0
    v_lshrrev_b32 v25, 5, v0
    v_bfe_u32 v26, v0, 1, 3
    v_xor_b32 v26, v26, v25
    s_lshl_b32 s53, s51, 13
    v_lshlrev_b32 v27, 7, v24
    v_add_u32 v27, s53, v27''')
    for kk in range(4):
        g(f'''v_xor_b32 v28, {2*kk}, v26
        v_lshl_add_u32 v{vB[kk]}, v28, 4, v27''')
    g(f'''v_bfe_u32 v26, v0, 2, 2
    v_lshl_add_u32 v27, v25, 3, v26
    v_lshlrev_b32 v27, 8, v27
    s_lshl_b32 s53, s50, 1
    s_add_u32 s53, s53, s51
    v_xor_b32 v26, s53, v26
    v_lshl_add_u32 v27, v26, 6, v27
    v_bfe_u32 v26, v0, 4, 1
    v_and_b32 v28, 3, v0
    v_lshlrev_b32 v30, 3, v28
    v_lshl_add_u32 v30, v26, 5, v30
    s_movk_i32 s59, 0x4000
    v_add3_u32 v{vA[0]}, v27, v30, s59
    v_xor_b32 v{vA[1]}, 64, v{vA[0]}
    v_bfe_u32 v27, v0, 2, 1
    v_xor_b32 v26, v26, v27
    v_or_b32 v26, v26, v28
    v_mov_b32 v27, 0x3f803f80
    v_cmp_eq_u32 vcc, 0, v26
    s_lshl_b32 s53, s53, 5
    v_add_u32 v26, s53, v24
    v_cndmask_b32 v{SEL+4}, 0, v27, vcc
    s_lshl_b32 s54, s49, 7
    v_add_lshl_u32 v{vB1[0]}, v26, s54, 1
    v_xor_b32 v{vB1[1]}, 64, v{vB1[0]}''')
    srd(g,40,18,1792*2)
    for t in range(2): g.vmem(f'buffer_load_ushort v{vB1[t]}, v{vB1[t]}, s[40:43], 0 offen','b1')
    if A216:
        g(f'''s_lshl_b32 s53, s49, 3
        s_lshr_b32 s54, s48, 1
        s_add_u32 s53, s53, s54
        s_lshl_b32 s53, s53, 11
        s_add_u32 s53, s53, {CS_REL+(ST_OFF-F_OFF)}
        v_lshl_add_u32 v{vCA}, v26, 4, s53
        s_lshl_b32 s54, s100, 3
        v_add_u32 v{vCP}, s54, v{vCA}
        v_xor_b32 v{vCB}, 0x200, v{vCA}''')
    else: g(f'''s_lshl_b32 s53, s49, 2
    s_lshr_b32 s54, s48, 2
    s_add_u32 s53, s53, s54
    s_lshl_b32 s53, s53, 12
    s_add_u32 s53, s53, {CS_REL+(ST_OFF-F_OFF)}
    v_lshl_add_u32 v26, v26, 5, s53
    s_lshl_b32 s54, s100, 3
    v_add_u32 v{vCP}, s54, v26
    v_lshl_add_u32 v{vCA}, v25, 4, v26
    v_xor_b32 v{vCB}, 0x400, v{vCA}''')
    g(f'''
    s_lshl_b32 s53, s63, 11
    s_lshl_b32 s54, s51, 10
    s_add_u32 s53, s53, s54
    s_add_u32 s53, s53, {ST_OFF-F_OFF}
    v_lshl_add_u32 v{vSA}, v24, 4, s53
''')
    srd(g,40,28,4<<20,add=F_OFF)
    g.stamp('pro')
    WS0=g.opt.get('wsched','o')
    if D==3 and WS0!='y':
        for op in stage_ops(2): op()
    g.stamp('pro')
    g('s_waitcnt lgkmcnt(0)')
    early,addr,trig=p2_setup_ops(g,False)
    TM={i:176+i for i in range(24)}
    early,addr,trig=[remap(x,TM) for x in (early,addr,trig)]
    vBh=[200,201,202,203]; vAh=[204,205]
    g.miscq=[f'v_add_u32 v{h}, 0x10000, v{l}' for h,l in zip(vBh+vAh,vB+vA)]+early+addr+trig
    def fr(s_):
        b=[32,128][s_]
        return dict(A=[b,b+4],B=[b+8,b+12])
    def rd(n):
        st,kk=n>>2,n&3
        f=fr(n&1); o=(st&1)*32768; hi=(st>>1)&1
        tr=lambda t,q: f'ds_read_b64_tr_b16 v[{f["A"][t]+2*q}:{f["A"][t]+2*q+1}], v{[vA,vAh][hi][t]} offset:{o+4096*kk+1024*q}'
        bb=lambda u: f'ds_read_b128 v[{f["B"][u]}:{f["B"][u]+3}], v{[vB,vBh][hi][kk]} offset:{o+4096*u}'
        return [tr(0,0),tr(0,1),bb(0),bb(1),tr(1,0),tr(1,1)]
    ncs = 4 if A216 else {1:2,4:2,2:4,0:8}[rot]
    def setsel(st):
        if ncs==2 or A216: cond=None
        elif ncs==4: cond=f's_lshr_b32 s53, s100, 1\ns_cmp_eq_u32 s53, {st>>1}'
        else: cond=f's_cmp_eq_u32 s100, {st>>1}'
        if cond is None:
            for i in range(4): g(f'v_mov_b32 v{SEL+i}, v{SEL+4}')
        else:
            g(cond+'\ns_cselect_b32 s53, -1, 0')
            for i in range(4): g(f'v_and_b32 v{SEL+i}, s53, v{SEL+4}')
    def gather_ops():
        def mk(r,v,off):
            def o(): g.vmem(f'buffer_load_dwordx4 v[{r}:{r+3}], v{v}, s[40:43], 0 offen offset:{off} sc1','ga')
            return o
        return [mk(GA,vSA,0),mk(GA+4,vSA,512),mk(GA+8,vCA,0),mk(GA+12,vCB,0)]
    def publish():
        g(f'v_mov_b32 v{CSA+1}, s47')
        g.vmem(f'buffer_store_dwordx2 v[{CSA}:{CSA+1}], v{vCP}, s[40:43], 0 offen sc1','csp')
    WPS=g.opt.get('wpstage',1)
    WSCHED={'a':{2:[0],3:[1],5:[2,3],6:[4],7:[5,6]},'b':{3:[0],4:[1],5:[2],6:[3,4],7:[5]},'c':{5:[0,1],6:[2],7:[3,4]},'d':{1:[0],2:[1],5:[2,3],6:[4,5],7:[6]},'e':{5:[0,1],6:[2,3],7:[4,5]},'f':{4:[0],5:[1],6:[2,3],7:[4,5]},'g':{5:[0],6:[1],7:[2,3]},'h':{4:[0,1],7:[2,3,4]},'i':{4:[0,1],7:[2,3]},'j':{4:[0,1]},'k':{3:[0,1],6:[2,3],7:[4,5]},'l':{4:[0,1],6:[2],7:[3,4]},'m':{1:[(0,0)],2:[(0,1)],3:[(1,0)],4:[(1,1)],5:[2,3],6:[4,5],7:[6]},'n':{1:[(0,0)],2:[(0,1)],3:[(1,0)],4:[(1,1)],6:[2,3],7:[4,5]},'o':{1:[0],2:[1],5:[2,3],6:[4,5],7:[6,7]},'p':{5:[0,1],7:[2]},'q':{5:[0,1]},'r':{5:[0,1],6:[2]},'s':{5:[0,1],7:[2,3]},'t':{5:[0,1],6:[2],7:[3]},'u':{1:[0,1],5:[2,3],6:[4,5],7:[6,7]},'v':{0:[0,1],5:[2,3],6:[4,5],7:[6,7]},'w':{2:[0,1],5:[2,3],6:[4,5],7:[6,7]},'x':{-1:[0,1],5:[2,3],6:[4,5],7:[6,7]},'y':{-2:[0,1],5:[2,3],6:[4,5],7:[6,7]}}[g.opt.get('wsched','o')]
    half={}
    prevtr=[0]
    NTL=g.opt.get('ntl',5)
    TRL={n:(i>>1,i&1) for i,n in enumerate([20,21,22,23,26,27,28,29,30,31][:2*NTL])}
    MX=g.opt.get('mx',5)
    nw=len(set((p[0] if isinstance(p,tuple) else p) for x in WSCHED.values() for p in x))
    def enter(st):
        g.flush_side()
        g.wait(f's{st}')
        g('s_barrier')
        g.stamp('st')
        if st+D<8: g.sideq+=stage_ops(st+D)
        if st==max(ncs,g.opt.get('pubst',4)) and ncs<8: g.sideq.append(publish)
        if st==6: g.miscq+=hr.l
        if st in WSCHED and st<6:
            while len(g.miscq)>len(trig)+len(addr): misc(g,1)
        if st==g.opt.get('gast',7) and not g.opt.get('galast'): g.sideq+=gather_ops()
        for pr in WSCHED.get(st,[]):
            if isinstance(pr,tuple):
                if pr[1]==0: half[pr[0]]=w2_pair_ops(g,pr[0])
                ops=half[pr[0]][2*pr[1]:2*pr[1]+2]
                if pr[1]==1: ops=[lambda p=pr[0],o=ops[0]:(g(f's_add_u32 m0, s69, {ppos(p)}'),o())]+ops[1:]
                g.sideq+=ops
            else: g.sideq+=w2_pair_ops(g,pr)
        if st==g.opt.get('gast',7) and g.opt.get('galast'): g.sideq+=gather_ops()
    if WS0 in 'xy':
        while len(g.miscq)>len(trig)+len(addr): misc(g,1)
        for op in w2_pair_ops(g,0)+w2_pair_ops(g,1): op()
        if WS0=='y':
            for op in stage_ops(2): op()
    hr=Rec()
    srd(hr,36,28,7340032)
    hr('''s_mul_i32 s53, s52, 112
    s_lshl_b32 s54, s49, 3
    s_add_u32 s53, s53, s54
    s_lshl_b32 s54, s50, 2
    s_add_u32 s53, s53, s54
    s_lshl_b32 s53, s53, 11
    s_lshl_b32 s54, s51, 12
    s_add_u32 s60, s53, s54
    s_xor_b32 s61, s60, 0x400
    s_xor_b32 s62, s60, 0x1000
    s_xor_b32 s63, s60, 0x1400
''')
    nonce(g); setsel(0)
    enter(0); g.stamp(); g.stamp('pro')
    for x in rd(0): g(x)
    for n in range(32):
        st,kk=n>>2,n&3
        f=fr(n&1)
        def mf(t,u):
            d=ACC+16*(2*t+u)
            g(f'{MF} v[{d}:{d+15}], v[{f["A"][t]}:{f["A"][t]+3}], v[{f["B"][u]}:{f["B"][u]+3}], '+(f'v[{d}:{d+15}]' if n else '0'))
        nx = rd(n+1) if n<31 else []
        xt=prevtr[0]; prevtr[0]=0
        if kk==3:
            g(f's_waitcnt lgkmcnt({xt})'); mf(0,0)
            if st<7: enter(st+1)
            else: g.flush_side(); g('s_barrier')
            for x in nx[:3]: g(x)
            mf(0,1)
            for x in nx[3:]: g(x)
            mf(1,0)
        else:
            g(f's_waitcnt lgkmcnt({3+xt})'); mf(0,0)
            for x in nx[:3]: g(x)
            g(f's_waitcnt lgkmcnt({5+xt})'); mf(0,1)
            for x in nx[3:]: g(x)
            g(f's_waitcnt lgkmcnt({6+xt})'); mf(1,0)
        if n in TRL:
            pr,h=TRL[n]
            if h==0: g.wait(f'w{pr}')
            for x in w2_trl(pr)[4*h:4*h+4]: g(x)
            prevtr[0]=4
        else:
            had=bool(g.sideq); g.side(); misc(g, 2 if had else MX)
        if st<ncs:
            g(f'v_mfma_f32_16x16x32_bf16 v[{CSA}:{CSA+3}], v[{SEL}:{SEL+3}], v[{f["A"][0]}:{f["A"][0]+3}], '+(f'v[{CSA}:{CSA+3}]' if n else '0'))
        mf(1,1)
        had=bool(g.sideq); g.side(2 if (len(g.sideq)>2*(3-kk)+1 or n in TRL) else 1); misc(g,2 if had else MX)
        if kk==3 and st+1<ncs and (st+1)%2==0: setsel(st+1)
    if ncs==8: publish()
    g.flush_side(); misc(g,9999)
    g.stamp(); g.stamp('st'); g.stamp('tail')
    g.wait('ga')
    g(f'''s_mov_b32 s56, {SPIN}
    L_gchk:
    v_xor_b32 v24, s47, v{GA+3}
    v_xor_b32 v25, s47, v{GA+7}
    v_xor_b32 v26, s47, v{GA+9}
    v_xor_b32 v27, s47, v{GA+11}
    v_xor_b32 v28, s47, v{GA+13}
    v_xor_b32 v29, s47, v{GA+15}
    v_or3_b32 v24, v24, v25, v26
    v_or3_b32 v27, v27, v28, v29
    v_or_b32 v24, v24, v27
    v_cmp_ne_u32 vcc, 0, v24
    s_cbranch_vccnz L_gslow
    L_gok:''')
    keep=list(g.vm); main=g.a.l; g.a.l=[]
    g('L_gslow:\ns_sleep 8')
    for op in gather_ops(): op()
    g('s_waitcnt vmcnt(0)\ns_sub_u32 s56, s56, 1\ns_cbranch_scc0 L_gchk\ns_branch L_gok')
    g.outofline+=g.a.l; g.a.l=main; g.vm=keep
    NG=g.opt.get('ng',10)
    assert NG<=10+NTL
    g('s_waitcnt lgkmcnt(0)')
    for pr in range(nw,NG): g.sideq+=w2_pair_ops(g,pr)
    a0,a1=GA+8,GA+12
    c0=-2*math.sqrt(2/math.pi)*math.log2(math.e); c1=c0*0.044715
    g(f'''v_add_f32 v{a0}, v{a0}, v{a0+2}
    v_add_f32 v{a1}, v{a1}, v{a1+2}
    v_rcp_f32 v24, v{GA+2}
    v_mov_b32 v{a0+1}, v{a0}
    v_mov_b32 v{a1+1}, v{a1}
    v_rcp_f32 v26, v{GA+6}
    v_cmp_gt_u32 vcc, 32, v0
    v_permlane32_swap_b32 v{a0}, v{a0+1}
    v_permlane32_swap_b32 v{a1}, v{a1+1}
    v_mov_b32 v50, v{GA+2}
    v_mov_b32 v54, v{GA+6}
    {'v_mov_b32' if A216 else 'v_add_f32'} v{a0+2}, v{a0}{'' if A216 else f', v{a0+1}'}
    {'v_mov_b32' if A216 else 'v_add_f32'} v{a1+2}, v{a1}{'' if A216 else f', v{a1+1}'}
    v_mov_b32 v{GA+2}, v{GA}
    v_mov_b32 v{GA+6}, v{GA+4}
    v_cvt_pk_bf16_f32 v{a0}, v{a0+2}, v{a0+2}
    v_cvt_pk_bf16_f32 v{a1}, v{a1+2}, v{a1+2}
    v_lshl_or_b32 v{a0+1}, v{vB1[0]}, 16, v{vB1[0]}
    v_lshl_or_b32 v{a1+1}, v{vB1[1]}, 16, v{vB1[1]}
    v_lshlrev_b32 v{a0+3}, 16, v{a0}
    v_lshlrev_b32 v{a1+3}, 16, v{a1}
    v_cndmask_b32 v{a0}, 0, v{a0}, vcc
    v_cndmask_b32 v{a1}, 0, v{a1}, vcc
    v_sub_f32 v{a0+2}, v{a0+2}, v{a0+3}
    v_sub_f32 v{a1+2}, v{a1+2}, v{a1+3}
    v_cndmask_b32 v{a0+1}, 0, v{a0+1}, vcc
    v_cndmask_b32 v{a1+1}, 0, v{a1+1}, vcc
    v_cvt_pk_bf16_f32 v{a0+2}, v{a0+2}, 0
    v_cvt_pk_bf16_f32 v{a1+2}, v{a1+2}, 0
    v_mov_b32 v{a0+3}, 0
    v_mov_b32 v{a1+3}, 0
    v_cndmask_b32 v{a0+2}, 0, v{a0+2}, vcc
    v_cndmask_b32 v{a1+2}, 0, v{a1+2}, vcc
    v_mov_b32 v{GA+3}, 0
    v_mov_b32 v{GA+7}, 0''')
    Aex=[a0,a1]; Bex=[GA,GA+4]
    for t in range(2):
        for u in range(2):
            d=ACC+16*(2*t+u)
            g(f'{MF} v[{d}:{d+15}], v[{Aex[t]}:{Aex[t]+3}], v[{Bex[u]}:{Bex[u]+3}], v[{d}:{d+15}]')
    g(f'''v_mul_f32 v25, v24, v24
    v_mul_f32 v27, v26, v26
    v_mul_f32 v49, {f2u(c0):#x}, v24
    v_mul_f32 v53, {f2u(c0):#x}, v26
    v_mul_f32 v25, v25, v24
    v_mul_f32 v27, v27, v26
    v_mul_f32 v48, {f2u(c1):#x}, v25
    v_mul_f32 v52, {f2u(c1):#x}, v27''')
    g('v_lshlrev_b32 v56, 4, v0')
    g.stamp()
    while len(g.miscq)>len(trig): misc(g,1)
    def trop(pr,h):
        def op():
            if h==0: g.wait(f'w{pr}')
            for x in w2_trl(pr)[4*h:4*h+4]: g(x)
        return op
    xo=xb2_ops(g)
    trs=[]
    for pr in range(NTL,4):
        if not g.opt.get('trpost'): trs+=[trop(pr,0),trop(pr,1)]
    g.sideq+=xo+trs
    NS=g.opt.get('gside',4)
    for t in range(2):
        for u in range(2):
            d=ACC+16*(2*t+u); K=[48,52][u]; RI=[50,54][u]
            for j in range(2):
                NS=g.opt.get('gside',4) if 4*t+2*u+j>=g.opt.get('gstart',0) else 0
                P=[d+8*j+2*i for i in range(4)]
                tm=[2+2*i for i in range(4)]
                o=[24,28][j]
                for i in range(4): g(f'v_pk_mul_f32 v[{tm[i]}:{tm[i]+1}], v[{P[i]}:{P[i]+1}], v[{P[i]}:{P[i]+1}]')
                for i in range(4): g(f'v_pk_fma_f32 v[{tm[i]}:{tm[i]+1}], v[{tm[i]}:{tm[i]+1}], v[{K}:{K+1}], v[{K}:{K+1}] op_sel:[0,0,1] op_sel_hi:[1,0,1]')
                if NS>=1: g.side()
                for i in range(4): g(f'v_pk_mul_f32 v[{tm[i]}:{tm[i]+1}], v[{tm[i]}:{tm[i]+1}], v[{P[i]}:{P[i]+1}]')
                for i in range(8):
                    g(f'v_exp_f32 v{2+i}, v{2+i}')
                    if i==3 and NS>=4: g.side()
                if NS>=2: g.side()
                for i in range(4): g(f'v_pk_fma_f32 v[{tm[i]}:{tm[i]+1}], v[{tm[i]}:{tm[i]+1}], v[{RI}:{RI+1}], v[{RI}:{RI+1}] op_sel:[0,0,0] op_sel_hi:[1,0,0]')
                for i in range(8):
                    g(f'v_rcp_f32 v{2+i}, v{2+i}')
                    if i==3 and NS>=5: g.side()
                if NS>=3: g.side()
                for i in range(4): g(f'v_pk_mul_f32 v[{tm[i]}:{tm[i]+1}], v[{tm[i]}:{tm[i]+1}], v[{P[i]}:{P[i]+1}]')
                for i in range(4): g(f'v_cvt_pk_bf16_f32 v{o+i}, v{tm[i]}, v{tm[i]+1}')
                g.vmem(f'buffer_store_dwordx4 v[{o}:{o+3}], v56, s[36:39], s{60+2*t+u} offen offset:{2048*j} {"" if g.opt.get("hplain") else "sc1"}','st')
    g.stamp()
    print('after GELU: side',len(g.sideq),'misc',len(g.miscq),file=sys.stderr)
    g.stamp('tail')
    g.flush_side()
    g(f'v_mov_b32 v2, s47\nv_add_u32 v{vTm0}, 0x10000, v{vT[0]}\nv_add_u32 v{vTm1}, 0x10000, v{vT[1]}')
    NJ=g.opt.get('nj',4)
    for k in range(0 if g.opt.get('merge',0) else NJ//2): g(f'v_add_u32 v{vJ[k][0]}, {ppos(12-2*k)}, v{vT[0]}\nv_add_u32 v{vJ[k][1]}, {ppos(12-2*k)}, v{vT[1]}')
    for d in (1,2,3): g(f's_add_u32 s{5+d}, s69, {d*32768}\ns_xor_b32 s{8+d}, s{5+d}, {d*8192}')
    g(f's_add_u32 s12, s69, {32768+4096}')
    TB=g.opt.get('trbefore',1)
    for pr in range(max(4,NTL),4+TB):
        g.wait(f'w{pr}')
        for x in w2_trl(pr): g(x)
    g.stamp('tail')
    g.wait('st')
    g.stamp('tail')
    g('s_barrier')
    g.vmem(f'buffer_store_dword v2, v{vSG}, s[40:43], 0 offen sc1','flag')
    g.stamp('tail')
    if g.opt.get('merge',0):
        g.nw=NG
        return
    for pr in range(NG,10):
        for op in w2_pair_ops(g,pr): op()
    if g.opt.get('trpost'):
        for pr in range(NTL,4):
            g.wait(f'w{pr}')
            for x in w2_trl(pr): g(x)
    g('s_waitcnt lgkmcnt(0)')
    for pr in range(max(NG,10),14):
        for op in w2_pair_ops(g,pr): op()
    for pr in range(max(4+TB,NTL),14-NJ):
        g.wait(f'w{pr}')
        for x in w2_trl(pr): g(x)
    g('v_not_b32 v3, v2')

def p1_dft(g):
    RAW=64
    vBr0=56; vXL=[57,18,19,2]; vSP=3; vA0=244; vBd=[4,5,6,7]; vWe,vWo=8,9; vFA=[10,11,12,13]; vFB=[14,15,16,17]
    CC=[192,196]; SS=[200,204]; NS=[208,212]
    RC=[216,218,220,222]
    if g.opt.get('p1arr',48)==216:
        g('L_dft0:\ns_lshr_b32 s100, s31, 1\ns_add_u32 s48, s48, s100\ns_lshl_b32 s100, s100, 1')
    g('''s_mov_b32 s49, s53
    s_lshr_b32 s51, s3, 1''')
    t1_of(g,'s52','s48','s51','s53')
    g(f'''s_and_b32 s50, s3, 1
    s_lshl_b32 s53, s50, 5
    s_add_u32 s53, s53, s52
    s_lshl_b32 s53, s53, 10
    v_lshrrev_b32 v24, 3, v0
    v_lshrrev_b32 v25, 4, v0
    v_and_b32 v26, 7, v0
    v_lshlrev_b32 v27, 4, v26
    v_lshl_add_u32 v27, v24, 16, v27
    s_lshl_b32 s54, s100, 7
    v_add3_u32 v{vXL[0]}, v27, s53, 0
    v_add_u32 v{vXL[0]}, s54, v{vXL[0]}
    v_xor_b32 v{vXL[1]}, 0x80, v{vXL[0]}
    v_xor_b32 v{vXL[2]}, 0x100, v{vXL[0]}
    v_xor_b32 v{vXL[3]}, 0x180, v{vXL[0]}
    s_waitcnt lgkmcnt(0)''')
    srd(g,32,4,2097152)
    def xops(gi):
        def mk(j):
            def op():
                if j==0: g(f's_mov_b32 s58, {gi*524288}')
                r=RAW+32*gi+4*j
                g.vmem(f'buffer_load_dwordx4 v[{r}:{r+3}], v{vXL[j&3]}, s[32:35], s58 offen offset:{512*(j>>2)}',f'x{gi}')
            return op
        return [mk(j) for j in range(8)]
    DO=g.opt.get('dord','a')
    for gi in range(1 if DO in 'de' else 2):
        for op in xops(gi): op()
    if DO not in 'de': g('@@SPLIT@@')
    epoch_load(g)
    srd(g,36,10,524288); srd(g,16,12,524288); srd(g,40,28,4<<20,add=F_OFF)
    g(f'''s_lshl_b32 s46, s48, 3
    s_lshl_b32 s53, s49, 2
    s_add_u32 s46, s46, s53
    s_add_u32 s46, s46, {FU}
    v_xor_b32 v26, v26, v25
    v_lshlrev_b32 v26, 4, v26
    v_lshl_add_u32 v27, v24, 11, v26
    s_lshl_b32 s53, s3, 16
    s_lshl_b32 s54, s49, 10
    s_add_u32 s53, s53, s54
    v_add_u32 v{vBd[0]}, s53, v27
    v_xor_b32 v28, 64, v{vBd[0]}
    v_add_u32 v{vBd[1]}, {16384-1024}, v28
    v_add_u32 v{vBd[2]}, {2*(16384-1024)}, v{vBd[0]}
    v_add_u32 v{vBd[3]}, {3*(16384-1024)}, v28
    v_add_u32 v28, 0x40000, v{vBd[0]}
    v_cmp_gt_u32 vcc, 1024, v{vBd[0]}
    v_lshl_add_u32 v27, v24, 7, v26
    s_lshl_b32 s53, s3, 12
    v_cndmask_b32 v{vBr0}, v{vBd[0]}, v28, vcc
    v_add_u32 v{vWe}, s53, v27
    v_xor_b32 v{vWo}, 64, v{vWe}
    s_mul_i32 s55, s3, 24576
    s_add_u32 s55, s55, 65536
    s_lshl_b32 s53, s48, 1
    s_add_u32 s53, s53, s49
    s_lshl_b32 s53, s53, 11
    s_lshl_b32 s54, s51, 10
    s_add_u32 s53, s53, s54
    s_lshl_b32 s54, s50, 4
    s_add_u32 s53, s53, s54
    s_add_u32 s53, s53, {ST_OFF-F_OFF}
    v_lshl_add_u32 v{vSP}, v24, 5, s53
    s_lshl_b32 s53, s48, 1
    s_add_u32 s53, s53, s49
    s_lshl_b32 s53, s53, 9
    s_add_u32 s13, s53, {A0_REL}
    s_lshl_b32 s54, s3, 7
    s_add_u32 s53, s13, s54
    v_lshl_add_u32 v{vA0}, v24, 2, s53
    v_and_b32 v242, 3, v0
    v_lshl_add_u32 v{vA0}, v242, 5, v{vA0}''')
    def bops(st):
        slot=st&1
        def mk(i):
            def op():
                if i==0: g(f's_xor_b32 s57, s100, {st}\ns_lshl_b32 s57, s57, 7\ns_add_u32 m0, s55, {slot*8192}')
                if i==4: g(f's_add_u32 m0, s55, {slot*8192+4096}')
                if i<4: g.vmem(f'buffer_load_dwordx4 v{vBr0 if i==0 else vBd[i]}, s[36:39], s57 offen offset:{1024*i} lds',f'B{st}')
                else:   g.vmem(f'buffer_load_dwordx4 v{vBd[i-4]}, s[16:19], s57 offen offset:{1024*(i-4)} lds',f'B{st}')
            return op
        return [mk(i) for i in range(8)]
    if DO in 'de':
        for op in bops(0): op()
        g('@@SPLIT@@')
    g(f'''v_and_b32 v24, 31, v0
    v_lshrrev_b32 v25, 5, v0
    v_bfe_u32 v26, v0, 1, 3
    v_xor_b32 v26, v26, v25
    v_lshlrev_b32 v27, 7, v24''')
    for kk in range(4):
        g(f'''v_xor_b32 v28, {2*kk}, v26
        v_lshl_add_u32 v{vFA[kk]}, v28, 4, v27
        v_add_u32 v{vFB[kk]}, s55, v{vFA[kk]}''')
    g(f'''v_cvt_f32_u32 v26, v24
    v_mul_f32 v26, {f2u(1/32):#x}, v26
    v_cvt_f32_u32 v27, v25
    v_mul_f32 v27, 4.0, v27
    v_mul_f32 v27, v27, v26
    v_mul_f32 v28, {f2u(5.0):#x}, v26''')
    for j in range(2):
        for i2 in range(4):
            for e in range(2):
                i=2*i2+e
                if not (j==0 and i==0):
                    g(f'v_add_f32 v27, v27, v{28 if i%4==0 else 26}')
                g(f'v_fract_f32 v29, v27\nv_cos_f32 v{20+e}, v29\nv_sin_f32 v{22+e}, v29')
            g(f'v_cvt_pk_bf16_f32 v{CC[j]+i2}, v20, v21\nv_cvt_pk_bf16_f32 v{SS[j]+i2}, v22, v23\nv_xor_b32 v{NS[j]+i2}, 0x80008000, v{SS[j]+i2}')
    early,addr,trig=p2_setup_ops(g,True)
    TM={0:20,1:21,2:22,3:23,4:24,5:25,6:26,7:27,8:28,9:29,10:30,12:2,13:3,14:8,15:9,16:31,17:57,18:240,19:241,20:242,21:243,22:244,23:245}
    early,addr,trig=[remap(x,TM) for x in (early,addr,trig)]
    PRO=g.opt.get('dpro',0)
    if PRO:
        for x in early+addr: g(x)
    g(f'''s_mov_b32 s59, 0x3f803f80
    s_movk_i32 s60, 0x3f80
    s_mov_b32 s61, 0x3f800000
    s_lshl_b32 s53, s49, 15
    s_or_b32 s62, s60, s53
    s_lshl_b32 s63, s62, 16
    s_cmp_eq_u32 s49, 0
    s_cselect_b32 s101, 2.0, 0
    s_waitcnt lgkmcnt(0)''')
    nonce(g)
    eps=f'{f2u(1e-5):#x}'
    chainq=[]
    def ch(n=1):
        for _ in range(n):
            if chainq: chainq.pop(0)()
    def stats(gi):
        R=RAW+32*gi; S=[224,228][gi&1]
        g.wait(f'x{gi}')
        if gi==0: g.stamp()
        for i in range(32):
            if i<2: g(f'v_dot2_f32_bf16 v{S+i}, v{R+i}, s59, 0\nv_dot2_f32_bf16 v{S+2+i}, v{R+i}, v{R+i}, 0')
            else:   g(f'v_dot2c_f32_bf16 v{S+(i&1)}, s59, v{R+i}\nv_dot2c_f32_bf16 v{S+2+(i&1)}, v{R+i}, v{R+i}')
            if i%4==3: g.side()
            if i>=2: ch(2)
        while chainq: ch()
        o=232+4*(gi&1); r1=RC[gi]; a,b,c,d=20,21,22,23
        lines=f'''v_add_f32 v{S}, v{S}, v{S+1}
        v_add_f32 v{S+2}, v{S+2}, v{S+3}
        v_add_f32_dpp v{S}, v{S}, v{S} quad_perm:[1,0,3,2] row_mask:0xf bank_mask:0xf
        v_add_f32_dpp v{S+2}, v{S+2}, v{S+2} quad_perm:[1,0,3,2] row_mask:0xf bank_mask:0xf
        v_add_f32_dpp v{S}, v{S}, v{S} quad_perm:[2,3,0,1] row_mask:0xf bank_mask:0xf
        v_add_f32_dpp v{S+2}, v{S+2}, v{S+2} quad_perm:[2,3,0,1] row_mask:0xf bank_mask:0xf
        v_add_f32_dpp v{S}, v{S}, v{S} row_half_mirror row_mask:0xf bank_mask:0xf
        v_add_f32_dpp v{S+2}, v{S+2}, v{S+2} row_half_mirror row_mask:0xf bank_mask:0xf
        v_mul_f32 v{a}, {f2u(-1/512):#x}, v{S}
        v_mul_f32 v{b}, {f2u(1/512):#x}, v{S+2}
        v_fma_f32 v{b}, -v{a}, v{a}, v{b}
        v_cvt_pk_bf16_f32 v{d}, v{a}, v{a}
        v_max_f32 v{b}, 0, v{b}
        v_lshlrev_b32 v{d}, 16, v{d}
        v_cvt_pk_bf16_f32 v{c}, 0, v{b}
        v_sub_f32 v{d}, v{a}, v{d}
        v_add_f32 v{c}, {eps}, v{c}
        v_cvt_pk_bf16_f32 v{o}, v{a}, v{d}
        v_cvt_pk_bf16_f32 v{c}, 0, v{c}
        v_mul_f32 v{r1+1}, s101, v{a}
        v_sqrt_f32 v{c}, v{c}
        v_mov_b32 v{o+3}, s47
        v_cvt_pk_bf16_f32 v{c}, 0, v{c}
        v_rcp_f32 v{r1}, v{c}
        v_mul_f32 v{d}, {f2u(-512.0):#x}, v{d}
        v_mul_f32 v{b}, v{b}, v{r1}
        v_mul_f32 v{241 if gi else 240}, v{d}, v{r1}
        v_mul_f32 v{b}, v{b}, v{r1}
        v_cvt_pk_bf16_f32 v{b}, 0, v{b}
        v_add_f32 v{b}, {eps}, v{b}
        v_cvt_pk_bf16_f32 v{b}, 0, v{b}
        v_sqrt_f32 v{b}, v{b}
        v_cvt_pk_bf16_f32 v{b}, 0, v{b}
        v_mul_f32 v{o+2}, v{b}, v{c}
        v_cvt_pk_bf16_f32 v{b}, 0, v{o+2}
        v_sub_f32 v{b}, v{o+2}, v{b}
        v_cvt_pk_bf16_f32 v{o+1}, v{o+2}, v{b}'''.split('\n')
        for ln in lines: chainq.append(lambda ln=ln: g(ln))
        chainq.append(lambda: g.vmem(f'buffer_store_dwordx4 v[{o}:{o+3}], v{vSP}, s[40:43], 0 offen offset:{256*gi} sc1','sp'))
        if gi: chainq.append(lambda: g(f'v_cmp_eq_u32 vcc, {gi}, v242\ns_nop 1\nv_cndmask_b32 v240, v240, v241, vcc'))
        if gi==3: chainq.append(lambda: g.vmem(f'buffer_store_dword v240, v{vA0}, s[40:43], 0 offen sc1','a0'))
    def bfly(gi):
        R=RAW+32*gi; r1=RC[gi]
        for j in range(4):
            o=[24,28][j&1]; T=[40,48][j&1]
            for i in range(4):
                a_=R+4*j+i; t=T+2*i
                g(f'v_dot2_f32_bf16 v{t}, v{a_}, s60, v{r1+1}\nv_dot2_f32_bf16 v{t+1}, v{a_}, s61, v{r1+1}'); ch()
            g.side()
            for i in range(4):
                b_=R+4*(j+4)+i; t=T+2*i
                g(f'v_dot2c_f32_bf16 v{t}, s62, v{b_}\nv_dot2c_f32_bf16 v{t+1}, s63, v{b_}'); ch()
            ch(2)
            for i in range(4):
                t=T+2*i
                g(f'v_pk_mul_f32 v[{t}:{t+1}], v[{t}:{t+1}], v[{r1}:{r1+1}] op_sel_hi:[1,0]')
            g.side()
            for i in range(4):
                t=T+2*i
                g(f'v_cvt_pk_bf16_f32 v{o+i}, v{t}, v{t+1}')
            g(f'ds_write_b128 v{vWo if gi&1 else vWe}, v[{o}:{o+3}] offset:{16384*j+1024*gi}')
        while chainq: ch()
    W0=16384
    LATEW=g.opt.get('latew',0)
    wl={0:W0,1:W0+4096,2:W0,3:W0+4096,4:W0,5:W0+4096,6:W0,7:W0+4096,8:0,9:4096,10:W0,11:W0+4096,12:8192,13:8192+4096}
    if LATEW: wl={0:W0,1:W0+4096,2:W0,3:W0+4096,4:W0,5:W0+4096,6:0,7:4096,8:W0,9:W0+4096,10:8192,11:8192+4096,12:0,13:4096}
    wd=lambda pr: w2_pair_ops(g,pr,'s55',wl[pr])
    order=g.opt.get('dord','a')
    plan={'a':[[],xops(2),xops(3),bops(0),bops(1),[],'w',[]],
          'b':[xops(2),xops(3),bops(0),bops(1),[],[],'w',[]],
          'c':[[],xops(2)+xops(3),bops(0),bops(1),[],'w',[],[]],
          'd':[xops(2),xops(3),[],bops(1),[],[],'w',[]],
          'e':[[],xops(2),xops(3),bops(1),[],[],'w',[]]}[order]
    if order in 'de':
        for op in xops(1): op()
    seq=((stats,0),(stats,1),(bfly,0),(stats,2),(bfly,1),(stats,3),(bfly,2),(bfly,3))
    if g.opt.get('sfirst'):
        seq=((stats,0),(stats,1),(stats,2),(stats,3),(bfly,0),(bfly,1),(bfly,2),(bfly,3))
        plan=[xops(2),xops(3),bops(0),[],bops(1),[],'w',[]] if order not in 'de' else [xops(2),xops(3),[],bops(1),[],[],'w',[]]
    for k,(fn,gi) in enumerate(seq):
        if plan[k]=='w':
            if not LATEW:
                if not PRO:
                    for x in early: g(x)
                g.sideq+=wd(0)+wd(1)
        else: g.sideq+=plan[k]
        if fn is stats:
            while any(1 for op in plan[max(k-2,0)] if False): pass
        fn(gi); g.stamp('dst')
        if order=='c' and k==1: g.flush_side()
    g.flush_side()
    g('s_waitcnt lgkmcnt(0)\ns_barrier')
    g.stamp(); g.stamp('dst')
    ACC=64
    def fr(s_):
        b=[32,216][s_]
        return dict(A=[b,b+4,b+8,b+12],B=[b+16,b+20])
    def rd(n):
        st,kk=n>>2,n&3; f=fr(n&1)
        bb=lambda ab: f'ds_read_b128 v[{f["B"][ab]}:{f["B"][ab]+3}], v{vFB[kk]} offset:{(st&1)*8192+4096*ab}'
        aa=lambda ti: f'ds_read_b128 v[{f["A"][ti]}:{f["A"][ti]+3}], v{vFA[kk]} offset:{st*16384+4096*ti}'
        return [aa(0),bb(0),bb(1),aa(1),aa(2),aa(3)]
    g.wait('B0')
    for x in rd(0): g(x)
    vTB=[18,19]
    nT=[i for i,x in enumerate(addr) if f'v_add_u32 v{vT[3]}' in x][0]+1
    pre=([] if PRO else addr[8:nT])+['s_sub_u32 s0, s55, s69',f'v_add_u32 v18, s0, v{vT[0]}',f'v_add_u32 v19, s0, v{vT[1]}']
    if not LATEW:
        for x in pre: g(x)
    if not g.opt.get('trigp2',1):
        trig=trig_ops(0,{1:20,2:21,3:22,5:23,6:30,7:31,9:57,12:2,13:3,14:8,15:9,16:240,17:241,18:242,19:243,20:24,21:25,22:26,23:27})
    g.miscq=([] if PRO else addr[:8]+addr[nT:])+trig
    if PRO: early=[]
    TRS={0:0,1:1,5:2,6:3,9:4,10:5,13:6,14:7}
    DMS={1:[2],2:[3],6:[4],7:[5],10:[6],11:[7,8],12:[9],14:[10],15:[11]}
    if LATEW:
        TRS={4:0,5:1,8:2,9:3,11:4,12:5,14:6,15:7}
        DMS={1:[0,1],5:[2],6:[3],9:[4],10:[5],11:[6,7],12:[8],13:[9]}
        g.miscq=early+pre+g.miscq
    for n in range(16):
        f=fr(n&1)
        def mf(ti,ab):
            d=ACC+32*ti+16*ab
            g(f'{MF} v[{d}:{d+15}], v[{f["A"][ti]}:{f["A"][ti]+3}], v[{f["B"][ab]}:{f["B"][ab]+3}], '+(f'v[{d}:{d+15}]' if n else '0'))
        nx=rd(n+1) if n<15 else []
        if n%2==0: g.stamp('dm')
        g('s_waitcnt lgkmcnt(0)'); mf(0,0)
        if n==3: g.sideq+=bops(2)
        if n==7: g.sideq+=bops(3)
        if LATEW and n==1:
            while any(x in g.miscq for x in early): misc(g,1)
        if LATEW and n==4:
            while any(x in g.miscq for x in pre): misc(g,1)
        if n==8:
            assert 'a0' not in g.vm
            while len(g.miscq)>len(trig): misc(g,1)
            g('s_barrier')
            g.miscq+=[f'v_and_b32 v2, 3, v0',f'v_lshrrev_b32 v3, 5, v0',f'v_lshlrev_b32 v3, 4, v3',f'v_lshl_add_u32 v2, v2, 7, v3',f'v_add_u32 v2, s13, v2',
                      f'v_and_b32 v3, 28, v0',f'v_cmp_eq_u32 vcc, 0, v3',f'v_mov_b32 v3, {OOB}','s_nop 0',f'v_cndmask_b32 v2, v3, v2, vcc']
        if n==9:
            misc(g,9999)
            g.sideq+=[(lambda q=q: g.vmem(f'buffer_load_dwordx4 v[{[20,24,28,240][q]}:{[20,24,28,240][q]+3}], v2, s[40:43], 0 offen offset:{32*q} sc1','al')) for q in range(4)]
        if n==15:
            g.wait('al')
            g.miscq+=[f'v_cvt_pk_bf16_f32 v{20+i}, v{20+2*i}, v{21+2*i}' for i in range(4)]+[f'v_cvt_pk_bf16_f32 v28, v28, v29','v_cvt_pk_bf16_f32 v29, v30, v31','v_cvt_pk_bf16_f32 v30, v240, v241','v_cvt_pk_bf16_f32 v31, v242, v243']
        for pr in DMS.get(n,[]): g.sideq+=wd(pr)
        if (n+1)%4==0 and n<15: g.wait(f'B{(n+1)>>2}')
        for x in nx[:3]: g(x)
        mf(0,1)
        for x in nx[3:]: g(x)
        mf(1,0)
        trq=[]
        if n in TRS:
            assert not any(True for op in g.sideq if getattr(op,'pr',None)==TRS[n])
            g.wait(f'w{TRS[n]}'); trq=w2_trl(TRS[n],vTB,wl[TRS[n]])
        for k,(ti,ab) in enumerate(((1,1),(2,0),(2,1),(3,0),(3,1))):
            if trq and k>=3:
                for x in trq[:4]: g(x)
                trq=trq[4:]
            else:
                had=bool(g.sideq); g.side(); misc(g,2 if had else 4)
            mf(ti,ab)
        had=bool(g.sideq); g.side(); misc(g,2 if had else 4)
    g.stamp(); g.stamp('s1'); g.stamp('dm')
    if LATEW: g.flush_side(); g.sideq+=wd(10)+wd(11)+[lambda: g('s_waitcnt lgkmcnt(0)')]
    g.sideq+=wd(12)+wd(13)
    def trop(pr):
        def op():
            g.wait(f'w{pr}')
            for x in w2_trl(pr,vTB,wl[pr])[:4]: g(x)
        def op2():
            for x in w2_trl(pr,vTB,wl[pr])[4:]: g(x)
        return [op,op2]
    NJ=g.opt.get('nj',4)
    for pr in range(8,min(12,14-NJ)): g.sideq+=trop(pr)
    g.sideq+=[lambda: [misc(g,1) for _ in range(len(g.miscq)-len(trig))]]
    def zc(ti):
        Z=[32,216][ti&1]; L=[]
        for ab in range(2):
            d=ACC+32*ti+16*ab
            for i in range(8): L.append(f'v_cvt_pk_bf16_f32 v{Z+8*ab+i}, v{d+2*i}, v{d+2*i+1}')
        return L
    for x in zc(0): g(x)
    for ti in range(4):
        Z=[32,216][ti&1]
        za=[Z,Z+4]; zb=[Z+8,Z+12]; ur=ACC+32*ti; ui=ur+16
        nxt=zc(ti+1) if ti<3 else []
        seq=[(ur,CC[0],za[0],1),(ui,CC[0],zb[0],1),(ur,CC[1],za[1],0),(ui,CC[1],zb[1],0),(ur,SS[0],zb[0],0),(ui,NS[0],za[0],0),(ur,SS[1],zb[1],0),(ui,NS[1],za[1],0)]
        for n,(d,am,bm,first) in enumerate(seq):
            g(f'{MF} v[{d}:{d+15}], v[{am}:{am+3}], v[{bm}:{bm+3}], '+('0' if first else f'v[{d}:{d+15}]'))
            for x in nxt[2*n:2*n+2]: g(x)
            had=bool(g.sideq); g.side(); misc(g,(0 if had else 2)+(0 if nxt else 2))
    g.stamp('s1')
    g.flush_side(); misc(g,9999)
    g.stamp('s1')
    for op in xb2_ops(g): op()
    for pr in (12,13):
        if pr<14-NJ:
            for op in trop(pr): op()
    for k in range(NJ//2): g(f'v_add_u32 v{vJ[k][0]}, {wl[12-2*k]}, v{vTB[0]}\nv_add_u32 v{vJ[k][1]}, {wl[12-2*k]}, v{vTB[1]}')
    g.stamp('s1')
    srd(g,36,28,4<<20,add=U_OFF)
    g(f'''v_and_b32 v24, 31, v0
    v_lshrrev_b32 v25, 5, v0
    v_lshlrev_b32 v24, 4, v24
    v_lshl_add_u32 v24, v25, 18, v24
    s_lshl_b32 s53, s3, 9
    v_add_u32 v24, s53, v24
    s_lshl_b32 s53, s48, 1
    s_add_u32 s53, s53, s49
    s_lshl_b32 s53, s53, 11''')
    for r in range(16):
        o=32+4*(r&3)
        for ti in range(4): g(f'v_cvt_pk_bf16_f32 v{o+ti}, v{ACC+32*ti+r}, v{ACC+32*ti+16+r}')
        g(f's_add_u32 s54, s53, {(8*(r>>2)+(r&3))*65536}')
        g.vmem(f'buffer_store_dwordx4 v[{o}:{o+3}], v24, s[36:39], s54 offen sc1','st')
        if r<4:
            d,am,bm,first=((224,20,CC[0],1),(240,20,NS[0],1),(224,28,CC[1],0),(240,28,NS[1],0))[r]
            g(f'{MF} a[{d}:{d+15}], v[{am}:{am+3}], v[{bm}:{bm+3}], '+('0' if first else f'a[{d}:{d+15}]'))
        if r==6:
            for i in range(4): g(f'v_accvgpr_read_b32 v{48+2*i}, a{224+i}\nv_accvgpr_read_b32 v{49+2*i}, a{240+i}')
            g(f'''s_lshl_b32 s0, s48, 12
            s_add_u32 s0, s0, 0x200000
            s_lshl_b32 s1, s49, 2
            s_add_u32 s1, s1, s3
            s_cmp_eq_u32 s1, 1
            s_cselect_b32 s0, s0, {OOB}
            v_lshl_add_u32 v2, v0, 16, s0
            v_mov_b32 v3, {OOB}
            v_cmp_gt_u32 vcc, 32, v0''')
            for i in range(4): g(f'v_cvt_pk_bf16_f32 v{28+i}, v{48+2*i}, v{49+2*i}')
            g('v_cndmask_b32 v2, v3, v2, vcc')
            g.vmem('buffer_store_dwordx4 v[28:31], v2, s[36:39], 0 offen sc1','st')
    g.stamp(); g.stamp('s1')
    g('v_mov_b32 v2, s47')
    g.vmem(f'buffer_load_dword v3, v{vPL}, s[40:43], 0 offen sc1','poll')
    def sig():
        g.wait('poll')
        g.stamp('s1')
        g('s_waitcnt lgkmcnt(0)\ns_barrier')
        if not g.opt.get('dlate',0): g(f'buffer_store_dword v2, v{vSG}, s[40:43], 0 offen sc1')
    if g.opt.get('dsig',1): g.dsig=sig
    else: sig()
    g('s_lshl_b32 s53, s3, 12')
    for d in (1,2,3): g(f's_add_u32 s{5+d}, s53, {(d-1)*16384}\ns_xor_b32 s{8+d}, s{5+d}, {d*4096}')
    g('s_lshr_b32 s12, s53, 1\ns_add_u32 s12, s12, 49152')

def p2(g, role):
    M=(role=='m') and g.opt.get('merge',0)
    X=role
    ACC=64; ACS=128; UF=144
    XS=32768+4096
    HR=[16+8*i for i in range(5)]+[192+8*i for i in range(5)]
    NH=len(HR)
    g.stamp(); g.stamp('tail')
    srd(g,36,28,7340032); srd(g,32,28,4<<20,add=U_OFF); srd(g,72,24,2097152)
    g(f'''s_sub_u32 s62, 32, s71
    s_and_b32 s62, s62, 31
    s_cmp_lt_u32 s70, 4
    s_cselect_b32 s62, s71, s62
    s_lshl_b32 s62, s62, 16
    v_mov_b32 v185, 0
    v_mov_b32 v186, 0
    v_mov_b32 v187, 0
    v_mov_b32 v188, 0x3f80
    v_cmp_gt_u32 vcc, 32, v0
    v_mov_b32 v189, 0
    v_mov_b32 v190, 0
    v_cndmask_b32 v188, 0, v188, vcc
    v_mov_b32 v191, 0
    s_mul_i32 s57, s71, 112
    s_mul_i32 s53, s3, 28
    s_add_u32 s57, s57, s53
    s_lshl_b32 s57, s57, 11
    s_add_u32 s59, s57, {28*2048}
    s_lshl_b32 s53, s44, 12
    s_add_u32 s58, s57, s53
    v_mov_b32 v2, s47
    s_mov_b32 s56, {SPIN}''')
    for d in (1,2,3):
        g(f'v_lshl_add_u32 v{9+d}, v0, 4, s{5+d}')
    g(f'v_mov_b32 v9, v{vFL}')
    if M:
        NW=g.nw; ops=[]
        for pr in range(NW,8): ops+=w2_pair_ops(g,pr)
        t01=w2_trl(0)+w2_trl(1)
        for n,op in enumerate(ops):
            op()
            if n==3: g.wait('w1')
            if n>=3 and t01:
                for x in t01[:2]: g(x)
                del t01[:2]
        for x in t01: g(x)
        g.vmem(f'buffer_load_dword v3, v{vPL}, s[40:43], 0 offen sc1','poll')
        for pr in (8,9):
            for op in w2_pair_ops(g,pr): op()
        g.wait('poll')
    if role=='d' and g.opt.get('dsig',1): g.dsig()
    if role=='m' and not M: g(f'L_poll:\nbuffer_load_dword v3, v{vPL}, s[40:43], 0 offen sc1\nv_mov_b32 v184, v{vB2}\ns_waitcnt vmcnt(0)')
    else: g(f'v_mov_b32 v184, v{vB2}\nL_poll:')
    g('v_cmp_ne_u32 vcc, s47, v3\ns_cbranch_vccnz L_pslow\nL_go:')
    ool(g,f'''L_pslow:
    s_sleep {g.opt.get('sleep',4)}
    '''+('' if (role=='m' and not M) else f'buffer_load_dword v3, v{vPL}, s[40:43], 0 offen sc1\ns_waitcnt vmcnt(0)\n')+'''s_sub_u32 s56, s56, 1
    s_cbranch_scc0 L_poll
    s_branch L_go''')
    if not M: g.vm=['old']*30
    g.stamp(); g.stamp('tail')
    hidx=[0]
    def hload():
        ks=hidx[0]; r=HR[ks%NH]
        g.vmem(f'buffer_load_dwordx4 v[{r}:{r+3}], v{vH0}, s[36:39], s58 offen offset:{2048*(ks&1)} {g.opt.get("hld","sc1").replace("none","")}',f'h{ks}')
        g.vmem(f'buffer_load_dwordx4 v[{r+4}:{r+7}], v{vH1}, s[36:39], s58 offen offset:{2048*(ks&1)} {g.opt.get("hld","sc1").replace("none","")}',f'h{ks}')
        if ks&1 and ks<27: g('s_add_u32 s58, s58, 4096\ns_cmp_eq_u32 s58, s59\ns_cselect_b32 s58, s57, s58')
        hidx[0]+=1
    HD=g.opt.get('hdepth',8)
    g(f's_waitcnt lgkmcnt(0)\ns_mov_b32 s55, 0x80000')
    for i in range(HD):
        hload()
        if role=='d' and g.opt.get('dlate',0) and i==g.opt.get('dlate',0)*4-1: g.vmem(f'buffer_store_dword v2, v{vSG}, s[40:43], 0 offen sc1','sig')
    g(f'{MF} v[{ACC}:{ACC+15}], v[184:187], v[188:191], 0')
    XA=[236,237,238,239]
    xa=Rec()
    xa(f'''v_and_b32 v236, 31, v0
    v_lshrrev_b32 v237, 5, v0
    v_lshlrev_b32 v237, 3, v237
    v_lshl_add_u32 v237, v236, 6, v237
    v_bfe_u32 v236, v0, 2, 2
    v_lshl_add_u32 v236, v236, 4, v237
    v_add_u32 v236, s12, v236
    v_xor_b32 v237, 16, v236
    v_xor_b32 v238, 32, v236
    v_xor_b32 v239, 48, v236
    v_lshl_add_u32 v240, v0, 4, s12''')
    KF=g.opt.get('kflag',12)
    NL=g.opt.get('nlast',3)
    def mf(ks,a_,b):
        r=HR[ks%NH]; d=ACC+16*(a_+2*b)
        c='0' if (ks==0 and (a_ or b)) else f'v[{d}:{d+15}]'
        g(f'{MF} v[{d}:{d+15}], a[{8*ks+4*a_}:{8*ks+4*a_+3}], v[{r+4*b}:{r+4*b+3}], {c}')
    checked=False
    NJ=g.opt.get('nj',4)
    jit=[x for pr in range(14-NJ,14) for x in w2_trl(pr,vJ[(13-pr)>>1],4096*(pr&1))]
    late=[]
    if M:
        jit=[x for pr in range(2,14) for x in w2_trl(pr)]
        for pr in range(10,14): late+=w2_pair_ops(g,pr)
    g.miscq=xa.l+(trig_ops(0) if g.opt.get('trigp2',1) else [])
    for ks in range(28-NL):
        g.wait(f'h{ks}')
        if NJ and ks==16 and not M: g('s_waitcnt lgkmcnt(0)')
        if M and ks>=4 and ks%2==0: g('s_waitcnt lgkmcnt(8)')
        if M and ks>=16 and ks%2==0 and ks<=22: g.wait(f'w{ks//2+2}')
        if ks==0:
            g.stamp()
        for b in range(2):
            for a_ in range(2):
                mf(ks,a_,b)
                if a_==0 and b==0 and (ks>=1 or M) and jit:
                    for x in jit[:4]: g(x)
                    del jit[:4]
                elif a_==1 and b==0 and late:
                    late.pop(0)(); late.pop(0)()
                elif not (a_==1 and b==1): misc(g,g.opt.get('p2misc',6 if M else 4))
            if b==0 and g.sideq: g.side()
        if hidx[0]<28: hload()
        elif g.sideq: g.side()
        if ks==(10 if M else 2):
            g('s_mov_b32 m0, s12')
            g.vmem(f'buffer_load_dwordx4 v{vXO}, s[76:79], 0 offen lds','xl')
            g('s_add_u32 m0, m0, 1024')
            g.vmem(f'buffer_load_dwordx4 v{vXO}, s[76:79], s55 offen lds','xl')
        if ks==(24 if M else 22):
            assert 'xl' not in g.vm
            for q in range(4): g(f'ds_read_b64 v[{XR+2*q}:{XR+2*q+1}], v{XA[q]}')
        if ks==KF: g.vmem(f'buffer_load_dword v176, v9, s[40:43], 0 offen sc1','fl')
        if 'fl' not in g.vm and ks>KF and not checked:
            checked=True
            g(f'''L_chk:
            v_cmp_ne_u32 vcc, s47, v176
            s_cbranch_vccnz L_uslow
            L_allset:''')
            ool(g,'''L_uslow:
            s_sleep 4
            buffer_load_dword v176, v9, s[40:43], 0 offen sc1
            s_waitcnt vmcnt(0)
            s_sub_u32 s56, s56, 1
            s_cbranch_scc0 L_chk
            s_branch L_allset''')
            def mku(j):
                def op():
                    g(f's_add_u32 s53, s62, {8192*j}')
                    g.vmem(f'buffer_load_dwordx4 v[{UF+4*j}:{UF+4*j+3}], v{vU}, s[32:35], s53 offen sc1','u')
                return op
            g.sideq+=[mku(j) for j in range(8)]
    assert checked
    if g.miscq: print('p2',role,'misc left',len(g.miscq),file=sys.stderr)
    misc(g,9999)
    g.flush_side()
    if M: g('s_waitcnt lgkmcnt(4)')
    XF=176
    def wr(d):
        for q in range(4):
            r=ACC+16*d+4*q
            g(f'ds_write_b128 v{9+d}, v[{r}:{r+3}] offset:{1024*q}')
    for n,d in enumerate((3,2,1,0)):
        for ks in range(28-NL,28):
            g.wait(f'h{ks}')
            mf(ks,d&1,d>>1)
        if n==0: g('s_waitcnt lgkmcnt(0)')
        if n==1:
            for i in range(4): g(f'v_lshlrev_b32 v{XF+2*i}, 16, v{XR+i}\nv_and_b32 v{XF+2*i+1}, 0xffff0000, v{XR+i}')
            wr(3)
        if n==2:
            for i in range(4,8): g(f'v_lshlrev_b32 v{XF+2*i}, 16, v{XR+i}\nv_and_b32 v{XF+2*i+1}, 0xffff0000, v{XR+i}')
            wr(2)
    g.stamp()
    g(f's_mov_b32 s60, {f2u(-math.log2(math.e)):#x}\ns_mov_b32 s61, s60\ns_mov_b32 s62, 1.0\ns_mov_b32 s63, 1.0')
    def smm(J):
        for j in J:
            g(f'{MF} v[{ACS}:{ACS+15}], v[{UF+4*j}:{UF+4*j+3}], a[{224+4*j}:{227+4*j}], '+('0' if j==0 else f'v[{ACS}:{ACS+15}]'))
    wr(1)
    g.waitall()
    SB=g.opt.get('sbar',3)
    smm(range(SB))
    for d in (1,2,3): g(f'v_lshl_add_u32 v{9+d}, v0, 4, s{8+d}')
    g('s_waitcnt lgkmcnt(0)\ns_barrier')
    rds=[f'ds_read_b128 v[{[192,208,16][d]+4*q}:{[192,208,16][d]+4*q+3}], v{10+d} offset:{1024*q}' for q in range(4) for d in range(3)]
    for j in range(SB,8):
        smm([j])
        for x in rds[:4]: g(x)
        del rds[:4]
    for x in rds: g(x)
    if role=='m':
        g('s_lshl_b32 s1, s2, 2\ns_add_u32 s1, s1, s3\ns_cmp_eq_u32 s1, 803\ns_cbranch_scc1 L_ep0\nL_noep0:')
        ool(g,'''L_ep0:
        v_lshrrev_b32 v4, 2, v0
        v_and_b32 v5, 3, v0
        v_lshl_add_u32 v4, v4, 3, v5
        v_lshlrev_b32 v4, 8, v4
        buffer_load_dwordx4 v[6:9], v4, s[40:43], 0 offen sc1
        s_branch L_noep0''')
    T=80
    for hf in range(2):
        g(f's_waitcnt lgkmcnt({6-6*hf})')
        I=range(4*hf,4*hf+4)
        for i in I: g(f'v_pk_add_f32 v[{192+2*i}:{193+2*i}], v[{192+2*i}:{193+2*i}], v[{208+2*i}:{209+2*i}]')
        for i in I: g(f'v_pk_add_f32 v[{ACC+2*i}:{ACC+2*i+1}], v[{ACC+2*i}:{ACC+2*i+1}], v[{16+2*i}:{17+2*i}]')
        for i in I: g(f'v_pk_add_f32 v[{ACC+2*i}:{ACC+2*i+1}], v[{ACC+2*i}:{ACC+2*i+1}], v[{192+2*i}:{193+2*i}]')
        for i in I: g(f'v_pk_mul_f32 v[{T+2*i}:{T+2*i+1}], v[{ACC+2*i}:{ACC+2*i+1}], s[60:61]')
        for i in I: g(f'v_exp_f32 v{T+2*i}, v{T+2*i}\nv_exp_f32 v{T+2*i+1}, v{T+2*i+1}')
        for i in I: g(f'v_pk_add_f32 v[{T+2*i}:{T+2*i+1}], v[{T+2*i}:{T+2*i+1}], s[62:63]')
        for i in I: g(f'v_rcp_f32 v{T+2*i}, v{T+2*i}\nv_rcp_f32 v{T+2*i+1}, v{T+2*i+1}')
        sp=lambda r: ACS+4*(2*(r>>3)+(r&1))+2*((r>>2)&1)+((r>>1)&1)
        for i in I:
            for r in (2*i,2*i+1): g(f'v_mul_f32 v{ACC+r}, v{ACC+r}, v{sp(r)}')
        for i in I: g(f'v_pk_fma_f32 v[{T+2*i}:{T+2*i+1}], v[{T+2*i}:{T+2*i+1}], v[{ACC+2*i}:{ACC+2*i+1}], v[{XF+2*i}:{XF+2*i+1}]')
        for i in I: g(f'v_cvt_pk_bf16_f32 v{96+i}, v{T+2*i}, v{T+2*i+1}')
        for q in (2*hf,2*hf+1): g(f'ds_write_b64 v{XA[q]}, v[{96+2*q}:{97+2*q}]')
    g('s_waitcnt lgkmcnt(0)\nds_read_b128 v[104:107], v240\nds_read_b128 v[108:111], v240 offset:1024\ns_waitcnt lgkmcnt(1)')
    g(f'buffer_store_dwordx4 v[104:107], v{vXO}, s[72:75], 0 offen {g.opt.get("outfl","")}\ns_waitcnt lgkmcnt(0)\nbuffer_store_dwordx4 v[108:111], v{vXO}, s[72:75], s55 offen {g.opt.get("outfl","")}')
    if role=='m':
        g('s_cmp_eq_u32 s1, 803\ns_cbranch_scc1 L_ep1\nL_noep:')
        ool(g,f'''L_ep1:
        s_waitcnt vmcnt(2)
        L_ep:
        v_xor_b32 v6, s47, v6
        v_xor_b32 v7, s47, v7
        v_xor_b32 v8, s47, v8
        v_xor_b32 v9, s47, v9
        v_or3_b32 v6, v6, v7, v8
        v_or_b32 v6, v6, v9
        v_cmp_ne_u32 vcc, 0, v6
        s_cbranch_vccz L_epok
        s_sleep 8
        buffer_load_dwordx4 v[6:9], v4, s[40:43], 0 offen sc1
        s_waitcnt vmcnt(0)
        s_sub_u32 s56, s56, 1
        s_cbranch_scc0 L_ep
        L_epok:
        v_mov_b32 v3, {EPO}
        s_mov_b64 exec, 1
        buffer_store_dword v2, v3, s[40:43], 0 offen sc1
        s_mov_b64 exec, -1
        s_branch L_noep''')
    g.stamp()

DOC=""";
;   224 MLP workgroups: 128 rows x 128 hidden columns of gelu(LN(LN(x)) @ w1 + b1). The GEMM runs on raw x; both LayerNorms are
;     folded into one extra K-step (-mean * colsum(w1) + b1 / rstd) and a per-row scale. h goes to d_ws in MFMA fragment order.
;     butterfly + normalisation, half-size hidden DFT against the dft_hid tables, DFT-32 along the sequence (s = 64*s1 + s2) -> U.
;     Bins above 256 follow from the Hermitian symmetry; bin 0 is the residue left by the bf16-rounded mean.
; Hand-offs between workgroups: write-through stores, drained, then flag words / tagged granules holding a per-launch tag that is
; derived from an epoch word in d_ws (advanced once every workgroup has read it), so older launches' words never match.
"""
def build(stamps=False, opt=None):
    global vTm0,vTm1
    if (opt or {}).get('merge',0): vTm0,vTm1=241,242
    g=G(stamps,opt); g.miscq=[]; g.outofline=[]
    def sfx(L,x): return [re.sub(r'\b(L_go|L_poll|L_pslow|L_ep0|L_ep1|L_chk|L_uslow|L_allset|L_noep0|L_noep|L_epok|L_ep)\b', r'\1_'+x, l) for l in L]
    entry(g)
    head=list(g.a.l); vm0=list(g.vm); n0=g.nst
    g.a.l=[]; p1_mlp(g); mlp=list(g.a.l)
    oo=g.outofline; g.outofline=[]
    g.a.l=[]; p2(g,'m'); g.dump_stamps(TS_OFF); mlp+=sfx(g.a.l,'m')+['    s_endpgm']; oo+=sfx(g.outofline,'m'); g.outofline=[]
    g.a.l=[]; g.vm=list(vm0); g.nst=n0; g.miscq=[]
    p1_dft(g); dft=list(g.a.l)
    k=[i for i,x in enumerate(dft) if '@@SPLIT@@' in x][0]
    g.a.l=[]; p2(g,'d'); g.dump_stamps(TS_OFF); dft+=sfx(g.a.l,'d'); oo+=sfx(g.outofline,'d')
    km=[i for i,x in enumerate(mlp) if '@@SPLIT@@' in x][0]
    lines=head+mlp[:km]+['    s_branch L_mlp','L_dfte:']+dft[:k]+['    s_branch L_dft','L_mlp:']+mlp[km+1:]+['L_dft:']+dft[k+1:]+['L_end:','    s_endpgm']+oo+['L_codeend:']
    body='\n'.join(hazard.fix(lines))+'\n'
    txt=wrap([dict(name=KN,body=body,grid=256,block=256,lds=163840,vgpr=512,accum=256)],HDR)
    return txt.replace('.amdgcn_target',DOC+'.amdgcn_target',1)
if __name__=='__main__':
    out=sys.argv[1]; st='stamps' in sys.argv[2:]
    opt={}
    for a in sys.argv[2:]:
        if '=' in a:
            k,v=a.split('='); opt[k]=int(v) if v.lstrip('-').isdigit() else v
    open(out,'w').write(build(st,opt))
```

```python
import sys, math, struct, re
sys.path.insert(0,'tools')
from asmlib import A, wrap, KN
import hazard
from gen3 import G, srd, t1_of, f2u, HDR, U_OFF, ST_OFF, CS_REL, TS_OFF, SPIN

F_OFF = 12<<20
F2 = 8192
FU=32768; EPO=40960
A0_REL=(ST_OFF-F_OFF)+(512<<10)
WT_OFF = 14<<20
vB2, vXO = 254, 255
vD=[226+i for i in range(0)]
vDM=[246,247,248,249]
vT=[250,251,252,253]
XR=246
vSG,vH0,vH1,vU,vFL,vPL = 58,59,60,61,62,63
vTT=245
MF='v_mfma_f32_32x32x16_bf16'
OOB='0x40000000'

class Rec:
    def __init__(s): s.l=[]
    def __call__(s,t):
        for x in t.split('\n'):
            x=x.strip()
            if x: s.l.append(x)
def ool(g, text):
    g.outofline+=[x.strip() if x.strip().endswith(':') else '    '+x.strip() for x in text.split('\n') if x.strip()]
def misc(g, n):
    while n>0 and g.miscq:
        x=g.miscq.pop(0); g(x)
        n-= x.count('\n')+1 + (1 if ('v_cos' in x or 'v_sin' in x) else 0)
def epoch_load(g):
    g(f's_add_u32 s60, s28, {F_OFF+EPO}\ns_addc_u32 s61, s29, 0\ns_load_dword s47, s[60:61], 0')
def nonce(g):
    g('s_mul_i32 s47, s47, 0x9e3779b1\ns_add_u32 s47, s47, 0x85ebca6b')

def p2_setup_ops(g, dft):
    r=Rec(); t=lambda i:f'v{1000+i}'
    if g.opt.get('dmix',1):
        if dft: r('s_mul_i32 s31, s31, 9')
        else:
            for v in (1,2,3): r.l.append(f's_cmp_eq_u32 s31, {9*v}\ns_cselect_b32 s31, {v}, s31')
    if g.opt.get('p2arr',84)==48:
        r('''s_and_b32 s70, s31, 7
        s_lshr_b32 s0, s31, 4
        s_lshl_b32 s1, s30, 1
        s_add_u32 s45, s0, s1
        s_bfe_u32 s1, s31, 0x10003''')
    else:
        r('''s_and_b32 s70, s30, 1
        s_lshl_b32 s70, s70, 2
        s_lshr_b32 s0, s31, 2
        s_add_u32 s0, s0, s31
        s_and_b32 s0, s0, 3
        s_add_u32 s70, s70, s0
        s_lshr_b32 s45, s30, 1
        s_lshl_b32 s45, s45, 2
        s_lshr_b32 s0, s31, 3
        s_add_u32 s45, s45, s0
        s_bfe_u32 s1, s31, 0x10002''')
    r.l.append('s_sub_u32 s0, 32, s45\ns_cmp_eq_u32 s45, 0\ns_cselect_b32 s0, 16, s0\ns_cmp_eq_u32 s1, 0\ns_cselect_b32 s71, s45, s0')
    wr=g.opt.get('wrot',3)
    if wr==0: r('s_mov_b32 s44, 0')
    elif wr==1: r('s_mul_i32 s44, s30, 7\ns_lshr_b32 s44, s44, 2')
    elif wr==3: r('s_lshr_b32 s44, s31, 2\ns_mul_i32 s44, s44, 7\ns_lshr_b32 s44, s44, 2')
    elif wr==5: r('s_lshr_b32 s44, s31, 2\ns_max_u32 s44, s44, 1\ns_sub_u32 s44, s44, 1\ns_lshl_b32 s44, s44, 1')
    elif wr==4: r('s_lshr_b32 s44, s31, 3\ns_mul_i32 s44, s44, 7\ns_lshr_b32 s44, s44, 1')
    elif wr==2: r('s_lshr_b32 s44, s30, 1\ns_mul_i32 s44, s44, 7\ns_lshr_b32 s44, s44, 1')
    ho={0:None,1:(1,7),2:(1,4),3:(3,3),4:(3,1),5:(1,2)}[g.opt.get('hoff',0)]
    if ho:
        r.l.append(f's_and_b32 s0, s70, {ho[0]}\ns_mul_i32 s0, s0, {ho[1]}\ns_add_u32 s44, s44, s0\ns_cmp_ge_u32 s44, 14\ns_cselect_b32 s0, 14, 0\ns_sub_u32 s44, s44, s0'.replace('{ho[0]}',str(ho[0])) )
    r(f'''s_lshl_b32 s68, s44, 15
    s_lshl_b32 s69, s3, 13
    v_lshrrev_b32 {t(4)}, 3, v0
    v_bfe_u32 {t(5)}, v0, 4, 1
    v_lshlrev_b32 {t(6)}, 2, {t(5)}
    v_and_b32 {t(7)}, 7, v0
    v_xor_b32 {t(6)}, {t(6)}, {t(7)}
    v_lshlrev_b32 {t(6)}, 4, {t(6)}
    v_lshl_add_u32 {t(6)}, {t(4)}, 10, {t(6)}
    s_mul_i32 s0, s3, {448*1024}
    s_lshl_b32 s1, s70, 7
    s_add_u32 s0, s0, s1
    v_add_u32 v{vDM[0]}, s0, {t(6)}
    v_add_u32 v{vDM[1]}, {7168}, v{vDM[0]}
    v_add_u32 v{vDM[2]}, {2*7168}, v{vDM[0]}
    v_add_u32 v{vDM[3]}, {3*7168}, v{vDM[0]}''')
    srd(r,64,20,1792*512*2)
    early=r.l; r=Rec()
    srd(r,72,22,1024); srd(r,76,4,2097152)
    r(f'''v_lshrrev_b32 {t(4)}, 5, v0
    v_bfe_u32 {t(5)}, v0, 4, 1
    v_bfe_u32 {t(6)}, v0, 2, 2
    v_lshl_add_u32 {t(7)}, {t(4)}, 2, {t(6)}
    v_lshlrev_b32 {t(7)}, 7, {t(7)}
    v_lshrrev_b32 {t(6)}, 1, {t(6)}
    s_and_b32 s0, s3, 1
    v_xor_b32 {t(6)}, s0, {t(6)}
    v_lshl_add_u32 {t(7)}, {t(6)}, 6, {t(7)}
    v_lshl_add_u32 {t(7)}, {t(5)}, 5, {t(7)}
    v_and_b32 {t(6)}, 3, v0
    v_lshl_add_u32 {t(7)}, {t(6)}, 3, {t(7)}
    v_add_u32 v{vT[0]}, s69, {t(7)}
    v_xor_b32 v{vT[1]}, 64, v{vT[0]}
    v_add_u32 v{vT[2]}, 0x18000, v{vT[0]}
    v_add_u32 v{vT[3]}, 0x18000, v{vT[1]}
    s_and_b32 s0, s30, {g.opt.get('urep',2)-1}
    s_lshl_b32 s0, s0, 9
    s_add_u32 s0, s0, {FU}
    v_and_b32 {t(7)}, 31, v0
    v_lshl_add_u32 v{vFL}, {t(7)}, 2, s0
    s_lshl_b32 s0, s45, 1
    s_and_b32 s1, s30, {g.opt.get('hrep',2)-1}
    s_add_u32 s0, s0, s1
    s_lshl_b32 s0, s0, 2
    s_add_u32 s0, s0, s3
    s_lshl_b32 s0, s0, 8
    v_and_b32 {t(6)}, 3, v0
    v_lshl_add_u32 v{vPL}, {t(6)}, 2, s0
    s_lshr_b32 s1, s3, 1
    s_lshl_b32 s0, s1, 10
    v_lshl_add_u32 v{vH0}, v0, 4, s0
    v_xor_b32 v{vH1}, 0x400, v{vH0}
    s_lshl_b32 s0, s1, 5
    v_and_b32 {t(6)}, 31, v0
    v_add_u32 {t(5)}, s0, {t(6)}
    v_lshlrev_b32 {t(5)}, 5, {t(5)}
    v_add_u32 v{vTT}, s71, {t(5)}
    s_lshl_b32 s0, s0, 15
    s_lshl_b32 s1, s71, 10
    s_add_u32 s1, s1, s0
    v_lshrrev_b32 {t(5)}, 2, v0
    v_lshlrev_b32 {t(5)}, 15, {t(5)}
    v_lshrrev_b32 {t(7)}, 4, v0
    v_xor_b32 {t(7)}, {t(7)}, v0
    v_and_b32 {t(7)}, 3, {t(7)}
    v_lshl_add_u32 {t(5)}, {t(7)}, 4, {t(5)}
    v_add_u32 {t(5)}, s1, {t(5)}
    s_lshl_b32 s0, s70, 7
    s_and_b32 s1, s3, 1
    s_lshl_b32 s1, s1, 6
    s_add_u32 s0, s0, s1
    v_add_u32 v{vXO}, s0, {t(5)}
    v_lshl_add_u32 v{vB2}, {t(6)}, 1, s0
    s_lshr_b32 s0, s0, 1
    v_and_b32 {t(5)}, 20, v0
    v_bfe_u32 {t(7)}, v0, 1, 1
    v_lshl_add_u32 {t(5)}, {t(7)}, 3, {t(5)}
    v_and_b32 {t(7)}, 1, v0
    v_lshl_add_u32 {t(5)}, {t(7)}, 1, {t(5)}
    v_bfe_u32 {t(7)}, v0, 3, 1
    v_add3_u32 {t(6)}, {t(5)}, {t(7)}, s0''')
    r.l.append('s_cmp_lt_u32 s70, 4\ns_cselect_b32 s0, 0, -1\ns_cselect_b32 s1, 0, 513')
    r(f'''v_xor_b32 {t(7)}, s0, {t(6)}
    v_add_u32 {t(7)}, s1, {t(7)}
    v_and_b32 {t(8)}, 1, {t(7)}
    v_lshlrev_b32 {t(8)}, 11, {t(8)}
    v_bfe_u32 {t(7)}, {t(7)}, 1, 7
    v_lshl_add_u32 {t(7)}, {t(7)}, 4, {t(8)}
    v_lshl_add_u32 {t(7)}, {t(4)}, 12, {t(7)}
    s_mul_i32 s0, s71, 65520
    s_sub_u32 s0, 0x200000, s0
    v_add_u32 {t(8)}, s0, {t(7)}
    v_cmp_eq_u32 vcc, 0, {t(6)}
    s_nop 0
    v_cndmask_b32 v{vU}, {t(7)}, {t(8)}, vcc
    v_mov_b32 {t(8)}, {OOB}''')
    if True:
        r.l.append(f's_cmp_eq_u32 s3, 0\ns_cselect_b32 s0, s46, {OOB}')
        if dft:
            r(f'''v_cmp_gt_u32 vcc, {g.opt.get('urep',2)}, v0
            v_lshl_add_u32 {t(10)}, v0, 9, s0
            s_nop 0
            v_cndmask_b32 v{vSG}, {t(8)}, {t(10)}, vcc''')
        else:
            r(f'''v_lshrrev_b32 {t(5)}, 1, v0
            v_mul_u32_u24 {t(6)}, 7, {t(5)}
            v_lshrrev_b32 {t(6)}, 1, {t(6)}
            v_sub_u32 {t(6)}, s49, {t(6)}
            v_and_b32 {t(7)}, 1, v0
            v_lshl_add_u32 {t(7)}, {t(7)}, 2, {t(5)}
            v_cmp_gt_u32 vcc, 4, {t(6)}
            v_lshlrev_b32 {t(7)}, 8, {t(7)}
            v_lshl_add_u32 {t(7)}, {t(6)}, 2, {t(7)}
            v_add_u32 {t(10)}, s0, {t(7)}
            v_cndmask_b32 {t(10)}, {t(8)}, {t(10)}, vcc
            v_and_b32 {t(7)}, {0x38 if g.opt.get('hrep',2)==2 else 0x39}, v0
            v_cmp_eq_u32 vcc, 0, {t(7)}
            s_nop 1
            v_cndmask_b32 v{vSG}, {t(8)}, {t(10)}, vcc''')
    else: r(f'v_mov_b32 v{vSG}, {t(8)}')
    return early, r.l, []
def trig_ops(fract=True, TMX=None):
    r=Rec(); t=lambda i:f'v{1000+i}'
    r.l.append(f's_cmp_lt_u32 s70, 4\ns_cselect_b32 s0, 0, 0x80000000')
    r(f'''s_or_b32 s0, s0, {f2u(1/2048):#x}
    v_mov_b32 {t(5)}, v{vTT}
    v_lshrrev_b32 {t(6)}, 5, v0
    v_cvt_f32_u32 {t(5)}, {t(5)}
    v_cvt_f32_u32 {t(6)}, {t(6)}
    v_mul_f32 {t(5)}, s0, {t(5)}
    v_cmp_gt_u32 s[0:1], 32, v0
    v_mul_f32 {t(6)}, {t(6)}, {t(5)}
    v_mul_f32 {t(7)}, {f2u(32.0):#x}, {t(5)}
    v_add_f32 {t(5)}, {t(5)}, {t(5)}
    v_mul_f32 {t(9)}, 0.5, {t(7)}
    v_cndmask_b32 {t(9)}, {t(7)}, {t(9)}, s[0:1]''')
    for j in range(8):
        if j: r(f'v_add_f32 {t(6)}, {t(6)}, {t(5)}')
        if fract:
            r(f'''v_add_f32 {t(1)}, {t(6)}, {t(7)}
            v_sub_f32 {t(2)}, {t(9) if j==0 else t(7)}, {t(6)}
            v_fract_f32 {t(0)}, {t(6)}
            v_add_f32 {t(3)}, {t(2)}, {t(7)}
            v_fract_f32 {t(1)}, {t(1)}
            v_fract_f32 {t(2)}, {t(2)}
            v_fract_f32 {t(3)}, {t(3)}''')
        else:
            r(f'''v_add_f32 {t(1)}, {t(6)}, {t(7)}
            v_sub_f32 {t(2)}, {t(9) if j==0 else t(7)}, {t(6)}
            v_add_f32 {t(3)}, {t(2)}, {t(7)}''')
        for i in range(4):
            a_=t(i) if (fract or i) else t(6)
            r(f'v_cos_f32 {t(12+2*i)}, {a_}\nv_sin_f32 {t(13+2*i)}, {a_}')
        for i in range(4): r(f'v_cvt_pk_bf16_f32 {t(20+i)}, {t(12+2*i)}, {t(13+2*i)}')
        for i in range(4): r(f'v_accvgpr_write_b32 a{224+4*j+i}, {t(20+i)}')
    TM={0:4,1:5,2:6,3:7,5:13,6:14,7:15,9:8}
    TM.update({12+i:128+i for i in range(8)}); TM.update({20+i:232+i for i in range(4)})
    return remap(r.l,TMX or TM)
def remap(L, TM):
    return [re.sub(r'v(10\d\d)\b', lambda m:'v%d'%TM[int(m.group(1))-1000], x) for x in L]
def xb2_ops(g):
    def o0(): g.vmem(f'buffer_load_ushort v{vB2}, v{vB2}, s[72:75], 0 offen','b2')
    return [o0]
def ppos(pr):
    p=pr%10
    return 131072+p*4096 if p<2 else ((p-2)>>1)*32768+(p&1)*4096
def w2_pair_ops(g, pr, base='s69', lds=None):
    if lds is None: lds=ppos(pr)
    def mk(i):
        def op():
            if i==0: g(f's_add_u32 m0, {base}, {lds}')
            g.vmem(f'buffer_load_dwordx4 v{vDM[i]}, s[64:67], s68 offen offset:{1024*i} lds', f'w{pr}')
            if i==3 and pr<13: g(f's_add_u32 s68, s68, 32768\ns_cmp_eq_u32 s68, {14*32768}\ns_cselect_b32 s68, 0, s68')
        return op
    return [mk(i) for i in range(4)]
def w2_trl(pr, regs=None, off=None):
    if regs is None:
        off=ppos(pr)
        if off>=65536 and off<0x18000: regs=('hi',);
        if off<65536: regs=vT[0:2]
        elif off>=0x18000: regs=vT[2:4]; off-=0x18000
        else: regs=[vTm0,vTm1]; off-=65536
    L=[]
    for k in range(2):
        for a_ in range(2):
            for q in range(2):
                r=8*(2*pr+k)+4*a_+2*q
                L.append(f'ds_read_b64_tr_b16 a[{r}:{r+1}], v{regs[a_]} offset:{off+2048*k+1024*q}')
    return L
vJ=[[241,242],[243,244]]
vTm0,vTm1=14,15

def entry(g):
    g('''s_cmp_ge_u32 s2, 256
    s_cbranch_scc1 L_end''')
    g.stamp()
    g('''s_load_dwordx16 s[4:19], s[0:1], 0
    s_load_dwordx8 s[20:27], s[0:1], 64
    s_load_dwordx2 s[28:29], s[0:1], 96
    v_lshrrev_b32 v1, 6, v0
    s_and_b32 s30, s2, 7
    s_lshr_b32 s31, s2, 3
    v_readfirstlane_b32 s3, v1''')
    if g.opt.get('codepf',1):
        g(f'''s_getpc_b64 s[50:51]
        L_pc:
        s_mul_i32 s53, s31, 1280
        v_lshl_add_u32 v2, v0, 3, s53
        v_min_u32 v2, L_codeend-L_pc-4, v2
        v_mov_b32 v3, s51
        v_add_co_u32 v2, vcc, s50, v2
        v_addc_co_u32 v3, vcc, 0, v3, vcc''')
        g.vmem('global_load_dword v1, v[2:3], off','pf')
    if g.opt.get('p1arr',48)==216:
        g('''v_and_b32 v0, 63, v0
        s_lshl_b32 s48, s30, 1
        s_and_b32 s53, s31, 1
        s_cmp_lt_u32 s31, 4
        s_cbranch_scc1 L_dft0
        s_add_u32 s48, s48, s53
        s_lshr_b32 s49, s31, 1
        s_sub_u32 s49, s49, 2
        s_mov_b32 s100, s53''')
        r=g.opt.get('rot',4)
        if r==1: g('s_lshl_b32 s56, s53, 2\ns_add_u32 s56, s56, s49\ns_and_b32 s56, s56, 7')
        elif r==2: g('s_add_u32 s56, s53, s49\ns_and_b32 s56, s56, 1\ns_lshl_b32 s56, s56, 2')
        elif r==4: g('s_lshl_b32 s56, s53, 1\ns_add_u32 s56, s56, s49\ns_and_b32 s56, s56, 3\ns_lshl_b32 s56, s56, 1')
        if g.opt.get('xph',0): g('s_add_u32 s56, s56, s30\ns_and_b32 s56, s56, 7')
        return
    rot=g.opt.get('rot',4)
    g('''v_and_b32 v0, 63, v0
    s_lshr_b32 s48, s30, 1
    s_lshl_b32 s55, s48, 1
    s_lshl_b32 s48, s48, 2
    s_and_b32 s100, s31, 3
    s_add_u32 s48, s48, s100
    s_lshr_b32 s49, s31, 2
    s_sub_u32 s49, s49, 1
    s_and_b32 s49, s49, 7''') if g.opt.get('dftfirst',1) else g('''v_and_b32 v0, 63, v0
    s_lshr_b32 s48, s30, 1
    s_lshl_b32 s55, s48, 1
    s_lshl_b32 s48, s48, 2
    s_lshr_b32 s100, s31, 3
    s_add_u32 s48, s48, s100
    s_and_b32 s49, s31, 7''')
    if rot==1:   g('s_lshl_b32 s56, s100, 1\ns_add_u32 s56, s56, s49\ns_and_b32 s56, s56, 7')
    elif rot==2: g('s_add_u32 s56, s100, s49\ns_and_b32 s56, s56, 1\ns_lshl_b32 s56, s56, 2')
    elif rot==4: g('s_add_u32 s56, s100, s49\ns_and_b32 s56, s56, 3\ns_lshl_b32 s56, s56, 1')
    elif rot==0: g('s_mov_b32 s56, 0')
    if g.opt.get('xph',0): g('s_add_u32 s56, s56, s55\ns_and_b32 s56, s56, 7')
    g('''s_and_b32 s53, s30, 1
    s_cmp_eq_u32 s49, 7
    s_cbranch_scc1 L_dfte''')

def p1_mlp(g):
    ACC=64
    vX=[2,3,4,5]; vW=[6,7,8,9]; vB=[10,11,12,13]; vA=[18,19]
    vSA,vCA,vCP,vCB=14,15,16,17
    vB1=[56,57]; CSA=164; SEL=168; GA=144; GF=160
    WP=200; vP0,vP1,vPT,vPS,vPF=208,209,210,211,212
    rot=g.opt.get('rot',4)
    A216=g.opt.get('p1arr',48)==216
    if A216:
        g('s_and_b32 s50, s3, 1\ns_lshr_b32 s51, s3, 1\ns_and_b32 s53, s49, 1')
    else:
        g('''s_mul_i32 s54, s53, 7
        s_add_u32 s49, s49, s54
        s_and_b32 s50, s3, 1
        s_lshr_b32 s51, s3, 1''')
    g('s_lshl_b32 s63, s48, 1\ns_add_u32 s63, s63, s53')
    t1_of(g,'s52','s48','s51','s53')
    g(f'''v_lshrrev_b32 v24, 3, v0
    v_lshrrev_b32 v25, 4, v0
    v_and_b32 v28, 7, v0
    v_xor_b32 v26, v28, v25
    v_lshlrev_b32 v26, 4, v26
    v_lshl_add_u32 v26, v24, 15, v26
    s_lshl_b32 s53, s52, 10
    s_lshl_b32 s54, s50, 20
    s_add_u32 s53, s53, s54
    v_add_u32 v{vX[0]}, s53, v26
    v_xor_b32 v27, 64, v{vX[0]}
    v_add_u32 v{vX[1]}, {262144-1024}, v27
    v_add_u32 v{vX[2]}, {2*(262144-1024)}, v{vX[0]}
    v_add_u32 v{vX[3]}, {3*(262144-1024)}, v27
    v_and_b32 v26, 15, v0
    v_lshlrev_b32 v27, 2, v25
    v_xor_b32 v26, v26, v27
    v_lshlrev_b32 v26, 4, v26
    v_mul_u32_u24 v29, 3584, v25
    v_add_u32 v26, v26, v29
    s_mul_i32 s53, s3, 57344
    s_lshl_b32 s54, s49, 8
    s_add_u32 s53, s53, s54
    v_add_u32 v{vW[0]}, s53, v26
    v_add_u32 v{vW[1]}, 13312, v{vW[0]}
    v_add_u32 v{vW[2]}, {2*13312}, v{vW[0]}
    v_add_u32 v{vW[3]}, {3*13312}, v{vW[0]}
    s_lshl_b32 s55, s3, 12''')
    g.stamp('pro')
    g('s_waitcnt lgkmcnt(0)')
    g.stamp('pro')
    srd(g,32,4,2097152); srd(g,36,16,512*1792*2)
    def stage_ops(st):
        slot=st&3
        def mk(i):
            def op():
                if i==0: g(f's_lshl_b32 s57, s56, 7\ns_mul_i32 s58, s56, 229376\ns_add_u32 m0, s55, {slot*32768}')
                if i==4: g(f's_add_u32 m0, s55, {slot*32768+16384}\ns_add_u32 s56, s56, 1\ns_and_b32 s56, s56, 7')
                if i<4: g.vmem(f'buffer_load_dwordx4 v{vX[i]}, s[32:35], s57 offen offset:{1024*i} lds',f's{st}')
                else:   g.vmem(f'buffer_load_dwordx4 v{vW[i-4]}, s[36:39], s58 offen offset:{1024*(i-4)} lds',f's{st}')
            return op
        return [mk(i) for i in range(8)]
    D=g.opt.get('depth',3)
    for op in stage_ops(0): op()
    g.stamp('pro')
    for op in stage_ops(1): op()
    g('@@SPLIT@@')
    g.stamp('pro')
    epoch_load(g)
    g(f'''s_lshl_b32 s46, s48, 11
    v_and_b32 v24, 31, v0
    v_lshrrev_b32 v25, 5, v0
    v_bfe_u32 v26, v0, 1, 3
    v_xor_b32 v26, v26, v25
    s_lshl_b32 s53, s51, 13
    v_lshlrev_b32 v27, 7, v24
    v_add_u32 v27, s53, v27''')
    for kk in range(4):
        g(f'''v_xor_b32 v28, {2*kk}, v26
        v_lshl_add_u32 v{vB[kk]}, v28, 4, v27''')
    g(f'''v_bfe_u32 v26, v0, 2, 2
    v_lshl_add_u32 v27, v25, 3, v26
    v_lshlrev_b32 v27, 8, v27
    s_lshl_b32 s53, s50, 1
    s_add_u32 s53, s53, s51
    v_xor_b32 v26, s53, v26
    v_lshl_add_u32 v27, v26, 6, v27
    v_bfe_u32 v26, v0, 4, 1
    v_and_b32 v28, 3, v0
    v_lshlrev_b32 v30, 3, v28
    v_lshl_add_u32 v30, v26, 5, v30
    s_movk_i32 s59, 0x4000
    v_add3_u32 v{vA[0]}, v27, v30, s59
    v_xor_b32 v{vA[1]}, 64, v{vA[0]}
    v_bfe_u32 v27, v0, 2, 1
    v_xor_b32 v26, v26, v27
    v_or_b32 v26, v26, v28
    v_mov_b32 v27, 0x3f803f80
    v_cmp_eq_u32 vcc, 0, v26
    s_lshl_b32 s53, s53, 5
    v_add_u32 v26, s53, v24
    v_cndmask_b32 v{SEL+4}, 0, v27, vcc
    s_lshl_b32 s54, s49, 7
    v_add_lshl_u32 v{vB1[0]}, v26, s54, 1
    v_xor_b32 v{vB1[1]}, 64, v{vB1[0]}''')
    srd(g,40,18,1792*2)
    for t in range(2): g.vmem(f'buffer_load_ushort v{vB1[t]}, v{vB1[t]}, s[40:43], 0 offen','b1')
    if A216:
        g(f'''s_lshl_b32 s53, s49, 3
        s_lshr_b32 s54, s48, 1
        s_add_u32 s53, s53, s54
        s_lshl_b32 s53, s53, 11
        s_add_u32 s53, s53, {CS_REL+(ST_OFF-F_OFF)}
        v_lshl_add_u32 v{vCA}, v26, 4, s53
        s_lshl_b32 s54, s100, 3
        v_add_u32 v{vCP}, s54, v{vCA}
        v_xor_b32 v{vCB}, 0x200, v{vCA}''')
    else: g(f'''s_lshl_b32 s53, s49, 2
    s_lshr_b32 s54, s48, 2
    s_add_u32 s53, s53, s54
    s_lshl_b32 s53, s53, 12
    s_add_u32 s53, s53, {CS_REL+(ST_OFF-F_OFF)}
    v_lshl_add_u32 v26, v26, 5, s53
    s_lshl_b32 s54, s100, 3
    v_add_u32 v{vCP}, s54, v26
    v_lshl_add_u32 v{vCA}, v25, 4, v26
    v_xor_b32 v{vCB}, 0x400, v{vCA}''')
    g(f'''
    s_lshl_b32 s53, s63, 11
    s_lshl_b32 s54, s51, 10
    s_add_u32 s53, s53, s54
    s_add_u32 s53, s53, {ST_OFF-F_OFF}
    v_lshl_add_u32 v{vSA}, v24, 4, s53
''')
    srd(g,40,28,4<<20,add=F_OFF)
    g.stamp('pro')
    WS0=g.opt.get('wsched','o')
    if D==3 and WS0!='y':
        for op in stage_ops(2): op()
    g.stamp('pro')
    g('s_waitcnt lgkmcnt(0)')
    early,addr,trig=p2_setup_ops(g,False)
    TM={i:176+i for i in range(24)}
    early,addr,trig=[remap(x,TM) for x in (early,addr,trig)]
    vBh=[200,201,202,203]; vAh=[204,205]
    g.miscq=[f'v_add_u32 v{h}, 0x10000, v{l}' for h,l in zip(vBh+vAh,vB+vA)]+early+addr+trig
    def fr(s_):
        b=[32,128][s_]
        return dict(A=[b,b+4],B=[b+8,b+12])
    def rd(n):
        st,kk=n>>2,n&3
        f=fr(n&1); o=(st&1)*32768; hi=(st>>1)&1
        tr=lambda t,q: f'ds_read_b64_tr_b16 v[{f["A"][t]+2*q}:{f["A"][t]+2*q+1}], v{[vA,vAh][hi][t]} offset:{o+4096*kk+1024*q}'
        bb=lambda u: f'ds_read_b128 v[{f["B"][u]}:{f["B"][u]+3}], v{[vB,vBh][hi][kk]} offset:{o+4096*u}'
        return [tr(0,0),tr(0,1),bb(0),bb(1),tr(1,0),tr(1,1)]
    ncs = 4 if A216 else {1:2,4:2,2:4,0:8}[rot]
    def setsel(st):
        if ncs==2 or A216: cond=None
        elif ncs==4: cond=f's_lshr_b32 s53, s100, 1\ns_cmp_eq_u32 s53, {st>>1}'
        else: cond=f's_cmp_eq_u32 s100, {st>>1}'
        if cond is None:
            for i in range(4): g(f'v_mov_b32 v{SEL+i}, v{SEL+4}')
        else:
            g(cond+'\ns_cselect_b32 s53, -1, 0')
            for i in range(4): g(f'v_and_b32 v{SEL+i}, s53, v{SEL+4}')
    def gather_ops():
        def mk(r,v,off):
            def o(): g.vmem(f'buffer_load_dwordx4 v[{r}:{r+3}], v{v}, s[40:43], 0 offen offset:{off} sc1','ga')
            return o
        return [mk(GA,vSA,0),mk(GA+4,vSA,512),mk(GA+8,vCA,0),mk(GA+12,vCB,0)]
    def publish():
        g(f'v_mov_b32 v{CSA+1}, s47')
        g.vmem(f'buffer_store_dwordx2 v[{CSA}:{CSA+1}], v{vCP}, s[40:43], 0 offen sc1','csp')
    WPS=g.opt.get('wpstage',1)
    WSCHED={'a':{2:[0],3:[1],5:[2,3],6:[4],7:[5,6]},'b':{3:[0],4:[1],5:[2],6:[3,4],7:[5]},'c':{5:[0,1],6:[2],7:[3,4]},'d':{1:[0],2:[1],5:[2,3],6:[4,5],7:[6]},'e':{5:[0,1],6:[2,3],7:[4,5]},'f':{4:[0],5:[1],6:[2,3],7:[4,5]},'g':{5:[0],6:[1],7:[2,3]},'h':{4:[0,1],7:[2,3,4]},'i':{4:[0,1],7:[2,3]},'j':{4:[0,1]},'k':{3:[0,1],6:[2,3],7:[4,5]},'l':{4:[0,1],6:[2],7:[3,4]},'m':{1:[(0,0)],2:[(0,1)],3:[(1,0)],4:[(1,1)],5:[2,3],6:[4,5],7:[6]},'n':{1:[(0,0)],2:[(0,1)],3:[(1,0)],4:[(1,1)],6:[2,3],7:[4,5]},'o':{1:[0],2:[1],5:[2,3],6:[4,5],7:[6,7]},'p':{5:[0,1],7:[2]},'q':{5:[0,1]},'r':{5:[0,1],6:[2]},'s':{5:[0,1],7:[2,3]},'t':{5:[0,1],6:[2],7:[3]},'u':{1:[0,1],5:[2,3],6:[4,5],7:[6,7]},'v':{0:[0,1],5:[2,3],6:[4,5],7:[6,7]},'w':{2:[0,1],5:[2,3],6:[4,5],7:[6,7]},'x':{-1:[0,1],5:[2,3],6:[4,5],7:[6,7]},'y':{-2:[0,1],5:[2,3],6:[4,5],7:[6,7]}}[g.opt.get('wsched','o')]
    half={}
    prevtr=[0]
    NTL=g.opt.get('ntl',5)
    TRL={n:(i>>1,i&1) for i,n in enumerate([20,21,22,23,26,27,28,29,30,31][:2*NTL])}
    MX=g.opt.get('mx',5)
    nw=len(set((p[0] if isinstance(p,tuple) else p) for x in WSCHED.values() for p in x))
    def enter(st):
        g.flush_side()
        g.wait(f's{st}')
        g('s_barrier')
        g.stamp('st')
        if st+D<8: g.sideq+=stage_ops(st+D)
        if st==max(ncs,g.opt.get('pubst',4)) and ncs<8: g.sideq.append(publish)
        if st==6: g.miscq+=hr.l
        if st in WSCHED and st<6:
            while len(g.miscq)>len(trig)+len(addr): misc(g,1)
        if st==g.opt.get('gast',7) and not g.opt.get('galast'): g.sideq+=gather_ops()
        for pr in WSCHED.get(st,[]):
            if isinstance(pr,tuple):
                if pr[1]==0: half[pr[0]]=w2_pair_ops(g,pr[0])
                ops=half[pr[0]][2*pr[1]:2*pr[1]+2]
                if pr[1]==1: ops=[lambda p=pr[0],o=ops[0]:(g(f's_add_u32 m0, s69, {ppos(p)}'),o())]+ops[1:]
                g.sideq+=ops
            else: g.sideq+=w2_pair_ops(g,pr)
        if st==g.opt.get('gast',7) and g.opt.get('galast'): g.sideq+=gather_ops()
    if WS0 in 'xy':
        while len(g.miscq)>len(trig)+len(addr): misc(g,1)
        for op in w2_pair_ops(g,0)+w2_pair_ops(g,1): op()
        if WS0=='y':
            for op in stage_ops(2): op()
    hr=Rec()
    srd(hr,36,28,7340032)
    hr('''s_mul_i32 s53, s52, 112
    s_lshl_b32 s54, s49, 3
    s_add_u32 s53, s53, s54
    s_lshl_b32 s54, s50, 2
    s_add_u32 s53, s53, s54
    s_lshl_b32 s53, s53, 11
    s_lshl_b32 s54, s51, 12
    s_add_u32 s60, s53, s54
    s_xor_b32 s61, s60, 0x400
    s_xor_b32 s62, s60, 0x1000
    s_xor_b32 s63, s60, 0x1400
''')
    nonce(g); setsel(0)
    enter(0); g.stamp(); g.stamp('pro')
    for x in rd(0): g(x)
    for n in range(32):
        st,kk=n>>2,n&3
        f=fr(n&1)
        def mf(t,u):
            d=ACC+16*(2*t+u)
            g(f'{MF} v[{d}:{d+15}], v[{f["A"][t]}:{f["A"][t]+3}], v[{f["B"][u]}:{f["B"][u]+3}], '+(f'v[{d}:{d+15}]' if n else '0'))
        nx = rd(n+1) if n<31 else []
        xt=prevtr[0]; prevtr[0]=0
        if kk==3:
            g(f's_waitcnt lgkmcnt({xt})'); mf(0,0)
            if st<7: enter(st+1)
            else: g.flush_side(); g('s_barrier')
            for x in nx[:3]: g(x)
            mf(0,1)
            for x in nx[3:]: g(x)
            mf(1,0)
        else:
            g(f's_waitcnt lgkmcnt({3+xt})'); mf(0,0)
            for x in nx[:3]: g(x)
            g(f's_waitcnt lgkmcnt({5+xt})'); mf(0,1)
            for x in nx[3:]: g(x)
            g(f's_waitcnt lgkmcnt({6+xt})'); mf(1,0)
        if n in TRL:
            pr,h=TRL[n]
            if h==0: g.wait(f'w{pr}')
            for x in w2_trl(pr)[4*h:4*h+4]: g(x)
            prevtr[0]=4
        else:
            had=bool(g.sideq); g.side(); misc(g, 2 if had else MX)
        if st<ncs:
            g(f'v_mfma_f32_16x16x32_bf16 v[{CSA}:{CSA+3}], v[{SEL}:{SEL+3}], v[{f["A"][0]}:{f["A"][0]+3}], '+(f'v[{CSA}:{CSA+3}]' if n else '0'))
        mf(1,1)
        had=bool(g.sideq); g.side(2 if (len(g.sideq)>2*(3-kk)+1 or n in TRL) else 1); misc(g,2 if had else MX)
        if kk==3 and st+1<ncs and (st+1)%2==0: setsel(st+1)
    if ncs==8: publish()
    g.flush_side(); misc(g,9999)
    g.stamp(); g.stamp('st'); g.stamp('tail')
    g.wait('ga')
    g(f'''s_mov_b32 s56, {SPIN}
    L_gchk:
    v_xor_b32 v24, s47, v{GA+3}
    v_xor_b32 v25, s47, v{GA+7}
    v_xor_b32 v26, s47, v{GA+9}
    v_xor_b32 v27, s47, v{GA+11}
    v_xor_b32 v28, s47, v{GA+13}
    v_xor_b32 v29, s47, v{GA+15}
    v_or3_b32 v24, v24, v25, v26
    v_or3_b32 v27, v27, v28, v29
    v_or_b32 v24, v24, v27
    v_cmp_ne_u32 vcc, 0, v24
    s_cbranch_vccnz L_gslow
    L_gok:''')
    keep=list(g.vm); main=g.a.l; g.a.l=[]
    g('L_gslow:\ns_sleep 8')
    for op in gather_ops(): op()
    g('s_waitcnt vmcnt(0)\ns_sub_u32 s56, s56, 1\ns_cbranch_scc0 L_gchk\ns_branch L_gok')
    g.outofline+=g.a.l; g.a.l=main; g.vm=keep
    NG=g.opt.get('ng',10)
    assert NG<=10+NTL
    g('s_waitcnt lgkmcnt(0)')
    for pr in range(nw,NG): g.sideq+=w2_pair_ops(g,pr)
    a0,a1=GA+8,GA+12
    c0=-2*math.sqrt(2/math.pi)*math.log2(math.e); c1=c0*0.044715
    g(f'''v_add_f32 v{a0}, v{a0}, v{a0+2}
    v_add_f32 v{a1}, v{a1}, v{a1+2}
    v_rcp_f32 v24, v{GA+2}
    v_mov_b32 v{a0+1}, v{a0}
    v_mov_b32 v{a1+1}, v{a1}
    v_rcp_f32 v26, v{GA+6}
    v_cmp_gt_u32 vcc, 32, v0
    v_permlane32_swap_b32 v{a0}, v{a0+1}
    v_permlane32_swap_b32 v{a1}, v{a1+1}
    v_mov_b32 v50, v{GA+2}
    v_mov_b32 v54, v{GA+6}
    {'v_mov_b32' if A216 else 'v_add_f32'} v{a0+2}, v{a0}{'' if A216 else f', v{a0+1}'}
    {'v_mov_b32' if A216 else 'v_add_f32'} v{a1+2}, v{a1}{'' if A216 else f', v{a1+1}'}
    v_mov_b32 v{GA+2}, v{GA}
    v_mov_b32 v{GA+6}, v{GA+4}
    v_cvt_pk_bf16_f32 v{a0}, v{a0+2}, v{a0+2}
    v_cvt_pk_bf16_f32 v{a1}, v{a1+2}, v{a1+2}
    v_lshl_or_b32 v{a0+1}, v{vB1[0]}, 16, v{vB1[0]}
    v_lshl_or_b32 v{a1+1}, v{vB1[1]}, 16, v{vB1[1]}
    v_lshlrev_b32 v{a0+3}, 16, v{a0}
    v_lshlrev_b32 v{a1+3}, 16, v{a1}
    v_cndmask_b32 v{a0}, 0, v{a0}, vcc
    v_cndmask_b32 v{a1}, 0, v{a1}, vcc
    v_sub_f32 v{a0+2}, v{a0+2}, v{a0+3}
    v_sub_f32 v{a1+2}, v{a1+2}, v{a1+3}
    v_cndmask_b32 v{a0+1}, 0, v{a0+1}, vcc
    v_cndmask_b32 v{a1+1}, 0, v{a1+1}, vcc
    v_cvt_pk_bf16_f32 v{a0+2}, v{a0+2}, 0
    v_cvt_pk_bf16_f32 v{a1+2}, v{a1+2}, 0
    v_mov_b32 v{a0+3}, 0
    v_mov_b32 v{a1+3}, 0
    v_cndmask_b32 v{a0+2}, 0, v{a0+2}, vcc
    v_cndmask_b32 v{a1+2}, 0, v{a1+2}, vcc
    v_mov_b32 v{GA+3}, 0
    v_mov_b32 v{GA+7}, 0''')
    Aex=[a0,a1]; Bex=[GA,GA+4]
    for t in range(2):
        for u in range(2):
            d=ACC+16*(2*t+u)
            g(f'{MF} v[{d}:{d+15}], v[{Aex[t]}:{Aex[t]+3}], v[{Bex[u]}:{Bex[u]+3}], v[{d}:{d+15}]')
    g(f'''v_mul_f32 v25, v24, v24
    v_mul_f32 v27, v26, v26
    v_mul_f32 v49, {f2u(c0):#x}, v24
    v_mul_f32 v53, {f2u(c0):#x}, v26
    v_mul_f32 v25, v25, v24
    v_mul_f32 v27, v27, v26
    v_mul_f32 v48, {f2u(c1):#x}, v25
    v_mul_f32 v52, {f2u(c1):#x}, v27''')
    g('v_lshlrev_b32 v56, 4, v0')
    g.stamp()
    while len(g.miscq)>len(trig): misc(g,1)
    def trop(pr,h):
        def op():
            if h==0: g.wait(f'w{pr}')
            for x in w2_trl(pr)[4*h:4*h+4]: g(x)
        return op
    xo=xb2_ops(g)
    trs=[]
    for pr in range(NTL,4):
        if not g.opt.get('trpost'): trs+=[trop(pr,0),trop(pr,1)]
    g.sideq+=xo+trs
    NS=g.opt.get('gside',4)
    for t in range(2):
        for u in range(2):
            d=ACC+16*(2*t+u); K=[48,52][u]; RI=[50,54][u]
            for j in range(2):
                NS=g.opt.get('gside',4) if 4*t+2*u+j>=g.opt.get('gstart',0) else 0
                P=[d+8*j+2*i for i in range(4)]
                tm=[2+2*i for i in range(4)]
                o=[24,28][j]
                for i in range(4): g(f'v_pk_mul_f32 v[{tm[i]}:{tm[i]+1}], v[{P[i]}:{P[i]+1}], v[{P[i]}:{P[i]+1}]')
                for i in range(4): g(f'v_pk_fma_f32 v[{tm[i]}:{tm[i]+1}], v[{tm[i]}:{tm[i]+1}], v[{K}:{K+1}], v[{K}:{K+1}] op_sel:[0,0,1] op_sel_hi:[1,0,1]')
                if NS>=1: g.side()
                for i in range(4): g(f'v_pk_mul_f32 v[{tm[i]}:{tm[i]+1}], v[{tm[i]}:{tm[i]+1}], v[{P[i]}:{P[i]+1}]')
                for i in range(8):
                    g(f'v_exp_f32 v{2+i}, v{2+i}')
                    if i==3 and NS>=4: g.side()
                if NS>=2: g.side()
                for i in range(4): g(f'v_pk_fma_f32 v[{tm[i]}:{tm[i]+1}], v[{tm[i]}:{tm[i]+1}], v[{RI}:{RI+1}], v[{RI}:{RI+1}] op_sel:[0,0,0] op_sel_hi:[1,0,0]')
                for i in range(8):
                    g(f'v_rcp_f32 v{2+i}, v{2+i}')
                    if i==3 and NS>=5: g.side()
                if NS>=3: g.side()
                for i in range(4): g(f'v_pk_mul_f32 v[{tm[i]}:{tm[i]+1}], v[{tm[i]}:{tm[i]+1}], v[{P[i]}:{P[i]+1}]')
                for i in range(4): g(f'v_cvt_pk_bf16_f32 v{o+i}, v{tm[i]}, v{tm[i]+1}')
                g.vmem(f'buffer_store_dwordx4 v[{o}:{o+3}], v56, s[36:39], s{60+2*t+u} offen offset:{2048*j} {"" if g.opt.get("hplain") else "sc1"}','st')
    g.stamp()
    print('after GELU: side',len(g.sideq),'misc',len(g.miscq),file=sys.stderr)
    g.stamp('tail')
    g.flush_side()
    g(f'v_mov_b32 v2, s47\nv_add_u32 v{vTm0}, 0x10000, v{vT[0]}\nv_add_u32 v{vTm1}, 0x10000, v{vT[1]}')
    NJ=g.opt.get('nj',4)
    for k in range(0 if g.opt.get('merge',0) else NJ//2): g(f'v_add_u32 v{vJ[k][0]}, {ppos(12-2*k)}, v{vT[0]}\nv_add_u32 v{vJ[k][1]}, {ppos(12-2*k)}, v{vT[1]}')
    for d in (1,2,3): g(f's_add_u32 s{5+d}, s69, {d*32768}\ns_xor_b32 s{8+d}, s{5+d}, {d*8192}')
    g(f's_add_u32 s12, s69, {32768+4096}')
    TB=g.opt.get('trbefore',1)
    for pr in range(max(4,NTL),4+TB):
        g.wait(f'w{pr}')
        for x in w2_trl(pr): g(x)
    g.stamp('tail')
    g.wait('st')
    g.stamp('tail')
    g('s_barrier')
    g.vmem(f'buffer_store_dword v2, v{vSG}, s[40:43], 0 offen sc1','flag')
    g.stamp('tail')
    if g.opt.get('merge',0):
        g.nw=NG
        return
    for pr in range(NG,10):
        for op in w2_pair_ops(g,pr): op()
    if g.opt.get('trpost'):
        for pr in range(NTL,4):
            g.wait(f'w{pr}')
            for x in w2_trl(pr): g(x)
    g('s_waitcnt lgkmcnt(0)')
    for pr in range(max(NG,10),14):
        for op in w2_pair_ops(g,pr): op()
    for pr in range(max(4+TB,NTL),14-NJ):
        g.wait(f'w{pr}')
        for x in w2_trl(pr): g(x)
    g('v_not_b32 v3, v2')

def p1_dft(g):
    RAW=64
    vBr0=56; vXL=[57,18,19,2]; vSP=3; vA0=244; vBd=[4,5,6,7]; vWe,vWo=8,9; vFA=[10,11,12,13]; vFB=[14,15,16,17]
    CC=[192,196]; SS=[200,204]; NS=[208,212]
    RC=[216,218,220,222]
    if g.opt.get('p1arr',48)==216:
        g('L_dft0:\ns_lshr_b32 s100, s31, 1\ns_add_u32 s48, s48, s100\ns_lshl_b32 s100, s100, 1')
    g('''s_mov_b32 s49, s53
    s_lshr_b32 s51, s3, 1''')
    t1_of(g,'s52','s48','s51','s53')
    g(f'''s_and_b32 s50, s3, 1
    s_lshl_b32 s53, s50, 5
    s_add_u32 s53, s53, s52
    s_lshl_b32 s53, s53, 10
    v_lshrrev_b32 v24, 3, v0
    v_lshrrev_b32 v25, 4, v0
    v_and_b32 v26, 7, v0
    v_lshlrev_b32 v27, 4, v26
    v_lshl_add_u32 v27, v24, 16, v27
    s_lshl_b32 s54, s100, 7
    v_add3_u32 v{vXL[0]}, v27, s53, 0
    v_add_u32 v{vXL[0]}, s54, v{vXL[0]}
    v_xor_b32 v{vXL[1]}, 0x80, v{vXL[0]}
    v_xor_b32 v{vXL[2]}, 0x100, v{vXL[0]}
    v_xor_b32 v{vXL[3]}, 0x180, v{vXL[0]}
    s_waitcnt lgkmcnt(0)''')
    srd(g,32,4,2097152)
    def xops(gi):
        def mk(j):
            def op():
                if j==0: g(f's_mov_b32 s58, {gi*524288}')
                r=RAW+32*gi+4*j
                g.vmem(f'buffer_load_dwordx4 v[{r}:{r+3}], v{vXL[j&3]}, s[32:35], s58 offen offset:{512*(j>>2)}',f'x{gi}')
            return op
        return [mk(j) for j in range(8)]
    DO=g.opt.get('dord','a')
    for gi in range(1 if DO in 'de' else 2):
        for op in xops(gi): op()
    if DO not in 'de': g('@@SPLIT@@')
    epoch_load(g)
    srd(g,36,10,524288); srd(g,16,12,524288); srd(g,40,28,4<<20,add=F_OFF)
    g(f'''s_lshl_b32 s46, s48, 3
    s_lshl_b32 s53, s49, 2
    s_add_u32 s46, s46, s53
    s_add_u32 s46, s46, {FU}
    v_xor_b32 v26, v26, v25
    v_lshlrev_b32 v26, 4, v26
    v_lshl_add_u32 v27, v24, 11, v26
    s_lshl_b32 s53, s3, 16
    s_lshl_b32 s54, s49, 10
    s_add_u32 s53, s53, s54
    v_add_u32 v{vBd[0]}, s53, v27
    v_xor_b32 v28, 64, v{vBd[0]}
    v_add_u32 v{vBd[1]}, {16384-1024}, v28
    v_add_u32 v{vBd[2]}, {2*(16384-1024)}, v{vBd[0]}
    v_add_u32 v{vBd[3]}, {3*(16384-1024)}, v28
    v_add_u32 v28, 0x40000, v{vBd[0]}
    v_cmp_gt_u32 vcc, 1024, v{vBd[0]}
    v_lshl_add_u32 v27, v24, 7, v26
    s_lshl_b32 s53, s3, 12
    v_cndmask_b32 v{vBr0}, v{vBd[0]}, v28, vcc
    v_add_u32 v{vWe}, s53, v27
    v_xor_b32 v{vWo}, 64, v{vWe}
    s_mul_i32 s55, s3, 24576
    s_add_u32 s55, s55, 65536
    s_lshl_b32 s53, s48, 1
    s_add_u32 s53, s53, s49
    s_lshl_b32 s53, s53, 11
    s_lshl_b32 s54, s51, 10
    s_add_u32 s53, s53, s54
    s_lshl_b32 s54, s50, 4
    s_add_u32 s53, s53, s54
    s_add_u32 s53, s53, {ST_OFF-F_OFF}
    v_lshl_add_u32 v{vSP}, v24, 5, s53
    s_lshl_b32 s53, s48, 1
    s_add_u32 s53, s53, s49
    s_lshl_b32 s53, s53, 9
    s_add_u32 s13, s53, {A0_REL}
    s_lshl_b32 s54, s3, 7
    s_add_u32 s53, s13, s54
    v_lshl_add_u32 v{vA0}, v24, 2, s53
    v_and_b32 v242, 3, v0
    v_lshl_add_u32 v{vA0}, v242, 5, v{vA0}''')
    def bops(st):
        slot=st&1
        def mk(i):
            def op():
                if i==0: g(f's_xor_b32 s57, s100, {st}\ns_lshl_b32 s57, s57, 7\ns_add_u32 m0, s55, {slot*8192}')
                if i==4: g(f's_add_u32 m0, s55, {slot*8192+4096}')
                if i<4: g.vmem(f'buffer_load_dwordx4 v{vBr0 if i==0 else vBd[i]}, s[36:39], s57 offen offset:{1024*i} lds',f'B{st}')
                else:   g.vmem(f'buffer_load_dwordx4 v{vBd[i-4]}, s[16:19], s57 offen offset:{1024*(i-4)} lds',f'B{st}')
            return op
        return [mk(i) for i in range(8)]
    if DO in 'de':
        for op in bops(0): op()
        g('@@SPLIT@@')
    g(f'''v_and_b32 v24, 31, v0
    v_lshrrev_b32 v25, 5, v0
    v_bfe_u32 v26, v0, 1, 3
    v_xor_b32 v26, v26, v25
    v_lshlrev_b32 v27, 7, v24''')
    for kk in range(4):
        g(f'''v_xor_b32 v28, {2*kk}, v26
        v_lshl_add_u32 v{vFA[kk]}, v28, 4, v27
        v_add_u32 v{vFB[kk]}, s55, v{vFA[kk]}''')
    g(f'''v_cvt_f32_u32 v26, v24
    v_mul_f32 v26, {f2u(1/32):#x}, v26
    v_cvt_f32_u32 v27, v25
    v_mul_f32 v27, 4.0, v27
    v_mul_f32 v27, v27, v26
    v_mul_f32 v28, {f2u(5.0):#x}, v26''')
    for j in range(2):
        for i2 in range(4):
            for e in range(2):
                i=2*i2+e
                if not (j==0 and i==0):
                    g(f'v_add_f32 v27, v27, v{28 if i%4==0 else 26}')
                g(f'v_fract_f32 v29, v27\nv_cos_f32 v{20+e}, v29\nv_sin_f32 v{22+e}, v29')
            g(f'v_cvt_pk_bf16_f32 v{CC[j]+i2}, v20, v21\nv_cvt_pk_bf16_f32 v{SS[j]+i2}, v22, v23\nv_xor_b32 v{NS[j]+i2}, 0x80008000, v{SS[j]+i2}')
    early,addr,trig=p2_setup_ops(g,True)
    TM={0:20,1:21,2:22,3:23,4:24,5:25,6:26,7:27,8:28,9:29,10:30,12:2,13:3,14:8,15:9,16:31,17:57,18:240,19:241,20:242,21:243,22:244,23:245}
    early,addr,trig=[remap(x,TM) for x in (early,addr,trig)]
    PRO=g.opt.get('dpro',0)
    if PRO:
        for x in early+addr: g(x)
    g(f'''s_mov_b32 s59, 0x3f803f80
    s_movk_i32 s60, 0x3f80
    s_mov_b32 s61, 0x3f800000
    s_lshl_b32 s53, s49, 15
    s_or_b32 s62, s60, s53
    s_lshl_b32 s63, s62, 16
    s_cmp_eq_u32 s49, 0
    s_cselect_b32 s101, 2.0, 0
    s_waitcnt lgkmcnt(0)''')
    nonce(g)
    eps=f'{f2u(1e-5):#x}'
    chainq=[]
    def ch(n=1):
        for _ in range(n):
            if chainq: chainq.pop(0)()
    def stats(gi):
        R=RAW+32*gi; S=[224,228][gi&1]
        g.wait(f'x{gi}')
        if gi==0: g.stamp()
        for i in range(32):
            if i<2: g(f'v_dot2_f32_bf16 v{S+i}, v{R+i}, s59, 0\nv_dot2_f32_bf16 v{S+2+i}, v{R+i}, v{R+i}, 0')
            else:   g(f'v_dot2c_f32_bf16 v{S+(i&1)}, s59, v{R+i}\nv_dot2c_f32_bf16 v{S+2+(i&1)}, v{R+i}, v{R+i}')
            if i%4==3: g.side()
            if i>=2: ch(2)
        while chainq: ch()
        o=232+4*(gi&1); r1=RC[gi]; a,b,c,d=20,21,22,23
        lines=f'''v_add_f32 v{S}, v{S}, v{S+1}
        v_add_f32 v{S+2}, v{S+2}, v{S+3}
        v_add_f32_dpp v{S}, v{S}, v{S} quad_perm:[1,0,3,2] row_mask:0xf bank_mask:0xf
        v_add_f32_dpp v{S+2}, v{S+2}, v{S+2} quad_perm:[1,0,3,2] row_mask:0xf bank_mask:0xf
        v_add_f32_dpp v{S}, v{S}, v{S} quad_perm:[2,3,0,1] row_mask:0xf bank_mask:0xf
        v_add_f32_dpp v{S+2}, v{S+2}, v{S+2} quad_perm:[2,3,0,1] row_mask:0xf bank_mask:0xf
        v_add_f32_dpp v{S}, v{S}, v{S} row_half_mirror row_mask:0xf bank_mask:0xf
        v_add_f32_dpp v{S+2}, v{S+2}, v{S+2} row_half_mirror row_mask:0xf bank_mask:0xf
        v_mul_f32 v{a}, {f2u(-1/512):#x}, v{S}
        v_mul_f32 v{b}, {f2u(1/512):#x}, v{S+2}
        v_fma_f32 v{b}, -v{a}, v{a}, v{b}
        v_cvt_pk_bf16_f32 v{d}, v{a}, v{a}
        v_max_f32 v{b}, 0, v{b}
        v_lshlrev_b32 v{d}, 16, v{d}
        v_cvt_pk_bf16_f32 v{c}, 0, v{b}
        v_sub_f32 v{d}, v{a}, v{d}
        v_add_f32 v{c}, {eps}, v{c}
        v_cvt_pk_bf16_f32 v{o}, v{a}, v{d}
        v_cvt_pk_bf16_f32 v{c}, 0, v{c}
        v_mul_f32 v{r1+1}, s101, v{a}
        v_sqrt_f32 v{c}, v{c}
        v_mov_b32 v{o+3}, s47
        v_cvt_pk_bf16_f32 v{c}, 0, v{c}
        v_rcp_f32 v{r1}, v{c}
        v_mul_f32 v{d}, {f2u(-512.0):#x}, v{d}
        v_mul_f32 v{b}, v{b}, v{r1}
        v_mul_f32 v{241 if gi else 240}, v{d}, v{r1}
        v_mul_f32 v{b}, v{b}, v{r1}
        v_cvt_pk_bf16_f32 v{b}, 0, v{b}
        v_add_f32 v{b}, {eps}, v{b}
        v_cvt_pk_bf16_f32 v{b}, 0, v{b}
        v_sqrt_f32 v{b}, v{b}
        v_cvt_pk_bf16_f32 v{b}, 0, v{b}
        v_mul_f32 v{o+2}, v{b}, v{c}
        v_cvt_pk_bf16_f32 v{b}, 0, v{o+2}
        v_sub_f32 v{b}, v{o+2}, v{b}
        v_cvt_pk_bf16_f32 v{o+1}, v{o+2}, v{b}'''.split('\n')
        for ln in lines: chainq.append(lambda ln=ln: g(ln))
        chainq.append(lambda: g.vmem(f'buffer_store_dwordx4 v[{o}:{o+3}], v{vSP}, s[40:43], 0 offen offset:{256*gi} sc1','sp'))
        if gi: chainq.append(lambda: g(f'v_cmp_eq_u32 vcc, {gi}, v242\ns_nop 1\nv_cndmask_b32 v240, v240, v241, vcc'))
        if gi==3: chainq.append(lambda: g.vmem(f'buffer_store_dword v240, v{vA0}, s[40:43], 0 offen sc1','a0'))
    def bfly(gi):
        R=RAW+32*gi; r1=RC[gi]
        for j in range(4):
            o=[24,28][j&1]; T=[40,48][j&1]
            for i in range(4):
                a_=R+4*j+i; t=T+2*i
                g(f'v_dot2_f32_bf16 v{t}, v{a_}, s60, v{r1+1}\nv_dot2_f32_bf16 v{t+1}, v{a_}, s61, v{r1+1}'); ch()
            g.side()
            for i in range(4):
                b_=R+4*(j+4)+i; t=T+2*i
                g(f'v_dot2c_f32_bf16 v{t}, s62, v{b_}\nv_dot2c_f32_bf16 v{t+1}, s63, v{b_}'); ch()
            ch(2)
            for i in range(4):
                t=T+2*i
                g(f'v_pk_mul_f32 v[{t}:{t+1}], v[{t}:{t+1}], v[{r1}:{r1+1}] op_sel_hi:[1,0]')
            g.side()
            for i in range(4):
                t=T+2*i
                g(f'v_cvt_pk_bf16_f32 v{o+i}, v{t}, v{t+1}')
            g(f'ds_write_b128 v{vWo if gi&1 else vWe}, v[{o}:{o+3}] offset:{16384*j+1024*gi}')
        while chainq: ch()
    W0=16384
    LATEW=g.opt.get('latew',0)
    wl={0:W0,1:W0+4096,2:W0,3:W0+4096,4:W0,5:W0+4096,6:W0,7:W0+4096,8:0,9:4096,10:W0,11:W0+4096,12:8192,13:8192+4096}
    if LATEW: wl={0:W0,1:W0+4096,2:W0,3:W0+4096,4:W0,5:W0+4096,6:0,7:4096,8:W0,9:W0+4096,10:8192,11:8192+4096,12:0,13:4096}
    wd=lambda pr: w2_pair_ops(g,pr,'s55',wl[pr])
    order=g.opt.get('dord','a')
    plan={'a':[[],xops(2),xops(3),bops(0),bops(1),[],'w',[]],
          'b':[xops(2),xops(3),bops(0),bops(1),[],[],'w',[]],
          'c':[[],xops(2)+xops(3),bops(0),bops(1),[],'w',[],[]],
          'd':[xops(2),xops(3),[],bops(1),[],[],'w',[]],
          'e':[[],xops(2),xops(3),bops(1),[],[],'w',[]]}[order]
    if order in 'de':
        for op in xops(1): op()
    seq=((stats,0),(stats,1),(bfly,0),(stats,2),(bfly,1),(stats,3),(bfly,2),(bfly,3))
    if g.opt.get('sfirst'):
        seq=((stats,0),(stats,1),(stats,2),(stats,3),(bfly,0),(bfly,1),(bfly,2),(bfly,3))
        plan=[xops(2),xops(3),bops(0),[],bops(1),[],'w',[]] if order not in 'de' else [xops(2),xops(3),[],bops(1),[],[],'w',[]]
    for k,(fn,gi) in enumerate(seq):
        if plan[k]=='w':
            if not LATEW:
                if not PRO:
                    for x in early: g(x)
                g.sideq+=wd(0)+wd(1)
        else: g.sideq+=plan[k]
        if fn is stats:
            while any(1 for op in plan[max(k-2,0)] if False): pass
        fn(gi); g.stamp('dst')
        if order=='c' and k==1: g.flush_side()
    g.flush_side()
    g('s_waitcnt lgkmcnt(0)\ns_barrier')
    g.stamp(); g.stamp('dst')
    ACC=64
    def fr(s_):
        b=[32,216][s_]
        return dict(A=[b,b+4,b+8,b+12],B=[b+16,b+20])
    def rd(n):
        st,kk=n>>2,n&3; f=fr(n&1)
        bb=lambda ab: f'ds_read_b128 v[{f["B"][ab]}:{f["B"][ab]+3}], v{vFB[kk]} offset:{(st&1)*8192+4096*ab}'
        aa=lambda ti: f'ds_read_b128 v[{f["A"][ti]}:{f["A"][ti]+3}], v{vFA[kk]} offset:{st*16384+4096*ti}'
        return [aa(0),bb(0),bb(1),aa(1),aa(2),aa(3)]
    g.wait('B0')
    for x in rd(0): g(x)
    vTB=[18,19]
    nT=[i for i,x in enumerate(addr) if f'v_add_u32 v{vT[3]}' in x][0]+1
    pre=([] if PRO else addr[8:nT])+['s_sub_u32 s0, s55, s69',f'v_add_u32 v18, s0, v{vT[0]}',f'v_add_u32 v19, s0, v{vT[1]}']
    if not LATEW:
        for x in pre: g(x)
    if not g.opt.get('trigp2',1):
        trig=trig_ops(0,{1:20,2:21,3:22,5:23,6:30,7:31,9:57,12:2,13:3,14:8,15:9,16:240,17:241,18:242,19:243,20:24,21:25,22:26,23:27})
    g.miscq=([] if PRO else addr[:8]+addr[nT:])+trig
    if PRO: early=[]
    TRS={0:0,1:1,5:2,6:3,9:4,10:5,13:6,14:7}
    DMS={1:[2],2:[3],6:[4],7:[5],10:[6],11:[7,8],12:[9],14:[10],15:[11]}
    if LATEW:
        TRS={4:0,5:1,8:2,9:3,11:4,12:5,14:6,15:7}
        DMS={1:[0,1],5:[2],6:[3],9:[4],10:[5],11:[6,7],12:[8],13:[9]}
        g.miscq=early+pre+g.miscq
    for n in range(16):
        f=fr(n&1)
        def mf(ti,ab):
            d=ACC+32*ti+16*ab
            g(f'{MF} v[{d}:{d+15}], v[{f["A"][ti]}:{f["A"][ti]+3}], v[{f["B"][ab]}:{f["B"][ab]+3}], '+(f'v[{d}:{d+15}]' if n else '0'))
        nx=rd(n+1) if n<15 else []
        if n%2==0: g.stamp('dm')
        g('s_waitcnt lgkmcnt(0)'); mf(0,0)
        if n==3: g.sideq+=bops(2)
        if n==7: g.sideq+=bops(3)
        if LATEW and n==1:
            while any(x in g.miscq for x in early): misc(g,1)
        if LATEW and n==4:
            while any(x in g.miscq for x in pre): misc(g,1)
        if n==8:
            assert 'a0' not in g.vm
            while len(g.miscq)>len(trig): misc(g,1)
            g('s_barrier')
            g.miscq+=[f'v_and_b32 v2, 3, v0',f'v_lshrrev_b32 v3, 5, v0',f'v_lshlrev_b32 v3, 4, v3',f'v_lshl_add_u32 v2, v2, 7, v3',f'v_add_u32 v2, s13, v2',
                      f'v_and_b32 v3, 28, v0',f'v_cmp_eq_u32 vcc, 0, v3',f'v_mov_b32 v3, {OOB}','s_nop 0',f'v_cndmask_b32 v2, v3, v2, vcc']
        if n==9:
            misc(g,9999)
            g.sideq+=[(lambda q=q: g.vmem(f'buffer_load_dwordx4 v[{[20,24,28,240][q]}:{[20,24,28,240][q]+3}], v2, s[40:43], 0 offen offset:{32*q} sc1','al')) for q in range(4)]
        if n==15:
            g.wait('al')
            g.miscq+=[f'v_cvt_pk_bf16_f32 v{20+i}, v{20+2*i}, v{21+2*i}' for i in range(4)]+[f'v_cvt_pk_bf16_f32 v28, v28, v29','v_cvt_pk_bf16_f32 v29, v30, v31','v_cvt_pk_bf16_f32 v30, v240, v241','v_cvt_pk_bf16_f32 v31, v242, v243']
        for pr in DMS.get(n,[]): g.sideq+=wd(pr)
        if (n+1)%4==0 and n<15: g.wait(f'B{(n+1)>>2}')
        for x in nx[:3]: g(x)
        mf(0,1)
        for x in nx[3:]: g(x)
        mf(1,0)
        trq=[]
        if n in TRS:
            assert not any(True for op in g.sideq if getattr(op,'pr',None)==TRS[n])
            g.wait(f'w{TRS[n]}'); trq=w2_trl(TRS[n],vTB,wl[TRS[n]])
        for k,(ti,ab) in enumerate(((1,1),(2,0),(2,1),(3,0),(3,1))):
            if trq and k>=3:
                for x in trq[:4]: g(x)
                trq=trq[4:]
            else:
                had=bool(g.sideq); g.side(); misc(g,2 if had else 4)
            mf(ti,ab)
        had=bool(g.sideq); g.side(); misc(g,2 if had else 4)
    g.stamp(); g.stamp('s1'); g.stamp('dm')
    if LATEW: g.flush_side(); g.sideq+=wd(10)+wd(11)+[lambda: g('s_waitcnt lgkmcnt(0)')]
    g.sideq+=wd(12)+wd(13)
    def trop(pr):
        def op():
            g.wait(f'w{pr}')
            for x in w2_trl(pr,vTB,wl[pr])[:4]: g(x)
        def op2():
            for x in w2_trl(pr,vTB,wl[pr])[4:]: g(x)
        return [op,op2]
    NJ=g.opt.get('nj',4)
    for pr in range(8,min(12,14-NJ)): g.sideq+=trop(pr)
    g.sideq+=[lambda: [misc(g,1) for _ in range(len(g.miscq)-len(trig))]]
    def zc(ti):
        Z=[32,216][ti&1]; L=[]
        for ab in range(2):
            d=ACC+32*ti+16*ab
            for i in range(8): L.append(f'v_cvt_pk_bf16_f32 v{Z+8*ab+i}, v{d+2*i}, v{d+2*i+1}')
        return L
    for x in zc(0): g(x)
    for ti in range(4):
        Z=[32,216][ti&1]
        za=[Z,Z+4]; zb=[Z+8,Z+12]; ur=ACC+32*ti; ui=ur+16
        nxt=zc(ti+1) if ti<3 else []
        seq=[(ur,CC[0],za[0],1),(ui,CC[0],zb[0],1),(ur,CC[1],za[1],0),(ui,CC[1],zb[1],0),(ur,SS[0],zb[0],0),(ui,NS[0],za[0],0),(ur,SS[1],zb[1],0),(ui,NS[1],za[1],0)]
        for n,(d,am,bm,first) in enumerate(seq):
            g(f'{MF} v[{d}:{d+15}], v[{am}:{am+3}], v[{bm}:{bm+3}], '+('0' if first else f'v[{d}:{d+15}]'))
            for x in nxt[2*n:2*n+2]: g(x)
            had=bool(g.sideq); g.side(); misc(g,(0 if had else 2)+(0 if nxt else 2))
    g.stamp('s1')
    g.flush_side(); misc(g,9999)
    g.stamp('s1')
    for op in xb2_ops(g): op()
    for pr in (12,13):
        if pr<14-NJ:
            for op in trop(pr): op()
    for k in range(NJ//2): g(f'v_add_u32 v{vJ[k][0]}, {wl[12-2*k]}, v{vTB[0]}\nv_add_u32 v{vJ[k][1]}, {wl[12-2*k]}, v{vTB[1]}')
    g.stamp('s1')
    srd(g,36,28,4<<20,add=U_OFF)
    g(f'''v_and_b32 v24, 31, v0
    v_lshrrev_b32 v25, 5, v0
    v_lshlrev_b32 v24, 4, v24
    v_lshl_add_u32 v24, v25, 18, v24
    s_lshl_b32 s53, s3, 9
    v_add_u32 v24, s53, v24
    s_lshl_b32 s53, s48, 1
    s_add_u32 s53, s53, s49
    s_lshl_b32 s53, s53, 11''')
    for r in range(16):
        o=32+4*(r&3)
        for ti in range(4): g(f'v_cvt_pk_bf16_f32 v{o+ti}, v{ACC+32*ti+r}, v{ACC+32*ti+16+r}')
        g(f's_add_u32 s54, s53, {(8*(r>>2)+(r&3))*65536}')
        g.vmem(f'buffer_store_dwordx4 v[{o}:{o+3}], v24, s[36:39], s54 offen sc1','st')
        if r<4:
            d,am,bm,first=((224,20,CC[0],1),(240,20,NS[0],1),(224,28,CC[1],0),(240,28,NS[1],0))[r]
            g(f'{MF} a[{d}:{d+15}], v[{am}:{am+3}], v[{bm}:{bm+3}], '+('0' if first else f'a[{d}:{d+15}]'))
        if r==6:
            for i in range(4): g(f'v_accvgpr_read_b32 v{48+2*i}, a{224+i}\nv_accvgpr_read_b32 v{49+2*i}, a{240+i}')
            g(f'''s_lshl_b32 s0, s48, 12
            s_add_u32 s0, s0, 0x200000
            s_lshl_b32 s1, s49, 2
            s_add_u32 s1, s1, s3
            s_cmp_eq_u32 s1, 1
            s_cselect_b32 s0, s0, {OOB}
            v_lshl_add_u32 v2, v0, 4, s0
            v_mov_b32 v3, {OOB}
            v_cmp_gt_u32 vcc, 32, v0''')
            for i in range(4): g(f'v_cvt_pk_bf16_f32 v{28+i}, v{48+2*i}, v{49+2*i}')
            g('v_cndmask_b32 v2, v3, v2, vcc')
            g.vmem('buffer_store_dwordx4 v[28:31], v2, s[36:39], 0 offen sc1','st')
    g.stamp(); g.stamp('s1')
    g('v_mov_b32 v2, s47')
    g.vmem(f'buffer_load_dword v3, v{vPL}, s[40:43], 0 offen sc1','poll')
    def sig():
        g.wait('poll')
        g.stamp('s1')
        g('s_waitcnt lgkmcnt(0)\ns_barrier')
        if not g.opt.get('dlate',0): g(f'buffer_store_dword v2, v{vSG}, s[40:43], 0 offen sc1')
    if g.opt.get('dsig',1): g.dsig=sig
    else: sig()
    g('s_lshl_b32 s53, s3, 12')
    for d in (1,2,3): g(f's_add_u32 s{5+d}, s53, {(d-1)*16384}\ns_xor_b32 s{8+d}, s{5+d}, {d*4096}')
    g('s_lshr_b32 s12, s53, 1\ns_add_u32 s12, s12, 49152')

def p2(g, role):
    M=(role=='m') and g.opt.get('merge',0)
    X=role
    ACC=64; ACS=128; UF=144
    XS=32768+4096
    HR=[16+8*i for i in range(5)]+[192+8*i for i in range(5)]
    NH=len(HR)
    g.stamp(); g.stamp('tail')
    srd(g,36,28,7340032); srd(g,32,28,4<<20,add=U_OFF); srd(g,72,24,2097152)
    g(f'''s_sub_u32 s62, 32, s71
    s_and_b32 s62, s62, 31
    s_cmp_lt_u32 s70, 4
    s_cselect_b32 s62, s71, s62
    s_lshl_b32 s62, s62, 16
    v_mov_b32 v185, 0
    v_mov_b32 v186, 0
    v_mov_b32 v187, 0
    v_mov_b32 v188, 0x3f80
    v_cmp_gt_u32 vcc, 32, v0
    v_mov_b32 v189, 0
    v_mov_b32 v190, 0
    v_cndmask_b32 v188, 0, v188, vcc
    v_mov_b32 v191, 0
    s_mul_i32 s57, s71, 112
    s_mul_i32 s53, s3, 28
    s_add_u32 s57, s57, s53
    s_lshl_b32 s57, s57, 11
    s_add_u32 s59, s57, {28*2048}
    s_lshl_b32 s53, s44, 12
    s_add_u32 s58, s57, s53
    v_mov_b32 v2, s47
    s_mov_b32 s56, {SPIN}''')
    for d in (1,2,3):
        g(f'v_lshl_add_u32 v{9+d}, v0, 4, s{5+d}')
    g(f'v_mov_b32 v9, v{vFL}')
    if M:
        NW=g.nw; ops=[]
        for pr in range(NW,8): ops+=w2_pair_ops(g,pr)
        t01=w2_trl(0)+w2_trl(1)
        for n,op in enumerate(ops):
            op()
            if n==3: g.wait('w1')
            if n>=3 and t01:
                for x in t01[:2]: g(x)
                del t01[:2]
        for x in t01: g(x)
        g.vmem(f'buffer_load_dword v3, v{vPL}, s[40:43], 0 offen sc1','poll')
        for pr in (8,9):
            for op in w2_pair_ops(g,pr): op()
        g.wait('poll')
    if role=='d' and g.opt.get('dsig',1): g.dsig()
    if role=='m' and not M: g(f'L_poll:\nbuffer_load_dword v3, v{vPL}, s[40:43], 0 offen sc1\nv_mov_b32 v184, v{vB2}\ns_waitcnt vmcnt(0)')
    else: g(f'v_mov_b32 v184, v{vB2}\nL_poll:')
    g('v_cmp_ne_u32 vcc, s47, v3\ns_cbranch_vccnz L_pslow\nL_go:')
    ool(g,f'''L_pslow:
    s_sleep {g.opt.get('sleep',4)}
    '''+('' if (role=='m' and not M) else f'buffer_load_dword v3, v{vPL}, s[40:43], 0 offen sc1\ns_waitcnt vmcnt(0)\n')+'''s_sub_u32 s56, s56, 1
    s_cbranch_scc0 L_poll
    s_branch L_go''')
    if not M: g.vm=['old']*30
    g.stamp(); g.stamp('tail')
    hidx=[0]
    def hload():
        ks=hidx[0]; r=HR[ks%NH]
        g.vmem(f'buffer_load_dwordx4 v[{r}:{r+3}], v{vH0}, s[36:39], s58 offen offset:{2048*(ks&1)} {g.opt.get("hld","sc1").replace("none","")}',f'h{ks}')
        g.vmem(f'buffer_load_dwordx4 v[{r+4}:{r+7}], v{vH1}, s[36:39], s58 offen offset:{2048*(ks&1)} {g.opt.get("hld","sc1").replace("none","")}',f'h{ks}')
        if ks&1 and ks<27: g('s_add_u32 s58, s58, 4096\ns_cmp_eq_u32 s58, s59\ns_cselect_b32 s58, s57, s58')
        hidx[0]+=1
    HD=g.opt.get('hdepth',8)
    g(f's_waitcnt lgkmcnt(0)\ns_mov_b32 s55, 0x80000')
    for i in range(HD):
        hload()
        if role=='d' and g.opt.get('dlate',0) and i==g.opt.get('dlate',0)*4-1: g.vmem(f'buffer_store_dword v2, v{vSG}, s[40:43], 0 offen sc1','sig')
    g(f'{MF} v[{ACC}:{ACC+15}], v[184:187], v[188:191], 0')
    XA=[236,237,238,239]
    xa=Rec()
    xa(f'''v_and_b32 v236, 31, v0
    v_lshrrev_b32 v237, 5, v0
    v_lshlrev_b32 v237, 3, v237
    v_lshl_add_u32 v237, v236, 6, v237
    v_bfe_u32 v236, v0, 2, 2
    v_lshl_add_u32 v236, v236, 4, v237
    v_add_u32 v236, s12, v236
    v_xor_b32 v237, 16, v236
    v_xor_b32 v238, 32, v236
    v_xor_b32 v239, 48, v236
    v_lshl_add_u32 v240, v0, 4, s12''')
    KF=g.opt.get('kflag',12)
    NL=g.opt.get('nlast',3)
    def mf(ks,a_,b):
        r=HR[ks%NH]; d=ACC+16*(a_+2*b)
        c='0' if (ks==0 and (a_ or b)) else f'v[{d}:{d+15}]'
        g(f'{MF} v[{d}:{d+15}], a[{8*ks+4*a_}:{8*ks+4*a_+3}], v[{r+4*b}:{r+4*b+3}], {c}')
    checked=False
    NJ=g.opt.get('nj',4)
    jit=[x for pr in range(14-NJ,14) for x in w2_trl(pr,vJ[(13-pr)>>1],4096*(pr&1))]
    late=[]
    if M:
        jit=[x for pr in range(2,14) for x in w2_trl(pr)]
        for pr in range(10,14): late+=w2_pair_ops(g,pr)
    g.miscq=xa.l+(trig_ops(0) if g.opt.get('trigp2',1) else [])
    for ks in range(28-NL):
        g.wait(f'h{ks}')
        if NJ and ks==16 and not M: g('s_waitcnt lgkmcnt(0)')
        if M and ks>=4 and ks%2==0: g('s_waitcnt lgkmcnt(8)')
        if M and ks>=16 and ks%2==0 and ks<=22: g.wait(f'w{ks//2+2}')
        if ks==0:
            g.stamp()
        for b in range(2):
            for a_ in range(2):
                mf(ks,a_,b)
                if a_==0 and b==0 and (ks>=1 or M) and jit:
                    for x in jit[:4]: g(x)
                    del jit[:4]
                elif a_==1 and b==0 and late:
                    late.pop(0)(); late.pop(0)()
                elif not (a_==1 and b==1): misc(g,g.opt.get('p2misc',6 if M else 4))
            if b==0 and g.sideq: g.side()
        if hidx[0]<28: hload()
        elif g.sideq: g.side()
        if ks==(10 if M else 2):
            g('s_mov_b32 m0, s12')
            g.vmem(f'buffer_load_dwordx4 v{vXO}, s[76:79], 0 offen lds','xl')
            g('s_add_u32 m0, m0, 1024')
            g.vmem(f'buffer_load_dwordx4 v{vXO}, s[76:79], s55 offen lds','xl')
        if ks==(24 if M else 22):
            assert 'xl' not in g.vm
            for q in range(4): g(f'ds_read_b64 v[{XR+2*q}:{XR+2*q+1}], v{XA[q]}')
        if ks==KF: g.vmem(f'buffer_load_dword v176, v9, s[40:43], 0 offen sc1','fl')
        if 'fl' not in g.vm and ks>KF and not checked:
            checked=True
            g(f'''L_chk:
            v_cmp_ne_u32 vcc, s47, v176
            s_cbranch_vccnz L_uslow
            L_allset:''')
            ool(g,'''L_uslow:
            s_sleep 8
            buffer_load_dword v176, v9, s[40:43], 0 offen sc1
            s_waitcnt vmcnt(0)
            s_sub_u32 s56, s56, 1
            s_cbranch_scc0 L_chk
            s_branch L_allset''')
            def mku(j):
                def op():
                    g(f's_add_u32 s53, s62, {8192*j}')
                    g.vmem(f'buffer_load_dwordx4 v[{UF+4*j}:{UF+4*j+3}], v{vU}, s[32:35], s53 offen sc1','u')
                return op
            g.sideq+=[mku(j) for j in range(8)]
    assert checked
    if g.miscq: print('p2',role,'misc left',len(g.miscq),file=sys.stderr)
    misc(g,9999)
    g.flush_side()
    if M: g('s_waitcnt lgkmcnt(4)')
    XF=176
    def wr(d):
        for q in range(4):
            r=ACC+16*d+4*q
            g(f'ds_write_b128 v{9+d}, v[{r}:{r+3}] offset:{1024*q}')
    for n,d in enumerate((3,2,1,0)):
        for ks in range(28-NL,28):
            g.wait(f'h{ks}')
            mf(ks,d&1,d>>1)
        if n==0: g('s_waitcnt lgkmcnt(0)')
        if n==1:
            for i in range(4): g(f'v_lshlrev_b32 v{XF+2*i}, 16, v{XR+i}\nv_and_b32 v{XF+2*i+1}, 0xffff0000, v{XR+i}')
            wr(3)
        if n==2:
            for i in range(4,8): g(f'v_lshlrev_b32 v{XF+2*i}, 16, v{XR+i}\nv_and_b32 v{XF+2*i+1}, 0xffff0000, v{XR+i}')
            wr(2)
    g.stamp()
    g(f's_mov_b32 s60, {f2u(-math.log2(math.e)):#x}\ns_mov_b32 s61, s60\ns_mov_b32 s62, 1.0\ns_mov_b32 s63, 1.0')
    def smm(J):
        for j in J:
            g(f'{MF} v[{ACS}:{ACS+15}], v[{UF+4*j}:{UF+4*j+3}], a[{224+4*j}:{227+4*j}], '+('0' if j==0 else f'v[{ACS}:{ACS+15}]'))
    wr(1)
    g.waitall()
    SB=g.opt.get('sbar',3)
    smm(range(SB))
    for d in (1,2,3): g(f'v_lshl_add_u32 v{9+d}, v0, 4, s{8+d}')
    g('s_waitcnt lgkmcnt(0)\ns_barrier')
    rds=[f'ds_read_b128 v[{[192,208,16][d]+4*q}:{[192,208,16][d]+4*q+3}], v{10+d} offset:{1024*q}' for q in range(4) for d in range(3)]
    for j in range(SB,8):
        smm([j])
        for x in rds[:4]: g(x)
        del rds[:4]
    for x in rds: g(x)
    if role=='m':
        g('s_lshl_b32 s1, s2, 2\ns_add_u32 s1, s1, s3\ns_cmp_eq_u32 s1, 803\ns_cbranch_scc1 L_ep0\nL_noep0:')
        ool(g,'''L_ep0:
        v_lshrrev_b32 v4, 2, v0
        v_and_b32 v5, 3, v0
        v_lshl_add_u32 v4, v4, 3, v5
        v_lshlrev_b32 v4, 8, v4
        buffer_load_dwordx4 v[6:9], v4, s[40:43], 0 offen sc1
        s_branch L_noep0''')
    T=80
    for hf in range(2):
        g(f's_waitcnt lgkmcnt({6-6*hf})')
        I=range(4*hf,4*hf+4)
        for i in I: g(f'v_pk_add_f32 v[{192+2*i}:{193+2*i}], v[{192+2*i}:{193+2*i}], v[{208+2*i}:{209+2*i}]')
        for i in I: g(f'v_pk_add_f32 v[{ACC+2*i}:{ACC+2*i+1}], v[{ACC+2*i}:{ACC+2*i+1}], v[{16+2*i}:{17+2*i}]')
        for i in I: g(f'v_pk_add_f32 v[{ACC+2*i}:{ACC+2*i+1}], v[{ACC+2*i}:{ACC+2*i+1}], v[{192+2*i}:{193+2*i}]')
        for i in I: g(f'v_pk_mul_f32 v[{T+2*i}:{T+2*i+1}], v[{ACC+2*i}:{ACC+2*i+1}], s[60:61]')
        for i in I: g(f'v_exp_f32 v{T+2*i}, v{T+2*i}\nv_exp_f32 v{T+2*i+1}, v{T+2*i+1}')
        for i in I: g(f'v_pk_add_f32 v[{T+2*i}:{T+2*i+1}], v[{T+2*i}:{T+2*i+1}], s[62:63]')
        for i in I: g(f'v_rcp_f32 v{T+2*i}, v{T+2*i}\nv_rcp_f32 v{T+2*i+1}, v{T+2*i+1}')
        sp=lambda r: ACS+4*(2*(r>>3)+(r&1))+2*((r>>2)&1)+((r>>1)&1)
        for i in I:
            for r in (2*i,2*i+1): g(f'v_mul_f32 v{ACC+r}, v{ACC+r}, v{sp(r)}')
        for i in I: g(f'v_pk_fma_f32 v[{T+2*i}:{T+2*i+1}], v[{T+2*i}:{T+2*i+1}], v[{ACC+2*i}:{ACC+2*i+1}], v[{XF+2*i}:{XF+2*i+1}]')
        for i in I: g(f'v_cvt_pk_bf16_f32 v{96+i}, v{T+2*i}, v{T+2*i+1}')
        for q in (2*hf,2*hf+1): g(f'ds_write_b64 v{XA[q]}, v[{96+2*q}:{97+2*q}]')
    g('s_waitcnt lgkmcnt(0)\nds_read_b128 v[104:107], v240\nds_read_b128 v[108:111], v240 offset:1024\ns_waitcnt lgkmcnt(1)')
    g(f'buffer_store_dwordx4 v[104:107], v{vXO}, s[72:75], 0 offen {g.opt.get("outfl","")}\ns_waitcnt lgkmcnt(0)\nbuffer_store_dwordx4 v[108:111], v{vXO}, s[72:75], s55 offen {g.opt.get("outfl","")}')
    if role=='m':
        g('s_cmp_eq_u32 s1, 803\ns_cbranch_scc1 L_ep1\nL_noep:')
        ool(g,f'''L_ep1:
        s_waitcnt vmcnt(2)
        L_ep:
        v_xor_b32 v6, s47, v6
        v_xor_b32 v7, s47, v7
        v_xor_b32 v8, s47, v8
        v_xor_b32 v9, s47, v9
        v_or3_b32 v6, v6, v7, v8
        v_or_b32 v6, v6, v9
        v_cmp_ne_u32 vcc, 0, v6
        s_cbranch_vccz L_epok
        s_sleep 8
        buffer_load_dwordx4 v[6:9], v4, s[40:43], 0 offen sc1
        s_waitcnt vmcnt(0)
        s_sub_u32 s56, s56, 1
        s_cbranch_scc0 L_ep
        L_epok:
        v_mov_b32 v3, {EPO}
        s_mov_b64 exec, 1
        buffer_store_dword v2, v3, s[40:43], 0 offen sc1
        s_mov_b64 exec, -1
        s_branch L_noep''')
    g.stamp()

DOC=""";
;   224 MLP workgroups: 128 rows x 128 hidden columns of gelu(LN(LN(x)) @ w1 + b1). The GEMM runs on raw x; both LayerNorms are
;     folded into one extra K-step (-mean * colsum(w1) + b1 / rstd) and a per-row scale. h goes to d_ws in MFMA fragment order.
;     butterfly + normalisation, half-size hidden DFT against the dft_hid tables, DFT-32 along the sequence (s = 64*s1 + s2) -> U.
;     Bins above 256 follow from the Hermitian symmetry; bin 0 is the residue left by the bf16-rounded mean.
; Hand-offs between workgroups: write-through stores, drained, then flag words / tagged granules holding a per-launch tag that is
; derived from an epoch word in d_ws (advanced once every workgroup has read it), so older launches' words never match.
"""
def build(stamps=False, opt=None):
    global vTm0,vTm1
    if (opt or {}).get('merge',0): vTm0,vTm1=241,242
    g=G(stamps,opt); g.miscq=[]; g.outofline=[]
    def sfx(L,x): return [re.sub(r'\b(L_go|L_poll|L_pslow|L_ep0|L_ep1|L_chk|L_uslow|L_allset|L_noep0|L_noep|L_epok|L_ep)\b', r'\1_'+x, l) for l in L]
    entry(g)
    head=list(g.a.l); vm0=list(g.vm); n0=g.nst
    g.a.l=[]; p1_mlp(g); mlp=list(g.a.l)
    oo=g.outofline; g.outofline=[]
    g.a.l=[]; p2(g,'m'); g.dump_stamps(TS_OFF); mlp+=sfx(g.a.l,'m')+['    s_endpgm']; oo+=sfx(g.outofline,'m'); g.outofline=[]
    g.a.l=[]; g.vm=list(vm0); g.nst=n0; g.miscq=[]
    p1_dft(g); dft=list(g.a.l)
    k=[i for i,x in enumerate(dft) if '@@SPLIT@@' in x][0]
    g.a.l=[]; p2(g,'d'); g.dump_stamps(TS_OFF); dft+=sfx(g.a.l,'d'); oo+=sfx(g.outofline,'d')
    km=[i for i,x in enumerate(mlp) if '@@SPLIT@@' in x][0]
    lines=head+mlp[:km]+['    s_branch L_mlp','L_dfte:']+dft[:k]+['    s_branch L_dft','L_mlp:']+mlp[km+1:]+['L_dft:']+dft[k+1:]+['L_end:','    s_endpgm']+oo+['L_codeend:']
    body='\n'.join(hazard.fix(lines))+'\n'
    txt=wrap([dict(name=KN,body=body,grid=256,block=256,lds=163840,vgpr=512,accum=256)],HDR)
    return txt.replace('.amdgcn_target',DOC+'.amdgcn_target',1)
if __name__=='__main__':
    out=sys.argv[1]; st='stamps' in sys.argv[2:]
    opt={}
    for a in sys.argv[2:]:
        if '=' in a:
            k,v=a.split('='); opt[k]=int(v) if v.lstrip('-').isdigit() else v
    open(out,'w').write(build(st,opt))
```

```python
import sys, math, struct, re
sys.path.insert(0,'tools')
from asmlib import A, wrap, KN
import hazard
from gen3 import G, srd, t1_of, f2u, HDR, U_OFF, ST_OFF, CS_REL, TS_OFF, SPIN

F_OFF = 12<<20
F2 = 8192
FU=32768; EPO=40960
A0_REL=(ST_OFF-F_OFF)+(512<<10)
WT_OFF = 14<<20
vB2, vXO = 254, 255
vD=[226+i for i in range(0)]
vDM=[246,247,248,249]
vT=[250,251,252,253]
XR=246
vSG,vH0,vH1,vU,vFL,vPL = 58,59,60,61,62,63
vTT=245
MF='v_mfma_f32_32x32x16_bf16'
OOB='0x40000000'

class Rec:
    def __init__(s): s.l=[]
    def __call__(s,t):
        for x in t.split('\n'):
            x=x.strip()
            if x: s.l.append(x)
def ool(g, text):
    g.outofline+=[x.strip() if x.strip().endswith(':') else '    '+x.strip() for x in text.split('\n') if x.strip()]
def misc(g, n):
    while n>0 and g.miscq:
        x=g.miscq.pop(0); g(x)
        n-= x.count('\n')+1 + (1 if ('v_cos' in x or 'v_sin' in x) else 0)
def epoch_load(g):
    g(f's_add_u32 s60, s28, {F_OFF+EPO}\ns_addc_u32 s61, s29, 0\ns_load_dword s47, s[60:61], 0')
def nonce(g):
    g('s_mul_i32 s47, s47, 0x9e3779b1\ns_add_u32 s47, s47, 0x85ebca6b')

def p2_setup_ops(g, dft):
    r=Rec(); t=lambda i:f'v{1000+i}'
    if g.opt.get('dmix',1):
        if dft: r('s_mul_i32 s31, s31, 9')
        else:
            for v in (1,2,3): r.l.append(f's_cmp_eq_u32 s31, {9*v}\ns_cselect_b32 s31, {v}, s31')
    if g.opt.get('p2arr',84)==48:
        r('''s_and_b32 s70, s31, 7
        s_lshr_b32 s0, s31, 4
        s_lshl_b32 s1, s30, 1
        s_add_u32 s45, s0, s1
        s_bfe_u32 s1, s31, 0x10003''')
    else:
        r('''s_and_b32 s70, s30, 1
        s_lshl_b32 s70, s70, 2
        s_lshr_b32 s0, s31, 2
        s_add_u32 s0, s0, s31
        s_and_b32 s0, s0, 3
        s_add_u32 s70, s70, s0
        s_lshr_b32 s45, s30, 1
        s_lshl_b32 s45, s45, 2
        s_lshr_b32 s0, s31, 3
        s_add_u32 s45, s45, s0
        s_bfe_u32 s1, s31, 0x10002''')
    r.l.append('s_sub_u32 s0, 32, s45\ns_cmp_eq_u32 s45, 0\ns_cselect_b32 s0, 16, s0\ns_cmp_eq_u32 s1, 0\ns_cselect_b32 s71, s45, s0')
    wr=g.opt.get('wrot',3)
    if wr==0: r('s_mov_b32 s44, 0')
    elif wr==1: r('s_mul_i32 s44, s30, 7\ns_lshr_b32 s44, s44, 2')
    elif wr==3: r('s_lshr_b32 s44, s31, 2\ns_mul_i32 s44, s44, 7\ns_lshr_b32 s44, s44, 2')
    elif wr==5: r('s_lshr_b32 s44, s31, 2\ns_max_u32 s44, s44, 1\ns_sub_u32 s44, s44, 1\ns_lshl_b32 s44, s44, 1')
    elif wr==4: r('s_lshr_b32 s44, s31, 3\ns_mul_i32 s44, s44, 7\ns_lshr_b32 s44, s44, 1')
    elif wr==2: r('s_lshr_b32 s44, s30, 1\ns_mul_i32 s44, s44, 7\ns_lshr_b32 s44, s44, 1')
    ho={0:None,1:(1,7),2:(1,4),3:(3,3),4:(3,1),5:(1,2)}[g.opt.get('hoff',0)]
    if ho:
        r.l.append(f's_and_b32 s0, s70, {ho[0]}\ns_mul_i32 s0, s0, {ho[1]}\ns_add_u32 s44, s44, s0\ns_cmp_ge_u32 s44, 14\ns_cselect_b32 s0, 14, 0\ns_sub_u32 s44, s44, s0'.replace('{ho[0]}',str(ho[0])) )
    r(f'''s_lshl_b32 s68, s44, 15
    s_lshl_b32 s69, s3, 13
    v_lshrrev_b32 {t(4)}, 3, v0
    v_bfe_u32 {t(5)}, v0, 4, 1
    v_lshlrev_b32 {t(6)}, 2, {t(5)}
    v_and_b32 {t(7)}, 7, v0
    v_xor_b32 {t(6)}, {t(6)}, {t(7)}
    v_lshlrev_b32 {t(6)}, 4, {t(6)}
    v_lshl_add_u32 {t(6)}, {t(4)}, 10, {t(6)}
    s_mul_i32 s0, s3, {448*1024}
    s_lshl_b32 s1, s70, 7
    s_add_u32 s0, s0, s1
    v_add_u32 v{vDM[0]}, s0, {t(6)}
    v_add_u32 v{vDM[1]}, {7168}, v{vDM[0]}
    v_add_u32 v{vDM[2]}, {2*7168}, v{vDM[0]}
    v_add_u32 v{vDM[3]}, {3*7168}, v{vDM[0]}''')
    srd(r,64,20,1792*512*2)
    early=r.l; r=Rec()
    srd(r,72,22,1024); srd(r,76,4,2097152)
    r(f'''v_lshrrev_b32 {t(4)}, 5, v0
    v_bfe_u32 {t(5)}, v0, 4, 1
    v_bfe_u32 {t(6)}, v0, 2, 2
    v_lshl_add_u32 {t(7)}, {t(4)}, 2, {t(6)}
    v_lshlrev_b32 {t(7)}, 7, {t(7)}
    v_lshrrev_b32 {t(6)}, 1, {t(6)}
    s_and_b32 s0, s3, 1
    v_xor_b32 {t(6)}, s0, {t(6)}
    v_lshl_add_u32 {t(7)}, {t(6)}, 6, {t(7)}
    v_lshl_add_u32 {t(7)}, {t(5)}, 5, {t(7)}
    v_and_b32 {t(6)}, 3, v0
    v_lshl_add_u32 {t(7)}, {t(6)}, 3, {t(7)}
    v_add_u32 v{vT[0]}, s69, {t(7)}
    v_xor_b32 v{vT[1]}, 64, v{vT[0]}
    v_add_u32 v{vT[2]}, 0x18000, v{vT[0]}
    v_add_u32 v{vT[3]}, 0x18000, v{vT[1]}
    s_and_b32 s0, s30, {g.opt.get('urep',2)-1}
    s_lshl_b32 s0, s0, 9
    s_add_u32 s0, s0, {FU}
    v_and_b32 {t(7)}, 31, v0
    v_lshl_add_u32 v{vFL}, {t(7)}, 2, s0
    s_lshl_b32 s0, s45, 1
    s_and_b32 s1, s30, {g.opt.get('hrep',2)-1}
    s_add_u32 s0, s0, s1
    s_lshl_b32 s0, s0, 2
    s_add_u32 s0, s0, s3
    s_lshl_b32 s0, s0, 8
    v_and_b32 {t(6)}, 3, v0
    v_lshl_add_u32 v{vPL}, {t(6)}, 2, s0
    s_lshr_b32 s1, s3, 1
    s_lshl_b32 s0, s1, 10
    v_lshl_add_u32 v{vH0}, v0, 4, s0
    v_xor_b32 v{vH1}, 0x400, v{vH0}
    s_lshl_b32 s0, s1, 5
    v_and_b32 {t(6)}, 31, v0
    v_add_u32 {t(5)}, s0, {t(6)}
    v_lshlrev_b32 {t(5)}, 5, {t(5)}
    v_add_u32 v{vTT}, s71, {t(5)}
    s_lshl_b32 s0, s0, 15
    s_lshl_b32 s1, s71, 10
    s_add_u32 s1, s1, s0
    v_lshrrev_b32 {t(5)}, 2, v0
    v_lshlrev_b32 {t(5)}, 15, {t(5)}
    v_lshrrev_b32 {t(7)}, 4, v0
    v_xor_b32 {t(7)}, {t(7)}, v0
    v_and_b32 {t(7)}, 3, {t(7)}
    v_lshl_add_u32 {t(5)}, {t(7)}, 4, {t(5)}
    v_add_u32 {t(5)}, s1, {t(5)}
    s_lshl_b32 s0, s70, 7
    s_and_b32 s1, s3, 1
    s_lshl_b32 s1, s1, 6
    s_add_u32 s0, s0, s1
    v_add_u32 v{vXO}, s0, {t(5)}
    v_lshl_add_u32 v{vB2}, {t(6)}, 1, s0
    s_lshr_b32 s0, s0, 1
    v_and_b32 {t(5)}, 20, v0
    v_bfe_u32 {t(7)}, v0, 1, 1
    v_lshl_add_u32 {t(5)}, {t(7)}, 3, {t(5)}
    v_and_b32 {t(7)}, 1, v0
    v_lshl_add_u32 {t(5)}, {t(7)}, 1, {t(5)}
    v_bfe_u32 {t(7)}, v0, 3, 1
    v_add3_u32 {t(6)}, {t(5)}, {t(7)}, s0''')
    r.l.append('s_cmp_lt_u32 s70, 4\ns_cselect_b32 s0, 0, -1\ns_cselect_b32 s1, 0, 513')
    r(f'''v_xor_b32 {t(7)}, s0, {t(6)}
    v_add_u32 {t(7)}, s1, {t(7)}
    v_and_b32 {t(8)}, 1, {t(7)}
    v_lshlrev_b32 {t(8)}, 11, {t(8)}
    v_bfe_u32 {t(7)}, {t(7)}, 1, 7
    v_lshl_add_u32 {t(7)}, {t(7)}, 4, {t(8)}
    v_lshl_add_u32 {t(7)}, {t(4)}, 12, {t(7)}
    s_mul_i32 s0, s71, 65520
    s_sub_u32 s0, 0x200000, s0
    v_add_u32 {t(8)}, s0, {t(7)}
    v_cmp_eq_u32 vcc, 0, {t(6)}
    s_nop 0
    v_cndmask_b32 v{vU}, {t(7)}, {t(8)}, vcc
    v_mov_b32 {t(8)}, {OOB}''')
    if True:
        r.l.append(f's_cmp_eq_u32 s3, 0\ns_cselect_b32 s0, s46, {OOB}')
        if dft:
            r(f'''v_cmp_gt_u32 vcc, {g.opt.get('urep',2)}, v0
            v_lshl_add_u32 {t(10)}, v0, 9, s0
            s_nop 0
            v_cndmask_b32 v{vSG}, {t(8)}, {t(10)}, vcc''')
        else:
            r(f'''v_lshrrev_b32 {t(5)}, 1, v0
            v_mul_u32_u24 {t(6)}, 7, {t(5)}
            v_lshrrev_b32 {t(6)}, 1, {t(6)}
            v_sub_u32 {t(6)}, s49, {t(6)}
            v_and_b32 {t(7)}, 1, v0
            v_lshl_add_u32 {t(7)}, {t(7)}, 2, {t(5)}
            v_cmp_gt_u32 vcc, 4, {t(6)}
            v_lshlrev_b32 {t(7)}, 8, {t(7)}
            v_lshl_add_u32 {t(7)}, {t(6)}, 2, {t(7)}
            v_add_u32 {t(10)}, s0, {t(7)}
            v_cndmask_b32 {t(10)}, {t(8)}, {t(10)}, vcc
            v_and_b32 {t(7)}, {0x38 if g.opt.get('hrep',2)==2 else 0x39}, v0
            v_cmp_eq_u32 vcc, 0, {t(7)}
            s_nop 1
            v_cndmask_b32 v{vSG}, {t(8)}, {t(10)}, vcc''')
    else: r(f'v_mov_b32 v{vSG}, {t(8)}')
    return early, r.l, []
def trig_ops(fract=True, TMX=None):
    r=Rec(); t=lambda i:f'v{1000+i}'
    r.l.append(f's_cmp_lt_u32 s70, 4\ns_cselect_b32 s0, 0, 0x80000000')
    r(f'''s_or_b32 s0, s0, {f2u(1/2048):#x}
    v_mov_b32 {t(5)}, v{vTT}
    v_lshrrev_b32 {t(6)}, 5, v0
    v_cvt_f32_u32 {t(5)}, {t(5)}
    v_cvt_f32_u32 {t(6)}, {t(6)}
    v_mul_f32 {t(5)}, s0, {t(5)}
    v_cmp_gt_u32 s[0:1], 32, v0
    v_mul_f32 {t(6)}, {t(6)}, {t(5)}
    v_mul_f32 {t(7)}, {f2u(32.0):#x}, {t(5)}
    v_add_f32 {t(5)}, {t(5)}, {t(5)}
    v_mul_f32 {t(9)}, 0.5, {t(7)}
    v_cndmask_b32 {t(9)}, {t(7)}, {t(9)}, s[0:1]''')
    for j in range(8):
        if j: r(f'v_add_f32 {t(6)}, {t(6)}, {t(5)}')
        if fract:
            r(f'''v_add_f32 {t(1)}, {t(6)}, {t(7)}
            v_sub_f32 {t(2)}, {t(9) if j==0 else t(7)}, {t(6)}
            v_fract_f32 {t(0)}, {t(6)}
            v_add_f32 {t(3)}, {t(2)}, {t(7)}
            v_fract_f32 {t(1)}, {t(1)}
            v_fract_f32 {t(2)}, {t(2)}
            v_fract_f32 {t(3)}, {t(3)}''')
        else:
            r(f'''v_add_f32 {t(1)}, {t(6)}, {t(7)}
            v_sub_f32 {t(2)}, {t(9) if j==0 else t(7)}, {t(6)}
            v_add_f32 {t(3)}, {t(2)}, {t(7)}''')
        for i in range(4):
            a_=t(i) if (fract or i) else t(6)
            r(f'v_cos_f32 {t(12+2*i)}, {a_}\nv_sin_f32 {t(13+2*i)}, {a_}')
        for i in range(4): r(f'v_cvt_pk_bf16_f32 {t(20+i)}, {t(12+2*i)}, {t(13+2*i)}')
        for i in range(4): r(f'v_accvgpr_write_b32 a{224+4*j+i}, {t(20+i)}')
    TM={0:4,1:5,2:6,3:7,5:13,6:14,7:15,9:8}
    TM.update({12+i:128+i for i in range(8)}); TM.update({20+i:232+i for i in range(4)})
    return remap(r.l,TMX or TM)
def remap(L, TM):
    return [re.sub(r'v(10\d\d)\b', lambda m:'v%d'%TM[int(m.group(1))-1000], x) for x in L]
def xb2_ops(g):
    def o0(): g.vmem(f'buffer_load_ushort v{vB2}, v{vB2}, s[72:75], 0 offen','b2')
    return [o0]
def ppos(pr):
    p=pr%10
    return 131072+p*4096 if p<2 else ((p-2)>>1)*32768+(p&1)*4096
def w2_pair_ops(g, pr, base='s69', lds=None):
    if lds is None: lds=ppos(pr)
    def mk(i):
        def op():
            if i==0: g(f's_add_u32 m0, {base}, {lds}')
            g.vmem(f'buffer_load_dwordx4 v{vDM[i]}, s[64:67], s68 offen offset:{1024*i} lds', f'w{pr}')
            if i==3 and pr<13: g(f's_add_u32 s68, s68, 32768\ns_cmp_eq_u32 s68, {14*32768}\ns_cselect_b32 s68, 0, s68')
        return op
    return [mk(i) for i in range(4)]
def w2_trl(pr, regs=None, off=None):
    if regs is None:
        off=ppos(pr)
        if off>=65536 and off<0x18000: regs=('hi',);
        if off<65536: regs=vT[0:2]
        elif off>=0x18000: regs=vT[2:4]; off-=0x18000
        else: regs=[vTm0,vTm1]; off-=65536
    L=[]
    for k in range(2):
        for a_ in range(2):
            for q in range(2):
                r=8*(2*pr+k)+4*a_+2*q
                L.append(f'ds_read_b64_tr_b16 a[{r}:{r+1}], v{regs[a_]} offset:{off+2048*k+1024*q}')
    return L
vJ=[[241,242],[243,244]]
vTm0,vTm1=14,15

def entry(g):
    g('''s_cmp_ge_u32 s2, 256
    s_cbranch_scc1 L_end''')
    g.stamp()
    g('''s_load_dwordx16 s[4:19], s[0:1], 0
    s_load_dwordx8 s[20:27], s[0:1], 64
    s_load_dwordx2 s[28:29], s[0:1], 96
    v_lshrrev_b32 v1, 6, v0
    s_and_b32 s30, s2, 7
    s_lshr_b32 s31, s2, 3
    v_readfirstlane_b32 s3, v1''')
    if g.opt.get('codepf',1):
        g(f'''s_getpc_b64 s[50:51]
        L_pc:
        s_mul_i32 s53, s31, 1280
        v_lshl_add_u32 v2, v0, 3, s53
        v_min_u32 v2, L_codeend-L_pc-4, v2
        v_mov_b32 v3, s51
        v_add_co_u32 v2, vcc, s50, v2
        v_addc_co_u32 v3, vcc, 0, v3, vcc''')
        g.vmem('global_load_dword v1, v[2:3], off','pf')
    if g.opt.get('p1arr',48)==216:
        g('''v_and_b32 v0, 63, v0
        s_lshl_b32 s48, s30, 1
        s_and_b32 s53, s31, 1
        s_cmp_lt_u32 s31, 4
        s_cbranch_scc1 L_dft0
        s_add_u32 s48, s48, s53
        s_lshr_b32 s49, s31, 1
        s_sub_u32 s49, s49, 2
        s_mov_b32 s100, s53''')
        r=g.opt.get('rot',4)
        if r==1: g('s_lshl_b32 s56, s53, 2\ns_add_u32 s56, s56, s49\ns_and_b32 s56, s56, 7')
        elif r==2: g('s_add_u32 s56, s53, s49\ns_and_b32 s56, s56, 1\ns_lshl_b32 s56, s56, 2')
        elif r==4: g('s_lshl_b32 s56, s53, 1\ns_add_u32 s56, s56, s49\ns_and_b32 s56, s56, 3\ns_lshl_b32 s56, s56, 1')
        if g.opt.get('xph',0): g('s_add_u32 s56, s56, s30\ns_and_b32 s56, s56, 7')
        return
    rot=g.opt.get('rot',4)
    g('''v_and_b32 v0, 63, v0
    s_lshr_b32 s48, s30, 1
    s_lshl_b32 s55, s48, 1
    s_lshl_b32 s48, s48, 2
    s_and_b32 s100, s31, 3
    s_add_u32 s48, s48, s100
    s_lshr_b32 s49, s31, 2
    s_sub_u32 s49, s49, 1
    s_and_b32 s49, s49, 7''') if g.opt.get('dftfirst',1) else g('''v_and_b32 v0, 63, v0
    s_lshr_b32 s48, s30, 1
    s_lshl_b32 s55, s48, 1
    s_lshl_b32 s48, s48, 2
    s_lshr_b32 s100, s31, 3
    s_add_u32 s48, s48, s100
    s_and_b32 s49, s31, 7''')
    if rot==1:   g('s_lshl_b32 s56, s100, 1\ns_add_u32 s56, s56, s49\ns_and_b32 s56, s56, 7')
    elif rot==2: g('s_add_u32 s56, s100, s49\ns_and_b32 s56, s56, 1\ns_lshl_b32 s56, s56, 2')
    elif rot==4: g('s_add_u32 s56, s100, s49\ns_and_b32 s56, s56, 3\ns_lshl_b32 s56, s56, 1')
    elif rot==0: g('s_mov_b32 s56, 0')
    if g.opt.get('xph',0): g('s_add_u32 s56, s56, s55\ns_and_b32 s56, s56, 7')
    g('''s_and_b32 s53, s30, 1
    s_cmp_eq_u32 s49, 7
    s_cbranch_scc1 L_dfte''')

def p1_mlp(g):
    ACC=64
    vX=[2,3,4,5]; vW=[6,7,8,9]; vB=[10,11,12,13]; vA=[18,19]
    vSA,vCA,vCP,vCB=14,15,16,17
    vB1=[56,57]; CSA=164; SEL=168; GA=144; GF=160
    WP=200; vP0,vP1,vPT,vPS,vPF=208,209,210,211,212
    rot=g.opt.get('rot',4)
    A216=g.opt.get('p1arr',48)==216
    if A216:
        g('s_and_b32 s50, s3, 1\ns_lshr_b32 s51, s3, 1\ns_and_b32 s53, s49, 1')
    else:
        g('''s_mul_i32 s54, s53, 7
        s_add_u32 s49, s49, s54
        s_and_b32 s50, s3, 1
        s_lshr_b32 s51, s3, 1''')
    g('s_lshl_b32 s63, s48, 1\ns_add_u32 s63, s63, s53')
    t1_of(g,'s52','s48','s51','s53')
    g(f'''v_lshrrev_b32 v24, 3, v0
    v_lshrrev_b32 v25, 4, v0
    v_and_b32 v28, 7, v0
    v_xor_b32 v26, v28, v25
    v_lshlrev_b32 v26, 4, v26
    v_lshl_add_u32 v26, v24, 15, v26
    s_lshl_b32 s53, s52, 10
    s_lshl_b32 s54, s50, 20
    s_add_u32 s53, s53, s54
    v_add_u32 v{vX[0]}, s53, v26
    v_xor_b32 v27, 64, v{vX[0]}
    v_add_u32 v{vX[1]}, {262144-1024}, v27
    v_add_u32 v{vX[2]}, {2*(262144-1024)}, v{vX[0]}
    v_add_u32 v{vX[3]}, {3*(262144-1024)}, v27
    v_and_b32 v26, 15, v0
    v_lshlrev_b32 v27, 2, v25
    v_xor_b32 v26, v26, v27
    v_lshlrev_b32 v26, 4, v26
    v_mul_u32_u24 v29, 3584, v25
    v_add_u32 v26, v26, v29
    s_mul_i32 s53, s3, 57344
    s_lshl_b32 s54, s49, 8
    s_add_u32 s53, s53, s54
    v_add_u32 v{vW[0]}, s53, v26
    v_add_u32 v{vW[1]}, 13312, v{vW[0]}
    v_add_u32 v{vW[2]}, {2*13312}, v{vW[0]}
    v_add_u32 v{vW[3]}, {3*13312}, v{vW[0]}
    s_lshl_b32 s55, s3, 12''')
    g.stamp('pro')
    g('s_waitcnt lgkmcnt(0)')
    g.stamp('pro')
    srd(g,32,4,2097152); srd(g,36,16,512*1792*2)
    def stage_ops(st):
        slot=st&3
        def mk(i):
            def op():
                if i==0: g(f's_lshl_b32 s57, s56, 7\ns_mul_i32 s58, s56, 229376\ns_add_u32 m0, s55, {slot*32768}')
                if i==4: g(f's_add_u32 m0, s55, {slot*32768+16384}\ns_add_u32 s56, s56, 1\ns_and_b32 s56, s56, 7')
                if i<4: g.vmem(f'buffer_load_dwordx4 v{vX[i]}, s[32:35], s57 offen offset:{1024*i} lds',f's{st}')
                else:   g.vmem(f'buffer_load_dwordx4 v{vW[i-4]}, s[36:39], s58 offen offset:{1024*(i-4)} lds',f's{st}')
            return op
        return [mk(i) for i in range(8)]
    D=g.opt.get('depth',3)
    for op in stage_ops(0): op()
    g.stamp('pro')
    for op in stage_ops(1): op()
    g('@@SPLIT@@')
    g.stamp('pro')
    epoch_load(g)
    g(f'''s_lshl_b32 s46, s48, 11
    v_and_b32 v24, 31, v0
    v_lshrrev_b32 v25, 5, v0
    v_bfe_u32 v26, v0, 1, 3
    v_xor_b32 v26, v26, v25
    s_lshl_b32 s53, s51, 13
    v_lshlrev_b32 v27, 7, v24
    v_add_u32 v27, s53, v27''')
    for kk in range(4):
        g(f'''v_xor_b32 v28, {2*kk}, v26
        v_lshl_add_u32 v{vB[kk]}, v28, 4, v27''')
    g(f'''v_bfe_u32 v26, v0, 2, 2
    v_lshl_add_u32 v27, v25, 3, v26
    v_lshlrev_b32 v27, 8, v27
    s_lshl_b32 s53, s50, 1
    s_add_u32 s53, s53, s51
    v_xor_b32 v26, s53, v26
    v_lshl_add_u32 v27, v26, 6, v27
    v_bfe_u32 v26, v0, 4, 1
    v_and_b32 v28, 3, v0
    v_lshlrev_b32 v30, 3, v28
    v_lshl_add_u32 v30, v26, 5, v30
    s_movk_i32 s59, 0x4000
    v_add3_u32 v{vA[0]}, v27, v30, s59
    v_xor_b32 v{vA[1]}, 64, v{vA[0]}
    v_bfe_u32 v27, v0, 2, 1
    v_xor_b32 v26, v26, v27
    v_or_b32 v26, v26, v28
    v_mov_b32 v27, 0x3f803f80
    v_cmp_eq_u32 vcc, 0, v26
    s_lshl_b32 s53, s53, 5
    v_add_u32 v26, s53, v24
    v_cndmask_b32 v{SEL+4}, 0, v27, vcc
    s_lshl_b32 s54, s49, 7
    v_add_lshl_u32 v{vB1[0]}, v26, s54, 1
    v_xor_b32 v{vB1[1]}, 64, v{vB1[0]}''')
    srd(g,40,18,1792*2)
    for t in range(2): g.vmem(f'buffer_load_ushort v{vB1[t]}, v{vB1[t]}, s[40:43], 0 offen','b1')
    if A216:
        g(f'''s_lshl_b32 s53, s49, 3
        s_lshr_b32 s54, s48, 1
        s_add_u32 s53, s53, s54
        s_lshl_b32 s53, s53, 11
        s_add_u32 s53, s53, {CS_REL+(ST_OFF-F_OFF)}
        v_lshl_add_u32 v{vCA}, v26, 4, s53
        s_lshl_b32 s54, s100, 3
        v_add_u32 v{vCP}, s54, v{vCA}
        v_xor_b32 v{vCB}, 0x200, v{vCA}''')
    else: g(f'''s_lshl_b32 s53, s49, 2
    s_lshr_b32 s54, s48, 2
    s_add_u32 s53, s53, s54
    s_lshl_b32 s53, s53, 12
    s_add_u32 s53, s53, {CS_REL+(ST_OFF-F_OFF)}
    v_lshl_add_u32 v26, v26, 5, s53
    s_lshl_b32 s54, s100, 3
    v_add_u32 v{vCP}, s54, v26
    v_lshl_add_u32 v{vCA}, v25, 4, v26
    v_xor_b32 v{vCB}, 0x400, v{vCA}''')
    g(f'''
    s_lshl_b32 s53, s63, 11
    s_lshl_b32 s54, s51, 10
    s_add_u32 s53, s53, s54
    s_add_u32 s53, s53, {ST_OFF-F_OFF}
    v_lshl_add_u32 v{vSA}, v24, 4, s53
''')
    srd(g,40,28,4<<20,add=F_OFF)
    g.stamp('pro')
    WS0=g.opt.get('wsched','o')
    if D==3 and WS0!='y':
        for op in stage_ops(2): op()
    g.stamp('pro')
    g('s_waitcnt lgkmcnt(0)')
    early,addr,trig=p2_setup_ops(g,False)
    TM={i:176+i for i in range(24)}
    early,addr,trig=[remap(x,TM) for x in (early,addr,trig)]
    vBh=[200,201,202,203]; vAh=[204,205]
    g.miscq=[f'v_add_u32 v{h}, 0x10000, v{l}' for h,l in zip(vBh+vAh,vB+vA)]+early+addr+trig
    def fr(s_):
        b=[32,128][s_]
        return dict(A=[b,b+4],B=[b+8,b+12])
    def rd(n):
        st,kk=n>>2,n&3
        f=fr(n&1); o=(st&1)*32768; hi=(st>>1)&1
        tr=lambda t,q: f'ds_read_b64_tr_b16 v[{f["A"][t]+2*q}:{f["A"][t]+2*q+1}], v{[vA,vAh][hi][t]} offset:{o+4096*kk+1024*q}'
        bb=lambda u: f'ds_read_b128 v[{f["B"][u]}:{f["B"][u]+3}], v{[vB,vBh][hi][kk]} offset:{o+4096*u}'
        return [tr(0,0),tr(0,1),bb(0),bb(1),tr(1,0),tr(1,1)]
    ncs = 4 if A216 else {1:2,4:2,2:4,0:8}[rot]
    def setsel(st):
        if ncs==2 or A216: cond=None
        elif ncs==4: cond=f's_lshr_b32 s53, s100, 1\ns_cmp_eq_u32 s53, {st>>1}'
        else: cond=f's_cmp_eq_u32 s100, {st>>1}'
        if cond is None:
            for i in range(4): g(f'v_mov_b32 v{SEL+i}, v{SEL+4}')
        else:
            g(cond+'\ns_cselect_b32 s53, -1, 0')
            for i in range(4): g(f'v_and_b32 v{SEL+i}, s53, v{SEL+4}')
    def gather_ops():
        def mk(r,v,off):
            def o(): g.vmem(f'buffer_load_dwordx4 v[{r}:{r+3}], v{v}, s[40:43], 0 offen offset:{off} sc1','ga')
            return o
        return [mk(GA,vSA,0),mk(GA+4,vSA,512),mk(GA+8,vCA,0),mk(GA+12,vCB,0)]
    def publish():
        g(f'v_mov_b32 v{CSA+1}, s47')
        g.vmem(f'buffer_store_dwordx2 v[{CSA}:{CSA+1}], v{vCP}, s[40:43], 0 offen sc1','csp')
    WPS=g.opt.get('wpstage',1)
    WSCHED={'a':{2:[0],3:[1],5:[2,3],6:[4],7:[5,6]},'b':{3:[0],4:[1],5:[2],6:[3,4],7:[5]},'c':{5:[0,1],6:[2],7:[3,4]},'d':{1:[0],2:[1],5:[2,3],6:[4,5],7:[6]},'e':{5:[0,1],6:[2,3],7:[4,5]},'f':{4:[0],5:[1],6:[2,3],7:[4,5]},'g':{5:[0],6:[1],7:[2,3]},'h':{4:[0,1],7:[2,3,4]},'i':{4:[0,1],7:[2,3]},'j':{4:[0,1]},'k':{3:[0,1],6:[2,3],7:[4,5]},'l':{4:[0,1],6:[2],7:[3,4]},'m':{1:[(0,0)],2:[(0,1)],3:[(1,0)],4:[(1,1)],5:[2,3],6:[4,5],7:[6]},'n':{1:[(0,0)],2:[(0,1)],3:[(1,0)],4:[(1,1)],6:[2,3],7:[4,5]},'o':{1:[0],2:[1],5:[2,3],6:[4,5],7:[6,7]},'p':{5:[0,1],7:[2]},'q':{5:[0,1]},'r':{5:[0,1],6:[2]},'s':{5:[0,1],7:[2,3]},'t':{5:[0,1],6:[2],7:[3]},'u':{1:[0,1],5:[2,3],6:[4,5],7:[6,7]},'v':{0:[0,1],5:[2,3],6:[4,5],7:[6,7]},'w':{2:[0,1],5:[2,3],6:[4,5],7:[6,7]},'x':{-1:[0,1],5:[2,3],6:[4,5],7:[6,7]},'y':{-2:[0,1],5:[2,3],6:[4,5],7:[6,7]}}[g.opt.get('wsched','o')]
    half={}
    prevtr=[0]
    NTL=g.opt.get('ntl',5)
    TRL={n:(i>>1,i&1) for i,n in enumerate([20,21,22,23,26,27,28,29,30,31][:2*NTL])}
    MX=g.opt.get('mx',5)
    nw=len(set((p[0] if isinstance(p,tuple) else p) for x in WSCHED.values() for p in x))
    def enter(st):
        g.flush_side()
        g.wait(f's{st}')
        g('s_barrier')
        g.stamp('st')
        if st+D<8: g.sideq+=stage_ops(st+D)
        if st==max(ncs,g.opt.get('pubst',4)) and ncs<8: g.sideq.append(publish)
        if st==6: g.miscq+=hr.l
        if st in WSCHED and st<6:
            while len(g.miscq)>len(trig)+len(addr): misc(g,1)
        if st==g.opt.get('gast',7) and not g.opt.get('galast'): g.sideq+=gather_ops()
        for pr in WSCHED.get(st,[]):
            if isinstance(pr,tuple):
                if pr[1]==0: half[pr[0]]=w2_pair_ops(g,pr[0])
                ops=half[pr[0]][2*pr[1]:2*pr[1]+2]
                if pr[1]==1: ops=[lambda p=pr[0],o=ops[0]:(g(f's_add_u32 m0, s69, {ppos(p)}'),o())]+ops[1:]
                g.sideq+=ops
            else: g.sideq+=w2_pair_ops(g,pr)
        if st==g.opt.get('gast',7) and g.opt.get('galast'): g.sideq+=gather_ops()
    if WS0 in 'xy':
        while len(g.miscq)>len(trig)+len(addr): misc(g,1)
        for op in w2_pair_ops(g,0)+w2_pair_ops(g,1): op()
        if WS0=='y':
            for op in stage_ops(2): op()
    hr=Rec()
    srd(hr,36,28,7340032)
    hr('''s_mul_i32 s53, s52, 112
    s_lshl_b32 s54, s49, 3
    s_add_u32 s53, s53, s54
    s_lshl_b32 s54, s50, 2
    s_add_u32 s53, s53, s54
    s_lshl_b32 s53, s53, 11
    s_lshl_b32 s54, s51, 12
    s_add_u32 s60, s53, s54
    s_xor_b32 s61, s60, 0x400
    s_xor_b32 s62, s60, 0x1000
    s_xor_b32 s63, s60, 0x1400
''')
    nonce(g); setsel(0)
    enter(0); g.stamp(); g.stamp('pro')
    for x in rd(0): g(x)
    for n in range(32):
        st,kk=n>>2,n&3
        f=fr(n&1)
        def mf(t,u):
            d=ACC+16*(2*t+u)
            g(f'{MF} v[{d}:{d+15}], v[{f["A"][t]}:{f["A"][t]+3}], v[{f["B"][u]}:{f["B"][u]+3}], '+(f'v[{d}:{d+15}]' if n else '0'))
        nx = rd(n+1) if n<31 else []
        xt=prevtr[0]; prevtr[0]=0
        if kk==3:
            g(f's_waitcnt lgkmcnt({xt})'); mf(0,0)
            if st<7: enter(st+1)
            else: g.flush_side(); g('s_barrier')
            for x in nx[:3]: g(x)
            mf(0,1)
            for x in nx[3:]: g(x)
            mf(1,0)
        else:
            g(f's_waitcnt lgkmcnt({3+xt})'); mf(0,0)
            for x in nx[:3]: g(x)
            g(f's_waitcnt lgkmcnt({5+xt})'); mf(0,1)
            for x in nx[3:]: g(x)
            g(f's_waitcnt lgkmcnt({6+xt})'); mf(1,0)
        if n in TRL:
            pr,h=TRL[n]
            if h==0: g.wait(f'w{pr}')
            for x in w2_trl(pr)[4*h:4*h+4]: g(x)
            prevtr[0]=4
        else:
            had=bool(g.sideq); g.side(); misc(g, 2 if had else MX)
        if st<ncs:
            g(f'v_mfma_f32_16x16x32_bf16 v[{CSA}:{CSA+3}], v[{SEL}:{SEL+3}], v[{f["A"][0]}:{f["A"][0]+3}], '+(f'v[{CSA}:{CSA+3}]' if n else '0'))
        mf(1,1)
        had=bool(g.sideq); g.side(2 if (len(g.sideq)>2*(3-kk)+1 or n in TRL) else 1); misc(g,2 if had else MX)
        if kk==3 and st+1<ncs and (st+1)%2==0: setsel(st+1)
    if ncs==8: publish()
    g.flush_side(); misc(g,9999)
    g.stamp(); g.stamp('st'); g.stamp('tail')
    g.wait('ga')
    g(f'''s_mov_b32 s56, {SPIN}
    L_gchk:
    v_xor_b32 v24, s47, v{GA+3}
    v_xor_b32 v25, s47, v{GA+7}
    v_xor_b32 v26, s47, v{GA+9}
    v_xor_b32 v27, s47, v{GA+11}
    v_xor_b32 v28, s47, v{GA+13}
    v_xor_b32 v29, s47, v{GA+15}
    v_or3_b32 v24, v24, v25, v26
    v_or3_b32 v27, v27, v28, v29
    v_or_b32 v24, v24, v27
    v_cmp_ne_u32 vcc, 0, v24
    s_cbranch_vccnz L_gslow
    L_gok:''')
    keep=list(g.vm); main=g.a.l; g.a.l=[]
    g('L_gslow:\ns_sleep 8')
    for op in gather_ops(): op()
    g('s_waitcnt vmcnt(0)\ns_sub_u32 s56, s56, 1\ns_cbranch_scc0 L_gchk\ns_branch L_gok')
    g.outofline+=g.a.l; g.a.l=main; g.vm=keep
    NG=g.opt.get('ng',10)
    assert NG<=10+NTL
    g('s_waitcnt lgkmcnt(0)')
    for pr in range(nw,NG): g.sideq+=w2_pair_ops(g,pr)
    a0,a1=GA+8,GA+12
    c0=-2*math.sqrt(2/math.pi)*math.log2(math.e); c1=c0*0.044715
    g(f'''v_add_f32 v{a0}, v{a0}, v{a0+2}
    v_add_f32 v{a1}, v{a1}, v{a1+2}
    v_rcp_f32 v24, v{GA+2}
    v_mov_b32 v{a0+1}, v{a0}
    v_mov_b32 v{a1+1}, v{a1}
    v_rcp_f32 v26, v{GA+6}
    v_cmp_gt_u32 vcc, 32, v0
    v_permlane32_swap_b32 v{a0}, v{a0+1}
    v_permlane32_swap_b32 v{a1}, v{a1+1}
    v_mov_b32 v50, v{GA+2}
    v_mov_b32 v54, v{GA+6}
    {'v_mov_b32' if A216 else 'v_add_f32'} v{a0+2}, v{a0}{'' if A216 else f', v{a0+1}'}
    {'v_mov_b32' if A216 else 'v_add_f32'} v{a1+2}, v{a1}{'' if A216 else f', v{a1+1}'}
    v_mov_b32 v{GA+2}, v{GA}
    v_mov_b32 v{GA+6}, v{GA+4}
    v_cvt_pk_bf16_f32 v{a0}, v{a0+2}, v{a0+2}
    v_cvt_pk_bf16_f32 v{a1}, v{a1+2}, v{a1+2}
    v_lshl_or_b32 v{a0+1}, v{vB1[0]}, 16, v{vB1[0]}
    v_lshl_or_b32 v{a1+1}, v{vB1[1]}, 16, v{vB1[1]}
    v_lshlrev_b32 v{a0+3}, 16, v{a0}
    v_lshlrev_b32 v{a1+3}, 16, v{a1}
    v_cndmask_b32 v{a0}, 0, v{a0}, vcc
    v_cndmask_b32 v{a1}, 0, v{a1}, vcc
    v_sub_f32 v{a0+2}, v{a0+2}, v{a0+3}
    v_sub_f32 v{a1+2}, v{a1+2}, v{a1+3}
    v_cndmask_b32 v{a0+1}, 0, v{a0+1}, vcc
    v_cndmask_b32 v{a1+1}, 0, v{a1+1}, vcc
    v_cvt_pk_bf16_f32 v{a0+2}, v{a0+2}, 0
    v_cvt_pk_bf16_f32 v{a1+2}, v{a1+2}, 0
    v_mov_b32 v{a0+3}, 0
    v_mov_b32 v{a1+3}, 0
    v_cndmask_b32 v{a0+2}, 0, v{a0+2}, vcc
    v_cndmask_b32 v{a1+2}, 0, v{a1+2}, vcc
    v_mov_b32 v{GA+3}, 0
    v_mov_b32 v{GA+7}, 0''')
    Aex=[a0,a1]; Bex=[GA,GA+4]
    for t in range(2):
        for u in range(2):
            d=ACC+16*(2*t+u)
            g(f'{MF} v[{d}:{d+15}], v[{Aex[t]}:{Aex[t]+3}], v[{Bex[u]}:{Bex[u]+3}], v[{d}:{d+15}]')
    g(f'''v_mul_f32 v25, v24, v24
    v_mul_f32 v27, v26, v26
    v_mul_f32 v49, {f2u(c0):#x}, v24
    v_mul_f32 v53, {f2u(c0):#x}, v26
    v_mul_f32 v25, v25, v24
    v_mul_f32 v27, v27, v26
    v_mul_f32 v48, {f2u(c1):#x}, v25
    v_mul_f32 v52, {f2u(c1):#x}, v27''')
    g('v_lshlrev_b32 v56, 4, v0')
    g.stamp()
    while len(g.miscq)>len(trig): misc(g,1)
    def trop(pr,h):
        def op():
            if h==0: g.wait(f'w{pr}')
            for x in w2_trl(pr)[4*h:4*h+4]: g(x)
        return op
    xo=xb2_ops(g)
    trs=[]
    for pr in range(NTL,4):
        if not g.opt.get('trpost'): trs+=[trop(pr,0),trop(pr,1)]
    g.sideq+=xo+trs
    NS=g.opt.get('gside',4)
    for t in range(2):
        for u in range(2):
            d=ACC+16*(2*t+u); K=[48,52][u]; RI=[50,54][u]
            for j in range(2):
                NS=g.opt.get('gside',4) if 4*t+2*u+j>=g.opt.get('gstart',0) else 0
                P=[d+8*j+2*i for i in range(4)]
                tm=[2+2*i for i in range(4)]
                o=[24,28][j]
                for i in range(4): g(f'v_pk_mul_f32 v[{tm[i]}:{tm[i]+1}], v[{P[i]}:{P[i]+1}], v[{P[i]}:{P[i]+1}]')
                for i in range(4): g(f'v_pk_fma_f32 v[{tm[i]}:{tm[i]+1}], v[{tm[i]}:{tm[i]+1}], v[{K}:{K+1}], v[{K}:{K+1}] op_sel:[0,0,1] op_sel_hi:[1,0,1]')
                if NS>=1: g.side()
                for i in range(4): g(f'v_pk_mul_f32 v[{tm[i]}:{tm[i]+1}], v[{tm[i]}:{tm[i]+1}], v[{P[i]}:{P[i]+1}]')
                for i in range(8):
                    g(f'v_exp_f32 v{2+i}, v{2+i}')
                    if i==3 and NS>=4: g.side()
                if NS>=2: g.side()
                for i in range(4): g(f'v_pk_fma_f32 v[{tm[i]}:{tm[i]+1}], v[{tm[i]}:{tm[i]+1}], v[{RI}:{RI+1}], v[{RI}:{RI+1}] op_sel:[0,0,0] op_sel_hi:[1,0,0]')
                for i in range(8):
                    g(f'v_rcp_f32 v{2+i}, v{2+i}')
                    if i==3 and NS>=5: g.side()
                if NS>=3: g.side()
                for i in range(4): g(f'v_pk_mul_f32 v[{tm[i]}:{tm[i]+1}], v[{tm[i]}:{tm[i]+1}], v[{P[i]}:{P[i]+1}]')
                for i in range(4): g(f'v_cvt_pk_bf16_f32 v{o+i}, v{tm[i]}, v{tm[i]+1}')
                g.vmem(f'buffer_store_dwordx4 v[{o}:{o+3}], v56, s[36:39], s{60+2*t+u} offen offset:{2048*j} {"" if g.opt.get("hplain") else "sc1"}','st')
    g.stamp()
    print('after GELU: side',len(g.sideq),'misc',len(g.miscq),file=sys.stderr)
    g.stamp('tail')
    g.flush_side()
    g(f'v_mov_b32 v2, s47\nv_add_u32 v{vTm0}, 0x10000, v{vT[0]}\nv_add_u32 v{vTm1}, 0x10000, v{vT[1]}')
    NJ=g.opt.get('nj',4)
    for k in range(0 if g.opt.get('merge',0) else NJ//2): g(f'v_add_u32 v{vJ[k][0]}, {ppos(12-2*k)}, v{vT[0]}\nv_add_u32 v{vJ[k][1]}, {ppos(12-2*k)}, v{vT[1]}')
    for d in (1,2,3): g(f's_add_u32 s{5+d}, s69, {d*32768}\ns_xor_b32 s{8+d}, s{5+d}, {d*8192}')
    g(f's_add_u32 s12, s69, {32768+4096}')
    TB=g.opt.get('trbefore',1)
    for pr in range(max(4,NTL),4+TB):
        g.wait(f'w{pr}')
        for x in w2_trl(pr): g(x)
    g.stamp('tail')
    g.wait('st')
    g.stamp('tail')
    g('s_barrier')
    g.vmem(f'buffer_store_dword v2, v{vSG}, s[40:43], 0 offen sc1','flag')
    g.stamp('tail')
    if g.opt.get('merge',0):
        g.nw=NG
        return
    for pr in range(NG,10):
        for op in w2_pair_ops(g,pr): op()
    if g.opt.get('trpost'):
        for pr in range(NTL,4):
            g.wait(f'w{pr}')
            for x in w2_trl(pr): g(x)
    g('s_waitcnt lgkmcnt(0)')
    for pr in range(max(NG,10),14):
        for op in w2_pair_ops(g,pr): op()
    for pr in range(max(4+TB,NTL),14-NJ):
        g.wait(f'w{pr}')
        for x in w2_trl(pr): g(x)
    g('v_not_b32 v3, v2')

def p1_dft(g):
    RAW=64
    vBr0=56; vXL=[57,18,19,2]; vSP=3; vA0=244; vBd=[4,5,6,7]; vWe,vWo=8,9; vFA=[10,11,12,13]; vFB=[14,15,16,17]
    CC=[192,196]; SS=[200,204]; NS=[208,212]
    RC=[216,218,220,222]
    if g.opt.get('p1arr',48)==216:
        g('L_dft0:\ns_lshr_b32 s100, s31, 1\ns_add_u32 s48, s48, s100\ns_lshl_b32 s100, s100, 1')
    g('''s_mov_b32 s49, s53
    s_lshr_b32 s51, s3, 1''')
    t1_of(g,'s52','s48','s51','s53')
    g(f'''s_and_b32 s50, s3, 1
    s_lshl_b32 s53, s50, 5
    s_add_u32 s53, s53, s52
    s_lshl_b32 s53, s53, 10
    v_lshrrev_b32 v24, 3, v0
    v_lshrrev_b32 v25, 4, v0
    v_and_b32 v26, 7, v0
    v_lshlrev_b32 v27, 4, v26
    v_lshl_add_u32 v27, v24, 16, v27
    s_lshl_b32 s54, s100, 7
    v_add3_u32 v{vXL[0]}, v27, s53, 0
    v_add_u32 v{vXL[0]}, s54, v{vXL[0]}
    v_xor_b32 v{vXL[1]}, 0x80, v{vXL[0]}
    v_xor_b32 v{vXL[2]}, 0x100, v{vXL[0]}
    v_xor_b32 v{vXL[3]}, 0x180, v{vXL[0]}
    s_waitcnt lgkmcnt(0)''')
    srd(g,32,4,2097152)
    def xops(gi):
        def mk(j):
            def op():
                if j==0: g(f's_mov_b32 s58, {gi*524288}')
                r=RAW+32*gi+4*j
                g.vmem(f'buffer_load_dwordx4 v[{r}:{r+3}], v{vXL[j&3]}, s[32:35], s58 offen offset:{512*(j>>2)}',f'x{gi}')
            return op
        return [mk(j) for j in range(8)]
    DO=g.opt.get('dord','a')
    for gi in range(1 if DO in 'de' else 2):
        for op in xops(gi): op()
    if DO not in 'de': g('@@SPLIT@@')
    epoch_load(g)
    srd(g,36,10,524288); srd(g,16,12,524288); srd(g,40,28,4<<20,add=F_OFF)
    g(f'''s_lshl_b32 s46, s48, 3
    s_lshl_b32 s53, s49, 2
    s_add_u32 s46, s46, s53
    s_add_u32 s46, s46, {FU}
    v_xor_b32 v26, v26, v25
    v_lshlrev_b32 v26, 4, v26
    v_lshl_add_u32 v27, v24, 11, v26
    s_lshl_b32 s53, s3, 16
    s_lshl_b32 s54, s49, 10
    s_add_u32 s53, s53, s54
    v_add_u32 v{vBd[0]}, s53, v27
    v_xor_b32 v28, 64, v{vBd[0]}
    v_add_u32 v{vBd[1]}, {16384-1024}, v28
    v_add_u32 v{vBd[2]}, {2*(16384-1024)}, v{vBd[0]}
    v_add_u32 v{vBd[3]}, {3*(16384-1024)}, v28
    v_add_u32 v28, 0x40000, v{vBd[0]}
    v_cmp_gt_u32 vcc, 1024, v{vBd[0]}
    v_lshl_add_u32 v27, v24, 7, v26
    s_lshl_b32 s53, s3, 12
    v_cndmask_b32 v{vBr0}, v{vBd[0]}, v28, vcc
    v_add_u32 v{vWe}, s53, v27
    v_xor_b32 v{vWo}, 64, v{vWe}
    s_mul_i32 s55, s3, 24576
    s_add_u32 s55, s55, 65536
    s_lshl_b32 s53, s48, 1
    s_add_u32 s53, s53, s49
    s_lshl_b32 s53, s53, 11
    s_lshl_b32 s54, s51, 10
    s_add_u32 s53, s53, s54
    s_lshl_b32 s54, s50, 4
    s_add_u32 s53, s53, s54
    s_add_u32 s53, s53, {ST_OFF-F_OFF}
    v_lshl_add_u32 v{vSP}, v24, 5, s53
    s_lshl_b32 s53, s48, 1
    s_add_u32 s53, s53, s49
    s_lshl_b32 s53, s53, 9
    s_add_u32 s13, s53, {A0_REL}
    s_lshl_b32 s54, s3, 7
    s_add_u32 s53, s13, s54
    v_lshl_add_u32 v{vA0}, v24, 2, s53
    v_and_b32 v242, 3, v0
    v_lshl_add_u32 v{vA0}, v242, 5, v{vA0}''')
    def bops(st):
        slot=st&1
        def mk(i):
            def op():
                if i==0: g(f's_xor_b32 s57, s100, {st}\ns_lshl_b32 s57, s57, 7\ns_add_u32 m0, s55, {slot*8192}')
                if i==4: g(f's_add_u32 m0, s55, {slot*8192+4096}')
                if i<4: g.vmem(f'buffer_load_dwordx4 v{vBr0 if i==0 else vBd[i]}, s[36:39], s57 offen offset:{1024*i} lds',f'B{st}')
                else:   g.vmem(f'buffer_load_dwordx4 v{vBd[i-4]}, s[16:19], s57 offen offset:{1024*(i-4)} lds',f'B{st}')
            return op
        return [mk(i) for i in range(8)]
    if DO in 'de':
        for op in bops(0): op()
        g('@@SPLIT@@')
    g(f'''v_and_b32 v24, 31, v0
    v_lshrrev_b32 v25, 5, v0
    v_bfe_u32 v26, v0, 1, 3
    v_xor_b32 v26, v26, v25
    v_lshlrev_b32 v27, 7, v24''')
    for kk in range(4):
        g(f'''v_xor_b32 v28, {2*kk}, v26
        v_lshl_add_u32 v{vFA[kk]}, v28, 4, v27
        v_add_u32 v{vFB[kk]}, s55, v{vFA[kk]}''')
    g(f'''v_cvt_f32_u32 v26, v24
    v_mul_f32 v26, {f2u(1/32):#x}, v26
    v_cvt_f32_u32 v27, v25
    v_mul_f32 v27, 4.0, v27
    v_mul_f32 v27, v27, v26
    v_mul_f32 v28, {f2u(5.0):#x}, v26''')
    for j in range(2):
        for i2 in range(4):
            for e in range(2):
                i=2*i2+e
                if not (j==0 and i==0):
                    g(f'v_add_f32 v27, v27, v{28 if i%4==0 else 26}')
                g(f'v_fract_f32 v29, v27\nv_cos_f32 v{20+e}, v29\nv_sin_f32 v{22+e}, v29')
            g(f'v_cvt_pk_bf16_f32 v{CC[j]+i2}, v20, v21\nv_cvt_pk_bf16_f32 v{SS[j]+i2}, v22, v23\nv_xor_b32 v{NS[j]+i2}, 0x80008000, v{SS[j]+i2}')
    early,addr,trig=p2_setup_ops(g,True)
    TM={0:20,1:21,2:22,3:23,4:24,5:25,6:26,7:27,8:28,9:29,10:30,12:2,13:3,14:8,15:9,16:31,17:57,18:240,19:241,20:242,21:243,22:244,23:245}
    early,addr,trig=[remap(x,TM) for x in (early,addr,trig)]
    PRO=g.opt.get('dpro',0)
    if PRO:
        for x in early+addr: g(x)
    g(f'''s_mov_b32 s59, 0x3f803f80
    s_movk_i32 s60, 0x3f80
    s_mov_b32 s61, 0x3f800000
    s_lshl_b32 s53, s49, 15
    s_or_b32 s62, s60, s53
    s_lshl_b32 s63, s62, 16
    s_cmp_eq_u32 s49, 0
    s_cselect_b32 s101, 2.0, 0
    s_waitcnt lgkmcnt(0)''')
    nonce(g)
    eps=f'{f2u(1e-5):#x}'
    chainq=[]
    def ch(n=1):
        for _ in range(n):
            if chainq: chainq.pop(0)()
    def stats(gi):
        R=RAW+32*gi; S=[224,228][gi&1]
        g.wait(f'x{gi}')
        if gi==0: g.stamp()
        for i in range(32):
            if i<2: g(f'v_dot2_f32_bf16 v{S+i}, v{R+i}, s59, 0\nv_dot2_f32_bf16 v{S+2+i}, v{R+i}, v{R+i}, 0')
            else:   g(f'v_dot2c_f32_bf16 v{S+(i&1)}, s59, v{R+i}\nv_dot2c_f32_bf16 v{S+2+(i&1)}, v{R+i}, v{R+i}')
            if i%4==3: g.side()
            if i>=2: ch(2)
        while chainq: ch()
        o=232+4*(gi&1); r1=RC[gi]; a,b,c,d=20,21,22,23
        lines=f'''v_add_f32 v{S}, v{S}, v{S+1}
        v_add_f32 v{S+2}, v{S+2}, v{S+3}
        v_add_f32_dpp v{S}, v{S}, v{S} quad_perm:[1,0,3,2] row_mask:0xf bank_mask:0xf
        v_add_f32_dpp v{S+2}, v{S+2}, v{S+2} quad_perm:[1,0,3,2] row_mask:0xf bank_mask:0xf
        v_add_f32_dpp v{S}, v{S}, v{S} quad_perm:[2,3,0,1] row_mask:0xf bank_mask:0xf
        v_add_f32_dpp v{S+2}, v{S+2}, v{S+2} quad_perm:[2,3,0,1] row_mask:0xf bank_mask:0xf
        v_add_f32_dpp v{S}, v{S}, v{S} row_half_mirror row_mask:0xf bank_mask:0xf
        v_add_f32_dpp v{S+2}, v{S+2}, v{S+2} row_half_mirror row_mask:0xf bank_mask:0xf
        v_mul_f32 v{a}, {f2u(-1/512):#x}, v{S}
        v_mul_f32 v{b}, {f2u(1/512):#x}, v{S+2}
        v_fma_f32 v{b}, -v{a}, v{a}, v{b}
        v_cvt_pk_bf16_f32 v{d}, v{a}, v{a}
        v_max_f32 v{b}, 0, v{b}
        v_lshlrev_b32 v{d}, 16, v{d}
        v_cvt_pk_bf16_f32 v{c}, 0, v{b}
        v_sub_f32 v{d}, v{a}, v{d}
        v_add_f32 v{c}, {eps}, v{c}
        v_cvt_pk_bf16_f32 v{o}, v{a}, v{d}
        v_cvt_pk_bf16_f32 v{c}, 0, v{c}
        v_mul_f32 v{r1+1}, s101, v{a}
        v_sqrt_f32 v{c}, v{c}
        v_mov_b32 v{o+3}, s47
        v_cvt_pk_bf16_f32 v{c}, 0, v{c}
        v_rcp_f32 v{r1}, v{c}
        v_mul_f32 v{d}, {f2u(-512.0):#x}, v{d}
        v_mul_f32 v{b}, v{b}, v{r1}
        v_mul_f32 v{241 if gi else 240}, v{d}, v{r1}
        v_mul_f32 v{b}, v{b}, v{r1}
        v_cvt_pk_bf16_f32 v{b}, 0, v{b}
        v_add_f32 v{b}, {eps}, v{b}
        v_cvt_pk_bf16_f32 v{b}, 0, v{b}
        v_sqrt_f32 v{b}, v{b}
        v_cvt_pk_bf16_f32 v{b}, 0, v{b}
        v_mul_f32 v{o+2}, v{b}, v{c}
        v_cvt_pk_bf16_f32 v{b}, 0, v{o+2}
        v_sub_f32 v{b}, v{o+2}, v{b}
        v_cvt_pk_bf16_f32 v{o+1}, v{o+2}, v{b}'''.split('\n')
        for ln in lines: chainq.append(lambda ln=ln: g(ln))
        chainq.append(lambda: g.vmem(f'buffer_store_dwordx4 v[{o}:{o+3}], v{vSP}, s[40:43], 0 offen offset:{256*gi} sc1','sp'))
        if gi: chainq.append(lambda: g(f'v_cmp_eq_u32 vcc, {gi}, v242\ns_nop 1\nv_cndmask_b32 v240, v240, v241, vcc'))
        if gi==3: chainq.append(lambda: g.vmem(f'buffer_store_dword v240, v{vA0}, s[40:43], 0 offen sc1','a0'))
    def bfly(gi):
        R=RAW+32*gi; r1=RC[gi]
        for j in range(4):
            o=[24,28][j&1]; T=[40,48][j&1]
            for i in range(4):
                a_=R+4*j+i; t=T+2*i
                g(f'v_dot2_f32_bf16 v{t}, v{a_}, s60, v{r1+1}\nv_dot2_f32_bf16 v{t+1}, v{a_}, s61, v{r1+1}'); ch()
            g.side()
            for i in range(4):
                b_=R+4*(j+4)+i; t=T+2*i
                g(f'v_dot2c_f32_bf16 v{t}, s62, v{b_}\nv_dot2c_f32_bf16 v{t+1}, s63, v{b_}'); ch()
            ch(2)
            for i in range(4):
                t=T+2*i
                g(f'v_pk_mul_f32 v[{t}:{t+1}], v[{t}:{t+1}], v[{r1}:{r1+1}] op_sel_hi:[1,0]')
            g.side()
            for i in range(4):
                t=T+2*i
                g(f'v_cvt_pk_bf16_f32 v{o+i}, v{t}, v{t+1}')
            g(f'ds_write_b128 v{vWo if gi&1 else vWe}, v[{o}:{o+3}] offset:{16384*j+1024*gi}')
        while chainq: ch()
    W0=16384
    LATEW=g.opt.get('latew',0)
    wl={0:W0,1:W0+4096,2:W0,3:W0+4096,4:W0,5:W0+4096,6:W0,7:W0+4096,8:0,9:4096,10:W0,11:W0+4096,12:8192,13:8192+4096}
    if LATEW: wl={0:W0,1:W0+4096,2:W0,3:W0+4096,4:W0,5:W0+4096,6:0,7:4096,8:W0,9:W0+4096,10:8192,11:8192+4096,12:0,13:4096}
    wd=lambda pr: w2_pair_ops(g,pr,'s55',wl[pr])
    order=g.opt.get('dord','a')
    plan={'a':[[],xops(2),xops(3),bops(0),bops(1),[],'w',[]],
          'b':[xops(2),xops(3),bops(0),bops(1),[],[],'w',[]],
          'c':[[],xops(2)+xops(3),bops(0),bops(1),[],'w',[],[]],
          'd':[xops(2),xops(3),[],bops(1),[],[],'w',[]],
          'e':[[],xops(2),xops(3),bops(1),[],[],'w',[]]}[order]
    if order in 'de':
        for op in xops(1): op()
    seq=((stats,0),(stats,1),(bfly,0),(stats,2),(bfly,1),(stats,3),(bfly,2),(bfly,3))
    if g.opt.get('sfirst'):
        seq=((stats,0),(stats,1),(stats,2),(stats,3),(bfly,0),(bfly,1),(bfly,2),(bfly,3))
        plan=[xops(2),xops(3),bops(0),[],bops(1),[],'w',[]] if order not in 'de' else [xops(2),xops(3),[],bops(1),[],[],'w',[]]
    for k,(fn,gi) in enumerate(seq):
        if plan[k]=='w':
            if not LATEW:
                if not PRO:
                    for x in early: g(x)
                g.sideq+=wd(0)+wd(1)
        else: g.sideq+=plan[k]
        if fn is stats:
            while any(1 for op in plan[max(k-2,0)] if False): pass
        fn(gi); g.stamp('dst')
        if order=='c' and k==1: g.flush_side()
    g.flush_side()
    g('s_waitcnt lgkmcnt(0)\ns_barrier')
    g.stamp(); g.stamp('dst')
    ACC=64
    def fr(s_):
        b=[32,216][s_]
        return dict(A=[b,b+4,b+8,b+12],B=[b+16,b+20])
    def rd(n):
        st,kk=n>>2,n&3; f=fr(n&1)
        bb=lambda ab: f'ds_read_b128 v[{f["B"][ab]}:{f["B"][ab]+3}], v{vFB[kk]} offset:{(st&1)*8192+4096*ab}'
        aa=lambda ti: f'ds_read_b128 v[{f["A"][ti]}:{f["A"][ti]+3}], v{vFA[kk]} offset:{st*16384+4096*ti}'
        return [aa(0),bb(0),bb(1),aa(1),aa(2),aa(3)]
    g.wait('B0')
    for x in rd(0): g(x)
    vTB=[18,19]
    nT=[i for i,x in enumerate(addr) if f'v_add_u32 v{vT[3]}' in x][0]+1
    pre=([] if PRO else addr[8:nT])+['s_sub_u32 s0, s55, s69',f'v_add_u32 v18, s0, v{vT[0]}',f'v_add_u32 v19, s0, v{vT[1]}']
    if not LATEW:
        for x in pre: g(x)
    if not g.opt.get('trigp2',1):
        trig=trig_ops(0,{1:20,2:21,3:22,5:23,6:30,7:31,9:57,12:2,13:3,14:8,15:9,16:240,17:241,18:242,19:243,20:24,21:25,22:26,23:27})
    g.miscq=([] if PRO else addr[:8]+addr[nT:])+trig
    if PRO: early=[]
    TRS={0:0,1:1,5:2,6:3,9:4,10:5,13:6,14:7}
    DMS={1:[2],2:[3],6:[4],7:[5],10:[6],11:[7,8],12:[9],14:[10],15:[11]}
    if LATEW:
        TRS={4:0,5:1,8:2,9:3,11:4,12:5,14:6,15:7}
        DMS={1:[0,1],5:[2],6:[3],9:[4],10:[5],11:[6,7],12:[8],13:[9]}
        g.miscq=early+pre+g.miscq
    for n in range(16):
        f=fr(n&1)
        def mf(ti,ab):
            d=ACC+32*ti+16*ab
            g(f'{MF} v[{d}:{d+15}], v[{f["A"][ti]}:{f["A"][ti]+3}], v[{f["B"][ab]}:{f["B"][ab]+3}], '+(f'v[{d}:{d+15}]' if n else '0'))
        nx=rd(n+1) if n<15 else []
        if n%2==0: g.stamp('dm')
        g('s_waitcnt lgkmcnt(0)'); mf(0,0)
        if n==3: g.sideq+=bops(2)
        if n==7: g.sideq+=bops(3)
        if LATEW and n==1:
            while any(x in g.miscq for x in early): misc(g,1)
        if LATEW and n==4:
            while any(x in g.miscq for x in pre): misc(g,1)
        if n==8:
            assert 'a0' not in g.vm
            while len(g.miscq)>len(trig): misc(g,1)
            g('s_barrier')
            g.miscq+=[f'v_and_b32 v2, 3, v0',f'v_lshrrev_b32 v3, 5, v0',f'v_lshlrev_b32 v3, 4, v3',f'v_lshl_add_u32 v2, v2, 7, v3',f'v_add_u32 v2, s13, v2',
                      f'v_and_b32 v3, 28, v0',f'v_cmp_eq_u32 vcc, 0, v3',f'v_mov_b32 v3, {OOB}','s_nop 0',f'v_cndmask_b32 v2, v3, v2, vcc']
        if n==9:
            misc(g,9999)
            g.sideq+=[(lambda q=q: g.vmem(f'buffer_load_dwordx4 v[{[20,24,28,240][q]}:{[20,24,28,240][q]+3}], v2, s[40:43], 0 offen offset:{32*q} sc1','al')) for q in range(4)]
        if n==15:
            g.wait('al')
            g.miscq+=[f'v_cvt_pk_bf16_f32 v{20+i}, v{20+2*i}, v{21+2*i}' for i in range(4)]+[f'v_cvt_pk_bf16_f32 v28, v28, v29','v_cvt_pk_bf16_f32 v29, v30, v31','v_cvt_pk_bf16_f32 v30, v240, v241','v_cvt_pk_bf16_f32 v31, v242, v243']
        for pr in DMS.get(n,[]): g.sideq+=wd(pr)
        if (n+1)%4==0 and n<15: g.wait(f'B{(n+1)>>2}')
        for x in nx[:3]: g(x)
        mf(0,1)
        for x in nx[3:]: g(x)
        mf(1,0)
        trq=[]
        if n in TRS:
            assert not any(True for op in g.sideq if getattr(op,'pr',None)==TRS[n])
            g.wait(f'w{TRS[n]}'); trq=w2_trl(TRS[n],vTB,wl[TRS[n]])
        for k,(ti,ab) in enumerate(((1,1),(2,0),(2,1),(3,0),(3,1))):
            if trq and k>=3:
                for x in trq[:4]: g(x)
                trq=trq[4:]
            else:
                had=bool(g.sideq); g.side(); misc(g,2 if had else 4)
            mf(ti,ab)
        had=bool(g.sideq); g.side(); misc(g,2 if had else 4)
    g.stamp(); g.stamp('s1'); g.stamp('dm')
    if LATEW: g.flush_side(); g.sideq+=wd(10)+wd(11)+[lambda: g('s_waitcnt lgkmcnt(0)')]
    g.sideq+=wd(12)+wd(13)
    def trop(pr):
        def op():
            g.wait(f'w{pr}')
            for x in w2_trl(pr,vTB,wl[pr])[:4]: g(x)
        def op2():
            for x in w2_trl(pr,vTB,wl[pr])[4:]: g(x)
        return [op,op2]
    NJ=g.opt.get('nj',4)
    for pr in range(8,min(12,14-NJ)): g.sideq+=trop(pr)
    g.sideq+=[lambda: [misc(g,1) for _ in range(len(g.miscq)-len(trig))]]
    def zc(ti):
        Z=[32,216][ti&1]; L=[]
        for ab in range(2):
            d=ACC+32*ti+16*ab
            for i in range(8): L.append(f'v_cvt_pk_bf16_f32 v{Z+8*ab+i}, v{d+2*i}, v{d+2*i+1}')
        return L
    for x in zc(0): g(x)
    for ti in range(4):
        Z=[32,216][ti&1]
        za=[Z,Z+4]; zb=[Z+8,Z+12]; ur=ACC+32*ti; ui=ur+16
        nxt=zc(ti+1) if ti<3 else []
        seq=[(ur,CC[0],za[0],1),(ui,CC[0],zb[0],1),(ur,CC[1],za[1],0),(ui,CC[1],zb[1],0),(ur,SS[0],zb[0],0),(ui,NS[0],za[0],0),(ur,SS[1],zb[1],0),(ui,NS[1],za[1],0)]
        for n,(d,am,bm,first) in enumerate(seq):
            g(f'{MF} v[{d}:{d+15}], v[{am}:{am+3}], v[{bm}:{bm+3}], '+('0' if first else f'v[{d}:{d+15}]'))
            for x in nxt[2*n:2*n+2]: g(x)
            had=bool(g.sideq); g.side(); misc(g,(0 if had else 2)+(0 if nxt else 2))
    g.stamp('s1')
    g.flush_side(); misc(g,9999)
    g.stamp('s1')
    for op in xb2_ops(g): op()
    for pr in (12,13):
        if pr<14-NJ:
            for op in trop(pr): op()
    for k in range(NJ//2): g(f'v_add_u32 v{vJ[k][0]}, {wl[12-2*k]}, v{vTB[0]}\nv_add_u32 v{vJ[k][1]}, {wl[12-2*k]}, v{vTB[1]}')
    g.stamp('s1')
    srd(g,36,28,4<<20,add=U_OFF)
    g(f'''v_and_b32 v24, 31, v0
    v_lshrrev_b32 v25, 5, v0
    v_lshlrev_b32 v24, 4, v24
    v_lshl_add_u32 v24, v25, 18, v24
    s_lshl_b32 s53, s3, 9
    v_add_u32 v24, s53, v24
    s_lshl_b32 s53, s48, 1
    s_add_u32 s53, s53, s49
    s_lshl_b32 s53, s53, 11''')
    for r in range(16):
        o=32+4*(r&3)
        for ti in range(4): g(f'v_cvt_pk_bf16_f32 v{o+ti}, v{ACC+32*ti+r}, v{ACC+32*ti+16+r}')
        g(f's_add_u32 s54, s53, {(8*(r>>2)+(r&3))*65536}')
        g.vmem(f'buffer_store_dwordx4 v[{o}:{o+3}], v24, s[36:39], s54 offen sc1','st')
        if r<4:
            d,am,bm,first=((224,20,CC[0],1),(240,20,NS[0],1),(224,28,CC[1],0),(240,28,NS[1],0))[r]
            g(f'{MF} a[{d}:{d+15}], v[{am}:{am+3}], v[{bm}:{bm+3}], '+('0' if first else f'a[{d}:{d+15}]'))
        if r==6:
            for i in range(4): g(f'v_accvgpr_read_b32 v{48+2*i}, a{224+i}\nv_accvgpr_read_b32 v{49+2*i}, a{240+i}')
            g(f'''s_lshl_b32 s0, s48, 12
            s_add_u32 s0, s0, 0x200000
            s_lshl_b32 s1, s49, 2
            s_add_u32 s1, s1, s3
            s_cmp_eq_u32 s1, 1
            s_cselect_b32 s0, s0, {OOB}
            v_lshl_add_u32 v2, v0, 4, s0
            v_mov_b32 v3, {OOB}
            v_cmp_gt_u32 vcc, 32, v0''')
            for i in range(4): g(f'v_cvt_pk_bf16_f32 v{28+i}, v{48+2*i}, v{49+2*i}')
            g('v_cndmask_b32 v2, v3, v2, vcc')
            g.vmem('buffer_store_dwordx4 v[28:31], v2, s[36:39], 0 offen sc1','st')
    g.stamp(); g.stamp('s1')
    g('v_mov_b32 v2, s47')
    g.vmem(f'buffer_load_dword v3, v{vPL}, s[40:43], 0 offen sc1','poll')
    def sig():
        g.wait('poll')
        g.stamp('s1')
        g('s_waitcnt lgkmcnt(0)\ns_barrier')
        if not g.opt.get('dlate',0): g(f'buffer_store_dword v2, v{vSG}, s[40:43], 0 offen sc1')
    if g.opt.get('dsig',1): g.dsig=sig
    else: sig()
    g('s_lshl_b32 s53, s3, 12')
    for d in (1,2,3): g(f's_add_u32 s{5+d}, s53, {(d-1)*16384}\ns_xor_b32 s{8+d}, s{5+d}, {d*4096}')
    g('s_lshr_b32 s12, s53, 1\ns_add_u32 s12, s12, 49152')

def p2(g, role):
    M=(role=='m') and g.opt.get('merge',0)
    X=role
    ACC=64; ACS=128; UF=144
    XS=32768+4096
    HR=[16+8*i for i in range(5)]+[192+8*i for i in range(5)]
    NH=len(HR)
    g.stamp(); g.stamp('tail')
    srd(g,36,28,7340032); srd(g,32,28,4<<20,add=U_OFF); srd(g,72,24,2097152)
    g(f'''s_sub_u32 s62, 32, s71
    s_and_b32 s62, s62, 31
    s_cmp_lt_u32 s70, 4
    s_cselect_b32 s62, s71, s62
    s_lshl_b32 s62, s62, 16
    v_mov_b32 v185, 0
    v_mov_b32 v186, 0
    v_mov_b32 v187, 0
    v_mov_b32 v188, 0x3f80
    v_cmp_gt_u32 vcc, 32, v0
    v_mov_b32 v189, 0
    v_mov_b32 v190, 0
    v_cndmask_b32 v188, 0, v188, vcc
    v_mov_b32 v191, 0
    s_mul_i32 s57, s71, 112
    s_mul_i32 s53, s3, 28
    s_add_u32 s57, s57, s53
    s_lshl_b32 s57, s57, 11
    s_add_u32 s59, s57, {28*2048}
    s_lshl_b32 s53, s44, 12
    s_add_u32 s58, s57, s53
    v_mov_b32 v2, s47
    s_mov_b32 s56, {SPIN}''')
    for d in (1,2,3):
        g(f'v_lshl_add_u32 v{9+d}, v0, 4, s{5+d}')
    g(f'v_mov_b32 v9, v{vFL}')
    if M:
        NW=g.nw; ops=[]
        for pr in range(NW,8): ops+=w2_pair_ops(g,pr)
        t01=w2_trl(0)+w2_trl(1)
        for n,op in enumerate(ops):
            op()
            if n==3: g.wait('w1')
            if n>=3 and t01:
                for x in t01[:2]: g(x)
                del t01[:2]
        for x in t01: g(x)
        g.vmem(f'buffer_load_dword v3, v{vPL}, s[40:43], 0 offen sc1','poll')
        for pr in (8,9):
            for op in w2_pair_ops(g,pr): op()
        g.wait('poll')
    if role=='d' and g.opt.get('dsig',1): g.dsig()
    if role=='m' and not M: g(f'L_poll:\nbuffer_load_dword v3, v{vPL}, s[40:43], 0 offen sc1\nv_mov_b32 v184, v{vB2}\ns_waitcnt vmcnt(0)')
    else: g(f'v_mov_b32 v184, v{vB2}\nL_poll:')
    g('v_cmp_ne_u32 vcc, s47, v3\ns_cbranch_vccnz L_pslow\nL_go:')
    ool(g,f'''L_pslow:
    s_sleep {g.opt.get('sleep',4)}
    '''+('' if (role=='m' and not M) else f'buffer_load_dword v3, v{vPL}, s[40:43], 0 offen sc1\ns_waitcnt vmcnt(0)\n')+'''s_sub_u32 s56, s56, 1
    s_cbranch_scc0 L_poll
    s_branch L_go''')
    if not M: g.vm=['old']*30
    g.stamp(); g.stamp('tail')
    hidx=[0]
    def hload():
        ks=hidx[0]; r=HR[ks%NH]
        g.vmem(f'buffer_load_dwordx4 v[{r}:{r+3}], v{vH0}, s[36:39], s58 offen offset:{2048*(ks&1)} {g.opt.get("hld","sc1").replace("none","")}',f'h{ks}')
        g.vmem(f'buffer_load_dwordx4 v[{r+4}:{r+7}], v{vH1}, s[36:39], s58 offen offset:{2048*(ks&1)} {g.opt.get("hld","sc1").replace("none","")}',f'h{ks}')
        if ks&1 and ks<27: g('s_add_u32 s58, s58, 4096\ns_cmp_eq_u32 s58, s59\ns_cselect_b32 s58, s57, s58')
        hidx[0]+=1
    HD=g.opt.get('hdepth',8)
    g(f's_waitcnt lgkmcnt(0)\ns_mov_b32 s55, 0x80000')
    for i in range(HD):
        hload()
        if role=='d' and g.opt.get('dlate',0) and i==g.opt.get('dlate',0)*4-1: g.vmem(f'buffer_store_dword v2, v{vSG}, s[40:43], 0 offen sc1','sig')
    g(f'{MF} v[{ACC}:{ACC+15}], v[184:187], v[188:191], 0')
    XA=[236,237,238,239]
    xa=Rec()
    xa(f'''v_and_b32 v236, 31, v0
    v_lshrrev_b32 v237, 5, v0
    v_lshlrev_b32 v237, 3, v237
    v_lshl_add_u32 v237, v236, 6, v237
    v_bfe_u32 v236, v0, 2, 2
    v_lshl_add_u32 v236, v236, 4, v237
    v_add_u32 v236, s12, v236
    v_xor_b32 v237, 16, v236
    v_xor_b32 v238, 32, v236
    v_xor_b32 v239, 48, v236
    v_lshl_add_u32 v240, v0, 4, s12''')
    KF=g.opt.get('kflag',12)
    NL=g.opt.get('nlast',3)
    def mf(ks,a_,b):
        r=HR[ks%NH]; d=ACC+16*(a_+2*b)
        c='0' if (ks==0 and (a_ or b)) else f'v[{d}:{d+15}]'
        g(f'{MF} v[{d}:{d+15}], a[{8*ks+4*a_}:{8*ks+4*a_+3}], v[{r+4*b}:{r+4*b+3}], {c}')
    checked=False
    NJ=g.opt.get('nj',4)
    jit=[x for pr in range(14-NJ,14) for x in w2_trl(pr,vJ[(13-pr)>>1],4096*(pr&1))]
    late=[]
    if M:
        jit=[x for pr in range(2,14) for x in w2_trl(pr)]
        for pr in range(10,14): late+=w2_pair_ops(g,pr)
    g.miscq=xa.l+(trig_ops(0) if g.opt.get('trigp2',1) else [])
    for ks in range(28-NL):
        g.wait(f'h{ks}')
        if NJ and ks==16 and not M: g('s_waitcnt lgkmcnt(0)')
        if M and ks>=4 and ks%2==0: g('s_waitcnt lgkmcnt(8)')
        if M and ks>=16 and ks%2==0 and ks<=22: g.wait(f'w{ks//2+2}')
        if ks==0:
            g.stamp()
        for b in range(2):
            for a_ in range(2):
                mf(ks,a_,b)
                if a_==0 and b==0 and (ks>=1 or M) and jit:
                    for x in jit[:4]: g(x)
                    del jit[:4]
                elif a_==1 and b==0 and late:
                    late.pop(0)(); late.pop(0)()
                elif not (a_==1 and b==1): misc(g,g.opt.get('p2misc',6 if M else 4))
            if b==0 and g.sideq: g.side()
        if hidx[0]<28: hload()
        elif g.sideq: g.side()
        if ks==(10 if M else 2):
            g('s_mov_b32 m0, s12')
            g.vmem(f'buffer_load_dwordx4 v{vXO}, s[76:79], 0 offen lds','xl')
            g('s_add_u32 m0, m0, 1024')
            g.vmem(f'buffer_load_dwordx4 v{vXO}, s[76:79], s55 offen lds','xl')
        if ks==(24 if M else 22):
            assert 'xl' not in g.vm
            for q in range(4): g(f'ds_read_b64 v[{XR+2*q}:{XR+2*q+1}], v{XA[q]}')
        if ks==KF: g.vmem(f'buffer_load_dword v176, v9, s[40:43], 0 offen sc1','fl')
        if 'fl' not in g.vm and ks>KF and not checked:
            checked=True
            g(f'''L_chk:
            v_cmp_ne_u32 vcc, s47, v176
            s_cbranch_vccnz L_uslow
            L_allset:''')
            ool(g,'''L_uslow:
            s_sleep 8
            buffer_load_dword v176, v9, s[40:43], 0 offen sc1
            s_waitcnt vmcnt(0)
            s_sub_u32 s56, s56, 1
            s_cbranch_scc0 L_chk
            s_branch L_allset''')
            def mku(j):
                def op():
                    g(f's_add_u32 s53, s62, {8192*j}')
                    g.vmem(f'buffer_load_dwordx4 v[{UF+4*j}:{UF+4*j+3}], v{vU}, s[32:35], s53 offen sc1','u')
                return op
            g.sideq+=[mku(j) for j in range(8)]
    assert checked
    if g.miscq: print('p2',role,'misc left',len(g.miscq),file=sys.stderr)
    misc(g,9999)
    g.flush_side()
    if M: g('s_waitcnt lgkmcnt(4)')
    XF=176
    def wr(d):
        for q in range(4):
            r=ACC+16*d+4*q
            g(f'ds_write_b128 v{9+d}, v[{r}:{r+3}] offset:{1024*q}')
    assert NL==3
    wl_=lambda d: [f'ds_write_b128 v{9+d}, v[{ACC+16*d+4*q}:{ACC+16*d+4*q+3}] offset:{1024*q}' for q in range(4)]
    unp=[x for i in range(8) for x in (f'v_lshlrev_b32 v{XF+2*i}, 16, v{XR+i}',f'v_and_b32 v{XF+2*i+1}, s63, v{XR+i}')]
    fill={3:[['s_mov_b32 s63, 0xffff0000'],[],['s_waitcnt lgkmcnt(0)']+unp[:3]],
          2:[unp[3:8],unp[8:12],unp[12:16]],
          1:[wl_(3)[:2],wl_(3)[2:],[f's_mov_b32 s60, {f2u(-math.log2(math.e)):#x}','s_mov_b32 s61, s60','s_mov_b32 s62, 1.0','s_mov_b32 s63, 1.0']],
          0:[[],wl_(2)[:2],wl_(2)[2:]]}
    for d in (3,2,1,0):
        for n,ks in enumerate(range(25,28)):
            g.wait(f'h{ks}')
            mf(ks,d&1,d>>1)
            for x in fill[d][n]: g(x)
    g.stamp()
    def smm(j): g(f'{MF} v[{ACS}:{ACS+15}], v[{UF+4*j}:{UF+4*j+3}], a[{224+4*j}:{227+4*j}], '+('0' if j==0 else f'v[{ACS}:{ACS+15}]'))
    g.waitall()
    smm(0)
    for x in wl_(1)[:2]: g(x)
    smm(1)
    for x in wl_(1)[2:]: g(x)
    SB=g.opt.get('sbar',3)
    for j in range(2,SB): smm(j)
    for d in (1,2,3): g(f'v_lshl_add_u32 v{9+d}, v0, 4, s{8+d}')
    g('s_waitcnt lgkmcnt(0)\ns_barrier')
    rds=[f'ds_read_b128 v[{[192,208,16][d]+4*q}:{[192,208,16][d]+4*q+3}], v{10+d} offset:{1024*q}' for q in range(4) for d in range(3)]
    for j in range(max(SB,2),8):
        smm(j)
        for x in rds[:4]: g(x)
        del rds[:4]
    for x in rds: g(x)
    if role=='m':
        g('s_lshl_b32 s1, s2, 2\ns_add_u32 s1, s1, s3\ns_cmp_eq_u32 s1, 803\ns_cbranch_scc1 L_ep0\nL_noep0:')
        ool(g,'''L_ep0:
        v_lshrrev_b32 v4, 2, v0
        v_and_b32 v5, 3, v0
        v_lshl_add_u32 v4, v4, 3, v5
        v_lshlrev_b32 v4, 8, v4
        buffer_load_dwordx4 v[6:9], v4, s[40:43], 0 offen sc1
        s_branch L_noep0''')
    T=80
    for hf in range(2):
        g(f's_waitcnt lgkmcnt({6-4*hf})')
        I=range(4*hf,4*hf+4)
        for i in I: g(f'v_pk_add_f32 v[{192+2*i}:{193+2*i}], v[{192+2*i}:{193+2*i}], v[{208+2*i}:{209+2*i}]')
        for i in I: g(f'v_pk_add_f32 v[{ACC+2*i}:{ACC+2*i+1}], v[{ACC+2*i}:{ACC+2*i+1}], v[{16+2*i}:{17+2*i}]')
        for i in I: g(f'v_pk_add_f32 v[{ACC+2*i}:{ACC+2*i+1}], v[{ACC+2*i}:{ACC+2*i+1}], v[{192+2*i}:{193+2*i}]')
        for i in I: g(f'v_pk_mul_f32 v[{T+2*i}:{T+2*i+1}], v[{ACC+2*i}:{ACC+2*i+1}], s[60:61]')
        for i in I: g(f'v_exp_f32 v{T+2*i}, v{T+2*i}\nv_exp_f32 v{T+2*i+1}, v{T+2*i+1}')
        for i in I: g(f'v_pk_add_f32 v[{T+2*i}:{T+2*i+1}], v[{T+2*i}:{T+2*i+1}], s[62:63]')
        for i in I: g(f'v_rcp_f32 v{T+2*i}, v{T+2*i}\nv_rcp_f32 v{T+2*i+1}, v{T+2*i+1}')
        sp=lambda r: ACS+4*(2*(r>>3)+(r&1))+2*((r>>2)&1)+((r>>1)&1)
        for i in I:
            for r in (2*i,2*i+1): g(f'v_mul_f32 v{ACC+r}, v{ACC+r}, v{sp(r)}')
        for i in I: g(f'v_pk_fma_f32 v[{T+2*i}:{T+2*i+1}], v[{T+2*i}:{T+2*i+1}], v[{ACC+2*i}:{ACC+2*i+1}], v[{XF+2*i}:{XF+2*i+1}]')
        for i in I: g(f'v_cvt_pk_bf16_f32 v{96+i}, v{T+2*i}, v{T+2*i+1}')
        for q in (2*hf,2*hf+1): g(f'ds_write_b64 v{XA[q]}, v[{96+2*q}:{97+2*q}]')
    g('s_waitcnt lgkmcnt(0)\nds_read_b128 v[104:107], v240\nds_read_b128 v[108:111], v240 offset:1024\ns_waitcnt lgkmcnt(1)')
    g(f'buffer_store_dwordx4 v[104:107], v{vXO}, s[72:75], 0 offen {g.opt.get("outfl","")}\ns_waitcnt lgkmcnt(0)\nbuffer_store_dwordx4 v[108:111], v{vXO}, s[72:75], s55 offen {g.opt.get("outfl","")}')
    if role=='m':
        g('s_cmp_eq_u32 s1, 803\ns_cbranch_scc1 L_ep1\nL_noep:')
        ool(g,f'''L_ep1:
        s_waitcnt vmcnt(2)
        L_ep:
        v_xor_b32 v6, s47, v6
        v_xor_b32 v7, s47, v7
        v_xor_b32 v8, s47, v8
        v_xor_b32 v9, s47, v9
        v_or3_b32 v6, v6, v7, v8
        v_or_b32 v6, v6, v9
        v_cmp_ne_u32 vcc, 0, v6
        s_cbranch_vccz L_epok
        s_sleep 8
        buffer_load_dwordx4 v[6:9], v4, s[40:43], 0 offen sc1
        s_waitcnt vmcnt(0)
        s_sub_u32 s56, s56, 1
        s_cbranch_scc0 L_ep
        L_epok:
        v_mov_b32 v3, {EPO}
        s_mov_b64 exec, 1
        buffer_store_dword v2, v3, s[40:43], 0 offen sc1
        s_mov_b64 exec, -1
        s_branch L_noep''')
    g.stamp()

DOC=""";
;   224 MLP workgroups: 128 rows x 128 hidden columns of gelu(LN(LN(x)) @ w1 + b1). The GEMM runs on raw x; both LayerNorms are
;     folded into one extra K-step (-mean * colsum(w1) + b1 / rstd) and a per-row scale. h goes to d_ws in MFMA fragment order.
;     butterfly + normalisation, half-size hidden DFT against the dft_hid tables, DFT-32 along the sequence (s = 64*s1 + s2) -> U.
;     Bins above 256 follow from the Hermitian symmetry; bin 0 is the residue left by the bf16-rounded mean.
; Hand-offs between workgroups: write-through stores, drained, then flag words / tagged granules holding a per-launch tag that is
; derived from an epoch word in d_ws (advanced once every workgroup has read it), so older launches' words never match.
"""
def build(stamps=False, opt=None):
    global vTm0,vTm1
    if (opt or {}).get('merge',0): vTm0,vTm1=241,242
    g=G(stamps,opt); g.miscq=[]; g.outofline=[]
    def sfx(L,x): return [re.sub(r'\b(L_go|L_poll|L_pslow|L_ep0|L_ep1|L_chk|L_uslow|L_allset|L_noep0|L_noep|L_epok|L_ep)\b', r'\1_'+x, l) for l in L]
    entry(g)
    head=list(g.a.l); vm0=list(g.vm); n0=g.nst
    g.a.l=[]; p1_mlp(g); mlp=list(g.a.l)
    oo=g.outofline; g.outofline=[]
    g.a.l=[]; p2(g,'m'); g.dump_stamps(TS_OFF); mlp+=sfx(g.a.l,'m')+['    s_endpgm']; oo+=sfx(g.outofline,'m'); g.outofline=[]
    g.a.l=[]; g.vm=list(vm0); g.nst=n0; g.miscq=[]
    p1_dft(g); dft=list(g.a.l)
    k=[i for i,x in enumerate(dft) if '@@SPLIT@@' in x][0]
    g.a.l=[]; p2(g,'d'); g.dump_stamps(TS_OFF); dft+=sfx(g.a.l,'d'); oo+=sfx(g.outofline,'d')
    km=[i for i,x in enumerate(mlp) if '@@SPLIT@@' in x][0]
    lines=head+mlp[:km]+['    s_branch L_mlp','L_dfte:']+dft[:k]+['    s_branch L_dft','L_mlp:']+mlp[km+1:]+['L_dft:']+dft[k+1:]+['L_end:','    s_endpgm']+oo+['L_codeend:']
    body='\n'.join(hazard.fix(lines))+'\n'
    txt=wrap([dict(name=KN,body=body,grid=256,block=256,lds=163840,vgpr=512,accum=256)],HDR)
    return txt.replace('.amdgcn_target',DOC+'.amdgcn_target',1)
if __name__=='__main__':
    out=sys.argv[1]; st='stamps' in sys.argv[2:]
    opt={}
    for a in sys.argv[2:]:
        if '=' in a:
            k,v=a.split('='); opt[k]=int(v) if v.lstrip('-').isdigit() else v
    open(out,'w').write(build(st,opt))
```

```python
import sys, math, struct, re
sys.path.insert(0,'tools')
from asmlib import A, wrap, KN
import hazard
from gen3 import G, srd, t1_of, f2u, HDR, U_OFF, ST_OFF, CS_REL, TS_OFF, SPIN

F_OFF = 12<<20
F2 = 8192
FU=32768; EPO=40960
A0_REL=(ST_OFF-F_OFF)+(512<<10)
WT_OFF = 14<<20
vB2, vXO = 254, 255
vD=[226+i for i in range(0)]
vDM=[246,247,248,249]
vT=[250,251,252,253]
XR=246
vSG,vH0,vH1,vU,vFL,vPL = 58,59,60,61,62,63
vTT=245
MF='v_mfma_f32_32x32x16_bf16'
OOB='0x40000000'

class Rec:
    def __init__(s): s.l=[]
    def __call__(s,t):
        for x in t.split('\n'):
            x=x.strip()
            if x: s.l.append(x)
def ool(g, text):
    g.outofline+=[x.strip() if x.strip().endswith(':') else '    '+x.strip() for x in text.split('\n') if x.strip()]
def misc(g, n):
    while n>0 and g.miscq:
        x=g.miscq.pop(0); g(x)
        n-= x.count('\n')+1 + (1 if ('v_cos' in x or 'v_sin' in x) else 0)
def epoch_load(g):
    g(f's_add_u32 s60, s28, {F_OFF+EPO}\ns_addc_u32 s61, s29, 0\ns_load_dword s47, s[60:61], 0')
def nonce(g):
    g('s_mul_i32 s47, s47, 0x9e3779b1\ns_add_u32 s47, s47, 0x85ebca6b')

def p2_setup_ops(g, dft):
    r=Rec(); t=lambda i:f'v{1000+i}'
    if g.opt.get('dmix',1):
        if dft: r('s_mul_i32 s31, s31, 9')
        else:
            for v in (1,2,3): r.l.append(f's_cmp_eq_u32 s31, {9*v}\ns_cselect_b32 s31, {v}, s31')
    if g.opt.get('p2arr',84)==48:
        r('''s_and_b32 s70, s31, 7
        s_lshr_b32 s0, s31, 4
        s_lshl_b32 s1, s30, 1
        s_add_u32 s45, s0, s1
        s_bfe_u32 s1, s31, 0x10003''')
    else:
        r('''s_and_b32 s70, s30, 1
        s_lshl_b32 s70, s70, 2
        s_lshr_b32 s0, s31, 2
        s_add_u32 s0, s0, s31
        s_and_b32 s0, s0, 3
        s_add_u32 s70, s70, s0
        s_lshr_b32 s45, s30, 1
        s_lshl_b32 s45, s45, 2
        s_lshr_b32 s0, s31, 3
        s_add_u32 s45, s45, s0
        s_bfe_u32 s1, s31, 0x10002''')
    r.l.append('s_sub_u32 s0, 32, s45\ns_cmp_eq_u32 s45, 0\ns_cselect_b32 s0, 16, s0\ns_cmp_eq_u32 s1, 0\ns_cselect_b32 s71, s45, s0')
    wr=g.opt.get('wrot',3)
    if wr==0: r('s_mov_b32 s44, 0')
    elif wr==1: r('s_mul_i32 s44, s30, 7\ns_lshr_b32 s44, s44, 2')
    elif wr==3: r('s_lshr_b32 s44, s31, 2\ns_mul_i32 s44, s44, 7\ns_lshr_b32 s44, s44, 2')
    elif wr==5: r('s_lshr_b32 s44, s31, 2\ns_max_u32 s44, s44, 1\ns_sub_u32 s44, s44, 1\ns_lshl_b32 s44, s44, 1')
    elif wr==4: r('s_lshr_b32 s44, s31, 3\ns_mul_i32 s44, s44, 7\ns_lshr_b32 s44, s44, 1')
    elif wr==2: r('s_lshr_b32 s44, s30, 1\ns_mul_i32 s44, s44, 7\ns_lshr_b32 s44, s44, 1')
    ho={0:None,1:(1,7),2:(1,4),3:(3,3),4:(3,1),5:(1,2)}[g.opt.get('hoff',0)]
    if ho:
        r.l.append(f's_and_b32 s0, s70, {ho[0]}\ns_mul_i32 s0, s0, {ho[1]}\ns_add_u32 s44, s44, s0\ns_cmp_ge_u32 s44, 14\ns_cselect_b32 s0, 14, 0\ns_sub_u32 s44, s44, s0'.replace('{ho[0]}',str(ho[0])) )
    r(f'''s_lshl_b32 s68, s44, 15
    s_lshl_b32 s69, s3, 13
    v_lshrrev_b32 {t(4)}, 3, v0
    v_bfe_u32 {t(5)}, v0, 4, 1
    v_lshlrev_b32 {t(6)}, 2, {t(5)}
    v_and_b32 {t(7)}, 7, v0
    v_xor_b32 {t(6)}, {t(6)}, {t(7)}
    v_lshlrev_b32 {t(6)}, 4, {t(6)}
    v_lshl_add_u32 {t(6)}, {t(4)}, 10, {t(6)}
    s_mul_i32 s0, s3, {448*1024}
    s_lshl_b32 s1, s70, 7
    s_add_u32 s0, s0, s1
    v_add_u32 v{vDM[0]}, s0, {t(6)}
    v_add_u32 v{vDM[1]}, {7168}, v{vDM[0]}
    v_add_u32 v{vDM[2]}, {2*7168}, v{vDM[0]}
    v_add_u32 v{vDM[3]}, {3*7168}, v{vDM[0]}''')
    srd(r,64,20,1792*512*2)
    early=r.l; r=Rec()
    srd(r,72,22,1024); srd(r,76,4,2097152)
    r(f'''v_lshrrev_b32 {t(4)}, 5, v0
    v_bfe_u32 {t(5)}, v0, 4, 1
    v_bfe_u32 {t(6)}, v0, 2, 2
    v_lshl_add_u32 {t(7)}, {t(4)}, 2, {t(6)}
    v_lshlrev_b32 {t(7)}, 7, {t(7)}
    v_lshrrev_b32 {t(6)}, 1, {t(6)}
    s_and_b32 s0, s3, 1
    v_xor_b32 {t(6)}, s0, {t(6)}
    v_lshl_add_u32 {t(7)}, {t(6)}, 6, {t(7)}
    v_lshl_add_u32 {t(7)}, {t(5)}, 5, {t(7)}
    v_and_b32 {t(6)}, 3, v0
    v_lshl_add_u32 {t(7)}, {t(6)}, 3, {t(7)}
    v_add_u32 v{vT[0]}, s69, {t(7)}
    v_xor_b32 v{vT[1]}, 64, v{vT[0]}
    v_add_u32 v{vT[2]}, 0x18000, v{vT[0]}
    v_add_u32 v{vT[3]}, 0x18000, v{vT[1]}
    s_and_b32 s0, s30, {g.opt.get('urep',2)-1}
    s_lshl_b32 s0, s0, 9
    s_add_u32 s0, s0, {FU}
    v_and_b32 {t(7)}, 31, v0
    v_lshl_add_u32 v{vFL}, {t(7)}, 2, s0
    s_lshl_b32 s0, s45, 1
    s_and_b32 s1, s30, {g.opt.get('hrep',2)-1}
    s_add_u32 s0, s0, s1
    s_lshl_b32 s0, s0, 2
    s_add_u32 s0, s0, s3
    s_lshl_b32 s0, s0, 8
    v_and_b32 {t(6)}, 3, v0
    v_lshl_add_u32 v{vPL}, {t(6)}, 2, s0
    s_lshr_b32 s1, s3, 1
    s_lshl_b32 s0, s1, 10
    v_lshl_add_u32 v{vH0}, v0, 4, s0
    v_xor_b32 v{vH1}, 0x400, v{vH0}
    s_lshl_b32 s0, s1, 5
    v_and_b32 {t(6)}, 31, v0
    v_add_u32 {t(5)}, s0, {t(6)}
    v_lshlrev_b32 {t(5)}, 5, {t(5)}
    v_add_u32 v{vTT}, s71, {t(5)}
    s_lshl_b32 s0, s0, 15
    s_lshl_b32 s1, s71, 10
    s_add_u32 s1, s1, s0
    v_lshrrev_b32 {t(5)}, 2, v0
    v_lshlrev_b32 {t(5)}, 15, {t(5)}
    v_lshrrev_b32 {t(7)}, 4, v0
    v_xor_b32 {t(7)}, {t(7)}, v0
    v_and_b32 {t(7)}, 3, {t(7)}
    v_lshl_add_u32 {t(5)}, {t(7)}, 4, {t(5)}
    v_add_u32 {t(5)}, s1, {t(5)}
    s_lshl_b32 s0, s70, 7
    s_and_b32 s1, s3, 1
    s_lshl_b32 s1, s1, 6
    s_add_u32 s0, s0, s1
    v_add_u32 v{vXO}, s0, {t(5)}
    v_lshl_add_u32 v{vB2}, {t(6)}, 1, s0
    s_lshr_b32 s0, s0, 1
    v_and_b32 {t(5)}, 20, v0
    v_bfe_u32 {t(7)}, v0, 1, 1
    v_lshl_add_u32 {t(5)}, {t(7)}, 3, {t(5)}
    v_and_b32 {t(7)}, 1, v0
    v_lshl_add_u32 {t(5)}, {t(7)}, 1, {t(5)}
    v_bfe_u32 {t(7)}, v0, 3, 1
    v_add3_u32 {t(6)}, {t(5)}, {t(7)}, s0''')
    r.l.append('s_cmp_lt_u32 s70, 4\ns_cselect_b32 s0, 0, -1\ns_cselect_b32 s1, 0, 513')
    r(f'''v_xor_b32 {t(7)}, s0, {t(6)}
    v_add_u32 {t(7)}, s1, {t(7)}
    v_and_b32 {t(8)}, 1, {t(7)}
    v_lshlrev_b32 {t(8)}, 11, {t(8)}
    v_bfe_u32 {t(7)}, {t(7)}, 1, 7
    v_lshl_add_u32 {t(7)}, {t(7)}, 4, {t(8)}
    v_lshl_add_u32 {t(7)}, {t(4)}, 12, {t(7)}
    s_mul_i32 s0, s71, 65520
    s_sub_u32 s0, 0x200000, s0
    v_add_u32 {t(8)}, s0, {t(7)}
    v_cmp_eq_u32 vcc, 0, {t(6)}
    s_nop 0
    v_cndmask_b32 v{vU}, {t(7)}, {t(8)}, vcc
    v_mov_b32 {t(8)}, {OOB}''')
    if True:
        r.l.append(f's_cmp_eq_u32 s3, 0\ns_cselect_b32 s0, s46, {OOB}')
        if dft:
            r(f'''v_cmp_gt_u32 vcc, {g.opt.get('urep',2)}, v0
            v_lshl_add_u32 {t(10)}, v0, 9, s0
            s_nop 0
            v_cndmask_b32 v{vSG}, {t(8)}, {t(10)}, vcc''')
        else:
            r(f'''v_lshrrev_b32 {t(5)}, 1, v0
            v_mul_u32_u24 {t(6)}, 7, {t(5)}
            v_lshrrev_b32 {t(6)}, 1, {t(6)}
            v_sub_u32 {t(6)}, s49, {t(6)}
            v_and_b32 {t(7)}, 1, v0
            v_lshl_add_u32 {t(7)}, {t(7)}, 2, {t(5)}
            v_cmp_gt_u32 vcc, 4, {t(6)}
            v_lshlrev_b32 {t(7)}, 8, {t(7)}
            v_lshl_add_u32 {t(7)}, {t(6)}, 2, {t(7)}
            v_add_u32 {t(10)}, s0, {t(7)}
            v_cndmask_b32 {t(10)}, {t(8)}, {t(10)}, vcc
            v_and_b32 {t(7)}, {0x38 if g.opt.get('hrep',2)==2 else 0x39}, v0
            v_cmp_eq_u32 vcc, 0, {t(7)}
            s_nop 1
            v_cndmask_b32 v{vSG}, {t(8)}, {t(10)}, vcc''')
    else: r(f'v_mov_b32 v{vSG}, {t(8)}')
    return early, r.l, []
def trig_ops(fract=True, TMX=None):
    r=Rec(); t=lambda i:f'v{1000+i}'
    r.l.append(f's_cmp_lt_u32 s70, 4\ns_cselect_b32 s0, 0, 0x80000000')
    r(f'''s_or_b32 s0, s0, {f2u(1/2048):#x}
    v_mov_b32 {t(5)}, v{vTT}
    v_lshrrev_b32 {t(6)}, 5, v0
    v_cvt_f32_u32 {t(5)}, {t(5)}
    v_cvt_f32_u32 {t(6)}, {t(6)}
    v_mul_f32 {t(5)}, s0, {t(5)}
    v_cmp_gt_u32 s[0:1], 32, v0
    v_mul_f32 {t(6)}, {t(6)}, {t(5)}
    v_mul_f32 {t(7)}, {f2u(32.0):#x}, {t(5)}
    v_add_f32 {t(5)}, {t(5)}, {t(5)}
    v_mul_f32 {t(9)}, 0.5, {t(7)}
    v_cndmask_b32 {t(9)}, {t(7)}, {t(9)}, s[0:1]''')
    for j in range(8):
        if j: r(f'v_add_f32 {t(6)}, {t(6)}, {t(5)}')
        if fract:
            r(f'''v_add_f32 {t(1)}, {t(6)}, {t(7)}
            v_sub_f32 {t(2)}, {t(9) if j==0 else t(7)}, {t(6)}
            v_fract_f32 {t(0)}, {t(6)}
            v_add_f32 {t(3)}, {t(2)}, {t(7)}
            v_fract_f32 {t(1)}, {t(1)}
            v_fract_f32 {t(2)}, {t(2)}
            v_fract_f32 {t(3)}, {t(3)}''')
        else:
            r(f'''v_add_f32 {t(1)}, {t(6)}, {t(7)}
            v_sub_f32 {t(2)}, {t(9) if j==0 else t(7)}, {t(6)}
            v_add_f32 {t(3)}, {t(2)}, {t(7)}''')
        for i in range(4):
            a_=t(i) if (fract or i) else t(6)
            r(f'v_cos_f32 {t(12+2*i)}, {a_}\nv_sin_f32 {t(13+2*i)}, {a_}')
        for i in range(4): r(f'v_cvt_pk_bf16_f32 {t(20+i)}, {t(12+2*i)}, {t(13+2*i)}')
        for i in range(4): r(f'v_accvgpr_write_b32 a{224+4*j+i}, {t(20+i)}')
    TM={0:4,1:5,2:6,3:7,5:13,6:14,7:15,9:8}
    TM.update({12+i:128+i for i in range(8)}); TM.update({20+i:232+i for i in range(4)})
    return remap(r.l,TMX or TM)
def remap(L, TM):
    return [re.sub(r'v(10\d\d)\b', lambda m:'v%d'%TM[int(m.group(1))-1000], x) for x in L]
def xb2_ops(g):
    def o0(): g.vmem(f'buffer_load_ushort v{vB2}, v{vB2}, s[72:75], 0 offen','b2')
    return [o0]
def ppos(pr):
    p=pr%10
    return 131072+p*4096 if p<2 else ((p-2)>>1)*32768+(p&1)*4096
def w2_pair_ops(g, pr, base='s69', lds=None):
    if lds is None: lds=ppos(pr)
    def mk(i):
        def op():
            if i==0: g(f's_add_u32 m0, {base}, {lds}')
            g.vmem(f'buffer_load_dwordx4 v{vDM[i]}, s[64:67], s68 offen offset:{1024*i} lds', f'w{pr}')
            if i==3 and pr<13: g(f's_add_u32 s68, s68, 32768\ns_cmp_eq_u32 s68, {14*32768}\ns_cselect_b32 s68, 0, s68')
        return op
    return [mk(i) for i in range(4)]
def w2_trl(pr, regs=None, off=None):
    if regs is None:
        off=ppos(pr)
        if off>=65536 and off<0x18000: regs=('hi',);
        if off<65536: regs=vT[0:2]
        elif off>=0x18000: regs=vT[2:4]; off-=0x18000
        else: regs=[vTm0,vTm1]; off-=65536
    L=[]
    for k in range(2):
        for a_ in range(2):
            for q in range(2):
                r=8*(2*pr+k)+4*a_+2*q
                L.append(f'ds_read_b64_tr_b16 a[{r}:{r+1}], v{regs[a_]} offset:{off+2048*k+1024*q}')
    return L
vJ=[[241,242],[243,244]]
vTm0,vTm1=14,15

def entry(g):
    g('''s_cmp_ge_u32 s2, 256
    s_cbranch_scc1 L_end''')
    g.stamp()
    g('''s_load_dwordx16 s[4:19], s[0:1], 0
    s_load_dwordx8 s[20:27], s[0:1], 64
    s_load_dwordx2 s[28:29], s[0:1], 96
    v_lshrrev_b32 v1, 6, v0
    s_and_b32 s30, s2, 7
    s_lshr_b32 s31, s2, 3
    v_readfirstlane_b32 s3, v1''')
    if g.opt.get('codepf',1):
        g(f'''s_getpc_b64 s[50:51]
        L_pc:
        s_mul_i32 s53, s31, 1280
        v_lshl_add_u32 v2, v0, 3, s53
        v_min_u32 v2, L_codeend-L_pc-4, v2
        v_mov_b32 v3, s51
        v_add_co_u32 v2, vcc, s50, v2
        v_addc_co_u32 v3, vcc, 0, v3, vcc''')
        g.vmem('global_load_dword v1, v[2:3], off','pf')
    if g.opt.get('p1arr',48)==216:
        g('''v_and_b32 v0, 63, v0
        s_lshl_b32 s48, s30, 1
        s_and_b32 s53, s31, 1
        s_cmp_lt_u32 s31, 4
        s_cbranch_scc1 L_dft0
        s_add_u32 s48, s48, s53
        s_lshr_b32 s49, s31, 1
        s_sub_u32 s49, s49, 2
        s_mov_b32 s100, s53''')
        r=g.opt.get('rot',4)
        if r==1: g('s_lshl_b32 s56, s53, 2\ns_add_u32 s56, s56, s49\ns_and_b32 s56, s56, 7')
        elif r==2: g('s_add_u32 s56, s53, s49\ns_and_b32 s56, s56, 1\ns_lshl_b32 s56, s56, 2')
        elif r==4: g('s_lshl_b32 s56, s53, 1\ns_add_u32 s56, s56, s49\ns_and_b32 s56, s56, 3\ns_lshl_b32 s56, s56, 1')
        if g.opt.get('xph',0): g('s_add_u32 s56, s56, s30\ns_and_b32 s56, s56, 7')
        return
    rot=g.opt.get('rot',4)
    g('''v_and_b32 v0, 63, v0
    s_lshr_b32 s48, s30, 1
    s_lshl_b32 s55, s48, 1
    s_lshl_b32 s48, s48, 2
    s_and_b32 s100, s31, 3
    s_add_u32 s48, s48, s100
    s_lshr_b32 s49, s31, 2
    s_sub_u32 s49, s49, 1
    s_and_b32 s49, s49, 7''') if g.opt.get('dftfirst',1) else g('''v_and_b32 v0, 63, v0
    s_lshr_b32 s48, s30, 1
    s_lshl_b32 s55, s48, 1
    s_lshl_b32 s48, s48, 2
    s_lshr_b32 s100, s31, 3
    s_add_u32 s48, s48, s100
    s_and_b32 s49, s31, 7''')
    if rot==1:   g('s_lshl_b32 s56, s100, 1\ns_add_u32 s56, s56, s49\ns_and_b32 s56, s56, 7')
    elif rot==2: g('s_add_u32 s56, s100, s49\ns_and_b32 s56, s56, 1\ns_lshl_b32 s56, s56, 2')
    elif rot==4: g('s_add_u32 s56, s100, s49\ns_and_b32 s56, s56, 3\ns_lshl_b32 s56, s56, 1')
    elif rot==0: g('s_mov_b32 s56, 0')
    if g.opt.get('xph',0): g('s_add_u32 s56, s56, s55\ns_and_b32 s56, s56, 7')
    g('''s_and_b32 s53, s30, 1
    s_cmp_eq_u32 s49, 7
    s_cbranch_scc1 L_dfte''')

def p1_mlp(g):
    ACC=64
    vX=[2,3,4,5]; vW=[6,7,8,9]; vB=[10,11,12,13]; vA=[18,19]
    vSA,vCA,vCP,vCB=14,15,16,17
    vB1=[56,57]; CSA=164; SEL=168; GA=144; GF=160
    WP=200; vP0,vP1,vPT,vPS,vPF=208,209,210,211,212
    rot=g.opt.get('rot',4)
    A216=g.opt.get('p1arr',48)==216
    if A216:
        g('s_and_b32 s50, s3, 1\ns_lshr_b32 s51, s3, 1\ns_and_b32 s53, s49, 1')
    else:
        g('''s_mul_i32 s54, s53, 7
        s_add_u32 s49, s49, s54
        s_and_b32 s50, s3, 1
        s_lshr_b32 s51, s3, 1''')
    g('s_lshl_b32 s63, s48, 1\ns_add_u32 s63, s63, s53')
    t1_of(g,'s52','s48','s51','s53')
    g(f'''v_lshrrev_b32 v24, 3, v0
    v_lshrrev_b32 v25, 4, v0
    v_and_b32 v28, 7, v0
    v_xor_b32 v26, v28, v25
    v_lshlrev_b32 v26, 4, v26
    v_lshl_add_u32 v26, v24, 15, v26
    s_lshl_b32 s53, s52, 10
    s_lshl_b32 s54, s50, 20
    s_add_u32 s53, s53, s54
    v_add_u32 v{vX[0]}, s53, v26
    v_xor_b32 v27, 64, v{vX[0]}
    v_add_u32 v{vX[1]}, {262144-1024}, v27
    v_add_u32 v{vX[2]}, {2*(262144-1024)}, v{vX[0]}
    v_add_u32 v{vX[3]}, {3*(262144-1024)}, v27
    v_and_b32 v26, 15, v0
    v_lshlrev_b32 v27, 2, v25
    v_xor_b32 v26, v26, v27
    v_lshlrev_b32 v26, 4, v26
    v_mul_u32_u24 v29, 3584, v25
    v_add_u32 v26, v26, v29
    s_mul_i32 s53, s3, 57344
    s_lshl_b32 s54, s49, 8
    s_add_u32 s53, s53, s54
    v_add_u32 v{vW[0]}, s53, v26
    v_add_u32 v{vW[1]}, 13312, v{vW[0]}
    v_add_u32 v{vW[2]}, {2*13312}, v{vW[0]}
    v_add_u32 v{vW[3]}, {3*13312}, v{vW[0]}
    s_lshl_b32 s55, s3, 12''')
    g.stamp('pro')
    g('s_waitcnt lgkmcnt(0)')
    g.stamp('pro')
    srd(g,32,4,2097152); srd(g,36,16,512*1792*2)
    def stage_ops(st):
        slot=st&3
        def mk(i):
            def op():
                if i==0: g(f's_lshl_b32 s57, s56, 7\ns_mul_i32 s58, s56, 229376\ns_add_u32 m0, s55, {slot*32768}')
                if i==4: g(f's_add_u32 m0, s55, {slot*32768+16384}\ns_add_u32 s56, s56, 1\ns_and_b32 s56, s56, 7')
                if i<4: g.vmem(f'buffer_load_dwordx4 v{vX[i]}, s[32:35], s57 offen offset:{1024*i} lds',f's{st}')
                else:   g.vmem(f'buffer_load_dwordx4 v{vW[i-4]}, s[36:39], s58 offen offset:{1024*(i-4)} lds',f's{st}')
            return op
        return [mk(i) for i in range(8)]
    D=g.opt.get('depth',3)
    for op in stage_ops(0): op()
    g.stamp('pro')
    for op in stage_ops(1): op()
    g('@@SPLIT@@')
    g.stamp('pro')
    epoch_load(g)
    g(f'''s_lshl_b32 s46, s48, 11
    v_and_b32 v24, 31, v0
    v_lshrrev_b32 v25, 5, v0
    v_bfe_u32 v26, v0, 1, 3
    v_xor_b32 v26, v26, v25
    s_lshl_b32 s53, s51, 13
    v_lshlrev_b32 v27, 7, v24
    v_add_u32 v27, s53, v27''')
    for kk in range(4):
        g(f'''v_xor_b32 v28, {2*kk}, v26
        v_lshl_add_u32 v{vB[kk]}, v28, 4, v27''')
    g(f'''v_bfe_u32 v26, v0, 2, 2
    v_lshl_add_u32 v27, v25, 3, v26
    v_lshlrev_b32 v27, 8, v27
    s_lshl_b32 s53, s50, 1
    s_add_u32 s53, s53, s51
    v_xor_b32 v26, s53, v26
    v_lshl_add_u32 v27, v26, 6, v27
    v_bfe_u32 v26, v0, 4, 1
    v_and_b32 v28, 3, v0
    v_lshlrev_b32 v30, 3, v28
    v_lshl_add_u32 v30, v26, 5, v30
    s_movk_i32 s59, 0x4000
    v_add3_u32 v{vA[0]}, v27, v30, s59
    v_xor_b32 v{vA[1]}, 64, v{vA[0]}
    v_bfe_u32 v27, v0, 2, 1
    v_xor_b32 v26, v26, v27
    v_or_b32 v26, v26, v28
    v_mov_b32 v27, 0x3f803f80
    v_cmp_eq_u32 vcc, 0, v26
    s_lshl_b32 s53, s53, 5
    v_add_u32 v26, s53, v24
    v_cndmask_b32 v{SEL+4}, 0, v27, vcc
    s_lshl_b32 s54, s49, 7
    v_add_lshl_u32 v{vB1[0]}, v26, s54, 1
    v_xor_b32 v{vB1[1]}, 64, v{vB1[0]}''')
    srd(g,40,18,1792*2)
    for t in range(2): g.vmem(f'buffer_load_ushort v{vB1[t]}, v{vB1[t]}, s[40:43], 0 offen','b1')
    if A216:
        g(f'''s_lshl_b32 s53, s49, 3
        s_lshr_b32 s54, s48, 1
        s_add_u32 s53, s53, s54
        s_lshl_b32 s53, s53, 11
        s_add_u32 s53, s53, {CS_REL+(ST_OFF-F_OFF)}
        v_lshl_add_u32 v{vCA}, v26, 4, s53
        s_lshl_b32 s54, s100, 3
        v_add_u32 v{vCP}, s54, v{vCA}
        v_xor_b32 v{vCB}, 0x200, v{vCA}''')
    else: g(f'''s_lshl_b32 s53, s49, 2
    s_lshr_b32 s54, s48, 2
    s_add_u32 s53, s53, s54
    s_lshl_b32 s53, s53, 12
    s_add_u32 s53, s53, {CS_REL+(ST_OFF-F_OFF)}
    v_lshl_add_u32 v26, v26, 5, s53
    s_lshl_b32 s54, s100, 3
    v_add_u32 v{vCP}, s54, v26
    v_lshl_add_u32 v{vCA}, v25, 4, v26
    v_xor_b32 v{vCB}, 0x400, v{vCA}''')
    g(f'''
    s_lshl_b32 s53, s63, 11
    s_lshl_b32 s54, s51, 10
    s_add_u32 s53, s53, s54
    s_add_u32 s53, s53, {ST_OFF-F_OFF}
    v_lshl_add_u32 v{vSA}, v24, 4, s53
''')
    srd(g,40,28,4<<20,add=F_OFF)
    g.stamp('pro')
    WS0=g.opt.get('wsched','o')
    if D==3 and WS0!='y':
        for op in stage_ops(2): op()
    g.stamp('pro')
    g('s_waitcnt lgkmcnt(0)')
    early,addr,trig=p2_setup_ops(g,False)
    TM={i:176+i for i in range(24)}
    early,addr,trig=[remap(x,TM) for x in (early,addr,trig)]
    vBh=[200,201,202,203]; vAh=[204,205]
    g.miscq=[f'v_add_u32 v{h}, 0x10000, v{l}' for h,l in zip(vBh+vAh,vB+vA)]+early+addr+trig
    def fr(s_):
        b=[32,128][s_]
        return dict(A=[b,b+4],B=[b+8,b+12])
    def rd(n):
        st,kk=n>>2,n&3
        f=fr(n&1); o=(st&1)*32768; hi=(st>>1)&1
        tr=lambda t,q: f'ds_read_b64_tr_b16 v[{f["A"][t]+2*q}:{f["A"][t]+2*q+1}], v{[vA,vAh][hi][t]} offset:{o+4096*kk+1024*q}'
        bb=lambda u: f'ds_read_b128 v[{f["B"][u]}:{f["B"][u]+3}], v{[vB,vBh][hi][kk]} offset:{o+4096*u}'
        return [tr(0,0),tr(0,1),bb(0),bb(1),tr(1,0),tr(1,1)]
    ncs = 4 if A216 else {1:2,4:2,2:4,0:8}[rot]
    def setsel(st):
        if ncs==2 or A216: cond=None
        elif ncs==4: cond=f's_lshr_b32 s53, s100, 1\ns_cmp_eq_u32 s53, {st>>1}'
        else: cond=f's_cmp_eq_u32 s100, {st>>1}'
        if cond is None:
            for i in range(4): g(f'v_mov_b32 v{SEL+i}, v{SEL+4}')
        else:
            g(cond+'\ns_cselect_b32 s53, -1, 0')
            for i in range(4): g(f'v_and_b32 v{SEL+i}, s53, v{SEL+4}')
    def gather_ops():
        def mk(r,v,off):
            def o(): g.vmem(f'buffer_load_dwordx4 v[{r}:{r+3}], v{v}, s[40:43], 0 offen offset:{off} sc1','ga')
            return o
        return [mk(GA,vSA,0),mk(GA+4,vSA,512),mk(GA+8,vCA,0),mk(GA+12,vCB,0)]
    def publish():
        g(f'v_mov_b32 v{CSA+1}, s47')
        g.vmem(f'buffer_store_dwordx2 v[{CSA}:{CSA+1}], v{vCP}, s[40:43], 0 offen sc1','csp')
    WPS=g.opt.get('wpstage',1)
    WSCHED={'a':{2:[0],3:[1],5:[2,3],6:[4],7:[5,6]},'b':{3:[0],4:[1],5:[2],6:[3,4],7:[5]},'c':{5:[0,1],6:[2],7:[3,4]},'d':{1:[0],2:[1],5:[2,3],6:[4,5],7:[6]},'e':{5:[0,1],6:[2,3],7:[4,5]},'f':{4:[0],5:[1],6:[2,3],7:[4,5]},'g':{5:[0],6:[1],7:[2,3]},'h':{4:[0,1],7:[2,3,4]},'i':{4:[0,1],7:[2,3]},'j':{4:[0,1]},'k':{3:[0,1],6:[2,3],7:[4,5]},'l':{4:[0,1],6:[2],7:[3,4]},'m':{1:[(0,0)],2:[(0,1)],3:[(1,0)],4:[(1,1)],5:[2,3],6:[4,5],7:[6]},'n':{1:[(0,0)],2:[(0,1)],3:[(1,0)],4:[(1,1)],6:[2,3],7:[4,5]},'o':{1:[0],2:[1],5:[2,3],6:[4,5],7:[6,7]},'p':{5:[0,1],7:[2]},'q':{5:[0,1]},'r':{5:[0,1],6:[2]},'s':{5:[0,1],7:[2,3]},'t':{5:[0,1],6:[2],7:[3]},'u':{1:[0,1],5:[2,3],6:[4,5],7:[6,7]},'v':{0:[0,1],5:[2,3],6:[4,5],7:[6,7]},'w':{2:[0,1],5:[2,3],6:[4,5],7:[6,7]},'x':{-1:[0,1],5:[2,3],6:[4,5],7:[6,7]},'y':{-2:[0,1],5:[2,3],6:[4,5],7:[6,7]}}[g.opt.get('wsched','o')]
    half={}
    prevtr=[0]
    NTL=g.opt.get('ntl',5)
    TRL={n:(i>>1,i&1) for i,n in enumerate([20,21,22,23,26,27,28,29,30,31][:2*NTL])}
    MX=g.opt.get('mx',5)
    nw=len(set((p[0] if isinstance(p,tuple) else p) for x in WSCHED.values() for p in x))
    def enter(st):
        g.flush_side()
        g.wait(f's{st}')
        g('s_barrier')
        g.stamp('st')
        if st+D<8: g.sideq+=stage_ops(st+D)
        if st==max(ncs,g.opt.get('pubst',4)) and ncs<8: g.sideq.append(publish)
        if st==6: g.miscq+=hr.l
        if st in WSCHED and st<6:
            while len(g.miscq)>len(trig)+len(addr): misc(g,1)
        if st==g.opt.get('gast',7) and not g.opt.get('galast'): g.sideq+=gather_ops()
        for pr in WSCHED.get(st,[]):
            if isinstance(pr,tuple):
                if pr[1]==0: half[pr[0]]=w2_pair_ops(g,pr[0])
                ops=half[pr[0]][2*pr[1]:2*pr[1]+2]
                if pr[1]==1: ops=[lambda p=pr[0],o=ops[0]:(g(f's_add_u32 m0, s69, {ppos(p)}'),o())]+ops[1:]
                g.sideq+=ops
            else: g.sideq+=w2_pair_ops(g,pr)
        if st==g.opt.get('gast',7) and g.opt.get('galast'): g.sideq+=gather_ops()
    if WS0 in 'xy':
        while len(g.miscq)>len(trig)+len(addr): misc(g,1)
        for op in w2_pair_ops(g,0)+w2_pair_ops(g,1): op()
        if WS0=='y':
            for op in stage_ops(2): op()
    hr=Rec()
    srd(hr,36,28,7340032)
    hr('''s_mul_i32 s53, s52, 112
    s_lshl_b32 s54, s49, 3
    s_add_u32 s53, s53, s54
    s_lshl_b32 s54, s50, 2
    s_add_u32 s53, s53, s54
    s_lshl_b32 s53, s53, 11
    s_lshl_b32 s54, s51, 12
    s_add_u32 s60, s53, s54
    s_xor_b32 s61, s60, 0x400
    s_xor_b32 s62, s60, 0x1000
    s_xor_b32 s63, s60, 0x1400
''')
    nonce(g); setsel(0)
    enter(0); g.stamp(); g.stamp('pro')
    for x in rd(0): g(x)
    for n in range(32):
        st,kk=n>>2,n&3
        f=fr(n&1)
        def mf(t,u):
            d=ACC+16*(2*t+u)
            g(f'{MF} v[{d}:{d+15}], v[{f["A"][t]}:{f["A"][t]+3}], v[{f["B"][u]}:{f["B"][u]+3}], '+(f'v[{d}:{d+15}]' if n else '0'))
        nx = rd(n+1) if n<31 else []
        xt=prevtr[0]; prevtr[0]=0
        if kk==3:
            g(f's_waitcnt lgkmcnt({xt})'); mf(0,0)
            if st<7: enter(st+1)
            else: g.flush_side(); g('s_barrier')
            for x in nx[:3]: g(x)
            mf(0,1)
            for x in nx[3:]: g(x)
            mf(1,0)
        else:
            g(f's_waitcnt lgkmcnt({3+xt})'); mf(0,0)
            for x in nx[:3]: g(x)
            g(f's_waitcnt lgkmcnt({5+xt})'); mf(0,1)
            for x in nx[3:]: g(x)
            g(f's_waitcnt lgkmcnt({6+xt})'); mf(1,0)
        if n in TRL:
            pr,h=TRL[n]
            if h==0: g.wait(f'w{pr}')
            for x in w2_trl(pr)[4*h:4*h+4]: g(x)
            prevtr[0]=4
        else:
            had=bool(g.sideq); g.side(); misc(g, 2 if had else MX)
        if st<ncs:
            g(f'v_mfma_f32_16x16x32_bf16 v[{CSA}:{CSA+3}], v[{SEL}:{SEL+3}], v[{f["A"][0]}:{f["A"][0]+3}], '+(f'v[{CSA}:{CSA+3}]' if n else '0'))
        mf(1,1)
        had=bool(g.sideq); g.side(2 if (len(g.sideq)>2*(3-kk)+1 or n in TRL) else 1); misc(g,2 if had else MX)
        if kk==3 and st+1<ncs and (st+1)%2==0: setsel(st+1)
    if ncs==8: publish()
    g.flush_side(); misc(g,9999)
    g.stamp(); g.stamp('st'); g.stamp('tail')
    g.wait('ga')
    g(f'''s_mov_b32 s56, {SPIN}
    L_gchk:
    v_xor_b32 v24, s47, v{GA+3}
    v_xor_b32 v25, s47, v{GA+7}
    v_xor_b32 v26, s47, v{GA+9}
    v_xor_b32 v27, s47, v{GA+11}
    v_xor_b32 v28, s47, v{GA+13}
    v_xor_b32 v29, s47, v{GA+15}
    v_or3_b32 v24, v24, v25, v26
    v_or3_b32 v27, v27, v28, v29
    v_or_b32 v24, v24, v27
    v_cmp_ne_u32 vcc, 0, v24
    s_cbranch_vccnz L_gslow
    L_gok:''')
    keep=list(g.vm); main=g.a.l; g.a.l=[]
    g('L_gslow:\ns_sleep 8')
    for op in gather_ops(): op()
    g('s_waitcnt vmcnt(0)\ns_sub_u32 s56, s56, 1\ns_cbranch_scc0 L_gchk\ns_branch L_gok')
    g.outofline+=g.a.l; g.a.l=main; g.vm=keep
    NG=g.opt.get('ng',10)
    assert NG<=10+NTL
    g('s_waitcnt lgkmcnt(0)')
    for pr in range(nw,NG): g.sideq+=w2_pair_ops(g,pr)
    a0,a1=GA+8,GA+12
    c0=-2*math.sqrt(2/math.pi)*math.log2(math.e); c1=c0*0.044715
    g(f'''v_add_f32 v{a0}, v{a0}, v{a0+2}
    v_add_f32 v{a1}, v{a1}, v{a1+2}
    v_rcp_f32 v24, v{GA+2}
    v_mov_b32 v{a0+1}, v{a0}
    v_mov_b32 v{a1+1}, v{a1}
    v_rcp_f32 v26, v{GA+6}
    v_cmp_gt_u32 vcc, 32, v0
    v_permlane32_swap_b32 v{a0}, v{a0+1}
    v_permlane32_swap_b32 v{a1}, v{a1+1}
    v_mov_b32 v50, v{GA+2}
    v_mov_b32 v54, v{GA+6}
    {'v_mov_b32' if A216 else 'v_add_f32'} v{a0+2}, v{a0}{'' if A216 else f', v{a0+1}'}
    {'v_mov_b32' if A216 else 'v_add_f32'} v{a1+2}, v{a1}{'' if A216 else f', v{a1+1}'}
    v_mov_b32 v{GA+2}, v{GA}
    v_mov_b32 v{GA+6}, v{GA+4}
    v_cvt_pk_bf16_f32 v{a0}, v{a0+2}, v{a0+2}
    v_cvt_pk_bf16_f32 v{a1}, v{a1+2}, v{a1+2}
    v_lshl_or_b32 v{a0+1}, v{vB1[0]}, 16, v{vB1[0]}
    v_lshl_or_b32 v{a1+1}, v{vB1[1]}, 16, v{vB1[1]}
    v_lshlrev_b32 v{a0+3}, 16, v{a0}
    v_lshlrev_b32 v{a1+3}, 16, v{a1}
    v_cndmask_b32 v{a0}, 0, v{a0}, vcc
    v_cndmask_b32 v{a1}, 0, v{a1}, vcc
    v_sub_f32 v{a0+2}, v{a0+2}, v{a0+3}
    v_sub_f32 v{a1+2}, v{a1+2}, v{a1+3}
    v_cndmask_b32 v{a0+1}, 0, v{a0+1}, vcc
    v_cndmask_b32 v{a1+1}, 0, v{a1+1}, vcc
    v_cvt_pk_bf16_f32 v{a0+2}, v{a0+2}, 0
    v_cvt_pk_bf16_f32 v{a1+2}, v{a1+2}, 0
    v_mov_b32 v{a0+3}, 0
    v_mov_b32 v{a1+3}, 0
    v_cndmask_b32 v{a0+2}, 0, v{a0+2}, vcc
    v_cndmask_b32 v{a1+2}, 0, v{a1+2}, vcc
    v_mov_b32 v{GA+3}, 0
    v_mov_b32 v{GA+7}, 0''')
    Aex=[a0,a1]; Bex=[GA,GA+4]
    for t in range(2):
        for u in range(2):
            d=ACC+16*(2*t+u)
            g(f'{MF} v[{d}:{d+15}], v[{Aex[t]}:{Aex[t]+3}], v[{Bex[u]}:{Bex[u]+3}], v[{d}:{d+15}]')
    g(f'''v_mul_f32 v25, v24, v24
    v_mul_f32 v27, v26, v26
    v_mul_f32 v49, {f2u(c0):#x}, v24
    v_mul_f32 v53, {f2u(c0):#x}, v26
    v_mul_f32 v25, v25, v24
    v_mul_f32 v27, v27, v26
    v_mul_f32 v48, {f2u(c1):#x}, v25
    v_mul_f32 v52, {f2u(c1):#x}, v27''')
    g('v_lshlrev_b32 v56, 4, v0')
    g.stamp()
    while len(g.miscq)>len(trig): misc(g,1)
    def trop(pr,h):
        def op():
            if h==0: g.wait(f'w{pr}')
            for x in w2_trl(pr)[4*h:4*h+4]: g(x)
        return op
    xo=xb2_ops(g)
    trs=[]
    for pr in range(NTL,4):
        if not g.opt.get('trpost'): trs+=[trop(pr,0),trop(pr,1)]
    g.sideq+=xo+trs
    NS=g.opt.get('gside',4)
    for t in range(2):
        for u in range(2):
            d=ACC+16*(2*t+u); K=[48,52][u]; RI=[50,54][u]
            for j in range(2):
                NS=g.opt.get('gside',4) if 4*t+2*u+j>=g.opt.get('gstart',0) else 0
                P=[d+8*j+2*i for i in range(4)]
                tm=[2+2*i for i in range(4)]
                o=[24,28][j]
                for i in range(4): g(f'v_pk_mul_f32 v[{tm[i]}:{tm[i]+1}], v[{P[i]}:{P[i]+1}], v[{P[i]}:{P[i]+1}]')
                for i in range(4): g(f'v_pk_fma_f32 v[{tm[i]}:{tm[i]+1}], v[{tm[i]}:{tm[i]+1}], v[{K}:{K+1}], v[{K}:{K+1}] op_sel:[0,0,1] op_sel_hi:[1,0,1]')
                if NS>=1: g.side()
                for i in range(4): g(f'v_pk_mul_f32 v[{tm[i]}:{tm[i]+1}], v[{tm[i]}:{tm[i]+1}], v[{P[i]}:{P[i]+1}]')
                for i in range(8):
                    g(f'v_exp_f32 v{2+i}, v{2+i}')
                    if i==3 and NS>=4: g.side()
                if NS>=2: g.side()
                for i in range(4): g(f'v_pk_fma_f32 v[{tm[i]}:{tm[i]+1}], v[{tm[i]}:{tm[i]+1}], v[{RI}:{RI+1}], v[{RI}:{RI+1}] op_sel:[0,0,0] op_sel_hi:[1,0,0]')
                for i in range(8):
                    g(f'v_rcp_f32 v{2+i}, v{2+i}')
                    if i==3 and NS>=5: g.side()
                if NS>=3: g.side()
                for i in range(4): g(f'v_pk_mul_f32 v[{tm[i]}:{tm[i]+1}], v[{tm[i]}:{tm[i]+1}], v[{P[i]}:{P[i]+1}]')
                for i in range(4): g(f'v_cvt_pk_bf16_f32 v{o+i}, v{tm[i]}, v{tm[i]+1}')
                g.vmem(f'buffer_store_dwordx4 v[{o}:{o+3}], v56, s[36:39], s{60+2*t+u} offen offset:{2048*j} {"" if g.opt.get("hplain") else "sc1"}','st')
    g.stamp()
    print('after GELU: side',len(g.sideq),'misc',len(g.miscq),file=sys.stderr)
    g.stamp('tail')
    g.flush_side()
    g(f'v_mov_b32 v2, s47\nv_add_u32 v{vTm0}, 0x10000, v{vT[0]}\nv_add_u32 v{vTm1}, 0x10000, v{vT[1]}')
    NJ=g.opt.get('nj',4)
    for k in range(0 if g.opt.get('merge',0) else NJ//2): g(f'v_add_u32 v{vJ[k][0]}, {ppos(12-2*k)}, v{vT[0]}\nv_add_u32 v{vJ[k][1]}, {ppos(12-2*k)}, v{vT[1]}')
    for d in (1,2,3): g(f's_add_u32 s{5+d}, s69, {d*32768}\ns_xor_b32 s{8+d}, s{5+d}, {d*8192}')
    g(f's_add_u32 s12, s69, {32768+4096}')
    TB=g.opt.get('trbefore',1)
    for pr in range(max(4,NTL),4+TB):
        g.wait(f'w{pr}')
        for x in w2_trl(pr): g(x)
    g.stamp('tail')
    g.wait('st')
    g.stamp('tail')
    g('s_barrier')
    g.vmem(f'buffer_store_dword v2, v{vSG}, s[40:43], 0 offen sc1','flag')
    g.stamp('tail')
    if g.opt.get('merge',0):
        g.nw=NG
        return
    for pr in range(NG,10):
        for op in w2_pair_ops(g,pr): op()
    if g.opt.get('trpost'):
        for pr in range(NTL,4):
            g.wait(f'w{pr}')
            for x in w2_trl(pr): g(x)
    g('s_waitcnt lgkmcnt(0)')
    for pr in range(max(NG,10),14):
        for op in w2_pair_ops(g,pr): op()
    for pr in range(max(4+TB,NTL),14-NJ):
        g.wait(f'w{pr}')
        for x in w2_trl(pr): g(x)
    g('v_not_b32 v3, v2')

def p1_dft(g):
    RAW=64
    vBr0=56; vXL=[57,18,19,2]; vSP=3; vA0=244; vBd=[4,5,6,7]; vWe,vWo=8,9; vFA=[10,11,12,13]; vFB=[14,15,16,17]
    CC=[192,196]; SS=[200,204]; NS=[208,212]
    RC=[216,218,220,222]
    if g.opt.get('p1arr',48)==216:
        g('L_dft0:\ns_lshr_b32 s100, s31, 1\ns_add_u32 s48, s48, s100\ns_lshl_b32 s100, s100, 1')
    g('''s_mov_b32 s49, s53
    s_lshr_b32 s51, s3, 1''')
    t1_of(g,'s52','s48','s51','s53')
    g(f'''s_and_b32 s50, s3, 1
    s_lshl_b32 s53, s50, 5
    s_add_u32 s53, s53, s52
    s_lshl_b32 s53, s53, 10
    v_lshrrev_b32 v24, 3, v0
    v_lshrrev_b32 v25, 4, v0
    v_and_b32 v26, 7, v0
    v_lshlrev_b32 v27, 4, v26
    v_lshl_add_u32 v27, v24, 16, v27
    s_lshl_b32 s54, s100, 7
    v_add3_u32 v{vXL[0]}, v27, s53, 0
    v_add_u32 v{vXL[0]}, s54, v{vXL[0]}
    v_xor_b32 v{vXL[1]}, 0x80, v{vXL[0]}
    v_xor_b32 v{vXL[2]}, 0x100, v{vXL[0]}
    v_xor_b32 v{vXL[3]}, 0x180, v{vXL[0]}
    s_waitcnt lgkmcnt(0)''')
    srd(g,32,4,2097152)
    def xops(gi):
        def mk(j):
            def op():
                if j==0: g(f's_mov_b32 s58, {gi*524288}')
                r=RAW+32*gi+4*j
                g.vmem(f'buffer_load_dwordx4 v[{r}:{r+3}], v{vXL[j&3]}, s[32:35], s58 offen offset:{512*(j>>2)}',f'x{gi}')
            return op
        return [mk(j) for j in range(8)]
    DO=g.opt.get('dord','a')
    for gi in range(1 if DO in 'de' else 2):
        for op in xops(gi): op()
    if DO not in 'de': g('@@SPLIT@@')
    epoch_load(g)
    srd(g,36,10,524288); srd(g,16,12,524288); srd(g,40,28,4<<20,add=F_OFF)
    g(f'''s_lshl_b32 s46, s48, 3
    s_lshl_b32 s53, s49, 2
    s_add_u32 s46, s46, s53
    s_add_u32 s46, s46, {FU}
    v_xor_b32 v26, v26, v25
    v_lshlrev_b32 v26, 4, v26
    v_lshl_add_u32 v27, v24, 11, v26
    s_lshl_b32 s53, s3, 16
    s_lshl_b32 s54, s49, 10
    s_add_u32 s53, s53, s54
    v_add_u32 v{vBd[0]}, s53, v27
    v_xor_b32 v28, 64, v{vBd[0]}
    v_add_u32 v{vBd[1]}, {16384-1024}, v28
    v_add_u32 v{vBd[2]}, {2*(16384-1024)}, v{vBd[0]}
    v_add_u32 v{vBd[3]}, {3*(16384-1024)}, v28
    v_add_u32 v28, 0x40000, v{vBd[0]}
    v_cmp_gt_u32 vcc, 1024, v{vBd[0]}
    v_lshl_add_u32 v27, v24, 7, v26
    s_lshl_b32 s53, s3, 12
    v_cndmask_b32 v{vBr0}, v{vBd[0]}, v28, vcc
    v_add_u32 v{vWe}, s53, v27
    v_xor_b32 v{vWo}, 64, v{vWe}
    s_mul_i32 s55, s3, 24576
    s_add_u32 s55, s55, 65536
    s_lshl_b32 s53, s48, 1
    s_add_u32 s53, s53, s49
    s_lshl_b32 s53, s53, 11
    s_lshl_b32 s54, s51, 10
    s_add_u32 s53, s53, s54
    s_lshl_b32 s54, s50, 4
    s_add_u32 s53, s53, s54
    s_add_u32 s53, s53, {ST_OFF-F_OFF}
    v_lshl_add_u32 v{vSP}, v24, 5, s53
    s_lshl_b32 s53, s48, 1
    s_add_u32 s53, s53, s49
    s_lshl_b32 s53, s53, 9
    s_add_u32 s13, s53, {A0_REL}
    s_lshl_b32 s54, s3, 7
    s_add_u32 s53, s13, s54
    v_lshl_add_u32 v{vA0}, v24, 2, s53
    v_and_b32 v242, 3, v0
    v_lshl_add_u32 v{vA0}, v242, 5, v{vA0}''')
    def bops(st):
        slot=st&1
        def mk(i):
            def op():
                if i==0: g(f's_xor_b32 s57, s100, {st}\ns_lshl_b32 s57, s57, 7\ns_add_u32 m0, s55, {slot*8192}')
                if i==4: g(f's_add_u32 m0, s55, {slot*8192+4096}')
                if i<4: g.vmem(f'buffer_load_dwordx4 v{vBr0 if i==0 else vBd[i]}, s[36:39], s57 offen offset:{1024*i} lds',f'B{st}')
                else:   g.vmem(f'buffer_load_dwordx4 v{vBd[i-4]}, s[16:19], s57 offen offset:{1024*(i-4)} lds',f'B{st}')
            return op
        return [mk(i) for i in range(8)]
    if DO in 'de':
        for op in bops(0): op()
        g('@@SPLIT@@')
    g(f'''v_and_b32 v24, 31, v0
    v_lshrrev_b32 v25, 5, v0
    v_bfe_u32 v26, v0, 1, 3
    v_xor_b32 v26, v26, v25
    v_lshlrev_b32 v27, 7, v24''')
    for kk in range(4):
        g(f'''v_xor_b32 v28, {2*kk}, v26
        v_lshl_add_u32 v{vFA[kk]}, v28, 4, v27
        v_add_u32 v{vFB[kk]}, s55, v{vFA[kk]}''')
    g(f'''v_cvt_f32_u32 v26, v24
    v_mul_f32 v26, {f2u(1/32):#x}, v26
    v_cvt_f32_u32 v27, v25
    v_mul_f32 v27, 4.0, v27
    v_mul_f32 v27, v27, v26
    v_mul_f32 v28, {f2u(5.0):#x}, v26''')
    for j in range(2):
        for i2 in range(4):
            for e in range(2):
                i=2*i2+e
                if not (j==0 and i==0):
                    g(f'v_add_f32 v27, v27, v{28 if i%4==0 else 26}')
                g(f'v_fract_f32 v29, v27\nv_cos_f32 v{20+e}, v29\nv_sin_f32 v{22+e}, v29')
            g(f'v_cvt_pk_bf16_f32 v{CC[j]+i2}, v20, v21\nv_cvt_pk_bf16_f32 v{SS[j]+i2}, v22, v23\nv_xor_b32 v{NS[j]+i2}, 0x80008000, v{SS[j]+i2}')
    early,addr,trig=p2_setup_ops(g,True)
    TM={0:20,1:21,2:22,3:23,4:24,5:25,6:26,7:27,8:28,9:29,10:30,12:2,13:3,14:8,15:9,16:31,17:57,18:240,19:241,20:242,21:243,22:244,23:245}
    early,addr,trig=[remap(x,TM) for x in (early,addr,trig)]
    PRO=g.opt.get('dpro',0)
    if PRO:
        for x in early+addr: g(x)
    g(f'''s_mov_b32 s59, 0x3f803f80
    s_movk_i32 s60, 0x3f80
    s_mov_b32 s61, 0x3f800000
    s_lshl_b32 s53, s49, 15
    s_or_b32 s62, s60, s53
    s_lshl_b32 s63, s62, 16
    s_cmp_eq_u32 s49, 0
    s_cselect_b32 s101, 2.0, 0
    s_waitcnt lgkmcnt(0)''')
    nonce(g)
    eps=f'{f2u(1e-5):#x}'
    chainq=[]
    def ch(n=1):
        for _ in range(n):
            if chainq: chainq.pop(0)()
    def stats(gi):
        R=RAW+32*gi; S=[224,228][gi&1]
        g.wait(f'x{gi}')
        if gi==0: g.stamp()
        for i in range(32):
            if i<2: g(f'v_dot2_f32_bf16 v{S+i}, v{R+i}, s59, 0\nv_dot2_f32_bf16 v{S+2+i}, v{R+i}, v{R+i}, 0')
            else:   g(f'v_dot2c_f32_bf16 v{S+(i&1)}, s59, v{R+i}\nv_dot2c_f32_bf16 v{S+2+(i&1)}, v{R+i}, v{R+i}')
            if i%4==3: g.side()
            if i>=2: ch(2)
        while chainq: ch()
        o=232+4*(gi&1); r1=RC[gi]; a,b,c,d=20,21,22,23
        lines=f'''v_add_f32 v{S}, v{S}, v{S+1}
        v_add_f32 v{S+2}, v{S+2}, v{S+3}
        v_add_f32_dpp v{S}, v{S}, v{S} quad_perm:[1,0,3,2] row_mask:0xf bank_mask:0xf
        v_add_f32_dpp v{S+2}, v{S+2}, v{S+2} quad_perm:[1,0,3,2] row_mask:0xf bank_mask:0xf
        v_add_f32_dpp v{S}, v{S}, v{S} quad_perm:[2,3,0,1] row_mask:0xf bank_mask:0xf
        v_add_f32_dpp v{S+2}, v{S+2}, v{S+2} quad_perm:[2,3,0,1] row_mask:0xf bank_mask:0xf
        v_add_f32_dpp v{S}, v{S}, v{S} row_half_mirror row_mask:0xf bank_mask:0xf
        v_add_f32_dpp v{S+2}, v{S+2}, v{S+2} row_half_mirror row_mask:0xf bank_mask:0xf
        v_mul_f32 v{a}, {f2u(-1/512):#x}, v{S}
        v_mul_f32 v{b}, {f2u(1/512):#x}, v{S+2}
        v_fma_f32 v{b}, -v{a}, v{a}, v{b}
        v_cvt_pk_bf16_f32 v{d}, v{a}, v{a}
        v_max_f32 v{b}, 0, v{b}
        v_lshlrev_b32 v{d}, 16, v{d}
        v_cvt_pk_bf16_f32 v{c}, 0, v{b}
        v_sub_f32 v{d}, v{a}, v{d}
        v_add_f32 v{c}, {eps}, v{c}
        v_cvt_pk_bf16_f32 v{o}, v{a}, v{d}
        v_cvt_pk_bf16_f32 v{c}, 0, v{c}
        v_mul_f32 v{r1+1}, s101, v{a}
        v_sqrt_f32 v{c}, v{c}
        v_mov_b32 v{o+3}, s47
        v_cvt_pk_bf16_f32 v{c}, 0, v{c}
        v_rcp_f32 v{r1}, v{c}
        v_mul_f32 v{d}, {f2u(-512.0):#x}, v{d}
        v_mul_f32 v{b}, v{b}, v{r1}
        v_mul_f32 v{241 if gi else 240}, v{d}, v{r1}
        v_mul_f32 v{b}, v{b}, v{r1}
        v_cvt_pk_bf16_f32 v{b}, 0, v{b}
        v_add_f32 v{b}, {eps}, v{b}
        v_cvt_pk_bf16_f32 v{b}, 0, v{b}
        v_sqrt_f32 v{b}, v{b}
        v_cvt_pk_bf16_f32 v{b}, 0, v{b}
        v_mul_f32 v{o+2}, v{b}, v{c}
        v_cvt_pk_bf16_f32 v{b}, 0, v{o+2}
        v_sub_f32 v{b}, v{o+2}, v{b}
        v_cvt_pk_bf16_f32 v{o+1}, v{o+2}, v{b}'''.split('\n')
        for ln in lines: chainq.append(lambda ln=ln: g(ln))
        chainq.append(lambda: g.vmem(f'buffer_store_dwordx4 v[{o}:{o+3}], v{vSP}, s[40:43], 0 offen offset:{256*gi} sc1','sp'))
        if gi: chainq.append(lambda: g(f'v_cmp_eq_u32 vcc, {gi}, v242\ns_nop 1\nv_cndmask_b32 v240, v240, v241, vcc'))
        if gi==3: chainq.append(lambda: g.vmem(f'buffer_store_dword v240, v{vA0}, s[40:43], 0 offen sc1','a0'))
    def bfly(gi):
        R=RAW+32*gi; r1=RC[gi]
        for j in range(4):
            o=[24,28][j&1]; T=[40,48][j&1]
            for i in range(4):
                a_=R+4*j+i; t=T+2*i
                g(f'v_dot2_f32_bf16 v{t}, v{a_}, s60, v{r1+1}\nv_dot2_f32_bf16 v{t+1}, v{a_}, s61, v{r1+1}'); ch()
            g.side()
            for i in range(4):
                b_=R+4*(j+4)+i; t=T+2*i
                g(f'v_dot2c_f32_bf16 v{t}, s62, v{b_}\nv_dot2c_f32_bf16 v{t+1}, s63, v{b_}'); ch()
            ch(2)
            for i in range(4):
                t=T+2*i
                g(f'v_pk_mul_f32 v[{t}:{t+1}], v[{t}:{t+1}], v[{r1}:{r1+1}] op_sel_hi:[1,0]')
            g.side()
            for i in range(4):
                t=T+2*i
                g(f'v_cvt_pk_bf16_f32 v{o+i}, v{t}, v{t+1}')
            g(f'ds_write_b128 v{vWo if gi&1 else vWe}, v[{o}:{o+3}] offset:{16384*j+1024*gi}')
        while chainq: ch()
    W0=16384
    LATEW=g.opt.get('latew',0)
    wl={0:W0,1:W0+4096,2:W0,3:W0+4096,4:W0,5:W0+4096,6:W0,7:W0+4096,8:0,9:4096,10:W0,11:W0+4096,12:8192,13:8192+4096}
    if LATEW: wl={0:W0,1:W0+4096,2:W0,3:W0+4096,4:W0,5:W0+4096,6:0,7:4096,8:W0,9:W0+4096,10:8192,11:8192+4096,12:0,13:4096}
    wd=lambda pr: w2_pair_ops(g,pr,'s55',wl[pr])
    order=g.opt.get('dord','a')
    plan={'a':[[],xops(2),xops(3),bops(0),bops(1),[],'w',[]],
          'b':[xops(2),xops(3),bops(0),bops(1),[],[],'w',[]],
          'c':[[],xops(2)+xops(3),bops(0),bops(1),[],'w',[],[]],
          'd':[xops(2),xops(3),[],bops(1),[],[],'w',[]],
          'e':[[],xops(2),xops(3),bops(1),[],[],'w',[]]}[order]
    if order in 'de':
        for op in xops(1): op()
    seq=((stats,0),(stats,1),(bfly,0),(stats,2),(bfly,1),(stats,3),(bfly,2),(bfly,3))
    if g.opt.get('sfirst'):
        seq=((stats,0),(stats,1),(stats,2),(stats,3),(bfly,0),(bfly,1),(bfly,2),(bfly,3))
        plan=[xops(2),xops(3),bops(0),[],bops(1),[],'w',[]] if order not in 'de' else [xops(2),xops(3),[],bops(1),[],[],'w',[]]
    for k,(fn,gi) in enumerate(seq):
        if plan[k]=='w':
            if not LATEW:
                if not PRO:
                    for x in early: g(x)
                g.sideq+=wd(0)+wd(1)
        else: g.sideq+=plan[k]
        if fn is stats:
            while any(1 for op in plan[max(k-2,0)] if False): pass
        fn(gi); g.stamp('dst')
        if order=='c' and k==1: g.flush_side()
    g.flush_side()
    g('s_waitcnt lgkmcnt(0)\ns_barrier')
    g.stamp(); g.stamp('dst')
    ACC=64
    def fr(s_):
        b=[32,216][s_]
        return dict(A=[b,b+4,b+8,b+12],B=[b+16,b+20])
    def rd(n):
        st,kk=n>>2,n&3; f=fr(n&1)
        bb=lambda ab: f'ds_read_b128 v[{f["B"][ab]}:{f["B"][ab]+3}], v{vFB[kk]} offset:{(st&1)*8192+4096*ab}'
        aa=lambda ti: f'ds_read_b128 v[{f["A"][ti]}:{f["A"][ti]+3}], v{vFA[kk]} offset:{st*16384+4096*ti}'
        return [aa(0),bb(0),bb(1),aa(1),aa(2),aa(3)]
    g.wait('B0')
    for x in rd(0): g(x)
    vTB=[18,19]
    nT=[i for i,x in enumerate(addr) if f'v_add_u32 v{vT[3]}' in x][0]+1
    pre=([] if PRO else addr[8:nT])+['s_sub_u32 s0, s55, s69',f'v_add_u32 v18, s0, v{vT[0]}',f'v_add_u32 v19, s0, v{vT[1]}']
    if not LATEW:
        for x in pre: g(x)
    if not g.opt.get('trigp2',1):
        trig=trig_ops(0,{1:20,2:21,3:22,5:23,6:30,7:31,9:57,12:2,13:3,14:8,15:9,16:240,17:241,18:242,19:243,20:24,21:25,22:26,23:27})
    g.miscq=([] if PRO else addr[:8]+addr[nT:])+trig
    if PRO: early=[]
    TRS={0:0,1:1,5:2,6:3,9:4,10:5,13:6,14:7}
    DMS={1:[2],2:[3],6:[4],7:[5],10:[6],11:[7,8],12:[9],14:[10],15:[11]}
    if LATEW:
        TRS={4:0,5:1,8:2,9:3,11:4,12:5,14:6,15:7}
        DMS={1:[0,1],5:[2],6:[3],9:[4],10:[5],11:[6,7],12:[8],13:[9]}
        g.miscq=early+pre+g.miscq
    for n in range(16):
        f=fr(n&1)
        def mf(ti,ab):
            d=ACC+32*ti+16*ab
            g(f'{MF} v[{d}:{d+15}], v[{f["A"][ti]}:{f["A"][ti]+3}], v[{f["B"][ab]}:{f["B"][ab]+3}], '+(f'v[{d}:{d+15}]' if n else '0'))
        nx=rd(n+1) if n<15 else []
        if n%2==0: g.stamp('dm')
        g('s_waitcnt lgkmcnt(0)'); mf(0,0)
        if n==3: g.sideq+=bops(2)
        if n==7: g.sideq+=bops(3)
        if LATEW and n==1:
            while any(x in g.miscq for x in early): misc(g,1)
        if LATEW and n==4:
            while any(x in g.miscq for x in pre): misc(g,1)
        if n==8:
            assert 'a0' not in g.vm
            while len(g.miscq)>len(trig): misc(g,1)
            g('s_barrier')
            g.miscq+=[f'v_and_b32 v2, 3, v0',f'v_lshrrev_b32 v3, 5, v0',f'v_lshlrev_b32 v3, 4, v3',f'v_lshl_add_u32 v2, v2, 7, v3',f'v_add_u32 v2, s13, v2',
                      f'v_and_b32 v3, 28, v0',f'v_cmp_eq_u32 vcc, 0, v3',f'v_mov_b32 v3, {OOB}','s_nop 0',f'v_cndmask_b32 v2, v3, v2, vcc']
        if n==9:
            misc(g,9999)
            g.sideq+=[(lambda q=q: g.vmem(f'buffer_load_dwordx4 v[{[20,24,28,240][q]}:{[20,24,28,240][q]+3}], v2, s[40:43], 0 offen offset:{32*q} sc1','al')) for q in range(4)]
        if n==15:
            g.wait('al')
            g.miscq+=[f'v_cvt_pk_bf16_f32 v{20+i}, v{20+2*i}, v{21+2*i}' for i in range(4)]+[f'v_cvt_pk_bf16_f32 v28, v28, v29','v_cvt_pk_bf16_f32 v29, v30, v31','v_cvt_pk_bf16_f32 v30, v240, v241','v_cvt_pk_bf16_f32 v31, v242, v243']
        for pr in DMS.get(n,[]): g.sideq+=wd(pr)
        if (n+1)%4==0 and n<15: g.wait(f'B{(n+1)>>2}')
        for x in nx[:3]: g(x)
        mf(0,1)
        for x in nx[3:]: g(x)
        mf(1,0)
        trq=[]
        if n in TRS:
            assert not any(True for op in g.sideq if getattr(op,'pr',None)==TRS[n])
            g.wait(f'w{TRS[n]}'); trq=w2_trl(TRS[n],vTB,wl[TRS[n]])
        for k,(ti,ab) in enumerate(((1,1),(2,0),(2,1),(3,0),(3,1))):
            if trq and k>=3:
                for x in trq[:4]: g(x)
                trq=trq[4:]
            else:
                had=bool(g.sideq); g.side(); misc(g,2 if had else 4)
            mf(ti,ab)
        had=bool(g.sideq); g.side(); misc(g,2 if had else 4)
    g.stamp(); g.stamp('s1'); g.stamp('dm')
    if LATEW: g.flush_side(); g.sideq+=wd(10)+wd(11)+[lambda: g('s_waitcnt lgkmcnt(0)')]
    g.sideq+=wd(12)+wd(13)
    def trop(pr):
        def op():
            g.wait(f'w{pr}')
            for x in w2_trl(pr,vTB,wl[pr])[:4]: g(x)
        def op2():
            for x in w2_trl(pr,vTB,wl[pr])[4:]: g(x)
        return [op,op2]
    NJ=g.opt.get('nj',4)
    for pr in range(8,min(12,14-NJ)): g.sideq+=trop(pr)
    g.sideq+=[lambda: [misc(g,1) for _ in range(len(g.miscq)-len(trig))]]
    def zc(ti):
        Z=[32,216][ti&1]; L=[]
        for ab in range(2):
            d=ACC+32*ti+16*ab
            for i in range(8): L.append(f'v_cvt_pk_bf16_f32 v{Z+8*ab+i}, v{d+2*i}, v{d+2*i+1}')
        return L
    for x in zc(0): g(x)
    for ti in range(4):
        Z=[32,216][ti&1]
        za=[Z,Z+4]; zb=[Z+8,Z+12]; ur=ACC+32*ti; ui=ur+16
        nxt=zc(ti+1) if ti<3 else []
        seq=[(ur,CC[0],za[0],1),(ui,CC[0],zb[0],1),(ur,CC[1],za[1],0),(ui,CC[1],zb[1],0),(ur,SS[0],zb[0],0),(ui,NS[0],za[0],0),(ur,SS[1],zb[1],0),(ui,NS[1],za[1],0)]
        for n,(d,am,bm,first) in enumerate(seq):
            g(f'{MF} v[{d}:{d+15}], v[{am}:{am+3}], v[{bm}:{bm+3}], '+('0' if first else f'v[{d}:{d+15}]'))
            for x in nxt[2*n:2*n+2]: g(x)
            had=bool(g.sideq); g.side(); misc(g,(0 if had else 2)+(0 if nxt else 2))
    g.stamp('s1')
    g.flush_side(); misc(g,9999)
    g.stamp('s1')
    for op in xb2_ops(g): op()
    for pr in (12,13):
        if pr<14-NJ:
            for op in trop(pr): op()
    for k in range(NJ//2): g(f'v_add_u32 v{vJ[k][0]}, {wl[12-2*k]}, v{vTB[0]}\nv_add_u32 v{vJ[k][1]}, {wl[12-2*k]}, v{vTB[1]}')
    g.stamp('s1')
    srd(g,36,28,4<<20,add=U_OFF)
    g(f'''v_and_b32 v24, 31, v0
    v_lshrrev_b32 v25, 5, v0
    v_lshlrev_b32 v24, 4, v24
    v_lshl_add_u32 v24, v25, 18, v24
    s_lshl_b32 s53, s3, 9
    v_add_u32 v24, s53, v24
    s_lshl_b32 s53, s48, 1
    s_add_u32 s53, s53, s49
    s_lshl_b32 s53, s53, 11''')
    for r in range(16):
        o=32+4*(r&3)
        for ti in range(4): g(f'v_cvt_pk_bf16_f32 v{o+ti}, v{ACC+32*ti+r}, v{ACC+32*ti+16+r}')
        g(f's_add_u32 s54, s53, {(8*(r>>2)+(r&3))*65536}')
        g.vmem(f'buffer_store_dwordx4 v[{o}:{o+3}], v24, s[36:39], s54 offen sc1','st')
        if r<4:
            d,am,bm,first=((224,20,CC[0],1),(240,20,NS[0],1),(224,28,CC[1],0),(240,28,NS[1],0))[r]
            g(f'{MF} a[{d}:{d+15}], v[{am}:{am+3}], v[{bm}:{bm+3}], '+('0' if first else f'a[{d}:{d+15}]'))
        if r==6:
            for i in range(4): g(f'v_accvgpr_read_b32 v{48+2*i}, a{224+i}\nv_accvgpr_read_b32 v{49+2*i}, a{240+i}')
            g(f'''s_lshl_b32 s0, s48, 12
            s_add_u32 s0, s0, 0x200000
            s_lshl_b32 s1, s49, 2
            s_add_u32 s1, s1, s3
            s_cmp_eq_u32 s1, 1
            s_cselect_b32 s0, s0, {OOB}
            v_lshl_add_u32 v2, v0, 4, s0
            v_mov_b32 v3, {OOB}
            v_cmp_gt_u32 vcc, 32, v0''')
            for i in range(4): g(f'v_cvt_pk_bf16_f32 v{28+i}, v{48+2*i}, v{49+2*i}')
            g('v_cndmask_b32 v2, v3, v2, vcc')
            g.vmem('buffer_store_dwordx4 v[28:31], v2, s[36:39], 0 offen sc1','st')
    g.stamp(); g.stamp('s1')
    g('v_mov_b32 v2, s47')
    g.vmem(f'buffer_load_dword v3, v{vPL}, s[40:43], 0 offen sc1','poll')
    def sig():
        g.wait('poll')
        g.stamp('s1')
        g('s_waitcnt lgkmcnt(0)\ns_barrier')
        if not g.opt.get('dlate',0): g(f'buffer_store_dword v2, v{vSG}, s[40:43], 0 offen sc1')
    if g.opt.get('dsig',1): g.dsig=sig
    else: sig()
    g('s_lshl_b32 s53, s3, 12')
    for d in (1,2,3): g(f's_add_u32 s{5+d}, s53, {(d-1)*16384}\ns_xor_b32 s{8+d}, s{5+d}, {d*4096}')
    g('s_lshr_b32 s12, s53, 1\ns_add_u32 s12, s12, 49152')

def p2(g, role):
    M=(role=='m') and g.opt.get('merge',0)
    X=role
    ACC=64; ACS=128; UF=144
    XS=32768+4096
    HR=[16+8*i for i in range(5)]+[192+8*i for i in range(5)]
    NH=len(HR)
    g.stamp(); g.stamp('tail')
    srd(g,36,28,7340032); srd(g,32,28,4<<20,add=U_OFF); srd(g,72,24,2097152)
    g(f'''s_sub_u32 s62, 32, s71
    s_and_b32 s62, s62, 31
    s_cmp_lt_u32 s70, 4
    s_cselect_b32 s62, s71, s62
    s_lshl_b32 s62, s62, 16
    v_mov_b32 v185, 0
    v_mov_b32 v186, 0
    v_mov_b32 v187, 0
    v_mov_b32 v188, 0x3f80
    v_cmp_gt_u32 vcc, 32, v0
    v_mov_b32 v189, 0
    v_mov_b32 v190, 0
    v_cndmask_b32 v188, 0, v188, vcc
    v_mov_b32 v191, 0
    s_mul_i32 s57, s71, 112
    s_mul_i32 s53, s3, 28
    s_add_u32 s57, s57, s53
    s_lshl_b32 s57, s57, 11
    s_add_u32 s59, s57, {28*2048}
    s_lshl_b32 s53, s44, 12
    s_add_u32 s58, s57, s53
    v_mov_b32 v2, s47
    s_mov_b32 s56, {SPIN}''')
    for d in (1,2,3):
        g(f'v_lshl_add_u32 v{9+d}, v0, 4, s{5+d}')
    g(f'v_mov_b32 v9, v{vFL}')
    if M:
        NW=g.nw; ops=[]
        for pr in range(NW,8): ops+=w2_pair_ops(g,pr)
        t01=w2_trl(0)+w2_trl(1)
        for n,op in enumerate(ops):
            op()
            if n==3: g.wait('w1')
            if n>=3 and t01:
                for x in t01[:2]: g(x)
                del t01[:2]
        for x in t01: g(x)
        g.vmem(f'buffer_load_dword v3, v{vPL}, s[40:43], 0 offen sc1','poll')
        for pr in (8,9):
            for op in w2_pair_ops(g,pr): op()
        g.wait('poll')
    if role=='d' and g.opt.get('dsig',1): g.dsig()
    PD=g.opt.get('pdepth',3)
    if PD>1 and not M:
        ld=lambda r: f'buffer_load_dword v{r}, v{vPL}, s[40:43], 0 offen sc1'
        SL=g.opt.get('psl',3)
        if role=='m': g(ld(3)+f'\nv_mov_b32 v184, v{vB2}\ns_waitcnt vmcnt(0)')
        else: g(f'v_mov_b32 v184, v{vB2}')
        g('v_cmp_ne_u32 vcc, s47, v3\ns_cbranch_vccnz L_pslow\nL_go:')
        R=[3,4,5,6][:PD]
        t='L_pslow:\n'
        for r in R[:-1]: t+=ld(r)+f'\ns_sleep {SL}\n'
        t+='L_poll:\n'
        for k in range(PD):
            t+=ld(R[(k-1)%PD])+f'\ns_waitcnt vmcnt({PD-1})\nv_cmp_ne_u32 vcc, s47, v{R[k]}\ns_cbranch_vccz L_go\ns_sleep {g.opt.get("psl2",1)}\n'
        t+='s_sub_u32 s56, s56, 1\ns_cbranch_scc0 L_poll\ns_branch L_go'
        ool(g,t)
    else:
        if role=='m' and not M: g(f'L_poll:\nbuffer_load_dword v3, v{vPL}, s[40:43], 0 offen sc1\nv_mov_b32 v184, v{vB2}\ns_waitcnt vmcnt(0)')
        else: g(f'v_mov_b32 v184, v{vB2}\nL_poll:')
        g('v_cmp_ne_u32 vcc, s47, v3\ns_cbranch_vccnz L_pslow\nL_go:')
        ool(g,f'''L_pslow:
        s_sleep {g.opt.get('sleep',4)}
        '''+('' if (role=='m' and not M) else f'buffer_load_dword v3, v{vPL}, s[40:43], 0 offen sc1\ns_waitcnt vmcnt(0)\n')+'''s_sub_u32 s56, s56, 1
        s_cbranch_scc0 L_poll
        s_branch L_go''')

    if not M: g.vm=['old']*30
    g.stamp(); g.stamp('tail')
    hidx=[0]
    def hload():
        ks=hidx[0]; r=HR[ks%NH]
        g.vmem(f'buffer_load_dwordx4 v[{r}:{r+3}], v{vH0}, s[36:39], s58 offen offset:{2048*(ks&1)} {g.opt.get("hld","sc1").replace("none","")}',f'h{ks}')
        g.vmem(f'buffer_load_dwordx4 v[{r+4}:{r+7}], v{vH1}, s[36:39], s58 offen offset:{2048*(ks&1)} {g.opt.get("hld","sc1").replace("none","")}',f'h{ks}')
        if ks&1 and ks<27: g('s_add_u32 s58, s58, 4096\ns_cmp_eq_u32 s58, s59\ns_cselect_b32 s58, s57, s58')
        hidx[0]+=1
    HD=g.opt.get('hdepth',8)
    g(f's_waitcnt lgkmcnt(0)\ns_mov_b32 s55, 0x80000')
    for i in range(HD):
        hload()
        if role=='d' and g.opt.get('dlate',0) and i==g.opt.get('dlate',0)*4-1: g.vmem(f'buffer_store_dword v2, v{vSG}, s[40:43], 0 offen sc1','sig')
    g(f'{MF} v[{ACC}:{ACC+15}], v[184:187], v[188:191], 0')
    XA=[236,237,238,239]
    xa=Rec()
    xa(f'''v_and_b32 v236, 31, v0
    v_lshrrev_b32 v237, 5, v0
    v_lshlrev_b32 v237, 3, v237
    v_lshl_add_u32 v237, v236, 6, v237
    v_bfe_u32 v236, v0, 2, 2
    v_lshl_add_u32 v236, v236, 4, v237
    v_add_u32 v236, s12, v236
    v_xor_b32 v237, 16, v236
    v_xor_b32 v238, 32, v236
    v_xor_b32 v239, 48, v236
    v_lshl_add_u32 v240, v0, 4, s12''')
    KF=g.opt.get('kflag',11)
    NL=g.opt.get('nlast',3)
    def mf(ks,a_,b):
        r=HR[ks%NH]; d=ACC+16*(a_+2*b)
        c='0' if (ks==0 and (a_ or b)) else f'v[{d}:{d+15}]'
        g(f'{MF} v[{d}:{d+15}], a[{8*ks+4*a_}:{8*ks+4*a_+3}], v[{r+4*b}:{r+4*b+3}], {c}')
    checked=False
    NJ=g.opt.get('nj',4)
    jit=[x for pr in range(14-NJ,14) for x in w2_trl(pr,vJ[(13-pr)>>1],4096*(pr&1))]
    late=[]
    if M:
        jit=[x for pr in range(2,14) for x in w2_trl(pr)]
        for pr in range(10,14): late+=w2_pair_ops(g,pr)
    g.miscq=xa.l+(trig_ops(0) if g.opt.get('trigp2',1) else [])
    for ks in range(28-NL):
        g.wait(f'h{ks}')
        if NJ and ks==16 and not M: g('s_waitcnt lgkmcnt(0)')
        if M and ks>=4 and ks%2==0: g('s_waitcnt lgkmcnt(8)')
        if M and ks>=16 and ks%2==0 and ks<=22: g.wait(f'w{ks//2+2}')
        if ks==0:
            g.stamp()
        for b in range(2):
            for a_ in range(2):
                mf(ks,a_,b)
                if a_==0 and b==0 and (ks>=1 or M) and jit:
                    for x in jit[:4]: g(x)
                    del jit[:4]
                elif a_==1 and b==0 and late:
                    late.pop(0)(); late.pop(0)()
                elif not (a_==1 and b==1): misc(g,g.opt.get('p2misc',6 if M else 4))
            if b==0 and g.sideq: g.side()
        if hidx[0]<28: hload()
        elif g.sideq: g.side()
        if ks==(10 if M else 2):
            g('s_mov_b32 m0, s12')
            g.vmem(f'buffer_load_dwordx4 v{vXO}, s[76:79], 0 offen lds','xl')
            g('s_add_u32 m0, m0, 1024')
            g.vmem(f'buffer_load_dwordx4 v{vXO}, s[76:79], s55 offen lds','xl')
        if ks==(24 if M else 22):
            assert 'xl' not in g.vm
            for q in range(4): g(f'ds_read_b64 v[{XR+2*q}:{XR+2*q+1}], v{XA[q]}')
        if ks==KF: g.vmem(f'buffer_load_dword v176, v9, s[40:43], 0 offen sc1','fl')
        if 'fl' not in g.vm and ks>KF and not checked:
            checked=True
            g(f'''L_chk:
            v_cmp_ne_u32 vcc, s47, v176
            s_cbranch_vccnz L_uslow
            L_allset:''')
            ool(g,'''L_uslow:
            s_sleep 8
            buffer_load_dword v176, v9, s[40:43], 0 offen sc1
            s_waitcnt vmcnt(0)
            s_sub_u32 s56, s56, 1
            s_cbranch_scc0 L_chk
            s_branch L_allset''')
            def mku(j):
                def op():
                    g(f's_add_u32 s53, s62, {8192*j}')
                    g.vmem(f'buffer_load_dwordx4 v[{UF+4*j}:{UF+4*j+3}], v{vU}, s[32:35], s53 offen sc1','u')
                return op
            g.sideq+=[mku(j) for j in range(8)]
    assert checked
    if g.miscq: print('p2',role,'misc left',len(g.miscq),file=sys.stderr)
    misc(g,9999)
    g.flush_side()
    if M: g('s_waitcnt lgkmcnt(4)')
    XF=176
    def wr(d):
        for q in range(4):
            r=ACC+16*d+4*q
            g(f'ds_write_b128 v{9+d}, v[{r}:{r+3}] offset:{1024*q}')
    assert NL==3
    wl_=lambda d: [f'ds_write_b128 v{9+d}, v[{ACC+16*d+4*q}:{ACC+16*d+4*q+3}] offset:{1024*q}' for q in range(4)]
    unp=[x for i in range(8) for x in (f'v_lshlrev_b32 v{XF+2*i}, 16, v{XR+i}',f'v_and_b32 v{XF+2*i+1}, s63, v{XR+i}')]
    fill={3:[['s_mov_b32 s63, 0xffff0000'],[],['s_waitcnt lgkmcnt(0)']+unp[:3]],
          2:[unp[3:8],unp[8:12],unp[12:16]],
          1:[wl_(3)[:2],wl_(3)[2:],[f's_mov_b32 s60, {f2u(-math.log2(math.e)):#x}','s_mov_b32 s61, s60','s_mov_b32 s62, 1.0','s_mov_b32 s63, 1.0']],
          0:[[],wl_(2)[:2],wl_(2)[2:]]}
    for d in (3,2,1,0):
        for n,ks in enumerate(range(25,28)):
            g.wait(f'h{ks}')
            mf(ks,d&1,d>>1)
            for x in fill[d][n]: g(x)
    g.stamp()
    def smm(j): g(f'{MF} v[{ACS}:{ACS+15}], v[{UF+4*j}:{UF+4*j+3}], a[{224+4*j}:{227+4*j}], '+('0' if j==0 else f'v[{ACS}:{ACS+15}]'))
    g.waitall()
    smm(0)
    for x in wl_(1)[:2]: g(x)
    smm(1)
    for x in wl_(1)[2:]: g(x)
    SB=g.opt.get('sbar',3)
    for j in range(2,SB): smm(j)
    for d in (1,2,3): g(f'v_lshl_add_u32 v{9+d}, v0, 4, s{8+d}')
    g('s_waitcnt lgkmcnt(0)\ns_barrier')
    rds=[f'ds_read_b128 v[{[192,208,16][d]+4*q}:{[192,208,16][d]+4*q+3}], v{10+d} offset:{1024*q}' for q in range(4) for d in range(3)]
    for j in range(max(SB,2),8):
        smm(j)
        for x in rds[:4]: g(x)
        del rds[:4]
    for x in rds: g(x)
    if role=='m':
        g('s_lshl_b32 s1, s2, 2\ns_add_u32 s1, s1, s3\ns_cmp_eq_u32 s1, 803\ns_cbranch_scc1 L_ep0\nL_noep0:')
        ool(g,'''L_ep0:
        v_lshrrev_b32 v4, 2, v0
        v_and_b32 v5, 3, v0
        v_lshl_add_u32 v4, v4, 3, v5
        v_lshlrev_b32 v4, 8, v4
        buffer_load_dwordx4 v[6:9], v4, s[40:43], 0 offen sc1
        s_branch L_noep0''')
    T=80
    for hf in range(2):
        g(f's_waitcnt lgkmcnt({6-4*hf})')
        I=range(4*hf,4*hf+4)
        for i in I: g(f'v_pk_add_f32 v[{192+2*i}:{193+2*i}], v[{192+2*i}:{193+2*i}], v[{208+2*i}:{209+2*i}]')
        for i in I: g(f'v_pk_add_f32 v[{ACC+2*i}:{ACC+2*i+1}], v[{ACC+2*i}:{ACC+2*i+1}], v[{16+2*i}:{17+2*i}]')
        for i in I: g(f'v_pk_add_f32 v[{ACC+2*i}:{ACC+2*i+1}], v[{ACC+2*i}:{ACC+2*i+1}], v[{192+2*i}:{193+2*i}]')
        for i in I: g(f'v_pk_mul_f32 v[{T+2*i}:{T+2*i+1}], v[{ACC+2*i}:{ACC+2*i+1}], s[60:61]')
        for i in I: g(f'v_exp_f32 v{T+2*i}, v{T+2*i}\nv_exp_f32 v{T+2*i+1}, v{T+2*i+1}')
        for i in I: g(f'v_pk_add_f32 v[{T+2*i}:{T+2*i+1}], v[{T+2*i}:{T+2*i+1}], s[62:63]')
        for i in I: g(f'v_rcp_f32 v{T+2*i}, v{T+2*i}\nv_rcp_f32 v{T+2*i+1}, v{T+2*i+1}')
        sp=lambda r: ACS+4*(2*(r>>3)+(r&1))+2*((r>>2)&1)+((r>>1)&1)
        for i in I:
            for r in (2*i,2*i+1): g(f'v_mul_f32 v{ACC+r}, v{ACC+r}, v{sp(r)}')
        for i in I: g(f'v_pk_fma_f32 v[{T+2*i}:{T+2*i+1}], v[{T+2*i}:{T+2*i+1}], v[{ACC+2*i}:{ACC+2*i+1}], v[{XF+2*i}:{XF+2*i+1}]')
        for i in I: g(f'v_cvt_pk_bf16_f32 v{96+i}, v{T+2*i}, v{T+2*i+1}')
        for q in (2*hf,2*hf+1): g(f'ds_write_b64 v{XA[q]}, v[{96+2*q}:{97+2*q}]')
    g('s_waitcnt lgkmcnt(0)\nds_read_b128 v[104:107], v240\nds_read_b128 v[108:111], v240 offset:1024\ns_waitcnt lgkmcnt(1)')
    g(f'buffer_store_dwordx4 v[104:107], v{vXO}, s[72:75], 0 offen {g.opt.get("outfl","")}\ns_waitcnt lgkmcnt(0)\nbuffer_store_dwordx4 v[108:111], v{vXO}, s[72:75], s55 offen {g.opt.get("outfl","")}')
    if role=='m':
        g('s_cmp_eq_u32 s1, 803\ns_cbranch_scc1 L_ep1\nL_noep:')
        ool(g,f'''L_ep1:
        s_waitcnt vmcnt(2)
        L_ep:
        v_xor_b32 v6, s47, v6
        v_xor_b32 v7, s47, v7
        v_xor_b32 v8, s47, v8
        v_xor_b32 v9, s47, v9
        v_or3_b32 v6, v6, v7, v8
        v_or_b32 v6, v6, v9
        v_cmp_ne_u32 vcc, 0, v6
        s_cbranch_vccz L_epok
        s_sleep 8
        buffer_load_dwordx4 v[6:9], v4, s[40:43], 0 offen sc1
        s_waitcnt vmcnt(0)
        s_sub_u32 s56, s56, 1
        s_cbranch_scc0 L_ep
        L_epok:
        v_mov_b32 v3, {EPO}
        s_mov_b64 exec, 1
        buffer_store_dword v2, v3, s[40:43], 0 offen sc1
        s_mov_b64 exec, -1
        s_branch L_noep''')
    g.stamp()

DOC=""";
;   224 MLP workgroups: 128 rows x 128 hidden columns of gelu(LN(LN(x)) @ w1 + b1). The GEMM runs on raw x; both LayerNorms are
;     folded into one extra K-step (-mean * colsum(w1) + b1 / rstd) and a per-row scale. h goes to d_ws in MFMA fragment order.
;     butterfly + normalisation, half-size hidden DFT against the dft_hid tables, DFT-32 along the sequence (s = 64*s1 + s2) -> U.
;     Bins above 256 follow from the Hermitian symmetry; bin 0 is the residue left by the bf16-rounded mean.
; Hand-offs between workgroups: write-through stores, drained, then flag words / tagged granules holding a per-launch tag that is
; derived from an epoch word in d_ws (advanced once every workgroup has read it), so older launches' words never match.
"""
def build(stamps=False, opt=None):
    global vTm0,vTm1
    if (opt or {}).get('merge',0): vTm0,vTm1=241,242
    g=G(stamps,opt); g.miscq=[]; g.outofline=[]
    def sfx(L,x): return [re.sub(r'\b(L_go|L_poll|L_pslow|L_ep0|L_ep1|L_chk|L_uslow|L_allset|L_noep0|L_noep|L_epok|L_ep)\b', r'\1_'+x, l) for l in L]
    entry(g)
    head=list(g.a.l); vm0=list(g.vm); n0=g.nst
    g.a.l=[]; p1_mlp(g); mlp=list(g.a.l)
    oo=g.outofline; g.outofline=[]
    g.a.l=[]; p2(g,'m'); g.dump_stamps(TS_OFF); mlp+=sfx(g.a.l,'m')+['    s_endpgm']; oo+=sfx(g.outofline,'m'); g.outofline=[]
    g.a.l=[]; g.vm=list(vm0); g.nst=n0; g.miscq=[]
    p1_dft(g); dft=list(g.a.l)
    k=[i for i,x in enumerate(dft) if '@@SPLIT@@' in x][0]
    g.a.l=[]; p2(g,'d'); g.dump_stamps(TS_OFF); dft+=sfx(g.a.l,'d'); oo+=sfx(g.outofline,'d')
    km=[i for i,x in enumerate(mlp) if '@@SPLIT@@' in x][0]
    lines=head+mlp[:km]+['    s_branch L_mlp','L_dfte:']+dft[:k]+['    s_branch L_dft','L_mlp:']+mlp[km+1:]+['L_dft:']+dft[k+1:]+['L_end:','    s_endpgm']+oo+['L_codeend:']
    body='\n'.join(hazard.fix(lines))+'\n'
    txt=wrap([dict(name=KN,body=body,grid=256,block=256,lds=163840,vgpr=512,accum=256)],HDR)
    return txt.replace('.amdgcn_target',DOC+'.amdgcn_target',1)
if __name__=='__main__':
    out=sys.argv[1]; st='stamps' in sys.argv[2:]
    opt={}
    for a in sys.argv[2:]:
        if '=' in a:
            k,v=a.split('='); opt[k]=int(v) if v.lstrip('-').isdigit() else v
    open(out,'w').write(build(st,opt))
```

```python
import sys, math, struct, re
sys.path.insert(0,'tools')
from asmlib import A, wrap, KN
import hazard
from gen3 import G, srd, t1_of, f2u, HDR, U_OFF, ST_OFF, CS_REL, TS_OFF, SPIN

F_OFF = 12<<20
F2 = 8192
FU=32768; EPO=40960
A0_REL=(ST_OFF-F_OFF)+(512<<10)
WT_OFF = 14<<20
vB2, vXO = 254, 255
vD=[226+i for i in range(0)]
vDM=[246,247,248,249]
vT=[250,251,252,253]
XR=246
vSG,vH0,vH1,vU,vFL,vPL = 58,59,60,61,62,63
vTT=245
MF='v_mfma_f32_32x32x16_bf16'
OOB='0x40000000'

class Rec:
    def __init__(s): s.l=[]
    def __call__(s,t):
        for x in t.split('\n'):
            x=x.strip()
            if x: s.l.append(x)
def ool(g, text):
    g.outofline+=[x.strip() if x.strip().endswith(':') else '    '+x.strip() for x in text.split('\n') if x.strip()]
def misc(g, n):
    while n>0 and g.miscq:
        x=g.miscq.pop(0); g(x)
        n-= x.count('\n')+1 + (1 if ('v_cos' in x or 'v_sin' in x) else 0)
def epoch_load(g):
    g(f's_add_u32 s60, s28, {F_OFF+EPO}\ns_addc_u32 s61, s29, 0\ns_load_dword s47, s[60:61], 0')
def nonce(g):
    g('s_mul_i32 s47, s47, 0x9e3779b1\ns_add_u32 s47, s47, 0x85ebca6b')

def p2_setup_ops(g, dft):
    r=Rec(); t=lambda i:f'v{1000+i}'
    if g.opt.get('dmix',1):
        if dft: r('s_mul_i32 s31, s31, 9')
        else:
            for v in (1,2,3): r.l.append(f's_cmp_eq_u32 s31, {9*v}\ns_cselect_b32 s31, {v}, s31')
    if g.opt.get('p2arr',84)==48:
        r('''s_and_b32 s70, s31, 7
        s_lshr_b32 s0, s31, 4
        s_lshl_b32 s1, s30, 1
        s_add_u32 s45, s0, s1
        s_bfe_u32 s1, s31, 0x10003''')
    else:
        r('''s_and_b32 s70, s30, 1
        s_lshl_b32 s70, s70, 2
        s_lshr_b32 s0, s31, 2
        s_add_u32 s0, s0, s31
        s_and_b32 s0, s0, 3
        s_add_u32 s70, s70, s0
        s_lshr_b32 s45, s30, 1
        s_lshl_b32 s45, s45, 2
        s_lshr_b32 s0, s31, 3
        s_add_u32 s45, s45, s0
        s_bfe_u32 s1, s31, 0x10002''')
    r.l.append('s_sub_u32 s0, 32, s45\ns_cmp_eq_u32 s45, 0\ns_cselect_b32 s0, 16, s0\ns_cmp_eq_u32 s1, 0\ns_cselect_b32 s71, s45, s0')
    wr=g.opt.get('wrot',3)
    if wr==0: r('s_mov_b32 s44, 0')
    elif wr==1: r('s_mul_i32 s44, s30, 7\ns_lshr_b32 s44, s44, 2')
    elif wr==3: r('s_lshr_b32 s44, s31, 2\ns_mul_i32 s44, s44, 7\ns_lshr_b32 s44, s44, 2')
    elif wr==5: r('s_lshr_b32 s44, s31, 2\ns_max_u32 s44, s44, 1\ns_sub_u32 s44, s44, 1\ns_lshl_b32 s44, s44, 1')
    elif wr==4: r('s_lshr_b32 s44, s31, 3\ns_mul_i32 s44, s44, 7\ns_lshr_b32 s44, s44, 1')
    elif wr==2: r('s_lshr_b32 s44, s30, 1\ns_mul_i32 s44, s44, 7\ns_lshr_b32 s44, s44, 1')
    ho={0:None,1:(1,7),2:(1,4),3:(3,3),4:(3,1),5:(1,2)}[g.opt.get('hoff',0)]
    if ho:
        r.l.append(f's_and_b32 s0, s70, {ho[0]}\ns_mul_i32 s0, s0, {ho[1]}\ns_add_u32 s44, s44, s0\ns_cmp_ge_u32 s44, 14\ns_cselect_b32 s0, 14, 0\ns_sub_u32 s44, s44, s0'.replace('{ho[0]}',str(ho[0])) )
    r(f'''s_lshl_b32 s68, s44, 15
    s_lshl_b32 s69, s3, 13
    v_lshrrev_b32 {t(4)}, 3, v0
    v_bfe_u32 {t(5)}, v0, 4, 1
    v_lshlrev_b32 {t(6)}, 2, {t(5)}
    v_and_b32 {t(7)}, 7, v0
    v_xor_b32 {t(6)}, {t(6)}, {t(7)}
    v_lshlrev_b32 {t(6)}, 4, {t(6)}
    v_lshl_add_u32 {t(6)}, {t(4)}, 10, {t(6)}
    s_mul_i32 s0, s3, {448*1024}
    s_lshl_b32 s1, s70, 7
    s_add_u32 s0, s0, s1
    v_add_u32 v{vDM[0]}, s0, {t(6)}
    v_add_u32 v{vDM[1]}, {7168}, v{vDM[0]}
    v_add_u32 v{vDM[2]}, {2*7168}, v{vDM[0]}
    v_add_u32 v{vDM[3]}, {3*7168}, v{vDM[0]}''')
    srd(r,64,20,1792*512*2)
    early=r.l; r=Rec()
    srd(r,72,22,1024); srd(r,76,4,2097152)
    r(f'''v_lshrrev_b32 {t(4)}, 5, v0
    v_bfe_u32 {t(5)}, v0, 4, 1
    v_bfe_u32 {t(6)}, v0, 2, 2
    v_lshl_add_u32 {t(7)}, {t(4)}, 2, {t(6)}
    v_lshlrev_b32 {t(7)}, 7, {t(7)}
    v_lshrrev_b32 {t(6)}, 1, {t(6)}
    s_and_b32 s0, s3, 1
    v_xor_b32 {t(6)}, s0, {t(6)}
    v_lshl_add_u32 {t(7)}, {t(6)}, 6, {t(7)}
    v_lshl_add_u32 {t(7)}, {t(5)}, 5, {t(7)}
    v_and_b32 {t(6)}, 3, v0
    v_lshl_add_u32 {t(7)}, {t(6)}, 3, {t(7)}
    v_add_u32 v{vT[0]}, s69, {t(7)}
    v_xor_b32 v{vT[1]}, 64, v{vT[0]}
    v_add_u32 v{vT[2]}, 0x18000, v{vT[0]}
    v_add_u32 v{vT[3]}, 0x18000, v{vT[1]}
    s_and_b32 s0, s30, {g.opt.get('urep',2)-1}
    s_lshl_b32 s0, s0, 9
    s_add_u32 s0, s0, {FU}
    v_and_b32 {t(7)}, 31, v0
    v_lshl_add_u32 v{vFL}, {t(7)}, 2, s0
    s_lshl_b32 s0, s45, 1
    s_and_b32 s1, s30, {g.opt.get('hrep',2)-1}
    s_add_u32 s0, s0, s1
    s_lshl_b32 s0, s0, 2
    s_add_u32 s0, s0, s3
    s_lshl_b32 s0, s0, 8
    v_and_b32 {t(6)}, 3, v0
    v_lshl_add_u32 v{vPL}, {t(6)}, 2, s0
    s_lshr_b32 s1, s3, 1
    s_lshl_b32 s0, s1, 10
    v_lshl_add_u32 v{vH0}, v0, 4, s0
    v_xor_b32 v{vH1}, 0x400, v{vH0}
    s_lshl_b32 s0, s1, 5
    v_and_b32 {t(6)}, 31, v0
    v_add_u32 {t(5)}, s0, {t(6)}
    v_lshlrev_b32 {t(5)}, 5, {t(5)}
    v_add_u32 v{vTT}, s71, {t(5)}
    s_lshl_b32 s0, s0, 15
    s_lshl_b32 s1, s71, 10
    s_add_u32 s1, s1, s0
    v_lshrrev_b32 {t(5)}, 2, v0
    v_lshlrev_b32 {t(5)}, 15, {t(5)}
    v_lshrrev_b32 {t(7)}, 4, v0
    v_xor_b32 {t(7)}, {t(7)}, v0
    v_and_b32 {t(7)}, 3, {t(7)}
    v_lshl_add_u32 {t(5)}, {t(7)}, 4, {t(5)}
    v_add_u32 {t(5)}, s1, {t(5)}
    s_lshl_b32 s0, s70, 7
    s_and_b32 s1, s3, 1
    s_lshl_b32 s1, s1, 6
    s_add_u32 s0, s0, s1
    v_add_u32 v{vXO}, s0, {t(5)}
    v_lshl_add_u32 v{vB2}, {t(6)}, 1, s0
    s_lshr_b32 s0, s0, 1
    v_and_b32 {t(5)}, 20, v0
    v_bfe_u32 {t(7)}, v0, 1, 1
    v_lshl_add_u32 {t(5)}, {t(7)}, 3, {t(5)}
    v_and_b32 {t(7)}, 1, v0
    v_lshl_add_u32 {t(5)}, {t(7)}, 1, {t(5)}
    v_bfe_u32 {t(7)}, v0, 3, 1
    v_add3_u32 {t(6)}, {t(5)}, {t(7)}, s0''')
    r.l.append('s_cmp_lt_u32 s70, 4\ns_cselect_b32 s0, 0, -1\ns_cselect_b32 s1, 0, 513')
    r(f'''v_xor_b32 {t(7)}, s0, {t(6)}
    v_add_u32 {t(7)}, s1, {t(7)}
    v_and_b32 {t(8)}, 1, {t(7)}
    v_lshlrev_b32 {t(8)}, 11, {t(8)}
    v_bfe_u32 {t(7)}, {t(7)}, 1, 7
    v_lshl_add_u32 {t(7)}, {t(7)}, 4, {t(8)}
    v_lshl_add_u32 {t(7)}, {t(4)}, 12, {t(7)}
    s_mul_i32 s0, s71, 65520
    s_sub_u32 s0, 0x200000, s0
    v_add_u32 {t(8)}, s0, {t(7)}
    v_cmp_eq_u32 vcc, 0, {t(6)}
    s_nop 0
    v_cndmask_b32 v{vU}, {t(7)}, {t(8)}, vcc
    v_mov_b32 {t(8)}, {OOB}''')
    if True:
        r.l.append(f's_cmp_eq_u32 s3, 0\ns_cselect_b32 s0, s46, {OOB}')
        if dft:
            r(f'''v_cmp_gt_u32 vcc, {g.opt.get('urep',2)}, v0
            v_lshl_add_u32 {t(10)}, v0, 9, s0
            s_nop 0
            v_cndmask_b32 v{vSG}, {t(8)}, {t(10)}, vcc''')
        else:
            r(f'''v_lshrrev_b32 {t(5)}, 1, v0
            v_mul_u32_u24 {t(6)}, 7, {t(5)}
            v_lshrrev_b32 {t(6)}, 1, {t(6)}
            v_sub_u32 {t(6)}, s49, {t(6)}
            v_and_b32 {t(7)}, 1, v0
            v_lshl_add_u32 {t(7)}, {t(7)}, 2, {t(5)}
            v_cmp_gt_u32 vcc, 4, {t(6)}
            v_lshlrev_b32 {t(7)}, 8, {t(7)}
            v_lshl_add_u32 {t(7)}, {t(6)}, 2, {t(7)}
            v_add_u32 {t(10)}, s0, {t(7)}
            v_cndmask_b32 {t(10)}, {t(8)}, {t(10)}, vcc
            v_and_b32 {t(7)}, {0x38 if g.opt.get('hrep',2)==2 else 0x39}, v0
            v_cmp_eq_u32 vcc, 0, {t(7)}
            s_nop 1
            v_cndmask_b32 v{vSG}, {t(8)}, {t(10)}, vcc''')
    else: r(f'v_mov_b32 v{vSG}, {t(8)}')
    return early, r.l, []
def trig_ops(fract=True, TMX=None):
    r=Rec(); t=lambda i:f'v{1000+i}'
    r.l.append(f's_cmp_lt_u32 s70, 4\ns_cselect_b32 s0, 0, 0x80000000')
    r(f'''s_or_b32 s0, s0, {f2u(1/2048):#x}
    v_mov_b32 {t(5)}, v{vTT}
    v_lshrrev_b32 {t(6)}, 5, v0
    v_cvt_f32_u32 {t(5)}, {t(5)}
    v_cvt_f32_u32 {t(6)}, {t(6)}
    v_mul_f32 {t(5)}, s0, {t(5)}
    v_cmp_gt_u32 s[0:1], 32, v0
    v_mul_f32 {t(6)}, {t(6)}, {t(5)}
    v_mul_f32 {t(7)}, {f2u(32.0):#x}, {t(5)}
    v_add_f32 {t(5)}, {t(5)}, {t(5)}
    v_mul_f32 {t(9)}, 0.5, {t(7)}
    v_cndmask_b32 {t(9)}, {t(7)}, {t(9)}, s[0:1]''')
    for j in range(8):
        if j: r(f'v_add_f32 {t(6)}, {t(6)}, {t(5)}')
        if fract:
            r(f'''v_add_f32 {t(1)}, {t(6)}, {t(7)}
            v_sub_f32 {t(2)}, {t(9) if j==0 else t(7)}, {t(6)}
            v_fract_f32 {t(0)}, {t(6)}
            v_add_f32 {t(3)}, {t(2)}, {t(7)}
            v_fract_f32 {t(1)}, {t(1)}
            v_fract_f32 {t(2)}, {t(2)}
            v_fract_f32 {t(3)}, {t(3)}''')
        else:
            r(f'''v_add_f32 {t(1)}, {t(6)}, {t(7)}
            v_sub_f32 {t(2)}, {t(9) if j==0 else t(7)}, {t(6)}
            v_add_f32 {t(3)}, {t(2)}, {t(7)}''')
        for i in range(4):
            a_=t(i) if (fract or i) else t(6)
            r(f'v_cos_f32 {t(12+2*i)}, {a_}\nv_sin_f32 {t(13+2*i)}, {a_}')
        for i in range(4): r(f'v_cvt_pk_bf16_f32 {t(20+i)}, {t(12+2*i)}, {t(13+2*i)}')
        for i in range(4): r(f'v_accvgpr_write_b32 a{224+4*j+i}, {t(20+i)}')
    TM={0:4,1:5,2:6,3:7,5:13,6:14,7:15,9:8}
    TM.update({12+i:128+i for i in range(8)}); TM.update({20+i:232+i for i in range(4)})
    return remap(r.l,TMX or TM)
def remap(L, TM):
    return [re.sub(r'v(10\d\d)\b', lambda m:'v%d'%TM[int(m.group(1))-1000], x) for x in L]
def xb2_ops(g):
    def o0(): g.vmem(f'buffer_load_ushort v{vB2}, v{vB2}, s[72:75], 0 offen','b2')
    return [o0]
def ppos(pr):
    p=pr%10
    return 131072+p*4096 if p<2 else ((p-2)>>1)*32768+(p&1)*4096
def w2_pair_ops(g, pr, base='s69', lds=None):
    if lds is None: lds=ppos(pr)
    def mk(i):
        def op():
            if i==0: g(f's_add_u32 m0, {base}, {lds}')
            g.vmem(f'buffer_load_dwordx4 v{vDM[i]}, s[64:67], s68 offen offset:{1024*i} lds', f'w{pr}')
            if i==3 and pr<13: g(f's_add_u32 s68, s68, 32768\ns_cmp_eq_u32 s68, {14*32768}\ns_cselect_b32 s68, 0, s68')
        return op
    return [mk(i) for i in range(4)]
def w2_trl(pr, regs=None, off=None):
    if regs is None:
        off=ppos(pr)
        if off>=65536 and off<0x18000: regs=('hi',);
        if off<65536: regs=vT[0:2]
        elif off>=0x18000: regs=vT[2:4]; off-=0x18000
        else: regs=[vTm0,vTm1]; off-=65536
    L=[]
    for k in range(2):
        for a_ in range(2):
            for q in range(2):
                r=8*(2*pr+k)+4*a_+2*q
                L.append(f'ds_read_b64_tr_b16 a[{r}:{r+1}], v{regs[a_]} offset:{off+2048*k+1024*q}')
    return L
vJ=[[241,242],[243,244]]
vTm0,vTm1=14,15

def entry(g):
    g('''s_cmp_ge_u32 s2, 256
    s_cbranch_scc1 L_end''')
    g.stamp()
    g('''s_load_dwordx16 s[4:19], s[0:1], 0
    s_load_dwordx8 s[20:27], s[0:1], 64
    s_load_dwordx2 s[28:29], s[0:1], 96
    v_lshrrev_b32 v1, 6, v0
    s_and_b32 s30, s2, 7
    s_lshr_b32 s31, s2, 3
    v_readfirstlane_b32 s3, v1''')
    if g.opt.get('codepf',1):
        g(f'''s_getpc_b64 s[50:51]
        L_pc:
        s_mul_i32 s53, s31, 1280
        v_lshl_add_u32 v2, v0, 3, s53
        v_min_u32 v2, L_codeend-L_pc-4, v2
        v_mov_b32 v3, s51
        v_add_co_u32 v2, vcc, s50, v2
        v_addc_co_u32 v3, vcc, 0, v3, vcc''')
        g.vmem('global_load_dword v1, v[2:3], off','pf')
    if g.opt.get('p1arr',48)==216:
        g('''v_and_b32 v0, 63, v0
        s_lshl_b32 s48, s30, 1
        s_and_b32 s53, s31, 1
        s_cmp_lt_u32 s31, 4
        s_cbranch_scc1 L_dft0
        s_add_u32 s48, s48, s53
        s_lshr_b32 s49, s31, 1
        s_sub_u32 s49, s49, 2
        s_mov_b32 s100, s53''')
        r=g.opt.get('rot',4)
        if r==1: g('s_lshl_b32 s56, s53, 2\ns_add_u32 s56, s56, s49\ns_and_b32 s56, s56, 7')
        elif r==2: g('s_add_u32 s56, s53, s49\ns_and_b32 s56, s56, 1\ns_lshl_b32 s56, s56, 2')
        elif r==4: g('s_lshl_b32 s56, s53, 1\ns_add_u32 s56, s56, s49\ns_and_b32 s56, s56, 3\ns_lshl_b32 s56, s56, 1')
        if g.opt.get('xph',0): g('s_add_u32 s56, s56, s30\ns_and_b32 s56, s56, 7')
        return
    rot=g.opt.get('rot',4)
    g('''v_and_b32 v0, 63, v0
    s_lshr_b32 s48, s30, 1
    s_lshl_b32 s55, s48, 1
    s_lshl_b32 s48, s48, 2
    s_and_b32 s100, s31, 3
    s_add_u32 s48, s48, s100
    s_lshr_b32 s49, s31, 2
    s_sub_u32 s49, s49, 1
    s_and_b32 s49, s49, 7''') if g.opt.get('dftfirst',1) else g('''v_and_b32 v0, 63, v0
    s_lshr_b32 s48, s30, 1
    s_lshl_b32 s55, s48, 1
    s_lshl_b32 s48, s48, 2
    s_lshr_b32 s100, s31, 3
    s_add_u32 s48, s48, s100
    s_and_b32 s49, s31, 7''')
    if rot==1:   g('s_lshl_b32 s56, s100, 1\ns_add_u32 s56, s56, s49\ns_and_b32 s56, s56, 7')
    elif rot==2: g('s_add_u32 s56, s100, s49\ns_and_b32 s56, s56, 1\ns_lshl_b32 s56, s56, 2')
    elif rot==4: g('s_add_u32 s56, s100, s49\ns_and_b32 s56, s56, 3\ns_lshl_b32 s56, s56, 1')
    elif rot==0: g('s_mov_b32 s56, 0')
    if g.opt.get('xph',0): g('s_add_u32 s56, s56, s55\ns_and_b32 s56, s56, 7')
    g('''s_and_b32 s53, s30, 1
    s_cmp_eq_u32 s49, 7
    s_cbranch_scc1 L_dfte''')

def p1_mlp(g):
    ACC=64
    vX=[2,3,4,5]; vW=[6,7,8,9]; vB=[10,11,12,13]; vA=[18,19]
    vSA,vCA,vCP,vCB=14,15,16,17
    vB1=[56,57]; CSA=164; SEL=168; GA=144; GF=160
    WP=200; vP0,vP1,vPT,vPS,vPF=208,209,210,211,212
    rot=g.opt.get('rot',4)
    A216=g.opt.get('p1arr',48)==216
    if A216:
        g('s_and_b32 s50, s3, 1\ns_lshr_b32 s51, s3, 1\ns_and_b32 s53, s49, 1')
    else:
        g('''s_mul_i32 s54, s53, 7
        s_add_u32 s49, s49, s54
        s_and_b32 s50, s3, 1
        s_lshr_b32 s51, s3, 1''')
    g('s_lshl_b32 s63, s48, 1\ns_add_u32 s63, s63, s53')
    t1_of(g,'s52','s48','s51','s53')
    g(f'''v_lshrrev_b32 v24, 3, v0
    v_lshrrev_b32 v25, 4, v0
    v_and_b32 v28, 7, v0
    v_xor_b32 v26, v28, v25
    v_lshlrev_b32 v26, 4, v26
    v_lshl_add_u32 v26, v24, 15, v26
    s_lshl_b32 s53, s52, 10
    s_lshl_b32 s54, s50, 20
    s_add_u32 s53, s53, s54
    v_add_u32 v{vX[0]}, s53, v26
    v_xor_b32 v27, 64, v{vX[0]}
    v_add_u32 v{vX[1]}, {262144-1024}, v27
    v_add_u32 v{vX[2]}, {2*(262144-1024)}, v{vX[0]}
    v_add_u32 v{vX[3]}, {3*(262144-1024)}, v27
    v_and_b32 v26, 15, v0
    v_lshlrev_b32 v27, 2, v25
    v_xor_b32 v26, v26, v27
    v_lshlrev_b32 v26, 4, v26
    v_mul_u32_u24 v29, 3584, v25
    v_add_u32 v26, v26, v29
    s_mul_i32 s53, s3, 57344
    s_lshl_b32 s54, s49, 8
    s_add_u32 s53, s53, s54
    v_add_u32 v{vW[0]}, s53, v26
    v_add_u32 v{vW[1]}, 13312, v{vW[0]}
    v_add_u32 v{vW[2]}, {2*13312}, v{vW[0]}
    v_add_u32 v{vW[3]}, {3*13312}, v{vW[0]}
    s_lshl_b32 s55, s3, 12''')
    g.stamp('pro')
    g('s_waitcnt lgkmcnt(0)')
    g.stamp('pro')
    srd(g,32,4,2097152); srd(g,36,16,512*1792*2)
    def stage_ops(st):
        slot=st&3
        def mk(i):
            def op():
                if i==0: g(f's_lshl_b32 s57, s56, 7\ns_mul_i32 s58, s56, 229376\ns_add_u32 m0, s55, {slot*32768}')
                if i==4: g(f's_add_u32 m0, s55, {slot*32768+16384}\ns_add_u32 s56, s56, 1\ns_and_b32 s56, s56, 7')
                if i<4: g.vmem(f'buffer_load_dwordx4 v{vX[i]}, s[32:35], s57 offen offset:{1024*i} lds',f's{st}')
                else:   g.vmem(f'buffer_load_dwordx4 v{vW[i-4]}, s[36:39], s58 offen offset:{1024*(i-4)} lds',f's{st}')
            return op
        return [mk(i) for i in range(8)]
    D=g.opt.get('depth',3)
    for op in stage_ops(0): op()
    g.stamp('pro')
    for op in stage_ops(1): op()
    g('@@SPLIT@@')
    g.stamp('pro')
    epoch_load(g)
    g(f'''s_lshl_b32 s46, s48, 11
    v_and_b32 v24, 31, v0
    v_lshrrev_b32 v25, 5, v0
    v_bfe_u32 v26, v0, 1, 3
    v_xor_b32 v26, v26, v25
    s_lshl_b32 s53, s51, 13
    v_lshlrev_b32 v27, 7, v24
    v_add_u32 v27, s53, v27''')
    for kk in range(4):
        g(f'''v_xor_b32 v28, {2*kk}, v26
        v_lshl_add_u32 v{vB[kk]}, v28, 4, v27''')
    g(f'''v_bfe_u32 v26, v0, 2, 2
    v_lshl_add_u32 v27, v25, 3, v26
    v_lshlrev_b32 v27, 8, v27
    s_lshl_b32 s53, s50, 1
    s_add_u32 s53, s53, s51
    v_xor_b32 v26, s53, v26
    v_lshl_add_u32 v27, v26, 6, v27
    v_bfe_u32 v26, v0, 4, 1
    v_and_b32 v28, 3, v0
    v_lshlrev_b32 v30, 3, v28
    v_lshl_add_u32 v30, v26, 5, v30
    s_movk_i32 s59, 0x4000
    v_add3_u32 v{vA[0]}, v27, v30, s59
    v_xor_b32 v{vA[1]}, 64, v{vA[0]}
    v_bfe_u32 v27, v0, 2, 1
    v_xor_b32 v26, v26, v27
    v_or_b32 v26, v26, v28
    v_mov_b32 v27, 0x3f803f80
    v_cmp_eq_u32 vcc, 0, v26
    s_lshl_b32 s53, s53, 5
    v_add_u32 v26, s53, v24
    v_cndmask_b32 v{SEL+4}, 0, v27, vcc
    s_lshl_b32 s54, s49, 7
    v_add_lshl_u32 v{vB1[0]}, v26, s54, 1
    v_xor_b32 v{vB1[1]}, 64, v{vB1[0]}''')
    srd(g,40,18,1792*2)
    for t in range(2): g.vmem(f'buffer_load_ushort v{vB1[t]}, v{vB1[t]}, s[40:43], 0 offen','b1')
    if A216:
        g(f'''s_lshl_b32 s53, s49, 3
        s_lshr_b32 s54, s48, 1
        s_add_u32 s53, s53, s54
        s_lshl_b32 s53, s53, 11
        s_add_u32 s53, s53, {CS_REL+(ST_OFF-F_OFF)}
        v_lshl_add_u32 v{vCA}, v26, 4, s53
        s_lshl_b32 s54, s100, 3
        v_add_u32 v{vCP}, s54, v{vCA}
        v_xor_b32 v{vCB}, 0x200, v{vCA}''')
    else: g(f'''s_lshl_b32 s53, s49, 2
    s_lshr_b32 s54, s48, 2
    s_add_u32 s53, s53, s54
    s_lshl_b32 s53, s53, 12
    s_add_u32 s53, s53, {CS_REL+(ST_OFF-F_OFF)}
    v_lshl_add_u32 v26, v26, 5, s53
    s_lshl_b32 s54, s100, 3
    v_add_u32 v{vCP}, s54, v26
    v_lshl_add_u32 v{vCA}, v25, 4, v26
    v_xor_b32 v{vCB}, 0x400, v{vCA}''')
    g(f'''
    s_lshl_b32 s53, s63, 11
    s_lshl_b32 s54, s51, 10
    s_add_u32 s53, s53, s54
    s_add_u32 s53, s53, {ST_OFF-F_OFF}
    v_lshl_add_u32 v{vSA}, v24, 4, s53
''')
    srd(g,40,28,4<<20,add=F_OFF)
    g.stamp('pro')
    WS0=g.opt.get('wsched','o')
    if D==3 and WS0!='y':
        for op in stage_ops(2): op()
    g.stamp('pro')
    g('s_waitcnt lgkmcnt(0)')
    early,addr,trig=p2_setup_ops(g,False)
    TM={i:176+i for i in range(24)}
    early,addr,trig=[remap(x,TM) for x in (early,addr,trig)]
    vBh=[200,201,202,203]; vAh=[204,205]
    g.miscq=[f'v_add_u32 v{h}, 0x10000, v{l}' for h,l in zip(vBh+vAh,vB+vA)]+early+addr+trig
    def fr(s_):
        b=[32,128][s_]
        return dict(A=[b,b+4],B=[b+8,b+12])
    def rd(n):
        st,kk=n>>2,n&3
        f=fr(n&1); o=(st&1)*32768; hi=(st>>1)&1
        tr=lambda t,q: f'ds_read_b64_tr_b16 v[{f["A"][t]+2*q}:{f["A"][t]+2*q+1}], v{[vA,vAh][hi][t]} offset:{o+4096*kk+1024*q}'
        bb=lambda u: f'ds_read_b128 v[{f["B"][u]}:{f["B"][u]+3}], v{[vB,vBh][hi][kk]} offset:{o+4096*u}'
        return [tr(0,0),tr(0,1),bb(0),bb(1),tr(1,0),tr(1,1)]
    ncs = 4 if A216 else {1:2,4:2,2:4,0:8}[rot]
    def setsel(st):
        if ncs==2 or A216: cond=None
        elif ncs==4: cond=f's_lshr_b32 s53, s100, 1\ns_cmp_eq_u32 s53, {st>>1}'
        else: cond=f's_cmp_eq_u32 s100, {st>>1}'
        if cond is None:
            for i in range(4): g(f'v_mov_b32 v{SEL+i}, v{SEL+4}')
        else:
            g(cond+'\ns_cselect_b32 s53, -1, 0')
            for i in range(4): g(f'v_and_b32 v{SEL+i}, s53, v{SEL+4}')
    def gather_ops():
        def mk(r,v,off):
            def o(): g.vmem(f'buffer_load_dwordx4 v[{r}:{r+3}], v{v}, s[40:43], 0 offen offset:{off} sc1','ga')
            return o
        return [mk(GA,vSA,0),mk(GA+4,vSA,512),mk(GA+8,vCA,0),mk(GA+12,vCB,0)]
    def publish():
        g(f'v_mov_b32 v{CSA+1}, s47')
        g.vmem(f'buffer_store_dwordx2 v[{CSA}:{CSA+1}], v{vCP}, s[40:43], 0 offen sc1','csp')
    WPS=g.opt.get('wpstage',1)
    WSCHED={'a':{2:[0],3:[1],5:[2,3],6:[4],7:[5,6]},'b':{3:[0],4:[1],5:[2],6:[3,4],7:[5]},'c':{5:[0,1],6:[2],7:[3,4]},'d':{1:[0],2:[1],5:[2,3],6:[4,5],7:[6]},'e':{5:[0,1],6:[2,3],7:[4,5]},'f':{4:[0],5:[1],6:[2,3],7:[4,5]},'g':{5:[0],6:[1],7:[2,3]},'h':{4:[0,1],7:[2,3,4]},'i':{4:[0,1],7:[2,3]},'j':{4:[0,1]},'k':{3:[0,1],6:[2,3],7:[4,5]},'l':{4:[0,1],6:[2],7:[3,4]},'m':{1:[(0,0)],2:[(0,1)],3:[(1,0)],4:[(1,1)],5:[2,3],6:[4,5],7:[6]},'n':{1:[(0,0)],2:[(0,1)],3:[(1,0)],4:[(1,1)],6:[2,3],7:[4,5]},'o':{1:[0],2:[1],5:[2,3],6:[4,5],7:[6,7]},'p':{5:[0,1],7:[2]},'q':{5:[0,1]},'r':{5:[0,1],6:[2]},'s':{5:[0,1],7:[2,3]},'t':{5:[0,1],6:[2],7:[3]},'u':{1:[0,1],5:[2,3],6:[4,5],7:[6,7]},'v':{0:[0,1],5:[2,3],6:[4,5],7:[6,7]},'w':{2:[0,1],5:[2,3],6:[4,5],7:[6,7]},'x':{-1:[0,1],5:[2,3],6:[4,5],7:[6,7]},'y':{-2:[0,1],5:[2,3],6:[4,5],7:[6,7]}}[g.opt.get('wsched','o')]
    half={}
    prevtr=[0]
    NTL=g.opt.get('ntl',5)
    TRL={n:(i>>1,i&1) for i,n in enumerate([20,21,22,23,26,27,28,29,30,31][:2*NTL])}
    MX=g.opt.get('mx',5)
    nw=len(set((p[0] if isinstance(p,tuple) else p) for x in WSCHED.values() for p in x))
    def enter(st):
        g.flush_side()
        g.wait(f's{st}')
        g('s_barrier')
        g.stamp('st')
        if st+D<8: g.sideq+=stage_ops(st+D)
        if st==max(ncs,g.opt.get('pubst',4)) and ncs<8: g.sideq.append(publish)
        if st==6: g.miscq+=hr.l
        if st in WSCHED and st<6:
            while len(g.miscq)>len(trig)+len(addr): misc(g,1)
        if st==g.opt.get('gast',7) and not g.opt.get('galast'): g.sideq+=gather_ops()
        for pr in WSCHED.get(st,[]):
            if isinstance(pr,tuple):
                if pr[1]==0: half[pr[0]]=w2_pair_ops(g,pr[0])
                ops=half[pr[0]][2*pr[1]:2*pr[1]+2]
                if pr[1]==1: ops=[lambda p=pr[0],o=ops[0]:(g(f's_add_u32 m0, s69, {ppos(p)}'),o())]+ops[1:]
                g.sideq+=ops
            else: g.sideq+=w2_pair_ops(g,pr)
        if st==g.opt.get('gast',7) and g.opt.get('galast'): g.sideq+=gather_ops()
    if WS0 in 'xy':
        while len(g.miscq)>len(trig)+len(addr): misc(g,1)
        for op in w2_pair_ops(g,0)+w2_pair_ops(g,1): op()
        if WS0=='y':
            for op in stage_ops(2): op()
    hr=Rec()
    srd(hr,36,28,7340032)
    hr('''s_mul_i32 s53, s52, 112
    s_lshl_b32 s54, s49, 3
    s_add_u32 s53, s53, s54
    s_lshl_b32 s54, s50, 2
    s_add_u32 s53, s53, s54
    s_lshl_b32 s53, s53, 11
    s_lshl_b32 s54, s51, 12
    s_add_u32 s60, s53, s54
    s_xor_b32 s61, s60, 0x400
    s_xor_b32 s62, s60, 0x1000
    s_xor_b32 s63, s60, 0x1400
''')
    nonce(g); setsel(0)
    enter(0); g.stamp(); g.stamp('pro')
    for x in rd(0): g(x)
    for n in range(32):
        st,kk=n>>2,n&3
        f=fr(n&1)
        def mf(t,u):
            d=ACC+16*(2*t+u)
            g(f'{MF} v[{d}:{d+15}], v[{f["A"][t]}:{f["A"][t]+3}], v[{f["B"][u]}:{f["B"][u]+3}], '+(f'v[{d}:{d+15}]' if n else '0'))
        nx = rd(n+1) if n<31 else []
        xt=prevtr[0]; prevtr[0]=0
        if kk==3:
            g(f's_waitcnt lgkmcnt({xt})'); mf(0,0)
            if st<7: enter(st+1)
            else: g.flush_side(); g('s_barrier')
            for x in nx[:3]: g(x)
            mf(0,1)
            for x in nx[3:]: g(x)
            mf(1,0)
        else:
            g(f's_waitcnt lgkmcnt({3+xt})'); mf(0,0)
            for x in nx[:3]: g(x)
            g(f's_waitcnt lgkmcnt({5+xt})'); mf(0,1)
            for x in nx[3:]: g(x)
            g(f's_waitcnt lgkmcnt({6+xt})'); mf(1,0)
        if n in TRL:
            pr,h=TRL[n]
            if h==0: g.wait(f'w{pr}')
            for x in w2_trl(pr)[4*h:4*h+4]: g(x)
            prevtr[0]=4
        else:
            had=bool(g.sideq); g.side(); misc(g, 2 if had else MX)
        if st<ncs:
            g(f'v_mfma_f32_16x16x32_bf16 v[{CSA}:{CSA+3}], v[{SEL}:{SEL+3}], v[{f["A"][0]}:{f["A"][0]+3}], '+(f'v[{CSA}:{CSA+3}]' if n else '0'))
        mf(1,1)
        had=bool(g.sideq); g.side(2 if (len(g.sideq)>2*(3-kk)+1 or n in TRL) else 1); misc(g,2 if had else MX)
        if kk==3 and st+1<ncs and (st+1)%2==0: setsel(st+1)
    if ncs==8: publish()
    g.flush_side(); misc(g,9999)
    g.stamp(); g.stamp('st'); g.stamp('tail')
    g.wait('ga')
    g(f'''s_mov_b32 s56, {SPIN}
    L_gchk:
    v_xor_b32 v24, s47, v{GA+3}
    v_xor_b32 v25, s47, v{GA+7}
    v_xor_b32 v26, s47, v{GA+9}
    v_xor_b32 v27, s47, v{GA+11}
    v_xor_b32 v28, s47, v{GA+13}
    v_xor_b32 v29, s47, v{GA+15}
    v_or3_b32 v24, v24, v25, v26
    v_or3_b32 v27, v27, v28, v29
    v_or_b32 v24, v24, v27
    v_cmp_ne_u32 vcc, 0, v24
    s_cbranch_vccnz L_gslow
    L_gok:''')
    keep=list(g.vm); main=g.a.l; g.a.l=[]
    g('L_gslow:\ns_sleep 8')
    for op in gather_ops(): op()
    g('s_waitcnt vmcnt(0)\ns_sub_u32 s56, s56, 1\ns_cbranch_scc0 L_gchk\ns_branch L_gok')
    g.outofline+=g.a.l; g.a.l=main; g.vm=keep
    NG=g.opt.get('ng',10)
    assert NG<=10+NTL
    g('s_waitcnt lgkmcnt(0)')
    for pr in range(nw,NG): g.sideq+=w2_pair_ops(g,pr)
    a0,a1=GA+8,GA+12
    c0=-2*math.sqrt(2/math.pi)*math.log2(math.e); c1=c0*0.044715
    g(f'''v_add_f32 v{a0}, v{a0}, v{a0+2}
    v_add_f32 v{a1}, v{a1}, v{a1+2}
    v_rcp_f32 v24, v{GA+2}
    v_mov_b32 v{a0+1}, v{a0}
    v_mov_b32 v{a1+1}, v{a1}
    v_rcp_f32 v26, v{GA+6}
    v_cmp_gt_u32 vcc, 32, v0
    v_permlane32_swap_b32 v{a0}, v{a0+1}
    v_permlane32_swap_b32 v{a1}, v{a1+1}
    v_mov_b32 v50, v{GA+2}
    v_mov_b32 v54, v{GA+6}
    {'v_mov_b32' if A216 else 'v_add_f32'} v{a0+2}, v{a0}{'' if A216 else f', v{a0+1}'}
    {'v_mov_b32' if A216 else 'v_add_f32'} v{a1+2}, v{a1}{'' if A216 else f', v{a1+1}'}
    v_mov_b32 v{GA+2}, v{GA}
    v_mov_b32 v{GA+6}, v{GA+4}
    v_cvt_pk_bf16_f32 v{a0}, v{a0+2}, v{a0+2}
    v_cvt_pk_bf16_f32 v{a1}, v{a1+2}, v{a1+2}
    v_lshl_or_b32 v{a0+1}, v{vB1[0]}, 16, v{vB1[0]}
    v_lshl_or_b32 v{a1+1}, v{vB1[1]}, 16, v{vB1[1]}
    v_lshlrev_b32 v{a0+3}, 16, v{a0}
    v_lshlrev_b32 v{a1+3}, 16, v{a1}
    v_cndmask_b32 v{a0}, 0, v{a0}, vcc
    v_cndmask_b32 v{a1}, 0, v{a1}, vcc
    v_sub_f32 v{a0+2}, v{a0+2}, v{a0+3}
    v_sub_f32 v{a1+2}, v{a1+2}, v{a1+3}
    v_cndmask_b32 v{a0+1}, 0, v{a0+1}, vcc
    v_cndmask_b32 v{a1+1}, 0, v{a1+1}, vcc
    v_cvt_pk_bf16_f32 v{a0+2}, v{a0+2}, 0
    v_cvt_pk_bf16_f32 v{a1+2}, v{a1+2}, 0
    v_mov_b32 v{a0+3}, 0
    v_mov_b32 v{a1+3}, 0
    v_cndmask_b32 v{a0+2}, 0, v{a0+2}, vcc
    v_cndmask_b32 v{a1+2}, 0, v{a1+2}, vcc
    v_mov_b32 v{GA+3}, 0
    v_mov_b32 v{GA+7}, 0''')
    Aex=[a0,a1]; Bex=[GA,GA+4]
    for t in range(2):
        for u in range(2):
            d=ACC+16*(2*t+u)
            g(f'{MF} v[{d}:{d+15}], v[{Aex[t]}:{Aex[t]+3}], v[{Bex[u]}:{Bex[u]+3}], v[{d}:{d+15}]')
    g(f'''v_mul_f32 v25, v24, v24
    v_mul_f32 v27, v26, v26
    v_mul_f32 v49, {f2u(c0):#x}, v24
    v_mul_f32 v53, {f2u(c0):#x}, v26
    v_mul_f32 v25, v25, v24
    v_mul_f32 v27, v27, v26
    v_mul_f32 v48, {f2u(c1):#x}, v25
    v_mul_f32 v52, {f2u(c1):#x}, v27''')
    g('v_lshlrev_b32 v56, 4, v0')
    g.stamp()
    while len(g.miscq)>len(trig): misc(g,1)
    def trop(pr,h):
        def op():
            if h==0: g.wait(f'w{pr}')
            for x in w2_trl(pr)[4*h:4*h+4]: g(x)
        return op
    xo=xb2_ops(g)
    trs=[]
    for pr in range(NTL,4):
        if not g.opt.get('trpost'): trs+=[trop(pr,0),trop(pr,1)]
    g.sideq+=xo+trs
    NS=g.opt.get('gside',4)
    for t in range(2):
        for u in range(2):
            d=ACC+16*(2*t+u); K=[48,52][u]; RI=[50,54][u]
            for j in range(2):
                NS=g.opt.get('gside',4) if 4*t+2*u+j>=g.opt.get('gstart',0) else 0
                P=[d+8*j+2*i for i in range(4)]
                tm=[2+2*i for i in range(4)]
                o=[24,28][j]
                for i in range(4): g(f'v_pk_mul_f32 v[{tm[i]}:{tm[i]+1}], v[{P[i]}:{P[i]+1}], v[{P[i]}:{P[i]+1}]')
                for i in range(4): g(f'v_pk_fma_f32 v[{tm[i]}:{tm[i]+1}], v[{tm[i]}:{tm[i]+1}], v[{K}:{K+1}], v[{K}:{K+1}] op_sel:[0,0,1] op_sel_hi:[1,0,1]')
                if NS>=1: g.side()
                for i in range(4): g(f'v_pk_mul_f32 v[{tm[i]}:{tm[i]+1}], v[{tm[i]}:{tm[i]+1}], v[{P[i]}:{P[i]+1}]')
                for i in range(8):
                    g(f'v_exp_f32 v{2+i}, v{2+i}')
                    if i==3 and NS>=4: g.side()
                if NS>=2: g.side()
                for i in range(4): g(f'v_pk_fma_f32 v[{tm[i]}:{tm[i]+1}], v[{tm[i]}:{tm[i]+1}], v[{RI}:{RI+1}], v[{RI}:{RI+1}] op_sel:[0,0,0] op_sel_hi:[1,0,0]')
                for i in range(8):
                    g(f'v_rcp_f32 v{2+i}, v{2+i}')
                    if i==3 and NS>=5: g.side()
                if NS>=3: g.side()
                for i in range(4): g(f'v_pk_mul_f32 v[{tm[i]}:{tm[i]+1}], v[{tm[i]}:{tm[i]+1}], v[{P[i]}:{P[i]+1}]')
                for i in range(4): g(f'v_cvt_pk_bf16_f32 v{o+i}, v{tm[i]}, v{tm[i]+1}')
                g.vmem(f'buffer_store_dwordx4 v[{o}:{o+3}], v56, s[36:39], s{60+2*t+u} offen offset:{2048*j} {"" if g.opt.get("hplain") else "sc1"}','st')
    g.stamp()
    print('after GELU: side',len(g.sideq),'misc',len(g.miscq),file=sys.stderr)
    g.stamp('tail')
    g.flush_side()
    g(f'v_mov_b32 v2, s47\nv_add_u32 v{vTm0}, 0x10000, v{vT[0]}\nv_add_u32 v{vTm1}, 0x10000, v{vT[1]}')
    NJ=g.opt.get('nj',4)
    for k in range(0 if g.opt.get('merge',0) else NJ//2): g(f'v_add_u32 v{vJ[k][0]}, {ppos(12-2*k)}, v{vT[0]}\nv_add_u32 v{vJ[k][1]}, {ppos(12-2*k)}, v{vT[1]}')
    for d in (1,2,3): g(f's_add_u32 s{5+d}, s69, {d*32768}\ns_xor_b32 s{8+d}, s{5+d}, {d*8192}')
    g(f's_add_u32 s12, s69, {32768+4096}')
    TB=g.opt.get('trbefore',1)
    for pr in range(max(4,NTL),4+TB):
        g.wait(f'w{pr}')
        for x in w2_trl(pr): g(x)
    g.stamp('tail')
    g.wait('st')
    g.stamp('tail')
    g('s_barrier')
    g.vmem(f'buffer_store_dword v2, v{vSG}, s[40:43], 0 offen sc1','flag')
    g.stamp('tail')
    if g.opt.get('merge',0):
        g.nw=NG
        return
    for pr in range(NG,10):
        for op in w2_pair_ops(g,pr): op()
    if g.opt.get('trpost'):
        for pr in range(NTL,4):
            g.wait(f'w{pr}')
            for x in w2_trl(pr): g(x)
    g('s_waitcnt lgkmcnt(0)')
    for pr in range(max(NG,10),14):
        for op in w2_pair_ops(g,pr): op()
    for pr in range(max(4+TB,NTL),14-NJ):
        g.wait(f'w{pr}')
        for x in w2_trl(pr): g(x)
    g('v_not_b32 v3, v2')

def p1_dft(g):
    RAW=64
    vBr0=56; vXL=[57,18,19,2]; vSP=3; vA0=244; vBd=[4,5,6,7]; vWe,vWo=8,9; vFA=[10,11,12,13]; vFB=[14,15,16,17]
    CC=[192,196]; SS=[200,204]; NS=[208,212]
    RC=[216,218,220,222]
    if g.opt.get('p1arr',48)==216:
        g('L_dft0:\ns_lshr_b32 s100, s31, 1\ns_add_u32 s48, s48, s100\ns_lshl_b32 s100, s100, 1')
    g('''s_mov_b32 s49, s53
    s_lshr_b32 s51, s3, 1''')
    t1_of(g,'s52','s48','s51','s53')
    g(f'''s_and_b32 s50, s3, 1
    s_lshl_b32 s53, s50, 5
    s_add_u32 s53, s53, s52
    s_lshl_b32 s53, s53, 10
    v_lshrrev_b32 v24, 3, v0
    v_lshrrev_b32 v25, 4, v0
    v_and_b32 v26, 7, v0
    v_lshlrev_b32 v27, 4, v26
    v_lshl_add_u32 v27, v24, 16, v27
    s_lshl_b32 s54, s100, 7
    v_add3_u32 v{vXL[0]}, v27, s53, 0
    v_add_u32 v{vXL[0]}, s54, v{vXL[0]}
    v_xor_b32 v{vXL[1]}, 0x80, v{vXL[0]}
    v_xor_b32 v{vXL[2]}, 0x100, v{vXL[0]}
    v_xor_b32 v{vXL[3]}, 0x180, v{vXL[0]}
    s_waitcnt lgkmcnt(0)''')
    srd(g,32,4,2097152)
    def xops(gi):
        def mk(j):
            def op():
                if j==0: g(f's_mov_b32 s58, {gi*524288}')
                r=RAW+32*gi+4*j
                g.vmem(f'buffer_load_dwordx4 v[{r}:{r+3}], v{vXL[j&3]}, s[32:35], s58 offen offset:{512*(j>>2)}',f'x{gi}')
            return op
        return [mk(j) for j in range(8)]
    DO=g.opt.get('dord','a')
    for gi in range(1 if DO in 'de' else 2):
        for op in xops(gi): op()
    if DO not in 'de': g('@@SPLIT@@')
    epoch_load(g)
    srd(g,36,10,524288); srd(g,16,12,524288); srd(g,40,28,4<<20,add=F_OFF)
    g(f'''s_lshl_b32 s46, s48, 3
    s_lshl_b32 s53, s49, 2
    s_add_u32 s46, s46, s53
    s_add_u32 s46, s46, {FU}
    v_xor_b32 v26, v26, v25
    v_lshlrev_b32 v26, 4, v26
    v_lshl_add_u32 v27, v24, 11, v26
    s_lshl_b32 s53, s3, 16
    s_lshl_b32 s54, s49, 10
    s_add_u32 s53, s53, s54
    v_add_u32 v{vBd[0]}, s53, v27
    v_xor_b32 v28, 64, v{vBd[0]}
    v_add_u32 v{vBd[1]}, {16384-1024}, v28
    v_add_u32 v{vBd[2]}, {2*(16384-1024)}, v{vBd[0]}
    v_add_u32 v{vBd[3]}, {3*(16384-1024)}, v28
    v_add_u32 v28, 0x40000, v{vBd[0]}
    v_cmp_gt_u32 vcc, 1024, v{vBd[0]}
    v_lshl_add_u32 v27, v24, 7, v26
    s_lshl_b32 s53, s3, 12
    v_cndmask_b32 v{vBr0}, v{vBd[0]}, v28, vcc
    v_add_u32 v{vWe}, s53, v27
    v_xor_b32 v{vWo}, 64, v{vWe}
    s_mul_i32 s55, s3, 24576
    s_add_u32 s55, s55, 65536
    s_lshl_b32 s53, s48, 1
    s_add_u32 s53, s53, s49
    s_lshl_b32 s53, s53, 11
    s_lshl_b32 s54, s51, 10
    s_add_u32 s53, s53, s54
    s_lshl_b32 s54, s50, 4
    s_add_u32 s53, s53, s54
    s_add_u32 s53, s53, {ST_OFF-F_OFF}
    v_lshl_add_u32 v{vSP}, v24, 5, s53
    s_lshl_b32 s53, s48, 1
    s_add_u32 s53, s53, s49
    s_lshl_b32 s53, s53, 9
    s_add_u32 s13, s53, {A0_REL}
    s_lshl_b32 s54, s3, 7
    s_add_u32 s53, s13, s54
    v_lshl_add_u32 v{vA0}, v24, 2, s53
    v_and_b32 v242, 3, v0
    v_lshl_add_u32 v{vA0}, v242, 5, v{vA0}''')
    def bops(st):
        slot=st&1
        def mk(i):
            def op():
                if i==0: g(f's_xor_b32 s57, s100, {st}\ns_lshl_b32 s57, s57, 7\ns_add_u32 m0, s55, {slot*8192}')
                if i==4: g(f's_add_u32 m0, s55, {slot*8192+4096}')
                if i<4: g.vmem(f'buffer_load_dwordx4 v{vBr0 if i==0 else vBd[i]}, s[36:39], s57 offen offset:{1024*i} lds',f'B{st}')
                else:   g.vmem(f'buffer_load_dwordx4 v{vBd[i-4]}, s[16:19], s57 offen offset:{1024*(i-4)} lds',f'B{st}')
            return op
        return [mk(i) for i in range(8)]
    if DO in 'de':
        for op in bops(0): op()
        g('@@SPLIT@@')
    g(f'''v_and_b32 v24, 31, v0
    v_lshrrev_b32 v25, 5, v0
    v_bfe_u32 v26, v0, 1, 3
    v_xor_b32 v26, v26, v25
    v_lshlrev_b32 v27, 7, v24''')
    for kk in range(4):
        g(f'''v_xor_b32 v28, {2*kk}, v26
        v_lshl_add_u32 v{vFA[kk]}, v28, 4, v27
        v_add_u32 v{vFB[kk]}, s55, v{vFA[kk]}''')
    g(f'''v_cvt_f32_u32 v26, v24
    v_mul_f32 v26, {f2u(1/32):#x}, v26
    v_cvt_f32_u32 v27, v25
    v_mul_f32 v27, 4.0, v27
    v_mul_f32 v27, v27, v26
    v_mul_f32 v28, {f2u(5.0):#x}, v26''')
    for j in range(2):
        for i2 in range(4):
            for e in range(2):
                i=2*i2+e
                if not (j==0 and i==0):
                    g(f'v_add_f32 v27, v27, v{28 if i%4==0 else 26}')
                g(f'v_fract_f32 v29, v27\nv_cos_f32 v{20+e}, v29\nv_sin_f32 v{22+e}, v29')
            g(f'v_cvt_pk_bf16_f32 v{CC[j]+i2}, v20, v21\nv_cvt_pk_bf16_f32 v{SS[j]+i2}, v22, v23\nv_xor_b32 v{NS[j]+i2}, 0x80008000, v{SS[j]+i2}')
    early,addr,trig=p2_setup_ops(g,True)
    TM={0:20,1:21,2:22,3:23,4:24,5:25,6:26,7:27,8:28,9:29,10:30,12:2,13:3,14:8,15:9,16:31,17:57,18:240,19:241,20:242,21:243,22:244,23:245}
    early,addr,trig=[remap(x,TM) for x in (early,addr,trig)]
    PRO=g.opt.get('dpro',0)
    if PRO:
        for x in early+addr: g(x)
    g(f'''s_mov_b32 s59, 0x3f803f80
    s_movk_i32 s60, 0x3f80
    s_mov_b32 s61, 0x3f800000
    s_lshl_b32 s53, s49, 15
    s_or_b32 s62, s60, s53
    s_lshl_b32 s63, s62, 16
    s_cmp_eq_u32 s49, 0
    s_cselect_b32 s101, 2.0, 0
    s_waitcnt lgkmcnt(0)''')
    nonce(g)
    eps=f'{f2u(1e-5):#x}'
    chainq=[]
    def ch(n=1):
        for _ in range(n):
            if chainq: chainq.pop(0)()
    def stats(gi):
        R=RAW+32*gi; S=[224,228][gi&1]
        g.wait(f'x{gi}')
        if gi==0: g.stamp()
        for i in range(32):
            if i<2: g(f'v_dot2_f32_bf16 v{S+i}, v{R+i}, s59, 0\nv_dot2_f32_bf16 v{S+2+i}, v{R+i}, v{R+i}, 0')
            else:   g(f'v_dot2c_f32_bf16 v{S+(i&1)}, s59, v{R+i}\nv_dot2c_f32_bf16 v{S+2+(i&1)}, v{R+i}, v{R+i}')
            if i%4==3: g.side()
            if i>=2: ch(2)
        while chainq: ch()
        o=232+4*(gi&1); r1=RC[gi]; a,b,c,d=20,21,22,23
        lines=f'''v_add_f32 v{S}, v{S}, v{S+1}
        v_add_f32 v{S+2}, v{S+2}, v{S+3}
        v_add_f32_dpp v{S}, v{S}, v{S} quad_perm:[1,0,3,2] row_mask:0xf bank_mask:0xf
        v_add_f32_dpp v{S+2}, v{S+2}, v{S+2} quad_perm:[1,0,3,2] row_mask:0xf bank_mask:0xf
        v_add_f32_dpp v{S}, v{S}, v{S} quad_perm:[2,3,0,1] row_mask:0xf bank_mask:0xf
        v_add_f32_dpp v{S+2}, v{S+2}, v{S+2} quad_perm:[2,3,0,1] row_mask:0xf bank_mask:0xf
        v_add_f32_dpp v{S}, v{S}, v{S} row_half_mirror row_mask:0xf bank_mask:0xf
        v_add_f32_dpp v{S+2}, v{S+2}, v{S+2} row_half_mirror row_mask:0xf bank_mask:0xf
        v_mul_f32 v{a}, {f2u(-1/512):#x}, v{S}
        v_mul_f32 v{b}, {f2u(1/512):#x}, v{S+2}
        v_fma_f32 v{b}, -v{a}, v{a}, v{b}
        v_cvt_pk_bf16_f32 v{d}, v{a}, v{a}
        v_max_f32 v{b}, 0, v{b}
        v_lshlrev_b32 v{d}, 16, v{d}
        v_cvt_pk_bf16_f32 v{c}, 0, v{b}
        v_sub_f32 v{d}, v{a}, v{d}
        v_add_f32 v{c}, {eps}, v{c}
        v_cvt_pk_bf16_f32 v{o}, v{a}, v{d}
        v_cvt_pk_bf16_f32 v{c}, 0, v{c}
        v_mul_f32 v{r1+1}, s101, v{a}
        v_sqrt_f32 v{c}, v{c}
        v_mov_b32 v{o+3}, s47
        v_cvt_pk_bf16_f32 v{c}, 0, v{c}
        v_rcp_f32 v{r1}, v{c}
        v_mul_f32 v{d}, {f2u(-512.0):#x}, v{d}
        v_mul_f32 v{b}, v{b}, v{r1}
        v_mul_f32 v{241 if gi else 240}, v{d}, v{r1}
        v_mul_f32 v{b}, v{b}, v{r1}
        v_cvt_pk_bf16_f32 v{b}, 0, v{b}
        v_add_f32 v{b}, {eps}, v{b}
        v_cvt_pk_bf16_f32 v{b}, 0, v{b}
        v_sqrt_f32 v{b}, v{b}
        v_cvt_pk_bf16_f32 v{b}, 0, v{b}
        v_mul_f32 v{o+2}, v{b}, v{c}
        v_cvt_pk_bf16_f32 v{b}, 0, v{o+2}
        v_sub_f32 v{b}, v{o+2}, v{b}
        v_cvt_pk_bf16_f32 v{o+1}, v{o+2}, v{b}'''.split('\n')
        for ln in lines: chainq.append(lambda ln=ln: g(ln))
        chainq.append(lambda: g.vmem(f'buffer_store_dwordx4 v[{o}:{o+3}], v{vSP}, s[40:43], 0 offen offset:{256*gi} sc1','sp'))
        if gi: chainq.append(lambda: g(f'v_cmp_eq_u32 vcc, {gi}, v242\ns_nop 1\nv_cndmask_b32 v240, v240, v241, vcc'))
        if gi==3: chainq.append(lambda: g.vmem(f'buffer_store_dword v240, v{vA0}, s[40:43], 0 offen sc1','a0'))
    def bfly(gi):
        R=RAW+32*gi; r1=RC[gi]
        for j in range(4):
            o=[24,28][j&1]; T=[40,48][j&1]
            for i in range(4):
                a_=R+4*j+i; t=T+2*i
                g(f'v_dot2_f32_bf16 v{t}, v{a_}, s60, v{r1+1}\nv_dot2_f32_bf16 v{t+1}, v{a_}, s61, v{r1+1}'); ch()
            g.side()
            for i in range(4):
                b_=R+4*(j+4)+i; t=T+2*i
                g(f'v_dot2c_f32_bf16 v{t}, s62, v{b_}\nv_dot2c_f32_bf16 v{t+1}, s63, v{b_}'); ch()
            ch(2)
            for i in range(4):
                t=T+2*i
                g(f'v_pk_mul_f32 v[{t}:{t+1}], v[{t}:{t+1}], v[{r1}:{r1+1}] op_sel_hi:[1,0]')
            g.side()
            for i in range(4):
                t=T+2*i
                g(f'v_cvt_pk_bf16_f32 v{o+i}, v{t}, v{t+1}')
            g(f'ds_write_b128 v{vWo if gi&1 else vWe}, v[{o}:{o+3}] offset:{16384*j+1024*gi}')
        while chainq: ch()
    W0=16384
    LATEW=g.opt.get('latew',0)
    wl={0:W0,1:W0+4096,2:W0,3:W0+4096,4:W0,5:W0+4096,6:W0,7:W0+4096,8:0,9:4096,10:W0,11:W0+4096,12:8192,13:8192+4096}
    if LATEW: wl={0:W0,1:W0+4096,2:W0,3:W0+4096,4:W0,5:W0+4096,6:0,7:4096,8:W0,9:W0+4096,10:8192,11:8192+4096,12:0,13:4096}
    wd=lambda pr: w2_pair_ops(g,pr,'s55',wl[pr])
    order=g.opt.get('dord','a')
    plan={'a':[[],xops(2),xops(3),bops(0),bops(1),[],'w',[]],
          'b':[xops(2),xops(3),bops(0),bops(1),[],[],'w',[]],
          'c':[[],xops(2)+xops(3),bops(0),bops(1),[],'w',[],[]],
          'd':[xops(2),xops(3),[],bops(1),[],[],'w',[]],
          'e':[[],xops(2),xops(3),bops(1),[],[],'w',[]],
          'g':[[],xops(2),xops(3),bops(0),bops(1),[],[],'w'],
          'h':[[],xops(2),xops(3),bops(0),bops(1)[:4],bops(1)[4:],[],'w'],
          'i':[[],xops(2),xops(3)+bops(0),[],bops(1),[],[],'w']}[order]
    if order in 'de':
        for op in xops(1): op()
    seq=((stats,0),(stats,1),(bfly,0),(stats,2),(bfly,1),(stats,3),(bfly,2),(bfly,3))
    if g.opt.get('sfirst'):
        seq=((stats,0),(stats,1),(stats,2),(stats,3),(bfly,0),(bfly,1),(bfly,2),(bfly,3))
        plan=[xops(2),xops(3),bops(0),[],bops(1),[],'w',[]] if order not in 'de' else [xops(2),xops(3),[],bops(1),[],[],'w',[]]
    for k,(fn,gi) in enumerate(seq):
        if plan[k]=='w':
            if not LATEW:
                if not PRO:
                    for x in early: g(x)
                g.sideq+=wd(0)+wd(1)
        else: g.sideq+=plan[k]
        if fn is stats:
            while any(1 for op in plan[max(k-2,0)] if False): pass
        fn(gi); g.stamp('dst')
        if order=='c' and k==1: g.flush_side()
    g.flush_side()
    g('s_waitcnt lgkmcnt(0)\ns_barrier')
    g.stamp(); g.stamp('dst')
    ACC=64
    def fr(s_):
        b=[32,216][s_]
        return dict(A=[b,b+4,b+8,b+12],B=[b+16,b+20])
    def rd(n):
        st,kk=n>>2,n&3; f=fr(n&1)
        bb=lambda ab: f'ds_read_b128 v[{f["B"][ab]}:{f["B"][ab]+3}], v{vFB[kk]} offset:{(st&1)*8192+4096*ab}'
        aa=lambda ti: f'ds_read_b128 v[{f["A"][ti]}:{f["A"][ti]+3}], v{vFA[kk]} offset:{st*16384+4096*ti}'
        return [aa(0),bb(0),bb(1),aa(1),aa(2),aa(3)]
    g.wait('B0')
    for x in rd(0): g(x)
    vTB=[18,19]
    nT=[i for i,x in enumerate(addr) if f'v_add_u32 v{vT[3]}' in x][0]+1
    pre=([] if PRO else addr[8:nT])+['s_sub_u32 s0, s55, s69',f'v_add_u32 v18, s0, v{vT[0]}',f'v_add_u32 v19, s0, v{vT[1]}']
    if not LATEW:
        for x in pre: g(x)
    if not g.opt.get('trigp2',1):
        trig=trig_ops(0,{1:20,2:21,3:22,5:23,6:30,7:31,9:57,12:2,13:3,14:8,15:9,16:240,17:241,18:242,19:243,20:24,21:25,22:26,23:27})
    g.miscq=([] if PRO else addr[:8]+addr[nT:])+trig
    if PRO: early=[]
    TRS={0:0,1:1,5:2,6:3,9:4,10:5,13:6,14:7}
    DMS={1:[2],2:[3],6:[4],7:[5],10:[6],11:[7,8],12:[9],14:[10],15:[11]}
    if order in 'ghi':
        TRS={1:0,2:1,5:2,6:3,9:4,10:5,13:6,14:7}
        DMS={2:[2],3:[3],6:[4],7:[5],10:[6],11:[7,8],12:[9],14:[10],15:[11]}
    if LATEW:
        TRS={4:0,5:1,8:2,9:3,11:4,12:5,14:6,15:7}
        DMS={1:[0,1],5:[2],6:[3],9:[4],10:[5],11:[6,7],12:[8],13:[9]}
        g.miscq=early+pre+g.miscq
    for n in range(16):
        f=fr(n&1)
        def mf(ti,ab):
            d=ACC+32*ti+16*ab
            g(f'{MF} v[{d}:{d+15}], v[{f["A"][ti]}:{f["A"][ti]+3}], v[{f["B"][ab]}:{f["B"][ab]+3}], '+(f'v[{d}:{d+15}]' if n else '0'))
        nx=rd(n+1) if n<15 else []
        if n%2==0: g.stamp('dm')
        g('s_waitcnt lgkmcnt(0)'); mf(0,0)
        if n==3: g.sideq+=bops(2)
        if n==7: g.sideq+=bops(3)
        if LATEW and n==1:
            while any(x in g.miscq for x in early): misc(g,1)
        if LATEW and n==4:
            while any(x in g.miscq for x in pre): misc(g,1)
        if n==8:
            assert 'a0' not in g.vm
            while len(g.miscq)>len(trig): misc(g,1)
            g('s_barrier')
            g.miscq+=[f'v_and_b32 v2, 3, v0',f'v_lshrrev_b32 v3, 5, v0',f'v_lshlrev_b32 v3, 4, v3',f'v_lshl_add_u32 v2, v2, 7, v3',f'v_add_u32 v2, s13, v2',
                      f'v_and_b32 v3, 28, v0',f'v_cmp_eq_u32 vcc, 0, v3',f'v_mov_b32 v3, {OOB}','s_nop 0',f'v_cndmask_b32 v2, v3, v2, vcc']
        if n==9:
            misc(g,9999)
            g.sideq+=[(lambda q=q: g.vmem(f'buffer_load_dwordx4 v[{[20,24,28,240][q]}:{[20,24,28,240][q]+3}], v2, s[40:43], 0 offen offset:{32*q} sc1','al')) for q in range(4)]
        if n==15:
            g.wait('al')
            g.miscq+=[f'v_cvt_pk_bf16_f32 v{20+i}, v{20+2*i}, v{21+2*i}' for i in range(4)]+[f'v_cvt_pk_bf16_f32 v28, v28, v29','v_cvt_pk_bf16_f32 v29, v30, v31','v_cvt_pk_bf16_f32 v30, v240, v241','v_cvt_pk_bf16_f32 v31, v242, v243']
        for pr in DMS.get(n,[]): g.sideq+=wd(pr)
        if (n+1)%4==0 and n<15: g.wait(f'B{(n+1)>>2}')
        for x in nx[:3]: g(x)
        mf(0,1)
        for x in nx[3:]: g(x)
        mf(1,0)
        trq=[]
        if n in TRS:
            assert not any(True for op in g.sideq if getattr(op,'pr',None)==TRS[n])
            g.wait(f'w{TRS[n]}'); trq=w2_trl(TRS[n],vTB,wl[TRS[n]])
        for k,(ti,ab) in enumerate(((1,1),(2,0),(2,1),(3,0),(3,1))):
            if trq and k>=3:
                for x in trq[:4]: g(x)
                trq=trq[4:]
            else:
                had=bool(g.sideq); g.side(); misc(g,2 if had else 4)
            mf(ti,ab)
        had=bool(g.sideq); g.side(); misc(g,2 if had else 4)
    g.stamp(); g.stamp('s1'); g.stamp('dm')
    if LATEW: g.flush_side(); g.sideq+=wd(10)+wd(11)+[lambda: g('s_waitcnt lgkmcnt(0)')]
    g.sideq+=wd(12)+wd(13)
    def trop(pr):
        def op():
            g.wait(f'w{pr}')
            for x in w2_trl(pr,vTB,wl[pr])[:4]: g(x)
        def op2():
            for x in w2_trl(pr,vTB,wl[pr])[4:]: g(x)
        return [op,op2]
    NJ=g.opt.get('nj',4)
    for pr in range(8,min(12,14-NJ)): g.sideq+=trop(pr)
    g.sideq+=[lambda: [misc(g,1) for _ in range(len(g.miscq)-len(trig))]]
    def zc(ti):
        Z=[32,216][ti&1]; L=[]
        for ab in range(2):
            d=ACC+32*ti+16*ab
            for i in range(8): L.append(f'v_cvt_pk_bf16_f32 v{Z+8*ab+i}, v{d+2*i}, v{d+2*i+1}')
        return L
    for x in zc(0): g(x)
    for ti in range(4):
        Z=[32,216][ti&1]
        za=[Z,Z+4]; zb=[Z+8,Z+12]; ur=ACC+32*ti; ui=ur+16
        nxt=zc(ti+1) if ti<3 else []
        seq=[(ur,CC[0],za[0],1),(ui,CC[0],zb[0],1),(ur,CC[1],za[1],0),(ui,CC[1],zb[1],0),(ur,SS[0],zb[0],0),(ui,NS[0],za[0],0),(ur,SS[1],zb[1],0),(ui,NS[1],za[1],0)]
        for n,(d,am,bm,first) in enumerate(seq):
            g(f'{MF} v[{d}:{d+15}], v[{am}:{am+3}], v[{bm}:{bm+3}], '+('0' if first else f'v[{d}:{d+15}]'))
            for x in nxt[2*n:2*n+2]: g(x)
            had=bool(g.sideq); g.side(); misc(g,(0 if had else 2)+(0 if nxt else 2))
    g.stamp('s1')
    g.flush_side(); misc(g,9999)
    g.stamp('s1')
    for op in xb2_ops(g): op()
    for pr in (12,13):
        if pr<14-NJ:
            for op in trop(pr): op()
    for k in range(NJ//2): g(f'v_add_u32 v{vJ[k][0]}, {wl[12-2*k]}, v{vTB[0]}\nv_add_u32 v{vJ[k][1]}, {wl[12-2*k]}, v{vTB[1]}')
    g.stamp('s1')
    srd(g,36,28,4<<20,add=U_OFF)
    g(f'''v_and_b32 v24, 31, v0
    v_lshrrev_b32 v25, 5, v0
    v_lshlrev_b32 v24, 4, v24
    v_lshl_add_u32 v24, v25, 18, v24
    s_lshl_b32 s53, s3, 9
    v_add_u32 v24, s53, v24
    s_lshl_b32 s53, s48, 1
    s_add_u32 s53, s53, s49
    s_lshl_b32 s53, s53, 11''')
    for r in range(16):
        o=32+4*(r&3)
        for ti in range(4): g(f'v_cvt_pk_bf16_f32 v{o+ti}, v{ACC+32*ti+r}, v{ACC+32*ti+16+r}')
        g(f's_add_u32 s54, s53, {(8*(r>>2)+(r&3))*65536}')
        g.vmem(f'buffer_store_dwordx4 v[{o}:{o+3}], v24, s[36:39], s54 offen sc1','st')
        if r<4:
            d,am,bm,first=((224,20,CC[0],1),(240,20,NS[0],1),(224,28,CC[1],0),(240,28,NS[1],0))[r]
            g(f'{MF} a[{d}:{d+15}], v[{am}:{am+3}], v[{bm}:{bm+3}], '+('0' if first else f'a[{d}:{d+15}]'))
        if r==6:
            for i in range(4): g(f'v_accvgpr_read_b32 v{48+2*i}, a{224+i}\nv_accvgpr_read_b32 v{49+2*i}, a{240+i}')
            g(f'''s_lshl_b32 s0, s48, 12
            s_add_u32 s0, s0, 0x200000
            s_lshl_b32 s1, s49, 2
            s_add_u32 s1, s1, s3
            s_cmp_eq_u32 s1, 1
            s_cselect_b32 s0, s0, {OOB}
            v_lshl_add_u32 v2, v0, 4, s0
            v_mov_b32 v3, {OOB}
            v_cmp_gt_u32 vcc, 32, v0''')
            for i in range(4): g(f'v_cvt_pk_bf16_f32 v{28+i}, v{48+2*i}, v{49+2*i}')
            g('v_cndmask_b32 v2, v3, v2, vcc')
            g.vmem('buffer_store_dwordx4 v[28:31], v2, s[36:39], 0 offen sc1','st')
    g.stamp(); g.stamp('s1')
    g('v_mov_b32 v2, s47')
    g.vmem(f'buffer_load_dword v3, v{vPL}, s[40:43], 0 offen sc1','poll')
    def sig():
        g.wait('poll')
        g.stamp('s1')
        g('s_waitcnt lgkmcnt(0)\ns_barrier')
        if not g.opt.get('dlate',0): g(f'buffer_store_dword v2, v{vSG}, s[40:43], 0 offen sc1')
    if g.opt.get('dsig',1): g.dsig=sig
    else: sig()
    g('s_lshl_b32 s53, s3, 12')
    for d in (1,2,3): g(f's_add_u32 s{5+d}, s53, {(d-1)*16384}\ns_xor_b32 s{8+d}, s{5+d}, {d*4096}')
    g('s_lshr_b32 s12, s53, 1\ns_add_u32 s12, s12, 49152')

def p2(g, role):
    M=(role=='m') and g.opt.get('merge',0)
    X=role
    ACC=64; ACS=128; UF=144
    XS=32768+4096
    HR=[16+8*i for i in range(5)]+[192+8*i for i in range(5)]
    NH=len(HR)
    g.stamp(); g.stamp('tail')
    srd(g,36,28,7340032); srd(g,32,28,4<<20,add=U_OFF); srd(g,72,24,2097152)
    g(f'''s_sub_u32 s62, 32, s71
    s_and_b32 s62, s62, 31
    s_cmp_lt_u32 s70, 4
    s_cselect_b32 s62, s71, s62
    s_lshl_b32 s62, s62, 16
    v_mov_b32 v185, 0
    v_mov_b32 v186, 0
    v_mov_b32 v187, 0
    v_mov_b32 v188, 0x3f80
    v_cmp_gt_u32 vcc, 32, v0
    v_mov_b32 v189, 0
    v_mov_b32 v190, 0
    v_cndmask_b32 v188, 0, v188, vcc
    v_mov_b32 v191, 0
    s_mul_i32 s57, s71, 112
    s_mul_i32 s53, s3, 28
    s_add_u32 s57, s57, s53
    s_lshl_b32 s57, s57, 11
    s_add_u32 s59, s57, {28*2048}
    s_lshl_b32 s53, s44, 12
    s_add_u32 s58, s57, s53
    v_mov_b32 v2, s47
    s_mov_b32 s56, {SPIN}''')
    for d in (1,2,3):
        g(f'v_lshl_add_u32 v{9+d}, v0, 4, s{5+d}')
    g(f'v_mov_b32 v9, v{vFL}')
    if M:
        NW=g.nw; ops=[]
        for pr in range(NW,8): ops+=w2_pair_ops(g,pr)
        t01=w2_trl(0)+w2_trl(1)
        for n,op in enumerate(ops):
            op()
            if n==3: g.wait('w1')
            if n>=3 and t01:
                for x in t01[:2]: g(x)
                del t01[:2]
        for x in t01: g(x)
        g.vmem(f'buffer_load_dword v3, v{vPL}, s[40:43], 0 offen sc1','poll')
        for pr in (8,9):
            for op in w2_pair_ops(g,pr): op()
        g.wait('poll')
    if role=='d' and g.opt.get('dsig',1): g.dsig()
    PD=g.opt.get('pdepth',1)
    if PD>1 and not M:
        ld=lambda r: f'buffer_load_dword v{r}, v{vPL}, s[40:43], 0 offen sc1'
        SL=g.opt.get('psl',3)
        if role=='m': g(ld(3)+f'\nv_mov_b32 v184, v{vB2}\ns_waitcnt vmcnt(0)')
        else: g(f'v_mov_b32 v184, v{vB2}')
        g('v_cmp_ne_u32 vcc, s47, v3\ns_cbranch_vccnz L_pslow\nL_go:')
        R=[3,4,5,6][:PD]
        t='L_pslow:\n'
        for r in R[:-1]: t+=ld(r)+f'\ns_sleep {SL}\n'
        t+='L_poll:\n'
        for k in range(PD):
            t+=ld(R[(k-1)%PD])+f'\ns_waitcnt vmcnt({PD-1})\nv_cmp_ne_u32 vcc, s47, v{R[k]}\ns_cbranch_vccz L_go\ns_sleep {g.opt.get("psl2",1)}\n'
        t+='s_sub_u32 s56, s56, 1\ns_cbranch_scc0 L_poll\ns_branch L_go'
        ool(g,t)
    else:
        if role=='m' and not M: g(f'L_poll:\nbuffer_load_dword v3, v{vPL}, s[40:43], 0 offen sc1\nv_mov_b32 v184, v{vB2}\ns_waitcnt vmcnt(0)')
        else: g(f'v_mov_b32 v184, v{vB2}\nL_poll:')
        g('v_cmp_ne_u32 vcc, s47, v3\ns_cbranch_vccnz L_pslow\nL_go:')
        ool(g,f'''L_pslow:
        s_sleep {g.opt.get('sleep',4)}
        '''+('' if (role=='m' and not M) else f'buffer_load_dword v3, v{vPL}, s[40:43], 0 offen sc1\ns_waitcnt vmcnt(0)\n')+'''s_sub_u32 s56, s56, 1
        s_cbranch_scc0 L_poll
        s_branch L_go''')

    if not M: g.vm=['old']*30
    g.stamp(); g.stamp('tail')
    hidx=[0]
    def hload():
        ks=hidx[0]; r=HR[ks%NH]
        g.vmem(f'buffer_load_dwordx4 v[{r}:{r+3}], v{vH0}, s[36:39], s58 offen offset:{2048*(ks&1)} {g.opt.get("hld","sc1").replace("none","")}',f'h{ks}')
        g.vmem(f'buffer_load_dwordx4 v[{r+4}:{r+7}], v{vH1}, s[36:39], s58 offen offset:{2048*(ks&1)} {g.opt.get("hld","sc1").replace("none","")}',f'h{ks}')
        if ks&1 and ks<27: g('s_add_u32 s58, s58, 4096\ns_cmp_eq_u32 s58, s59\ns_cselect_b32 s58, s57, s58')
        hidx[0]+=1
    HD=g.opt.get('hdepth',8)
    g(f's_waitcnt lgkmcnt(0)\ns_mov_b32 s55, 0x80000')
    for i in range(HD):
        hload()
        if role=='d' and g.opt.get('dlate',0) and i==g.opt.get('dlate',0)*4-1: g.vmem(f'buffer_store_dword v2, v{vSG}, s[40:43], 0 offen sc1','sig')
    g(f'{MF} v[{ACC}:{ACC+15}], v[184:187], v[188:191], 0')
    XA=[236,237,238,239]
    xa=Rec()
    xa(f'''v_and_b32 v236, 31, v0
    v_lshrrev_b32 v237, 5, v0
    v_lshlrev_b32 v237, 3, v237
    v_lshl_add_u32 v237, v236, 6, v237
    v_bfe_u32 v236, v0, 2, 2
    v_lshl_add_u32 v236, v236, 4, v237
    v_add_u32 v236, s12, v236
    v_xor_b32 v237, 16, v236
    v_xor_b32 v238, 32, v236
    v_xor_b32 v239, 48, v236
    v_lshl_add_u32 v240, v0, 4, s12''')
    KF=g.opt.get('kflag',11)
    NL=g.opt.get('nlast',3)
    def mf(ks,a_,b):
        r=HR[ks%NH]; d=ACC+16*(a_+2*b)
        c='0' if (ks==0 and (a_ or b)) else f'v[{d}:{d+15}]'
        g(f'{MF} v[{d}:{d+15}], a[{8*ks+4*a_}:{8*ks+4*a_+3}], v[{r+4*b}:{r+4*b+3}], {c}')
    checked=False
    NJ=g.opt.get('nj',4)
    jit=[x for pr in range(14-NJ,14) for x in w2_trl(pr,vJ[(13-pr)>>1],4096*(pr&1))]
    late=[]
    if M:
        jit=[x for pr in range(2,14) for x in w2_trl(pr)]
        for pr in range(10,14): late+=w2_pair_ops(g,pr)
    g.miscq=xa.l+(trig_ops(0) if g.opt.get('trigp2',1) else [])
    for ks in range(28-NL):
        g.wait(f'h{ks}')
        if NJ and ks==16 and not M: g('s_waitcnt lgkmcnt(0)')
        if M and ks>=4 and ks%2==0: g('s_waitcnt lgkmcnt(8)')
        if M and ks>=16 and ks%2==0 and ks<=22: g.wait(f'w{ks//2+2}')
        if ks==0:
            g.stamp()
        for b in range(2):
            for a_ in range(2):
                mf(ks,a_,b)
                if a_==0 and b==0 and (ks>=1 or M) and jit:
                    for x in jit[:4]: g(x)
                    del jit[:4]
                elif a_==1 and b==0 and late:
                    late.pop(0)(); late.pop(0)()
                elif not (a_==1 and b==1): misc(g,g.opt.get('p2misc',6 if M else 4))
            if b==0 and g.sideq: g.side()
        if hidx[0]<28: hload()
        elif g.sideq: g.side()
        if ks==(10 if M else 2):
            g('s_mov_b32 m0, s12')
            g.vmem(f'buffer_load_dwordx4 v{vXO}, s[76:79], 0 offen lds','xl')
            g('s_add_u32 m0, m0, 1024')
            g.vmem(f'buffer_load_dwordx4 v{vXO}, s[76:79], s55 offen lds','xl')
        if ks==(24 if M else 22):
            assert 'xl' not in g.vm
            for q in range(4): g(f'ds_read_b64 v[{XR+2*q}:{XR+2*q+1}], v{XA[q]}')
        if ks==KF: g.vmem(f'buffer_load_dword v176, v9, s[40:43], 0 offen sc1','fl')
        if 'fl' not in g.vm and ks>KF and not checked:
            checked=True
            g(f'''L_chk:
            v_cmp_ne_u32 vcc, s47, v176
            s_cbranch_vccnz L_uslow
            L_allset:''')
            ool(g,'''L_uslow:
            s_sleep 8
            buffer_load_dword v176, v9, s[40:43], 0 offen sc1
            s_waitcnt vmcnt(0)
            s_sub_u32 s56, s56, 1
            s_cbranch_scc0 L_chk
            s_branch L_allset''')
            def mku(j):
                def op():
                    g(f's_add_u32 s53, s62, {8192*j}')
                    g.vmem(f'buffer_load_dwordx4 v[{UF+4*j}:{UF+4*j+3}], v{vU}, s[32:35], s53 offen sc1','u')
                return op
            g.sideq+=[mku(j) for j in range(8)]
    assert checked
    if g.miscq: print('p2',role,'misc left',len(g.miscq),file=sys.stderr)
    misc(g,9999)
    g.flush_side()
    if M: g('s_waitcnt lgkmcnt(4)')
    XF=176
    def wr(d):
        for q in range(4):
            r=ACC+16*d+4*q
            g(f'ds_write_b128 v{9+d}, v[{r}:{r+3}] offset:{1024*q}')
    assert NL==3
    wl_=lambda d: [f'ds_write_b128 v{9+d}, v[{ACC+16*d+4*q}:{ACC+16*d+4*q+3}] offset:{1024*q}' for q in range(4)]
    unp=[x for i in range(8) for x in (f'v_lshlrev_b32 v{XF+2*i}, 16, v{XR+i}',f'v_and_b32 v{XF+2*i+1}, s63, v{XR+i}')]
    fill={3:[['s_mov_b32 s63, 0xffff0000'],[],['s_waitcnt lgkmcnt(0)']+unp[:3]],
          2:[unp[3:8],unp[8:12],unp[12:16]],
          1:[wl_(3)[:2],wl_(3)[2:],[f's_mov_b32 s60, {f2u(-math.log2(math.e)):#x}','s_mov_b32 s61, s60','s_mov_b32 s62, 1.0','s_mov_b32 s63, 1.0']],
          0:[[],wl_(2)[:2],wl_(2)[2:]]}
    for d in (3,2,1,0):
        for n,ks in enumerate(range(25,28)):
            g.wait(f'h{ks}')
            mf(ks,d&1,d>>1)
            for x in fill[d][n]: g(x)
    g.stamp()
    def smm(j): g(f'{MF} v[{ACS}:{ACS+15}], v[{UF+4*j}:{UF+4*j+3}], a[{224+4*j}:{227+4*j}], '+('0' if j==0 else f'v[{ACS}:{ACS+15}]'))
    g.waitall()
    smm(0)
    for x in wl_(1)[:2]: g(x)
    smm(1)
    for x in wl_(1)[2:]: g(x)
    SB=g.opt.get('sbar',3)
    for j in range(2,SB): smm(j)
    for d in (1,2,3): g(f'v_lshl_add_u32 v{9+d}, v0, 4, s{8+d}')
    g('s_waitcnt lgkmcnt(0)\ns_barrier')
    rds=[f'ds_read_b128 v[{[192,208,16][d]+4*q}:{[192,208,16][d]+4*q+3}], v{10+d} offset:{1024*q}' for q in range(4) for d in range(3)]
    for j in range(max(SB,2),8):
        smm(j)
        for x in rds[:4]: g(x)
        del rds[:4]
    for x in rds: g(x)
    if role=='m':
        g('s_lshl_b32 s1, s2, 2\ns_add_u32 s1, s1, s3\ns_cmp_eq_u32 s1, 803\ns_cbranch_scc1 L_ep0\nL_noep0:')
        ool(g,'''L_ep0:
        v_lshrrev_b32 v4, 2, v0
        v_and_b32 v5, 3, v0
        v_lshl_add_u32 v4, v4, 3, v5
        v_lshlrev_b32 v4, 8, v4
        buffer_load_dwordx4 v[6:9], v4, s[40:43], 0 offen sc1
        s_branch L_noep0''')
    T=80
    for hf in range(2):
        g(f's_waitcnt lgkmcnt({6-4*hf})')
        I=range(4*hf,4*hf+4)
        for i in I: g(f'v_pk_add_f32 v[{192+2*i}:{193+2*i}], v[{192+2*i}:{193+2*i}], v[{208+2*i}:{209+2*i}]')
        for i in I: g(f'v_pk_add_f32 v[{ACC+2*i}:{ACC+2*i+1}], v[{ACC+2*i}:{ACC+2*i+1}], v[{16+2*i}:{17+2*i}]')
        for i in I: g(f'v_pk_add_f32 v[{ACC+2*i}:{ACC+2*i+1}], v[{ACC+2*i}:{ACC+2*i+1}], v[{192+2*i}:{193+2*i}]')
        for i in I: g(f'v_pk_mul_f32 v[{T+2*i}:{T+2*i+1}], v[{ACC+2*i}:{ACC+2*i+1}], s[60:61]')
        for i in I: g(f'v_exp_f32 v{T+2*i}, v{T+2*i}\nv_exp_f32 v{T+2*i+1}, v{T+2*i+1}')
        for i in I: g(f'v_pk_add_f32 v[{T+2*i}:{T+2*i+1}], v[{T+2*i}:{T+2*i+1}], s[62:63]')
        for i in I: g(f'v_rcp_f32 v{T+2*i}, v{T+2*i}\nv_rcp_f32 v{T+2*i+1}, v{T+2*i+1}')
        sp=lambda r: ACS+4*(2*(r>>3)+(r&1))+2*((r>>2)&1)+((r>>1)&1)
        for i in I:
            for r in (2*i,2*i+1): g(f'v_mul_f32 v{ACC+r}, v{ACC+r}, v{sp(r)}')
        for i in I: g(f'v_pk_fma_f32 v[{T+2*i}:{T+2*i+1}], v[{T+2*i}:{T+2*i+1}], v[{ACC+2*i}:{ACC+2*i+1}], v[{XF+2*i}:{XF+2*i+1}]')
        for i in I: g(f'v_cvt_pk_bf16_f32 v{96+i}, v{T+2*i}, v{T+2*i+1}')
        for q in (2*hf,2*hf+1): g(f'ds_write_b64 v{XA[q]}, v[{96+2*q}:{97+2*q}]')
    g('s_waitcnt lgkmcnt(0)\nds_read_b128 v[104:107], v240\nds_read_b128 v[108:111], v240 offset:1024\ns_waitcnt lgkmcnt(1)')
    g(f'buffer_store_dwordx4 v[104:107], v{vXO}, s[72:75], 0 offen {g.opt.get("outfl","")}\ns_waitcnt lgkmcnt(0)\nbuffer_store_dwordx4 v[108:111], v{vXO}, s[72:75], s55 offen {g.opt.get("outfl","")}')
    if role=='m':
        g('s_cmp_eq_u32 s1, 803\ns_cbranch_scc1 L_ep1\nL_noep:')
        ool(g,f'''L_ep1:
        s_waitcnt vmcnt(2)
        L_ep:
        v_xor_b32 v6, s47, v6
        v_xor_b32 v7, s47, v7
        v_xor_b32 v8, s47, v8
        v_xor_b32 v9, s47, v9
        v_or3_b32 v6, v6, v7, v8
        v_or_b32 v6, v6, v9
        v_cmp_ne_u32 vcc, 0, v6
        s_cbranch_vccz L_epok
        s_sleep 8
        buffer_load_dwordx4 v[6:9], v4, s[40:43], 0 offen sc1
        s_waitcnt vmcnt(0)
        s_sub_u32 s56, s56, 1
        s_cbranch_scc0 L_ep
        L_epok:
        v_mov_b32 v3, {EPO}
        s_mov_b64 exec, 1
        buffer_store_dword v2, v3, s[40:43], 0 offen sc1
        s_mov_b64 exec, -1
        s_branch L_noep''')
    g.stamp()

DOC=""";
;   224 MLP workgroups: 128 rows x 128 hidden columns of gelu(LN(LN(x)) @ w1 + b1). The GEMM runs on raw x; both LayerNorms are
;     folded into one extra K-step (-mean * colsum(w1) + b1 / rstd) and a per-row scale. h goes to d_ws in MFMA fragment order.
;     butterfly + normalisation, half-size hidden DFT against the dft_hid tables, DFT-32 along the sequence (s = 64*s1 + s2) -> U.
;     Bins above 256 follow from the Hermitian symmetry; bin 0 is the residue left by the bf16-rounded mean.
; Hand-offs between workgroups: write-through stores, drained, then flag words / tagged granules holding a per-launch tag that is
; derived from an epoch word in d_ws (advanced once every workgroup has read it), so older launches' words never match.
"""
def build(stamps=False, opt=None):
    global vTm0,vTm1
    if (opt or {}).get('merge',0): vTm0,vTm1=241,242
    g=G(stamps,opt); g.miscq=[]; g.outofline=[]
    def sfx(L,x): return [re.sub(r'\b(L_go|L_poll|L_pslow|L_ep0|L_ep1|L_chk|L_uslow|L_allset|L_noep0|L_noep|L_epok|L_ep)\b', r'\1_'+x, l) for l in L]
    entry(g)
    head=list(g.a.l); vm0=list(g.vm); n0=g.nst
    g.a.l=[]; p1_mlp(g); mlp=list(g.a.l)
    oo=g.outofline; g.outofline=[]
    g.a.l=[]; p2(g,'m'); g.dump_stamps(TS_OFF); mlp+=sfx(g.a.l,'m')+['    s_endpgm']; oo+=sfx(g.outofline,'m'); g.outofline=[]
    g.a.l=[]; g.vm=list(vm0); g.nst=n0; g.miscq=[]
    p1_dft(g); dft=list(g.a.l)
    k=[i for i,x in enumerate(dft) if '@@SPLIT@@' in x][0]
    g.a.l=[]; p2(g,'d'); g.dump_stamps(TS_OFF); dft+=sfx(g.a.l,'d'); oo+=sfx(g.outofline,'d')
    km=[i for i,x in enumerate(mlp) if '@@SPLIT@@' in x][0]
    lines=head+mlp[:km]+['    s_branch L_mlp','L_dfte:']+dft[:k]+['    s_branch L_dft','L_mlp:']+mlp[km+1:]+['L_dft:']+dft[k+1:]+['L_end:','    s_endpgm']+oo+['L_codeend:']
    body='\n'.join(hazard.fix(lines))+'\n'
    txt=wrap([dict(name=KN,body=body,grid=256,block=256,lds=163840,vgpr=512,accum=256)],HDR)
    return txt.replace('.amdgcn_target',DOC+'.amdgcn_target',1)
if __name__=='__main__':
    out=sys.argv[1]; st='stamps' in sys.argv[2:]
    opt={}
    for a in sys.argv[2:]:
        if '=' in a:
            k,v=a.split('='); opt[k]=int(v) if v.lstrip('-').isdigit() else v
    open(out,'w').write(build(st,opt))
```

```python
import sys, math, struct, re
sys.path.insert(0,'tools')
from asmlib import A, wrap, KN
import hazard
from gen3 import G, srd, t1_of, f2u, HDR, U_OFF, ST_OFF, CS_REL, TS_OFF, SPIN

F_OFF = 12<<20
F2 = 8192
FU=65536; EPO=73728
A0_REL=(ST_OFF-F_OFF)+(512<<10)
WT_OFF = 14<<20
vB2, vXO = 254, 255
vD=[226+i for i in range(0)]
vDM=[246,247,248,249]
vT=[250,251,252,253]
XR=246
vSG,vH0,vH1,vU,vFL,vPL = 58,59,60,61,62,63
vTT=245
MF='v_mfma_f32_32x32x16_bf16'
OOB='0x40000000'

class Rec:
    def __init__(s): s.l=[]
    def __call__(s,t):
        for x in t.split('\n'):
            x=x.strip()
            if x: s.l.append(x)
def ool(g, text):
    g.outofline+=[x.strip() if x.strip().endswith(':') else '    '+x.strip() for x in text.split('\n') if x.strip()]
def misc(g, n):
    while n>0 and g.miscq:
        x=g.miscq.pop(0); g(x)
        n-= x.count('\n')+1 + (1 if ('v_cos' in x or 'v_sin' in x) else 0)
def epoch_load(g):
    g(f's_add_u32 s60, s28, {F_OFF+EPO}\ns_addc_u32 s61, s29, 0\ns_load_dword s47, s[60:61], 0')
def nonce(g):
    g('s_mul_i32 s47, s47, 0x9e3779b1\ns_add_u32 s47, s47, 0x85ebca6b')

def p2_setup_ops(g, dft):
    r=Rec(); t=lambda i:f'v{1000+i}'
    if g.opt.get('dmix',1):
        if dft: r('s_mul_i32 s31, s31, 9')
        else:
            for v in (1,2,3): r.l.append(f's_cmp_eq_u32 s31, {9*v}\ns_cselect_b32 s31, {v}, s31')
    if g.opt.get('p2arr',84)==48:
        r('''s_and_b32 s70, s31, 7
        s_lshr_b32 s0, s31, 4
        s_lshl_b32 s1, s30, 1
        s_add_u32 s45, s0, s1
        s_bfe_u32 s1, s31, 0x10003''')
    else:
        r('''s_and_b32 s70, s30, 1
        s_lshl_b32 s70, s70, 2
        s_lshr_b32 s0, s31, 2
        s_add_u32 s0, s0, s31
        s_and_b32 s0, s0, 3
        s_add_u32 s70, s70, s0
        s_lshr_b32 s45, s30, 1
        s_lshl_b32 s45, s45, 2
        s_lshr_b32 s0, s31, 3
        s_add_u32 s45, s45, s0
        s_bfe_u32 s1, s31, 0x10002''')
    r.l.append('s_sub_u32 s0, 32, s45\ns_cmp_eq_u32 s45, 0\ns_cselect_b32 s0, 16, s0\ns_cmp_eq_u32 s1, 0\ns_cselect_b32 s71, s45, s0')
    wr=g.opt.get('wrot',3)
    if wr==0: r('s_mov_b32 s44, 0')
    elif wr==1: r('s_mul_i32 s44, s30, 7\ns_lshr_b32 s44, s44, 2')
    elif wr==3: r('s_lshr_b32 s44, s31, 2\ns_mul_i32 s44, s44, 7\ns_lshr_b32 s44, s44, 2')
    elif wr==5: r('s_lshr_b32 s44, s31, 2\ns_max_u32 s44, s44, 1\ns_sub_u32 s44, s44, 1\ns_lshl_b32 s44, s44, 1')
    elif wr==4: r('s_lshr_b32 s44, s31, 3\ns_mul_i32 s44, s44, 7\ns_lshr_b32 s44, s44, 1')
    elif wr==2: r('s_lshr_b32 s44, s30, 1\ns_mul_i32 s44, s44, 7\ns_lshr_b32 s44, s44, 1')
    ho={0:None,1:(1,7),2:(1,4),3:(3,3),4:(3,1),5:(1,2)}[g.opt.get('hoff',0)]
    if ho:
        r.l.append(f's_and_b32 s0, s70, {ho[0]}\ns_mul_i32 s0, s0, {ho[1]}\ns_add_u32 s44, s44, s0\ns_cmp_ge_u32 s44, 14\ns_cselect_b32 s0, 14, 0\ns_sub_u32 s44, s44, s0'.replace('{ho[0]}',str(ho[0])) )
    r(f'''s_lshl_b32 s68, s44, 15
    s_lshl_b32 s69, s3, 13
    v_lshrrev_b32 {t(4)}, 3, v0
    v_bfe_u32 {t(5)}, v0, 4, 1
    v_lshlrev_b32 {t(6)}, 2, {t(5)}
    v_and_b32 {t(7)}, 7, v0
    v_xor_b32 {t(6)}, {t(6)}, {t(7)}
    v_lshlrev_b32 {t(6)}, 4, {t(6)}
    v_lshl_add_u32 {t(6)}, {t(4)}, 10, {t(6)}
    s_mul_i32 s0, s3, {448*1024}
    s_lshl_b32 s1, s70, 7
    s_add_u32 s0, s0, s1
    v_add_u32 v{vDM[0]}, s0, {t(6)}
    v_add_u32 v{vDM[1]}, {7168}, v{vDM[0]}
    v_add_u32 v{vDM[2]}, {2*7168}, v{vDM[0]}
    v_add_u32 v{vDM[3]}, {3*7168}, v{vDM[0]}''')
    srd(r,64,20,1792*512*2)
    early=r.l; r=Rec()
    srd(r,72,22,1024); srd(r,76,4,2097152)
    r(f'''v_lshrrev_b32 {t(4)}, 5, v0
    v_bfe_u32 {t(5)}, v0, 4, 1
    v_bfe_u32 {t(6)}, v0, 2, 2
    v_lshl_add_u32 {t(7)}, {t(4)}, 2, {t(6)}
    v_lshlrev_b32 {t(7)}, 7, {t(7)}
    v_lshrrev_b32 {t(6)}, 1, {t(6)}
    s_and_b32 s0, s3, 1
    v_xor_b32 {t(6)}, s0, {t(6)}
    v_lshl_add_u32 {t(7)}, {t(6)}, 6, {t(7)}
    v_lshl_add_u32 {t(7)}, {t(5)}, 5, {t(7)}
    v_and_b32 {t(6)}, 3, v0
    v_lshl_add_u32 {t(7)}, {t(6)}, 3, {t(7)}
    v_add_u32 v{vT[0]}, s69, {t(7)}
    v_xor_b32 v{vT[1]}, 64, v{vT[0]}
    v_add_u32 v{vT[2]}, 0x18000, v{vT[0]}
    v_add_u32 v{vT[3]}, 0x18000, v{vT[1]}
''')
    UL=g.opt.get('uline',0)
    if UL==32: r(f's_mov_b32 s0, {FU}\nv_lshrrev_b32 {t(7)}, 1, v0\nv_lshl_add_u32 v{vFL}, {t(7)}, 7, s0')
    elif UL==8: r(f's_mov_b32 s0, {FU}\nv_bfe_u32 {t(7)}, v0, 2, 3\nv_lshl_add_u32 {t(7)}, {t(7)}, 7, s0\nv_and_b32 {t(6)}, 3, v0\nv_lshl_add_u32 v{vFL}, {t(6)}, 2, {t(7)}')
    else: r(f'''s_and_b32 s0, s30, {g.opt.get('urep',2)-1}
    s_lshl_b32 s0, s0, 9
    s_add_u32 s0, s0, {FU}
    v_and_b32 {t(7)}, 31, v0
    v_lshl_add_u32 v{vFL}, {t(7)}, 2, s0''')
    r(f'''
''')
    if g.opt.get('fline',1):
        r(f'''s_mul_i32 s0, s3, 7
        s_lshr_b32 s0, s0, 1
        s_lshl_b32 s1, s45, 4
        s_add_u32 s0, s0, s1
        s_lshl_b32 s0, s0, 1
        s_and_b32 s1, s30, 1
        s_add_u32 s0, s0, s1
        s_lshl_b32 s0, s0, 7
        v_bfe_u32 {t(6)}, v0, 2, 2
        v_lshl_add_u32 v{vPL}, {t(6)}, 8, s0''')
    else: r(f'''s_lshl_b32 s0, s45, 1
    s_and_b32 s1, s30, {g.opt.get('hrep',2)-1}
    s_add_u32 s0, s0, s1
    s_lshl_b32 s0, s0, 2
    s_add_u32 s0, s0, s3
    s_lshl_b32 s0, s0, 8
    v_and_b32 {t(6)}, 3, v0
    v_lshl_add_u32 v{vPL}, {t(6)}, 2, s0''')
    r(f'''
    s_lshr_b32 s1, s3, 1
    s_lshl_b32 s0, s1, 10
    v_lshl_add_u32 v{vH0}, v0, 4, s0
    v_xor_b32 v{vH1}, 0x400, v{vH0}
    s_lshl_b32 s0, s1, 5
    v_and_b32 {t(6)}, 31, v0
    v_add_u32 {t(5)}, s0, {t(6)}
    v_lshlrev_b32 {t(5)}, 5, {t(5)}
    v_add_u32 v{vTT}, s71, {t(5)}
    s_lshl_b32 s0, s0, 15
    s_lshl_b32 s1, s71, 10
    s_add_u32 s1, s1, s0
    v_lshrrev_b32 {t(5)}, 2, v0
    v_lshlrev_b32 {t(5)}, 15, {t(5)}
    v_lshrrev_b32 {t(7)}, 4, v0
    v_xor_b32 {t(7)}, {t(7)}, v0
    v_and_b32 {t(7)}, 3, {t(7)}
    v_lshl_add_u32 {t(5)}, {t(7)}, 4, {t(5)}
    v_add_u32 {t(5)}, s1, {t(5)}
    s_lshl_b32 s0, s70, 7
    s_and_b32 s1, s3, 1
    s_lshl_b32 s1, s1, 6
    s_add_u32 s0, s0, s1
    v_add_u32 v{vXO}, s0, {t(5)}
    v_lshl_add_u32 v{vB2}, {t(6)}, 1, s0
    s_lshr_b32 s0, s0, 1
    v_and_b32 {t(5)}, 20, v0
    v_bfe_u32 {t(7)}, v0, 1, 1
    v_lshl_add_u32 {t(5)}, {t(7)}, 3, {t(5)}
    v_and_b32 {t(7)}, 1, v0
    v_lshl_add_u32 {t(5)}, {t(7)}, 1, {t(5)}
    v_bfe_u32 {t(7)}, v0, 3, 1
    v_add3_u32 {t(6)}, {t(5)}, {t(7)}, s0''')
    r.l.append('s_cmp_lt_u32 s70, 4\ns_cselect_b32 s0, 0, -1\ns_cselect_b32 s1, 0, 513')
    r(f'''v_xor_b32 {t(7)}, s0, {t(6)}
    v_add_u32 {t(7)}, s1, {t(7)}
    v_and_b32 {t(8)}, 1, {t(7)}
    v_lshlrev_b32 {t(8)}, 11, {t(8)}
    v_bfe_u32 {t(7)}, {t(7)}, 1, 7
    v_lshl_add_u32 {t(7)}, {t(7)}, 4, {t(8)}
    v_lshl_add_u32 {t(7)}, {t(4)}, 12, {t(7)}
    s_mul_i32 s0, s71, 65520
    s_sub_u32 s0, 0x200000, s0
    v_add_u32 {t(8)}, s0, {t(7)}
    v_cmp_eq_u32 vcc, 0, {t(6)}
    s_nop 0
    v_cndmask_b32 v{vU}, {t(7)}, {t(8)}, vcc
    v_mov_b32 {t(8)}, {OOB}''')
    if True:
        r.l.append(f's_cmp_eq_u32 s3, 0\ns_cselect_b32 s0, s46, {OOB}')
        if dft:
            UL=g.opt.get('uline',0)
            r(f'''v_cmp_gt_u32 vcc, {8 if UL==32 else 1 if UL==8 else g.opt.get('urep',2)}, v0
            v_lshl_add_u32 {t(10)}, v0, {4 if UL==32 else 9}, s0
            s_nop 0
            v_cndmask_b32 v{vSG}, {t(8)}, {t(10)}, vcc''')
        elif g.opt.get('fline',1):
            r(f'''v_cmp_gt_u32 vcc, {2 if g.opt.get('fline',1)==3 else 16}, v0
            v_lshl_add_u32 {t(10)}, v0, {7 if g.opt.get('fline',1)==3 else 4}, s0
            s_nop 0
            v_cndmask_b32 v{vSG}, {t(8)}, {t(10)}, vcc''')
        else:
            r(f'''v_lshrrev_b32 {t(5)}, 1, v0
            v_mul_u32_u24 {t(6)}, 7, {t(5)}
            v_lshrrev_b32 {t(6)}, 1, {t(6)}
            v_sub_u32 {t(6)}, s49, {t(6)}
            v_and_b32 {t(7)}, 1, v0
            v_lshl_add_u32 {t(7)}, {t(7)}, 2, {t(5)}
            v_cmp_gt_u32 vcc, 4, {t(6)}
            v_lshlrev_b32 {t(7)}, 8, {t(7)}
            v_lshl_add_u32 {t(7)}, {t(6)}, 2, {t(7)}
            v_add_u32 {t(10)}, s0, {t(7)}
            v_cndmask_b32 {t(10)}, {t(8)}, {t(10)}, vcc
            v_and_b32 {t(7)}, {0x38 if g.opt.get('hrep',2)==2 else 0x39}, v0
            v_cmp_eq_u32 vcc, 0, {t(7)}
            s_nop 1
            v_cndmask_b32 v{vSG}, {t(8)}, {t(10)}, vcc''')
    else: r(f'v_mov_b32 v{vSG}, {t(8)}')
    return early, r.l, []
def trig_ops(fract=True, TMX=None):
    r=Rec(); t=lambda i:f'v{1000+i}'
    r.l.append(f's_cmp_lt_u32 s70, 4\ns_cselect_b32 s0, 0, 0x80000000')
    r(f'''s_or_b32 s0, s0, {f2u(1/2048):#x}
    v_mov_b32 {t(5)}, v{vTT}
    v_lshrrev_b32 {t(6)}, 5, v0
    v_cvt_f32_u32 {t(5)}, {t(5)}
    v_cvt_f32_u32 {t(6)}, {t(6)}
    v_mul_f32 {t(5)}, s0, {t(5)}
    v_cmp_gt_u32 s[0:1], 32, v0
    v_mul_f32 {t(6)}, {t(6)}, {t(5)}
    v_mul_f32 {t(7)}, {f2u(32.0):#x}, {t(5)}
    v_add_f32 {t(5)}, {t(5)}, {t(5)}
    v_mul_f32 {t(9)}, 0.5, {t(7)}
    v_cndmask_b32 {t(9)}, {t(7)}, {t(9)}, s[0:1]''')
    for j in range(8):
        if j: r(f'v_add_f32 {t(6)}, {t(6)}, {t(5)}')
        if fract:
            r(f'''v_add_f32 {t(1)}, {t(6)}, {t(7)}
            v_sub_f32 {t(2)}, {t(9) if j==0 else t(7)}, {t(6)}
            v_fract_f32 {t(0)}, {t(6)}
            v_add_f32 {t(3)}, {t(2)}, {t(7)}
            v_fract_f32 {t(1)}, {t(1)}
            v_fract_f32 {t(2)}, {t(2)}
            v_fract_f32 {t(3)}, {t(3)}''')
        else:
            r(f'''v_add_f32 {t(1)}, {t(6)}, {t(7)}
            v_sub_f32 {t(2)}, {t(9) if j==0 else t(7)}, {t(6)}
            v_add_f32 {t(3)}, {t(2)}, {t(7)}''')
        for i in range(4):
            a_=t(i) if (fract or i) else t(6)
            r(f'v_cos_f32 {t(12+2*i)}, {a_}\nv_sin_f32 {t(13+2*i)}, {a_}')
        for i in range(4): r(f'v_cvt_pk_bf16_f32 {t(20+i)}, {t(12+2*i)}, {t(13+2*i)}')
        for i in range(4): r(f'v_accvgpr_write_b32 a{224+4*j+i}, {t(20+i)}')
    TM={0:4,1:5,2:6,3:7,5:13,6:14,7:15,9:8}
    TM.update({12+i:128+i for i in range(8)}); TM.update({20+i:232+i for i in range(4)})
    return remap(r.l,TMX or TM)
def remap(L, TM):
    return [re.sub(r'v(10\d\d)\b', lambda m:'v%d'%TM[int(m.group(1))-1000], x) for x in L]
def xb2_ops(g):
    def o0(): g.vmem(f'buffer_load_ushort v{vB2}, v{vB2}, s[72:75], 0 offen','b2')
    return [o0]
def ppos(pr):
    p=pr%10
    return 131072+p*4096 if p<2 else ((p-2)>>1)*32768+(p&1)*4096
def w2_pair_ops(g, pr, base='s69', lds=None):
    if lds is None: lds=ppos(pr)
    def mk(i):
        def op():
            if i==0: g(f's_add_u32 m0, {base}, {lds}')
            g.vmem(f'buffer_load_dwordx4 v{vDM[i]}, s[64:67], s68 offen offset:{1024*i} lds', f'w{pr}')
            if i==3 and pr<13: g(f's_add_u32 s68, s68, 32768\ns_cmp_eq_u32 s68, {14*32768}\ns_cselect_b32 s68, 0, s68')
        return op
    return [mk(i) for i in range(4)]
def w2_trl(pr, regs=None, off=None):
    if regs is None:
        off=ppos(pr)
        if off>=65536 and off<0x18000: regs=('hi',);
        if off<65536: regs=vT[0:2]
        elif off>=0x18000: regs=vT[2:4]; off-=0x18000
        else: regs=[vTm0,vTm1]; off-=65536
    L=[]
    for k in range(2):
        for a_ in range(2):
            for q in range(2):
                r=8*(2*pr+k)+4*a_+2*q
                L.append(f'ds_read_b64_tr_b16 a[{r}:{r+1}], v{regs[a_]} offset:{off+2048*k+1024*q}')
    return L
vJ=[[241,242],[243,244]]
vTm0,vTm1=14,15

def entry(g):
    g('''s_cmp_ge_u32 s2, 256
    s_cbranch_scc1 L_end''')
    g.stamp()
    g('''s_load_dwordx16 s[4:19], s[0:1], 0
    s_load_dwordx8 s[20:27], s[0:1], 64
    s_load_dwordx2 s[28:29], s[0:1], 96
    v_lshrrev_b32 v1, 6, v0
    s_and_b32 s30, s2, 7
    s_lshr_b32 s31, s2, 3
    v_readfirstlane_b32 s3, v1''')
    if g.opt.get('codepf',1):
        g(f'''s_getpc_b64 s[50:51]
        L_pc:
        s_mul_i32 s53, s31, 1280
        v_lshl_add_u32 v2, v0, 3, s53
        v_min_u32 v2, L_codeend-L_pc-4, v2
        v_mov_b32 v3, s51
        v_add_co_u32 v2, vcc, s50, v2
        v_addc_co_u32 v3, vcc, 0, v3, vcc''')
        g.vmem('global_load_dword v1, v[2:3], off','pf')
    if g.opt.get('p1arr',48)==216:
        g('''v_and_b32 v0, 63, v0
        s_lshl_b32 s48, s30, 1
        s_and_b32 s53, s31, 1
        s_cmp_lt_u32 s31, 4
        s_cbranch_scc1 L_dft0
        s_add_u32 s48, s48, s53
        s_lshr_b32 s49, s31, 1
        s_sub_u32 s49, s49, 2
        s_mov_b32 s100, s53''')
        r=g.opt.get('rot',4)
        if r==1: g('s_lshl_b32 s56, s53, 2\ns_add_u32 s56, s56, s49\ns_and_b32 s56, s56, 7')
        elif r==2: g('s_add_u32 s56, s53, s49\ns_and_b32 s56, s56, 1\ns_lshl_b32 s56, s56, 2')
        elif r==4: g('s_lshl_b32 s56, s53, 1\ns_add_u32 s56, s56, s49\ns_and_b32 s56, s56, 3\ns_lshl_b32 s56, s56, 1')
        if g.opt.get('xph',0): g('s_add_u32 s56, s56, s30\ns_and_b32 s56, s56, 7')
        return
    rot=g.opt.get('rot',4)
    g('''v_and_b32 v0, 63, v0
    s_lshr_b32 s48, s30, 1
    s_lshl_b32 s55, s48, 1
    s_lshl_b32 s48, s48, 2
    s_and_b32 s100, s31, 3
    s_add_u32 s48, s48, s100
    s_lshr_b32 s49, s31, 2
    s_sub_u32 s49, s49, 1
    s_and_b32 s49, s49, 7''') if g.opt.get('dftfirst',1) else g('''v_and_b32 v0, 63, v0
    s_lshr_b32 s48, s30, 1
    s_lshl_b32 s55, s48, 1
    s_lshl_b32 s48, s48, 2
    s_lshr_b32 s100, s31, 3
    s_add_u32 s48, s48, s100
    s_and_b32 s49, s31, 7''')
    if rot==1:   g('s_lshl_b32 s56, s100, 1\ns_add_u32 s56, s56, s49\ns_and_b32 s56, s56, 7')
    elif rot==2: g('s_add_u32 s56, s100, s49\ns_and_b32 s56, s56, 1\ns_lshl_b32 s56, s56, 2')
    elif rot==4: g('s_add_u32 s56, s100, s49\ns_and_b32 s56, s56, 3\ns_lshl_b32 s56, s56, 1')
    elif rot==0: g('s_mov_b32 s56, 0')
    if g.opt.get('xph',0): g('s_add_u32 s56, s56, s55\ns_and_b32 s56, s56, 7')
    g('''s_and_b32 s53, s30, 1
    s_cmp_eq_u32 s49, 7
    s_cbranch_scc1 L_dfte''')

def p1_mlp(g):
    ACC=64
    vX=[2,3,4,5]; vW=[6,7,8,9]; vB=[10,11,12,13]; vA=[18,19]
    vSA,vCA,vCP,vCB=14,15,16,17
    vB1=[56,57]; CSA=164; SEL=168; GA=144; GF=160
    WP=200; vP0,vP1,vPT,vPS,vPF=208,209,210,211,212
    rot=g.opt.get('rot',4)
    A216=g.opt.get('p1arr',48)==216
    CSL=g.opt.get('csl',1)
    if A216:
        g('s_and_b32 s50, s3, 1\ns_lshr_b32 s51, s3, 1\ns_and_b32 s53, s49, 1')
    else:
        g('''s_mul_i32 s54, s53, 7
        s_add_u32 s49, s49, s54
        s_and_b32 s50, s3, 1
        s_lshr_b32 s51, s3, 1''')
    g('s_lshl_b32 s63, s48, 1\ns_add_u32 s63, s63, s53')
    t1_of(g,'s52','s48','s51','s53')
    g(f'''v_lshrrev_b32 v24, 3, v0
    v_lshrrev_b32 v25, 4, v0
    v_and_b32 v28, 7, v0
    v_xor_b32 v26, v28, v25
    v_lshlrev_b32 v26, 4, v26
    v_lshl_add_u32 v26, v24, 15, v26
    s_lshl_b32 s53, s52, 10
    s_lshl_b32 s54, s50, 20
    s_add_u32 s53, s53, s54
    v_add_u32 v{vX[0]}, s53, v26
    v_xor_b32 v27, 64, v{vX[0]}
    v_add_u32 v{vX[1]}, {262144-1024}, v27
    v_add_u32 v{vX[2]}, {2*(262144-1024)}, v{vX[0]}
    v_add_u32 v{vX[3]}, {3*(262144-1024)}, v27
    v_and_b32 v26, 15, v0
    v_lshlrev_b32 v27, 2, v25
    v_xor_b32 v26, v26, v27
    v_lshlrev_b32 v26, 4, v26
    v_mul_u32_u24 v29, 3584, v25
    v_add_u32 v26, v26, v29
    s_mul_i32 s53, s3, 57344
    s_lshl_b32 s54, s49, 8
    s_add_u32 s53, s53, s54
    v_add_u32 v{vW[0]}, s53, v26
    v_add_u32 v{vW[1]}, 13312, v{vW[0]}
    v_add_u32 v{vW[2]}, {2*13312}, v{vW[0]}
    v_add_u32 v{vW[3]}, {3*13312}, v{vW[0]}
    s_lshl_b32 s55, s3, 12''')
    g.stamp('pro')
    g('s_waitcnt lgkmcnt(0)')
    g.stamp('pro')
    srd(g,32,4,2097152); srd(g,36,16,512*1792*2)
    def stage_ops(st):
        slot=st&3
        def mk(i):
            def op():
                if i==0: g(f's_lshl_b32 s57, s56, 7\ns_mul_i32 s58, s56, 229376\ns_add_u32 m0, s55, {slot*32768}')
                if i==4: g(f's_add_u32 m0, s55, {slot*32768+16384}\ns_add_u32 s56, s56, 1\ns_and_b32 s56, s56, 7')
                if i<4: g.vmem(f'buffer_load_dwordx4 v{vX[i]}, s[32:35], s57 offen offset:{1024*i} lds',f's{st}')
                else:   g.vmem(f'buffer_load_dwordx4 v{vW[i-4]}, s[36:39], s58 offen offset:{1024*(i-4)} lds',f's{st}')
            return op
        return [mk(i) for i in range(8)]
    D=g.opt.get('depth',3)
    for op in stage_ops(0): op()
    g.stamp('pro')
    S1=stage_ops(1); N1=g.opt.get('n1',6)
    for op in S1[:N1]: op()
    g('@@SPLIT@@')
    g.stamp('pro')
    epoch_load(g)
    g(f's_lshl_b32 s46, s48, 4\ns_add_u32 s46, s46, s49\ns_lshl_b32 s46, s46, 8' if g.opt.get('fline',1) else 's_lshl_b32 s46, s48, 11')
    g(f'''v_and_b32 v24, 31, v0
    v_lshrrev_b32 v25, 5, v0
    v_bfe_u32 v26, v0, 1, 3
    v_xor_b32 v26, v26, v25
    s_lshl_b32 s53, s51, 13
    v_lshlrev_b32 v27, 7, v24
    v_add_u32 v27, s53, v27''')
    for kk in range(4):
        g(f'''v_xor_b32 v28, {2*kk}, v26
        v_lshl_add_u32 v{vB[kk]}, v28, 4, v27''')
    g(f'''v_bfe_u32 v26, v0, 2, 2
    v_lshl_add_u32 v27, v25, 3, v26
    v_lshlrev_b32 v27, 8, v27
    s_lshl_b32 s53, s50, 1
    s_add_u32 s53, s53, s51
    v_xor_b32 v26, s53, v26
    v_lshl_add_u32 v27, v26, 6, v27
    v_bfe_u32 v26, v0, 4, 1
    v_and_b32 v28, 3, v0
    v_lshlrev_b32 v30, 3, v28
    v_lshl_add_u32 v30, v26, 5, v30
    s_movk_i32 s59, 0x4000
    v_add3_u32 v{vA[0]}, v27, v30, s59
    v_xor_b32 v{vA[1]}, 64, v{vA[0]}
    v_bfe_u32 v27, v0, 2, 1
    v_xor_b32 v26, v26, v27
    v_or_b32 v26, v26, v28
    v_mov_b32 v27, 0x3f803f80
    v_cmp_eq_u32 vcc, 0, v26
    s_lshl_b32 s53, s53, 5
    v_add_u32 v26, s53, v24
    v_cndmask_b32 v{SEL+4}, 0, v27, vcc
    s_lshl_b32 s54, s49, 7
    v_add_lshl_u32 v{vB1[0]}, v26, s54, 1
    v_xor_b32 v{vB1[1]}, 64, v{vB1[0]}''')
    srd(g,40,18,1792*2)
    for t in range(2): g.vmem(f'buffer_load_ushort v{vB1[t]}, v{vB1[t]}, s[40:43], 0 offen','b1')
    if A216:
        g(f'''s_lshl_b32 s53, s49, 3
        s_lshr_b32 s54, s48, 1
        s_add_u32 s53, s53, s54
        s_lshl_b32 s53, s53, 11
        s_add_u32 s53, s53, {CS_REL+(ST_OFF-F_OFF)}
        v_lshl_add_u32 v{vCA}, v26, 4, s53
        s_lshl_b32 s54, s100, 3
        v_add_u32 v{vCP}, s54, v{vCA}
        v_xor_b32 v{vCB}, 0x200, v{vCA}''')
    else: g(f'''s_lshl_b32 s53, s49, 2
    s_lshr_b32 s54, s48, 2
    s_add_u32 s53, s53, s54
    s_lshl_b32 s53, s53, 12
    s_add_u32 s53, s53, {CS_REL+(ST_OFF-F_OFF)}
    v_lshl_add_u32 v26, v26, {3 if CSL else 5}, s53
    s_lshl_b32 s54, s100, {10 if CSL else 3}
    v_add_u32 v{vCP}, s54, v26
    v_lshl_add_u32 v{vCA}, v25, {11 if CSL else 4}, v26
    v_xor_b32 v{vCB}, {0x100 if CSL else 0x400}, v{vCA}''')
    g(f'''
    s_lshl_b32 s53, s63, 11
    s_lshl_b32 s54, s51, 10
    s_add_u32 s53, s53, s54
    s_add_u32 s53, s53, {ST_OFF-F_OFF}
    v_lshl_add_u32 v{vSA}, v24, 4, s53
''')
    if g.opt.get('stl',1):
        g(f'''v_and_b32 v27, 1, v0
        v_lshlrev_b32 v27, 9, v27
        v_bfe_u32 v28, v0, 1, 4
        v_lshl_add_u32 v27, v28, 4, v27
        v_add_u32 v{vSA}, s53, v27''')
    g('''''')
    srd(g,40,28,4<<20,add=F_OFF)
    g.stamp('pro')
    WS0=g.opt.get('wsched','o')
    early,addr,trig=p2_setup_ops(g,False)
    TM={i:176+i for i in range(24)}
    early,addr,trig=[remap(x,TM) for x in (early,addr,trig)]
    vBh=[200,201,202,203]; vAh=[204,205]
    g.miscq=[f'v_add_u32 v{h}, 0x10000, v{l}' for h,l in zip(vBh+vAh,vB+vA)]+early+addr+trig
    def fr(s_):
        b=[32,128][s_]
        return dict(A=[b,b+4],B=[b+8,b+12])
    def rd(n):
        st,kk=n>>2,n&3
        f=fr(n&1); o=(st&1)*32768; hi=(st>>1)&1
        tr=lambda t,q: f'ds_read_b64_tr_b16 v[{f["A"][t]+2*q}:{f["A"][t]+2*q+1}], v{[vA,vAh][hi][t]} offset:{o+4096*kk+1024*q}'
        bb=lambda u: f'ds_read_b128 v[{f["B"][u]}:{f["B"][u]+3}], v{[vB,vBh][hi][kk]} offset:{o+4096*u}'
        return [tr(0,0),tr(0,1),bb(0),bb(1),tr(1,0),tr(1,1)]
    ncs = 4 if A216 else {1:2,4:2,2:4,0:8}[rot]
    def setsel(st):
        if ncs==2 or A216: cond=None
        elif ncs==4: cond=f's_lshr_b32 s53, s100, 1\ns_cmp_eq_u32 s53, {st>>1}'
        else: cond=f's_cmp_eq_u32 s100, {st>>1}'
        if cond is None:
            for i in range(4): g(f'v_mov_b32 v{SEL+i}, v{SEL+4}')
        else:
            g(cond+'\ns_cselect_b32 s53, -1, 0')
            for i in range(4): g(f'v_and_b32 v{SEL+i}, s53, v{SEL+4}')
    def gather_ops():
        def mk(r,v,off):
            def o(): g.vmem(f'buffer_load_dwordx4 v[{r}:{r+3}], v{v}, s[40:43], 0 offen offset:{off} sc1','ga')
            return o
        def mk2(r,v,off):
            def o(): g.vmem(f'buffer_load_dwordx2 v[{r}:{r+1}], v{v}, s[40:43], 0 offen offset:{off} sc1','ga')
            return o
        if CSL: return [mk(GA,vSA,0),mk(GA+4,vSA,256 if g.opt.get('stl',1) else 512),mk2(GA+8,vCA,0),mk2(GA+10,vCA,1024),mk2(GA+12,vCB,0),mk2(GA+14,vCB,1024)]
        return [mk(GA,vSA,0),mk(GA+4,vSA,512),mk(GA+8,vCA,0),mk(GA+12,vCB,0)]
    def publish():
        g(f'v_mov_b32 v{CSA+1}, s47')
        g.vmem(f'buffer_store_dwordx2 v[{CSA}:{CSA+1}], v{vCP}, s[40:43], 0 offen sc1','csp')
    WPS=g.opt.get('wpstage',1)
    WSCHED={'a':{2:[0],3:[1],5:[2,3],6:[4],7:[5,6]},'b':{3:[0],4:[1],5:[2],6:[3,4],7:[5]},'c':{5:[0,1],6:[2],7:[3,4]},'d':{1:[0],2:[1],5:[2,3],6:[4,5],7:[6]},'e':{5:[0,1],6:[2,3],7:[4,5]},'f':{4:[0],5:[1],6:[2,3],7:[4,5]},'g':{5:[0],6:[1],7:[2,3]},'h':{4:[0,1],7:[2,3,4]},'i':{4:[0,1],7:[2,3]},'j':{4:[0,1]},'k':{3:[0,1],6:[2,3],7:[4,5]},'l':{4:[0,1],6:[2],7:[3,4]},'m':{1:[(0,0)],2:[(0,1)],3:[(1,0)],4:[(1,1)],5:[2,3],6:[4,5],7:[6]},'n':{1:[(0,0)],2:[(0,1)],3:[(1,0)],4:[(1,1)],6:[2,3],7:[4,5]},'o':{1:[0],2:[1],5:[2,3],6:[4,5],7:[6,7]},'p':{5:[0,1],7:[2]},'q':{5:[0,1]},'r':{5:[0,1],6:[2]},'s':{5:[0,1],7:[2,3]},'t':{5:[0,1],6:[2],7:[3]},'u':{1:[0,1],5:[2,3],6:[4,5],7:[6,7]},'v':{0:[0,1],5:[2,3],6:[4,5],7:[6,7]},'w':{2:[0,1],5:[2,3],6:[4,5],7:[6,7]},'x':{-1:[0,1],5:[2,3],6:[4,5],7:[6,7]},'y':{-2:[0,1],5:[2,3],6:[4,5],7:[6,7]}}[g.opt.get('wsched','o')]
    half={}
    prevtr=[0]
    NTL=g.opt.get('ntl',5)
    TRL={n:(i>>1,i&1) for i,n in enumerate({0:[20,21,22,23,26,27,28,29,30,31],1:[20,21,22,23,28,29,30,31],2:[16,17,18,19,26,27,28,29,30,31]}[g.opt.get('trl',0)][:2*NTL])}
    MX=g.opt.get('mx',5)
    nw=len(set((p[0] if isinstance(p,tuple) else p) for x in WSCHED.values() for p in x))
    def enter(st):
        g.flush_side()
        g.wait(f's{st}')
        g('s_barrier')
        g.stamp('st')
        if st+D<8: g.sideq+=stage_ops(st+D)
        if st==max(ncs,g.opt.get('pubst',2)) and ncs<8: g.sideq.append(publish)
        if st==6: g.miscq+=hr.l
        if st in WSCHED and st<6:
            while len(g.miscq)>len(trig)+len(addr): misc(g,1)
        if st==g.opt.get('gast',6) and not g.opt.get('galast',1): g.sideq+=gather_ops()
        for pr in WSCHED.get(st,[]):
            if isinstance(pr,tuple):
                if pr[1]==0: half[pr[0]]=w2_pair_ops(g,pr[0])
                ops=half[pr[0]][2*pr[1]:2*pr[1]+2]
                if pr[1]==1: ops=[lambda p=pr[0],o=ops[0]:(g(f's_add_u32 m0, s69, {ppos(p)}'),o())]+ops[1:]
                g.sideq+=ops
            else: g.sideq+=w2_pair_ops(g,pr)
        if st==g.opt.get('gast',6) and g.opt.get('galast',1): g.sideq+=gather_ops()
    if WS0 in 'xy':
        while len(g.miscq)>len(trig)+len(addr): misc(g,1)
        for op in w2_pair_ops(g,0)+w2_pair_ops(g,1): op()
        if WS0=='y':
            for op in stage_ops(2): op()
    misc(g,g.opt.get('pre',48))
    for op in S1[N1:]+stage_ops(2): op()
    g.stamp('pro')
    g('s_waitcnt lgkmcnt(0)')
    hr=Rec()
    srd(hr,36,28,7340032)
    hr('''s_mul_i32 s53, s52, 112
    s_lshl_b32 s54, s49, 3
    s_add_u32 s53, s53, s54
    s_lshl_b32 s54, s50, 2
    s_add_u32 s53, s53, s54
    s_lshl_b32 s53, s53, 11
    s_lshl_b32 s54, s51, 12
    s_add_u32 s60, s53, s54
    s_xor_b32 s61, s60, 0x400
    s_xor_b32 s62, s60, 0x1000
    s_xor_b32 s63, s60, 0x1400
''')
    nonce(g); setsel(0)
    enter(0); g.stamp(); g.stamp('pro')
    for x in rd(0): g(x)
    lq=[(0,t) for t in 'aaabcc']
    for n in range(32):
        st,kk=n>>2,n&3
        f=fr(n&1)
        def mf(t,u):
            d=ACC+16*(2*t+u)
            g(f'{MF} v[{d}:{d+15}], v[{f["A"][t]}:{f["A"][t]+3}], v[{f["B"][u]}:{f["B"][u]+3}], '+(f'v[{d}:{d+15}]' if n else '0'))
        nx = rd(n+1) if n<31 else []
        def ds(x,tag): g(x); lq.append(tag)
        def dw(tag):
            idx=[i for i,t in enumerate(lq) if t==tag]
            if not idx: return
            k=idx[-1]+1; g(f's_waitcnt lgkmcnt({min(15,len(lq)-k)})'); del lq[:k]
        tg=['a','a','a','b','c','c']
        trs_=[]
        if n in TRL:
            pr,h=TRL[n]; trs_=w2_trl(pr)[4*h:4*h+4]
        def gap(k):
            if k==0 and trs_ and TRL[n][1]==0: g.wait(f'w{TRL[n][0]}')
            for x,t in zip(nx[3*k:3*k+3],tg[3*k:3*k+3]): ds(x,(n+1,t))
            for x in trs_[2*k:2*k+2]: ds(x,'tr')
        if kk==3:
            dw((n,'c')); mf(0,0)
            if st<7: enter(st+1)
            else: g.flush_side(); g('s_barrier')
            gap(0); mf(0,1); gap(1); mf(1,0)
        else:
            dw((n,'a')); mf(0,0)
            gap(0); dw((n,'b')); mf(0,1)
            gap(1); dw((n,'c')); mf(1,0)
        had=bool(g.sideq); g.side(); misc(g, 2 if had else MX)
        if st<ncs:
            g(f'v_mfma_f32_16x16x32_bf16 v[{CSA}:{CSA+3}], v[{SEL}:{SEL+3}], v[{f["A"][0]}:{f["A"][0]+3}], '+(f'v[{CSA}:{CSA+3}]' if n else '0'))
        mf(1,1)
        had=bool(g.sideq); g.side(2 if len(g.sideq)>2*(3-kk)+1 else 1); misc(g,2 if had else MX)
        if kk==3 and st+1<ncs and (st+1)%2==0: setsel(st+1)
    if ncs==8: publish()
    g.flush_side(); misc(g,9999)
    g.stamp(); g.stamp('st'); g.stamp('tail')
    g.wait('ga')
    g(f'''s_mov_b32 s56, {SPIN}
    L_gchk:
    v_xor_b32 v24, s47, v{GA+3}
    v_xor_b32 v25, s47, v{GA+7}
    v_xor_b32 v26, s47, v{GA+9}
    v_xor_b32 v27, s47, v{GA+11}
    v_xor_b32 v28, s47, v{GA+13}
    v_xor_b32 v29, s47, v{GA+15}
    v_or3_b32 v24, v24, v25, v26
    v_or3_b32 v27, v27, v28, v29
    v_or_b32 v24, v24, v27
    v_cmp_ne_u32 vcc, 0, v24
    s_cbranch_vccnz L_gslow
    L_gok:''')
    keep=list(g.vm); main=g.a.l; g.a.l=[]
    g('L_gslow:\ns_sleep 8')
    for op in gather_ops(): op()
    g('s_waitcnt vmcnt(0)\ns_sub_u32 s56, s56, 1\ns_cbranch_scc0 L_gchk\ns_branch L_gok')
    g.outofline+=g.a.l; g.a.l=main; g.vm=keep
    NG=g.opt.get('ng',10)
    assert NG<=10+NTL
    g('s_waitcnt lgkmcnt(0)')
    for pr in range(nw,NG): g.sideq+=w2_pair_ops(g,pr)
    a0,a1=GA+8,GA+12
    c0=-2*math.sqrt(2/math.pi)*math.log2(math.e); c1=c0*0.044715
    g(f'''v_add_f32 v{a0}, v{a0}, v{a0+2}
    v_add_f32 v{a1}, v{a1}, v{a1+2}
    v_rcp_f32 v24, v{GA+2}
    v_mov_b32 v{a0+1}, v{a0}
    v_mov_b32 v{a1+1}, v{a1}
    v_rcp_f32 v26, v{GA+6}
    v_cmp_gt_u32 vcc, 32, v0
    v_permlane32_swap_b32 v{a0}, v{a0+1}
    v_permlane32_swap_b32 v{a1}, v{a1+1}
    v_mov_b32 v50, v{GA+2}
    v_mov_b32 v54, v{GA+6}
    {'v_mov_b32' if A216 else 'v_add_f32'} v{a0+2}, v{a0}{'' if A216 else f', v{a0+1}'}
    {'v_mov_b32' if A216 else 'v_add_f32'} v{a1+2}, v{a1}{'' if A216 else f', v{a1+1}'}
    v_mov_b32 v{GA+2}, v{GA}
    v_mov_b32 v{GA+6}, v{GA+4}
    v_cvt_pk_bf16_f32 v{a0}, v{a0+2}, v{a0+2}
    v_cvt_pk_bf16_f32 v{a1}, v{a1+2}, v{a1+2}
    v_lshl_or_b32 v{a0+1}, v{vB1[0]}, 16, v{vB1[0]}
    v_lshl_or_b32 v{a1+1}, v{vB1[1]}, 16, v{vB1[1]}
    v_lshlrev_b32 v{a0+3}, 16, v{a0}
    v_lshlrev_b32 v{a1+3}, 16, v{a1}
    v_cndmask_b32 v{a0}, 0, v{a0}, vcc
    v_cndmask_b32 v{a1}, 0, v{a1}, vcc
    v_sub_f32 v{a0+2}, v{a0+2}, v{a0+3}
    v_sub_f32 v{a1+2}, v{a1+2}, v{a1+3}
    v_cndmask_b32 v{a0+1}, 0, v{a0+1}, vcc
    v_cndmask_b32 v{a1+1}, 0, v{a1+1}, vcc
    v_cvt_pk_bf16_f32 v{a0+2}, v{a0+2}, 0
    v_cvt_pk_bf16_f32 v{a1+2}, v{a1+2}, 0
    v_mov_b32 v{a0+3}, 0
    v_mov_b32 v{a1+3}, 0
    v_cndmask_b32 v{a0+2}, 0, v{a0+2}, vcc
    v_cndmask_b32 v{a1+2}, 0, v{a1+2}, vcc
    v_mov_b32 v{GA+3}, 0
    v_mov_b32 v{GA+7}, 0''')
    Aex=[a0,a1]; Bex=[GA,GA+4]
    for t in range(2):
        for u in range(2):
            d=ACC+16*(2*t+u)
            g(f'{MF} v[{d}:{d+15}], v[{Aex[t]}:{Aex[t]+3}], v[{Bex[u]}:{Bex[u]+3}], v[{d}:{d+15}]')
    g(f'''v_mul_f32 v25, v24, v24
    v_mul_f32 v27, v26, v26
    v_mul_f32 v49, {f2u(c0):#x}, v24
    v_mul_f32 v53, {f2u(c0):#x}, v26
    v_mul_f32 v25, v25, v24
    v_mul_f32 v27, v27, v26
    v_mul_f32 v48, {f2u(c1):#x}, v25
    v_mul_f32 v52, {f2u(c1):#x}, v27''')
    g('v_lshlrev_b32 v56, 4, v0')
    g.stamp()
    while len(g.miscq)>len(trig): misc(g,1)
    def trop(pr,h):
        def op():
            if h==0: g.wait(f'w{pr}')
            for x in w2_trl(pr)[4*h:4*h+4]: g(x)
        return op
    xo=xb2_ops(g)
    trs=[]
    for pr in range(NTL,4):
        if not g.opt.get('trpost'): trs+=[trop(pr,0),trop(pr,1)]
    g.sideq+=xo+trs
    NS=g.opt.get('gside',4)
    for t in range(2):
        for u in range(2):
            d=ACC+16*(2*t+u); K=[48,52][u]; RI=[50,54][u]
            for j in range(2):
                NS=g.opt.get('gside',4) if 4*t+2*u+j>=g.opt.get('gstart',0) else 0
                P=[d+8*j+2*i for i in range(4)]
                tm=[2+2*i for i in range(4)]
                o=[24,28][j]
                for i in range(4): g(f'v_pk_mul_f32 v[{tm[i]}:{tm[i]+1}], v[{P[i]}:{P[i]+1}], v[{P[i]}:{P[i]+1}]')
                for i in range(4): g(f'v_pk_fma_f32 v[{tm[i]}:{tm[i]+1}], v[{tm[i]}:{tm[i]+1}], v[{K}:{K+1}], v[{K}:{K+1}] op_sel:[0,0,1] op_sel_hi:[1,0,1]')
                if NS>=1: g.side()
                for i in range(4): g(f'v_pk_mul_f32 v[{tm[i]}:{tm[i]+1}], v[{tm[i]}:{tm[i]+1}], v[{P[i]}:{P[i]+1}]')
                for i in range(8):
                    g(f'v_exp_f32 v{2+i}, v{2+i}')
                    if i==3 and NS>=4: g.side()
                if NS>=2: g.side()
                for i in range(4): g(f'v_pk_fma_f32 v[{tm[i]}:{tm[i]+1}], v[{tm[i]}:{tm[i]+1}], v[{RI}:{RI+1}], v[{RI}:{RI+1}] op_sel:[0,0,0] op_sel_hi:[1,0,0]')
                for i in range(8):
                    g(f'v_rcp_f32 v{2+i}, v{2+i}')
                    if i==3 and NS>=5: g.side()
                if NS>=3: g.side()
                for i in range(4): g(f'v_pk_mul_f32 v[{tm[i]}:{tm[i]+1}], v[{tm[i]}:{tm[i]+1}], v[{P[i]}:{P[i]+1}]')
                for i in range(4): g(f'v_cvt_pk_bf16_f32 v{o+i}, v{tm[i]}, v{tm[i]+1}')
                g.vmem(f'buffer_store_dwordx4 v[{o}:{o+3}], v56, s[36:39], s{60+2*t+u} offen offset:{2048*j} {"" if g.opt.get("hplain") else "sc1"}','st')
    g.stamp()
    print('after GELU: side',len(g.sideq),'misc',len(g.miscq),file=sys.stderr)
    g.stamp('tail')
    g.flush_side()
    if g.opt.get('fline',1)==2:
        for i in range(4): g(f'v_mov_b32 v{4+i}, s47')
    g(f'v_mov_b32 v2, s47\nv_add_u32 v{vTm0}, 0x10000, v{vT[0]}\nv_add_u32 v{vTm1}, 0x10000, v{vT[1]}')
    NJ=g.opt.get('nj',4)
    for k in range(0 if g.opt.get('merge',0) else NJ//2): g(f'v_add_u32 v{vJ[k][0]}, {ppos(12-2*k)}, v{vT[0]}\nv_add_u32 v{vJ[k][1]}, {ppos(12-2*k)}, v{vT[1]}')
    for d in (1,2,3): g(f's_add_u32 s{5+d}, s69, {d*32768}\ns_xor_b32 s{8+d}, s{5+d}, {d*8192}')
    g(f's_add_u32 s12, s69, {32768+4096}')
    TB=g.opt.get('trbefore',6)
    for pr in range(max(4,NTL),4+TB):
        g.wait(f'w{pr}')
        for x in w2_trl(pr): g(x)
    def msig():
        g.stamp('tail')
        g.wait('st')
        g.stamp('tail')
        g('s_barrier')
        if g.opt.get('fline',1)==2: g.vmem(f'buffer_store_dwordx4 v[4:7], v{vSG}, s[40:43], 0 offen sc1','flag')
        else: g.vmem(f'buffer_store_dword v2, v{vSG}, s[40:43], 0 offen sc1','flag')
        g.stamp('tail')
        if g.opt.get('merge',0):
            g.nw=NG
            return
        for pr in range(NG,10):
            for op in w2_pair_ops(g,pr): op()
        if g.opt.get('trpost'):
            for pr in range(NTL,4):
                g.wait(f'w{pr}')
                for x in w2_trl(pr): g(x)
        g('s_waitcnt lgkmcnt(0)')
        for pr in range(max(NG,10),14):
            for op in w2_pair_ops(g,pr): op()
        if g.opt.get('epoll',0): g.vmem(f'buffer_load_dword v3, v{vPL}, s[40:43], 0 offen sc1','poll')
        for pr in range(max(4+TB,NTL),14-NJ):
            g.wait(f'w{pr}')
            for x in w2_trl(pr): g(x)
        if not g.opt.get('epoll',0): g('v_not_b32 v3, v2')
    if g.opt.get('msig',1) and not g.opt.get('merge',0): g.msig=msig
    else: msig()

def p1_dft(g):
    RAW=64
    vBr0=56; vXL=[57,18,19,2]; vSP=3; vA0=244; vBd=[4,5,6,7]; vWe,vWo=8,9; vFA=[10,11,12,13]; vFB=[14,15,16,17]
    CC=[192,196]; SS=[200,204]; NS=[208,212]
    RC=[216,218,220,222]
    if g.opt.get('p1arr',48)==216:
        g('L_dft0:\ns_lshr_b32 s100, s31, 1\ns_add_u32 s48, s48, s100\ns_lshl_b32 s100, s100, 1')
    g('''s_mov_b32 s49, s53
    s_lshr_b32 s51, s3, 1''')
    t1_of(g,'s52','s48','s51','s53')
    g(f'''s_and_b32 s50, s3, 1
    s_lshl_b32 s53, s50, 5
    s_add_u32 s53, s53, s52
    s_lshl_b32 s53, s53, 10
    v_lshrrev_b32 v24, 3, v0
    v_lshrrev_b32 v25, 4, v0
    v_and_b32 v26, 7, v0
    v_lshlrev_b32 v27, 4, v26
    v_lshl_add_u32 v27, v24, 16, v27
    s_lshl_b32 s54, s100, 7
    v_add3_u32 v{vXL[0]}, v27, s53, 0
    v_add_u32 v{vXL[0]}, s54, v{vXL[0]}
    v_xor_b32 v{vXL[1]}, 0x80, v{vXL[0]}
    v_xor_b32 v{vXL[2]}, 0x100, v{vXL[0]}
    v_xor_b32 v{vXL[3]}, 0x180, v{vXL[0]}
    s_waitcnt lgkmcnt(0)''')
    srd(g,32,4,2097152)
    def xops(gi):
        def mk(j):
            def op():
                if j==0: g(f's_mov_b32 s58, {gi*524288}')
                r=RAW+32*gi+4*j
                g.vmem(f'buffer_load_dwordx4 v[{r}:{r+3}], v{vXL[j&3]}, s[32:35], s58 offen offset:{512*(j>>2)}',f'x{gi}')
            return op
        return [mk(j) for j in range(8)]
    DO=g.opt.get('dord','a')
    for gi in range(1 if DO in 'de' else 2):
        for op in xops(gi): op()
    if DO not in 'de': g('@@SPLIT@@')
    epoch_load(g)
    srd(g,36,10,524288); srd(g,16,12,524288); srd(g,40,28,4<<20,add=F_OFF)
    UL=g.opt.get('uline',0)
    if UL==32: g('s_lshl_b32 s46, s48, 8\ns_lshl_b32 s53, s49, 7')
    elif UL==8: g('s_lshl_b32 s46, s30, 7\ns_lshl_b32 s53, s100, 2')
    else: g('s_lshl_b32 s46, s48, 3\ns_lshl_b32 s53, s49, 2')
    g(f'''s_add_u32 s46, s46, s53
    s_add_u32 s46, s46, {FU}
    v_xor_b32 v26, v26, v25
    v_lshlrev_b32 v26, 4, v26
    v_lshl_add_u32 v27, v24, 11, v26
    s_lshl_b32 s53, s3, 16
    s_lshl_b32 s54, s49, 10
    s_add_u32 s53, s53, s54
    v_add_u32 v{vBd[0]}, s53, v27
    v_xor_b32 v28, 64, v{vBd[0]}
    v_add_u32 v{vBd[1]}, {16384-1024}, v28
    v_add_u32 v{vBd[2]}, {2*(16384-1024)}, v{vBd[0]}
    v_add_u32 v{vBd[3]}, {3*(16384-1024)}, v28
    v_add_u32 v28, 0x40000, v{vBd[0]}
    v_cmp_gt_u32 vcc, 1024, v{vBd[0]}
    v_lshl_add_u32 v27, v24, 7, v26
    s_lshl_b32 s53, s3, 12
    v_cndmask_b32 v{vBr0}, v{vBd[0]}, v28, vcc
    v_add_u32 v{vWe}, s53, v27
    v_xor_b32 v{vWo}, 64, v{vWe}
    s_mul_i32 s55, s3, 24576
    s_add_u32 s55, s55, 65536
    s_lshl_b32 s53, s48, 1
    s_add_u32 s53, s53, s49
    s_lshl_b32 s53, s53, 11
    s_lshl_b32 s54, s51, 10
    s_add_u32 s53, s53, s54
    s_lshl_b32 s54, s50, {9 if g.opt.get('stl',1) else 4}
    s_add_u32 s53, s53, s54
    s_add_u32 s53, s53, {ST_OFF-F_OFF}
    v_lshl_add_u32 v{vSP}, v24, {4 if g.opt.get('stl',1) else 5}, s53
    s_lshl_b32 s53, s48, 1
    s_add_u32 s53, s53, s49
    s_lshl_b32 s53, s53, 9
    s_add_u32 s13, s53, {A0_REL}
    s_lshl_b32 s54, s3, 7
    s_add_u32 s53, s13, s54
    v_lshl_add_u32 v{vA0}, v24, 2, s53
    v_and_b32 v242, 3, v0
    v_lshl_add_u32 v{vA0}, v242, 5, v{vA0}''')
    def bops(st):
        slot=st&1
        def mk(i):
            def op():
                if i==0: g(f's_xor_b32 s57, s100, {st}\ns_lshl_b32 s57, s57, 7\ns_add_u32 m0, s55, {slot*8192}')
                if i==4: g(f's_add_u32 m0, s55, {slot*8192+4096}')
                if i<4: g.vmem(f'buffer_load_dwordx4 v{vBr0 if i==0 else vBd[i]}, s[36:39], s57 offen offset:{1024*i} lds',f'B{st}')
                else:   g.vmem(f'buffer_load_dwordx4 v{vBd[i-4]}, s[16:19], s57 offen offset:{1024*(i-4)} lds',f'B{st}')
            return op
        return [mk(i) for i in range(8)]
    if DO in 'de':
        for op in bops(0): op()
        g('@@SPLIT@@')
    g(f'''v_and_b32 v24, 31, v0
    v_lshrrev_b32 v25, 5, v0
    v_bfe_u32 v26, v0, 1, 3
    v_xor_b32 v26, v26, v25
    v_lshlrev_b32 v27, 7, v24''')
    for kk in range(4):
        g(f'''v_xor_b32 v28, {2*kk}, v26
        v_lshl_add_u32 v{vFA[kk]}, v28, 4, v27
        v_add_u32 v{vFB[kk]}, s55, v{vFA[kk]}''')
    g(f'''v_cvt_f32_u32 v26, v24
    v_mul_f32 v26, {f2u(1/32):#x}, v26
    v_cvt_f32_u32 v27, v25
    v_mul_f32 v27, 4.0, v27
    v_mul_f32 v27, v27, v26
    v_mul_f32 v28, {f2u(5.0):#x}, v26''')
    for j in range(2):
        for i2 in range(4):
            for e in range(2):
                i=2*i2+e
                if not (j==0 and i==0):
                    g(f'v_add_f32 v27, v27, v{28 if i%4==0 else 26}')
                g(f'v_fract_f32 v29, v27\nv_cos_f32 v{20+e}, v29\nv_sin_f32 v{22+e}, v29')
            g(f'v_cvt_pk_bf16_f32 v{CC[j]+i2}, v20, v21\nv_cvt_pk_bf16_f32 v{SS[j]+i2}, v22, v23\nv_xor_b32 v{NS[j]+i2}, 0x80008000, v{SS[j]+i2}')
    early,addr,trig=p2_setup_ops(g,True)
    TM={0:20,1:21,2:22,3:23,4:24,5:25,6:26,7:27,8:28,9:29,10:30,12:2,13:3,14:8,15:9,16:31,17:57,18:240,19:241,20:242,21:243,22:244,23:245}
    early,addr,trig=[remap(x,TM) for x in (early,addr,trig)]
    PRO=g.opt.get('dpro',0)
    if PRO:
        for x in early+addr: g(x)
    g(f'''s_mov_b32 s59, 0x3f803f80
    s_movk_i32 s60, 0x3f80
    s_mov_b32 s61, 0x3f800000
    s_lshl_b32 s53, s49, 15
    s_or_b32 s62, s60, s53
    s_lshl_b32 s63, s62, 16
    s_cmp_eq_u32 s49, 0
    s_cselect_b32 s101, 2.0, 0
    s_waitcnt lgkmcnt(0)''')
    nonce(g)
    eps=f'{f2u(1e-5):#x}'
    chainq=[]; SPS=128 if g.opt.get('stl',1) else 256
    def ch(n=1):
        for _ in range(n):
            if chainq: chainq.pop(0)()
    def stats(gi):
        R=RAW+32*gi; S=[224,228][gi&1]
        g.wait(f'x{gi}')
        if gi==0: g.stamp()
        for i in range(32):
            if i<2: g(f'v_dot2_f32_bf16 v{S+i}, v{R+i}, s59, 0\nv_dot2_f32_bf16 v{S+2+i}, v{R+i}, v{R+i}, 0')
            else:   g(f'v_dot2c_f32_bf16 v{S+(i&1)}, s59, v{R+i}\nv_dot2c_f32_bf16 v{S+2+(i&1)}, v{R+i}, v{R+i}')
            if i%4==3: g.side()
            if i>=2: ch(2)
        while chainq: ch()
        o=232+4*(gi&1); r1=RC[gi]; a,b,c,d=20,21,22,23
        lines=f'''v_add_f32 v{S}, v{S}, v{S+1}
        v_add_f32 v{S+2}, v{S+2}, v{S+3}
        v_add_f32_dpp v{S}, v{S}, v{S} quad_perm:[1,0,3,2] row_mask:0xf bank_mask:0xf
        v_add_f32_dpp v{S+2}, v{S+2}, v{S+2} quad_perm:[1,0,3,2] row_mask:0xf bank_mask:0xf
        v_add_f32_dpp v{S}, v{S}, v{S} quad_perm:[2,3,0,1] row_mask:0xf bank_mask:0xf
        v_add_f32_dpp v{S+2}, v{S+2}, v{S+2} quad_perm:[2,3,0,1] row_mask:0xf bank_mask:0xf
        v_add_f32_dpp v{S}, v{S}, v{S} row_half_mirror row_mask:0xf bank_mask:0xf
        v_add_f32_dpp v{S+2}, v{S+2}, v{S+2} row_half_mirror row_mask:0xf bank_mask:0xf
        v_mul_f32 v{a}, {f2u(-1/512):#x}, v{S}
        v_mul_f32 v{b}, {f2u(1/512):#x}, v{S+2}
        v_fma_f32 v{b}, -v{a}, v{a}, v{b}
        v_cvt_pk_bf16_f32 v{d}, v{a}, v{a}
        v_max_f32 v{b}, 0, v{b}
        v_lshlrev_b32 v{d}, 16, v{d}
        v_cvt_pk_bf16_f32 v{c}, 0, v{b}
        v_sub_f32 v{d}, v{a}, v{d}
        v_add_f32 v{c}, {eps}, v{c}
        v_cvt_pk_bf16_f32 v{o}, v{a}, v{d}
        v_cvt_pk_bf16_f32 v{c}, 0, v{c}
        v_mul_f32 v{r1+1}, s101, v{a}
        v_sqrt_f32 v{c}, v{c}
        v_mov_b32 v{o+3}, s47
        v_cvt_pk_bf16_f32 v{c}, 0, v{c}
        v_rcp_f32 v{r1}, v{c}
        v_mul_f32 v{d}, {f2u(-512.0):#x}, v{d}
        v_mul_f32 v{b}, v{b}, v{r1}
        v_mul_f32 v{241 if gi else 240}, v{d}, v{r1}
        v_mul_f32 v{b}, v{b}, v{r1}
        v_cvt_pk_bf16_f32 v{b}, 0, v{b}
        v_add_f32 v{b}, {eps}, v{b}
        v_cvt_pk_bf16_f32 v{b}, 0, v{b}
        v_sqrt_f32 v{b}, v{b}
        v_cvt_pk_bf16_f32 v{b}, 0, v{b}
        v_mul_f32 v{o+2}, v{b}, v{c}
        v_cvt_pk_bf16_f32 v{b}, 0, v{o+2}
        v_sub_f32 v{b}, v{o+2}, v{b}
        v_cvt_pk_bf16_f32 v{o+1}, v{o+2}, v{b}'''.split('\n')
        for ln in lines: chainq.append(lambda ln=ln: g(ln))
        chainq.append(lambda: g.vmem(f'buffer_store_dwordx4 v[{o}:{o+3}], v{vSP}, s[40:43], 0 offen offset:{SPS*gi} sc1','sp'))
        if gi: chainq.append(lambda: g(f'v_cmp_eq_u32 vcc, {gi}, v242\ns_nop 1\nv_cndmask_b32 v240, v240, v241, vcc'))
        if gi==3: chainq.append(lambda: g.vmem(f'buffer_store_dword v240, v{vA0}, s[40:43], 0 offen sc1','a0'))
    def bfly(gi):
        R=RAW+32*gi; r1=RC[gi]
        for j in range(4):
            o=[24,28][j&1]; T=[40,48][j&1]
            for i in range(4):
                a_=R+4*j+i; t=T+2*i
                g(f'v_dot2_f32_bf16 v{t}, v{a_}, s60, v{r1+1}\nv_dot2_f32_bf16 v{t+1}, v{a_}, s61, v{r1+1}'); ch()
            g.side()
            for i in range(4):
                b_=R+4*(j+4)+i; t=T+2*i
                g(f'v_dot2c_f32_bf16 v{t}, s62, v{b_}\nv_dot2c_f32_bf16 v{t+1}, s63, v{b_}'); ch()
            ch(2)
            for i in range(4):
                t=T+2*i
                g(f'v_pk_mul_f32 v[{t}:{t+1}], v[{t}:{t+1}], v[{r1}:{r1+1}] op_sel_hi:[1,0]')
            g.side()
            for i in range(4):
                t=T+2*i
                g(f'v_cvt_pk_bf16_f32 v{o+i}, v{t}, v{t+1}')
            g(f'ds_write_b128 v{vWo if gi&1 else vWe}, v[{o}:{o+3}] offset:{16384*j+1024*gi}')
        while chainq: ch()
    W0=16384
    LATEW=g.opt.get('latew',0)
    wl={0:W0,1:W0+4096,2:W0,3:W0+4096,4:W0,5:W0+4096,6:W0,7:W0+4096,8:0,9:4096,10:W0,11:W0+4096,12:8192,13:8192+4096}
    if LATEW: wl={0:W0,1:W0+4096,2:W0,3:W0+4096,4:W0,5:W0+4096,6:0,7:4096,8:W0,9:W0+4096,10:8192,11:8192+4096,12:0,13:4096}
    wd=lambda pr: w2_pair_ops(g,pr,'s55',wl[pr])
    order=g.opt.get('dord','a')
    plan={'a':[[],xops(2),xops(3),bops(0),bops(1),[],'w',[]],
          'b':[xops(2),xops(3),bops(0),bops(1),[],[],'w',[]],
          'c':[[],xops(2)+xops(3),bops(0),bops(1),[],'w',[],[]],
          'd':[xops(2),xops(3),[],bops(1),[],[],'w',[]],
          'e':[[],xops(2),xops(3),bops(1),[],[],'w',[]],
          'g':[[],xops(2),xops(3),bops(0),bops(1),[],[],'w'],
          'h':[[],xops(2),xops(3),bops(0),bops(1)[:4],bops(1)[4:],[],'w'],
          'i':[[],xops(2),xops(3)+bops(0),[],bops(1),[],[],'w']}[order]
    if order in 'de':
        for op in xops(1): op()
    seq=((stats,0),(stats,1),(bfly,0),(stats,2),(bfly,1),(stats,3),(bfly,2),(bfly,3))
    if g.opt.get('sfirst'):
        seq=((stats,0),(stats,1),(stats,2),(stats,3),(bfly,0),(bfly,1),(bfly,2),(bfly,3))
        plan=[xops(2),xops(3),bops(0),[],bops(1),[],'w',[]] if order not in 'de' else [xops(2),xops(3),[],bops(1),[],[],'w',[]]
    for k,(fn,gi) in enumerate(seq):
        if plan[k]=='w':
            if not LATEW:
                if not PRO:
                    for x in early: g(x)
                g.sideq+=wd(0)+wd(1)
        else: g.sideq+=plan[k]
        if fn is stats:
            while any(1 for op in plan[max(k-2,0)] if False): pass
        fn(gi); g.stamp('dst')
        if order=='c' and k==1: g.flush_side()
    g.flush_side()
    g('s_waitcnt lgkmcnt(0)\ns_barrier')
    g.stamp(); g.stamp('dst')
    ACC=64
    def fr(s_):
        b=[32,216][s_]
        return dict(A=[b,b+4,b+8,b+12],B=[b+16,b+20])
    def rd(n):
        st,kk=n>>2,n&3; f=fr(n&1)
        bb=lambda ab: f'ds_read_b128 v[{f["B"][ab]}:{f["B"][ab]+3}], v{vFB[kk]} offset:{(st&1)*8192+4096*ab}'
        aa=lambda ti: f'ds_read_b128 v[{f["A"][ti]}:{f["A"][ti]+3}], v{vFA[kk]} offset:{st*16384+4096*ti}'
        return [aa(0),bb(0),bb(1),aa(1),aa(2),aa(3)]
    g.wait('B0')
    for x in rd(0): g(x)
    vTB=[18,19]
    nT=[i for i,x in enumerate(addr) if f'v_add_u32 v{vT[3]}' in x][0]+1
    pre=([] if PRO else addr[8:nT])+['s_sub_u32 s0, s55, s69',f'v_add_u32 v18, s0, v{vT[0]}',f'v_add_u32 v19, s0, v{vT[1]}']
    if not LATEW:
        for x in pre: g(x)
    if not g.opt.get('trigp2',1):
        trig=trig_ops(0,{1:20,2:21,3:22,5:23,6:30,7:31,9:57,12:2,13:3,14:8,15:9,16:240,17:241,18:242,19:243,20:24,21:25,22:26,23:27})
    g.miscq=([] if PRO else addr[:8]+addr[nT:])+trig
    if PRO: early=[]
    TRS={0:0,1:1,5:2,6:3,9:4,10:5,13:6,14:7}
    DMS={1:[2],2:[3],6:[4],7:[5],10:[6],11:[7,8],12:[9],14:[10],15:[11]}
    if order in 'ghi':
        TRS={1:0,2:1,5:2,6:3,9:4,10:5,13:6,14:7}
        DMS={2:[2],3:[3],6:[4],7:[5],10:[6],11:[7,8],12:[9],14:[10],15:[11]}
    if LATEW:
        TRS={4:0,5:1,8:2,9:3,11:4,12:5,14:6,15:7}
        DMS={1:[0,1],5:[2],6:[3],9:[4],10:[5],11:[6,7],12:[8],13:[9]}
        g.miscq=early+pre+g.miscq
    for n in range(16):
        f=fr(n&1)
        def mf(ti,ab):
            d=ACC+32*ti+16*ab
            g(f'{MF} v[{d}:{d+15}], v[{f["A"][ti]}:{f["A"][ti]+3}], v[{f["B"][ab]}:{f["B"][ab]+3}], '+(f'v[{d}:{d+15}]' if n else '0'))
        nx=rd(n+1) if n<15 else []
        if n%2==0: g.stamp('dm')
        g('s_waitcnt lgkmcnt(0)'); mf(0,0)
        if n==3: g.sideq+=bops(2)
        if n==7: g.sideq+=bops(3)
        if LATEW and n==1:
            while any(x in g.miscq for x in early): misc(g,1)
        if LATEW and n==4:
            while any(x in g.miscq for x in pre): misc(g,1)
        if n==8:
            assert 'a0' not in g.vm
            while len(g.miscq)>len(trig): misc(g,1)
            g('s_barrier')
            g.miscq+=[f'v_and_b32 v2, 3, v0',f'v_lshrrev_b32 v3, 5, v0',f'v_lshlrev_b32 v3, 4, v3',f'v_lshl_add_u32 v2, v2, 7, v3',f'v_add_u32 v2, s13, v2',
                      f'v_and_b32 v3, 28, v0',f'v_cmp_eq_u32 vcc, 0, v3',f'v_mov_b32 v3, {OOB}','s_nop 0',f'v_cndmask_b32 v2, v3, v2, vcc']
        if n==9:
            misc(g,9999)
            g.sideq+=[(lambda q=q: g.vmem(f'buffer_load_dwordx4 v[{[20,24,28,240][q]}:{[20,24,28,240][q]+3}], v2, s[40:43], 0 offen offset:{32*q} sc1','al')) for q in range(4)]
        if n==15:
            g.wait('al')
            g.miscq+=[f'v_cvt_pk_bf16_f32 v{20+i}, v{20+2*i}, v{21+2*i}' for i in range(4)]+[f'v_cvt_pk_bf16_f32 v28, v28, v29','v_cvt_pk_bf16_f32 v29, v30, v31','v_cvt_pk_bf16_f32 v30, v240, v241','v_cvt_pk_bf16_f32 v31, v242, v243']
        for pr in DMS.get(n,[]): g.sideq+=wd(pr)
        if (n+1)%4==0 and n<15: g.wait(f'B{(n+1)>>2}')
        for x in nx[:3]: g(x)
        mf(0,1)
        for x in nx[3:]: g(x)
        mf(1,0)
        trq=[]
        if n in TRS:
            assert not any(True for op in g.sideq if getattr(op,'pr',None)==TRS[n])
            g.wait(f'w{TRS[n]}'); trq=w2_trl(TRS[n],vTB,wl[TRS[n]])
        for k,(ti,ab) in enumerate(((1,1),(2,0),(2,1),(3,0),(3,1))):
            if trq and k>=3:
                for x in trq[:4]: g(x)
                trq=trq[4:]
            else:
                had=bool(g.sideq); g.side(); misc(g,2 if had else 4)
            mf(ti,ab)
        had=bool(g.sideq); g.side(); misc(g,2 if had else 4)
    g.stamp(); g.stamp('s1'); g.stamp('dm')
    if LATEW: g.flush_side(); g.sideq+=wd(10)+wd(11)+[lambda: g('s_waitcnt lgkmcnt(0)')]
    g.sideq+=wd(12)+wd(13)
    def trop(pr):
        def op():
            g.wait(f'w{pr}')
            for x in w2_trl(pr,vTB,wl[pr])[:4]: g(x)
        def op2():
            for x in w2_trl(pr,vTB,wl[pr])[4:]: g(x)
        return [op,op2]
    NJ=g.opt.get('nj',4)
    for pr in range(8,min(12,14-NJ)): g.sideq+=trop(pr)
    g.sideq+=[lambda: [misc(g,1) for _ in range(len(g.miscq)-len(trig))]]
    def zc(ti):
        Z=[32,216][ti&1]; L=[]
        for ab in range(2):
            d=ACC+32*ti+16*ab
            for i in range(8): L.append(f'v_cvt_pk_bf16_f32 v{Z+8*ab+i}, v{d+2*i}, v{d+2*i+1}')
        return L
    for x in zc(0): g(x)
    for ti in range(4):
        Z=[32,216][ti&1]
        za=[Z,Z+4]; zb=[Z+8,Z+12]; ur=ACC+32*ti; ui=ur+16
        nxt=zc(ti+1) if ti<3 else []
        seq=[(ur,CC[0],za[0],1),(ui,CC[0],zb[0],1),(ur,CC[1],za[1],0),(ui,CC[1],zb[1],0),(ur,SS[0],zb[0],0),(ui,NS[0],za[0],0),(ur,SS[1],zb[1],0),(ui,NS[1],za[1],0)]
        for n,(d,am,bm,first) in enumerate(seq):
            g(f'{MF} v[{d}:{d+15}], v[{am}:{am+3}], v[{bm}:{bm+3}], '+('0' if first else f'v[{d}:{d+15}]'))
            for x in nxt[2*n:2*n+2]: g(x)
            had=bool(g.sideq); g.side(); misc(g,(0 if had else 2)+(0 if nxt else 2))
    g.stamp('s1')
    g.flush_side(); misc(g,9999)
    g.stamp('s1')
    for op in xb2_ops(g): op()
    for pr in (12,13):
        if pr<14-NJ:
            for op in trop(pr): op()
    for k in range(NJ//2): g(f'v_add_u32 v{vJ[k][0]}, {wl[12-2*k]}, v{vTB[0]}\nv_add_u32 v{vJ[k][1]}, {wl[12-2*k]}, v{vTB[1]}')
    g.stamp('s1')
    srd(g,36,28,4<<20,add=U_OFF)
    g(f'''v_and_b32 v24, 31, v0
    v_lshrrev_b32 v25, 5, v0
    v_lshlrev_b32 v24, 4, v24
    v_lshl_add_u32 v24, v25, 18, v24
    s_lshl_b32 s53, s3, 9
    v_add_u32 v24, s53, v24
    s_lshl_b32 s53, s48, 1
    s_add_u32 s53, s53, s49
    s_lshl_b32 s53, s53, 11''')
    for r in range(16):
        o=32+4*(r&3)
        for ti in range(4): g(f'v_cvt_pk_bf16_f32 v{o+ti}, v{ACC+32*ti+r}, v{ACC+32*ti+16+r}')
        g(f's_add_u32 s54, s53, {(8*(r>>2)+(r&3))*65536}')
        g.vmem(f'buffer_store_dwordx4 v[{o}:{o+3}], v24, s[36:39], s54 offen sc1','st')
        if r<4:
            d,am,bm,first=((224,20,CC[0],1),(240,20,NS[0],1),(224,28,CC[1],0),(240,28,NS[1],0))[r]
            g(f'{MF} a[{d}:{d+15}], v[{am}:{am+3}], v[{bm}:{bm+3}], '+('0' if first else f'a[{d}:{d+15}]'))
        if r==6:
            for i in range(4): g(f'v_accvgpr_read_b32 v{48+2*i}, a{224+i}\nv_accvgpr_read_b32 v{49+2*i}, a{240+i}')
            g(f'''s_lshl_b32 s0, s48, 12
            s_add_u32 s0, s0, 0x200000
            s_lshl_b32 s1, s49, 2
            s_add_u32 s1, s1, s3
            s_cmp_eq_u32 s1, 1
            s_cselect_b32 s0, s0, {OOB}
            v_lshl_add_u32 v2, v0, 4, s0
            v_mov_b32 v3, {OOB}
            v_cmp_gt_u32 vcc, 32, v0''')
            for i in range(4): g(f'v_cvt_pk_bf16_f32 v{28+i}, v{48+2*i}, v{49+2*i}')
            g('v_cndmask_b32 v2, v3, v2, vcc')
            g.vmem('buffer_store_dwordx4 v[28:31], v2, s[36:39], 0 offen sc1','st')
    g.stamp(); g.stamp('s1')
    g('v_mov_b32 v2, s47')
    g.vmem(f'buffer_load_dword v3, v{vPL}, s[40:43], 0 offen sc1','poll')
    def sig():
        if g.opt.get('uline',0)==32:
            for i in range(4): g(f'v_mov_b32 v{4+i}, s47')
        g.wait('poll')
        g.stamp('s1')
        g('s_waitcnt lgkmcnt(0)\ns_barrier')
        if g.opt.get('uline',0)==32: g(f'buffer_store_dwordx4 v[4:7], v{vSG}, s[40:43], 0 offen sc1')
        else: g(f'buffer_store_dword v2, v{vSG}, s[40:43], 0 offen sc1')
    if g.opt.get('dsig',1): g.dsig=sig
    else: sig()
    g('s_lshl_b32 s53, s3, 12')
    for d in (1,2,3): g(f's_add_u32 s{5+d}, s53, {(d-1)*16384}\ns_xor_b32 s{8+d}, s{5+d}, {d*4096}')
    g('s_lshr_b32 s12, s53, 1\ns_add_u32 s12, s12, 49152')

def p2(g, role):
    M=(role=='m') and g.opt.get('merge',0)
    X=role
    ACC=64; ACS=128; UF=144
    XS=32768+4096
    HR=[16+8*i for i in range(5)]+[192+8*i for i in range(5)]
    NH=len(HR)
    g.stamp(); g.stamp('tail')
    srd(g,36,28,7340032); srd(g,32,28,4<<20,add=U_OFF); srd(g,72,24,2097152)
    g(f'''s_sub_u32 s62, 32, s71
    s_and_b32 s62, s62, 31
    s_cmp_lt_u32 s70, 4
    s_cselect_b32 s62, s71, s62
    s_lshl_b32 s62, s62, 16
    v_mov_b32 v185, 0
    v_mov_b32 v186, 0
    v_mov_b32 v187, 0
    v_mov_b32 v188, 0x3f80
    v_cmp_gt_u32 vcc, 32, v0
    v_mov_b32 v189, 0
    v_mov_b32 v190, 0
    v_cndmask_b32 v188, 0, v188, vcc
    v_mov_b32 v191, 0
    s_mul_i32 s57, s71, 112
    s_mul_i32 s53, s3, 28
    s_add_u32 s57, s57, s53
    s_lshl_b32 s57, s57, 11
    s_add_u32 s59, s57, {28*2048}
    s_lshl_b32 s53, s44, 12
    s_add_u32 s58, s57, s53
    v_mov_b32 v2, s47
    s_mov_b32 s56, {SPIN}''')
    for d in (1,2,3):
        g(f'v_lshl_add_u32 v{9+d}, v0, 4, s{5+d}')
    g(f'v_mov_b32 v9, v{vFL}')
    if M:
        NW=g.nw; ops=[]
        for pr in range(NW,8): ops+=w2_pair_ops(g,pr)
        t01=w2_trl(0)+w2_trl(1)
        for n,op in enumerate(ops):
            op()
            if n==3: g.wait('w1')
            if n>=3 and t01:
                for x in t01[:2]: g(x)
                del t01[:2]
        for x in t01: g(x)
        g.vmem(f'buffer_load_dword v3, v{vPL}, s[40:43], 0 offen sc1','poll')
        for pr in (8,9):
            for op in w2_pair_ops(g,pr): op()
        g.wait('poll')
    if role=='d' and g.opt.get('dsig',1): g.dsig()
    if role=='m' and g.opt.get('msig',1) and not M: g.msig()
    PD=g.opt.get('pdepth',2)
    if PD>1 and not M:
        ld=lambda r: f'buffer_load_dword v{r}, v{vPL}, s[40:43], 0 offen sc1'
        SL=g.opt.get('psl',5)
        if role=='m': g(('' if g.opt.get('epoll',0) else ld(3))+f'\nv_mov_b32 v184, v{vB2}\ns_waitcnt vmcnt(0)')
        else: g(f'v_mov_b32 v184, v{vB2}')
        g('v_cmp_ne_u32 vcc, s47, v3\ns_cbranch_vccnz L_pslow\nL_go:')
        R=[3,4,5,6][:PD]
        t='L_pslow:\n'
        for r in R[:-1]: t+=ld(r)+f'\ns_sleep {SL}\n'
        t+='L_poll:\n'
        for k in range(PD):
            t+=ld(R[(k-1)%PD])+f'\ns_waitcnt vmcnt({PD-1})\nv_cmp_ne_u32 vcc, s47, v{R[k]}\ns_cbranch_vccz L_go\ns_sleep {g.opt.get("psl2",2)}\n'
        t+='s_sub_u32 s56, s56, 1\ns_cbranch_scc0 L_poll\ns_branch L_go'
        ool(g,t)
    else:
        if role=='m' and not M: g(f'L_poll:\nbuffer_load_dword v3, v{vPL}, s[40:43], 0 offen sc1\nv_mov_b32 v184, v{vB2}\ns_waitcnt vmcnt(0)')
        else: g(f'v_mov_b32 v184, v{vB2}\nL_poll:')
        g('v_cmp_ne_u32 vcc, s47, v3\ns_cbranch_vccnz L_pslow\nL_go:')
        ool(g,f'''L_pslow:
        s_sleep {g.opt.get('sleep',4)}
        '''+('' if (role=='m' and not M) else f'buffer_load_dword v3, v{vPL}, s[40:43], 0 offen sc1\ns_waitcnt vmcnt(0)\n')+'''s_sub_u32 s56, s56, 1
        s_cbranch_scc0 L_poll
        s_branch L_go''')

    if not M: g.vm=['old']*30
    g.stamp(); g.stamp('tail')
    hidx=[0]
    def hload():
        ks=hidx[0]; r=HR[ks%NH]
        g.vmem(f'buffer_load_dwordx4 v[{r}:{r+3}], v{vH0}, s[36:39], s58 offen offset:{2048*(ks&1)} {g.opt.get("hld","sc1").replace("none","")}',f'h{ks}')
        g.vmem(f'buffer_load_dwordx4 v[{r+4}:{r+7}], v{vH1}, s[36:39], s58 offen offset:{2048*(ks&1)} {g.opt.get("hld","sc1").replace("none","")}',f'h{ks}')
        if ks&1 and ks<27: g('s_add_u32 s58, s58, 4096\ns_cmp_eq_u32 s58, s59\ns_cselect_b32 s58, s57, s58')
        hidx[0]+=1
    HD=g.opt.get('hdepth',8)
    g(f's_waitcnt lgkmcnt(0)\ns_mov_b32 s55, 0x80000')
    for i in range(HD):
        hload()
        if role=='d' and g.opt.get('dlate',0) and i==g.opt.get('dlate',0)*4-1: g.vmem(f'buffer_store_dword v2, v{vSG}, s[40:43], 0 offen sc1','sig')
    g(f'{MF} v[{ACC}:{ACC+15}], v[184:187], v[188:191], 0')
    XA=[236,237,238,239]
    xa=Rec()
    xa(f'''v_and_b32 v236, 31, v0
    v_lshrrev_b32 v237, 5, v0
    v_lshlrev_b32 v237, 3, v237
    v_lshl_add_u32 v237, v236, 6, v237
    v_bfe_u32 v236, v0, 2, 2
    v_lshl_add_u32 v236, v236, 4, v237
    v_add_u32 v236, s12, v236
    v_xor_b32 v237, 16, v236
    v_xor_b32 v238, 32, v236
    v_xor_b32 v239, 48, v236
    v_lshl_add_u32 v240, v0, 4, s12''')
    KF=g.opt.get('kflag',11)
    NL=g.opt.get('nlast',3)
    def mf(ks,a_,b):
        r=HR[ks%NH]; d=ACC+16*(a_+2*b)
        c='0' if (ks==0 and (a_ or b)) else f'v[{d}:{d+15}]'
        g(f'{MF} v[{d}:{d+15}], a[{8*ks+4*a_}:{8*ks+4*a_+3}], v[{r+4*b}:{r+4*b+3}], {c}')
    checked=False
    NJ=g.opt.get('nj',4)
    jit=[x for pr in range(14-NJ,14) for x in w2_trl(pr,vJ[(13-pr)>>1],4096*(pr&1))]
    late=[]
    if M:
        jit=[x for pr in range(2,14) for x in w2_trl(pr)]
        for pr in range(10,14): late+=w2_pair_ops(g,pr)
    g.miscq=xa.l+(trig_ops(0) if g.opt.get('trigp2',1) else [])
    for ks in range(28-NL):
        g.wait(f'h{ks}')
        if NJ and ks==16 and not M: g('s_waitcnt lgkmcnt(0)')
        if M and ks>=4 and ks%2==0: g('s_waitcnt lgkmcnt(8)')
        if M and ks>=16 and ks%2==0 and ks<=22: g.wait(f'w{ks//2+2}')
        if ks==0:
            g.stamp()
        for b in range(2):
            for a_ in range(2):
                mf(ks,a_,b)
                if a_==0 and b==0 and (ks>=1 or M) and jit:
                    for x in jit[:4]: g(x)
                    del jit[:4]
                elif a_==1 and b==0 and late:
                    late.pop(0)(); late.pop(0)()
                elif not (a_==1 and b==1): misc(g,g.opt.get('p2misc',6 if M else 4))
            if b==0 and g.sideq: g.side()
        if hidx[0]<28: hload()
        elif g.sideq: g.side()
        if ks==(10 if M else 2):
            g('s_mov_b32 m0, s12')
            g.vmem(f'buffer_load_dwordx4 v{vXO}, s[76:79], 0 offen lds','xl')
            g('s_add_u32 m0, m0, 1024')
            g.vmem(f'buffer_load_dwordx4 v{vXO}, s[76:79], s55 offen lds','xl')
        if ks==(24 if M else 22):
            assert 'xl' not in g.vm
            for q in range(4): g(f'ds_read_b64 v[{XR+2*q}:{XR+2*q+1}], v{XA[q]}')
        if ks==KF: g.vmem(f'buffer_load_dword v176, v9, s[40:43], 0 offen sc1','fl')
        if 'fl' not in g.vm and ks>KF and not checked:
            checked=True
            g(f'''L_chk:
            v_cmp_ne_u32 vcc, s47, v176
            s_cbranch_vccnz L_uslow
            L_allset:''')
            ool(g,'''L_uslow:
            s_sleep 8
            buffer_load_dword v176, v9, s[40:43], 0 offen sc1
            s_waitcnt vmcnt(0)
            s_sub_u32 s56, s56, 1
            s_cbranch_scc0 L_chk
            s_branch L_allset''')
            def mku(j):
                def op():
                    g(f's_add_u32 s53, s62, {8192*j}')
                    g.vmem(f'buffer_load_dwordx4 v[{UF+4*j}:{UF+4*j+3}], v{vU}, s[32:35], s53 offen sc1','u')
                return op
            g.sideq+=[mku(j) for j in range(8)]
    assert checked
    if g.miscq: print('p2',role,'misc left',len(g.miscq),file=sys.stderr)
    misc(g,9999)
    g.flush_side()
    if M: g('s_waitcnt lgkmcnt(4)')
    XF=176
    def wr(d):
        for q in range(4):
            r=ACC+16*d+4*q
            g(f'ds_write_b128 v{9+d}, v[{r}:{r+3}] offset:{1024*q}')
    assert NL==3
    wl_=lambda d: [f'ds_write_b128 v{9+d}, v[{ACC+16*d+4*q}:{ACC+16*d+4*q+3}] offset:{1024*q}' for q in range(4)]
    unp=[x for i in range(8) for x in (f'v_lshlrev_b32 v{XF+2*i}, 16, v{XR+i}',f'v_and_b32 v{XF+2*i+1}, s63, v{XR+i}')]
    fill={3:[['s_mov_b32 s63, 0xffff0000'],[],['s_waitcnt lgkmcnt(0)']+unp[:3]],
          2:[unp[3:8],unp[8:12],unp[12:16]],
          1:[wl_(3)[:2],wl_(3)[2:],[f's_mov_b32 s60, {f2u(-math.log2(math.e)):#x}','s_mov_b32 s61, s60','s_mov_b32 s62, 1.0','s_mov_b32 s63, 1.0']],
          0:[[],wl_(2)[:2],wl_(2)[2:]]}
    for d in (3,2,1,0):
        for n,ks in enumerate(range(25,28)):
            g.wait(f'h{ks}')
            mf(ks,d&1,d>>1)
            for x in fill[d][n]: g(x)
    g.stamp()
    def smm(j): g(f'{MF} v[{ACS}:{ACS+15}], v[{UF+4*j}:{UF+4*j+3}], a[{224+4*j}:{227+4*j}], '+('0' if j==0 else f'v[{ACS}:{ACS+15}]'))
    g.waitall()
    smm(0)
    for x in wl_(1)[:2]: g(x)
    smm(1)
    for x in wl_(1)[2:]: g(x)
    SB=g.opt.get('sbar',3)
    for j in range(2,SB): smm(j)
    for d in (1,2,3): g(f'v_lshl_add_u32 v{9+d}, v0, 4, s{8+d}')
    g('s_waitcnt lgkmcnt(0)\ns_barrier')
    rds=[f'ds_read_b128 v[{[192,208,16][d]+4*q}:{[192,208,16][d]+4*q+3}], v{10+d} offset:{1024*q}' for q in range(4) for d in range(3)]
    for j in range(max(SB,2),8):
        smm(j)
        for x in rds[:4]: g(x)
        del rds[:4]
    for x in rds: g(x)
    EPL='\n'.join(f'buffer_load_dword v{6+i}, v4, s[40:43], 0 offen offset:{256*i} sc1' for i in range(4)) if g.opt.get('fline',1) else 'buffer_load_dwordx4 v[6:9], v4, s[40:43], 0 offen sc1'
    if role=='m':
        g('s_lshl_b32 s1, s2, 2\ns_add_u32 s1, s1, s3\ns_cmp_eq_u32 s1, 803\ns_cbranch_scc1 L_ep0\nL_noep0:')
        ool(g,'''L_ep0:
        v_lshrrev_b32 v4, 2, v0
        v_and_b32 v5, 3, v0
        '''+('''v_mul_u32_u24 v5, 7, v5
        v_lshrrev_b32 v5, 1, v5
        v_lshl_add_u32 v4, v4, 4, v5
        v_lshlrev_b32 v4, 8, v4
        ''' if g.opt.get('fline',1) else '''v_lshl_add_u32 v4, v4, 3, v5
        v_lshlrev_b32 v4, 8, v4
        ''')+EPL+'''
        s_branch L_noep0''')
    T=80
    for hf in range(2):
        g(f's_waitcnt lgkmcnt({6-4*hf})')
        I=range(4*hf,4*hf+4)
        for i in I: g(f'v_pk_add_f32 v[{192+2*i}:{193+2*i}], v[{192+2*i}:{193+2*i}], v[{208+2*i}:{209+2*i}]')
        for i in I: g(f'v_pk_add_f32 v[{ACC+2*i}:{ACC+2*i+1}], v[{ACC+2*i}:{ACC+2*i+1}], v[{16+2*i}:{17+2*i}]')
        for i in I: g(f'v_pk_add_f32 v[{ACC+2*i}:{ACC+2*i+1}], v[{ACC+2*i}:{ACC+2*i+1}], v[{192+2*i}:{193+2*i}]')
        for i in I: g(f'v_pk_mul_f32 v[{T+2*i}:{T+2*i+1}], v[{ACC+2*i}:{ACC+2*i+1}], s[60:61]')
        for i in I: g(f'v_exp_f32 v{T+2*i}, v{T+2*i}\nv_exp_f32 v{T+2*i+1}, v{T+2*i+1}')
        for i in I: g(f'v_pk_add_f32 v[{T+2*i}:{T+2*i+1}], v[{T+2*i}:{T+2*i+1}], s[62:63]')
        for i in I: g(f'v_rcp_f32 v{T+2*i}, v{T+2*i}\nv_rcp_f32 v{T+2*i+1}, v{T+2*i+1}')
        sp=lambda r: ACS+4*(2*(r>>3)+(r&1))+2*((r>>2)&1)+((r>>1)&1)
        for i in I:
            for r in (2*i,2*i+1): g(f'v_mul_f32 v{ACC+r}, v{ACC+r}, v{sp(r)}')
        for i in I: g(f'v_pk_fma_f32 v[{T+2*i}:{T+2*i+1}], v[{T+2*i}:{T+2*i+1}], v[{ACC+2*i}:{ACC+2*i+1}], v[{XF+2*i}:{XF+2*i+1}]')
        for i in I: g(f'v_cvt_pk_bf16_f32 v{96+i}, v{T+2*i}, v{T+2*i+1}')
        for q in (2*hf,2*hf+1): g(f'ds_write_b64 v{XA[q]}, v[{96+2*q}:{97+2*q}]')
    g('s_waitcnt lgkmcnt(0)\nds_read_b128 v[104:107], v240\nds_read_b128 v[108:111], v240 offset:1024\ns_waitcnt lgkmcnt(1)')
    g(f'buffer_store_dwordx4 v[104:107], v{vXO}, s[72:75], 0 offen {g.opt.get("outfl","")}\ns_waitcnt lgkmcnt(0)\nbuffer_store_dwordx4 v[108:111], v{vXO}, s[72:75], s55 offen {g.opt.get("outfl","")}')
    if role=='m':
        g('s_cmp_eq_u32 s1, 803\ns_cbranch_scc1 L_ep1\nL_noep:')
        ool(g,f'''L_ep1:
        s_waitcnt vmcnt(2)
        L_ep:
        v_xor_b32 v6, s47, v6
        v_xor_b32 v7, s47, v7
        v_xor_b32 v8, s47, v8
        v_xor_b32 v9, s47, v9
        v_or3_b32 v6, v6, v7, v8
        v_or_b32 v6, v6, v9
        v_cmp_ne_u32 vcc, 0, v6
        s_cbranch_vccz L_epok
        s_sleep 8
        {EPL}
        s_waitcnt vmcnt(0)
        s_sub_u32 s56, s56, 1
        s_cbranch_scc0 L_ep
        L_epok:
        v_mov_b32 v3, {EPO}
        s_mov_b64 exec, 1
        buffer_store_dword v2, v3, s[40:43], 0 offen sc1
        s_mov_b64 exec, -1
        s_branch L_noep''')
    g.stamp()

DOC=""";
;   224 MLP workgroups: 128 rows x 128 hidden columns of gelu(LN(LN(x)) @ w1 + b1). The GEMM runs on raw x; both LayerNorms are
;     folded into one extra K-step (-mean * colsum(w1) + b1 / rstd) and a per-row scale. h goes to d_ws in MFMA fragment order.
;     butterfly + normalisation, half-size hidden DFT against the dft_hid tables, DFT-32 along the sequence (s = 64*s1 + s2) -> U.
;     Bins above 256 follow from the Hermitian symmetry; bin 0 is the residue left by the bf16-rounded mean.
; Hand-offs between workgroups: write-through stores, drained, then flag words / tagged granules holding a per-launch tag that is
; derived from an epoch word in d_ws (advanced once every workgroup has read it), so older launches' words never match.
"""
def build(stamps=False, opt=None):
    global vTm0,vTm1
    if (opt or {}).get('merge',0): vTm0,vTm1=241,242
    g=G(stamps,opt); g.miscq=[]; g.outofline=[]
    def sfx(L,x): return [re.sub(r'\b(L_go|L_poll|L_pslow|L_ep0|L_ep1|L_chk|L_uslow|L_allset|L_noep0|L_noep|L_epok|L_ep)\b', r'\1_'+x, l) for l in L]
    entry(g)
    head=list(g.a.l); vm0=list(g.vm); n0=g.nst
    g.a.l=[]; p1_mlp(g); mlp=list(g.a.l)
    oo=g.outofline; g.outofline=[]
    g.a.l=[]; p2(g,'m'); g.dump_stamps(TS_OFF); mlp+=sfx(g.a.l,'m')+['    s_endpgm']; oo+=sfx(g.outofline,'m'); g.outofline=[]
    g.a.l=[]; g.vm=list(vm0); g.nst=n0; g.miscq=[]
    p1_dft(g); dft=list(g.a.l)
    k=[i for i,x in enumerate(dft) if '@@SPLIT@@' in x][0]
    g.a.l=[]; p2(g,'d'); g.dump_stamps(TS_OFF); dft+=sfx(g.a.l,'d'); oo+=sfx(g.outofline,'d')
    km=[i for i,x in enumerate(mlp) if '@@SPLIT@@' in x][0]
    lines=head+mlp[:km]+['    s_branch L_mlp','L_dfte:']+dft[:k]+['    s_branch L_dft','L_mlp:']+mlp[km+1:]+['L_dft:']+dft[k+1:]+['L_end:','    s_endpgm']+oo+['L_codeend:']
    body='\n'.join(hazard.fix(lines))+'\n'
    txt=wrap([dict(name=KN,body=body,grid=256,block=256,lds=163840,vgpr=512,accum=256)],HDR)
    return txt.replace('.amdgcn_target',DOC+'.amdgcn_target',1)
if __name__=='__main__':
    out=sys.argv[1]; st='stamps' in sys.argv[2:]
    opt={}
    for a in sys.argv[2:]:
        if '=' in a:
            k,v=a.split('='); opt[k]=int(v) if v.lstrip('-').isdigit() else v
    open(out,'w').write(build(st,opt))
```

```python
import sys, math, struct, re
sys.path.insert(0,'tools')
from asmlib import A, wrap, KN
import hazard
from gen3 import G, srd, t1_of, f2u, HDR, U_OFF, ST_OFF, CS_REL, TS_OFF, SPIN

F_OFF = 12<<20
F2 = 8192
FU=32768; EPO=40960
A0_REL=(ST_OFF-F_OFF)+(512<<10)
WT_OFF = 14<<20
vB2, vXO = 254, 255
vD=[226+i for i in range(0)]
vDM=[246,247,248,249]
vT=[250,251,252,253]
XR=246
vSG,vH0,vH1,vU,vFL,vPL = 58,59,60,61,62,63
vTT=245
MF='v_mfma_f32_32x32x16_bf16'
OOB='0x40000000'

class Rec:
    def __init__(s): s.l=[]
    def __call__(s,t):
        for x in t.split('\n'):
            x=x.strip()
            if x: s.l.append(x)
def ool(g, text):
    g.outofline+=[x.strip() if x.strip().endswith(':') else '    '+x.strip() for x in text.split('\n') if x.strip()]
def misc(g, n):
    while n>0 and g.miscq:
        x=g.miscq.pop(0); g(x)
        n-= x.count('\n')+1 + (1 if ('v_cos' in x or 'v_sin' in x) else 0)
def epoch_load(g):
    g(f's_add_u32 s60, s28, {F_OFF+EPO}\ns_addc_u32 s61, s29, 0\ns_load_dword s47, s[60:61], 0')
def nonce(g):
    g('s_mul_i32 s47, s47, 0x9e3779b1\ns_add_u32 s47, s47, 0x85ebca6b')

def p2_setup_ops(g, dft):
    r=Rec(); t=lambda i:f'v{1000+i}'
    if g.opt.get('dmix',1):
        if dft: r('s_mul_i32 s31, s31, 9')
        else:
            for v in (1,2,3): r.l.append(f's_cmp_eq_u32 s31, {9*v}\ns_cselect_b32 s31, {v}, s31')
    if g.opt.get('p2arr',84)==48:
        r('''s_and_b32 s70, s31, 7
        s_lshr_b32 s0, s31, 4
        s_lshl_b32 s1, s30, 1
        s_add_u32 s45, s0, s1
        s_bfe_u32 s1, s31, 0x10003''')
    else:
        r('''s_and_b32 s70, s30, 1
        s_lshl_b32 s70, s70, 2
        s_lshr_b32 s0, s31, 2
        s_add_u32 s0, s0, s31
        s_and_b32 s0, s0, 3
        s_add_u32 s70, s70, s0
        s_lshr_b32 s45, s30, 1
        s_lshl_b32 s45, s45, 2
        s_lshr_b32 s0, s31, 3
        s_add_u32 s45, s45, s0
        s_bfe_u32 s1, s31, 0x10002''')
    r.l.append('s_sub_u32 s0, 32, s45\ns_cmp_eq_u32 s45, 0\ns_cselect_b32 s0, 16, s0\ns_cmp_eq_u32 s1, 0\ns_cselect_b32 s71, s45, s0')
    wr=g.opt.get('wrot',3)
    if wr==0: r('s_mov_b32 s44, 0')
    elif wr==1: r('s_mul_i32 s44, s30, 7\ns_lshr_b32 s44, s44, 2')
    elif wr==3: r('s_lshr_b32 s44, s31, 2\ns_mul_i32 s44, s44, 7\ns_lshr_b32 s44, s44, 2')
    elif wr==5: r('s_lshr_b32 s44, s31, 2\ns_max_u32 s44, s44, 1\ns_sub_u32 s44, s44, 1\ns_lshl_b32 s44, s44, 1')
    elif wr==4: r('s_lshr_b32 s44, s31, 3\ns_mul_i32 s44, s44, 7\ns_lshr_b32 s44, s44, 1')
    elif wr==2: r('s_lshr_b32 s44, s30, 1\ns_mul_i32 s44, s44, 7\ns_lshr_b32 s44, s44, 1')
    ho={0:None,1:(1,7),2:(1,4),3:(3,3),4:(3,1),5:(1,2)}[g.opt.get('hoff',0)]
    if ho:
        r.l.append(f's_and_b32 s0, s70, {ho[0]}\ns_mul_i32 s0, s0, {ho[1]}\ns_add_u32 s44, s44, s0\ns_cmp_ge_u32 s44, 14\ns_cselect_b32 s0, 14, 0\ns_sub_u32 s44, s44, s0'.replace('{ho[0]}',str(ho[0])) )
    r(f'''s_lshl_b32 s68, s44, 15
    s_lshl_b32 s69, s3, 13
    v_lshrrev_b32 {t(4)}, 3, v0
    v_bfe_u32 {t(5)}, v0, 4, 1
    v_lshlrev_b32 {t(6)}, 2, {t(5)}
    v_and_b32 {t(7)}, 7, v0
    v_xor_b32 {t(6)}, {t(6)}, {t(7)}
    v_lshlrev_b32 {t(6)}, 4, {t(6)}
    v_lshl_add_u32 {t(6)}, {t(4)}, 10, {t(6)}
    s_mul_i32 s0, s3, {448*1024}
    s_lshl_b32 s1, s70, 7
    s_add_u32 s0, s0, s1
    v_add_u32 v{vDM[0]}, s0, {t(6)}
    v_add_u32 v{vDM[1]}, {7168}, v{vDM[0]}
    v_add_u32 v{vDM[2]}, {2*7168}, v{vDM[0]}
    v_add_u32 v{vDM[3]}, {3*7168}, v{vDM[0]}''')
    srd(r,64,20,1792*512*2)
    early=r.l; r=Rec()
    srd(r,72,22,1024); srd(r,76,4,2097152)
    r(f'''v_lshrrev_b32 {t(4)}, 5, v0
    v_bfe_u32 {t(5)}, v0, 4, 1
    v_bfe_u32 {t(6)}, v0, 2, 2
    v_lshl_add_u32 {t(7)}, {t(4)}, 2, {t(6)}
    v_lshlrev_b32 {t(7)}, 7, {t(7)}
    v_lshrrev_b32 {t(6)}, 1, {t(6)}
    s_and_b32 s0, s3, 1
    v_xor_b32 {t(6)}, s0, {t(6)}
    v_lshl_add_u32 {t(7)}, {t(6)}, 6, {t(7)}
    v_lshl_add_u32 {t(7)}, {t(5)}, 5, {t(7)}
    v_and_b32 {t(6)}, 3, v0
    v_lshl_add_u32 {t(7)}, {t(6)}, 3, {t(7)}
    v_add_u32 v{vT[0]}, s69, {t(7)}
    v_xor_b32 v{vT[1]}, 64, v{vT[0]}
    v_add_u32 v{vT[2]}, 0x18000, v{vT[0]}
    v_add_u32 v{vT[3]}, 0x18000, v{vT[1]}
    s_and_b32 s0, s30, {g.opt.get('urep',2)-1}
    s_lshl_b32 s0, s0, 9
    s_add_u32 s0, s0, {FU}
    v_and_b32 {t(7)}, 31, v0
    v_lshl_add_u32 v{vFL}, {t(7)}, 2, s0
    s_lshl_b32 s0, s45, 1
    s_and_b32 s1, s30, {g.opt.get('hrep',2)-1}
    s_add_u32 s0, s0, s1
    s_lshl_b32 s0, s0, 2
    s_add_u32 s0, s0, s3
    s_lshl_b32 s0, s0, 8
    v_and_b32 {t(6)}, 3, v0
    v_lshl_add_u32 v{vPL}, {t(6)}, 2, s0
    s_lshr_b32 s1, s3, 1
    s_lshl_b32 s0, s1, 10
    v_lshl_add_u32 v{vH0}, v0, 4, s0
    v_xor_b32 v{vH1}, 0x400, v{vH0}
    s_lshl_b32 s0, s1, 5
    v_and_b32 {t(6)}, 31, v0
    v_add_u32 {t(5)}, s0, {t(6)}
    v_lshlrev_b32 {t(5)}, 5, {t(5)}
    v_add_u32 v{vTT}, s71, {t(5)}
    s_lshl_b32 s0, s0, 15
    s_lshl_b32 s1, s71, 10
    s_add_u32 s1, s1, s0
    v_lshrrev_b32 {t(5)}, 2, v0
    v_lshlrev_b32 {t(5)}, 15, {t(5)}
    v_lshrrev_b32 {t(7)}, 4, v0
    v_xor_b32 {t(7)}, {t(7)}, v0
    v_and_b32 {t(7)}, 3, {t(7)}
    v_lshl_add_u32 {t(5)}, {t(7)}, 4, {t(5)}
    v_add_u32 {t(5)}, s1, {t(5)}
    s_lshl_b32 s0, s70, 7
    s_and_b32 s1, s3, 1
    s_lshl_b32 s1, s1, 6
    s_add_u32 s0, s0, s1
    v_add_u32 v{vXO}, s0, {t(5)}
    v_lshl_add_u32 v{vB2}, {t(6)}, 1, s0
    s_lshr_b32 s0, s0, 1
    v_and_b32 {t(5)}, 20, v0
    v_bfe_u32 {t(7)}, v0, 1, 1
    v_lshl_add_u32 {t(5)}, {t(7)}, 3, {t(5)}
    v_and_b32 {t(7)}, 1, v0
    v_lshl_add_u32 {t(5)}, {t(7)}, 1, {t(5)}
    v_bfe_u32 {t(7)}, v0, 3, 1
    v_add3_u32 {t(6)}, {t(5)}, {t(7)}, s0''')
    r.l.append('s_cmp_lt_u32 s70, 4\ns_cselect_b32 s0, 0, -1\ns_cselect_b32 s1, 0, 513')
    r(f'''v_xor_b32 {t(7)}, s0, {t(6)}
    v_add_u32 {t(7)}, s1, {t(7)}
    v_and_b32 {t(8)}, 1, {t(7)}
    v_lshlrev_b32 {t(8)}, 11, {t(8)}
    v_bfe_u32 {t(7)}, {t(7)}, 1, 7
    v_lshl_add_u32 {t(7)}, {t(7)}, 4, {t(8)}
    v_lshl_add_u32 {t(7)}, {t(4)}, 12, {t(7)}
    s_mul_i32 s0, s71, 65520
    s_sub_u32 s0, 0x200000, s0
    v_add_u32 {t(8)}, s0, {t(7)}
    v_cmp_eq_u32 vcc, 0, {t(6)}
    s_nop 0
    v_cndmask_b32 v{vU}, {t(7)}, {t(8)}, vcc
    v_mov_b32 {t(8)}, {OOB}''')
    if True:
        r.l.append(f's_cmp_eq_u32 s3, 0\ns_cselect_b32 s0, s46, {OOB}')
        if dft:
            r(f'''v_cmp_gt_u32 vcc, {g.opt.get('urep',2)}, v0
            v_lshl_add_u32 {t(10)}, v0, 9, s0
            s_nop 0
            v_cndmask_b32 v{vSG}, {t(8)}, {t(10)}, vcc''')
        else:
            r(f'''v_lshrrev_b32 {t(5)}, 1, v0
            v_mul_u32_u24 {t(6)}, 7, {t(5)}
            v_lshrrev_b32 {t(6)}, 1, {t(6)}
            v_sub_u32 {t(6)}, s49, {t(6)}
            v_and_b32 {t(7)}, 1, v0
            v_lshl_add_u32 {t(7)}, {t(7)}, 2, {t(5)}
            v_cmp_gt_u32 vcc, 4, {t(6)}
            v_lshlrev_b32 {t(7)}, 8, {t(7)}
            v_lshl_add_u32 {t(7)}, {t(6)}, 2, {t(7)}
            v_add_u32 {t(10)}, s0, {t(7)}
            v_cndmask_b32 {t(10)}, {t(8)}, {t(10)}, vcc
            v_and_b32 {t(7)}, {0x38 if g.opt.get('hrep',2)==2 else 0x39}, v0
            v_cmp_eq_u32 vcc, 0, {t(7)}
            s_nop 1
            v_cndmask_b32 v{vSG}, {t(8)}, {t(10)}, vcc''')
    else: r(f'v_mov_b32 v{vSG}, {t(8)}')
    return early, r.l, []
def trig_ops(fract=True, TMX=None):
    r=Rec(); t=lambda i:f'v{1000+i}'
    r.l.append(f's_cmp_lt_u32 s70, 4\ns_cselect_b32 s0, 0, 0x80000000')
    r(f'''s_or_b32 s0, s0, {f2u(1/2048):#x}
    v_mov_b32 {t(5)}, v{vTT}
    v_lshrrev_b32 {t(6)}, 5, v0
    v_cvt_f32_u32 {t(5)}, {t(5)}
    v_cvt_f32_u32 {t(6)}, {t(6)}
    v_mul_f32 {t(5)}, s0, {t(5)}
    v_cmp_gt_u32 s[0:1], 32, v0
    v_mul_f32 {t(6)}, {t(6)}, {t(5)}
    v_mul_f32 {t(7)}, {f2u(32.0):#x}, {t(5)}
    v_add_f32 {t(5)}, {t(5)}, {t(5)}
    v_mul_f32 {t(9)}, 0.5, {t(7)}
    v_cndmask_b32 {t(9)}, {t(7)}, {t(9)}, s[0:1]''')
    for j in range(8):
        if j: r(f'v_add_f32 {t(6)}, {t(6)}, {t(5)}')
        if fract:
            r(f'''v_add_f32 {t(1)}, {t(6)}, {t(7)}
            v_sub_f32 {t(2)}, {t(9) if j==0 else t(7)}, {t(6)}
            v_fract_f32 {t(0)}, {t(6)}
            v_add_f32 {t(3)}, {t(2)}, {t(7)}
            v_fract_f32 {t(1)}, {t(1)}
            v_fract_f32 {t(2)}, {t(2)}
            v_fract_f32 {t(3)}, {t(3)}''')
        else:
            r(f'''v_add_f32 {t(1)}, {t(6)}, {t(7)}
            v_sub_f32 {t(2)}, {t(9) if j==0 else t(7)}, {t(6)}
            v_add_f32 {t(3)}, {t(2)}, {t(7)}''')
        for i in range(4):
            a_=t(i) if (fract or i) else t(6)
            r(f'v_cos_f32 {t(12+2*i)}, {a_}\nv_sin_f32 {t(13+2*i)}, {a_}')
        for i in range(4): r(f'v_cvt_pk_bf16_f32 {t(20+i)}, {t(12+2*i)}, {t(13+2*i)}')
        for i in range(4): r(f'v_accvgpr_write_b32 a{224+4*j+i}, {t(20+i)}')
    TM={0:4,1:5,2:6,3:7,5:13,6:14,7:15,9:8}
    TM.update({12+i:128+i for i in range(8)}); TM.update({20+i:232+i for i in range(4)})
    return remap(r.l,TMX or TM)
def remap(L, TM):
    return [re.sub(r'v(10\d\d)\b', lambda m:'v%d'%TM[int(m.group(1))-1000], x) for x in L]
def xb2_ops(g):
    def o0(): g.vmem(f'buffer_load_ushort v{vB2}, v{vB2}, s[72:75], 0 offen','b2')
    return [o0]
def ppos(pr):
    p=pr%10
    return 131072+p*4096 if p<2 else ((p-2)>>1)*32768+(p&1)*4096
def w2_pair_ops(g, pr, base='s69', lds=None):
    if lds is None: lds=ppos(pr)
    def mk(i):
        def op():
            if i==0: g(f's_add_u32 m0, {base}, {lds}')
            g.vmem(f'buffer_load_dwordx4 v{vDM[i]}, s[64:67], s68 offen offset:{1024*i} lds', f'w{pr}')
            if i==3 and pr<13: g(f's_add_u32 s68, s68, 32768\ns_cmp_eq_u32 s68, {14*32768}\ns_cselect_b32 s68, 0, s68')
        return op
    return [mk(i) for i in range(4)]
def w2_trl(pr, regs=None, off=None):
    if regs is None:
        off=ppos(pr)
        if off>=65536 and off<0x18000: regs=('hi',);
        if off<65536: regs=vT[0:2]
        elif off>=0x18000: regs=vT[2:4]; off-=0x18000
        else: regs=[vTm0,vTm1]; off-=65536
    L=[]
    for k in range(2):
        for a_ in range(2):
            for q in range(2):
                r=8*(2*pr+k)+4*a_+2*q
                L.append(f'ds_read_b64_tr_b16 a[{r}:{r+1}], v{regs[a_]} offset:{off+2048*k+1024*q}')
    return L
vJ=[[241,242],[243,244]]
vTm0,vTm1=14,15

def entry(g):
    g('''s_cmp_ge_u32 s2, 256
    s_cbranch_scc1 L_end''')
    g.stamp()
    g('''s_load_dwordx16 s[4:19], s[0:1], 0
    s_load_dwordx8 s[20:27], s[0:1], 64
    s_load_dwordx2 s[28:29], s[0:1], 96
    v_lshrrev_b32 v1, 6, v0
    s_and_b32 s30, s2, 7
    s_lshr_b32 s31, s2, 3
    v_readfirstlane_b32 s3, v1''')
    if g.opt.get('codepf',1):
        g(f'''s_getpc_b64 s[50:51]
        L_pc:
        s_mul_i32 s53, s31, 1280
        v_lshl_add_u32 v2, v0, 3, s53
        v_min_u32 v2, L_codeend-L_pc-4, v2
        v_mov_b32 v3, s51
        v_add_co_u32 v2, vcc, s50, v2
        v_addc_co_u32 v3, vcc, 0, v3, vcc''')
        g.vmem('global_load_dword v1, v[2:3], off','pf')
    if g.opt.get('p1arr',48)==216:
        g('''v_and_b32 v0, 63, v0
        s_lshl_b32 s48, s30, 1
        s_and_b32 s53, s31, 1
        s_cmp_lt_u32 s31, 4
        s_cbranch_scc1 L_dft0
        s_add_u32 s48, s48, s53
        s_lshr_b32 s49, s31, 1
        s_sub_u32 s49, s49, 2
        s_mov_b32 s100, s53''')
        r=g.opt.get('rot',4)
        if r==1: g('s_lshl_b32 s56, s53, 2\ns_add_u32 s56, s56, s49\ns_and_b32 s56, s56, 7')
        elif r==2: g('s_add_u32 s56, s53, s49\ns_and_b32 s56, s56, 1\ns_lshl_b32 s56, s56, 2')
        elif r==4: g('s_lshl_b32 s56, s53, 1\ns_add_u32 s56, s56, s49\ns_and_b32 s56, s56, 3\ns_lshl_b32 s56, s56, 1')
        if g.opt.get('xph',0): g('s_add_u32 s56, s56, s30\ns_and_b32 s56, s56, 7')
        return
    rot=g.opt.get('rot',4)
    g('''v_and_b32 v0, 63, v0
    s_lshr_b32 s48, s30, 1
    s_lshl_b32 s55, s48, 1
    s_lshl_b32 s48, s48, 2
    s_and_b32 s100, s31, 3
    s_add_u32 s48, s48, s100
    s_lshr_b32 s49, s31, 2
    s_sub_u32 s49, s49, 1
    s_and_b32 s49, s49, 7''') if g.opt.get('dftfirst',1) else g('''v_and_b32 v0, 63, v0
    s_lshr_b32 s48, s30, 1
    s_lshl_b32 s55, s48, 1
    s_lshl_b32 s48, s48, 2
    s_lshr_b32 s100, s31, 3
    s_add_u32 s48, s48, s100
    s_and_b32 s49, s31, 7''')
    if rot==1:   g('s_lshl_b32 s56, s100, 1\ns_add_u32 s56, s56, s49\ns_and_b32 s56, s56, 7')
    elif rot==2: g('s_add_u32 s56, s100, s49\ns_and_b32 s56, s56, 1\ns_lshl_b32 s56, s56, 2')
    elif rot==4: g('s_add_u32 s56, s100, s49\ns_and_b32 s56, s56, 3\ns_lshl_b32 s56, s56, 1')
    elif rot==0: g('s_mov_b32 s56, 0')
    if g.opt.get('xph',0): g('s_add_u32 s56, s56, s55\ns_and_b32 s56, s56, 7')
    g('''s_and_b32 s53, s30, 1
    s_cmp_eq_u32 s49, 7
    s_cbranch_scc1 L_dfte''')

def p1_mlp(g):
    ACC=64
    vX=[2,3,4,5]; vW=[6,7,8,9]; vB=[10,11,12,13]; vA=[18,19]
    vSA,vCA,vCP,vCB=14,15,16,17
    vB1=[56,57]; CSA=164; SEL=168; GA=144; GF=160
    WP=200; vP0,vP1,vPT,vPS,vPF=208,209,210,211,212
    rot=g.opt.get('rot',4)
    A216=g.opt.get('p1arr',48)==216
    if A216:
        g('s_and_b32 s50, s3, 1\ns_lshr_b32 s51, s3, 1\ns_and_b32 s53, s49, 1')
    else:
        g('''s_mul_i32 s54, s53, 7
        s_add_u32 s49, s49, s54
        s_and_b32 s50, s3, 1
        s_lshr_b32 s51, s3, 1''')
    g('s_lshl_b32 s63, s48, 1\ns_add_u32 s63, s63, s53')
    t1_of(g,'s52','s48','s51','s53')
    g(f'''v_lshrrev_b32 v24, 3, v0
    v_lshrrev_b32 v25, 4, v0
    v_and_b32 v28, 7, v0
    v_xor_b32 v26, v28, v25
    v_lshlrev_b32 v26, 4, v26
    v_lshl_add_u32 v26, v24, 15, v26
    s_lshl_b32 s53, s52, 10
    s_lshl_b32 s54, s50, 20
    s_add_u32 s53, s53, s54
    v_add_u32 v{vX[0]}, s53, v26
    v_xor_b32 v27, 64, v{vX[0]}
    v_add_u32 v{vX[1]}, {262144-1024}, v27
    v_add_u32 v{vX[2]}, {2*(262144-1024)}, v{vX[0]}
    v_add_u32 v{vX[3]}, {3*(262144-1024)}, v27
    v_and_b32 v26, 15, v0
    v_lshlrev_b32 v27, 2, v25
    v_xor_b32 v26, v26, v27
    v_lshlrev_b32 v26, 4, v26
    v_mul_u32_u24 v29, 3584, v25
    v_add_u32 v26, v26, v29
    s_mul_i32 s53, s3, 57344
    s_lshl_b32 s54, s49, 8
    s_add_u32 s53, s53, s54
    v_add_u32 v{vW[0]}, s53, v26
    v_add_u32 v{vW[1]}, 13312, v{vW[0]}
    v_add_u32 v{vW[2]}, {2*13312}, v{vW[0]}
    v_add_u32 v{vW[3]}, {3*13312}, v{vW[0]}
    s_lshl_b32 s55, s3, 12''')
    g.stamp('pro')
    g('s_waitcnt lgkmcnt(0)')
    g.stamp('pro')
    srd(g,32,4,2097152); srd(g,36,16,512*1792*2)
    def stage_ops(st):
        slot=st&3
        def mk(i):
            def op():
                if i==0: g(f's_lshl_b32 s57, s56, 7\ns_mul_i32 s58, s56, 229376\ns_add_u32 m0, s55, {slot*32768}')
                if i==4: g(f's_add_u32 m0, s55, {slot*32768+16384}\ns_add_u32 s56, s56, 1\ns_and_b32 s56, s56, 7')
                if i<4: g.vmem(f'buffer_load_dwordx4 v{vX[i]}, s[32:35], s57 offen offset:{1024*i} lds',f's{st}')
                else:   g.vmem(f'buffer_load_dwordx4 v{vW[i-4]}, s[36:39], s58 offen offset:{1024*(i-4)} lds',f's{st}')
            return op
        return [mk(i) for i in range(8)]
    D=g.opt.get('depth',3)
    for op in stage_ops(0): op()
    g.stamp('pro')
    for op in stage_ops(1): op()
    g('@@SPLIT@@')
    g.stamp('pro')
    epoch_load(g)
    g(f'''s_lshl_b32 s46, s48, 11
    v_and_b32 v24, 31, v0
    v_lshrrev_b32 v25, 5, v0
    v_bfe_u32 v26, v0, 1, 3
    v_xor_b32 v26, v26, v25
    s_lshl_b32 s53, s51, 13
    v_lshlrev_b32 v27, 7, v24
    v_add_u32 v27, s53, v27''')
    for kk in range(4):
        g(f'''v_xor_b32 v28, {2*kk}, v26
        v_lshl_add_u32 v{vB[kk]}, v28, 4, v27''')
    g(f'''v_bfe_u32 v26, v0, 2, 2
    v_lshl_add_u32 v27, v25, 3, v26
    v_lshlrev_b32 v27, 8, v27
    s_lshl_b32 s53, s50, 1
    s_add_u32 s53, s53, s51
    v_xor_b32 v26, s53, v26
    v_lshl_add_u32 v27, v26, 6, v27
    v_bfe_u32 v26, v0, 4, 1
    v_and_b32 v28, 3, v0
    v_lshlrev_b32 v30, 3, v28
    v_lshl_add_u32 v30, v26, 5, v30
    s_movk_i32 s59, 0x4000
    v_add3_u32 v{vA[0]}, v27, v30, s59
    v_xor_b32 v{vA[1]}, 64, v{vA[0]}
    v_bfe_u32 v27, v0, 2, 1
    v_xor_b32 v26, v26, v27
    v_or_b32 v26, v26, v28
    v_mov_b32 v27, 0x3f803f80
    v_cmp_eq_u32 vcc, 0, v26
    s_lshl_b32 s53, s53, 5
    v_add_u32 v26, s53, v24
    v_cndmask_b32 v{SEL+4}, 0, v27, vcc
    s_lshl_b32 s54, s49, 7
    v_add_lshl_u32 v{vB1[0]}, v26, s54, 1
    v_xor_b32 v{vB1[1]}, 64, v{vB1[0]}''')
    srd(g,40,18,1792*2)
    for t in range(2): g.vmem(f'buffer_load_ushort v{vB1[t]}, v{vB1[t]}, s[40:43], 0 offen','b1')
    if A216:
        g(f'''s_lshl_b32 s53, s49, 3
        s_lshr_b32 s54, s48, 1
        s_add_u32 s53, s53, s54
        s_lshl_b32 s53, s53, 11
        s_add_u32 s53, s53, {CS_REL+(ST_OFF-F_OFF)}
        v_lshl_add_u32 v{vCA}, v26, 4, s53
        s_lshl_b32 s54, s100, 3
        v_add_u32 v{vCP}, s54, v{vCA}
        v_xor_b32 v{vCB}, 0x200, v{vCA}''')
    else: g(f'''s_lshl_b32 s53, s49, 2
    s_lshr_b32 s54, s48, 2
    s_add_u32 s53, s53, s54
    s_lshl_b32 s53, s53, 12
    s_add_u32 s53, s53, {CS_REL+(ST_OFF-F_OFF)}
    v_lshl_add_u32 v26, v26, 5, s53
    s_lshl_b32 s54, s100, 3
    v_add_u32 v{vCP}, s54, v26
    v_lshl_add_u32 v{vCA}, v25, 4, v26
    v_xor_b32 v{vCB}, 0x400, v{vCA}''')
    g(f'''
    s_lshl_b32 s53, s63, 11
    s_lshl_b32 s54, s51, 10
    s_add_u32 s53, s53, s54
    s_add_u32 s53, s53, {ST_OFF-F_OFF}
    v_lshl_add_u32 v{vSA}, v24, 4, s53
''')
    srd(g,40,28,4<<20,add=F_OFF)
    g.stamp('pro')
    WS0=g.opt.get('wsched','o')
    if D==3 and WS0!='y':
        for op in stage_ops(2): op()
    g.stamp('pro')
    g('s_waitcnt lgkmcnt(0)')
    early,addr,trig=p2_setup_ops(g,False)
    TM={i:176+i for i in range(24)}
    early,addr,trig=[remap(x,TM) for x in (early,addr,trig)]
    vBh=[200,201,202,203]; vAh=[204,205]
    g.miscq=[f'v_add_u32 v{h}, 0x10000, v{l}' for h,l in zip(vBh+vAh,vB+vA)]+early+addr+trig
    def fr(s_):
        b=[32,128][s_]
        return dict(A=[b,b+4],B=[b+8,b+12])
    def rd(n):
        st,kk=n>>2,n&3
        f=fr(n&1); o=(st&1)*32768; hi=(st>>1)&1
        tr=lambda t,q: f'ds_read_b64_tr_b16 v[{f["A"][t]+2*q}:{f["A"][t]+2*q+1}], v{[vA,vAh][hi][t]} offset:{o+4096*kk+1024*q}'
        bb=lambda u: f'ds_read_b128 v[{f["B"][u]}:{f["B"][u]+3}], v{[vB,vBh][hi][kk]} offset:{o+4096*u}'
        return [tr(0,0),tr(0,1),bb(0),bb(1),tr(1,0),tr(1,1)]
    ncs = 4 if A216 else {1:2,4:2,2:4,0:8}[rot]
    def setsel(st):
        if ncs==2 or A216: cond=None
        elif ncs==4: cond=f's_lshr_b32 s53, s100, 1\ns_cmp_eq_u32 s53, {st>>1}'
        else: cond=f's_cmp_eq_u32 s100, {st>>1}'
        if cond is None:
            for i in range(4): g(f'v_mov_b32 v{SEL+i}, v{SEL+4}')
        else:
            g(cond+'\ns_cselect_b32 s53, -1, 0')
            for i in range(4): g(f'v_and_b32 v{SEL+i}, s53, v{SEL+4}')
    def gather_ops():
        def mk(r,v,off):
            def o(): g.vmem(f'buffer_load_dwordx4 v[{r}:{r+3}], v{v}, s[40:43], 0 offen offset:{off} sc1','ga')
            return o
        return [mk(GA,vSA,0),mk(GA+4,vSA,512),mk(GA+8,vCA,0),mk(GA+12,vCB,0)]
    def publish():
        g(f'v_mov_b32 v{CSA+1}, s47')
        g.vmem(f'buffer_store_dwordx2 v[{CSA}:{CSA+1}], v{vCP}, s[40:43], 0 offen sc1','csp')
    WPS=g.opt.get('wpstage',1)
    WSCHED={'a':{2:[0],3:[1],5:[2,3],6:[4],7:[5,6]},'b':{3:[0],4:[1],5:[2],6:[3,4],7:[5]},'c':{5:[0,1],6:[2],7:[3,4]},'d':{1:[0],2:[1],5:[2,3],6:[4,5],7:[6]},'e':{5:[0,1],6:[2,3],7:[4,5]},'f':{4:[0],5:[1],6:[2,3],7:[4,5]},'g':{5:[0],6:[1],7:[2,3]},'h':{4:[0,1],7:[2,3,4]},'i':{4:[0,1],7:[2,3]},'j':{4:[0,1]},'k':{3:[0,1],6:[2,3],7:[4,5]},'l':{4:[0,1],6:[2],7:[3,4]},'m':{1:[(0,0)],2:[(0,1)],3:[(1,0)],4:[(1,1)],5:[2,3],6:[4,5],7:[6]},'n':{1:[(0,0)],2:[(0,1)],3:[(1,0)],4:[(1,1)],6:[2,3],7:[4,5]},'o':{1:[0],2:[1],5:[2,3],6:[4,5],7:[6,7]},'p':{5:[0,1],7:[2]},'q':{5:[0,1]},'r':{5:[0,1],6:[2]},'s':{5:[0,1],7:[2,3]},'t':{5:[0,1],6:[2],7:[3]},'u':{1:[0,1],5:[2,3],6:[4,5],7:[6,7]},'v':{0:[0,1],5:[2,3],6:[4,5],7:[6,7]},'w':{2:[0,1],5:[2,3],6:[4,5],7:[6,7]},'x':{-1:[0,1],5:[2,3],6:[4,5],7:[6,7]},'y':{-2:[0,1],5:[2,3],6:[4,5],7:[6,7]}}[g.opt.get('wsched','o')]
    half={}
    prevtr=[0]
    NTL=g.opt.get('ntl',5)
    TRL={n:(i>>1,i&1) for i,n in enumerate([20,21,22,23,26,27,28,29,30,31][:2*NTL])}
    MX=g.opt.get('mx',5)
    nw=len(set((p[0] if isinstance(p,tuple) else p) for x in WSCHED.values() for p in x))
    def enter(st):
        g.flush_side()
        g.wait(f's{st}')
        g('s_barrier')
        g.stamp('st')
        if st+D<8: g.sideq+=stage_ops(st+D)
        if st==max(ncs,g.opt.get('pubst',4)) and ncs<8: g.sideq.append(publish)
        if st==6: g.miscq+=hr.l
        if st in WSCHED and st<6:
            while len(g.miscq)>len(trig)+len(addr): misc(g,1)
        if st==g.opt.get('gast',7) and not g.opt.get('galast'): g.sideq+=gather_ops()
        for pr in WSCHED.get(st,[]):
            if isinstance(pr,tuple):
                if pr[1]==0: half[pr[0]]=w2_pair_ops(g,pr[0])
                ops=half[pr[0]][2*pr[1]:2*pr[1]+2]
                if pr[1]==1: ops=[lambda p=pr[0],o=ops[0]:(g(f's_add_u32 m0, s69, {ppos(p)}'),o())]+ops[1:]
                g.sideq+=ops
            else: g.sideq+=w2_pair_ops(g,pr)
        if st==g.opt.get('gast',7) and g.opt.get('galast'): g.sideq+=gather_ops()
    if WS0 in 'xy':
        while len(g.miscq)>len(trig)+len(addr): misc(g,1)
        for op in w2_pair_ops(g,0)+w2_pair_ops(g,1): op()
        if WS0=='y':
            for op in stage_ops(2): op()
    hr=Rec()
    srd(hr,36,28,7340032)
    hr('''s_mul_i32 s53, s52, 112
    s_lshl_b32 s54, s49, 3
    s_add_u32 s53, s53, s54
    s_lshl_b32 s54, s50, 2
    s_add_u32 s53, s53, s54
    s_lshl_b32 s53, s53, 11
    s_lshl_b32 s54, s51, 12
    s_add_u32 s60, s53, s54
    s_xor_b32 s61, s60, 0x400
    s_xor_b32 s62, s60, 0x1000
    s_xor_b32 s63, s60, 0x1400
''')
    nonce(g); setsel(0)
    enter(0); g.stamp(); g.stamp('pro')
    for x in rd(0): g(x)
    for n in range(32):
        st,kk=n>>2,n&3
        f=fr(n&1)
        def mf(t,u):
            d=ACC+16*(2*t+u)
            g(f'{MF} v[{d}:{d+15}], v[{f["A"][t]}:{f["A"][t]+3}], v[{f["B"][u]}:{f["B"][u]+3}], '+(f'v[{d}:{d+15}]' if n else '0'))
        nx = rd(n+1) if n<31 else []
        xt=prevtr[0]; prevtr[0]=0
        if kk==3:
            g(f's_waitcnt lgkmcnt({xt})'); mf(0,0)
            if st<7: enter(st+1)
            else: g.flush_side(); g('s_barrier')
            for x in nx[:3]: g(x)
            mf(0,1)
            for x in nx[3:]: g(x)
            mf(1,0)
        else:
            g(f's_waitcnt lgkmcnt({3+xt})'); mf(0,0)
            for x in nx[:3]: g(x)
            g(f's_waitcnt lgkmcnt({5+xt})'); mf(0,1)
            for x in nx[3:]: g(x)
            g(f's_waitcnt lgkmcnt({6+xt})'); mf(1,0)
        if n in TRL:
            pr,h=TRL[n]
            if h==0: g.wait(f'w{pr}')
            for x in w2_trl(pr)[4*h:4*h+4]: g(x)
            prevtr[0]=4
        else:
            had=bool(g.sideq); g.side(); misc(g, 2 if had else MX)
        if st<ncs:
            g(f'v_mfma_f32_16x16x32_bf16 v[{CSA}:{CSA+3}], v[{SEL}:{SEL+3}], v[{f["A"][0]}:{f["A"][0]+3}], '+(f'v[{CSA}:{CSA+3}]' if n else '0'))
        mf(1,1)
        had=bool(g.sideq); g.side(2 if (len(g.sideq)>2*(3-kk)+1 or n in TRL) else 1); misc(g,2 if had else MX)
        if kk==3 and st+1<ncs and (st+1)%2==0: setsel(st+1)
    if ncs==8: publish()
    g.flush_side(); misc(g,9999)
    g.stamp(); g.stamp('st'); g.stamp('tail')
    g.wait('ga')
    g(f'''s_mov_b32 s56, {SPIN}
    L_gchk:
    v_xor_b32 v24, s47, v{GA+3}
    v_xor_b32 v25, s47, v{GA+7}
    v_xor_b32 v26, s47, v{GA+9}
    v_xor_b32 v27, s47, v{GA+11}
    v_xor_b32 v28, s47, v{GA+13}
    v_xor_b32 v29, s47, v{GA+15}
    v_or3_b32 v24, v24, v25, v26
    v_or3_b32 v27, v27, v28, v29
    v_or_b32 v24, v24, v27
    v_cmp_ne_u32 vcc, 0, v24
    s_cbranch_vccnz L_gslow
    L_gok:''')
    keep=list(g.vm); main=g.a.l; g.a.l=[]
    g('L_gslow:\ns_sleep 8')
    for op in gather_ops(): op()
    g('s_waitcnt vmcnt(0)\ns_sub_u32 s56, s56, 1\ns_cbranch_scc0 L_gchk\ns_branch L_gok')
    g.outofline+=g.a.l; g.a.l=main; g.vm=keep
    NG=g.opt.get('ng',10)
    assert NG<=10+NTL
    g('s_waitcnt lgkmcnt(0)')
    for pr in range(nw,NG): g.sideq+=w2_pair_ops(g,pr)
    a0,a1=GA+8,GA+12
    c0=-2*math.sqrt(2/math.pi)*math.log2(math.e); c1=c0*0.044715
    g(f'''v_add_f32 v{a0}, v{a0}, v{a0+2}
    v_add_f32 v{a1}, v{a1}, v{a1+2}
    v_rcp_f32 v24, v{GA+2}
    v_mov_b32 v{a0+1}, v{a0}
    v_mov_b32 v{a1+1}, v{a1}
    v_rcp_f32 v26, v{GA+6}
    v_cmp_gt_u32 vcc, 32, v0
    v_permlane32_swap_b32 v{a0}, v{a0+1}
    v_permlane32_swap_b32 v{a1}, v{a1+1}
    v_mov_b32 v50, v{GA+2}
    v_mov_b32 v54, v{GA+6}
    {'v_mov_b32' if A216 else 'v_add_f32'} v{a0+2}, v{a0}{'' if A216 else f', v{a0+1}'}
    {'v_mov_b32' if A216 else 'v_add_f32'} v{a1+2}, v{a1}{'' if A216 else f', v{a1+1}'}
    v_mov_b32 v{GA+2}, v{GA}
    v_mov_b32 v{GA+6}, v{GA+4}
    v_cvt_pk_bf16_f32 v{a0}, v{a0+2}, v{a0+2}
    v_cvt_pk_bf16_f32 v{a1}, v{a1+2}, v{a1+2}
    v_lshl_or_b32 v{a0+1}, v{vB1[0]}, 16, v{vB1[0]}
    v_lshl_or_b32 v{a1+1}, v{vB1[1]}, 16, v{vB1[1]}
    v_lshlrev_b32 v{a0+3}, 16, v{a0}
    v_lshlrev_b32 v{a1+3}, 16, v{a1}
    v_cndmask_b32 v{a0}, 0, v{a0}, vcc
    v_cndmask_b32 v{a1}, 0, v{a1}, vcc
    v_sub_f32 v{a0+2}, v{a0+2}, v{a0+3}
    v_sub_f32 v{a1+2}, v{a1+2}, v{a1+3}
    v_cndmask_b32 v{a0+1}, 0, v{a0+1}, vcc
    v_cndmask_b32 v{a1+1}, 0, v{a1+1}, vcc
    v_cvt_pk_bf16_f32 v{a0+2}, v{a0+2}, 0
    v_cvt_pk_bf16_f32 v{a1+2}, v{a1+2}, 0
    v_mov_b32 v{a0+3}, 0
    v_mov_b32 v{a1+3}, 0
    v_cndmask_b32 v{a0+2}, 0, v{a0+2}, vcc
    v_cndmask_b32 v{a1+2}, 0, v{a1+2}, vcc
    v_mov_b32 v{GA+3}, 0
    v_mov_b32 v{GA+7}, 0''')
    Aex=[a0,a1]; Bex=[GA,GA+4]
    for t in range(2):
        for u in range(2):
            d=ACC+16*(2*t+u)
            g(f'{MF} v[{d}:{d+15}], v[{Aex[t]}:{Aex[t]+3}], v[{Bex[u]}:{Bex[u]+3}], v[{d}:{d+15}]')
    g(f'''v_mul_f32 v25, v24, v24
    v_mul_f32 v27, v26, v26
    v_mul_f32 v49, {f2u(c0):#x}, v24
    v_mul_f32 v53, {f2u(c0):#x}, v26
    v_mul_f32 v25, v25, v24
    v_mul_f32 v27, v27, v26
    v_mul_f32 v48, {f2u(c1):#x}, v25
    v_mul_f32 v52, {f2u(c1):#x}, v27''')
    g('v_lshlrev_b32 v56, 4, v0')
    g.stamp()
    while len(g.miscq)>len(trig): misc(g,1)
    def trop(pr,h):
        def op():
            if h==0: g.wait(f'w{pr}')
            for x in w2_trl(pr)[4*h:4*h+4]: g(x)
        return op
    xo=xb2_ops(g)
    trs=[]
    for pr in range(NTL,4):
        if not g.opt.get('trpost'): trs+=[trop(pr,0),trop(pr,1)]
    g.sideq+=xo+trs
    NS=g.opt.get('gside',4)
    for t in range(2):
        for u in range(2):
            d=ACC+16*(2*t+u); K=[48,52][u]; RI=[50,54][u]
            for j in range(2):
                NS=g.opt.get('gside',4) if 4*t+2*u+j>=g.opt.get('gstart',0) else 0
                P=[d+8*j+2*i for i in range(4)]
                tm=[2+2*i for i in range(4)]
                o=[24,28][j]
                for i in range(4): g(f'v_pk_mul_f32 v[{tm[i]}:{tm[i]+1}], v[{P[i]}:{P[i]+1}], v[{P[i]}:{P[i]+1}]')
                for i in range(4): g(f'v_pk_fma_f32 v[{tm[i]}:{tm[i]+1}], v[{tm[i]}:{tm[i]+1}], v[{K}:{K+1}], v[{K}:{K+1}] op_sel:[0,0,1] op_sel_hi:[1,0,1]')
                if NS>=1: g.side()
                for i in range(4): g(f'v_pk_mul_f32 v[{tm[i]}:{tm[i]+1}], v[{tm[i]}:{tm[i]+1}], v[{P[i]}:{P[i]+1}]')
                for i in range(8):
                    g(f'v_exp_f32 v{2+i}, v{2+i}')
                    if i==3 and NS>=4: g.side()
                if NS>=2: g.side()
                for i in range(4): g(f'v_pk_fma_f32 v[{tm[i]}:{tm[i]+1}], v[{tm[i]}:{tm[i]+1}], v[{RI}:{RI+1}], v[{RI}:{RI+1}] op_sel:[0,0,0] op_sel_hi:[1,0,0]')
                for i in range(8):
                    g(f'v_rcp_f32 v{2+i}, v{2+i}')
                    if i==3 and NS>=5: g.side()
                if NS>=3: g.side()
                for i in range(4): g(f'v_pk_mul_f32 v[{tm[i]}:{tm[i]+1}], v[{tm[i]}:{tm[i]+1}], v[{P[i]}:{P[i]+1}]')
                for i in range(4): g(f'v_cvt_pk_bf16_f32 v{o+i}, v{tm[i]}, v{tm[i]+1}')
                g.vmem(f'buffer_store_dwordx4 v[{o}:{o+3}], v56, s[36:39], s{60+2*t+u} offen offset:{2048*j} {"" if g.opt.get("hplain") else "sc1"}','st')
    g.stamp()
    print('after GELU: side',len(g.sideq),'misc',len(g.miscq),file=sys.stderr)
    g.stamp('tail')
    g.flush_side()
    g(f'v_mov_b32 v2, s47\nv_add_u32 v{vTm0}, 0x10000, v{vT[0]}\nv_add_u32 v{vTm1}, 0x10000, v{vT[1]}')
    NJ=g.opt.get('nj',4)
    for k in range(0 if g.opt.get('merge',0) else NJ//2): g(f'v_add_u32 v{vJ[k][0]}, {ppos(12-2*k)}, v{vT[0]}\nv_add_u32 v{vJ[k][1]}, {ppos(12-2*k)}, v{vT[1]}')
    for d in (1,2,3): g(f's_add_u32 s{5+d}, s69, {d*32768}\ns_xor_b32 s{8+d}, s{5+d}, {d*8192}')
    g(f's_add_u32 s12, s69, {32768+4096}')
    TB=g.opt.get('trbefore',1)
    for pr in range(max(4,NTL),4+TB):
        g.wait(f'w{pr}')
        for x in w2_trl(pr): g(x)
    g.stamp('tail')
    g.wait('st')
    g.stamp('tail')
    g('s_barrier')
    g.vmem(f'buffer_store_dword v2, v{vSG}, s[40:43], 0 offen sc1','flag')
    g.stamp('tail')
    if g.opt.get('merge',0):
        g.nw=NG
        return
    for pr in range(NG,10):
        for op in w2_pair_ops(g,pr): op()
    if g.opt.get('trpost'):
        for pr in range(NTL,4):
            g.wait(f'w{pr}')
            for x in w2_trl(pr): g(x)
    g('s_waitcnt lgkmcnt(0)')
    for pr in range(max(NG,10),14):
        for op in w2_pair_ops(g,pr): op()
    if g.opt.get('epoll',0): g.vmem(f'buffer_load_dword v3, v{vPL}, s[40:43], 0 offen sc1','poll')
    for pr in range(max(4+TB,NTL),14-NJ):
        g.wait(f'w{pr}')
        for x in w2_trl(pr): g(x)
    if not g.opt.get('epoll',0): g('v_not_b32 v3, v2')

def p1_dft(g):
    RAW=64
    vBr0=56; vXL=[57,18,19,2]; vSP=3; vA0=244; vBd=[4,5,6,7]; vWe,vWo=8,9; vFA=[10,11,12,13]; vFB=[14,15,16,17]
    CC=[192,196]; SS=[200,204]; NS=[208,212]
    RC=[216,218,220,222]
    if g.opt.get('p1arr',48)==216:
        g('L_dft0:\ns_lshr_b32 s100, s31, 1\ns_add_u32 s48, s48, s100\ns_lshl_b32 s100, s100, 1')
    g('''s_mov_b32 s49, s53
    s_lshr_b32 s51, s3, 1''')
    t1_of(g,'s52','s48','s51','s53')
    g(f'''s_and_b32 s50, s3, 1
    s_lshl_b32 s53, s50, 5
    s_add_u32 s53, s53, s52
    s_lshl_b32 s53, s53, 10
    v_lshrrev_b32 v24, 3, v0
    v_lshrrev_b32 v25, 4, v0
    v_and_b32 v26, 7, v0
    v_lshlrev_b32 v27, 4, v26
    v_lshl_add_u32 v27, v24, 16, v27
    s_lshl_b32 s54, s100, 7
    v_add3_u32 v{vXL[0]}, v27, s53, 0
    v_add_u32 v{vXL[0]}, s54, v{vXL[0]}
    v_xor_b32 v{vXL[1]}, 0x80, v{vXL[0]}
    v_xor_b32 v{vXL[2]}, 0x100, v{vXL[0]}
    v_xor_b32 v{vXL[3]}, 0x180, v{vXL[0]}
    s_waitcnt lgkmcnt(0)''')
    srd(g,32,4,2097152)
    def xops(gi):
        def mk(j):
            def op():
                if j==0: g(f's_mov_b32 s58, {gi*524288}')
                r=RAW+32*gi+4*j
                g.vmem(f'buffer_load_dwordx4 v[{r}:{r+3}], v{vXL[j&3]}, s[32:35], s58 offen offset:{512*(j>>2)}',f'x{gi}')
            return op
        return [mk(j) for j in range(8)]
    DO=g.opt.get('dord','a')
    for gi in range(1 if DO in 'de' else 2):
        for op in xops(gi): op()
    if DO not in 'de': g('@@SPLIT@@')
    epoch_load(g)
    srd(g,36,10,524288); srd(g,16,12,524288); srd(g,40,28,4<<20,add=F_OFF)
    g(f'''s_lshl_b32 s46, s48, 3
    s_lshl_b32 s53, s49, 2
    s_add_u32 s46, s46, s53
    s_add_u32 s46, s46, {FU}
    v_xor_b32 v26, v26, v25
    v_lshlrev_b32 v26, 4, v26
    v_lshl_add_u32 v27, v24, 11, v26
    s_lshl_b32 s53, s3, 16
    s_lshl_b32 s54, s49, 10
    s_add_u32 s53, s53, s54
    v_add_u32 v{vBd[0]}, s53, v27
    v_xor_b32 v28, 64, v{vBd[0]}
    v_add_u32 v{vBd[1]}, {16384-1024}, v28
    v_add_u32 v{vBd[2]}, {2*(16384-1024)}, v{vBd[0]}
    v_add_u32 v{vBd[3]}, {3*(16384-1024)}, v28
    v_add_u32 v28, 0x40000, v{vBd[0]}
    v_cmp_gt_u32 vcc, 1024, v{vBd[0]}
    v_lshl_add_u32 v27, v24, 7, v26
    s_lshl_b32 s53, s3, 12
    v_cndmask_b32 v{vBr0}, v{vBd[0]}, v28, vcc
    v_add_u32 v{vWe}, s53, v27
    v_xor_b32 v{vWo}, 64, v{vWe}
    s_mul_i32 s55, s3, 24576
    s_add_u32 s55, s55, 65536
    s_lshl_b32 s53, s48, 1
    s_add_u32 s53, s53, s49
    s_lshl_b32 s53, s53, 11
    s_lshl_b32 s54, s51, 10
    s_add_u32 s53, s53, s54
    s_lshl_b32 s54, s50, 4
    s_add_u32 s53, s53, s54
    s_add_u32 s53, s53, {ST_OFF-F_OFF}
    v_lshl_add_u32 v{vSP}, v24, 5, s53
    s_lshl_b32 s53, s48, 1
    s_add_u32 s53, s53, s49
    s_lshl_b32 s53, s53, 9
    s_add_u32 s13, s53, {A0_REL}
    s_lshl_b32 s54, s3, 7
    s_add_u32 s53, s13, s54
    v_lshl_add_u32 v{vA0}, v24, 2, s53
    v_and_b32 v242, 3, v0
    v_lshl_add_u32 v{vA0}, v242, 5, v{vA0}''')
    def bops(st):
        slot=st&1
        def mk(i):
            def op():
                if i==0: g(f's_xor_b32 s57, s100, {st}\ns_lshl_b32 s57, s57, 7\ns_add_u32 m0, s55, {slot*8192}')
                if i==4: g(f's_add_u32 m0, s55, {slot*8192+4096}')
                if i<4: g.vmem(f'buffer_load_dwordx4 v{vBr0 if i==0 else vBd[i]}, s[36:39], s57 offen offset:{1024*i} lds',f'B{st}')
                else:   g.vmem(f'buffer_load_dwordx4 v{vBd[i-4]}, s[16:19], s57 offen offset:{1024*(i-4)} lds',f'B{st}')
            return op
        return [mk(i) for i in range(8)]
    if DO in 'de':
        for op in bops(0): op()
        g('@@SPLIT@@')
    g(f'''v_and_b32 v24, 31, v0
    v_lshrrev_b32 v25, 5, v0
    v_bfe_u32 v26, v0, 1, 3
    v_xor_b32 v26, v26, v25
    v_lshlrev_b32 v27, 7, v24''')
    for kk in range(4):
        g(f'''v_xor_b32 v28, {2*kk}, v26
        v_lshl_add_u32 v{vFA[kk]}, v28, 4, v27
        v_add_u32 v{vFB[kk]}, s55, v{vFA[kk]}''')
    g(f'''v_cvt_f32_u32 v26, v24
    v_mul_f32 v26, {f2u(1/32):#x}, v26
    v_cvt_f32_u32 v27, v25
    v_mul_f32 v27, 4.0, v27
    v_mul_f32 v27, v27, v26
    v_mul_f32 v28, {f2u(5.0):#x}, v26''')
    for j in range(2):
        for i2 in range(4):
            for e in range(2):
                i=2*i2+e
                if not (j==0 and i==0):
                    g(f'v_add_f32 v27, v27, v{28 if i%4==0 else 26}')
                g(f'v_fract_f32 v29, v27\nv_cos_f32 v{20+e}, v29\nv_sin_f32 v{22+e}, v29')
            g(f'v_cvt_pk_bf16_f32 v{CC[j]+i2}, v20, v21\nv_cvt_pk_bf16_f32 v{SS[j]+i2}, v22, v23\nv_xor_b32 v{NS[j]+i2}, 0x80008000, v{SS[j]+i2}')
    early,addr,trig=p2_setup_ops(g,True)
    TM={0:20,1:21,2:22,3:23,4:24,5:25,6:26,7:27,8:28,9:29,10:30,12:2,13:3,14:8,15:9,16:31,17:57,18:240,19:241,20:242,21:243,22:244,23:245}
    early,addr,trig=[remap(x,TM) for x in (early,addr,trig)]
    PRO=g.opt.get('dpro',0)
    if PRO:
        for x in early+addr: g(x)
    g(f'''s_mov_b32 s59, 0x3f803f80
    s_movk_i32 s60, 0x3f80
    s_mov_b32 s61, 0x3f800000
    s_lshl_b32 s53, s49, 15
    s_or_b32 s62, s60, s53
    s_lshl_b32 s63, s62, 16
    s_cmp_eq_u32 s49, 0
    s_cselect_b32 s101, 2.0, 0
    s_waitcnt lgkmcnt(0)''')
    nonce(g)
    eps=f'{f2u(1e-5):#x}'
    chainq=[]
    def ch(n=1):
        for _ in range(n):
            if chainq: chainq.pop(0)()
    def stats(gi):
        R=RAW+32*gi; S=[224,228][gi&1]
        g.wait(f'x{gi}')
        if gi==0: g.stamp()
        for i in range(32):
            if i<2: g(f'v_dot2_f32_bf16 v{S+i}, v{R+i}, s59, 0\nv_dot2_f32_bf16 v{S+2+i}, v{R+i}, v{R+i}, 0')
            else:   g(f'v_dot2c_f32_bf16 v{S+(i&1)}, s59, v{R+i}\nv_dot2c_f32_bf16 v{S+2+(i&1)}, v{R+i}, v{R+i}')
            if i%4==3: g.side()
            if i>=2: ch(2)
        while chainq: ch()
        o=232+4*(gi&1); r1=RC[gi]; a,b,c,d=20,21,22,23
        lines=f'''v_add_f32 v{S}, v{S}, v{S+1}
        v_add_f32 v{S+2}, v{S+2}, v{S+3}
        v_add_f32_dpp v{S}, v{S}, v{S} quad_perm:[1,0,3,2] row_mask:0xf bank_mask:0xf
        v_add_f32_dpp v{S+2}, v{S+2}, v{S+2} quad_perm:[1,0,3,2] row_mask:0xf bank_mask:0xf
        v_add_f32_dpp v{S}, v{S}, v{S} quad_perm:[2,3,0,1] row_mask:0xf bank_mask:0xf
        v_add_f32_dpp v{S+2}, v{S+2}, v{S+2} quad_perm:[2,3,0,1] row_mask:0xf bank_mask:0xf
        v_add_f32_dpp v{S}, v{S}, v{S} row_half_mirror row_mask:0xf bank_mask:0xf
        v_add_f32_dpp v{S+2}, v{S+2}, v{S+2} row_half_mirror row_mask:0xf bank_mask:0xf
        v_mul_f32 v{a}, {f2u(-1/512):#x}, v{S}
        v_mul_f32 v{b}, {f2u(1/512):#x}, v{S+2}
        v_fma_f32 v{b}, -v{a}, v{a}, v{b}
        v_cvt_pk_bf16_f32 v{d}, v{a}, v{a}
        v_max_f32 v{b}, 0, v{b}
        v_lshlrev_b32 v{d}, 16, v{d}
        v_cvt_pk_bf16_f32 v{c}, 0, v{b}
        v_sub_f32 v{d}, v{a}, v{d}
        v_add_f32 v{c}, {eps}, v{c}
        v_cvt_pk_bf16_f32 v{o}, v{a}, v{d}
        v_cvt_pk_bf16_f32 v{c}, 0, v{c}
        v_mul_f32 v{r1+1}, s101, v{a}
        v_sqrt_f32 v{c}, v{c}
        v_mov_b32 v{o+3}, s47
        v_cvt_pk_bf16_f32 v{c}, 0, v{c}
        v_rcp_f32 v{r1}, v{c}
        v_mul_f32 v{d}, {f2u(-512.0):#x}, v{d}
        v_mul_f32 v{b}, v{b}, v{r1}
        v_mul_f32 v{241 if gi else 240}, v{d}, v{r1}
        v_mul_f32 v{b}, v{b}, v{r1}
        v_cvt_pk_bf16_f32 v{b}, 0, v{b}
        v_add_f32 v{b}, {eps}, v{b}
        v_cvt_pk_bf16_f32 v{b}, 0, v{b}
        v_sqrt_f32 v{b}, v{b}
        v_cvt_pk_bf16_f32 v{b}, 0, v{b}
        v_mul_f32 v{o+2}, v{b}, v{c}
        v_cvt_pk_bf16_f32 v{b}, 0, v{o+2}
        v_sub_f32 v{b}, v{o+2}, v{b}
        v_cvt_pk_bf16_f32 v{o+1}, v{o+2}, v{b}'''.split('\n')
        for ln in lines: chainq.append(lambda ln=ln: g(ln))
        chainq.append(lambda: g.vmem(f'buffer_store_dwordx4 v[{o}:{o+3}], v{vSP}, s[40:43], 0 offen offset:{256*gi} sc1','sp'))
        if gi: chainq.append(lambda: g(f'v_cmp_eq_u32 vcc, {gi}, v242\ns_nop 1\nv_cndmask_b32 v240, v240, v241, vcc'))
        if gi==3: chainq.append(lambda: g.vmem(f'buffer_store_dword v240, v{vA0}, s[40:43], 0 offen sc1','a0'))
    def bfly(gi):
        R=RAW+32*gi; r1=RC[gi]
        for j in range(4):
            o=[24,28][j&1]; T=[40,48][j&1]
            for i in range(4):
                a_=R+4*j+i; t=T+2*i
                g(f'v_dot2_f32_bf16 v{t}, v{a_}, s60, v{r1+1}\nv_dot2_f32_bf16 v{t+1}, v{a_}, s61, v{r1+1}'); ch()
            g.side()
            for i in range(4):
                b_=R+4*(j+4)+i; t=T+2*i
                g(f'v_dot2c_f32_bf16 v{t}, s62, v{b_}\nv_dot2c_f32_bf16 v{t+1}, s63, v{b_}'); ch()
            ch(2)
            for i in range(4):
                t=T+2*i
                g(f'v_pk_mul_f32 v[{t}:{t+1}], v[{t}:{t+1}], v[{r1}:{r1+1}] op_sel_hi:[1,0]')
            g.side()
            for i in range(4):
                t=T+2*i
                g(f'v_cvt_pk_bf16_f32 v{o+i}, v{t}, v{t+1}')
            g(f'ds_write_b128 v{vWo if gi&1 else vWe}, v[{o}:{o+3}] offset:{16384*j+1024*gi}')
        while chainq: ch()
    W0=16384
    LATEW=g.opt.get('latew',0)
    wl={0:W0,1:W0+4096,2:W0,3:W0+4096,4:W0,5:W0+4096,6:W0,7:W0+4096,8:0,9:4096,10:W0,11:W0+4096,12:8192,13:8192+4096}
    if LATEW: wl={0:W0,1:W0+4096,2:W0,3:W0+4096,4:W0,5:W0+4096,6:0,7:4096,8:W0,9:W0+4096,10:8192,11:8192+4096,12:0,13:4096}
    wd=lambda pr: w2_pair_ops(g,pr,'s55',wl[pr])
    order=g.opt.get('dord','a')
    plan={'a':[[],xops(2),xops(3),bops(0),bops(1),[],'w',[]],
          'b':[xops(2),xops(3),bops(0),bops(1),[],[],'w',[]],
          'c':[[],xops(2)+xops(3),bops(0),bops(1),[],'w',[],[]],
          'd':[xops(2),xops(3),[],bops(1),[],[],'w',[]],
          'e':[[],xops(2),xops(3),bops(1),[],[],'w',[]],
          'g':[[],xops(2),xops(3),bops(0),bops(1),[],[],'w'],
          'h':[[],xops(2),xops(3),bops(0),bops(1)[:4],bops(1)[4:],[],'w'],
          'i':[[],xops(2),xops(3)+bops(0),[],bops(1),[],[],'w']}[order]
    if order in 'de':
        for op in xops(1): op()
    seq=((stats,0),(stats,1),(bfly,0),(stats,2),(bfly,1),(stats,3),(bfly,2),(bfly,3))
    if g.opt.get('sfirst'):
        seq=((stats,0),(stats,1),(stats,2),(stats,3),(bfly,0),(bfly,1),(bfly,2),(bfly,3))
        plan=[xops(2),xops(3),bops(0),[],bops(1),[],'w',[]] if order not in 'de' else [xops(2),xops(3),[],bops(1),[],[],'w',[]]
    for k,(fn,gi) in enumerate(seq):
        if plan[k]=='w':
            if not LATEW:
                if not PRO:
                    for x in early: g(x)
                g.sideq+=wd(0)+wd(1)
        else: g.sideq+=plan[k]
        if fn is stats:
            while any(1 for op in plan[max(k-2,0)] if False): pass
        fn(gi); g.stamp('dst')
        if order=='c' and k==1: g.flush_side()
    g.flush_side()
    g('s_waitcnt lgkmcnt(0)\ns_barrier')
    g.stamp(); g.stamp('dst')
    ACC=64
    def fr(s_):
        b=[32,216][s_]
        return dict(A=[b,b+4,b+8,b+12],B=[b+16,b+20])
    def rd(n):
        st,kk=n>>2,n&3; f=fr(n&1)
        bb=lambda ab: f'ds_read_b128 v[{f["B"][ab]}:{f["B"][ab]+3}], v{vFB[kk]} offset:{(st&1)*8192+4096*ab}'
        aa=lambda ti: f'ds_read_b128 v[{f["A"][ti]}:{f["A"][ti]+3}], v{vFA[kk]} offset:{st*16384+4096*ti}'
        return [aa(0),bb(0),bb(1),aa(1),aa(2),aa(3)]
    g.wait('B0')
    for x in rd(0): g(x)
    vTB=[18,19]
    nT=[i for i,x in enumerate(addr) if f'v_add_u32 v{vT[3]}' in x][0]+1
    pre=([] if PRO else addr[8:nT])+['s_sub_u32 s0, s55, s69',f'v_add_u32 v18, s0, v{vT[0]}',f'v_add_u32 v19, s0, v{vT[1]}']
    if not LATEW:
        for x in pre: g(x)
    if not g.opt.get('trigp2',1):
        trig=trig_ops(0,{1:20,2:21,3:22,5:23,6:30,7:31,9:57,12:2,13:3,14:8,15:9,16:240,17:241,18:242,19:243,20:24,21:25,22:26,23:27})
    g.miscq=([] if PRO else addr[:8]+addr[nT:])+trig
    if PRO: early=[]
    TRS={0:0,1:1,5:2,6:3,9:4,10:5,13:6,14:7}
    DMS={1:[2],2:[3],6:[4],7:[5],10:[6],11:[7,8],12:[9],14:[10],15:[11]}
    if order in 'ghi':
        TRS={1:0,2:1,5:2,6:3,9:4,10:5,13:6,14:7}
        DMS={2:[2],3:[3],6:[4],7:[5],10:[6],11:[7,8],12:[9],14:[10],15:[11]}
    if LATEW:
        TRS={4:0,5:1,8:2,9:3,11:4,12:5,14:6,15:7}
        DMS={1:[0,1],5:[2],6:[3],9:[4],10:[5],11:[6,7],12:[8],13:[9]}
        g.miscq=early+pre+g.miscq
    for n in range(16):
        f=fr(n&1)
        def mf(ti,ab):
            d=ACC+32*ti+16*ab
            g(f'{MF} v[{d}:{d+15}], v[{f["A"][ti]}:{f["A"][ti]+3}], v[{f["B"][ab]}:{f["B"][ab]+3}], '+(f'v[{d}:{d+15}]' if n else '0'))
        nx=rd(n+1) if n<15 else []
        if n%2==0: g.stamp('dm')
        g('s_waitcnt lgkmcnt(0)'); mf(0,0)
        if n==3: g.sideq+=bops(2)
        if n==7: g.sideq+=bops(3)
        if LATEW and n==1:
            while any(x in g.miscq for x in early): misc(g,1)
        if LATEW and n==4:
            while any(x in g.miscq for x in pre): misc(g,1)
        if n==8:
            assert 'a0' not in g.vm
            while len(g.miscq)>len(trig): misc(g,1)
            g('s_barrier')
            g.miscq+=[f'v_and_b32 v2, 3, v0',f'v_lshrrev_b32 v3, 5, v0',f'v_lshlrev_b32 v3, 4, v3',f'v_lshl_add_u32 v2, v2, 7, v3',f'v_add_u32 v2, s13, v2',
                      f'v_and_b32 v3, 28, v0',f'v_cmp_eq_u32 vcc, 0, v3',f'v_mov_b32 v3, {OOB}','s_nop 0',f'v_cndmask_b32 v2, v3, v2, vcc']
        if n==9:
            misc(g,9999)
            g.sideq+=[(lambda q=q: g.vmem(f'buffer_load_dwordx4 v[{[20,24,28,240][q]}:{[20,24,28,240][q]+3}], v2, s[40:43], 0 offen offset:{32*q} sc1','al')) for q in range(4)]
        if n==15:
            g.wait('al')
            g.miscq+=[f'v_cvt_pk_bf16_f32 v{20+i}, v{20+2*i}, v{21+2*i}' for i in range(4)]+[f'v_cvt_pk_bf16_f32 v28, v28, v29','v_cvt_pk_bf16_f32 v29, v30, v31','v_cvt_pk_bf16_f32 v30, v240, v241','v_cvt_pk_bf16_f32 v31, v242, v243']
        for pr in DMS.get(n,[]): g.sideq+=wd(pr)
        if (n+1)%4==0 and n<15: g.wait(f'B{(n+1)>>2}')
        for x in nx[:3]: g(x)
        mf(0,1)
        for x in nx[3:]: g(x)
        mf(1,0)
        trq=[]
        if n in TRS:
            assert not any(True for op in g.sideq if getattr(op,'pr',None)==TRS[n])
            g.wait(f'w{TRS[n]}'); trq=w2_trl(TRS[n],vTB,wl[TRS[n]])
        for k,(ti,ab) in enumerate(((1,1),(2,0),(2,1),(3,0),(3,1))):
            if trq and k>=3:
                for x in trq[:4]: g(x)
                trq=trq[4:]
            else:
                had=bool(g.sideq); g.side(); misc(g,2 if had else 4)
            mf(ti,ab)
        had=bool(g.sideq); g.side(); misc(g,2 if had else 4)
    g.stamp(); g.stamp('s1'); g.stamp('dm')
    if LATEW: g.flush_side(); g.sideq+=wd(10)+wd(11)+[lambda: g('s_waitcnt lgkmcnt(0)')]
    g.sideq+=wd(12)+wd(13)
    def trop(pr):
        def op():
            g.wait(f'w{pr}')
            for x in w2_trl(pr,vTB,wl[pr])[:4]: g(x)
        def op2():
            for x in w2_trl(pr,vTB,wl[pr])[4:]: g(x)
        return [op,op2]
    NJ=g.opt.get('nj',4)
    for pr in range(8,min(12,14-NJ)): g.sideq+=trop(pr)
    g.sideq+=[lambda: [misc(g,1) for _ in range(len(g.miscq)-len(trig))]]
    def zc(ti):
        Z=[32,216][ti&1]; L=[]
        for ab in range(2):
            d=ACC+32*ti+16*ab
            for i in range(8): L.append(f'v_cvt_pk_bf16_f32 v{Z+8*ab+i}, v{d+2*i}, v{d+2*i+1}')
        return L
    for x in zc(0): g(x)
    for ti in range(4):
        Z=[32,216][ti&1]
        za=[Z,Z+4]; zb=[Z+8,Z+12]; ur=ACC+32*ti; ui=ur+16
        nxt=zc(ti+1) if ti<3 else []
        seq=[(ur,CC[0],za[0],1),(ui,CC[0],zb[0],1),(ur,CC[1],za[1],0),(ui,CC[1],zb[1],0),(ur,SS[0],zb[0],0),(ui,NS[0],za[0],0),(ur,SS[1],zb[1],0),(ui,NS[1],za[1],0)]
        for n,(d,am,bm,first) in enumerate(seq):
            g(f'{MF} v[{d}:{d+15}], v[{am}:{am+3}], v[{bm}:{bm+3}], '+('0' if first else f'v[{d}:{d+15}]'))
            for x in nxt[2*n:2*n+2]: g(x)
            had=bool(g.sideq); g.side(); misc(g,(0 if had else 2)+(0 if nxt else 2))
    g.stamp('s1')
    g.flush_side(); misc(g,9999)
    g.stamp('s1')
    for op in xb2_ops(g): op()
    for pr in (12,13):
        if pr<14-NJ:
            for op in trop(pr): op()
    for k in range(NJ//2): g(f'v_add_u32 v{vJ[k][0]}, {wl[12-2*k]}, v{vTB[0]}\nv_add_u32 v{vJ[k][1]}, {wl[12-2*k]}, v{vTB[1]}')
    g.stamp('s1')
    srd(g,36,28,4<<20,add=U_OFF)
    g(f'''v_and_b32 v24, 31, v0
    v_lshrrev_b32 v25, 5, v0
    v_lshlrev_b32 v24, 4, v24
    v_lshl_add_u32 v24, v25, 18, v24
    s_lshl_b32 s53, s3, 9
    v_add_u32 v24, s53, v24
    s_lshl_b32 s53, s48, 1
    s_add_u32 s53, s53, s49
    s_lshl_b32 s53, s53, 11''')
    for r in range(16):
        o=32+4*(r&3)
        for ti in range(4): g(f'v_cvt_pk_bf16_f32 v{o+ti}, v{ACC+32*ti+r}, v{ACC+32*ti+16+r}')
        g(f's_add_u32 s54, s53, {(8*(r>>2)+(r&3))*65536}')
        g.vmem(f'buffer_store_dwordx4 v[{o}:{o+3}], v24, s[36:39], s54 offen sc1','st')
        if r<4:
            d,am,bm,first=((224,20,CC[0],1),(240,20,NS[0],1),(224,28,CC[1],0),(240,28,NS[1],0))[r]
            g(f'{MF} a[{d}:{d+15}], v[{am}:{am+3}], v[{bm}:{bm+3}], '+('0' if first else f'a[{d}:{d+15}]'))
        if r==6:
            for i in range(4): g(f'v_accvgpr_read_b32 v{48+2*i}, a{224+i}\nv_accvgpr_read_b32 v{49+2*i}, a{240+i}')
            g(f'''s_lshl_b32 s0, s48, 12
            s_add_u32 s0, s0, 0x200000
            s_lshl_b32 s1, s49, 2
            s_add_u32 s1, s1, s3
            s_cmp_eq_u32 s1, 1
            s_cselect_b32 s0, s0, {OOB}
            v_lshl_add_u32 v2, v0, 4, s0
            v_mov_b32 v3, {OOB}
            v_cmp_gt_u32 vcc, 32, v0''')
            for i in range(4): g(f'v_cvt_pk_bf16_f32 v{28+i}, v{48+2*i}, v{49+2*i}')
            g('v_cndmask_b32 v2, v3, v2, vcc')
            g.vmem('buffer_store_dwordx4 v[28:31], v2, s[36:39], 0 offen sc1','st')
    g.stamp(); g.stamp('s1')
    g('v_mov_b32 v2, s47')
    g.vmem(f'buffer_load_dword v3, v{vPL}, s[40:43], 0 offen sc1','poll')
    def sig():
        g.wait('poll')
        g.stamp('s1')
        g('s_waitcnt lgkmcnt(0)\ns_barrier')
        if not g.opt.get('dlate',0): g(f'buffer_store_dword v2, v{vSG}, s[40:43], 0 offen sc1')
    if g.opt.get('dsig',1): g.dsig=sig
    else: sig()
    g('s_lshl_b32 s53, s3, 12')
    for d in (1,2,3): g(f's_add_u32 s{5+d}, s53, {(d-1)*16384}\ns_xor_b32 s{8+d}, s{5+d}, {d*4096}')
    g('s_lshr_b32 s12, s53, 1\ns_add_u32 s12, s12, 49152')

def p2(g, role):
    M=(role=='m') and g.opt.get('merge',0)
    X=role
    ACC=64; ACS=128; UF=144
    XS=32768+4096
    HR=[16+8*i for i in range(5)]+[192+8*i for i in range(5)]
    NH=len(HR)
    g.stamp(); g.stamp('tail')
    srd(g,36,28,7340032); srd(g,32,28,4<<20,add=U_OFF); srd(g,72,24,2097152)
    g(f'''s_sub_u32 s62, 32, s71
    s_and_b32 s62, s62, 31
    s_cmp_lt_u32 s70, 4
    s_cselect_b32 s62, s71, s62
    s_lshl_b32 s62, s62, 16
    v_mov_b32 v185, 0
    v_mov_b32 v186, 0
    v_mov_b32 v187, 0
    v_mov_b32 v188, 0x3f80
    v_cmp_gt_u32 vcc, 32, v0
    v_mov_b32 v189, 0
    v_mov_b32 v190, 0
    v_cndmask_b32 v188, 0, v188, vcc
    v_mov_b32 v191, 0
    s_mul_i32 s57, s71, 112
    s_mul_i32 s53, s3, 28
    s_add_u32 s57, s57, s53
    s_lshl_b32 s57, s57, 11
    s_add_u32 s59, s57, {28*2048}
    s_lshl_b32 s53, s44, 12
    s_add_u32 s58, s57, s53
    v_mov_b32 v2, s47
    s_mov_b32 s56, {SPIN}''')
    for d in (1,2,3):
        g(f'v_lshl_add_u32 v{9+d}, v0, 4, s{5+d}')
    g(f'v_mov_b32 v9, v{vFL}')
    if M:
        NW=g.nw; ops=[]
        for pr in range(NW,8): ops+=w2_pair_ops(g,pr)
        t01=w2_trl(0)+w2_trl(1)
        for n,op in enumerate(ops):
            op()
            if n==3: g.wait('w1')
            if n>=3 and t01:
                for x in t01[:2]: g(x)
                del t01[:2]
        for x in t01: g(x)
        g.vmem(f'buffer_load_dword v3, v{vPL}, s[40:43], 0 offen sc1','poll')
        for pr in (8,9):
            for op in w2_pair_ops(g,pr): op()
        g.wait('poll')
    if role=='d' and g.opt.get('dsig',1): g.dsig()
    PD=g.opt.get('pdepth',3)
    if PD>1 and not M:
        ld=lambda r: f'buffer_load_dword v{r}, v{vPL}, s[40:43], 0 offen sc1'
        SL=g.opt.get('psl',3)
        if role=='m': g(('' if g.opt.get('epoll',0) else ld(3))+f'\nv_mov_b32 v184, v{vB2}\ns_waitcnt vmcnt(0)')
        else: g(f'v_mov_b32 v184, v{vB2}')
        g('v_cmp_ne_u32 vcc, s47, v3\ns_cbranch_vccnz L_pslow\nL_go:')
        R=[3,4,5,6][:PD]
        t='L_pslow:\n'
        for r in R[:-1]: t+=ld(r)+f'\ns_sleep {SL}\n'
        t+='L_poll:\n'
        for k in range(PD):
            t+=ld(R[(k-1)%PD])+f'\ns_waitcnt vmcnt({PD-1})\nv_cmp_ne_u32 vcc, s47, v{R[k]}\ns_cbranch_vccz L_go\ns_sleep {g.opt.get("psl2",1)}\n'
        t+='s_sub_u32 s56, s56, 1\ns_cbranch_scc0 L_poll\ns_branch L_go'
        ool(g,t)
    else:
        if role=='m' and not M: g(f'L_poll:\nbuffer_load_dword v3, v{vPL}, s[40:43], 0 offen sc1\nv_mov_b32 v184, v{vB2}\ns_waitcnt vmcnt(0)')
        else: g(f'v_mov_b32 v184, v{vB2}\nL_poll:')
        g('v_cmp_ne_u32 vcc, s47, v3\ns_cbranch_vccnz L_pslow\nL_go:')
        ool(g,f'''L_pslow:
        s_sleep {g.opt.get('sleep',4)}
        '''+('' if (role=='m' and not M) else f'buffer_load_dword v3, v{vPL}, s[40:43], 0 offen sc1\ns_waitcnt vmcnt(0)\n')+'''s_sub_u32 s56, s56, 1
        s_cbranch_scc0 L_poll
        s_branch L_go''')

    if not M: g.vm=['old']*30
    g.stamp(); g.stamp('tail')
    hidx=[0]
    def hload():
        ks=hidx[0]; r=HR[ks%NH]
        g.vmem(f'buffer_load_dwordx4 v[{r}:{r+3}], v{vH0}, s[36:39], s58 offen offset:{2048*(ks&1)} {g.opt.get("hld","sc1").replace("none","")}',f'h{ks}')
        g.vmem(f'buffer_load_dwordx4 v[{r+4}:{r+7}], v{vH1}, s[36:39], s58 offen offset:{2048*(ks&1)} {g.opt.get("hld","sc1").replace("none","")}',f'h{ks}')
        if ks&1 and ks<27: g('s_add_u32 s58, s58, 4096\ns_cmp_eq_u32 s58, s59\ns_cselect_b32 s58, s57, s58')
        hidx[0]+=1
    HD=g.opt.get('hdepth',8)
    g(f's_waitcnt lgkmcnt(0)\ns_mov_b32 s55, 0x80000')
    for i in range(HD):
        hload()
        if role=='d' and g.opt.get('dlate',0) and i==g.opt.get('dlate',0)*4-1: g.vmem(f'buffer_store_dword v2, v{vSG}, s[40:43], 0 offen sc1','sig')
    g(f'{MF} v[{ACC}:{ACC+15}], v[184:187], v[188:191], 0')
    XA=[236,237,238,239]
    xa=Rec()
    xa(f'''v_and_b32 v236, 31, v0
    v_lshrrev_b32 v237, 5, v0
    v_lshlrev_b32 v237, 3, v237
    v_lshl_add_u32 v237, v236, 6, v237
    v_bfe_u32 v236, v0, 2, 2
    v_lshl_add_u32 v236, v236, 4, v237
    v_add_u32 v236, s12, v236
    v_xor_b32 v237, 16, v236
    v_xor_b32 v238, 32, v236
    v_xor_b32 v239, 48, v236
    v_lshl_add_u32 v240, v0, 4, s12''')
    KF=g.opt.get('kflag',11)
    NL=g.opt.get('nlast',3)
    def mf(ks,a_,b):
        r=HR[ks%NH]; d=ACC+16*(a_+2*b)
        c='0' if (ks==0 and (a_ or b)) else f'v[{d}:{d+15}]'
        g(f'{MF} v[{d}:{d+15}], a[{8*ks+4*a_}:{8*ks+4*a_+3}], v[{r+4*b}:{r+4*b+3}], {c}')
    checked=False
    NJ=g.opt.get('nj',4)
    jit=[x for pr in range(14-NJ,14) for x in w2_trl(pr,vJ[(13-pr)>>1],4096*(pr&1))]
    late=[]
    if M:
        jit=[x for pr in range(2,14) for x in w2_trl(pr)]
        for pr in range(10,14): late+=w2_pair_ops(g,pr)
    g.miscq=xa.l+(trig_ops(0) if g.opt.get('trigp2',1) else [])
    for ks in range(28-NL):
        g.wait(f'h{ks}')
        if NJ and ks==16 and not M: g('s_waitcnt lgkmcnt(0)')
        if M and ks>=4 and ks%2==0: g('s_waitcnt lgkmcnt(8)')
        if M and ks>=16 and ks%2==0 and ks<=22: g.wait(f'w{ks//2+2}')
        if ks==0:
            g.stamp()
        for b in range(2):
            for a_ in range(2):
                mf(ks,a_,b)
                if a_==0 and b==0 and (ks>=1 or M) and jit:
                    for x in jit[:4]: g(x)
                    del jit[:4]
                elif a_==1 and b==0 and late:
                    late.pop(0)(); late.pop(0)()
                elif not (a_==1 and b==1): misc(g,g.opt.get('p2misc',6 if M else 4))
            if b==0 and g.sideq: g.side()
        if hidx[0]<28: hload()
        elif g.sideq: g.side()
        if ks==(10 if M else 2):
            g('s_mov_b32 m0, s12')
            g.vmem(f'buffer_load_dwordx4 v{vXO}, s[76:79], 0 offen lds','xl')
            g('s_add_u32 m0, m0, 1024')
            g.vmem(f'buffer_load_dwordx4 v{vXO}, s[76:79], s55 offen lds','xl')
        if ks==(24 if M else 22):
            assert 'xl' not in g.vm
            for q in range(4): g(f'ds_read_b64 v[{XR+2*q}:{XR+2*q+1}], v{XA[q]}')
        if ks==KF: g.vmem(f'buffer_load_dword v176, v9, s[40:43], 0 offen sc1','fl')
        if 'fl' not in g.vm and ks>KF and not checked:
            checked=True
            g(f'''L_chk:
            v_cmp_ne_u32 vcc, s47, v176
            s_cbranch_vccnz L_uslow
            L_allset:''')
            ool(g,'''L_uslow:
            s_sleep 8
            buffer_load_dword v176, v9, s[40:43], 0 offen sc1
            s_waitcnt vmcnt(0)
            s_sub_u32 s56, s56, 1
            s_cbranch_scc0 L_chk
            s_branch L_allset''')
            def mku(j):
                def op():
                    g(f's_add_u32 s53, s62, {8192*j}')
                    g.vmem(f'buffer_load_dwordx4 v[{UF+4*j}:{UF+4*j+3}], v{vU}, s[32:35], s53 offen sc1','u')
                return op
            g.sideq+=[mku(j) for j in range(8)]
    assert checked
    if g.miscq: print('p2',role,'misc left',len(g.miscq),file=sys.stderr)
    misc(g,9999)
    g.flush_side()
    if M: g('s_waitcnt lgkmcnt(4)')
    XF=176
    def wr(d):
        for q in range(4):
            r=ACC+16*d+4*q
            g(f'ds_write_b128 v{9+d}, v[{r}:{r+3}] offset:{1024*q}')
    assert NL==3
    wl_=lambda d: [f'ds_write_b128 v{9+d}, v[{ACC+16*d+4*q}:{ACC+16*d+4*q+3}] offset:{1024*q}' for q in range(4)]
    unp=[x for i in range(8) for x in (f'v_lshlrev_b32 v{XF+2*i}, 16, v{XR+i}',f'v_and_b32 v{XF+2*i+1}, s63, v{XR+i}')]
    fill={3:[['s_mov_b32 s63, 0xffff0000'],[],['s_waitcnt lgkmcnt(0)']+unp[:3]],
          2:[unp[3:8],unp[8:12],unp[12:16]],
          1:[wl_(3)[:2],wl_(3)[2:],[f's_mov_b32 s60, {f2u(-math.log2(math.e)):#x}','s_mov_b32 s61, s60','s_mov_b32 s62, 1.0','s_mov_b32 s63, 1.0']],
          0:[[],wl_(2)[:2],wl_(2)[2:]]}
    for d in (3,2,1,0):
        for n,ks in enumerate(range(25,28)):
            g.wait(f'h{ks}')
            mf(ks,d&1,d>>1)
            for x in fill[d][n]: g(x)
    g.stamp()
    def smm(j): g(f'{MF} v[{ACS}:{ACS+15}], v[{UF+4*j}:{UF+4*j+3}], a[{224+4*j}:{227+4*j}], '+('0' if j==0 else f'v[{ACS}:{ACS+15}]'))
    g.waitall()
    smm(0)
    for x in wl_(1)[:2]: g(x)
    smm(1)
    for x in wl_(1)[2:]: g(x)
    SB=g.opt.get('sbar',3)
    for j in range(2,SB): smm(j)
    for d in (1,2,3): g(f'v_lshl_add_u32 v{9+d}, v0, 4, s{8+d}')
    g('s_waitcnt lgkmcnt(0)\ns_barrier')
    rds=[f'ds_read_b128 v[{[192,208,16][d]+4*q}:{[192,208,16][d]+4*q+3}], v{10+d} offset:{1024*q}' for q in range(4) for d in range(3)]
    for j in range(max(SB,2),8):
        smm(j)
        for x in rds[:4]: g(x)
        del rds[:4]
    for x in rds: g(x)
    if role=='m':
        g('s_lshl_b32 s1, s2, 2\ns_add_u32 s1, s1, s3\ns_cmp_eq_u32 s1, 803\ns_cbranch_scc1 L_ep0\nL_noep0:')
        ool(g,'''L_ep0:
        v_lshrrev_b32 v4, 2, v0
        v_and_b32 v5, 3, v0
        v_lshl_add_u32 v4, v4, 3, v5
        v_lshlrev_b32 v4, 8, v4
        buffer_load_dwordx4 v[6:9], v4, s[40:43], 0 offen sc1
        s_branch L_noep0''')
    T=80
    for hf in range(2):
        g(f's_waitcnt lgkmcnt({6-4*hf})')
        I=range(4*hf,4*hf+4)
        for i in I: g(f'v_pk_add_f32 v[{192+2*i}:{193+2*i}], v[{192+2*i}:{193+2*i}], v[{208+2*i}:{209+2*i}]')
        for i in I: g(f'v_pk_add_f32 v[{ACC+2*i}:{ACC+2*i+1}], v[{ACC+2*i}:{ACC+2*i+1}], v[{16+2*i}:{17+2*i}]')
        for i in I: g(f'v_pk_add_f32 v[{ACC+2*i}:{ACC+2*i+1}], v[{ACC+2*i}:{ACC+2*i+1}], v[{192+2*i}:{193+2*i}]')
        for i in I: g(f'v_pk_mul_f32 v[{T+2*i}:{T+2*i+1}], v[{ACC+2*i}:{ACC+2*i+1}], s[60:61]')
        for i in I: g(f'v_exp_f32 v{T+2*i}, v{T+2*i}\nv_exp_f32 v{T+2*i+1}, v{T+2*i+1}')
        for i in I: g(f'v_pk_add_f32 v[{T+2*i}:{T+2*i+1}], v[{T+2*i}:{T+2*i+1}], s[62:63]')
        for i in I: g(f'v_rcp_f32 v{T+2*i}, v{T+2*i}\nv_rcp_f32 v{T+2*i+1}, v{T+2*i+1}')
        sp=lambda r: ACS+4*(2*(r>>3)+(r&1))+2*((r>>2)&1)+((r>>1)&1)
        for i in I:
            for r in (2*i,2*i+1): g(f'v_mul_f32 v{ACC+r}, v{ACC+r}, v{sp(r)}')
        for i in I: g(f'v_pk_fma_f32 v[{T+2*i}:{T+2*i+1}], v[{T+2*i}:{T+2*i+1}], v[{ACC+2*i}:{ACC+2*i+1}], v[{XF+2*i}:{XF+2*i+1}]')
        for i in I: g(f'v_cvt_pk_bf16_f32 v{96+i}, v{T+2*i}, v{T+2*i+1}')
        for q in (2*hf,2*hf+1): g(f'ds_write_b64 v{XA[q]}, v[{96+2*q}:{97+2*q}]')
    g('s_waitcnt lgkmcnt(0)\nds_read_b128 v[104:107], v240\nds_read_b128 v[108:111], v240 offset:1024\ns_waitcnt lgkmcnt(1)')
    g(f'buffer_store_dwordx4 v[104:107], v{vXO}, s[72:75], 0 offen {g.opt.get("outfl","")}\ns_waitcnt lgkmcnt(0)\nbuffer_store_dwordx4 v[108:111], v{vXO}, s[72:75], s55 offen {g.opt.get("outfl","")}')
    if role=='m':
        g('s_cmp_eq_u32 s1, 803\ns_cbranch_scc1 L_ep1\nL_noep:')
        ool(g,f'''L_ep1:
        s_waitcnt vmcnt(2)
        L_ep:
        v_xor_b32 v6, s47, v6
        v_xor_b32 v7, s47, v7
        v_xor_b32 v8, s47, v8
        v_xor_b32 v9, s47, v9
        v_or3_b32 v6, v6, v7, v8
        v_or_b32 v6, v6, v9
        v_cmp_ne_u32 vcc, 0, v6
        s_cbranch_vccz L_epok
        s_sleep 8
        buffer_load_dwordx4 v[6:9], v4, s[40:43], 0 offen sc1
        s_waitcnt vmcnt(0)
        s_sub_u32 s56, s56, 1
        s_cbranch_scc0 L_ep
        L_epok:
        v_mov_b32 v3, {EPO}
        s_mov_b64 exec, 1
        buffer_store_dword v2, v3, s[40:43], 0 offen sc1
        s_mov_b64 exec, -1
        s_branch L_noep''')
    g.stamp()

DOC=""";
;   224 MLP workgroups: 128 rows x 128 hidden columns of gelu(LN(LN(x)) @ w1 + b1). The GEMM runs on raw x; both LayerNorms are
;     folded into one extra K-step (-mean * colsum(w1) + b1 / rstd) and a per-row scale. h goes to d_ws in MFMA fragment order.
;     butterfly + normalisation, half-size hidden DFT against the dft_hid tables, DFT-32 along the sequence (s = 64*s1 + s2) -> U.
;     Bins above 256 follow from the Hermitian symmetry; bin 0 is the residue left by the bf16-rounded mean.
; Hand-offs between workgroups: write-through stores, drained, then flag words / tagged granules holding a per-launch tag that is
; derived from an epoch word in d_ws (advanced once every workgroup has read it), so older launches' words never match.
"""
def build(stamps=False, opt=None):
    global vTm0,vTm1
    if (opt or {}).get('merge',0): vTm0,vTm1=241,242
    g=G(stamps,opt); g.miscq=[]; g.outofline=[]
    def sfx(L,x): return [re.sub(r'\b(L_go|L_poll|L_pslow|L_ep0|L_ep1|L_chk|L_uslow|L_allset|L_noep0|L_noep|L_epok|L_ep)\b', r'\1_'+x, l) for l in L]
    entry(g)
    head=list(g.a.l); vm0=list(g.vm); n0=g.nst
    g.a.l=[]; p1_mlp(g); mlp=list(g.a.l)
    oo=g.outofline; g.outofline=[]
    g.a.l=[]; p2(g,'m'); g.dump_stamps(TS_OFF); mlp+=sfx(g.a.l,'m')+['    s_endpgm']; oo+=sfx(g.outofline,'m'); g.outofline=[]
    g.a.l=[]; g.vm=list(vm0); g.nst=n0; g.miscq=[]
    p1_dft(g); dft=list(g.a.l)
    k=[i for i,x in enumerate(dft) if '@@SPLIT@@' in x][0]
    g.a.l=[]; p2(g,'d'); g.dump_stamps(TS_OFF); dft+=sfx(g.a.l,'d'); oo+=sfx(g.outofline,'d')
    km=[i for i,x in enumerate(mlp) if '@@SPLIT@@' in x][0]
    lines=head+mlp[:km]+['    s_branch L_mlp','L_dfte:']+dft[:k]+['    s_branch L_dft','L_mlp:']+mlp[km+1:]+['L_dft:']+dft[k+1:]+['L_end:','    s_endpgm']+oo+['L_codeend:']
    body='\n'.join(hazard.fix(lines))+'\n'
    txt=wrap([dict(name=KN,body=body,grid=256,block=256,lds=163840,vgpr=512,accum=256)],HDR)
    return txt.replace('.amdgcn_target',DOC+'.amdgcn_target',1)
if __name__=='__main__':
    out=sys.argv[1]; st='stamps' in sys.argv[2:]
    opt={}
    for a in sys.argv[2:]:
        if '=' in a:
            k,v=a.split('='); opt[k]=int(v) if v.lstrip('-').isdigit() else v
    open(out,'w').write(build(st,opt))
```
